```python
import torch

def _softmax(x, axis=-1):
    return torch.softmax(x, dim=axis)
def _gelu(x):
    return torch.nn.functional.gelu(x, approximate="tanh")
def _silu(x):
    return torch.nn.functional.silu(x)
def _sigmoid(x):
    return torch.sigmoid(x)
def _layernorm(x, axis=-1, eps=1e-5):
    m = x.mean(dim=axis, keepdim=True)
    v = x.var(dim=axis, keepdim=True, unbiased=False)
    return (x - m) / torch.sqrt(v + eps)
def _scatter_add(tgt, idx, src, axis=0):
    return tgt.clone().index_add_(axis, idx, src)
def _segment_sum(src, seg, n):
    out = torch.zeros((n,) + src.shape[1:], dtype=src.dtype)
    return out.index_add_(0, seg, src)
def _pad(x, pw):
    flat = tuple(v for pair in reversed(pw) for v in pair)
    return torch.nn.functional.pad(x, flat)

kernel_name = 'sequential_preLN__ssm_conv_s4d__moe_arch_mod__prompt'

def setup_inputs():

    _w = (lambda a: (lambda t: t.to(torch.bfloat16) if t.is_floating_point() else t)(torch.as_tensor(a)))
    def _A_setup():
        Bsz, L, D, N = 1, 2048, 640, 192
        return {
            "u": _w((lambda *s: torch.randn(*s, dtype=torch.bfloat16) * 0.05)(Bsz, L, D)),
            "log_A_real": _w((lambda *s: torch.randn(*s, dtype=torch.bfloat16) * 6.4)(D, N) * 0.5),
            "A_imag": _w((lambda *s: torch.randn(*s, dtype=torch.bfloat16) * 0.05)(D, N) * 3.14),
            "C_real": _w((lambda *s: torch.randn(*s, dtype=torch.bfloat16) * 0.05)(D, N) / N ** 0.5),
            "C_imag": _w((lambda *s: torch.randn(*s, dtype=torch.bfloat16) * 0.05)(D, N) / N ** 0.5),
            "log_dt": _w((lambda *s: torch.randn(*s, dtype=torch.bfloat16) * 0.05)(D) * 0.5 - 4.0),
            "D_skip": _w((lambda *s: torch.randn(*s, dtype=torch.bfloat16) * 0.05)(D)),
        }
    _A_in = _A_setup()

    def _B_setup():
        B, S, D, F, C = 1, 2048, 640, 1536, 8
        return {
            "x": _w((lambda *s: torch.randn(*s, dtype=torch.bfloat16) * 0.05)(B, S, D)),
            "w_r": _w((lambda *s: torch.randn(*s, dtype=torch.bfloat16) * 0.05)(D)),
            "w_gate": _w((lambda *s: torch.randn(*s, dtype=torch.bfloat16) * 0.05)(D, F)),
            "w_up": _w((lambda *s: torch.randn(*s, dtype=torch.bfloat16) * 0.05)(D, F)),
            "w_down": _w((lambda *s: torch.randn(*s, dtype=torch.bfloat16) * 0.05)(F, D)),
        }
    _B_in = _B_setup()

    return {
        "A_u": _A_in["u"],
        "A_log_A_real": _A_in["log_A_real"],
        "A_A_imag": _A_in["A_imag"],
        "A_C_real": _A_in["C_real"],
        "A_C_imag": _A_in["C_imag"],
        "A_log_dt": _A_in["log_dt"],
        "A_D_skip": _A_in["D_skip"],
        "B_x": _B_in["x"],
        "B_w_r": _B_in["w_r"],
        "B_w_gate": _B_in["w_gate"],
        "B_w_up": _B_in["w_up"],
        "B_w_down": _B_in["w_down"],
    }

def reference(A_u, A_log_A_real, A_A_imag, A_C_real, A_C_imag, A_log_dt, A_D_skip, B_x, B_w_r, B_w_gate, B_w_up, B_w_down):
    def _A_ref(u, log_A_real, A_imag, C_real, C_imag, log_dt, D_skip):
        L = u.shape[1]
        dt = torch.exp(log_dt)
        A = -torch.exp(log_A_real) + 1j * A_imag
        C = (C_real + 1j * C_imag) * dt[:, None]
        pos = (lambda x, dt: x.to(dt))(torch.arange(L), log_dt.dtype)
        P = torch.exp((A * dt[:, None])[:, :, None] * pos[None, None, :])
        K = 2.0 * torch.einsum("dn,dnl->dl", C, P).real
        L2 = 2 * L
        u_t = (lambda x, *d: x.permute(*d))(u, 0, 2, 1)
        Kf = (lambda x, *a, **k: torch.fft.rfft(x.float(), *a, **k))(K, L2)
        Uf = (lambda x, *a, **k: torch.fft.rfft(x.float(), *a, **k))(u_t, L2)
        y = (lambda x, *a, **k: torch.fft.irfft(x, *a, **k).to(torch.bfloat16))(Uf * Kf[None, :, :], L2)[:, :, :L]
        y = (lambda x, *d: x.permute(*d))(y, 0, 2, 1)
        return y + u * D_skip[None, None, :]

    def _B_ref(x, w_r, w_gate, w_up, w_down):
        B, S, D = x.shape
        C = 8
        r = x @ w_r
        idx = torch.argsort(-r, axis=-1)[:, :C]
        idx_e = (lambda x, n, axis: torch.repeat_interleave(x, n, dim=axis))(idx.reshape(B, C, 1), D, axis=2)
        x_sel = (lambda x, i, axis: torch.take_along_dim(x, i, dim=axis))(x, idx_e, axis=1)
        g = _silu(x_sel @ w_gate)
        u = x_sel @ w_up
        y = (g * u) @ w_down
        r_sel = _sigmoid((lambda x, i, axis: torch.take_along_dim(x, i, dim=axis))(r, idx, axis=1))
        y = y * r_sel.reshape(B, C, 1)
        b_off = (torch.arange(B) * S).reshape(B, 1)
        flat_idx = (idx + b_off).reshape(B * C)
        zero = (x * 0.0).reshape(B * S, D)
        upd = _scatter_add(zero, flat_idx, y.reshape(B * C, D), axis=0)
        return x + upd.reshape(B, S, D)

    x = A_u
    h = x + _A_ref(_layernorm(x, axis=-1), A_log_A_real, A_A_imag, A_C_real, A_C_imag, A_log_dt, A_D_skip)
    h2 = h + _B_ref(_layernorm(h, axis=-1), B_w_r, B_w_gate, B_w_up, B_w_down)
    return h2
```

```python
import re

TRANS = ("v_exp_f32", "v_log_f32", "v_rcp_f32", "v_rsq_f32", "v_sqrt_f32", "v_sin_f32", "v_cos_f32",
         "v_rcp_iflag_f32", "v_exp_f16", "v_rcp_f16")

_REG = re.compile(r"^(-|\|)?(abs\()?([vsa])(\d+)\)?\|?$")
_RNG = re.compile(r"^(-)?([vsa])\[(\d+):(\d+)\]$")


def split_ops(s):
    out, depth, cur = [], 0, ""
    for ch in s:
        if ch in "[(":
            depth += 1
        if ch in "])":
            depth -= 1
        if ch == "," and depth == 0:
            out.append(cur.strip())
            cur = ""
        else:
            cur += ch
    if cur.strip():
        out.append(cur.strip())
    return out


def regs_of(op):
    op = op.strip()
    m = _RNG.match(op)
    if m:
        return {(m.group(2), i) for i in range(int(m.group(3)), int(m.group(4)) + 1)}
    m = _REG.match(op)
    if m:
        return {(m.group(3), int(m.group(4)))}
    if op in ("vcc", "vcc_lo", "vcc_hi"):
        return {("vcc", 0)}
    if op in ("exec", "exec_lo", "exec_hi"):
        return {("exec", 0)}
    if op == "m0":
        return {("m0", 0)}
    return set()


class Ins:
    __slots__ = ("text", "mn", "ops", "mods", "dst", "src", "kind", "is_label", "nstates", "passes", "srcC", "srcAB",
                 "dpp", "wide_store", "target")

    def __init__(self, text):
        self.text = text
        t = text.split(";")[0].strip()
        self.is_label = t.endswith(":")
        self.dst, self.src = set(), set()
        self.kind = "other"
        self.nstates = 1
        self.passes = 0
        self.srcC, self.srcAB = set(), set()
        self.dpp = False
        self.wide_store = set()
        self.target = None
        self.mn = ""
        if self.is_label or not t or t.startswith("."):
            self.nstates = 0
            self.kind = "label" if self.is_label else "dir"
            return
        parts = t.split(None, 1)
        mn = parts[0]
        self.mn = mn
        rest = parts[1] if len(parts) > 1 else ""
        ops = split_ops(rest)
        mods = ""
        if ops:
            last = ops[-1]
            depth = 0
            for i, ch in enumerate(last):
                if ch in "[(":
                    depth += 1
                if ch in "])":
                    depth -= 1
                if ch == " " and depth == 0:
                    mods = last[i + 1:]
                    last = last[:i]
                    break
            ops[-1] = last
        self.ops, self.mods = ops, mods
        R = [regs_of(o) for o in ops]
        base = re.sub(r"_(e32|e64|dpp|sdwa)$", "", mn)
        if mn == "s_nop":
            self.nstates = int(ops[0], 0) + 1
            self.kind = "nop"
        elif mn.startswith("v_mfma"):
            self.kind = "mfma"
            self.passes = 8 if "32x32" in mn else 4
            self.dst = R[0]
            self.srcAB = R[1] | R[2]
            self.srcC = R[3]
            self.src = self.srcAB | self.srcC
        elif mn.startswith("v_"):
            self.kind = "valu"
            self.dpp = ("row_" in mods or "quad_perm" in mods or mn.endswith("_dpp") or "wave_" in mods)
            if base.startswith("v_permlane"):
                self.kind = "permlane"
                self.dst = R[0] | R[1]
                self.src = R[0] | R[1]
            elif base.startswith("v_cmp"):
                self.dst = R[0]
                self.src = set().union(*R[1:])
            elif base in ("v_readlane_b32", "v_readfirstlane_b32"):
                self.kind = "readlane"
                self.dst = R[0]
                self.src = set().union(*R[1:])
            elif base in ("v_add_co_u32", "v_sub_co_u32", "v_addc_co_u32", "v_subb_co_u32", "v_subrev_co_u32"):
                self.dst = R[0] | R[1]
                self.src = set().union(*R[2:])
            else:
                self.dst = R[0]
                self.src = set().union(*R[1:]) if len(R) > 1 else set()
                if base in ("v_fmac_f32", "v_dot2c_f32_bf16", "v_pk_fmac_f16", "v_writelane_b32", "v_fmac_f16",
                            "v_dot2c_f32_f16") or self.dpp:
                    self.src |= R[0]
                if base == "v_cndmask_b32" and len(ops) == 3:
                    self.src |= {("vcc", 0)}
            if base in TRANS:
                self.kind = "trans"
        elif mn.startswith("ds_"):
            self.kind = "ds"
            if mn.startswith(("ds_read", "ds_bpermute", "ds_permute", "ds_swizzle")) or "_rtn" in mn:
                self.dst = R[0]
                self.src = set().union(*R[1:]) if len(R) > 1 else set()
            else:
                self.src = set().union(*R)
            if "addtid" in mn:
                self.src |= {("m0", 0)}
        elif mn.startswith(("buffer_", "global_")):
            self.kind = "vmem"
            lds = (" lds" in (" " + mods)) or "_lds_" in mn
            if "load" in mn and not lds:
                self.dst = R[0]
                self.src = set().union(*R[1:])
                if "d16" in mn:
                    self.src |= R[0]
            elif "atomic" in mn and ("sc0" in mods):
                self.src = set().union(*R[1:]) if mn.startswith("global_") else set().union(*R)
                self.dst = R[0]
            else:
                self.src = set().union(*R) if R else set()
            if lds:
                self.src |= {("m0", 0)}
            if "store" in mn and ("x4" in mn or "x3" in mn):
                self.wide_store = R[1] if mn.startswith("global_") else R[0]
        elif mn.startswith("s_"):
            self.kind = "salu"
            if mn.startswith(("s_cbranch", "s_branch")):
                self.kind = "branch"
                self.target = ops[0]
            elif mn.startswith(("s_cmp", "s_bitcmp", "s_waitcnt", "s_barrier", "s_endpgm", "s_sleep", "s_setprio")):
                self.src = set().union(*R) if R else set()
            else:
                self.dst = R[0] if R else set()
                self.src = set().union(*R[1:]) if len(R) > 1 else set()
                if "saveexec" in mn:
                    self.dst |= {("exec", 0)}


def _v(s):
    return {r for r in s if r[0] in ("v", "a")}


def _s(s):
    return {r for r in s if r[0] in ("s", "vcc")}


def need(p, c):
    n = 0
    pv = p.kind in ("valu", "trans", "permlane", "readlane")
    cv = c.kind in ("valu", "trans", "permlane", "readlane")
    if pv:
        w = _v(p.dst)
        if w:
            if c.kind == "mfma" and (w & c.src):
                n = max(n, 2)
            if cv and c.dpp and (w & c.src):
                n = max(n, 2)
            if c.kind == "permlane" and (w & c.src):
                n = max(n, 2)
            if c.kind == "readlane" and (w & c.src):
                n = max(n, 1)
            if p.kind == "trans" and cv and c.kind != "trans" and (w & c.src):
                n = max(n, 1)
            if p.kind == "trans" and c.kind == "trans" and (w & c.src):
                n = max(n, 1)
        ws = _s(p.dst)
        if ws:
            if cv and (ws & c.src):
                n = max(n, 2)
                if c.kind == "readlane" or c.mn.startswith("v_writelane"):
                    n = max(n, 4)
            if c.kind == "vmem" and (ws & c.src):
                n = max(n, 5)
            if c.kind == "salu" and (ws & c.src):
                n = max(n, 1)
    if p.mn.startswith("v_dot"):
        w = _v(p.dst)
        if (w & c.src) or (w & c.dst):
            pb = re.sub(r"_(e32|e64|dpp|sdwa)$", "", p.mn)
            cb = re.sub(r"_(e32|e64|dpp|sdwa)$", "", c.mn)
            if pb == cb:
                ab = set()
                for o in c.ops[1:3]:
                    ab |= regs_of(o)
                if w & ab:
                    n = max(n, 3)
            else:
                n = max(n, 3)
    if p.kind == "mfma":
        lat = {4: 8, 8: 12}[p.passes]
        ovl = {4: 6, 8: 10}[p.passes]
        war = {4: 3, 8: 7}[p.passes]
        if c.kind == "mfma":
            if p.dst & c.srcAB:
                n = max(n, lat)
            if (p.dst & c.srcC) and (p.dst != c.srcC or p.passes != c.passes):
                n = max(n, ovl)
        else:
            if (p.dst & c.src) or (p.dst & c.dst):
                n = max(n, lat)
            if cv and (p.srcC & c.dst):
                n = max(n, war)
    if p.kind == "salu" and ("m0", 0) in p.dst and ("m0", 0) in c.src and c.kind in ("ds", "vmem"):
        n = max(n, 1)
    if p.wide_store and (p.wide_store & c.dst):
        n = max(n, 2)
    return n


W = 24


class Asm:
    def __init__(self):
        self.lines = []

    def __call__(self, s):
        for ln in s.split("\n"):
            if ln.strip():
                self.lines.append(ln.strip())

    def label(self, name):
        self.lines.append(name + ":")

    def finish(self):
        ins = [Ins(t) for t in self.lines]
        out = []
        for c in ins:
            if c.nstates and c.kind != "nop":
                req = 0
                dist = 0
                for p in reversed(out):
                    if p.kind == "branch" and p.mn == "s_branch":
                        break
                    if p.nstates == 0:
                        continue
                    r = need(p, c)
                    if r > dist:
                        req = max(req, r - dist)
                    dist += p.nstates
                    if dist > W:
                        break
                while req > 0:
                    k = min(req, 16)
                    out.append(Ins(f"s_nop {k-1}"))
                    req -= k
            out.append(c)
        changed = True
        it = 0
        while changed and it < 10:
            changed = False
            it += 1
            labels = {i.text.split(";")[0].strip()[:-1]: k for k, i in enumerate(out) if i.is_label}
            for bi, b in enumerate(out):
                if b.kind != "branch" or b.target not in labels:
                    continue
                tj = labels[b.target]
                pre = []
                dist = 0
                for p in reversed(out[:bi + 1]):
                    if p.nstates == 0:
                        continue
                    pre.append((p, dist))
                    dist += p.nstates
                    if dist > W:
                        break
                worst = 0
                d2 = 0
                for c in out[tj + 1:]:
                    if c.nstates == 0:
                        continue
                    if c.kind != "nop":
                        for p, dp in pre:
                            r = need(p, c)
                            if r > dp + d2:
                                worst = max(worst, r - dp - d2)
                    d2 += c.nstates
                    if d2 > W or c.mn in ("s_branch", "s_endpgm"):
                        break
                if worst > 0:
                    out.insert(tj + 1, Ins(f"s_nop {worst-1}"))
                    changed = True
                    break
        return "\n".join(("" if (i.is_label or i.kind == "dir") else "    ") + i.text for i in out)
```

```python
from gen import *

K2_KE, K2_KO, K2_U = 0, 4160, 8320
K2_WB = 12928
K2_LDS = 4 * K2_WB


def k2(A):
    A("s_cmp_ge_u32 s2, 256")
    A("s_cbranch_scc1 K2_END")
    A("s_load_dwordx2 s[32:33], s[0:1], 112")
    A("s_load_dwordx2 s[28:29], s[0:1], 48")
    A("s_cmp_ge_u32 s2, 160")
    A("s_cbranch_scc1 K2_WT")
    A("v_lshrrev_b32 v1, 6, v0")
    A("v_readfirstlane_b32 s3, v1")
    A("v_and_b32 v2, 63, v0")
    A("s_lshl_b32 s4, s2, 2")
    A("s_add_u32 s4, s4, s3")
    A(f"s_mul_i32 s5, s3, {K2_WB}")
    A("s_lshl_b32 s6, s4, 13")
    A(f"s_add_u32 s6, s6, {WS_KR}")
    A("s_lshl_b32 s7, s2, 14")
    A("s_lshl_b32 s8, s3, 4")
    A("s_add_u32 s7, s7, s8")
    A("v_lshlrev_b32 v3, 4, v2")
    A("v_add_u32 v3, s6, v3")
    A("v_add_u32 v4, 4096, v3")
    A("v_lshlrev_b32 v5, 6, v2")
    A("v_add_u32 v5, s7, v5")
    A("s_waitcnt lgkmcnt(0)")
    A("s_lshl_b32 s9, s4, 2")
    A(f"s_add_u32 s9, s9, {WS_SC}")
    A("s_load_dword s10, s[32:33], s9")
    A("s_lshr_b32 s9, s4, 1")
    A("s_lshl_b32 s9, s9, 2")
    A("s_load_dword s11, s[28:29], s9")
    A("s_mov_b32 m0, s5")
    for j in range(4):
        A(f"global_load_lds_dwordx4 v3, s[32:33] offset:{1024*j}")
    A(f"s_add_u32 s12, s5, {K2_KO}")
    A("s_mov_b32 m0, s12")
    for j in range(4):
        A(f"global_load_lds_dwordx4 v4, s[32:33] offset:{1024*j}")
    for j in range(4):
        A(f"s_add_u32 s12, s5, {K2_U + 512 + 1024*j}")
        A("s_mov_b32 m0, s12")
        if j:
            A("v_add_u32 v5, 4096, v5")
        A("global_load_lds_dwordx4 v5, s[32:33]")
    A("v_and_b32 v6, 15, v2")
    A("v_lshrrev_b32 v7, 4, v2")
    A("v_lshrrev_b32 v8, 1, v7")
    A("v_and_b32 v9, 1, v7")
    A("v_lshlrev_b32 v10, 7, v6")
    A("v_lshlrev_b32 v11, 6, v8")
    A("v_add_u32 v10, v10, v11")
    A("v_lshlrev_b32 v11, 3, v9")
    A("v_add_u32 v10, v10, v11")
    A(f"s_add_u32 s12, s7, {WS_XT + 4096}")
    A("v_add_u32 v10, s12, v10")
    A("v_add_u32 v11, 8192, v10")
    XR = 100
    for t in range(8):
        A(f"global_load_dwordx2 {vr(XR+2*t,2)}, v{10 if t < 4 else 11}, s[32:33] offset:{-4096 + 2048*(t%4)}")
    A("v_mov_b32 v12, 0")
    A("v_mov_b32 v13, 0")
    A("v_lshlrev_b32 v14, 3, v2")
    A("v_add_u32 v14, s5, v14")
    A(f"ds_write_b64 v14, v[12:13] offset:{K2_U}")
    A("v_lshlrev_b32 v14, 2, v6")
    A("v_add_u32 v14, s5, v14")
    A(f"ds_write_b32 v14, v12 offset:{K2_KE + 4096}")
    A(f"ds_write_b32 v14, v12 offset:{K2_KO + 4096}")
    A("v_sub_u32 v14, 2047, v6")
    A("v_lshlrev_b32 v15, 4, v8")
    A("v_sub_u32 v14, v14, v15")
    A("v_lshlrev_b32 v15, 3, v9")
    A("v_add_u32 v14, v14, v15")
    A("v_lshlrev_b32 v14, 1, v14")
    A(f"v_add_u32 v15, {K2_KO - 2}, v14")
    A("v_and_b32 v16, 1, v6")
    A("v_cmp_eq_u32 vcc, 1, v16")
    A("v_cndmask_b32 v14, v15, v14, vcc")
    A("v_add_u32 v14, s5, v14")
    AB = [20, 21, 22, 23]
    for p in range(4):
        A(f"v_subrev_u32 v{AB[p]}, {512*(2*p+1)}, v14")
    A("v_lshlrev_b32 v15, 5, v6")
    A("v_lshlrev_b32 v16, 5, v8")
    A("v_sub_u32 v15, v15, v16")
    A("v_lshlrev_b32 v16, 4, v9")
    A("v_add_u32 v15, v15, v16")
    A(f"v_add_u32 v15, {K2_U + 512}, v15")
    BB = 24
    A(f"v_add_u32 v{BB}, s5, v15")
    A("v_lshlrev_b32 v15, 5, v6")
    A("v_lshlrev_b32 v16, 3, v7")
    A("v_add_u32 v15, v15, v16")
    A(f"v_add_u32 v15, {K2_U + 512}, v15")
    A("v_add_u32 v25, s5, v15")
    A("v_mul_u32_u24 v26, 20480, v6")
    A("v_add_u32 v26, v26, v16")
    A("s_lshl_b32 s12, s4, 5")
    A(f"s_add_u32 s12, s12, {WS_HT}")
    A("v_add_u32 v26, s12, v26")
    AF, BF, ACC = 32, 64, 128
    for i in range(32):
        A(f"v_mov_b32 v{ACC+i}, 0")

    def loadA(q):
        p = q // 2
        o = 128 if q % 2 == 0 else 0
        A(f"ds_read2_b32 {vr(AF+4*q,2)}, v{AB[p]} offset0:{o} offset1:{o+1}")
        A(f"ds_read2_b32 {vr(AF+4*q+2,2)}, v{AB[p]} offset0:{o+2} offset1:{o+3}")

    def loadB(tau):
        A(f"ds_read_b128 {vr(BF+4*tau,4)}, v{BB} offset:{512*tau}")

    def bump():
        for p in range(4):
            A(f"v_subrev_u32 v{AB[p]}, 64, v{AB[p]}")
        A(f"v_subrev_u32 v{BB}, 64, v{BB}")

    A("s_waitcnt vmcnt(8) lgkmcnt(0)")
    A("s_bitcmp1_b32 s4, 0")
    A("s_cbranch_scc1 K2_ODD")
    A("s_lshl_b32 s11, s11, 16")
    A.label("K2_ODD")
    A("s_and_b32 s11, s11, 0xffff0000")
    for q in range(8):
        loadA(q)
        loadB(7 - q)
    bump()
    A("s_mov_b32 s13, 8")
    A.label("K2_LOOP")
    for q in range(8):
        for tau in range(7 - q, -1, -1):
            if q == 0:
                if tau == 7:
                    A("s_waitcnt lgkmcnt(6)")
                elif tau == 1:
                    A("s_waitcnt lgkmcnt(3)")
                elif tau == 0:
                    A("s_waitcnt lgkmcnt(0)")
            t = q + tau
            A(f"v_mfma_f32_16x16x32_f16 {vr(ACC+4*t,4)}, {vr(AF+4*q,4)}, {vr(BF+4*tau,4)}, {vr(ACC+4*t,4)}")
        loadA(q)
        loadB(7 - q)
    bump()
    A("s_sub_u32 s13, s13, 1")
    A("s_cmp_lg_u32 s13, 0")
    A("s_cbranch_scc1 K2_LOOP")
    A("s_waitcnt vmcnt(0) lgkmcnt(0)")
    for t in range(8):
        A(f"ds_read_b64 {vr(32+2*t,2)}, v25 offset:{512*t}")
    A("s_waitcnt lgkmcnt(0)")
    for t in range(8):
        a = ACC + 4 * t
        u = 32 + 2 * t
        x = XR + 2 * t
        for i in range(4):
            A(f"v_mul_f32 v{a+i}, s10, v{a+i}")
        A(f"v_cvt_pk_bf16_f32 v50, v{a}, v{a+1}")
        A(f"v_cvt_pk_bf16_f32 v51, v{a+2}, v{a+3}")
        A(f"v_lshlrev_b32 v{a}, 16, v50")
        A(f"v_and_b32 v{a+1}, 0xffff0000, v50")
        A(f"v_lshlrev_b32 v{a+2}, 16, v51")
        A(f"v_and_b32 v{a+3}, 0xffff0000, v51")
        A(f"v_fma_mix_f32 v52, v{u}, s11, 0 op_sel:[0,0,0] op_sel_hi:[1,0,0]")
        A(f"v_fma_mix_f32 v53, v{u}, s11, 0 op_sel:[1,0,0] op_sel_hi:[1,0,0]")
        A(f"v_fma_mix_f32 v54, v{u+1}, s11, 0 op_sel:[0,0,0] op_sel_hi:[1,0,0]")
        A(f"v_fma_mix_f32 v55, v{u+1}, s11, 0 op_sel:[1,0,0] op_sel_hi:[1,0,0]")
        A("v_cvt_pk_bf16_f32 v50, v52, v53")
        A("v_cvt_pk_bf16_f32 v51, v54, v55")
        A("v_lshlrev_b32 v52, 16, v50")
        A("v_and_b32 v53, 0xffff0000, v50")
        A("v_lshlrev_b32 v54, 16, v51")
        A("v_and_b32 v55, 0xffff0000, v51")
        for i in range(4):
            A(f"v_add_f32 v{a+i}, v{a+i}, v{52+i}")
        A(f"v_cvt_pk_bf16_f32 v50, v{a}, v{a+1}")
        A(f"v_cvt_pk_bf16_f32 v51, v{a+2}, v{a+3}")
        A(f"v_lshlrev_b32 v{a}, 16, v50")
        A(f"v_and_b32 v{a+1}, 0xffff0000, v50")
        A(f"v_lshlrev_b32 v{a+2}, 16, v51")
        A(f"v_and_b32 v{a+3}, 0xffff0000, v51")
        A(f"v_lshlrev_b32 v52, 16, v{x}")
        A(f"v_and_b32 v53, 0xffff0000, v{x}")
        A(f"v_lshlrev_b32 v54, 16, v{x+1}")
        A(f"v_and_b32 v55, 0xffff0000, v{x+1}")
        for i in range(4):
            A(f"v_add_f32 v{a+i}, v{a+i}, v{52+i}")
        A(f"v_cvt_pk_bf16_f32 v{a}, v{a}, v{a+1}")
        A(f"v_cvt_pk_bf16_f32 v{a+1}, v{a+2}, v{a+3}")
        A(f"global_store_dwordx2 v26, {vr(a,2)}, s[32:33]")
        if t < 7:
            A("v_add_u32 v26, 327680, v26")
    A("s_endpgm")

    A.label("K2_WT")
    A("s_load_dwordx4 s[16:19], s[0:1], 72")
    A("s_load_dwordx2 s[20:21], s[0:1], 88")
    A("v_lshrrev_b32 v1, 6, v0")
    A("v_readfirstlane_b32 s3, v1")
    A("v_and_b32 v2, 63, v0")
    A("s_sub_u32 s4, s2, 160")
    A("s_lshl_b32 s4, s4, 2")
    A("s_add_u32 s4, s4, s3")
    A("s_mul_i32 s5, s3, 12288")
    A("v_lshrrev_b32 v3, 3, v2")
    A("v_and_b32 v4, 7, v2")
    A("v_lshlrev_b32 v4, 4, v4")
    A("v_lshrrev_b32 v5, 4, v2")
    A("v_lshlrev_b32 v5, 3, v5")
    A("v_and_b32 v6, 15, v2")
    A("v_lshrrev_b32 v6, 2, v6")
    A("v_add_u32 v5, v5, v6")
    A("v_lshlrev_b32 v5, 7, v5")
    A("v_and_b32 v6, 3, v2")
    A("v_lshlrev_b32 v7, 3, v6")
    A("v_add_u32 v8, v5, v7")
    A("v_add_u32 v8, s5, v8")
    A("v_add_u32 v9, 4080, v8")
    A("v_cmp_gt_u32 vcc, 2, v6")
    A("v_cndmask_b32 v9, v9, v8, vcc")
    A("v_lshlrev_b32 v10, 4, v2")
    A("s_waitcnt lgkmcnt(0)")
    A("s_mov_b32 s6, s4")
    A.label("K2_WT_LOOP")
    A("s_cmp_ge_u32 s6, 480")
    A("s_cbranch_scc1 K2_WT_DOWN")
    A("s_mul_hi_u32 s7, s6, 0xccccccd")
    A("s_mul_i32 s8, s7, 20")
    A("s_sub_u32 s8, s6, s8")
    A("s_mul_i32 s9, s8, 98304")
    A("s_lshl_b32 s10, s7, 7")
    A("s_add_u32 s9, s9, s10")
    A("v_mul_u32_u24 v11, 3072, v3")
    A("v_add_u32 v11, v11, v4")
    A("v_add_u32 v11, s9, v11")
    for j in range(4):
        A(f"s_add_u32 s10, s5, {1024*j}")
        A("s_mov_b32 m0, s10")
        A("global_load_lds_dwordx4 v11, s[16:17]")
        A(f"s_add_u32 s10, s5, {4096 + 1024*j}")
        A("s_mov_b32 m0, s10")
        A("global_load_lds_dwordx4 v11, s[18:19]")
        if j < 3:
            A("v_add_u32 v11, 24576, v11")
    A("s_waitcnt vmcnt(0)")
    A("s_mul_i32 s9, s7, 163840")
    A("s_lshl_b32 s10, s8, 10")
    A("s_add_u32 s9, s9, s10")
    A(f"s_add_u32 s9, s9, {WS_WGU}")
    A("v_add_u32 v12, s9, v10")
    for jj in range(8):
        A(f"ds_read_b64_tr_b16 {vr(16+4*jj,2)}, v9 offset:{16*jj}")
        A(f"ds_read_b64_tr_b16 {vr(18+4*jj,2)}, v9 offset:{16*jj + 512}")
    A("s_waitcnt lgkmcnt(0)")
    for jj in range(8):
        A(f"global_store_dwordx4 v12, {vr(16+4*jj,4)}, s[32:33]")
        if jj < 7:
            A("v_add_u32 v12, 20480, v12")
    A("s_branch K2_WT_NEXT")
    A.label("K2_WT_DOWN")
    A("s_sub_u32 s11, s6, 480")
    A("s_mul_hi_u32 s7, s11, 0x5555556")
    A("s_mul_i32 s8, s7, 48")
    A("s_sub_u32 s8, s11, s8")
    A("s_mul_i32 s9, s8, 40960")
    A("s_lshl_b32 s10, s7, 7")
    A("s_add_u32 s9, s9, s10")
    A("v_mul_u32_u24 v11, 1280, v3")
    A("v_add_u32 v11, v11, v4")
    A("v_add_u32 v11, s9, v11")
    for j in range(4):
        A(f"s_add_u32 s10, s5, {1024*j}")
        A("s_mov_b32 m0, s10")
        A("global_load_lds_dwordx4 v11, s[20:21]")
        if j < 3:
            A("v_add_u32 v11, 10240, v11")
    A("s_waitcnt vmcnt(0)")
    A("s_mul_i32 s9, s7, 196608")
    A("s_lshl_b32 s10, s8, 10")
    A("s_add_u32 s9, s9, s10")
    A(f"s_add_u32 s9, s9, {WS_WD}")
    A("v_add_u32 v12, s9, v10")
    for jj in range(4):
        A(f"ds_read_b64_tr_b16 {vr(16+4*jj,2)}, v8 offset:{32*jj}")
        A(f"ds_read_b64_tr_b16 {vr(18+4*jj,2)}, v8 offset:{32*jj + 512}")
    A("s_waitcnt lgkmcnt(0)")
    for jj in range(4):
        A(f"global_store_dwordx4 v12, {vr(16+4*jj,4)}, s[32:33]")
        if jj < 3:
            A("v_add_u32 v12, 49152, v12")
    A.label("K2_WT_NEXT")
    A("s_add_u32 s6, s6, 384")
    A("s_cmp_lt_u32 s6, 960")
    A("s_cbranch_scc1 K2_WT_LOOP")
    A.label("K2_END")
    A("s_endpgm")


K3_LDS = 20480 + 1024


def k3(A):
    A("s_cmp_ge_u32 s2, 128")
    A("s_cbranch_scc1 K3_END")
    A("s_load_dwordx2 s[32:33], s[0:1], 112")
    A("s_load_dwordx2 s[28:29], s[0:1], 64")
    A("s_load_dwordx2 s[30:31], s[0:1], 96")
    A("v_lshrrev_b32 v1, 6, v0")
    A("v_readfirstlane_b32 s3, v1")
    A("v_and_b32 v2, 63, v0")
    A("s_mul_i32 s4, s2, 20480")
    A(f"s_add_u32 s4, s4, {WS_HT}")
    A("v_lshlrev_b32 v3, 4, v0")
    A("v_add_u32 v3, s4, v3")
    A("s_lshl_b32 s5, s3, 10")
    A("s_waitcnt lgkmcnt(0)")
    for i in range(5):
        A(f"s_add_u32 s6, s5, {4096*i}")
        A("s_mov_b32 m0, s6")
        A("global_load_lds_dwordx4 v3, s[32:33]")
        if i < 4:
            A("v_add_u32 v3, 4096, v3")
    A("v_lshrrev_b32 v4, 4, v0")
    A("v_mul_u32_u24 v5, 80, v4")
    WR = 60
    for i in range(5):
        A(f"global_load_dwordx4 {vr(WR+4*i,4)}, v5, s[28:29] offset:{16*i}")
    A("v_mul_u32_u24 v6, 1280, v4")
    A("v_and_b32 v7, 15, v2")
    A("v_lshrrev_b32 v8, 2, v7")
    A("v_lshlrev_b32 v8, 5, v8")
    A("v_add_u32 v6, v6, v8")
    A("v_and_b32 v8, 3, v2")
    A("v_lshlrev_b32 v8, 3, v8")
    A("v_add_u32 v6, v6, v8")
    A("s_waitcnt vmcnt(5)")
    A("s_barrier")
    H = 20
    for i in range(10):
        A(f"ds_read_b64_tr_b16 {vr(H+2*i,2)}, v6 offset:{128*i}")
    A("v_mov_b32 v10, 0")
    A("v_mov_b32 v11, 0")
    A("v_mov_b32 v12, 0x3f803f80")
    A("s_waitcnt lgkmcnt(0)")
    for i in range(20):
        A(f"v_dot2c_f32_bf16 v10, v{H+i}, v12")
        A(f"v_dot2c_f32_bf16 v11, v{H+i}, v{H+i}")

    def red_g(r, tmp):
        A(f"v_mov_b32 v{tmp}, v{r}")
        A(f"v_permlane16_swap_b32 v{r}, v{tmp}")
        A(f"v_add_f32 v{r}, v{r}, v{tmp}")
        A(f"v_mov_b32 v{tmp}, v{r}")
        A(f"v_permlane32_swap_b32 v{r}, v{tmp}")
        A(f"v_add_f32 v{r}, v{r}, v{tmp}")
    red_g(10, 13)
    red_g(11, 14)
    A("v_lshlrev_b32 v15, 3, v7")
    A("s_lshl_b32 s6, s3, 7")
    A("v_add_u32 v16, s6, v15")
    A("ds_write_b64 v16, v[10:11] offset:20480")
    A("s_waitcnt lgkmcnt(0)")
    A("s_barrier")
    for w in range(4):
        A(f"ds_read_b64 {vr(40+2*w,2)}, v15 offset:{20480 + 128*w}")
    A("s_waitcnt lgkmcnt(0)")
    A("v_add_f32 v10, v40, v42")
    A("v_add_f32 v11, v41, v43")
    A("v_add_f32 v12, v44, v46")
    A("v_add_f32 v13, v45, v47")
    A("v_add_f32 v10, v10, v12")
    A("v_add_f32 v11, v11, v13")
    ln_finish(A, 10, 11, 12)
    L = 40
    O = 80
    A("v_mov_b32 v14, 0")
    A("s_waitcnt vmcnt(0)")
    for i in range(20):
        A(f"v_lshlrev_b32 v16, 16, v{H+i}")
        A(f"v_and_b32 v17, 0xffff0000, v{H+i}")
        A("v_sub_f32 v18, v16, v10")
        A("v_sub_f32 v19, v17, v10")
        A("v_cvt_pk_bf16_f32 v13, v18, v19")
        A("v_lshlrev_b32 v18, 16, v13")
        A("v_and_b32 v19, 0xffff0000, v13")
        A("v_mul_f32 v18, v18, v11")
        A("v_mul_f32 v19, v19, v11")
        A(f"v_cvt_pk_bf16_f32 v{L+i}, v18, v19")
        A(f"v_dot2c_f32_bf16 v14, v{L+i}, v{WR+i}")
        A(f"v_lshlrev_b32 v18, 16, v{L+i}")
        A(f"v_and_b32 v19, 0xffff0000, v{L+i}")
        A("v_add_f32 v16, v16, v18")
        A("v_add_f32 v17, v17, v19")
        A(f"v_cvt_pk_bf16_f32 v{O+i}, v16, v17")
    A("s_mul_i32 s6, s2, 20480")
    A("v_mul_u32_u24 v16, 1280, v7")
    A("v_add_u32 v16, v16, v5")
    A("v_add_u32 v16, s6, v16")
    A(f"v_add_u32 v17, {WS_L2}, v16")
    for i in range(5):
        A(f"global_store_dwordx4 v16, {vr(O+4*i,4)}, s[30:31] offset:{16*i}")
        A(f"global_store_dwordx4 v17, {vr(L+4*i,4)}, s[32:33] offset:{16*i}")
    red_g(14, 13)
    A("v_lshlrev_b32 v15, 2, v7")
    A("s_lshl_b32 s6, s3, 6")
    A("v_add_u32 v18, s6, v15")
    A("ds_write_b32 v18, v14 offset:20992")
    A("s_waitcnt lgkmcnt(0)")
    A("s_barrier")
    A("s_cmp_lg_u32 s3, 0")
    A("s_cbranch_scc1 K3_END")
    for w in range(4):
        A(f"ds_read_b32 v{40+w}, v15 offset:{20992 + 64*w}")
    A("s_waitcnt lgkmcnt(0)")
    A("v_add_f32 v40, v40, v41")
    A("v_add_f32 v42, v42, v43")
    A("v_add_f32 v40, v40, v42")
    A("v_cvt_pk_bf16_f32 v40, v40, v40")
    A("v_and_b32 v40, 0xffff0000, v40")
    A("v_ashrrev_i32 v41, 31, v40")
    A("v_or_b32 v41, 0x80000000, v41")
    A("v_xor_b32 v40, v40, v41")
    A("v_and_b32 v40, 0xffff0000, v40")
    A("s_lshl_b32 s6, s2, 4")
    A("v_add_u32 v42, s6, v7")
    A("v_sub_u32 v43, 2047, v42")
    A("v_or_b32 v40, v40, v43")
    A("v_lshlrev_b32 v42, 2, v42")
    A(f"v_add_u32 v42, {WS_RK}, v42")
    A("global_store_dword v42, v40, s[32:33]")
    A.label("K3_END")
    A("s_endpgm")


K4_LDS = 8192


def k4(A):
    A("s_cmp_ge_u32 s2, 192")
    A("s_cbranch_scc1 K4_END")
    A("s_load_dwordx2 s[32:33], s[0:1], 112")
    A("v_lshrrev_b32 v1, 6, v0")
    A("v_readfirstlane_b32 s3, v1")
    A("v_and_b32 v2, 63, v0")
    A("s_mul_i32 s4, s2, 20480")
    A("s_mul_i32 s5, s3, 5120")
    A("s_add_u32 s4, s4, s5")
    A(f"s_add_u32 s4, s4, {WS_WGU}")
    A("v_lshlrev_b32 v3, 4, v2")
    A("v_add_u32 v3, s4, v3")
    A("v_lshlrev_b32 v4, 5, v0")
    A(f"v_add_u32 v4, {WS_RK}, v4")
    A("s_waitcnt lgkmcnt(0)")
    A("global_load_dwordx4 v[8:11], v4, s[32:33]")
    A("global_load_dwordx4 v[12:15], v4, s[32:33] offset:16")
    BFR = 40
    for i in range(5):
        A(f"global_load_dwordx4 {vr(BFR+4*i,4)}, v3, s[32:33] offset:{1024*i if i < 4 else 0}" if i < 4 else
          f"global_load_dwordx4 {vr(BFR+4*i,4)}, v5, s[32:33]")
        if i == 3:
            A("v_add_u32 v5, 4096, v3")
    A("s_waitcnt vmcnt(5)")
    net = [(0, 1), (2, 3), (4, 5), (6, 7), (0, 2), (1, 3), (4, 6), (5, 7), (1, 2), (5, 6), (0, 4), (3, 7), (1, 5), (2, 6),
           (1, 4), (3, 6), (2, 4), (3, 5), (3, 4)]
    for a, b in net:
        A(f"v_max_u32 v16, v{8+a}, v{8+b}")
        A(f"v_min_u32 v{8+b}, v{8+a}, v{8+b}")
        A(f"v_mov_b32 v{8+a}, v16")
    for r in range(8):
        A("v_mov_b32 v16, v8")
        for sh in (1, 2, 4, 8):
            A(f"v_max_u32_dpp v16, v16, v16 row_shr:{sh} row_mask:0xf bank_mask:0xf")
        A("v_max_u32_dpp v16, v16, v16 row_bcast:15 row_mask:0xa bank_mask:0xf")
        A("v_max_u32_dpp v16, v16, v16 row_bcast:31 row_mask:0xc bank_mask:0xf")
        A(f"v_readlane_b32 s{40+r}, v16, 63")
        if r < 7:
            A(f"v_cmp_eq_u32 vcc, s{40+r}, v8")
            for k in range(7 - r):
                A(f"v_cndmask_b32 v{8+k}, v{8+k}, v{9+k}, vcc")
    A("v_mov_b32 v16, s40")
    for r in range(1, 8):
        A(f"v_writelane_b32 v16, s{40+r}, {r}")
    A("s_lshl_b32 s6, s3, 5")
    A("v_lshlrev_b32 v17, 2, v2")
    A("v_add_u32 v17, s6, v17")
    A("v_cmp_gt_u32 vcc, 8, v2")
    A("s_and_saveexec_b64 s[20:21], vcc")
    A("ds_write_b32 v17, v16")
    A("s_mov_b64 exec, s[20:21]")
    A("s_waitcnt lgkmcnt(0)")
    A("s_barrier")
    A("v_and_b32 v17, 31, v2")
    A("v_lshlrev_b32 v17, 2, v17")
    A("ds_read_b32 v16, v17")
    A("v_mov_b32 v18, 0")
    for i in range(8):
        A(f"ds_read_b128 {vr(60+4*i,4)}, v18 offset:{16*i}")
    A("v_mov_b32 v19, 0")
    A("s_waitcnt lgkmcnt(0)")
    for i in range(32):
        A(f"v_cmp_gt_u32 vcc, v{60+i}, v16")
        A("v_addc_co_u32 v19, vcc, 0, v19, vcc")
    A("v_cmp_gt_u32 vcc, 8, v19")
    A("v_cmp_gt_u32 s[22:23], 32, v2")
    A("s_and_b64 vcc, vcc, s[22:23]")
    A("v_lshlrev_b32 v19, 2, v19")
    A("s_lshl_b32 s6, s3, 6")
    A("s_add_u32 s6, s6, 256")
    A("v_add_u32 v19, s6, v19")
    A("s_and_saveexec_b64 s[20:21], vcc")
    A("ds_write_b32 v19, v16")
    A("s_mov_b64 exec, s[20:21]")
    A("v_and_b32 v17, 7, v2")
    A("v_lshlrev_b32 v17, 2, v17")
    A("v_add_u32 v17, s6, v17")
    A("ds_read_b32 v16, v17")
    A("s_waitcnt lgkmcnt(0)")
    A("v_and_b32 v18, 0x7ff, v16")
    A("v_sub_u32 v18, 2047, v18")
    A("v_mul_u32_u24 v20, 1280, v18")
    A("v_lshrrev_b32 v21, 4, v2")
    A("v_lshlrev_b32 v21, 4, v21")
    A("v_add_u32 v20, v20, v21")
    A("s_mul_i32 s6, s3, 320")
    A(f"s_add_u32 s6, s6, {WS_L2}")
    A("v_add_u32 v20, s6, v20")
    AFR = 60
    for i in range(5):
        A(f"global_load_dwordx4 {vr(AFR+4*i,4)}, v20, s[32:33] offset:{64*i}")
    A("s_or_b32 s6, s2, s3")
    A("s_cmp_lg_u32 s6, 0")
    A("s_cbranch_scc1 K4_NOSEL")
    A("v_and_b32 v22, 0xffff0000, v16")
    A("v_ashrrev_i32 v23, 31, v22")
    A("v_not_b32 v23, v23")
    A("v_or_b32 v23, 0x80000000, v23")
    A("v_xor_b32 v22, v22, v23")
    A("v_and_b32 v22, 0xffff0000, v22")
    A(f"v_mul_f32 v22, {hex(fbits(-LOG2E))}, v22")
    A("v_exp_f32 v22, v22")
    A("v_add_f32 v22, 1.0, v22")
    A("v_rcp_f32 v22, v22")
    bf16_round(A, 22)
    A("v_lshlrev_b32 v23, 2, v2")
    A(f"v_add_u32 v23, {WS_SEL}, v23")
    A("v_cmp_gt_u32 vcc, 8, v2")
    A("s_and_saveexec_b64 s[20:21], vcc")
    A("global_store_dword v23, v18, s[32:33]")
    A("global_store_dword v23, v22, s[32:33] offset:32")
    A("s_mov_b64 exec, s[20:21]")
    A.label("K4_NOSEL")
    for i in range(4):
        A(f"v_mov_b32 v{24+i}, 0")
    A("s_waitcnt vmcnt(0)")
    for i in range(5):
        A(f"v_mfma_f32_16x16x32_bf16 v[24:27], {vr(AFR+4*i,4)}, {vr(BFR+4*i,4)}, v[24:27]")
    A("v_lshlrev_b32 v28, 4, v2")
    A("s_lshl_b32 s6, s3, 10")
    A("v_add_u32 v29, s6, v28")
    A("ds_write_b128 v29, v[24:27] offset:1024")
    A("s_waitcnt lgkmcnt(0)")
    A("s_barrier")
    A("s_cmp_lg_u32 s3, 0")
    A("s_cbranch_scc1 K4_END")
    for w in range(4):
        A(f"ds_read_b128 {vr(40+4*w,4)}, v28 offset:{1024 + 1024*w}")
    A("s_waitcnt lgkmcnt(0)")
    for i in range(4):
        A(f"v_add_f32 v{40+i}, v{40+i}, v{44+i}")
        A(f"v_add_f32 v{48+i}, v{48+i}, v{52+i}")
        A(f"v_add_f32 v{40+i}, v{40+i}, v{48+i}")
    for i in range(4):
        bf16_round(A, 40 + i)
    for i in range(4):
        A(f"v_mov_b32_dpp v{44+i}, v{40+i} row_shl:8 row_mask:0xf bank_mask:0xf")
    for i in range(4):
        A(f"v_mul_f32 v48, {hex(fbits(-LOG2E))}, v{40+i}")
        A("v_exp_f32 v48, v48")
        A("v_add_f32 v48, 1.0, v48")
        A("v_rcp_f32 v48, v48")
        A(f"v_mul_f32 v{40+i}, v{40+i}, v48")
        bf16_round(A, 40 + i)
        A(f"v_mul_f32 v{40+i}, v{40+i}, v{44+i}")
        A(f"v_cvt_pk_bf16_f32 v{40+i}, v{40+i}, v{40+i}")
    A("v_and_b32 v50, 15, v2")
    A("v_lshrrev_b32 v51, 4, v2")
    A("v_mul_u32_u24 v52, 12288, v51")
    A("v_lshlrev_b32 v53, 1, v50")
    A("v_add_u32 v52, v52, v53")
    A("s_lshl_b32 s6, s2, 4")
    A(f"s_add_u32 s6, s6, {WS_ACT}")
    A("v_add_u32 v52, s6, v52")
    A("v_cmp_gt_u32 vcc, 8, v50")
    A("v_cmp_gt_u32 s[22:23], 2, v51")
    A("s_and_b64 vcc, vcc, s[22:23]")
    A("s_and_saveexec_b64 s[20:21], vcc")
    A("global_store_short v52, v40, s[32:33]")
    A("global_store_short v52, v41, s[32:33] offset:3072")
    A("v_add_u32 v52, 6144, v52")
    A("global_store_short v52, v42, s[32:33]")
    A("global_store_short v52, v43, s[32:33] offset:3072")
    A.label("K4_END")
    A("s_endpgm")


K5_LDS = 4096


def k5(A):
    A("s_cmp_ge_u32 s2, 40")
    A("s_cbranch_scc1 K5_END")
    A("s_load_dwordx2 s[32:33], s[0:1], 112")
    A("s_load_dwordx2 s[30:31], s[0:1], 96")
    A("v_lshrrev_b32 v1, 6, v0")
    A("v_readfirstlane_b32 s3, v1")
    A("v_and_b32 v2, 63, v0")
    A("s_mul_i32 s4, s2, 49152")
    A("s_mul_i32 s5, s3, 12288")
    A("s_add_u32 s4, s4, s5")
    A(f"s_add_u32 s4, s4, {WS_WD}")
    A("v_lshlrev_b32 v3, 4, v2")
    A("v_add_u32 v3, s4, v3")
    A("v_and_b32 v4, 7, v2")
    A("v_mul_u32_u24 v4, 3072, v4")
    A("v_lshrrev_b32 v5, 4, v2")
    A("v_lshlrev_b32 v6, 4, v5")
    A("v_add_u32 v4, v4, v6")
    A("s_mul_i32 s6, s3, 768")
    A(f"s_add_u32 s6, s6, {WS_ACT}")
    A("v_add_u32 v4, s6, v4")
    A("s_waitcnt lgkmcnt(0)")
    BFR, AFR = 40, 88
    for i in range(12):
        A(f"global_load_dwordx4 {vr(BFR+4*i,4)}, v3, s[32:33] offset:{1024*(i%4)}")
        if i % 4 == 3 and i < 11:
            A("v_add_u32 v3, 4096, v3")
    for i in range(12):
        A(f"global_load_dwordx4 {vr(AFR+4*i,4)}, v4, s[32:33] offset:{64*i}")
    A("v_and_b32 v7, 1, v5")
    A("v_lshlrev_b32 v7, 4, v7")
    A(f"v_add_u32 v7, {WS_SEL}, v7")
    A("global_load_dwordx4 v[8:11], v7, s[32:33]")
    A("global_load_dwordx4 v[12:15], v7, s[32:33] offset:32")
    A("s_waitcnt vmcnt(1)")
    A("v_and_b32 v16, 15, v2")
    A("s_lshl_b32 s6, s2, 4")
    A("v_add_u32 v16, s6, v16")
    for i in range(4):
        A(f"v_mul_u32_u24 v{20+i}, 1280, v{8+i}")
        A(f"v_lshl_add_u32 v{20+i}, v16, 1, v{20+i}")
        A(f"v_add_u32 v17, {WS_L2}, v{20+i}")
        A(f"global_load_ushort v{24+i}, v17, s[32:33]")
        A(f"v_lshrrev_b32 v17, 4, v{8+i}")
        A("v_mul_u32_u24 v17, 20480, v17")
        A("v_lshl_add_u32 v17, v16, 5, v17")
        A(f"v_and_b32 v18, 15, v{8+i}")
        A("v_lshl_add_u32 v17, v18, 1, v17")
        A(f"v_add_u32 v17, {WS_HT}, v17")
        A(f"global_load_ushort v{28+i}, v17, s[32:33]")
    for i in range(4):
        A(f"v_mov_b32 v{32+i}, 0")
    A("s_waitcnt vmcnt(8)")
    for i in range(12):
        A(f"v_mfma_f32_16x16x32_bf16 v[32:35], {vr(AFR+4*i,4)}, {vr(BFR+4*i,4)}, v[32:35]")
    A("v_lshlrev_b32 v36, 4, v2")
    A("s_lshl_b32 s6, s3, 10")
    A("v_add_u32 v37, s6, v36")
    A("ds_write_b128 v37, v[32:35]")
    A("s_waitcnt lgkmcnt(0)")
    A("s_barrier")
    A("s_cmp_lg_u32 s3, 0")
    A("s_cbranch_scc1 K5_END")
    for w in range(4):
        A(f"ds_read_b128 {vr(40+4*w,4)}, v36 offset:{1024*w}")
    A("s_waitcnt vmcnt(0) lgkmcnt(0)")
    for i in range(4):
        A(f"v_add_f32 v{40+i}, v{40+i}, v{44+i}")
        A(f"v_add_f32 v{48+i}, v{48+i}, v{52+i}")
        A(f"v_add_f32 v{40+i}, v{40+i}, v{48+i}")
    for i in range(4):
        bf16_round(A, 40 + i)
        A(f"v_mul_f32 v{40+i}, v{40+i}, v{12+i}")
        bf16_round(A, 40 + i)
        A(f"v_lshlrev_b32 v{24+i}, 16, v{24+i}")
        A(f"v_add_f32 v{40+i}, v{40+i}, v{24+i}")
        bf16_round(A, 40 + i)
        A(f"v_lshlrev_b32 v{28+i}, 16, v{28+i}")
        A(f"v_add_f32 v{40+i}, v{40+i}, v{28+i}")
        A(f"v_cvt_pk_bf16_f32 v{40+i}, v{40+i}, v{40+i}")
    A("v_cmp_gt_u32 vcc, 2, v5")
    A("s_and_saveexec_b64 s[20:21], vcc")
    for i in range(4):
        A(f"global_store_short v{20+i}, v{40+i}, s[30:31]")
    A.label("K5_END")
    A("s_endpgm")


KERNELS = [
    ("k1_kernel", k1, 896, 256, K1_LDS, 168),
    ("k2_kernel", k2, 256, 256, K2_LDS, 168),
    ("k3_kernel", k3, 128, 256, K3_LDS, 104),
    ("k4_kernel", k4, 192, 256, K4_LDS, 96),
    ("k5_kernel", k5, 40, 256, K5_LDS, 136),
]
```

```python
import sys, os, struct
sys.path.insert(0, os.path.dirname(os.path.abspath(__file__)))
from asmlib import Asm

NAME = "sequential_preLN__ssm_conv_s4d__moe_arch_mod__prompt"

WS_UT = 0x0000000
WS_XT = 0x0280000
WS_KR = 0x0500000
WS_SC = 0x0A00000
WS_HT = 0x0A10000
WS_L2 = 0x0CA0000
WS_RK = 0x0F20000
WS_ACT = 0x0F30000
WS_SEL = 0x0F38000
WS_WGU = 0x1000000
WS_WD = 0x1400000


def fbits(x):
    return struct.unpack("<I", struct.pack("<f", x))[0]


LOG2E = 1.4426950408889634
L2E_HI = fbits(LOG2E)
L2E_HI_F = struct.unpack("<f", struct.pack("<I", L2E_HI))[0]
L2E_LO = fbits(LOG2E - L2E_HI_F)
LN2 = fbits(0.6931471805599453)
INV2PI = fbits(0.15915494309189535)
INV640 = fbits(1.0 / 640.0)
EPS = fbits(1e-5)


def vr(a, n):
    return f"v[{a}:{a+n-1}]"


def sr(a, n):
    return f"s[{a}:{a+n-1}]"


def bf16_round(A, reg):
    A(f"v_cvt_pk_bf16_f32 v{reg}, v{reg}, v{reg}")
    A(f"v_and_b32 v{reg}, 0xffff0000, v{reg}")


def exp_bf16(A, dst, src, t0, t1):
    A(f"v_mul_f32 v{t0}, s90, v{src}")
    A(f"v_fma_f32 v{t1}, v{src}, s90, -v{t0}")
    A(f"v_fma_f32 v{t1}, v{src}, s91, v{t1}")
    A(f"v_exp_f32 v{dst}, v{t0}")
    A(f"v_mul_f32 v{t1}, s92, v{t1}")
    A(f"v_fma_f32 v{dst}, v{dst}, v{t1}, v{dst}")
    bf16_round(A, dst)


def cmul(A, d, a, b):
    A(f"v_pk_mul_f32 {vr(d,2)}, {vr(a,2)}, {vr(b,2)} op_sel:[0,0] op_sel_hi:[0,1]")
    A(f"v_pk_fma_f32 {vr(d,2)}, {vr(a,2)}, {vr(b,2)}, {vr(d,2)} op_sel:[1,1,0] op_sel_hi:[1,0,1] neg_lo:[0,1,0]")


K1_ROWB = 288
K1_BUF = 16 * K1_ROWB
K1_KD = 3 * 2 * K1_BUF
K1_LDS = K1_KD + 4096


def k1(A):
    A("s_cmp_ge_u32 s2, 896")
    A("s_cbranch_scc1 K1_END")
    A("s_load_dwordx16 s[16:31], s[0:1], 0")
    A("s_load_dwordx2 s[32:33], s[0:1], 112")
    A("s_cmp_ge_u32 s2, 640")
    A("s_cbranch_scc1 K1_LN")
    A("v_lshrrev_b32 v1, 6, v0")
    A("v_readfirstlane_b32 s3, v1")
    A("v_and_b32 v2, 63, v0")
    A(f"s_mov_b32 s90, {L2E_HI}")
    A(f"s_mov_b32 s91, {L2E_LO}")
    A(f"s_mov_b32 s92, {LN2}")
    A("s_mul_i32 s4, s2, 384")
    A("s_lshr_b32 s5, s2, 1")
    A("s_lshl_b32 s5, s5, 2")
    A("s_waitcnt lgkmcnt(0)")
    A("s_load_dword s6, s[26:27], s5")
    A("s_cmp_eq_u32 s3, 3")
    A("s_cbranch_scc1 K1_W3")
    A("v_lshlrev_b32 v1, 1, v0")
    A("v_add_u32 v1, s4, v1")
    A("global_load_ushort v10, v1, s[18:19]")
    A("global_load_ushort v11, v1, s[20:21]")
    A("global_load_ushort v12, v1, s[22:23]")
    A("global_load_ushort v13, v1, s[24:25]")
    A("v_lshlrev_b32 v3, 1, v2")
    A("v_add_u32 v3, s4, v3")
    for i in range(3):
        A(f"global_load_ushort v{14+i}, v3, s[22:23] offset:{128*i}")
        A(f"global_load_ushort v{17+i}, v3, s[24:25] offset:{128*i}")
    A("s_branch K1_IDX")
    A.label("K1_W3")
    A("v_mov_b32 v4, 0")
    A("v_mov_b32 v5, 0")
    A("v_mov_b32 v6, 0")
    A("v_mov_b32 v7, 0")
    A("v_lshlrev_b32 v3, 4, v2")
    for i in range(4):
        A(f"ds_write_b128 v3, v[4:7] offset:{K1_KD + 1024*i}")
    A.label("K1_IDX")
    A("v_lshlrev_b32 v3, 3, v0")
    A("v_sub_u32 v3, 2047, v3")
    for k in range(9):
        A(f"v_subrev_u32 v{30+k}, {k}, v3")
    for k in range(9):
        A(f"v_max_i32 v{40+k}, 0, v{30+k}")
        A(f"v_cvt_f32_i32 v{40+k}, v{40+k}")
    for k in range(0, 8, 2):
        A(f"v_cvt_pk_bf16_f32 v{50+k}, v{40+k}, v{41+k}")
        A(f"v_lshrrev_b32 v{51+k}, 16, v{50+k}")
        A(f"v_and_b32 v{50+k}, 0xffff, v{50+k}")
    A("v_cvt_pk_bf16_f32 v58, v48, v48")
    A("v_and_b32 v58, 0xffff, v58")
    for k in range(9):
        A(f"v_subrev_u32 v{50+k}, 17024, v{50+k}")
        A(f"v_min_i32 v{30+k}, 127, v{30+k}")
        A(f"v_max_i32 v{50+k}, v{50+k}, v{30+k}")
        A(f"v_lshlrev_b32 v{20+k}, 2, v{50+k}")
        A(f"v_add_u32 v{20+k}, {K1_KD + 4}, v{20+k}")
    A("s_cmp_eq_u32 s3, 3")
    A("s_cbranch_scc1 K1_BAR1")
    A("v_and_b32 v3, 15, v2")
    A("v_lshrrev_b32 v4, 4, v2")
    A("v_lshlrev_b32 v5, 6, v4")
    A("v_add_u32 v5, v5, v3")
    A("v_lshlrev_b32 v29, 2, v5")
    A(f"v_add_u32 v29, {K1_KD + 4}, v29")
    A("v_lshlrev_b32 v5, 1, v3")
    A("v_add_u32 v5, v5, v4")
    A("v_add_u32 v5, 384, v5")
    A("v_lshlrev_b32 v6, 4, v4")
    A("v_add_u32 v6, v6, v3")
    A("v_add_u32 v6, 480, v6")
    A("v_cmp_gt_u32 vcc, 2, v4")
    A("v_cndmask_b32 v5, v6, v5, vcc")
    A("v_lshlrev_b32 v30, 2, v5")
    A(f"v_add_u32 v30, {K1_KD + 4}, v30")
    A("v_lshlrev_b32 v5, 6, v4")
    A("v_lshlrev_b32 v6, 2, v3")
    A("v_add_u32 v5, v5, v6")
    A("v_add_u32 v5, 256, v5")
    A("v_lshlrev_b32 v6, 2, v2")
    A("v_add_u32 v6, 520, v6")
    A("v_cndmask_b32 v5, v6, v5, vcc")
    A("v_mov_b32 v6, 640")
    A("v_cmp_eq_u32 vcc, 32, v2")
    A("v_cndmask_b32 v5, v5, v6, vcc")
    A("v_lshlrev_b32 v31, 2, v5")
    A(f"v_add_u32 v31, {K1_KD + 4}, v31")
    A(f"s_mul_i32 s7, s3, {2*K1_BUF}")
    A(f"v_mul_u32_u24 v32, {K1_ROWB}, v3")
    A("v_lshlrev_b32 v5, 4, v4")
    A("v_add_u32 v32, v32, v5")
    A("v_add_u32 v32, s7, v32")
    A("s_waitcnt lgkmcnt(0)")
    A("s_bitcmp1_b32 s2, 0")
    A("s_cbranch_scc1 K1_ODD")
    A("s_lshl_b32 s6, s6, 16")
    A.label("K1_ODD")
    A("s_and_b32 s6, s6, 0xffff0000")
    A("v_mov_b32 v5, s6")
    exp_bf16(A, 33, 5, 6, 7)
    A("s_waitcnt vmcnt(0)")
    for i in range(6):
        A(f"v_and_b32 v{14+i}, 0x7fff, v{14+i}")
    A("v_max3_u32 v14, v14, v15, v16")
    A("v_max3_u32 v17, v17, v18, v19")
    A("v_max_u32 v14, v14, v17")
    for sh in (1, 2, 4, 8):
        A(f"v_max_u32_dpp v14, v14, v14 row_shr:{sh} row_mask:0xf bank_mask:0xf")
    A("v_max_u32_dpp v14, v14, v14 row_bcast:15 row_mask:0xa bank_mask:0xf")
    A("v_max_u32_dpp v14, v14, v14 row_bcast:31 row_mask:0xc bank_mask:0xf")
    A("v_readlane_b32 s8, v14, 63")
    A("s_lshr_b32 s8, s8, 7")
    A("s_max_u32 s8, s8, 6")
    A("s_min_u32 s8, s8, 253")
    A("s_sub_u32 s9, 260, s8")
    A("s_lshl_b32 s9, s9, 23")
    A("s_sub_u32 s10, s8, 132")
    A("v_ldexp_f32 v6, v33, s10")
    A("s_lshl_b32 s11, s2, 2")
    A(f"s_add_u32 s11, s11, {WS_SC}")
    A("v_mov_b32 v7, s11")
    A("global_store_dword v7, v6, s[32:33]")
    A("v_lshlrev_b32 v10, 16, v10")
    A("v_lshlrev_b32 v11, 16, v11")
    A("v_lshlrev_b32 v12, 16, v12")
    A("v_lshlrev_b32 v13, 16, v13")
    exp_bf16(A, 34, 10, 6, 7)
    A("v_mul_f32 v34, v34, v33")
    A("v_mul_f32 v35, v11, v33")
    A("v_mul_f32 v34, s90, v34")
    A("v_sub_f32 v34, 0, v34")
    A(f"v_mul_f32 v35, {INV2PI}, v35")
    C = 36
    A(f"v_mul_f32 v{C}, s9, v12")
    A(f"v_mul_f32 v{C+1}, s9, v13")

    def direct(d, p):
        A(f"v_mul_f32 v6, {float(p) if p in (1,) else hex(fbits(float(p)))}, v34")
        A(f"v_mul_f32 v7, {float(p) if p in (1,) else hex(fbits(float(p)))}, v35")
        A("v_fract_f32 v7, v7")
        A("v_exp_f32 v6, v6")
        A("v_cos_f32 v8, v7")
        A("v_sin_f32 v9, v7")
        A(f"v_mul_f32 v{d}, v6, v8")
        A(f"v_mul_f32 v{d+1}, v6, v9")

    g = {i: 40 + 2 * (i - 1) for i in range(1, 9)}
    h = {1: g[8]}
    for i in range(2, 9):
        h[i] = 56 + 2 * (i - 2)
    h[10], h[12], h[14] = 70, 72, 74
    G128, G256, G512, G1024 = 76, 78, 80, 82
    T = [84, 86, 88, 90]
    PK = [92, 93, 94, 95]
    cA = [96, 98, 100, 102]
    B1, B8, AF = 104, 120, 4
    AF = 136
    ACC = [152, 156, 160]
    pkc = [0]

    def wr(row, buf, src, neg):
        p = PK[pkc[0] % 4]
        pkc[0] += 1
        A(f"v_cvt_pk_f16_f32 v{p}, v{src}, {'-' if neg else ''}v{src+1}")
        A(f"ds_write_addtid_b32 v{p} offset:{buf*K1_BUF + row*K1_ROWB}")

    def frags(dst, buf):
        for j in range(4):
            A(f"ds_read_b128 {vr(dst+4*j,4)}, v32 offset:{buf*K1_BUF + 64*j}")

    A("s_mov_b32 m0, s7")
    direct(g[1], 1)
    direct(g[8], 8)
    direct(G128, 128)
    cmul(A, g[2], g[1], g[1])
    cmul(A, g[3], g[2], g[1])
    cmul(A, g[4], g[2], g[2])
    cmul(A, g[5], g[4], g[1])
    cmul(A, g[6], g[4], g[2])
    cmul(A, g[7], g[4], g[3])
    A(f"v_mov_b32 v{PK[3]}, 0x00003c00")
    A(f"ds_write_addtid_b32 v{PK[3]} offset:0")
    for i in range(1, 9):
        wr(i, 0, g[i], False)
    for i in range(1, 8):
        t = T[i % 4]
        cmul(A, t, g[8], g[i])
        wr(8 + i, 0, t, False)
    frags(B1, 0)
    cmul(A, h[2], h[1], h[1])
    cmul(A, h[3], h[2], h[1])
    cmul(A, h[4], h[2], h[2])
    cmul(A, h[5], h[4], h[1])
    cmul(A, h[6], h[4], h[2])
    cmul(A, h[7], h[4], h[3])
    cmul(A, h[8], h[4], h[4])
    A(f"v_mov_b32 v{PK[3]}, 0x00003c00")
    A(f"ds_write_addtid_b32 v{PK[3]} offset:{K1_BUF}")
    for i in range(1, 9):
        wr(i, 1, h[i], False)
    for i in range(1, 8):
        t = h[8 + i] if (8 + i) in h else T[i % 4]
        cmul(A, t, h[8], h[i])
        wr(8 + i, 1, t, False)
    frags(B8, 1)
    wr(0, 0, C, True)
    for hi in range(1, 8):
        t = T[hi % 4]
        cmul(A, t, C, h[2 * hi])
        wr(hi, 0, t, True)
    cmul(A, cA[0], C, G128)
    wr(8, 0, cA[0], True)
    for i in range(1, 8):
        t = T[i % 4]
        cmul(A, t, cA[0], h[2 * i])
        wr(8 + i, 0, t, True)
    frags(AF, 0)
    cmul(A, G256, G128, G128)
    cmul(A, G512, G256, G256)
    cmul(A, G1024, G512, G512)
    for i in range(12):
        A(f"v_mov_b32 v{ACC[0]+i}, 0")
    cmul(A, cA[0], C, G512)
    cmul(A, cA[1], cA[0], G128)
    cmul(A, cA[2], cA[0], G256)
    cmul(A, cA[3], cA[2], G128)
    for i in range(4):
        wr(i, 1, cA[i], True)
    for i in range(4):
        cmul(A, T[i], cA[i], g[4])
        wr(4 + i, 1, T[i], True)
    A("s_waitcnt lgkmcnt(8)")
    for j in range(4):
        A(f"v_mfma_f32_16x16x32_f16 {vr(ACC[0],4)}, {vr(AF+4*j,4)}, {vr(B1+4*j,4)}, {vr(ACC[0],4)}")
    cmul(A, cA[0], C, G1024)
    cmul(A, cA[1], cA[0], G256)
    cmul(A, cA[2], cA[0], G512)
    cmul(A, cA[3], cA[2], G256)
    for i in range(4):
        wr(8 + i, 1, cA[i], True)
    for i in range(4):
        cmul(A, T[i], cA[i], G128)
        wr(12 + i, 1, T[i], True)
    frags(AF, 1)
    cmul(A, T[0], cA[0], G1024)
    wr(8, 0, T[0], True)
    cmul(A, cA[1], C, G256)
    cmul(A, cA[2], cA[1], G128)
    wr(0, 0, cA[1], True)
    wr(4, 0, cA[2], True)
    for k, gi in enumerate((2, 4, 6)):
        cmul(A, T[1], cA[1], g[gi])
        wr(1 + k, 0, T[1], True)
        cmul(A, T[2], cA[2], g[gi])
        wr(5 + k, 0, T[2], True)
    A("s_waitcnt lgkmcnt(9)")
    for j in range(4):
        A(f"v_mfma_f32_16x16x32_f16 {vr(ACC[1],4)}, {vr(AF+4*j,4)}, {vr(B8+4*j,4)}, {vr(ACC[1],4)}")
    frags(B1, 0)
    A("s_waitcnt lgkmcnt(0)")
    for j in range(4):
        A(f"v_mfma_f32_16x16x32_f16 {vr(ACC[2],4)}, {vr(B1+4*j,4)}, {vr(B8+4*j,4)}, {vr(ACC[2],4)}")
    A.label("K1_BAR1")
    A("s_waitcnt lgkmcnt(0)")
    A("s_barrier")
    A("s_cmp_eq_u32 s3, 3")
    A("s_cbranch_scc1 K1_BAR2")
    for i in range(4):
        A(f"ds_add_f32 v29, v{ACC[0]+i} offset:{64*i}")
    for i in range(4):
        A(f"ds_add_f32 v30, v{ACC[1]+i} offset:{128*i}")
    for i in range(4):
        A(f"ds_add_f32 v31, v{ACC[2]+i} offset:{4*i}")
    A.label("K1_BAR2")
    A("s_waitcnt lgkmcnt(0)")
    A("s_barrier")
    for k in range(9):
        A(f"ds_read_b32 v{40+k}, v{20+k}")
    A("s_lshl_b32 s11, s2, 13")
    A(f"s_add_u32 s11, s11, {WS_KR}")
    A("v_lshlrev_b32 v1, 4, v0")
    A("v_add_u32 v1, s11, v1")
    A("v_add_u32 v2, 4096, v1")
    A("s_waitcnt lgkmcnt(0)")
    for k in range(4):
        A(f"v_cvt_pk_f16_f32 v{52+k}, v{40+2*k}, v{41+2*k}")
    for k in range(4):
        A(f"v_cvt_pk_f16_f32 v{56+k}, v{41+2*k}, v{42+2*k}")
    A("global_store_dwordx4 v1, v[52:55], s[32:33]")
    A("global_store_dwordx4 v2, v[56:59], s[32:33]")
    A("s_endpgm")

    A.label("K1_LN")
    A("v_lshrrev_b32 v1, 6, v0")
    A("v_readfirstlane_b32 s3, v1")
    A("s_cmp_eq_u32 s3, 3")
    A("s_cbranch_scc1 K1_END")
    A("s_sub_u32 s4, s2, 640")
    A("s_mul_i32 s5, s4, 10240")
    A("v_min_u32 v2, 159, v0")
    A("v_lshlrev_b32 v3, 3, v2")
    A("v_add_u32 v3, s5, v3")
    A("v_add_u32 v4, 5120, v3")
    A("s_waitcnt lgkmcnt(0)")
    for r in range(8):
        A(f"global_load_dwordx2 {vr(40+2*r,2)}, v{3 if r < 4 else 4}, s[16:17] offset:{1280*(r%4)}")
    A("s_cmp_eq_u32 s3, 2")
    A("s_cbranch_scc1 K1_LNBAR")
    A("v_lshrrev_b32 v5, 4, v0")
    A("v_mul_u32_u24 v6, 1280, v5")
    A("v_and_b32 v7, 15, v0")
    A("v_lshlrev_b32 v7, 4, v7")
    A("v_add_u32 v6, v6, v7")
    A("v_add_u32 v6, s5, v6")
    for i in range(5):
        A(f"global_load_dwordx4 {vr(8+4*i,4)}, v6, s[16:17] offset:{256*i}")
    A("v_mov_b32 v30, 0")
    A("v_mov_b32 v31, 0")
    A("v_mov_b32 v32, 0x3f803f80")
    A("s_waitcnt vmcnt(0)")
    for i in range(20):
        A(f"v_dot2c_f32_bf16 v30, v{8+i}, v32")
        A(f"v_dot2c_f32_bf16 v31, v{8+i}, v{8+i}")
    for sh in (8, 4, 2, 1):
        A(f"v_add_f32_dpp v30, v30, v30 row_ror:{sh} row_mask:0xf bank_mask:0xf")
        A(f"v_add_f32_dpp v31, v31, v31 row_ror:{sh} row_mask:0xf bank_mask:0xf")
    ln_finish(A, 30, 31, 33)
    A("v_lshlrev_b32 v5, 3, v5")
    A("ds_write_b64 v5, v[30:31]")
    A.label("K1_LNBAR")
    A("s_waitcnt lgkmcnt(0)")
    A("s_barrier")
    A("v_mov_b32 v5, 0")
    for i in range(4):
        A(f"ds_read_b128 {vr(8+4*i,4)}, v5 offset:{16*i}")
    A("s_waitcnt vmcnt(0) lgkmcnt(0)")
    A("s_mov_b32 s20, 0x05040100")
    A("s_mov_b32 s21, 0x07060302")
    for rp in range(4):
        r0, r1 = 2 * rp, 2 * rp + 1
        for ch in range(4):
            a, b = 40 + 2 * r0 + (ch >> 1), 40 + 2 * r1 + (ch >> 1)
            A(f"v_perm_b32 v{76+4*ch+rp}, v{b}, v{a}, s{20 + (ch & 1)}")
            if ch & 1:
                A(f"v_and_b32 v24, 0xffff0000, v{a}")
                A(f"v_and_b32 v25, 0xffff0000, v{b}")
            else:
                A(f"v_lshlrev_b32 v24, 16, v{a}")
                A(f"v_lshlrev_b32 v25, 16, v{b}")
            A(f"v_sub_f32 v24, v24, v{8+2*r0}")
            A(f"v_sub_f32 v25, v25, v{8+2*r1}")
            A("v_cvt_pk_bf16_f32 v26, v24, v25")
            A("v_lshlrev_b32 v24, 16, v26")
            A("v_and_b32 v25, 0xffff0000, v26")
            A(f"v_mul_f32 v24, v24, v{9+2*r0}")
            A(f"v_mul_f32 v25, v25, v{9+2*r1}")
            A("v_cvt_pk_bf16_f32 v26, v24, v25")
            A("v_lshlrev_b32 v24, 16, v26")
            A("v_and_b32 v25, 0xffff0000, v26")
            A(f"v_cvt_pk_f16_f32 v{60+4*ch+rp}, v24, v25")
    A("v_lshlrev_b32 v3, 14, v2")
    A("s_lshl_b32 s5, s4, 6")
    A("v_add_u32 v3, s5, v3")
    A(f"v_add_u32 v4, {WS_XT}, v3")
    for ch in range(4):
        A(f"global_store_dwordx4 v3, {vr(60+4*ch,4)}, s[32:33] offset:{16*ch}")
        A(f"global_store_dwordx4 v4, {vr(76+4*ch,4)}, s[32:33] offset:{16*ch}")
    A.label("K1_END")
    A("s_endpgm")


def ln_finish(A, s1, s2, t):
    A(f"v_mul_f32 v{s1}, {INV640}, v{s1}")
    A(f"v_mul_f32 v{s2}, {INV640}, v{s2}")
    A(f"v_fma_f32 v{s2}, -v{s1}, v{s1}, v{s2}")
    A(f"v_max_f32 v{s2}, 0, v{s2}")
    A(f"v_cvt_pk_bf16_f32 v{t}, v{s1}, v{s2}")
    A(f"v_lshlrev_b32 v{s1}, 16, v{t}")
    A(f"v_and_b32 v{s2}, 0xffff0000, v{t}")
    A(f"v_add_f32 v{s2}, {EPS}, v{s2}")
    bf16_round(A, s2)
    A(f"v_sqrt_f32 v{s2}, v{s2}")
    bf16_round(A, s2)
    A(f"v_rcp_f32 v{s2}, v{s2}")


KD_TMPL = """.amdhsa_kernel {name}
  .amdhsa_next_free_vgpr {vgpr}
  .amdhsa_next_free_sgpr 102
  .amdhsa_accum_offset {acc}
  .amdhsa_group_segment_fixed_size 0
  .amdhsa_kernarg_size 120
  .amdhsa_user_sgpr_count 2
  .amdhsa_user_sgpr_kernarg_segment_ptr 1
  .amdhsa_system_sgpr_workgroup_id_x 1
.end_amdhsa_kernel
"""

HEADER = """; Kernarg layout (120 bytes, ptrs only): in0..in11 at 0..88, d_out 96, d_debug 104, d_ws 112
"""


def build(kernels):
    s = HEADER
    for label, fn, grid, block, lds, vgpr in kernels:
        s += f"; @launch kernel={label} grid=({grid},1,1) block=({block},1,1) lds={lds}\n"
    s += '.amdgcn_target "amdgcn-amd-amdhsa--gfx950"\n.text\n'
    done = set()
    for label, fn, grid, block, lds, vgpr in kernels:
        if label in done:
            continue
        done.add(label)
        A = Asm()
        fn(A)
        s += f".globl {label}\n.p2align 8\n.type {label},@function\n{label}:\n" + A.finish() + "\n"
    s += '.section .rodata,"a"\n'
    done = set()
    for label, fn, grid, block, lds, vgpr in kernels:
        if label in done:
            continue
        done.add(label)
        s += ".p2align 6\n" + KD_TMPL.format(name=label, vgpr=vgpr, acc=min(256, (vgpr + 3) // 4 * 4))
    return s


if __name__ == "__main__":
    from gen_rest import KERNELS
    out = build(KERNELS)
    path = sys.argv[1] if len(sys.argv) > 1 else f"cdna_kernels/{NAME}.s"
    open(path, "w").write(out)
    print("wrote", path, len(out), "bytes")
```

```python
import sys
from gen import *
from gen_rest import *
def empty(A):
    A("s_endpgm")
base = list(KERNELS)
open("v_base.s", "w").write(build(base))
open("v_f5.s", "w").write(build([("e_kernel", empty, 1, 64, 0, 8)] * 5 + base))
open("v_f10.s", "w").write(build([("e_kernel", empty, 1, 64, 0, 8)] * 10 + base))
open("v_f1.s", "w").write(build([("e_kernel", empty, 1, 64, 0, 8)] * 1 + base))
```

```python
import sys, os, struct
sys.path.insert(0, os.path.dirname(os.path.abspath(__file__)))
from asmlib import Asm

NAME = "sequential_preLN__ssm_conv_s4d__moe_arch_mod__prompt"

WS_UT = 0x0000000
WS_XT = 0x0280000
WS_KR = 0x0500000
WS_SC = 0x0A00000
WS_HT = 0x0A10000
WS_L2 = 0x0CA0000
WS_RK = 0x0F20000
WS_ACT = 0x0F30000
WS_SEL = 0x0F38000
WS_WGU = 0x1000000
WS_WD = 0x1400000


WS_STAMP = 0x1800000
STAMP = [False]


NSTAMP = 12


def k_begin(A):
    if STAMP[0]:
        A("s_memrealtime s[94:95]")
        for i in range(NSTAMP):
            A(f"s_mov_b64 s[{60+2*i}:{61+2*i}], 0")
        A("s_memtime s[60:61]")


def stamp(A, i):
    if STAMP[0]:
        A(f"s_memtime s[{60+2*i}:{61+2*i}]")


def k_end(A, kidx):
    if STAMP[0]:
        A(f"s_memtime s[{60+2*(NSTAMP-2)}:{61+2*(NSTAMP-2)}]")
        A("s_waitcnt vmcnt(0) lgkmcnt(0)")
        A("s_memrealtime s[96:97]")
        A(f"s_memtime s[{60+2*(NSTAMP-1)}:{61+2*(NSTAMP-1)}]")
        A("s_mov_b64 exec, -1")
        A("v_lshrrev_b32 v1, 6, v0")
        A("s_lshl_b32 s98, s2, 2")
        A("v_add_u32 v1, s98, v1")
        A("v_lshlrev_b32 v1, 7, v1")
        A(f"v_add_u32 v1, {WS_STAMP + kidx * 0x80000}, v1")
        A("s_waitcnt lgkmcnt(0)")
        A("v_mov_b32 v2, s94")
        A("v_mov_b32 v3, s95")
        A("v_mov_b32 v4, s96")
        A("v_mov_b32 v5, s97")
        A("global_store_dwordx4 v1, v[2:5], s[32:33]")
        for i in range(0, NSTAMP, 2):
            for j in range(4):
                A(f"v_mov_b32 v{2+j}, s{60+2*i+j}")
            A(f"global_store_dwordx4 v1, v[2:5], s[32:33] offset:{16+8*i}")
    A("s_endpgm")


def fbits(x):
    return struct.unpack("<I", struct.pack("<f", x))[0]


LOG2E = 1.4426950408889634
L2E_HI = fbits(LOG2E)
L2E_HI_F = struct.unpack("<f", struct.pack("<I", L2E_HI))[0]
L2E_LO = fbits(LOG2E - L2E_HI_F)
LN2 = fbits(0.6931471805599453)
INV2PI = fbits(0.15915494309189535)
INV640 = fbits(1.0 / 640.0)
EPS = fbits(1e-5)


def vr(a, n):
    return f"v[{a}:{a+n-1}]"


def sr(a, n):
    return f"s[{a}:{a+n-1}]"


def bf16_round(A, reg):
    A(f"v_cvt_pk_bf16_f32 v{reg}, v{reg}, v{reg}")
    A(f"v_and_b32 v{reg}, 0xffff0000, v{reg}")


def exp_bf16(A, dst, src, t0, t1):
    A(f"v_mul_f32 v{t0}, s90, v{src}")
    A(f"v_fma_f32 v{t1}, v{src}, s90, -v{t0}")
    A(f"v_fma_f32 v{t1}, v{src}, s91, v{t1}")
    A(f"v_exp_f32 v{dst}, v{t0}")
    A(f"v_mul_f32 v{t1}, s92, v{t1}")
    A(f"v_fma_f32 v{dst}, v{dst}, v{t1}, v{dst}")
    bf16_round(A, dst)


def cmul(A, d, a, b):
    A(f"v_pk_mul_f32 {vr(d,2)}, {vr(a,2)}, {vr(b,2)} op_sel:[0,0] op_sel_hi:[0,1]")
    A(f"v_pk_fma_f32 {vr(d,2)}, {vr(a,2)}, {vr(b,2)}, {vr(d,2)} op_sel:[1,1,0] op_sel_hi:[1,0,1] neg_lo:[0,1,0]")


K1_ROWB = 288
K1_BUF = 16 * K1_ROWB
K1_KD = 3 * 2 * K1_BUF
K1_LDS = K1_KD + 4096


def k1(A):
    A("s_cmp_ge_u32 s2, 896")
    A("s_cbranch_scc1 K1_END")
    k_begin(A)
    A("s_load_dwordx16 s[16:31], s[0:1], 0")
    A("s_load_dwordx2 s[32:33], s[0:1], 112")
    A("s_cmp_ge_u32 s2, 640")
    A("s_cbranch_scc1 K1_LN")
    A("v_lshrrev_b32 v1, 6, v0")
    A("v_readfirstlane_b32 s3, v1")
    A("v_and_b32 v2, 63, v0")
    A(f"s_mov_b32 s90, {L2E_HI}")
    A(f"s_mov_b32 s91, {L2E_LO}")
    A(f"s_mov_b32 s92, {LN2}")
    A("s_mul_i32 s4, s2, 384")
    A("s_lshr_b32 s5, s2, 1")
    A("s_lshl_b32 s5, s5, 2")
    A("s_waitcnt lgkmcnt(0)")
    A("s_load_dword s6, s[26:27], s5")
    A("s_cmp_eq_u32 s3, 3")
    A("s_cbranch_scc1 K1_W3")
    A("v_lshlrev_b32 v1, 1, v0")
    A("v_add_u32 v1, s4, v1")
    A("global_load_ushort v10, v1, s[18:19]")
    A("global_load_ushort v11, v1, s[20:21]")
    A("global_load_ushort v12, v1, s[22:23]")
    A("global_load_ushort v13, v1, s[24:25]")
    A("v_lshlrev_b32 v3, 1, v2")
    A("v_add_u32 v3, s4, v3")
    for i in range(3):
        A(f"global_load_ushort v{14+i}, v3, s[22:23] offset:{128*i}")
        A(f"global_load_ushort v{17+i}, v3, s[24:25] offset:{128*i}")
    A("s_branch K1_IDX")
    A.label("K1_W3")
    A("v_mov_b32 v4, 0")
    A("v_mov_b32 v5, 0")
    A("v_mov_b32 v6, 0")
    A("v_mov_b32 v7, 0")
    A("v_lshlrev_b32 v3, 4, v2")
    for i in range(4):
        A(f"ds_write_b128 v3, v[4:7] offset:{K1_KD + 1024*i}")
    A.label("K1_IDX")
    A("v_lshlrev_b32 v3, 3, v0")
    A("v_sub_u32 v3, 2047, v3")
    for k in range(9):
        A(f"v_subrev_u32 v{30+k}, {k}, v3")
    for k in range(9):
        A(f"v_max_i32 v{40+k}, 0, v{30+k}")
        A(f"v_cvt_f32_i32 v{40+k}, v{40+k}")
    for k in range(0, 8, 2):
        A(f"v_cvt_pk_bf16_f32 v{50+k}, v{40+k}, v{41+k}")
        A(f"v_lshrrev_b32 v{51+k}, 16, v{50+k}")
        A(f"v_and_b32 v{50+k}, 0xffff, v{50+k}")
    A("v_cvt_pk_bf16_f32 v58, v48, v48")
    A("v_and_b32 v58, 0xffff, v58")
    for k in range(9):
        A(f"v_subrev_u32 v{50+k}, 17024, v{50+k}")
        A(f"v_min_i32 v{30+k}, 127, v{30+k}")
        A(f"v_max_i32 v{50+k}, v{50+k}, v{30+k}")
        A(f"v_lshlrev_b32 v{20+k}, 2, v{50+k}")
        A(f"v_add_u32 v{20+k}, {K1_KD + 4}, v{20+k}")
    A("s_cmp_eq_u32 s3, 3")
    A("s_cbranch_scc1 K1_BAR1")
    A("v_and_b32 v3, 15, v2")
    A("v_lshrrev_b32 v4, 4, v2")
    A("v_lshlrev_b32 v5, 6, v4")
    A("v_add_u32 v5, v5, v3")
    A("v_lshlrev_b32 v29, 2, v5")
    A(f"v_add_u32 v29, {K1_KD + 4}, v29")
    A("v_lshlrev_b32 v5, 1, v3")
    A("v_add_u32 v5, v5, v4")
    A("v_add_u32 v5, 384, v5")
    A("v_lshlrev_b32 v6, 4, v4")
    A("v_add_u32 v6, v6, v3")
    A("v_add_u32 v6, 480, v6")
    A("v_cmp_gt_u32 vcc, 2, v4")
    A("v_cndmask_b32 v5, v6, v5, vcc")
    A("v_lshlrev_b32 v30, 2, v5")
    A(f"v_add_u32 v30, {K1_KD + 4}, v30")
    A("v_lshlrev_b32 v5, 6, v4")
    A("v_lshlrev_b32 v6, 2, v3")
    A("v_add_u32 v5, v5, v6")
    A("v_add_u32 v5, 256, v5")
    A("v_lshlrev_b32 v6, 2, v2")
    A("v_add_u32 v6, 520, v6")
    A("v_cndmask_b32 v5, v6, v5, vcc")
    A("v_mov_b32 v6, 640")
    A("v_cmp_eq_u32 vcc, 32, v2")
    A("v_cndmask_b32 v5, v5, v6, vcc")
    A("v_lshlrev_b32 v31, 2, v5")
    A(f"v_add_u32 v31, {K1_KD + 4}, v31")
    A(f"s_mul_i32 s7, s3, {2*K1_BUF}")
    A(f"v_mul_u32_u24 v32, {K1_ROWB}, v3")
    A("v_lshlrev_b32 v5, 4, v4")
    A("v_add_u32 v32, v32, v5")
    A("v_add_u32 v32, s7, v32")
    stamp(A, 1)
    A("s_waitcnt lgkmcnt(0)")
    A("s_bitcmp1_b32 s2, 0")
    A("s_cbranch_scc1 K1_ODD")
    A("s_lshl_b32 s6, s6, 16")
    A.label("K1_ODD")
    A("s_and_b32 s6, s6, 0xffff0000")
    A("v_mov_b32 v5, s6")
    exp_bf16(A, 33, 5, 6, 7)
    A("s_waitcnt vmcnt(0)")
    stamp(A, 2)
    for i in range(6):
        A(f"v_and_b32 v{14+i}, 0x7fff, v{14+i}")
    A("v_max3_u32 v14, v14, v15, v16")
    A("v_max3_u32 v17, v17, v18, v19")
    A("v_max_u32 v14, v14, v17")
    for sh in (1, 2, 4, 8):
        A(f"v_max_u32_dpp v14, v14, v14 row_shr:{sh} row_mask:0xf bank_mask:0xf")
    A("v_max_u32_dpp v14, v14, v14 row_bcast:15 row_mask:0xa bank_mask:0xf")
    A("v_max_u32_dpp v14, v14, v14 row_bcast:31 row_mask:0xc bank_mask:0xf")
    A("v_readlane_b32 s8, v14, 63")
    A("s_lshr_b32 s8, s8, 7")
    A("s_max_u32 s8, s8, 6")
    A("s_min_u32 s8, s8, 253")
    A("s_sub_u32 s9, 260, s8")
    A("s_lshl_b32 s9, s9, 23")
    A("s_sub_u32 s10, s8, 132")
    A("v_ldexp_f32 v6, v33, s10")
    A("s_lshl_b32 s11, s2, 2")
    A(f"s_add_u32 s11, s11, {WS_SC}")
    A("v_mov_b32 v7, s11")
    A("global_store_dword v7, v6, s[32:33]")
    A("v_lshlrev_b32 v10, 16, v10")
    A("v_lshlrev_b32 v11, 16, v11")
    A("v_lshlrev_b32 v12, 16, v12")
    A("v_lshlrev_b32 v13, 16, v13")
    exp_bf16(A, 34, 10, 6, 7)
    A("v_mul_f32 v34, v34, v33")
    A("v_mul_f32 v35, v11, v33")
    A("v_mul_f32 v34, s90, v34")
    A("v_sub_f32 v34, 0, v34")
    A(f"v_mul_f32 v35, {INV2PI}, v35")
    C = 36
    A(f"v_mul_f32 v{C}, s9, v12")
    A(f"v_mul_f32 v{C+1}, s9, v13")

    def direct(d, p):
        A(f"v_mul_f32 v6, {float(p) if p in (1,) else hex(fbits(float(p)))}, v34")
        A(f"v_mul_f32 v7, {float(p) if p in (1,) else hex(fbits(float(p)))}, v35")
        A("v_fract_f32 v7, v7")
        A("v_exp_f32 v6, v6")
        A("v_cos_f32 v8, v7")
        A("v_sin_f32 v9, v7")
        A(f"v_mul_f32 v{d}, v6, v8")
        A(f"v_mul_f32 v{d+1}, v6, v9")

    g = {i: 40 + 2 * (i - 1) for i in range(1, 9)}
    h = {1: g[8]}
    for i in range(2, 9):
        h[i] = 56 + 2 * (i - 2)
    h[10], h[12], h[14] = 70, 72, 74
    G128, G256, G512, G1024 = 76, 78, 80, 82
    T = [84, 86, 88, 90]
    PK = [92, 93, 94, 95]
    cA = [96, 98, 100, 102]
    B1, B8, AF = 104, 120, 4
    AF = 136
    ACC = [152, 156, 160]
    pkc = [0]

    def wr(row, buf, src, neg):
        p = PK[pkc[0] % 4]
        pkc[0] += 1
        A(f"v_cvt_pk_f16_f32 v{p}, v{src}, {'-' if neg else ''}v{src+1}")
        A(f"ds_write_addtid_b32 v{p} offset:{buf*K1_BUF + row*K1_ROWB}")

    def frags(dst, buf):
        for j in range(4):
            A(f"ds_read_b128 {vr(dst+4*j,4)}, v32 offset:{buf*K1_BUF + 64*j}")

    A("s_mov_b32 m0, s7")
    stamp(A, 3)
    direct(g[1], 1)
    direct(g[8], 8)
    direct(G128, 128)
    cmul(A, g[2], g[1], g[1])
    cmul(A, g[3], g[2], g[1])
    cmul(A, g[4], g[2], g[2])
    cmul(A, g[5], g[4], g[1])
    cmul(A, g[6], g[4], g[2])
    cmul(A, g[7], g[4], g[3])
    A(f"v_mov_b32 v{PK[3]}, 0x00003c00")
    A(f"ds_write_addtid_b32 v{PK[3]} offset:0")
    for i in range(1, 9):
        wr(i, 0, g[i], False)
    for i in range(1, 8):
        t = T[i % 4]
        cmul(A, t, g[8], g[i])
        wr(8 + i, 0, t, False)
    frags(B1, 0)
    cmul(A, h[2], h[1], h[1])
    cmul(A, h[3], h[2], h[1])
    cmul(A, h[4], h[2], h[2])
    cmul(A, h[5], h[4], h[1])
    cmul(A, h[6], h[4], h[2])
    cmul(A, h[7], h[4], h[3])
    cmul(A, h[8], h[4], h[4])
    A(f"v_mov_b32 v{PK[3]}, 0x00003c00")
    A(f"ds_write_addtid_b32 v{PK[3]} offset:{K1_BUF}")
    for i in range(1, 9):
        wr(i, 1, h[i], False)
    for i in range(1, 8):
        t = h[8 + i] if (8 + i) in h else T[i % 4]
        cmul(A, t, h[8], h[i])
        wr(8 + i, 1, t, False)
    frags(B8, 1)
    stamp(A, 4)
    wr(0, 0, C, True)
    for hi in range(1, 8):
        t = T[hi % 4]
        cmul(A, t, C, h[2 * hi])
        wr(hi, 0, t, True)
    cmul(A, cA[0], C, G128)
    wr(8, 0, cA[0], True)
    for i in range(1, 8):
        t = T[i % 4]
        cmul(A, t, cA[0], h[2 * i])
        wr(8 + i, 0, t, True)
    frags(AF, 0)
    cmul(A, G256, G128, G128)
    cmul(A, G512, G256, G256)
    cmul(A, G1024, G512, G512)
    for i in range(12):
        A(f"v_mov_b32 v{ACC[0]+i}, 0")
    cmul(A, cA[0], C, G512)
    cmul(A, cA[1], cA[0], G128)
    cmul(A, cA[2], cA[0], G256)
    cmul(A, cA[3], cA[2], G128)
    for i in range(4):
        wr(i, 1, cA[i], True)
    for i in range(4):
        cmul(A, T[i], cA[i], g[4])
        wr(4 + i, 1, T[i], True)
    A("s_waitcnt lgkmcnt(8)")
    for j in range(4):
        A(f"v_mfma_f32_16x16x32_f16 {vr(ACC[0],4)}, {vr(AF+4*j,4)}, {vr(B1+4*j,4)}, {vr(ACC[0],4)}")
    cmul(A, cA[0], C, G1024)
    cmul(A, cA[1], cA[0], G256)
    cmul(A, cA[2], cA[0], G512)
    cmul(A, cA[3], cA[2], G256)
    for i in range(4):
        wr(8 + i, 1, cA[i], True)
    for i in range(4):
        cmul(A, T[i], cA[i], G128)
        wr(12 + i, 1, T[i], True)
    frags(AF, 1)
    stamp(A, 5)
    cmul(A, T[0], cA[0], G1024)
    wr(8, 0, T[0], True)
    cmul(A, cA[1], C, G256)
    cmul(A, cA[2], cA[1], G128)
    wr(0, 0, cA[1], True)
    wr(4, 0, cA[2], True)
    for k, gi in enumerate((2, 4, 6)):
        cmul(A, T[1], cA[1], g[gi])
        wr(1 + k, 0, T[1], True)
        cmul(A, T[2], cA[2], g[gi])
        wr(5 + k, 0, T[2], True)
    A("s_waitcnt lgkmcnt(9)")
    for j in range(4):
        A(f"v_mfma_f32_16x16x32_f16 {vr(ACC[1],4)}, {vr(AF+4*j,4)}, {vr(B8+4*j,4)}, {vr(ACC[1],4)}")
    frags(B1, 0)
    A("s_waitcnt lgkmcnt(0)")
    for j in range(4):
        A(f"v_mfma_f32_16x16x32_f16 {vr(ACC[2],4)}, {vr(B1+4*j,4)}, {vr(B8+4*j,4)}, {vr(ACC[2],4)}")
    A.label("K1_BAR1")
    stamp(A, 6)
    A("s_waitcnt lgkmcnt(0)")
    A("s_barrier")
    stamp(A, 7)
    A("s_cmp_eq_u32 s3, 3")
    A("s_cbranch_scc1 K1_BAR2")
    for i in range(4):
        A(f"ds_add_f32 v29, v{ACC[0]+i} offset:{64*i}")
    for i in range(4):
        A(f"ds_add_f32 v30, v{ACC[1]+i} offset:{128*i}")
    for i in range(4):
        A(f"ds_add_f32 v31, v{ACC[2]+i} offset:{4*i}")
    A.label("K1_BAR2")
    A("s_waitcnt lgkmcnt(0)")
    A("s_barrier")
    stamp(A, 8)
    for k in range(9):
        A(f"ds_read_b32 v{40+k}, v{20+k}")
    A("s_lshl_b32 s11, s2, 13")
    A(f"s_add_u32 s11, s11, {WS_KR}")
    A("v_lshlrev_b32 v1, 4, v0")
    A("v_add_u32 v1, s11, v1")
    A("v_add_u32 v2, 4096, v1")
    A("s_waitcnt lgkmcnt(0)")
    for k in range(4):
        A(f"v_cvt_pk_f16_f32 v{52+k}, v{40+2*k}, v{41+2*k}")
    for k in range(4):
        A(f"v_cvt_pk_f16_f32 v{56+k}, v{41+2*k}, v{42+2*k}")
    A("global_store_dwordx4 v1, v[52:55], s[32:33]")
    A("global_store_dwordx4 v2, v[56:59], s[32:33]")
    k_end(A, 0)

    A.label("K1_LN")
    A("v_lshrrev_b32 v1, 6, v0")
    A("v_readfirstlane_b32 s3, v1")
    A("s_cmp_eq_u32 s3, 3")
    A("s_cbranch_scc1 K1_DONE")
    A("s_sub_u32 s4, s2, 640")
    A("s_mul_i32 s5, s4, 10240")
    A("v_min_u32 v2, 159, v0")
    A("v_lshlrev_b32 v3, 3, v2")
    A("v_add_u32 v3, s5, v3")
    A("v_add_u32 v4, 5120, v3")
    A("s_waitcnt lgkmcnt(0)")
    for r in range(8):
        A(f"global_load_dwordx2 {vr(40+2*r,2)}, v{3 if r < 4 else 4}, s[16:17] offset:{1280*(r%4)}")
    A("s_cmp_eq_u32 s3, 2")
    A("s_cbranch_scc1 K1_LNBAR")
    A("v_lshrrev_b32 v5, 4, v0")
    A("v_mul_u32_u24 v6, 1280, v5")
    A("v_and_b32 v7, 15, v0")
    A("v_lshlrev_b32 v7, 4, v7")
    A("v_add_u32 v6, v6, v7")
    A("v_add_u32 v6, s5, v6")
    for i in range(5):
        A(f"global_load_dwordx4 {vr(8+4*i,4)}, v6, s[16:17] offset:{256*i}")
    A("v_mov_b32 v30, 0")
    A("v_mov_b32 v31, 0")
    A("v_mov_b32 v32, 0x3f803f80")
    A("s_waitcnt vmcnt(0)")
    for i in range(20):
        A(f"v_dot2c_f32_bf16 v30, v{8+i}, v32")
        A(f"v_dot2c_f32_bf16 v31, v{8+i}, v{8+i}")
    for sh in (8, 4, 2, 1):
        A(f"v_add_f32_dpp v30, v30, v30 row_ror:{sh} row_mask:0xf bank_mask:0xf")
        A(f"v_add_f32_dpp v31, v31, v31 row_ror:{sh} row_mask:0xf bank_mask:0xf")
    ln_finish(A, 30, 31, 33)
    A("v_lshlrev_b32 v5, 3, v5")
    A("ds_write_b64 v5, v[30:31]")
    A.label("K1_LNBAR")
    stamp(A, 2)
    A("s_waitcnt lgkmcnt(0)")
    A("s_barrier")
    stamp(A, 3)
    A("v_mov_b32 v5, 0")
    for i in range(4):
        A(f"ds_read_b128 {vr(8+4*i,4)}, v5 offset:{16*i}")
    A("s_waitcnt vmcnt(0) lgkmcnt(0)")
    A("s_mov_b32 s20, 0x05040100")
    A("s_mov_b32 s21, 0x07060302")
    for rp in range(4):
        r0, r1 = 2 * rp, 2 * rp + 1
        for ch in range(4):
            a, b = 40 + 2 * r0 + (ch >> 1), 40 + 2 * r1 + (ch >> 1)
            A(f"v_perm_b32 v{76+4*ch+rp}, v{b}, v{a}, s{20 + (ch & 1)}")
            if ch & 1:
                A(f"v_and_b32 v24, 0xffff0000, v{a}")
                A(f"v_and_b32 v25, 0xffff0000, v{b}")
            else:
                A(f"v_lshlrev_b32 v24, 16, v{a}")
                A(f"v_lshlrev_b32 v25, 16, v{b}")
            A(f"v_sub_f32 v24, v24, v{8+2*r0}")
            A(f"v_sub_f32 v25, v25, v{8+2*r1}")
            A("v_cvt_pk_bf16_f32 v26, v24, v25")
            A("v_lshlrev_b32 v24, 16, v26")
            A("v_and_b32 v25, 0xffff0000, v26")
            A(f"v_mul_f32 v24, v24, v{9+2*r0}")
            A(f"v_mul_f32 v25, v25, v{9+2*r1}")
            A("v_cvt_pk_bf16_f32 v26, v24, v25")
            A("v_lshlrev_b32 v24, 16, v26")
            A("v_and_b32 v25, 0xffff0000, v26")
            A(f"v_cvt_pk_f16_f32 v{60+4*ch+rp}, v24, v25")
    stamp(A, 4)
    A("v_lshlrev_b32 v3, 14, v2")
    A("s_lshl_b32 s5, s4, 6")
    A("v_add_u32 v3, s5, v3")
    A(f"v_add_u32 v4, {WS_XT}, v3")
    for ch in range(4):
        A(f"global_store_dwordx4 v3, {vr(60+4*ch,4)}, s[32:33] offset:{16*ch}")
        A(f"global_store_dwordx4 v4, {vr(76+4*ch,4)}, s[32:33] offset:{16*ch}")
    A.label("K1_DONE")
    k_end(A, 0)
    A.label("K1_END")
    A("s_endpgm")


def ln_finish(A, s1, s2, t):
    A(f"v_mul_f32 v{s1}, {INV640}, v{s1}")
    A(f"v_mul_f32 v{s2}, {INV640}, v{s2}")
    A(f"v_fma_f32 v{s2}, -v{s1}, v{s1}, v{s2}")
    A(f"v_max_f32 v{s2}, 0, v{s2}")
    A(f"v_cvt_pk_bf16_f32 v{t}, v{s1}, v{s2}")
    A(f"v_lshlrev_b32 v{s1}, 16, v{t}")
    A(f"v_and_b32 v{s2}, 0xffff0000, v{t}")
    A(f"v_add_f32 v{s2}, {EPS}, v{s2}")
    bf16_round(A, s2)
    A(f"v_sqrt_f32 v{s2}, v{s2}")
    bf16_round(A, s2)
    A(f"v_rcp_f32 v{s2}, v{s2}")


KD_TMPL = """.amdhsa_kernel {name}
  .amdhsa_next_free_vgpr {vgpr}
  .amdhsa_next_free_sgpr 102
  .amdhsa_accum_offset {acc}
  .amdhsa_group_segment_fixed_size 0
  .amdhsa_kernarg_size 120
  .amdhsa_user_sgpr_count 2
  .amdhsa_user_sgpr_kernarg_segment_ptr 1
  .amdhsa_system_sgpr_workgroup_id_x 1
.end_amdhsa_kernel
"""

HEADER = """; Kernarg layout (120 bytes, ptrs only): in0..in11 at 0..88, d_out 96, d_debug 104, d_ws 112
"""


def build(kernels):
    s = HEADER
    for label, fn, grid, block, lds, vgpr in kernels:
        s += f"; @launch kernel={label} grid=({grid},1,1) block=({block},1,1) lds={lds}\n"
    s += '.amdgcn_target "amdgcn-amd-amdhsa--gfx950"\n.text\n'
    done = set()
    for label, fn, grid, block, lds, vgpr in kernels:
        if label in done:
            continue
        done.add(label)
        A = Asm()
        fn(A)
        s += f".globl {label}\n.p2align 8\n.type {label},@function\n{label}:\n" + A.finish() + "\n"
    s += '.section .rodata,"a"\n'
    done = set()
    for label, fn, grid, block, lds, vgpr in kernels:
        if label in done:
            continue
        done.add(label)
        s += ".p2align 6\n" + KD_TMPL.format(name=label, vgpr=vgpr, acc=min(256, (vgpr + 3) // 4 * 4))
    return s


if __name__ == "__main__":
    from gen_rest import KERNELS
    out = build(KERNELS)
    path = sys.argv[1] if len(sys.argv) > 1 else f"cdna_kernels/{NAME}.s"
    open(path, "w").write(out)
    print("wrote", path, len(out), "bytes")
```

```python
from gen import *

K2_KE, K2_KO, K2_U = 0, 4160, 8320
K2_WB = 12928
K2_LDS = 4 * K2_WB


def k2(A):
    A("s_cmp_ge_u32 s2, 256")
    A("s_cbranch_scc1 K2_END")
    k_begin(A)
    A("s_load_dwordx2 s[32:33], s[0:1], 112")
    A("s_load_dwordx2 s[28:29], s[0:1], 48")
    A("s_cmp_ge_u32 s2, 160")
    A("s_cbranch_scc1 K2_WT")
    A("v_lshrrev_b32 v1, 6, v0")
    A("v_readfirstlane_b32 s3, v1")
    A("v_and_b32 v2, 63, v0")
    A("s_lshl_b32 s4, s2, 2")
    A("s_add_u32 s4, s4, s3")
    A(f"s_mul_i32 s5, s3, {K2_WB}")
    A("s_lshl_b32 s6, s4, 13")
    A(f"s_add_u32 s6, s6, {WS_KR}")
    A("s_lshl_b32 s7, s2, 14")
    A("s_lshl_b32 s8, s3, 4")
    A("s_add_u32 s7, s7, s8")
    A("v_lshlrev_b32 v3, 4, v2")
    A("v_add_u32 v3, s6, v3")
    A("v_add_u32 v4, 4096, v3")
    A("v_lshlrev_b32 v5, 6, v2")
    A("v_add_u32 v5, s7, v5")
    A("s_waitcnt lgkmcnt(0)")
    stamp(A, 1)
    A("s_lshl_b32 s9, s4, 2")
    A(f"s_add_u32 s9, s9, {WS_SC}")
    A("s_load_dword s10, s[32:33], s9")
    A("s_lshr_b32 s9, s4, 1")
    A("s_lshl_b32 s9, s9, 2")
    A("s_load_dword s11, s[28:29], s9")
    A("s_mov_b32 m0, s5")
    for j in range(4):
        A(f"global_load_lds_dwordx4 v3, s[32:33] offset:{1024*j}")
    A(f"s_add_u32 s12, s5, {K2_KO}")
    A("s_mov_b32 m0, s12")
    for j in range(4):
        A(f"global_load_lds_dwordx4 v4, s[32:33] offset:{1024*j}")
    for j in range(4):
        A(f"s_add_u32 s12, s5, {K2_U + 512 + 1024*j}")
        A("s_mov_b32 m0, s12")
        if j:
            A("v_add_u32 v5, 4096, v5")
        A("global_load_lds_dwordx4 v5, s[32:33]")
    A("v_and_b32 v6, 15, v2")
    A("v_lshrrev_b32 v7, 4, v2")
    A("v_lshrrev_b32 v8, 1, v7")
    A("v_and_b32 v9, 1, v7")
    A("v_lshlrev_b32 v10, 7, v6")
    A("v_lshlrev_b32 v11, 6, v8")
    A("v_add_u32 v10, v10, v11")
    A("v_lshlrev_b32 v11, 3, v9")
    A("v_add_u32 v10, v10, v11")
    A(f"s_add_u32 s12, s7, {WS_XT + 4096}")
    A("v_add_u32 v10, s12, v10")
    A("v_add_u32 v11, 8192, v10")
    XR = 100
    for t in range(8):
        A(f"global_load_dwordx2 {vr(XR+2*t,2)}, v{10 if t < 4 else 11}, s[32:33] offset:{-4096 + 2048*(t%4)}")
    A("v_mov_b32 v12, 0")
    A("v_mov_b32 v13, 0")
    A("v_lshlrev_b32 v14, 3, v2")
    A("v_add_u32 v14, s5, v14")
    A(f"ds_write_b64 v14, v[12:13] offset:{K2_U}")
    A("v_lshlrev_b32 v14, 2, v6")
    A("v_add_u32 v14, s5, v14")
    A(f"ds_write_b32 v14, v12 offset:{K2_KE + 4096}")
    A(f"ds_write_b32 v14, v12 offset:{K2_KO + 4096}")
    A("v_sub_u32 v14, 2047, v6")
    A("v_lshlrev_b32 v15, 4, v8")
    A("v_sub_u32 v14, v14, v15")
    A("v_lshlrev_b32 v15, 3, v9")
    A("v_add_u32 v14, v14, v15")
    A("v_lshlrev_b32 v14, 1, v14")
    A(f"v_add_u32 v15, {K2_KO - 2}, v14")
    A("v_and_b32 v16, 1, v6")
    A("v_cmp_eq_u32 vcc, 1, v16")
    A("v_cndmask_b32 v14, v15, v14, vcc")
    A("v_add_u32 v14, s5, v14")
    AB = [20, 21, 22, 23]
    for p in range(4):
        A(f"v_subrev_u32 v{AB[p]}, {512*(2*p+1)}, v14")
    A("v_lshlrev_b32 v15, 5, v6")
    A("v_lshlrev_b32 v16, 5, v8")
    A("v_sub_u32 v15, v15, v16")
    A("v_lshlrev_b32 v16, 4, v9")
    A("v_add_u32 v15, v15, v16")
    A(f"v_add_u32 v15, {K2_U + 512}, v15")
    BB = 24
    A(f"v_add_u32 v{BB}, s5, v15")
    A("v_lshlrev_b32 v15, 5, v6")
    A("v_lshlrev_b32 v16, 3, v7")
    A("v_add_u32 v15, v15, v16")
    A(f"v_add_u32 v15, {K2_U + 512}, v15")
    A("v_add_u32 v25, s5, v15")
    A("v_mul_u32_u24 v26, 20480, v6")
    A("v_add_u32 v26, v26, v16")
    A("s_lshl_b32 s12, s4, 5")
    A(f"s_add_u32 s12, s12, {WS_HT}")
    A("v_add_u32 v26, s12, v26")
    AF, BF, ACC = 32, 64, 128
    for i in range(32):
        A(f"v_mov_b32 v{ACC+i}, 0")

    def loadA(q):
        p = q // 2
        o = 128 if q % 2 == 0 else 0
        A(f"ds_read2_b32 {vr(AF+4*q,2)}, v{AB[p]} offset0:{o} offset1:{o+1}")
        A(f"ds_read2_b32 {vr(AF+4*q+2,2)}, v{AB[p]} offset0:{o+2} offset1:{o+3}")

    def loadB(tau):
        A(f"ds_read_b128 {vr(BF+4*tau,4)}, v{BB} offset:{512*tau}")

    def bump():
        for p in range(4):
            A(f"v_subrev_u32 v{AB[p]}, 64, v{AB[p]}")
        A(f"v_subrev_u32 v{BB}, 64, v{BB}")

    A("s_waitcnt vmcnt(8) lgkmcnt(0)")
    stamp(A, 2)
    A("s_bitcmp1_b32 s4, 0")
    A("s_cbranch_scc1 K2_ODD")
    A("s_lshl_b32 s11, s11, 16")
    A.label("K2_ODD")
    A("s_and_b32 s11, s11, 0xffff0000")
    for q in range(8):
        loadA(q)
        loadB(7 - q)
    bump()
    A("s_mov_b32 s13, 8")
    A.label("K2_LOOP")
    for q in range(8):
        for tau in range(7 - q, -1, -1):
            if q == 0:
                if tau == 7:
                    A("s_waitcnt lgkmcnt(6)")
                elif tau == 1:
                    A("s_waitcnt lgkmcnt(3)")
                elif tau == 0:
                    A("s_waitcnt lgkmcnt(0)")
            t = q + tau
            A(f"v_mfma_f32_16x16x32_f16 {vr(ACC+4*t,4)}, {vr(AF+4*q,4)}, {vr(BF+4*tau,4)}, {vr(ACC+4*t,4)}")
        loadA(q)
        loadB(7 - q)
    bump()
    A("s_sub_u32 s13, s13, 1")
    A("s_cmp_lg_u32 s13, 0")
    A("s_cbranch_scc1 K2_LOOP")
    stamp(A, 3)
    A("s_waitcnt vmcnt(0) lgkmcnt(0)")
    stamp(A, 4)
    for t in range(8):
        A(f"ds_read_b64 {vr(32+2*t,2)}, v25 offset:{512*t}")
    A("s_waitcnt lgkmcnt(0)")
    for t in range(8):
        a = ACC + 4 * t
        u = 32 + 2 * t
        x = XR + 2 * t
        for i in range(4):
            A(f"v_mul_f32 v{a+i}, s10, v{a+i}")
        A(f"v_cvt_pk_bf16_f32 v50, v{a}, v{a+1}")
        A(f"v_cvt_pk_bf16_f32 v51, v{a+2}, v{a+3}")
        A(f"v_lshlrev_b32 v{a}, 16, v50")
        A(f"v_and_b32 v{a+1}, 0xffff0000, v50")
        A(f"v_lshlrev_b32 v{a+2}, 16, v51")
        A(f"v_and_b32 v{a+3}, 0xffff0000, v51")
        A(f"v_fma_mix_f32 v52, v{u}, s11, 0 op_sel:[0,0,0] op_sel_hi:[1,0,0]")
        A(f"v_fma_mix_f32 v53, v{u}, s11, 0 op_sel:[1,0,0] op_sel_hi:[1,0,0]")
        A(f"v_fma_mix_f32 v54, v{u+1}, s11, 0 op_sel:[0,0,0] op_sel_hi:[1,0,0]")
        A(f"v_fma_mix_f32 v55, v{u+1}, s11, 0 op_sel:[1,0,0] op_sel_hi:[1,0,0]")
        A("v_cvt_pk_bf16_f32 v50, v52, v53")
        A("v_cvt_pk_bf16_f32 v51, v54, v55")
        A("v_lshlrev_b32 v52, 16, v50")
        A("v_and_b32 v53, 0xffff0000, v50")
        A("v_lshlrev_b32 v54, 16, v51")
        A("v_and_b32 v55, 0xffff0000, v51")
        for i in range(4):
            A(f"v_add_f32 v{a+i}, v{a+i}, v{52+i}")
        A(f"v_cvt_pk_bf16_f32 v50, v{a}, v{a+1}")
        A(f"v_cvt_pk_bf16_f32 v51, v{a+2}, v{a+3}")
        A(f"v_lshlrev_b32 v{a}, 16, v50")
        A(f"v_and_b32 v{a+1}, 0xffff0000, v50")
        A(f"v_lshlrev_b32 v{a+2}, 16, v51")
        A(f"v_and_b32 v{a+3}, 0xffff0000, v51")
        A(f"v_lshlrev_b32 v52, 16, v{x}")
        A(f"v_and_b32 v53, 0xffff0000, v{x}")
        A(f"v_lshlrev_b32 v54, 16, v{x+1}")
        A(f"v_and_b32 v55, 0xffff0000, v{x+1}")
        for i in range(4):
            A(f"v_add_f32 v{a+i}, v{a+i}, v{52+i}")
        A(f"v_cvt_pk_bf16_f32 v{a}, v{a}, v{a+1}")
        A(f"v_cvt_pk_bf16_f32 v{a+1}, v{a+2}, v{a+3}")
        A(f"global_store_dwordx2 v26, {vr(a,2)}, s[32:33]")
        if t < 7:
            A("v_add_u32 v26, 327680, v26")
    k_end(A, 1)

    A.label("K2_WT")
    A("s_load_dwordx4 s[16:19], s[0:1], 72")
    A("s_load_dwordx2 s[20:21], s[0:1], 88")
    A("v_lshrrev_b32 v1, 6, v0")
    A("v_readfirstlane_b32 s3, v1")
    A("v_and_b32 v2, 63, v0")
    A("s_sub_u32 s4, s2, 160")
    A("s_lshl_b32 s4, s4, 2")
    A("s_add_u32 s4, s4, s3")
    A("s_mul_i32 s5, s3, 12288")
    A("v_lshrrev_b32 v3, 3, v2")
    A("v_and_b32 v4, 7, v2")
    A("v_lshlrev_b32 v4, 4, v4")
    A("v_lshrrev_b32 v5, 4, v2")
    A("v_lshlrev_b32 v5, 3, v5")
    A("v_and_b32 v6, 15, v2")
    A("v_lshrrev_b32 v6, 2, v6")
    A("v_add_u32 v5, v5, v6")
    A("v_lshlrev_b32 v5, 7, v5")
    A("v_and_b32 v6, 3, v2")
    A("v_lshlrev_b32 v7, 3, v6")
    A("v_add_u32 v8, v5, v7")
    A("v_add_u32 v8, s5, v8")
    A("v_add_u32 v9, 4080, v8")
    A("v_cmp_gt_u32 vcc, 2, v6")
    A("v_cndmask_b32 v9, v9, v8, vcc")
    A("v_lshlrev_b32 v10, 4, v2")
    A("s_waitcnt lgkmcnt(0)")
    A("s_mov_b32 s6, s4")
    A.label("K2_WT_LOOP")
    A("s_cmp_ge_u32 s6, 480")
    A("s_cbranch_scc1 K2_WT_DOWN")
    A("s_mul_hi_u32 s7, s6, 0xccccccd")
    A("s_mul_i32 s8, s7, 20")
    A("s_sub_u32 s8, s6, s8")
    A("s_mul_i32 s9, s8, 98304")
    A("s_lshl_b32 s10, s7, 7")
    A("s_add_u32 s9, s9, s10")
    A("v_mul_u32_u24 v11, 3072, v3")
    A("v_add_u32 v11, v11, v4")
    A("v_add_u32 v11, s9, v11")
    for j in range(4):
        A(f"s_add_u32 s10, s5, {1024*j}")
        A("s_mov_b32 m0, s10")
        A("global_load_lds_dwordx4 v11, s[16:17]")
        A(f"s_add_u32 s10, s5, {4096 + 1024*j}")
        A("s_mov_b32 m0, s10")
        A("global_load_lds_dwordx4 v11, s[18:19]")
        if j < 3:
            A("v_add_u32 v11, 24576, v11")
    A("s_waitcnt vmcnt(0)")
    A("s_mul_i32 s9, s7, 163840")
    A("s_lshl_b32 s10, s8, 10")
    A("s_add_u32 s9, s9, s10")
    A(f"s_add_u32 s9, s9, {WS_WGU}")
    A("v_add_u32 v12, s9, v10")
    for jj in range(8):
        A(f"ds_read_b64_tr_b16 {vr(16+4*jj,2)}, v9 offset:{16*jj}")
        A(f"ds_read_b64_tr_b16 {vr(18+4*jj,2)}, v9 offset:{16*jj + 512}")
    A("s_waitcnt lgkmcnt(0)")
    for jj in range(8):
        A(f"global_store_dwordx4 v12, {vr(16+4*jj,4)}, s[32:33]")
        if jj < 7:
            A("v_add_u32 v12, 20480, v12")
    A("s_branch K2_WT_NEXT")
    A.label("K2_WT_DOWN")
    A("s_sub_u32 s11, s6, 480")
    A("s_mul_hi_u32 s7, s11, 0x5555556")
    A("s_mul_i32 s8, s7, 48")
    A("s_sub_u32 s8, s11, s8")
    A("s_mul_i32 s9, s8, 40960")
    A("s_lshl_b32 s10, s7, 7")
    A("s_add_u32 s9, s9, s10")
    A("v_mul_u32_u24 v11, 1280, v3")
    A("v_add_u32 v11, v11, v4")
    A("v_add_u32 v11, s9, v11")
    for j in range(4):
        A(f"s_add_u32 s10, s5, {1024*j}")
        A("s_mov_b32 m0, s10")
        A("global_load_lds_dwordx4 v11, s[20:21]")
        if j < 3:
            A("v_add_u32 v11, 10240, v11")
    A("s_waitcnt vmcnt(0)")
    A("s_mul_i32 s9, s7, 196608")
    A("s_lshl_b32 s10, s8, 10")
    A("s_add_u32 s9, s9, s10")
    A(f"s_add_u32 s9, s9, {WS_WD}")
    A("v_add_u32 v12, s9, v10")
    for jj in range(4):
        A(f"ds_read_b64_tr_b16 {vr(16+4*jj,2)}, v8 offset:{32*jj}")
        A(f"ds_read_b64_tr_b16 {vr(18+4*jj,2)}, v8 offset:{32*jj + 512}")
    A("s_waitcnt lgkmcnt(0)")
    for jj in range(4):
        A(f"global_store_dwordx4 v12, {vr(16+4*jj,4)}, s[32:33]")
        if jj < 3:
            A("v_add_u32 v12, 49152, v12")
    A.label("K2_WT_NEXT")
    A("s_add_u32 s6, s6, 384")
    A("s_cmp_lt_u32 s6, 960")
    A("s_cbranch_scc1 K2_WT_LOOP")
    A.label("K2_DONE")
    k_end(A, 1)
    A.label("K2_END")
    A("s_endpgm")


K3_LDS = 20480 + 1024


def k3(A):
    A("s_cmp_ge_u32 s2, 128")
    A("s_cbranch_scc1 K3_END")
    k_begin(A)
    A("s_load_dwordx2 s[32:33], s[0:1], 112")
    A("s_load_dwordx2 s[28:29], s[0:1], 64")
    A("s_load_dwordx2 s[30:31], s[0:1], 96")
    A("v_lshrrev_b32 v1, 6, v0")
    A("v_readfirstlane_b32 s3, v1")
    A("v_and_b32 v2, 63, v0")
    A("s_mul_i32 s4, s2, 20480")
    A(f"s_add_u32 s4, s4, {WS_HT}")
    A("v_lshlrev_b32 v3, 4, v0")
    A("v_add_u32 v3, s4, v3")
    A("s_lshl_b32 s5, s3, 10")
    A("s_waitcnt lgkmcnt(0)")
    for i in range(5):
        A(f"s_add_u32 s6, s5, {4096*i}")
        A("s_mov_b32 m0, s6")
        A("global_load_lds_dwordx4 v3, s[32:33]")
        if i < 4:
            A("v_add_u32 v3, 4096, v3")
    A("v_lshrrev_b32 v4, 4, v0")
    A("v_mul_u32_u24 v5, 80, v4")
    WR = 60
    for i in range(5):
        A(f"global_load_dwordx4 {vr(WR+4*i,4)}, v5, s[28:29] offset:{16*i}")
    A("v_mul_u32_u24 v6, 1280, v4")
    A("v_and_b32 v7, 15, v2")
    A("v_lshrrev_b32 v8, 2, v7")
    A("v_lshlrev_b32 v8, 5, v8")
    A("v_add_u32 v6, v6, v8")
    A("v_and_b32 v8, 3, v2")
    A("v_lshlrev_b32 v8, 3, v8")
    A("v_add_u32 v6, v6, v8")
    stamp(A, 1)
    A("s_waitcnt vmcnt(5)")
    stamp(A, 2)
    A("s_barrier")
    H = 20
    for i in range(10):
        A(f"ds_read_b64_tr_b16 {vr(H+2*i,2)}, v6 offset:{128*i}")
    A("v_mov_b32 v10, 0")
    A("v_mov_b32 v11, 0")
    A("v_mov_b32 v12, 0x3f803f80")
    A("s_waitcnt lgkmcnt(0)")
    for i in range(20):
        A(f"v_dot2c_f32_bf16 v10, v{H+i}, v12")
        A(f"v_dot2c_f32_bf16 v11, v{H+i}, v{H+i}")

    def red_g(r, tmp):
        A(f"v_mov_b32 v{tmp}, v{r}")
        A(f"v_permlane16_swap_b32 v{r}, v{tmp}")
        A(f"v_add_f32 v{r}, v{r}, v{tmp}")
        A(f"v_mov_b32 v{tmp}, v{r}")
        A(f"v_permlane32_swap_b32 v{r}, v{tmp}")
        A(f"v_add_f32 v{r}, v{r}, v{tmp}")
    red_g(10, 13)
    red_g(11, 14)
    A("v_lshlrev_b32 v15, 3, v7")
    A("s_lshl_b32 s6, s3, 7")
    A("v_add_u32 v16, s6, v15")
    A("ds_write_b64 v16, v[10:11] offset:20480")
    A("s_waitcnt lgkmcnt(0)")
    A("s_barrier")
    for w in range(4):
        A(f"ds_read_b64 {vr(40+2*w,2)}, v15 offset:{20480 + 128*w}")
    A("s_waitcnt lgkmcnt(0)")
    A("v_add_f32 v10, v40, v42")
    A("v_add_f32 v11, v41, v43")
    A("v_add_f32 v12, v44, v46")
    A("v_add_f32 v13, v45, v47")
    A("v_add_f32 v10, v10, v12")
    A("v_add_f32 v11, v11, v13")
    ln_finish(A, 10, 11, 12)
    stamp(A, 3)
    L = 40
    O = 80
    A("v_mov_b32 v14, 0")
    A("s_waitcnt vmcnt(0)")
    for i in range(20):
        A(f"v_lshlrev_b32 v16, 16, v{H+i}")
        A(f"v_and_b32 v17, 0xffff0000, v{H+i}")
        A("v_sub_f32 v18, v16, v10")
        A("v_sub_f32 v19, v17, v10")
        A("v_cvt_pk_bf16_f32 v13, v18, v19")
        A("v_lshlrev_b32 v18, 16, v13")
        A("v_and_b32 v19, 0xffff0000, v13")
        A("v_mul_f32 v18, v18, v11")
        A("v_mul_f32 v19, v19, v11")
        A(f"v_cvt_pk_bf16_f32 v{L+i}, v18, v19")
        A(f"v_dot2c_f32_bf16 v14, v{L+i}, v{WR+i}")
        A(f"v_lshlrev_b32 v18, 16, v{L+i}")
        A(f"v_and_b32 v19, 0xffff0000, v{L+i}")
        A("v_add_f32 v16, v16, v18")
        A("v_add_f32 v17, v17, v19")
        A(f"v_cvt_pk_bf16_f32 v{O+i}, v16, v17")
    stamp(A, 4)
    A("s_mul_i32 s6, s2, 20480")
    A("v_mul_u32_u24 v16, 1280, v7")
    A("v_add_u32 v16, v16, v5")
    A("v_add_u32 v16, s6, v16")
    A(f"v_add_u32 v17, {WS_L2}, v16")
    for i in range(5):
        A(f"global_store_dwordx4 v16, {vr(O+4*i,4)}, s[30:31] offset:{16*i}")
        A(f"global_store_dwordx4 v17, {vr(L+4*i,4)}, s[32:33] offset:{16*i}")
    red_g(14, 13)
    A("v_lshlrev_b32 v15, 2, v7")
    A("s_lshl_b32 s6, s3, 6")
    A("v_add_u32 v18, s6, v15")
    A("ds_write_b32 v18, v14 offset:20992")
    A("s_waitcnt lgkmcnt(0)")
    A("s_barrier")
    A("s_cmp_lg_u32 s3, 0")
    A("s_cbranch_scc1 K3_DONE")
    for w in range(4):
        A(f"ds_read_b32 v{40+w}, v15 offset:{20992 + 64*w}")
    A("s_waitcnt lgkmcnt(0)")
    A("v_add_f32 v40, v40, v41")
    A("v_add_f32 v42, v42, v43")
    A("v_add_f32 v40, v40, v42")
    A("v_cvt_pk_bf16_f32 v40, v40, v40")
    A("v_and_b32 v40, 0xffff0000, v40")
    A("v_ashrrev_i32 v41, 31, v40")
    A("v_or_b32 v41, 0x80000000, v41")
    A("v_xor_b32 v40, v40, v41")
    A("v_and_b32 v40, 0xffff0000, v40")
    A("s_lshl_b32 s6, s2, 4")
    A("v_add_u32 v42, s6, v7")
    A("v_sub_u32 v43, 2047, v42")
    A("v_or_b32 v40, v40, v43")
    A("v_lshlrev_b32 v42, 2, v42")
    A(f"v_add_u32 v42, {WS_RK}, v42")
    A("global_store_dword v42, v40, s[32:33]")
    A.label("K3_DONE")
    k_end(A, 2)
    A.label("K3_END")
    A("s_endpgm")


K4_LDS = 8192


def k4(A):
    A("s_cmp_ge_u32 s2, 192")
    A("s_cbranch_scc1 K4_END")
    k_begin(A)
    A("s_load_dwordx2 s[32:33], s[0:1], 112")
    A("v_lshrrev_b32 v1, 6, v0")
    A("v_readfirstlane_b32 s3, v1")
    A("v_and_b32 v2, 63, v0")
    A("s_mul_i32 s4, s2, 20480")
    A("s_mul_i32 s5, s3, 5120")
    A("s_add_u32 s4, s4, s5")
    A(f"s_add_u32 s4, s4, {WS_WGU}")
    A("v_lshlrev_b32 v3, 4, v2")
    A("v_add_u32 v3, s4, v3")
    A("v_lshlrev_b32 v4, 5, v0")
    A(f"v_add_u32 v4, {WS_RK}, v4")
    A("s_waitcnt lgkmcnt(0)")
    A("global_load_dwordx4 v[8:11], v4, s[32:33]")
    A("global_load_dwordx4 v[12:15], v4, s[32:33] offset:16")
    BFR = 40
    for i in range(5):
        A(f"global_load_dwordx4 {vr(BFR+4*i,4)}, v3, s[32:33] offset:{1024*i if i < 4 else 0}" if i < 4 else
          f"global_load_dwordx4 {vr(BFR+4*i,4)}, v5, s[32:33]")
        if i == 3:
            A("v_add_u32 v5, 4096, v3")
    stamp(A, 1)
    A("s_waitcnt vmcnt(5)")
    stamp(A, 2)
    net = [(0, 1), (2, 3), (4, 5), (6, 7), (0, 2), (1, 3), (4, 6), (5, 7), (1, 2), (5, 6), (0, 4), (3, 7), (1, 5), (2, 6),
           (1, 4), (3, 6), (2, 4), (3, 5), (3, 4)]
    for a, b in net:
        A(f"v_max_u32 v16, v{8+a}, v{8+b}")
        A(f"v_min_u32 v{8+b}, v{8+a}, v{8+b}")
        A(f"v_mov_b32 v{8+a}, v16")
    for r in range(8):
        A("v_mov_b32 v16, v8")
        for sh in (1, 2, 4, 8):
            A(f"v_max_u32_dpp v16, v16, v16 row_shr:{sh} row_mask:0xf bank_mask:0xf")
        A("v_max_u32_dpp v16, v16, v16 row_bcast:15 row_mask:0xa bank_mask:0xf")
        A("v_max_u32_dpp v16, v16, v16 row_bcast:31 row_mask:0xc bank_mask:0xf")
        A(f"v_readlane_b32 s{40+r}, v16, 63")
        if r < 7:
            A(f"v_cmp_eq_u32 vcc, s{40+r}, v8")
            for k in range(7 - r):
                A(f"v_cndmask_b32 v{8+k}, v{8+k}, v{9+k}, vcc")
    stamp(A, 3)
    A("v_mov_b32 v16, s40")
    for r in range(1, 8):
        A(f"v_writelane_b32 v16, s{40+r}, {r}")
    A("s_lshl_b32 s6, s3, 5")
    A("v_lshlrev_b32 v17, 2, v2")
    A("v_add_u32 v17, s6, v17")
    A("v_cmp_gt_u32 vcc, 8, v2")
    A("s_and_saveexec_b64 s[20:21], vcc")
    A("ds_write_b32 v17, v16")
    A("s_mov_b64 exec, s[20:21]")
    A("s_waitcnt lgkmcnt(0)")
    A("s_barrier")
    A("v_and_b32 v17, 31, v2")
    A("v_lshlrev_b32 v17, 2, v17")
    A("ds_read_b32 v16, v17")
    A("v_mov_b32 v18, 0")
    for i in range(8):
        A(f"ds_read_b128 {vr(60+4*i,4)}, v18 offset:{16*i}")
    A("v_mov_b32 v19, 0")
    A("s_waitcnt lgkmcnt(0)")
    for i in range(32):
        A(f"v_cmp_gt_u32 vcc, v{60+i}, v16")
        A("v_addc_co_u32 v19, vcc, 0, v19, vcc")
    A("v_cmp_gt_u32 vcc, 8, v19")
    A("v_cmp_gt_u32 s[22:23], 32, v2")
    A("s_and_b64 vcc, vcc, s[22:23]")
    A("v_lshlrev_b32 v19, 2, v19")
    A("s_lshl_b32 s6, s3, 6")
    A("s_add_u32 s6, s6, 256")
    A("v_add_u32 v19, s6, v19")
    A("s_and_saveexec_b64 s[20:21], vcc")
    A("ds_write_b32 v19, v16")
    A("s_mov_b64 exec, s[20:21]")
    A("v_and_b32 v17, 7, v2")
    A("v_lshlrev_b32 v17, 2, v17")
    A("v_add_u32 v17, s6, v17")
    A("ds_read_b32 v16, v17")
    A("s_waitcnt lgkmcnt(0)")
    A("v_and_b32 v18, 0x7ff, v16")
    A("v_sub_u32 v18, 2047, v18")
    A("v_mul_u32_u24 v20, 1280, v18")
    A("v_lshrrev_b32 v21, 4, v2")
    A("v_lshlrev_b32 v21, 4, v21")
    A("v_add_u32 v20, v20, v21")
    A("s_mul_i32 s6, s3, 320")
    A(f"s_add_u32 s6, s6, {WS_L2}")
    A("v_add_u32 v20, s6, v20")
    AFR = 60
    for i in range(5):
        A(f"global_load_dwordx4 {vr(AFR+4*i,4)}, v20, s[32:33] offset:{64*i}")
    stamp(A, 4)
    A("s_or_b32 s6, s2, s3")
    A("s_cmp_lg_u32 s6, 0")
    A("s_cbranch_scc1 K4_NOSEL")
    A("v_and_b32 v22, 0xffff0000, v16")
    A("v_ashrrev_i32 v23, 31, v22")
    A("v_not_b32 v23, v23")
    A("v_or_b32 v23, 0x80000000, v23")
    A("v_xor_b32 v22, v22, v23")
    A("v_and_b32 v22, 0xffff0000, v22")
    A(f"v_mul_f32 v22, {hex(fbits(-LOG2E))}, v22")
    A("v_exp_f32 v22, v22")
    A("v_add_f32 v22, 1.0, v22")
    A("v_rcp_f32 v22, v22")
    bf16_round(A, 22)
    A("v_lshlrev_b32 v23, 2, v2")
    A(f"v_add_u32 v23, {WS_SEL}, v23")
    A("v_cmp_gt_u32 vcc, 8, v2")
    A("s_and_saveexec_b64 s[20:21], vcc")
    A("global_store_dword v23, v18, s[32:33]")
    A("global_store_dword v23, v22, s[32:33] offset:32")
    A("s_mov_b64 exec, s[20:21]")
    A.label("K4_NOSEL")
    for i in range(4):
        A(f"v_mov_b32 v{24+i}, 0")
    A("s_waitcnt vmcnt(0)")
    stamp(A, 5)
    for i in range(5):
        A(f"v_mfma_f32_16x16x32_bf16 v[24:27], {vr(AFR+4*i,4)}, {vr(BFR+4*i,4)}, v[24:27]")
    A("v_lshlrev_b32 v28, 4, v2")
    A("s_lshl_b32 s6, s3, 10")
    A("v_add_u32 v29, s6, v28")
    A("ds_write_b128 v29, v[24:27] offset:1024")
    A("s_waitcnt lgkmcnt(0)")
    A("s_barrier")
    A("s_cmp_lg_u32 s3, 0")
    A("s_cbranch_scc1 K4_DONE")
    for w in range(4):
        A(f"ds_read_b128 {vr(40+4*w,4)}, v28 offset:{1024 + 1024*w}")
    A("s_waitcnt lgkmcnt(0)")
    for i in range(4):
        A(f"v_add_f32 v{40+i}, v{40+i}, v{44+i}")
        A(f"v_add_f32 v{48+i}, v{48+i}, v{52+i}")
        A(f"v_add_f32 v{40+i}, v{40+i}, v{48+i}")
    for i in range(4):
        bf16_round(A, 40 + i)
    for i in range(4):
        A(f"v_mov_b32_dpp v{44+i}, v{40+i} row_shl:8 row_mask:0xf bank_mask:0xf")
    for i in range(4):
        A(f"v_mul_f32 v48, {hex(fbits(-LOG2E))}, v{40+i}")
        A("v_exp_f32 v48, v48")
        A("v_add_f32 v48, 1.0, v48")
        A("v_rcp_f32 v48, v48")
        A(f"v_mul_f32 v{40+i}, v{40+i}, v48")
        bf16_round(A, 40 + i)
        A(f"v_mul_f32 v{40+i}, v{40+i}, v{44+i}")
        A(f"v_cvt_pk_bf16_f32 v{40+i}, v{40+i}, v{40+i}")
    A("v_and_b32 v50, 15, v2")
    A("v_lshrrev_b32 v51, 4, v2")
    A("v_mul_u32_u24 v52, 12288, v51")
    A("v_lshlrev_b32 v53, 1, v50")
    A("v_add_u32 v52, v52, v53")
    A("s_lshl_b32 s6, s2, 4")
    A(f"s_add_u32 s6, s6, {WS_ACT}")
    A("v_add_u32 v52, s6, v52")
    A("v_cmp_gt_u32 vcc, 8, v50")
    A("v_cmp_gt_u32 s[22:23], 2, v51")
    A("s_and_b64 vcc, vcc, s[22:23]")
    A("s_and_saveexec_b64 s[20:21], vcc")
    A("global_store_short v52, v40, s[32:33]")
    A("global_store_short v52, v41, s[32:33] offset:3072")
    A("v_add_u32 v52, 6144, v52")
    A("global_store_short v52, v42, s[32:33]")
    A("global_store_short v52, v43, s[32:33] offset:3072")
    A.label("K4_DONE")
    k_end(A, 3)
    A.label("K4_END")
    A("s_endpgm")


K5_LDS = 4096


def k5(A):
    A("s_cmp_ge_u32 s2, 40")
    A("s_cbranch_scc1 K5_END")
    k_begin(A)
    A("s_load_dwordx2 s[32:33], s[0:1], 112")
    A("s_load_dwordx2 s[30:31], s[0:1], 96")
    A("v_lshrrev_b32 v1, 6, v0")
    A("v_readfirstlane_b32 s3, v1")
    A("v_and_b32 v2, 63, v0")
    A("s_mul_i32 s4, s2, 49152")
    A("s_mul_i32 s5, s3, 12288")
    A("s_add_u32 s4, s4, s5")
    A(f"s_add_u32 s4, s4, {WS_WD}")
    A("v_lshlrev_b32 v3, 4, v2")
    A("v_add_u32 v3, s4, v3")
    A("v_and_b32 v4, 7, v2")
    A("v_mul_u32_u24 v4, 3072, v4")
    A("v_lshrrev_b32 v5, 4, v2")
    A("v_lshlrev_b32 v6, 4, v5")
    A("v_add_u32 v4, v4, v6")
    A("s_mul_i32 s6, s3, 768")
    A(f"s_add_u32 s6, s6, {WS_ACT}")
    A("v_add_u32 v4, s6, v4")
    A("s_waitcnt lgkmcnt(0)")
    BFR, AFR = 40, 88
    for i in range(12):
        A(f"global_load_dwordx4 {vr(BFR+4*i,4)}, v3, s[32:33] offset:{1024*(i%4)}")
        if i % 4 == 3 and i < 11:
            A("v_add_u32 v3, 4096, v3")
    for i in range(12):
        A(f"global_load_dwordx4 {vr(AFR+4*i,4)}, v4, s[32:33] offset:{64*i}")
    A("v_and_b32 v7, 1, v5")
    A("v_lshlrev_b32 v7, 4, v7")
    A(f"v_add_u32 v7, {WS_SEL}, v7")
    A("global_load_dwordx4 v[8:11], v7, s[32:33]")
    A("global_load_dwordx4 v[12:15], v7, s[32:33] offset:32")
    stamp(A, 1)
    A("s_waitcnt vmcnt(1)")
    stamp(A, 2)
    A("v_and_b32 v16, 15, v2")
    A("s_lshl_b32 s6, s2, 4")
    A("v_add_u32 v16, s6, v16")
    for i in range(4):
        A(f"v_mul_u32_u24 v{20+i}, 1280, v{8+i}")
        A(f"v_lshl_add_u32 v{20+i}, v16, 1, v{20+i}")
        A(f"v_add_u32 v17, {WS_L2}, v{20+i}")
        A(f"global_load_ushort v{24+i}, v17, s[32:33]")
        A(f"v_lshrrev_b32 v17, 4, v{8+i}")
        A("v_mul_u32_u24 v17, 20480, v17")
        A("v_lshl_add_u32 v17, v16, 5, v17")
        A(f"v_and_b32 v18, 15, v{8+i}")
        A("v_lshl_add_u32 v17, v18, 1, v17")
        A(f"v_add_u32 v17, {WS_HT}, v17")
        A(f"global_load_ushort v{28+i}, v17, s[32:33]")
    for i in range(4):
        A(f"v_mov_b32 v{32+i}, 0")
    A("s_waitcnt vmcnt(8)")
    stamp(A, 3)
    for i in range(12):
        A(f"v_mfma_f32_16x16x32_bf16 v[32:35], {vr(AFR+4*i,4)}, {vr(BFR+4*i,4)}, v[32:35]")
    A("v_lshlrev_b32 v36, 4, v2")
    A("s_lshl_b32 s6, s3, 10")
    A("v_add_u32 v37, s6, v36")
    A("ds_write_b128 v37, v[32:35]")
    A("s_waitcnt lgkmcnt(0)")
    A("s_barrier")
    A("s_cmp_lg_u32 s3, 0")
    A("s_cbranch_scc1 K5_DONE")
    for w in range(4):
        A(f"ds_read_b128 {vr(40+4*w,4)}, v36 offset:{1024*w}")
    A("s_waitcnt vmcnt(0) lgkmcnt(0)")
    for i in range(4):
        A(f"v_add_f32 v{40+i}, v{40+i}, v{44+i}")
        A(f"v_add_f32 v{48+i}, v{48+i}, v{52+i}")
        A(f"v_add_f32 v{40+i}, v{40+i}, v{48+i}")
    for i in range(4):
        bf16_round(A, 40 + i)
        A(f"v_mul_f32 v{40+i}, v{40+i}, v{12+i}")
        bf16_round(A, 40 + i)
        A(f"v_lshlrev_b32 v{24+i}, 16, v{24+i}")
        A(f"v_add_f32 v{40+i}, v{40+i}, v{24+i}")
        bf16_round(A, 40 + i)
        A(f"v_lshlrev_b32 v{28+i}, 16, v{28+i}")
        A(f"v_add_f32 v{40+i}, v{40+i}, v{28+i}")
        A(f"v_cvt_pk_bf16_f32 v{40+i}, v{40+i}, v{40+i}")
    A("v_cmp_gt_u32 vcc, 2, v5")
    A("s_and_saveexec_b64 s[20:21], vcc")
    for i in range(4):
        A(f"global_store_short v{20+i}, v{40+i}, s[30:31]")
    A.label("K5_DONE")
    k_end(A, 4)
    A.label("K5_END")
    A("s_endpgm")


KERNELS = [
    ("k1_kernel", k1, 896, 256, K1_LDS, 168),
    ("k2_kernel", k2, 256, 256, K2_LDS, 168),
    ("k3_kernel", k3, 128, 256, K3_LDS, 104),
    ("k4_kernel", k4, 192, 256, K4_LDS, 96),
    ("k5_kernel", k5, 40, 256, K5_LDS, 136),
]
```

```python
import gen
from gen import *
import gen_rest
KIDX = {"k1": 0, "k2": 1, "k3": 2, "k4": 3, "k5": 4}
cur = [0]
def k_begin2(A):
    k = cur[0]
    A("s_memrealtime s[94:95]")
    A("s_load_dwordx2 s[96:97], s[0:1], 104")
    A("s_waitcnt lgkmcnt(0)")
    A(f"s_add_u32 s96, s96, {512*(4-k)}")
    A("s_addc_u32 s97, s97, 0")
    A("s_cmp_lg_u32 s2, 0")
    A(f"s_cbranch_scc1 DBG_SKIP{k}")
    A("v_mov_b32 v1, s94")
    A(f"v_mov_b32 v2, {4*k}")
    A("global_store_dword v2, v1, s[96:97]")
    A.label(f"DBG_SKIP{k}")
def k_end2(A, kidx):
    if kidx == 4 or kidx == 0:
        A("s_waitcnt vmcnt(0) lgkmcnt(0)")
        A("s_memrealtime s[94:95]")
        A("s_mov_b64 exec, 1")
        A("s_waitcnt lgkmcnt(0)")
        A("v_mov_b32 v1, s94")
        A(f"v_mov_b32 v2, {32 + 4*(kidx==4)}")
        if kidx == 4:
            A("global_atomic_umax v2, v1, s[96:97]")
        else:
            A("s_and_b32 s98, s2, 31")
            A("s_cmp_lg_u32 s98, 31")
            A(f"s_cbranch_scc1 DBG_E{id(A)%100000}_{len(A.lines)}")
            A("global_atomic_umax v2, v1, s[96:97]")
            A.label(f"DBG_E{id(A)%100000}_{len(A.lines)-2}")
    A("s_endpgm")
gen.k_begin = k_begin2; gen.k_end = k_end2
gen_rest.k_begin = k_begin2; gen_rest.k_end = k_end2
ks = []
for i, (label, fn, grid, block, lds, vgpr) in enumerate(gen_rest.KERNELS):
    def mk(fn, i):
        def f(A):
            cur[0] = i
            fn(A)
        return f
    ks.append((label, mk(fn, i), grid, block, lds, vgpr))
open("v_dbg.s", "w").write(gen.build(ks))
```

```python
import sys
from gen import *
from gen_rest import *
def straight(n):
    def f(A):
        for i in range(n):
            A("v_mov_b32 v1, v0")
        A("s_endpgm")
    return f
def looped(n):
    def f(A):
        A(f"s_mov_b32 s4, {n//64}")
        A.label("LP")
        for i in range(64):
            A("v_mov_b32 v1, v0")
        A("s_sub_u32 s4, s4, 1")
        A("s_cmp_lg_u32 s4, 0")
        A("s_cbranch_scc1 LP")
        A("s_endpgm")
    return f
base = list(KERNELS)
open("v_base.s", "w").write(build(base))
open("v_s4k.s", "w").write(build(base + [("e_kernel", straight(4096), 1, 64, 0, 8)]))
open("v_l4k.s", "w").write(build(base + [("e_kernel", looped(4096), 1, 64, 0, 8)]))
open("v_s4k256.s", "w").write(build(base + [("e_kernel", straight(4096), 256, 64, 0, 8)]))
open("v_s1k256.s", "w").write(build(base + [("e_kernel", straight(1024), 256, 64, 0, 8)]))
```

```python
import sys, os, struct
sys.path.insert(0, os.path.dirname(os.path.abspath(__file__)))
from asmlib import Asm

NAME = "sequential_preLN__ssm_conv_s4d__moe_arch_mod__prompt"

WS_UT = 0x0000000
WS_KD = 0x0280000
WS_SC = 0x03C0000
WS_AT = 0x0400000
WS_L2 = 0x0680000
WS_RK = 0x0900000
WS_ACT = 0x0910000
WS_SEL = 0x0918000
WS_WGU = 0x0A00000
WS_WD = 0x0E00000
WS_STAMP = 0x1800000
STAMP = [False]
NSTAMP = 12
ST_OPT = [""]


def k_begin(A):
    if STAMP[0]:
        A("s_memrealtime s[94:95]")
        for i in range(NSTAMP):
            A(f"s_mov_b64 s[{60+2*i}:{61+2*i}], 0")
        A("s_memtime s[60:61]")


def stamp(A, i):
    if STAMP[0]:
        A(f"s_memtime s[{60+2*i}:{61+2*i}]")


def k_end(A, kidx):
    if STAMP[0]:
        A(f"s_memtime s[{60+2*(NSTAMP-2)}:{61+2*(NSTAMP-2)}]")
        A("s_waitcnt vmcnt(0) lgkmcnt(0)")
        A("s_memrealtime s[96:97]")
        A(f"s_memtime s[{60+2*(NSTAMP-1)}:{61+2*(NSTAMP-1)}]")
        A("s_mov_b64 exec, -1")
        A("v_lshrrev_b32 v1, 6, v0")
        A("s_lshl_b32 s98, s2, 3")
        A("v_add_u32 v1, s98, v1")
        A("v_lshlrev_b32 v1, 7, v1")
        A(f"v_add_u32 v1, {WS_STAMP + kidx * 0x100000}, v1")
        A("s_waitcnt lgkmcnt(0)")
        A("v_mov_b32 v2, s94")
        A("v_mov_b32 v3, s95")
        A("v_mov_b32 v4, s96")
        A("v_mov_b32 v5, s97")
        A("global_store_dwordx4 v1, v[2:5], s[32:33]")
        for i in range(0, NSTAMP, 2):
            for j in range(4):
                A(f"v_mov_b32 v{2+j}, s{60+2*i+j}")
            A(f"global_store_dwordx4 v1, v[2:5], s[32:33] offset:{16+8*i}")
    A("s_endpgm")


def fbits(x):
    return struct.unpack("<I", struct.pack("<f", x))[0]


LOG2E = 1.4426950408889634
L2E_HI = fbits(LOG2E)
L2E_HI_F = struct.unpack("<f", struct.pack("<I", L2E_HI))[0]
L2E_LO = fbits(LOG2E - L2E_HI_F)
LN2 = fbits(0.6931471805599453)
INV2PI = fbits(0.15915494309189535)
INV640 = fbits(1.0 / 640.0)
EPS = fbits(1e-5)
ONE_LO = 0x00003f80
ONE_HI = 0x3f800000


def vr(a, n):
    return f"v[{a}:{a+n-1}]"


def bf16_round(A, reg):
    A(f"v_cvt_pk_bf16_f32 v{reg}, v{reg}, v{reg}")
    A(f"v_and_b32 v{reg}, 0xffff0000, v{reg}")


def exp_bf16(A, dst, src, t0, t1):
    A(f"v_mul_f32 v{t0}, s90, v{src}")
    A(f"v_fma_f32 v{t1}, v{src}, s90, -v{t0}")
    A(f"v_fma_f32 v{t1}, v{src}, s91, v{t1}")
    A(f"v_exp_f32 v{dst}, v{t0}")
    A(f"v_mul_f32 v{t1}, s92, v{t1}")
    A(f"v_fma_f32 v{dst}, v{dst}, v{t1}, v{dst}")
    bf16_round(A, dst)


def cmul(A, d, a, b):
    A(f"v_pk_mul_f32 {vr(d,2)}, {vr(a,2)}, {vr(b,2)} op_sel:[0,0] op_sel_hi:[0,1]")
    A(f"v_pk_fma_f32 {vr(d,2)}, {vr(a,2)}, {vr(b,2)}, {vr(d,2)} op_sel:[1,1,0] op_sel_hi:[1,0,1] neg_lo:[0,1,0]")


def ln_finish(A, s1, s2, t):
    A(f"v_mul_f32 v{s1}, {INV640}, v{s1}")
    A(f"v_mul_f32 v{s2}, {INV640}, v{s2}")
    A(f"v_fma_f32 v{s2}, -v{s1}, v{s1}, v{s2}")
    A(f"v_max_f32 v{s2}, 0, v{s2}")
    A(f"v_cvt_pk_bf16_f32 v{t}, v{s1}, v{s2}")
    A(f"v_lshlrev_b32 v{s1}, 16, v{t}")
    A(f"v_and_b32 v{s2}, 0xffff0000, v{t}")
    A(f"v_add_f32 v{s2}, {EPS}, v{s2}")
    bf16_round(A, s2)
    A(f"v_sqrt_f32 v{s2}, v{s2}")
    bf16_round(A, s2)
    A(f"v_rcp_f32 v{s2}, v{s2}")


def pair_swizzle(A, dst, src, tmp):
    A(f"s_and_b32 s{dst}, s{src}, 7")
    A(f"s_lshl_b32 s{dst}, s{dst}, 1")
    A(f"s_bfe_u32 s{tmp}, s{src}, 0x10003")
    A(f"s_or_b32 s{dst}, s{dst}, s{tmp}")
    A(f"s_andn2_b32 s{tmp}, s{src}, 15")
    A(f"s_or_b32 s{dst}, s{dst}, s{tmp}")


K1_ROWB = 288
K1_BUF = 16 * K1_ROWB
K1_LDS = 3 * 2 * K1_BUF


def k1(A):
    A("s_cmp_ge_u32 s2, 896")
    A("s_cbranch_scc1 K1_END")
    k_begin(A)
    A("s_load_dwordx16 s[16:31], s[0:1], 0")
    A("s_load_dwordx2 s[32:33], s[0:1], 112")
    A("s_cmp_ge_u32 s2, 640")
    A("s_cbranch_scc1 K1_LN")
    A("s_and_b32 s4, s2, 7")
    A("s_lshl_b32 s4, s4, 3")
    A("s_bfe_u32 s5, s2, 0x10005")
    A("s_lshl_b32 s5, s5, 2")
    A("s_or_b32 s4, s4, s5")
    A("s_lshr_b32 s5, s2, 6")
    A("s_lshl_b32 s5, s5, 6")
    A("s_or_b32 s4, s4, s5")
    A("s_bfe_u32 s5, s2, 0x20003")
    A("s_or_b32 s34, s4, s5")
    A("v_lshrrev_b32 v1, 6, v0")
    A("v_readfirstlane_b32 s3, v1")
    A("v_and_b32 v2, 63, v0")
    A(f"s_mov_b32 s90, {L2E_HI}")
    A(f"s_mov_b32 s91, {L2E_LO}")
    A(f"s_mov_b32 s92, {LN2}")
    A("s_mul_i32 s4, s34, 384")
    A("s_lshr_b32 s5, s34, 1")
    A("s_lshl_b32 s5, s5, 2")
    A("v_lshlrev_b32 v1, 1, v0")
    A("v_add_u32 v1, s4, v1")
    A("v_lshlrev_b32 v3, 1, v2")
    A("v_add_u32 v3, s4, v3")
    A("s_waitcnt lgkmcnt(0)")
    A("s_load_dword s6, s[26:27], s5")
    A("global_load_ushort v10, v1, s[18:19]")
    A("global_load_ushort v11, v1, s[20:21]")
    A("global_load_ushort v12, v1, s[22:23]")
    A("global_load_ushort v13, v1, s[24:25]")
    for i in range(3):
        A(f"global_load_ushort v{14+i}, v3, s[22:23] offset:{128*i}")
        A(f"global_load_ushort v{17+i}, v3, s[24:25] offset:{128*i}")
    A("v_and_b32 v3, 15, v2")
    A("v_lshrrev_b32 v4, 4, v2")
    A("s_cmp_eq_u32 s3, 1")
    A("s_cbranch_scc1 K1_A1")
    A("s_cmp_eq_u32 s3, 2")
    A("s_cbranch_scc1 K1_A2")
    A("v_lshlrev_b32 v5, 6, v4")
    A("v_add_u32 v5, v5, v3")
    A("s_mov_b32 s12, 32")
    A("s_branch K1_A3")
    A.label("K1_A1")
    A("v_lshlrev_b32 v5, 1, v3")
    A("v_add_u32 v5, v5, v4")
    A("v_add_u32 v5, 384, v5")
    A("v_lshlrev_b32 v6, 4, v4")
    A("v_add_u32 v6, v6, v3")
    A("v_add_u32 v6, 480, v6")
    A("v_cmp_gt_u32 vcc, 2, v4")
    A("v_cndmask_b32 v5, v6, v5, vcc")
    A("s_mov_b32 s12, 64")
    A("s_branch K1_A3")
    A.label("K1_A2")
    A("v_lshlrev_b32 v5, 6, v4")
    A("v_lshlrev_b32 v6, 2, v3")
    A("v_add_u32 v5, v5, v6")
    A("v_add_u32 v5, 256, v5")
    A("v_lshlrev_b32 v6, 2, v2")
    A("v_add_u32 v6, 520, v6")
    A("v_cmp_gt_u32 vcc, 2, v4")
    A("v_cndmask_b32 v5, v6, v5, vcc")
    A("v_mov_b32 v6, 640")
    A("v_cmp_eq_u32 vcc, 32, v2")
    A("v_cndmask_b32 v5, v5, v6, vcc")
    A("s_mov_b32 s12, 2")
    A.label("K1_A3")
    A("s_lshl_b32 s11, s34, 11")
    A(f"s_add_u32 s11, s11, {WS_KD}")
    A("v_lshlrev_b32 v29, 1, v5")
    A("v_add_u32 v29, s11, v29")
    A(f"s_mul_i32 s7, s3, {2*K1_BUF}")
    A(f"v_mul_u32_u24 v32, {K1_ROWB}, v3")
    A("v_lshlrev_b32 v5, 4, v4")
    A("v_add_u32 v32, v32, v5")
    A("v_add_u32 v32, s7, v32")
    stamp(A, 1)
    A("s_waitcnt lgkmcnt(0)")
    A("s_bitcmp1_b32 s34, 0")
    A("s_cbranch_scc1 K1_ODD")
    A("s_lshl_b32 s6, s6, 16")
    A.label("K1_ODD")
    A("s_and_b32 s6, s6, 0xffff0000")
    A("v_mov_b32 v5, s6")
    exp_bf16(A, 33, 5, 6, 7)
    A("s_waitcnt vmcnt(0)")
    stamp(A, 2)
    for i in range(6):
        A(f"v_and_b32 v{14+i}, 0x7fff, v{14+i}")
    A("v_max3_u32 v14, v14, v15, v16")
    A("v_max3_u32 v17, v17, v18, v19")
    A("v_max_u32 v14, v14, v17")
    A("v_lshlrev_b32 v10, 16, v10")
    A("v_lshlrev_b32 v11, 16, v11")
    for sh in (1, 2, 4, 8):
        A(f"v_max_u32_dpp v14, v14, v14 row_shr:{sh} row_mask:0xf bank_mask:0xf")
    A("v_max_u32_dpp v14, v14, v14 row_bcast:15 row_mask:0xa bank_mask:0xf")
    A("v_max_u32_dpp v14, v14, v14 row_bcast:31 row_mask:0xc bank_mask:0xf")
    exp_bf16(A, 34, 10, 6, 7)
    A("v_readlane_b32 s8, v14, 63")
    A("v_mul_f32 v34, v34, v33")
    A("v_mul_f32 v35, v11, v33")
    A("s_lshr_b32 s8, s8, 7")
    A("s_max_u32 s8, s8, 6")
    A("s_min_u32 s8, s8, 253")
    A("s_sub_u32 s9, 260, s8")
    A("s_lshl_b32 s9, s9, 23")
    A("s_sub_u32 s10, s8, 132")
    A("v_mul_f32 v34, s90, v34")
    A("v_sub_f32 v34, 0, v34")
    A(f"v_mul_f32 v35, {INV2PI}, v35")
    A("v_lshlrev_b32 v12, 16, v12")
    A("v_lshlrev_b32 v13, 16, v13")
    C = 36
    A(f"v_mul_f32 v{C}, s9, v12")
    A(f"v_mul_f32 v{C+1}, s9, v13")
    A("v_ldexp_f32 v6, v33, s10")
    A("s_lshl_b32 s11, s34, 2")
    A(f"s_add_u32 s11, s11, {WS_SC}")
    A("v_mov_b32 v7, s11")
    A("global_store_dword v7, v6, s[32:33]")

    def direct(d, p, t):
        lit = "1.0" if p == 1 else hex(fbits(float(p)))
        A(f"v_mul_f32 v{t}, {lit}, v34")
        A(f"v_mul_f32 v{t+1}, {lit}, v35")
        A(f"v_fract_f32 v{t+1}, v{t+1}")
        A(f"v_exp_f32 v{t}, v{t}")
        A(f"v_cos_f32 v{t+2}, v{t+1}")
        A(f"v_sin_f32 v{t+3}, v{t+1}")
        return (d, t)

    def direct_fin(d, t):
        A(f"v_mul_f32 v{d}, v{t}, v{t+2}")
        A(f"v_mul_f32 v{d+1}, v{t}, v{t+3}")

    g = {i: 38 + 2 * (i - 1) for i in range(1, 9)}
    h = {1: g[8]}
    for k, i in enumerate((2, 4, 6, 8, 10, 12, 14)):
        h[i] = 54 + 2 * k
    G128, G256, G512, G1024 = 68, 70, 72, 74
    T = [76, 78, 80, 82]
    PK = [8, 9, 10, 11]
    cA = [84, 86, 88, 90]
    BF, AF = 92, 108
    ACC = [12, 16, 20]
    pkc = [0]

    def wr(row, buf, src, neg):
        p = PK[pkc[0] % 4]
        pkc[0] += 1
        A(f"v_cvt_pk_f16_f32 v{p}, v{src}, {'-' if neg else ''}v{src+1}")
        A(f"ds_write_addtid_b32 v{p} offset:{buf*K1_BUF + row*K1_ROWB}")

    def frags(dst, buf):
        for j in range(4):
            A(f"ds_read_b128 {vr(dst+4*j,4)}, v32 offset:{buf*K1_BUF + 64*j}")

    def mfmas(acc, a, b):
        for j in range(4):
            A(f"v_mfma_f32_16x16x32_f16 {vr(acc,4)}, {vr(a+4*j,4)}, {vr(b+4*j,4)}, {vr(acc,4)}")

    A("s_mov_b32 m0, s7")
    stamp(A, 3)
    d1 = direct(g[1], 1, 76)
    d2 = direct(g[8], 8, 80)
    d3 = direct(G128, 128, 84)
    direct_fin(*d1)
    direct_fin(*d2)
    direct_fin(*d3)
    for i in range(12):
        A(f"v_mov_b32 v{ACC[0]+i}, 0")
    cmul(A, g[2], g[1], g[1])
    cmul(A, h[2], h[1], h[1])
    cmul(A, g[3], g[2], g[1])
    cmul(A, g[4], g[2], g[2])
    cmul(A, h[4], h[2], h[2])
    cmul(A, g[5], g[4], g[1])
    cmul(A, g[6], g[4], g[2])
    cmul(A, g[7], g[4], g[3])
    cmul(A, h[6], h[4], h[2])
    cmul(A, h[8], h[4], h[4])
    A(f"v_mov_b32 v{PK[3]}, 0x00003c00")
    A(f"ds_write_addtid_b32 v{PK[3]} offset:0")
    for i in range(1, 9):
        wr(i, 0, g[i], False)
    cmul(A, h[10], h[8], h[2])
    cmul(A, h[12], h[8], h[4])
    cmul(A, h[14], h[8], h[6])
    for i in range(1, 8):
        t = T[i % 4]
        cmul(A, t, g[8], g[i])
        wr(8 + i, 0, t, False)
    frags(BF, 0)
    stamp(A, 4)
    cmul(A, cA[0], C, G128)
    wr(0, 1, C, True)
    for hi in range(1, 8):
        t = T[hi % 4]
        cmul(A, t, C, h[2 * hi])
        wr(hi, 1, t, True)
    wr(8, 1, cA[0], True)
    for i in range(1, 8):
        t = T[i % 4]
        cmul(A, t, cA[0], h[2 * i])
        wr(8 + i, 1, t, True)
    frags(AF, 1)
    cmul(A, G256, G128, G128)
    cmul(A, G512, G256, G256)
    cmul(A, G1024, G512, G512)
    A(f"v_mov_b32 v{PK[3]}, 0x00003c00")
    A(f"ds_write_addtid_b32 v{PK[3]} offset:0")
    wr(1, 0, h[1], False)
    for i in (2, 4, 6, 8, 10, 12, 14):
        wr(i, 0, h[i], False)
        t = T[(i // 2) % 4]
        cmul(A, t, h[i], h[1])
        wr(i + 1, 0, t, False)
    A("s_waitcnt lgkmcnt(15)")
    mfmas(ACC[0], AF, BF)
    frags(BF, 0)
    cmul(A, cA[0], C, G512)
    cmul(A, cA[1], cA[0], G128)
    cmul(A, cA[2], cA[0], G256)
    cmul(A, cA[3], cA[2], G128)
    for i in range(4):
        wr(i, 1, cA[i], True)
    for i in range(4):
        cmul(A, T[i], cA[i], g[4])
        wr(4 + i, 1, T[i], True)
    cmul(A, cA[0], C, G1024)
    cmul(A, cA[1], cA[0], G256)
    cmul(A, cA[2], cA[0], G512)
    cmul(A, cA[3], cA[2], G256)
    for i in range(4):
        wr(8 + i, 1, cA[i], True)
    for i in range(4):
        cmul(A, T[i], cA[i], G128)
        wr(12 + i, 1, T[i], True)
    frags(AF, 1)
    stamp(A, 5)
    cmul(A, T[0], cA[0], G1024)
    wr(8, 0, T[0], True)
    cmul(A, cA[1], C, G256)
    cmul(A, cA[2], cA[1], G128)
    wr(0, 0, cA[1], True)
    wr(4, 0, cA[2], True)
    for k, gi in enumerate((2, 4, 6)):
        cmul(A, T[1], cA[1], g[gi])
        wr(1 + k, 0, T[1], True)
        cmul(A, T[2], cA[2], g[gi])
        wr(5 + k, 0, T[2], True)
    A("s_waitcnt lgkmcnt(9)")
    mfmas(ACC[1], AF, BF)
    AF2 = 38
    frags(AF2, 0)
    A("s_waitcnt lgkmcnt(0)")
    mfmas(ACC[2], AF2, BF)
    A("v_lshlrev_b32 v24, 4, v2")
    A("v_add_u32 v25, s7, v24")
    for t in range(3):
        A(f"ds_write_b128 v25, {vr(ACC[t],4)} offset:{1024*t}")
    stamp(A, 6)
    A("s_waitcnt lgkmcnt(0)")
    A("s_barrier")
    stamp(A, 7)
    A("s_lshl_b32 s11, s3, 10")
    A("v_add_u32 v24, s11, v24")
    for w in range(3):
        A(f"ds_read_b128 {vr(40+4*w,4)}, v24 offset:{2*K1_BUF*w}")
    A("v_add_u32 v30, s12, v29")
    A("v_add_u32 v31, s12, v30")
    A("v_add_u32 v28, s12, v31")
    A("s_waitcnt lgkmcnt(0)")
    for i in range(4):
        A(f"v_add_f32 v{40+i}, v{40+i}, v{44+i}")
    for i in range(4):
        A(f"v_add_f32 v{40+i}, v{40+i}, v{48+i}")
    A("v_cvt_pk_f16_f32 v40, v40, v41")
    A("v_cvt_pk_f16_f32 v42, v42, v43")
    A("global_store_short v29, v40, s[32:33]")
    A("global_store_short_d16_hi v30, v40, s[32:33]")
    A("global_store_short v31, v42, s[32:33]")
    A("global_store_short_d16_hi v28, v42, s[32:33]")
    k_end(A, 0)

    A.label("K1_LN")
    A("v_lshrrev_b32 v1, 6, v0")
    A("v_readfirstlane_b32 s3, v1")
    A("s_sub_u32 s5, s2, 640")
    pair_swizzle(A, 4, 5, 6)
    A("s_mul_i32 s5, s4, 10240")
    A("v_min_u32 v2, 159, v0")
    A("v_lshlrev_b32 v3, 3, v2")
    A("v_add_u32 v3, s5, v3")
    A("v_add_u32 v4, 5120, v3")
    A("v_lshrrev_b32 v5, 4, v0")
    A("v_mul_u32_u24 v6, 1280, v5")
    A("v_and_b32 v7, 15, v0")
    A("v_lshlrev_b32 v7, 4, v7")
    A("v_add_u32 v6, v6, v7")
    A("v_add_u32 v6, s5, v6")
    A("s_waitcnt lgkmcnt(0)")
    A("s_cmp_eq_u32 s3, 2")
    A("s_cbranch_scc1 K1_LNB")
    for i in range(5):
        A(f"global_load_dwordx4 {vr(8+4*i,4)}, v6, s[16:17] offset:{256*i}")
    A.label("K1_LNB")
    for r in range(8):
        A(f"global_load_dwordx2 {vr(40+2*r,2)}, v{3 if r < 4 else 4}, s[16:17] offset:{1280*(r%4)}")
    A("s_cmp_eq_u32 s3, 2")
    A("s_cbranch_scc1 K1_LNBAR")
    A("v_mov_b32 v30, 0")
    A("v_mov_b32 v31, 0")
    A("v_mov_b32 v32, 0x3f803f80")
    A("s_waitcnt vmcnt(8)")
    for i in range(20):
        A(f"v_dot2c_f32_bf16 v30, v{8+i}, v32")
        A(f"v_dot2c_f32_bf16 v31, v{8+i}, v{8+i}")
    for sh in (8, 4, 2, 1):
        A(f"v_add_f32_dpp v30, v30, v30 row_ror:{sh} row_mask:0xf bank_mask:0xf")
        A(f"v_add_f32_dpp v31, v31, v31 row_ror:{sh} row_mask:0xf bank_mask:0xf")
    ln_finish(A, 30, 31, 33)
    A("v_sub_f32 v30, 0, v30")
    A("v_lshlrev_b32 v5, 3, v5")
    A("ds_write_b64 v5, v[30:31]")
    A.label("K1_LNBAR")
    stamp(A, 2)
    A("s_waitcnt lgkmcnt(0)")
    A("s_barrier")
    stamp(A, 3)
    A("v_mov_b32 v5, 0")
    for i in range(4):
        A(f"ds_read_b128 {vr(8+4*i,4)}, v5 offset:{16*i}")
    A(f"v_mov_b32 v34, {ONE_LO}")
    A(f"v_mov_b32 v35, {ONE_HI}")
    A("s_waitcnt vmcnt(0) lgkmcnt(0)")
    tmp = [24, 27]
    for rp in range(4):
        r0, r1 = 2 * rp, 2 * rp + 1
        for ch in range(4):
            a, b = 40 + 2 * r0 + (ch >> 1), 40 + 2 * r1 + (ch >> 1)
            one = 34 + (ch & 1)
            t = 24 + 3 * (ch & 1)
            A(f"v_dot2_f32_bf16 v{t}, v{a}, v{one}, v{8+2*r0}")
            A(f"v_dot2_f32_bf16 v{t+1}, v{b}, v{one}, v{8+2*r1}")
            A(f"v_cvt_pk_bf16_f32 v{t+2}, v{t}, v{t+1}")
            A(f"v_lshlrev_b32 v{t}, 16, v{t+2}")
            A(f"v_and_b32 v{t+1}, 0xffff0000, v{t+2}")
            A(f"v_mul_f32 v{t}, v{t}, v{9+2*r0}")
            A(f"v_mul_f32 v{t+1}, v{t+1}, v{9+2*r1}")
            A(f"v_cvt_pk_bf16_f32 v{t+2}, v{t}, v{t+1}")
            A(f"v_lshlrev_b32 v{t}, 16, v{t+2}")
            A(f"v_and_b32 v{t+1}, 0xffff0000, v{t+2}")
            A(f"v_cvt_pk_f16_f32 v{60+4*ch+rp}, v{t}, v{t+1}")
    stamp(A, 4)
    A("v_lshlrev_b32 v3, 14, v2")
    A("s_lshl_b32 s5, s4, 6")
    A("v_add_u32 v3, s5, v3")
    for ch in range(4):
        A(f"global_store_dwordx4 v3, {vr(60+4*ch,4)}, s[32:33] offset:{16*ch} {ST_OPT[0]}")
    k_end(A, 0)
    A.label("K1_END")
    A("s_endpgm")


K2_KE, K2_KO, K2_U, K2_T = 0, 4160, 8320, 12928
K2_WB = 15168
K2_LDS = 4 * K2_WB


def k2(A):
    A("s_cmp_ge_u32 s2, 256")
    A("s_cbranch_scc1 K2_END")
    k_begin(A)
    A("s_load_dwordx2 s[32:33], s[0:1], 112")
    A("s_load_dwordx2 s[28:29], s[0:1], 48")
    A("s_cmp_ge_u32 s2, 160")
    A("s_cbranch_scc1 K2_WT")
    pair_swizzle(A, 35, 2, 6)
    A("v_lshrrev_b32 v1, 6, v0")
    A("v_readfirstlane_b32 s3, v1")
    A("v_and_b32 v2, 63, v0")
    A("s_lshl_b32 s4, s35, 2")
    A("s_add_u32 s4, s4, s3")
    A(f"s_mul_i32 s5, s3, {K2_WB}")
    A("s_lshl_b32 s6, s4, 11")
    A(f"s_add_u32 s6, s6, {WS_KD}")
    A("s_lshl_b32 s7, s35, 14")
    A("s_lshl_b32 s8, s3, 4")
    A("s_add_u32 s7, s7, s8")
    A("v_lshlrev_b32 v3, 4, v2")
    A("v_add_u32 v3, s6, v3")
    A("v_lshlrev_b32 v5, 6, v2")
    A("v_add_u32 v5, s7, v5")
    A("s_lshl_b32 s9, s4, 2")
    A(f"s_add_u32 s9, s9, {WS_SC}")
    A("s_lshr_b32 s14, s4, 1")
    A("s_lshl_b32 s14, s14, 2")
    A(f"s_add_u32 s12, s5, {K2_T}")
    A("s_mov_b32 m0, s12")
    A("s_waitcnt lgkmcnt(0)")
    stamp(A, 1)
    A("global_load_lds_dwordx4 v3, s[32:33]")
    A("global_load_lds_dwordx4 v3, s[32:33] offset:1024")
    for j in range(4):
        A(f"s_add_u32 s12, s5, {K2_U + 512 + 1024*j}")
        A("s_mov_b32 m0, s12")
        if j:
            A("v_add_u32 v5, 4096, v5")
        A("global_load_lds_dwordx4 v5, s[32:33]")
    A("s_load_dword s10, s[32:33], s9")
    A("s_load_dword s11, s[28:29], s14")
    A("v_and_b32 v6, 15, v2")
    A("v_lshrrev_b32 v7, 4, v2")
    A("v_lshrrev_b32 v8, 1, v7")
    A("v_and_b32 v9, 1, v7")
    A("v_mov_b32 v12, 0")
    A("v_mov_b32 v13, 0")
    A("v_lshlrev_b32 v14, 3, v2")
    A("v_add_u32 v14, s5, v14")
    A(f"ds_write_b64 v14, v[12:13] offset:{K2_U}")
    A("v_lshlrev_b32 v14, 2, v6")
    A("v_add_u32 v14, s5, v14")
    A(f"ds_write_b32 v14, v12 offset:{K2_KE + 4096}")
    A(f"ds_write_b32 v14, v12 offset:{K2_KO + 4096}")
    A("v_sub_u32 v14, 2047, v6")
    A("v_lshlrev_b32 v15, 4, v8")
    A("v_sub_u32 v14, v14, v15")
    A("v_lshlrev_b32 v15, 3, v9")
    A("v_add_u32 v14, v14, v15")
    A("v_lshlrev_b32 v14, 1, v14")
    A(f"v_add_u32 v15, {K2_KO - 2}, v14")
    A("v_and_b32 v16, 1, v6")
    A("v_cmp_eq_u32 vcc, 1, v16")
    A("v_cndmask_b32 v14, v15, v14, vcc")
    A("v_add_u32 v14, s5, v14")
    AB = [20, 21, 22, 23]
    for p in range(4):
        A(f"v_subrev_u32 v{AB[p]}, {512*(2*p+1) + 448}, v14")
    A("v_lshlrev_b32 v15, 5, v6")
    A("v_lshlrev_b32 v16, 5, v8")
    A("v_sub_u32 v15, v15, v16")
    A("v_lshlrev_b32 v16, 4, v9")
    A("v_add_u32 v15, v15, v16")
    A(f"v_add_u32 v15, {K2_U + 512 - 448}, v15")
    BB = 24
    A(f"v_add_u32 v{BB}, s5, v15")
    A("v_lshlrev_b32 v15, 5, v6")
    A("v_lshlrev_b32 v16, 3, v7")
    A("v_add_u32 v15, v15, v16")
    A("v_add_u32 v25, s5, v15")
    A("v_lshlrev_b32 v26, 1, v2")
    A(f"v_sub_u32 v26, {K2_T + 2*(384+255)}, v26")
    A("v_add_u32 v26, s5, v26")
    A("v_lshlrev_b32 v27, 2, v2")
    A(f"v_sub_u32 v27, {K2_T + 512 + 4*127}, v27")
    A("v_add_u32 v27, s5, v27")
    A("v_lshlrev_b32 v28, 4, v2")
    A("v_add_u32 v28, s5, v28")
    A("v_lshlrev_b32 v3, 3, v2")
    A("v_sub_u32 v3, 511, v3")
    for k in range(9):
        A(f"v_subrev_u32 v{30+k}, {k}, v3")
    A("v_max_i32 v38, 0, v38")
    for k in range(9):
        A(f"v_cvt_f32_i32 v{40+k}, v{30+k}")
    for k in range(0, 8, 2):
        A(f"v_cvt_pk_bf16_f32 v{50+k}, v{40+k}, v{41+k}")
        A(f"v_lshrrev_b32 v{51+k}, 16, v{50+k}")
        A(f"v_and_b32 v{50+k}, 0xffff, v{50+k}")
    A("v_cvt_pk_bf16_f32 v58, v48, v48")
    A("v_and_b32 v58, 0xffff, v58")
    A(f"s_add_u32 s12, s5, {K2_T}")
    for k in range(9):
        A(f"v_subrev_u32 v{50+k}, 17024, v{50+k}")
        A(f"v_min_i32 v{30+k}, 127, v{30+k}")
        A(f"v_max_i32 v{50+k}, v{50+k}, v{30+k}")
        A(f"v_lshlrev_b32 v{30+k}, 1, v{50+k}")
        A(f"v_add_u32 v{30+k}, s12, v{30+k}")
    A("v_and_b32 v16, 1, v2")
    A("v_cmp_eq_u32 s[20:21], 1, v16")
    A("s_mov_b32 s22, 0x01000100")
    A("s_mov_b32 s23, 0x03020302")
    AF, BF, ACC = 64, 96, 128
    for i in range(32):
        A(f"v_mov_b32 v{ACC+i}, 0")
    A("s_waitcnt vmcnt(4)")
    stamp(A, 2)
    A("v_subrev_u32 v29, 128, v26")
    for r in range(2):
        w = 40 + 8 * r
        A(f"ds_read_u16 v{w}, v{26 if r == 0 else 29}")
        A(f"ds_read_u16 v{w+1}, v{26 if r == 0 else 29} offset:2")
    A("ds_read_b32 v56, v27")
    A("ds_read_u16 v57, v27 offset:4")
    for k in range(9):
        A(f"ds_read_u16 v{100+k}, v{30+k}")
    A("s_waitcnt lgkmcnt(0)")
    for k in range(4):
        A(f"v_lshl_or_b32 v{60+k}, v{101+2*k}, 16, v{100+2*k}")
    A("v_mov_b32 v59, v108")
    for r in range(2):
        w = 40 + 8 * r
        A(f"v_lshl_or_b32 v{w}, v{w+1}, 16, v{w}")
    for r in range(2):
        w = 40 + 8 * r
        A(f"v_perm_b32 v{w+2}, v{w}, v{w}, s23")
        A(f"v_perm_b32 v{w+4}, v{w}, v{w}, s22")
        A(f"v_alignbit_b32 v{w+1}, v{w}, v{w}, 16")
        A(f"v_mov_b32 v{w+5}, v{w+4}")
        A(f"v_mov_b32 v{w+6}, v{w+2}")
        A(f"v_cndmask_b32 v{w+3}, v{w+2}, v{w+1}, s[20:21]")
        A(f"v_cndmask_b32 v{w+7}, v{w+1}, v{w+4}, s[20:21]")
        A(f"ds_write_b64 v28, {vr(w+2,2)} offset:{K2_KE + 1024*r}")
        A(f"ds_write_b64 v28, {vr(w+4,2)} offset:{K2_KE + 1024*r + 8}")
        A(f"ds_write_b64 v28, {vr(w+6,2)} offset:{K2_KO + 1024*r}")
        A(f"ds_write_b64 v28, {vr(w+4,2)} offset:{K2_KO + 1024*r + 8}")
    A("v_perm_b32 v40, v57, v57, s22")
    A("v_perm_b32 v41, v56, v56, s23")
    A("v_alignbit_b32 v42, v56, v56, 16")
    A("v_perm_b32 v43, v56, v56, s22")
    A("s_mov_b32 s24, 0x07060100")
    A("v_perm_b32 v44, v56, v57, s24")
    A("v_mov_b32 v45, v41")
    A("v_mov_b32 v46, v43")
    A("v_mov_b32 v47, v43")
    A(f"ds_write_b128 v28, v[40:43] offset:{K2_KE + 2048}")
    A(f"ds_write_b128 v28, v[44:47] offset:{K2_KO + 2048}")
    A("v_alignbit_b32 v48, v61, v60, 16")
    A("v_alignbit_b32 v49, v62, v61, 16")
    A("v_alignbit_b32 v50, v63, v62, 16")
    A("v_alignbit_b32 v51, v59, v63, 16")
    A(f"ds_write_b128 v28, v[60:63] offset:{K2_KE + 3072}")
    A(f"ds_write_b128 v28, v[48:51] offset:{K2_KO + 3072}")
    A(f"v_mov_b32 v14, s5")
    A(f"ds_write_b16 v14, v12 offset:{K2_KO + 2*2047}")
    A("s_bitcmp1_b32 s4, 0")
    A("s_cbranch_scc1 K2_ODD")
    A("s_lshl_b32 s11, s11, 16")
    A.label("K2_ODD")
    A("s_and_b32 s11, s11, 0xffff0000")

    def loadA(q, i0):
        p = q // 2
        o = (128 if q % 2 == 0 else 0) + 16 * (7 - i0)
        return [f"ds_read2_b32 {vr(AF+4*q,2)}, v{AB[p]} offset0:{o} offset1:{o+1}",
                f"ds_read2_b32 {vr(AF+4*q+2,2)}, v{AB[p]} offset0:{o+2} offset1:{o+3}"]

    def loadB(tau, i0):
        return [f"ds_read_b128 {vr(BF+4*tau,4)}, v{BB} offset:{512*tau + 64*(7-i0)}"]

    A("s_waitcnt vmcnt(0)")
    stamp(A, 3)
    for q in range(8):
        for s in loadB(7 - q, 0):
            A(s)
    for q in range(8):
        for s in loadA(q, 0):
            A(s)
    queue = []
    for q in range(8):
        queue.append(("B", 7 - q))
    for q in range(8):
        queue += [("A", q), ("A", q)]

    pending = []

    def wait_for(tags):
        while any(tg in tags for _, tg in pending):
            s_, tg = pending.pop(0)
            A(s_)
            queue.append(tg)
        last = -1
        for i, t in enumerate(queue):
            if t in tags:
                last = i
        if last >= 0:
            n = len(queue) - 1 - last
            A(f"s_waitcnt lgkmcnt({min(n, 15)})")
            del queue[:last + 1]

    for i0 in range(8):
        for q in range(8):
            for tau in range(7 - q, -1, -1):
                wait_for({("A", q), ("B", tau)})
                t = q + tau
                A(f"v_mfma_f32_16x16x32_f16 {vr(ACC+4*t,4)}, {vr(AF+4*q,4)}, {vr(BF+4*tau,4)}, {vr(ACC+4*t,4)}")
                if i0 < 7:
                    if tau == 7 - q:
                        pending.insert(0, (loadB(7 - q, i0 + 1)[0], ("B", 7 - q)))
                    if tau == 0:
                        for s in loadA(q, i0 + 1):
                            pending.append((s, ("A", q)))
                if pending:
                    s, tag = pending.pop(0)
                    A(s)
                    queue.append(tag)
    assert not pending or True
    stamp(A, 4)
    for t in range(8):
        A(f"ds_read_b64 {vr(64+2*t,2)}, v25 offset:{K2_U + 512 + 512*t}")
    A(f"v_mov_b32 v34, {ONE_LO}")
    A(f"v_mov_b32 v35, {ONE_HI}")
    A("s_mov_b32 s12, s10")
    A("s_mov_b32 s13, s10")
    A("v_mov_b32 v36, s10")
    A("v_mov_b32 v37, s10")
    A("s_waitcnt lgkmcnt(0)")
    for t in range(8):
        a = ACC + 4 * t
        u = 64 + 2 * t
        tm = 40 + 8 * (t & 1)
        A(f"v_pk_mul_f32 {vr(a,2)}, {vr(a,2)}, v[36:37]")
        A(f"v_pk_mul_f32 {vr(a+2,2)}, {vr(a+2,2)}, v[36:37]")
        A(f"v_fma_mix_f32 v{tm}, v{u}, s11, 0 op_sel:[0,0,0] op_sel_hi:[1,0,0]")
        A(f"v_fma_mix_f32 v{tm+1}, v{u}, s11, 0 op_sel:[1,0,0] op_sel_hi:[1,0,0]")
        A(f"v_fma_mix_f32 v{tm+2}, v{u+1}, s11, 0 op_sel:[0,0,0] op_sel_hi:[1,0,0]")
        A(f"v_fma_mix_f32 v{tm+3}, v{u+1}, s11, 0 op_sel:[1,0,0] op_sel_hi:[1,0,0]")
        A(f"v_cvt_pk_bf16_f32 v{a}, v{a}, v{a+1}")
        A(f"v_cvt_pk_bf16_f32 v{a+1}, v{a+2}, v{a+3}")
        A(f"v_cvt_pk_bf16_f32 v{tm+4}, v{tm}, v{tm+1}")
        A(f"v_cvt_pk_bf16_f32 v{tm+5}, v{tm+2}, v{tm+3}")
        A(f"v_lshlrev_b32 v{tm}, 16, v{tm+4}")
        A(f"v_and_b32 v{tm+1}, 0xffff0000, v{tm+4}")
        A(f"v_lshlrev_b32 v{tm+2}, 16, v{tm+5}")
        A(f"v_and_b32 v{tm+3}, 0xffff0000, v{tm+5}")
        A(f"v_dot2_f32_bf16 v{tm}, v{a}, v34, v{tm}")
        A(f"v_dot2_f32_bf16 v{tm+1}, v{a}, v35, v{tm+1}")
        A(f"v_dot2_f32_bf16 v{tm+2}, v{a+1}, v34, v{tm+2}")
        A(f"v_dot2_f32_bf16 v{tm+3}, v{a+1}, v35, v{tm+3}")
        A(f"v_cvt_pk_bf16_f32 v{a+2}, v{tm}, v{tm+1}")
        A(f"v_cvt_pk_bf16_f32 v{a+3}, v{tm+2}, v{tm+3}")
        A(f"ds_write_b64 v25, {vr(a+2,2)} offset:{K2_KE + 512*t}")
    stamp(A, 5)
    A("s_waitcnt lgkmcnt(0)")
    A("s_barrier")
    A("v_lshrrev_b32 v14, 2, v6")
    A(f"v_mul_u32_u24 v14, {K2_WB}, v14")
    A("v_and_b32 v15, 3, v2")
    A("v_lshlrev_b32 v15, 3, v15")
    A("v_add_u32 v14, v14, v15")
    A("v_lshlrev_b32 v15, 5, v7")
    A("v_add_u32 v14, v14, v15")
    A("s_lshl_b32 s12, s3, 10")
    A("v_add_u32 v14, s12, v14")
    for k in range(8):
        A(f"ds_read_b64_tr_b16 {vr(40+2*k,2)}, v14 offset:{K2_KE + 128*k}")
    A("v_lshrrev_b32 v15, 3, v6")
    A("v_lshlrev_b32 v16, 1, v7")
    A("v_add_u32 v15, v15, v16")
    A("v_mul_u32_u24 v15, 10240, v15")
    A("v_and_b32 v16, 7, v6")
    A("v_lshlrev_b32 v16, 3, v16")
    A("v_add_u32 v15, v15, v16")
    A("s_mul_i32 s12, s3, 655360")
    A("s_lshl_b32 s13, s35, 6")
    A("s_add_u32 s12, s12, s13")
    A(f"s_add_u32 s12, s12, {WS_AT}")
    A("v_add_u32 v15, s12, v15")
    A("s_waitcnt lgkmcnt(0)")
    for k in range(8):
        A(f"global_store_dwordx2 v15, {vr(40+2*k,2)}, s[32:33] {ST_OPT[0]}")
        if k < 7:
            A("v_add_u32 v15, 81920, v15")
    k_end(A, 1)

    A.label("K2_WT")
    A("s_load_dwordx4 s[16:19], s[0:1], 72")
    A("s_load_dwordx2 s[20:21], s[0:1], 88")
    A("v_lshrrev_b32 v1, 6, v0")
    A("v_readfirstlane_b32 s3, v1")
    A("v_and_b32 v2, 63, v0")
    A("s_sub_u32 s4, s2, 160")
    A("s_lshl_b32 s4, s4, 2")
    A("s_add_u32 s4, s4, s3")
    A("s_mul_i32 s5, s3, 12288")
    A("v_lshrrev_b32 v3, 3, v2")
    A("v_and_b32 v4, 7, v2")
    A("v_lshlrev_b32 v4, 4, v4")
    A("v_lshrrev_b32 v5, 4, v2")
    A("v_lshlrev_b32 v5, 3, v5")
    A("v_and_b32 v6, 15, v2")
    A("v_lshrrev_b32 v6, 2, v6")
    A("v_add_u32 v5, v5, v6")
    A("v_lshlrev_b32 v5, 7, v5")
    A("v_and_b32 v6, 3, v2")
    A("v_lshlrev_b32 v7, 3, v6")
    A("v_add_u32 v8, v5, v7")
    A("v_add_u32 v8, s5, v8")
    A("v_add_u32 v9, 4080, v8")
    A("v_cmp_gt_u32 vcc, 2, v6")
    A("v_cndmask_b32 v9, v9, v8, vcc")
    A("v_lshlrev_b32 v10, 4, v2")
    A("v_and_b32 v13, 15, v2")
    A("v_lshrrev_b32 v14, 3, v13")
    A("v_mul_u32_u24 v14, 24576, v14")
    A("v_and_b32 v13, 7, v13")
    A("v_lshlrev_b32 v13, 4, v13")
    A("v_add_u32 v14, v14, v13")
    A("v_lshrrev_b32 v13, 4, v2")
    A("v_lshlrev_b32 v13, 7, v13")
    A("v_add_u32 v14, v14, v13")
    A("v_mul_u32_u24 v50, 3072, v3")
    A("v_add_u32 v50, v50, v4")
    A("v_mul_u32_u24 v51, 1280, v3")
    A("v_add_u32 v51, v51, v4")
    A("s_waitcnt lgkmcnt(0)")
    A("s_mov_b32 s6, s4")
    A.label("K2_WT_LOOP")
    A("s_cmp_ge_u32 s6, 480")
    A("s_cbranch_scc1 K2_WT_DOWN")
    A("s_mul_hi_u32 s7, s6, 0xccccccd")
    A("s_mul_i32 s8, s7, 20")
    A("s_sub_u32 s8, s6, s8")
    A("s_mul_i32 s9, s8, 98304")
    A("s_lshl_b32 s10, s7, 7")
    A("s_add_u32 s9, s9, s10")
    A("v_add_u32 v11, s9, v50")
    for j in range(4):
        A(f"s_add_u32 s10, s5, {1024*j}")
        A("s_mov_b32 m0, s10")
        A("global_load_lds_dwordx4 v11, s[16:17]")
        A(f"s_add_u32 s10, s5, {4096 + 1024*j}")
        A("s_mov_b32 m0, s10")
        A("global_load_lds_dwordx4 v11, s[18:19]")
        if j < 3:
            A("v_add_u32 v11, 24576, v11")
    A("s_mul_i32 s9, s7, 163840")
    A("s_lshl_b32 s10, s8, 10")
    A("s_add_u32 s9, s9, s10")
    A(f"s_add_u32 s9, s9, {WS_WGU}")
    A("v_add_u32 v12, s9, v10")
    A("s_waitcnt vmcnt(0)")
    for jj in range(8):
        A(f"ds_read_b64_tr_b16 {vr(16+4*jj,2)}, v9 offset:{16*jj}")
        A(f"ds_read_b64_tr_b16 {vr(18+4*jj,2)}, v9 offset:{16*jj + 512}")
    A("s_waitcnt lgkmcnt(0)")
    for jj in range(8):
        A(f"global_store_dwordx4 v12, {vr(16+4*jj,4)}, s[32:33] {ST_OPT[0]}")
        if jj < 7:
            A("v_add_u32 v12, 20480, v12")
    A("s_branch K2_WT_NEXT")
    A.label("K2_WT_DOWN")
    A("s_sub_u32 s11, s6, 480")
    A("s_mul_hi_u32 s7, s11, 0x5555556")
    A("s_mul_i32 s8, s7, 48")
    A("s_sub_u32 s8, s11, s8")
    A("s_mul_i32 s9, s8, 40960")
    A("s_lshl_b32 s10, s7, 7")
    A("s_add_u32 s9, s9, s10")
    A("v_add_u32 v11, s9, v51")
    for j in range(4):
        A(f"s_add_u32 s10, s5, {1024*j}")
        A("s_mov_b32 m0, s10")
        A("global_load_lds_dwordx4 v11, s[20:21]")
        if j < 3:
            A("v_add_u32 v11, 10240, v11")
    A("s_mul_i32 s9, s7, 196608")
    A("s_lshl_b32 s10, s8, 9")
    A("s_add_u32 s9, s9, s10")
    A(f"s_add_u32 s9, s9, {WS_WD}")
    A("v_add_u32 v12, s9, v14")
    A("s_waitcnt vmcnt(0)")
    for jj in range(4):
        A(f"ds_read_b64_tr_b16 {vr(16+4*jj,2)}, v8 offset:{32*jj}")
        A(f"ds_read_b64_tr_b16 {vr(18+4*jj,2)}, v8 offset:{32*jj + 512}")
    A("s_waitcnt lgkmcnt(0)")
    for jj in range(4):
        A(f"global_store_dwordx4 v12, {vr(16+4*jj,4)}, s[32:33] {ST_OPT[0]}")
        if jj < 3:
            A("v_add_u32 v12, 49152, v12")
    A.label("K2_WT_NEXT")
    A("s_add_u32 s6, s6, 384")
    A("s_cmp_lt_u32 s6, 960")
    A("s_cbranch_scc1 K2_WT_LOOP")
    k_end(A, 1)
    A.label("K2_END")
    A("s_endpgm")


K3_S = 1296
K3_OFF_L2 = 8 * K3_S
K3_OFF_RED = 2 * 8 * K3_S
K3_LDS = K3_OFF_RED + 512


def k3(A):
    A("s_cmp_ge_u32 s2, 256")
    A("s_cbranch_scc1 K3_END")
    k_begin(A)
    A("s_load_dwordx2 s[32:33], s[0:1], 112")
    A("s_load_dwordx2 s[26:27], s[0:1], 0")
    A("s_load_dwordx2 s[28:29], s[0:1], 64")
    A("s_load_dwordx2 s[30:31], s[0:1], 96")
    A("v_lshrrev_b32 v1, 6, v0")
    A("v_readfirstlane_b32 s3, v1")
    A("v_and_b32 v7, 7, v0")
    A("v_lshrrev_b32 v4, 3, v0")
    A("s_mul_i32 s4, s2, 10240")
    A("v_mul_u32_u24 v3, 320, v4")
    A("v_lshlrev_b32 v5, 3, v7")
    A("v_add_u32 v3, v3, v5")
    A(f"s_add_u32 s5, s4, {WS_AT}")
    A("v_add_u32 v3, s5, v3")
    A("v_mul_u32_u24 v5, 40, v4")
    A("v_mul_u32_u24 v6, 1280, v7")
    A("v_add_u32 v6, v6, v5")
    A("v_add_u32 v8, s4, v6")
    A("s_waitcnt lgkmcnt(0)")
    stamp(A, 1)
    AR, XR, WR = 20, 30, 40
    for i in range(5):
        A(f"global_load_dwordx2 {vr(AR+2*i,2)}, v3, s[32:33] offset:{64*i}")
        A(f"global_load_dwordx2 {vr(XR+2*i,2)}, v8, s[26:27] offset:{8*i}")
    for i in range(5):
        A(f"global_load_dwordx2 {vr(WR+2*i,2)}, v5, s[28:29] offset:{8*i}")
    A(f"v_mov_b32 v12, {ONE_LO}")
    A(f"v_mov_b32 v13, {ONE_HI}")
    A("v_mov_b32 v14, 0x3f803f80")
    A("v_mov_b32 v10, 0")
    A("v_mov_b32 v11, 0")
    A(f"v_mul_u32_u24 v50, {K3_S}, v7")
    A("v_add_u32 v50, v50, v5")
    for k in range(3):
        A(f"v_add_u32 v{51+k}, {256*k}, v0")
        A(f"v_mul_u32_u24 v54, 52429, v{51+k}")
        A("v_lshrrev_b32 v54, 22, v54")
        A(f"v_add_u32 v{51+k}, v{51+k}, v54")
        A(f"v_lshlrev_b32 v{51+k}, 4, v{51+k}")
    A("v_lshlrev_b32 v55, 4, v0")
    A("v_add_u32 v55, s4, v55")
    H = 60
    A("s_waitcnt vmcnt(5)")
    stamp(A, 2)
    for i in range(10):
        t = 15 + 2 * (i & 1)
        A(f"v_lshlrev_b32 v{t}, 16, v{AR+i}")
        A(f"v_and_b32 v{t+1}, 0xffff0000, v{AR+i}")
        A(f"v_dot2_f32_bf16 v{t}, v{XR+i}, v12, v{t}")
        A(f"v_dot2_f32_bf16 v{t+1}, v{XR+i}, v13, v{t+1}")
        A(f"s_nop 1")
        A(f"v_cvt_pk_bf16_f32 v{H+i}, v{t}, v{t+1}")
    for i in range(10):
        A(f"v_dot2c_f32_bf16 v10, v{H+i}, v14")
        A(f"v_dot2c_f32_bf16 v11, v{H+i}, v{H+i}")

    def red(regs, tmps):
        for r in regs:
            A(f"v_add_f32_dpp v{r}, v{r}, v{r} row_ror:8 row_mask:0xf bank_mask:0xf")
        for r, t in zip(regs, tmps):
            A(f"v_mov_b32 v{t}, v{r}")
        for r, t in zip(regs, tmps):
            A(f"v_permlane16_swap_b32 v{r}, v{t}")
        for r, t in zip(regs, tmps):
            A(f"v_add_f32 v{r}, v{r}, v{t}")
        for r, t in zip(regs, tmps):
            A(f"v_mov_b32 v{t}, v{r}")
        for r, t in zip(regs, tmps):
            A(f"v_permlane32_swap_b32 v{r}, v{t}")
        for r, t in zip(regs, tmps):
            A(f"v_add_f32 v{r}, v{r}, v{t}")
    red([10, 11], [15, 16])
    A("v_lshlrev_b32 v9, 3, v7")
    A("s_lshl_b32 s6, s3, 6")
    A("v_add_u32 v16, s6, v9")
    A(f"ds_write_b64 v16, v[10:11] offset:{K3_OFF_RED}")
    A("s_waitcnt lgkmcnt(0)")
    A("s_barrier")
    for w in range(4):
        A(f"ds_read_b64 {vr(70+2*w,2)}, v9 offset:{K3_OFF_RED + 64*w}")
    A("s_waitcnt lgkmcnt(0)")
    A("v_add_f32 v10, v70, v72")
    A("v_add_f32 v11, v71, v73")
    A("v_add_f32 v15, v74, v76")
    A("v_add_f32 v16, v75, v77")
    A("v_add_f32 v10, v10, v15")
    A("v_add_f32 v11, v11, v16")
    ln_finish(A, 10, 11, 15)
    A("v_sub_f32 v10, 0, v10")
    stamp(A, 3)
    L, O = 20, 30
    A("v_mov_b32 v14, 0")
    for i in range(10):
        t = 70 + 4 * (i & 1)
        A(f"v_dot2_f32_bf16 v{t}, v{H+i}, v12, v10")
        A(f"v_dot2_f32_bf16 v{t+1}, v{H+i}, v13, v10")
        A(f"s_nop 1")
        A(f"v_cvt_pk_bf16_f32 v{t+2}, v{t}, v{t+1}")
        A(f"v_lshlrev_b32 v{t}, 16, v{t+2}")
        A(f"v_and_b32 v{t+1}, 0xffff0000, v{t+2}")
        A(f"v_mul_f32 v{t}, v{t}, v11")
        A(f"v_mul_f32 v{t+1}, v{t+1}, v11")
        A(f"v_cvt_pk_bf16_f32 v{L+i}, v{t}, v{t+1}")
        A(f"v_lshlrev_b32 v{t}, 16, v{L+i}")
        A(f"v_and_b32 v{t+1}, 0xffff0000, v{L+i}")
        if i == 0:
            A("s_waitcnt vmcnt(0)")
        A(f"v_dot2c_f32_bf16 v14, v{L+i}, v{WR+i}")
        A(f"v_dot2_f32_bf16 v{t}, v{H+i}, v12, v{t}")
        A(f"v_dot2_f32_bf16 v{t+1}, v{H+i}, v13, v{t+1}")
        A(f"s_nop 1")
        A(f"v_cvt_pk_bf16_f32 v{O+i}, v{t}, v{t+1}")
    stamp(A, 4)
    for i in range(5):
        A(f"ds_write_b64 v50, {vr(O+2*i,2)} offset:{8*i}")
        A(f"ds_write_b64 v50, {vr(L+2*i,2)} offset:{K3_OFF_L2 + 8*i}")
    red([14], [15])
    A("v_lshlrev_b32 v9, 2, v7")
    A("s_lshl_b32 s6, s3, 5")
    A("v_add_u32 v16, s6, v9")
    A(f"ds_write_b32 v16, v14 offset:{K3_OFF_RED + 256}")
    A("s_waitcnt lgkmcnt(0)")
    A("s_barrier")
    for k in range(2):
        A(f"ds_read_b128 {vr(60+8*k,4)}, v{51+k}")
        A(f"ds_read_b128 {vr(64+8*k,4)}, v{51+k} offset:{K3_OFF_L2}")
    A("s_cmp_ge_u32 s3, 2")
    A("s_cbranch_scc1 K3_S2")
    A(f"ds_read_b128 v[76:79], v53")
    A(f"ds_read_b128 v[80:83], v53 offset:{K3_OFF_L2}")
    A.label("K3_S2")
    A(f"v_add_u32 v56, {WS_L2}, v55")
    A("v_add_u32 v57, 4096, v55")
    A("v_add_u32 v58, 4096, v56")
    A("s_waitcnt lgkmcnt(0)")
    A(f"global_store_dwordx4 v56, v[64:67], s[32:33] {ST_OPT[0]}")
    A(f"global_store_dwordx4 v58, v[72:75], s[32:33] {ST_OPT[0]}")
    A(f"global_store_dwordx4 v55, v[60:63], s[30:31] {ST_OPT[0]}")
    A(f"global_store_dwordx4 v57, v[68:71], s[30:31] {ST_OPT[0]}")
    A("s_cmp_ge_u32 s3, 2")
    A("s_cbranch_scc1 K3_DONE")
    A("v_add_u32 v57, 4096, v57")
    A("v_add_u32 v58, 4096, v58")
    A(f"global_store_dwordx4 v58, v[80:83], s[32:33] {ST_OPT[0]}")
    A(f"global_store_dwordx4 v57, v[76:79], s[30:31] {ST_OPT[0]}")
    A("s_cmp_lg_u32 s3, 0")
    A("s_cbranch_scc1 K3_DONE")
    for w in range(4):
        A(f"ds_read_b32 v{40+w}, v9 offset:{K3_OFF_RED + 256 + 32*w}")
    A("s_waitcnt lgkmcnt(0)")
    A("v_add_f32 v40, v40, v41")
    A("v_add_f32 v42, v42, v43")
    A("v_add_f32 v40, v40, v42")
    A("v_cvt_pk_bf16_f32 v40, v40, v40")
    A("v_and_b32 v40, 0xffff0000, v40")
    A("v_ashrrev_i32 v41, 31, v40")
    A("v_or_b32 v41, 0x80000000, v41")
    A("v_xor_b32 v40, v40, v41")
    A("v_and_b32 v40, 0xffff0000, v40")
    A("s_lshl_b32 s6, s2, 3")
    A("v_add_u32 v42, s6, v7")
    A("v_sub_u32 v43, 2047, v42")
    A("v_or_b32 v40, v40, v43")
    A("v_lshlrev_b32 v42, 2, v42")
    A(f"v_add_u32 v42, {WS_RK}, v42")
    A("global_store_dword v42, v40, s[32:33]")
    A.label("K3_DONE")
    k_end(A, 2)
    A.label("K3_END")
    A("s_endpgm")


K4_LDS = 8192


def k4(A):
    A("s_cmp_ge_u32 s2, 192")
    A("s_cbranch_scc1 K4_END")
    k_begin(A)
    A("s_load_dwordx2 s[32:33], s[0:1], 112")
    A("v_lshrrev_b32 v1, 6, v0")
    A("v_readfirstlane_b32 s3, v1")
    A("v_and_b32 v2, 63, v0")
    A("s_mul_i32 s4, s2, 20480")
    A("s_mul_i32 s5, s3, 5120")
    A("s_add_u32 s4, s4, s5")
    A(f"s_add_u32 s4, s4, {WS_WGU}")
    A("v_lshlrev_b32 v3, 4, v2")
    A("v_add_u32 v3, s4, v3")
    A("v_add_u32 v5, 4096, v3")
    A("v_lshlrev_b32 v4, 5, v0")
    A(f"v_add_u32 v4, {WS_RK}, v4")
    A("s_waitcnt lgkmcnt(0)")
    A("global_load_dwordx4 v[8:11], v4, s[32:33]")
    A("global_load_dwordx4 v[12:15], v4, s[32:33] offset:16")
    BFR = 40
    for i in range(4):
        A(f"global_load_dwordx4 {vr(BFR+4*i,4)}, v3, s[32:33] offset:{1024*i}")
    A(f"global_load_dwordx4 {vr(BFR+16,4)}, v5, s[32:33]")
    stamp(A, 1)
    A("s_waitcnt vmcnt(5)")
    stamp(A, 2)
    net = [(0, 1), (2, 3), (4, 5), (6, 7), (0, 2), (1, 3), (4, 6), (5, 7), (1, 2), (5, 6), (0, 4), (3, 7), (1, 5), (2, 6),
           (1, 4), (3, 6), (2, 4), (3, 5), (3, 4)]
    reg = list(range(8, 16))
    spare = 16
    for a, b in net:
        A(f"v_max_u32 v{spare}, v{reg[a]}, v{reg[b]}")
        A(f"v_min_u32 v{reg[b]}, v{reg[a]}, v{reg[b]}")
        reg[a], spare = spare, reg[a]
    for r in range(8):
        A(f"v_mov_b32 v17, v{reg[0]}")
        for sh in (1, 2, 4, 8):
            A(f"v_max_u32_dpp v17, v17, v17 row_shr:{sh} row_mask:0xf bank_mask:0xf")
        A("v_max_u32_dpp v17, v17, v17 row_bcast:15 row_mask:0xa bank_mask:0xf")
        A("v_max_u32_dpp v17, v17, v17 row_bcast:31 row_mask:0xc bank_mask:0xf")
        A(f"v_readlane_b32 s{40+r}, v17, 63")
        if r < 7:
            A(f"v_cmp_eq_u32 vcc, s{40+r}, v{reg[0]}")
            for k in range(7 - r):
                A(f"v_cndmask_b32 v{reg[k]}, v{reg[k]}, v{reg[k+1]}, vcc")
    stamp(A, 3)
    A("v_mov_b32 v16, s40")
    for r in range(1, 8):
        A(f"v_writelane_b32 v16, s{40+r}, {r}")
    A("s_lshl_b32 s6, s3, 5")
    A("v_lshlrev_b32 v17, 2, v2")
    A("v_add_u32 v17, s6, v17")
    A("v_cmp_gt_u32 vcc, 8, v2")
    A("s_and_saveexec_b64 s[20:21], vcc")
    A("ds_write_b32 v17, v16")
    A("s_mov_b64 exec, s[20:21]")
    A("s_waitcnt lgkmcnt(0)")
    A("s_barrier")
    A("v_and_b32 v17, 31, v2")
    A("v_lshlrev_b32 v17, 2, v17")
    A("ds_read_b32 v16, v17")
    A("v_mov_b32 v18, 0")
    for i in range(8):
        A(f"ds_read_b128 {vr(60+4*i,4)}, v18 offset:{16*i}")
    A("v_mov_b32 v19, 0")
    A("v_mov_b32 v20, 0")
    A("s_waitcnt lgkmcnt(0)")
    sp = ["s[50:51]", "s[52:53]", "s[54:55]", "s[56:57]"]
    for i in range(0, 32, 4):
        for k in range(4):
            A(f"v_cmp_gt_u32 {sp[k]}, v{60+i+k}, v16")
        for k in range(4):
            A(f"v_addc_co_u32 v{19 + (k & 1)}, vcc, 0, v{19 + (k & 1)}, {sp[k]}")
    A("v_add_u32 v19, v19, v20")
    A("v_cmp_gt_u32 vcc, 8, v19")
    A("v_cmp_gt_u32 s[22:23], 32, v2")
    A("s_and_b64 vcc, vcc, s[22:23]")
    A("v_lshlrev_b32 v19, 2, v19")
    A("s_lshl_b32 s6, s3, 6")
    A("s_add_u32 s6, s6, 256")
    A("v_add_u32 v19, s6, v19")
    A("s_and_saveexec_b64 s[20:21], vcc")
    A("ds_write_b32 v19, v16")
    A("s_mov_b64 exec, s[20:21]")
    A("v_and_b32 v17, 7, v2")
    A("v_lshlrev_b32 v17, 2, v17")
    A("v_add_u32 v17, s6, v17")
    A("ds_read_b32 v16, v17")
    A("v_lshrrev_b32 v21, 4, v2")
    A("v_lshlrev_b32 v21, 4, v21")
    A("s_mul_i32 s6, s3, 320")
    A(f"s_add_u32 s6, s6, {WS_L2}")
    A("v_add_u32 v21, s6, v21")
    A("s_waitcnt lgkmcnt(0)")
    A("v_and_b32 v18, 0x7ff, v16")
    A("v_sub_u32 v18, 2047, v18")
    A("v_mul_u32_u24 v20, 1280, v18")
    A("v_add_u32 v20, v20, v21")
    AFR = 60
    for i in range(5):
        A(f"global_load_dwordx4 {vr(AFR+4*i,4)}, v20, s[32:33] offset:{64*i}")
    stamp(A, 4)
    A("s_or_b32 s6, s2, s3")
    A("s_cmp_lg_u32 s6, 0")
    A("s_cbranch_scc1 K4_NOSEL")
    A("v_and_b32 v22, 0xffff0000, v16")
    A("v_ashrrev_i32 v23, 31, v22")
    A("v_not_b32 v23, v23")
    A("v_or_b32 v23, 0x80000000, v23")
    A("v_xor_b32 v22, v22, v23")
    A("v_and_b32 v22, 0xffff0000, v22")
    A(f"v_mul_f32 v22, {hex(fbits(-LOG2E))}, v22")
    A("v_exp_f32 v22, v22")
    A("v_add_f32 v22, 1.0, v22")
    A("v_rcp_f32 v22, v22")
    bf16_round(A, 22)
    A("v_lshlrev_b32 v23, 2, v2")
    A(f"v_add_u32 v23, {WS_SEL}, v23")
    A("v_cmp_gt_u32 vcc, 8, v2")
    A("s_and_saveexec_b64 s[20:21], vcc")
    A("global_store_dword v23, v18, s[32:33]")
    A("global_store_dword v23, v22, s[32:33] offset:32")
    A("s_mov_b64 exec, s[20:21]")
    A.label("K4_NOSEL")
    for i in range(4):
        A(f"v_mov_b32 v{24+i}, 0")
    A("v_lshlrev_b32 v28, 4, v2")
    A("s_lshl_b32 s6, s3, 10")
    A("v_add_u32 v29, s6, v28")
    for i in range(5):
        A(f"s_waitcnt vmcnt({4-i})")
        A(f"v_mfma_f32_16x16x32_bf16 v[24:27], {vr(AFR+4*i,4)}, {vr(BFR+4*i,4)}, v[24:27]")
    stamp(A, 5)
    A("ds_write_b128 v29, v[24:27] offset:1024")
    A("s_waitcnt lgkmcnt(0)")
    A("s_barrier")
    A("s_cmp_lg_u32 s3, 0")
    A("s_cbranch_scc1 K4_DONE")
    for w in range(4):
        A(f"ds_read_b128 {vr(40+4*w,4)}, v28 offset:{1024 + 1024*w}")
    A("v_and_b32 v56, 15, v2")
    A("v_lshrrev_b32 v57, 4, v2")
    A("v_mul_u32_u24 v58, 12288, v57")
    A("v_lshlrev_b32 v59, 1, v56")
    A("v_add_u32 v58, v58, v59")
    A("s_lshl_b32 s6, s2, 4")
    A(f"s_add_u32 s6, s6, {WS_ACT}")
    A("v_add_u32 v58, s6, v58")
    A("v_add_u32 v59, 6144, v58")
    A("v_cmp_gt_u32 vcc, 8, v56")
    A("v_cmp_gt_u32 s[22:23], 2, v57")
    A("s_and_b64 s[22:23], vcc, s[22:23]")
    A("s_waitcnt lgkmcnt(0)")
    for i in range(4):
        A(f"v_add_f32 v{40+i}, v{40+i}, v{44+i}")
        A(f"v_add_f32 v{48+i}, v{48+i}, v{52+i}")
    for i in range(4):
        A(f"v_add_f32 v{40+i}, v{40+i}, v{48+i}")
    A("v_cvt_pk_bf16_f32 v44, v40, v41")
    A("v_cvt_pk_bf16_f32 v45, v42, v43")
    A("v_lshlrev_b32 v40, 16, v44")
    A("v_and_b32 v41, 0xffff0000, v44")
    A("v_lshlrev_b32 v42, 16, v45")
    A("v_and_b32 v43, 0xffff0000, v45")
    for i in range(4):
        A(f"v_mul_f32 v{48+i}, {hex(fbits(-LOG2E))}, v{40+i}")
    for i in range(4):
        A(f"v_exp_f32 v{48+i}, v{48+i}")
    for i in range(4):
        A(f"v_mov_b32_dpp v{44+i}, v{40+i} row_shl:8 row_mask:0xf bank_mask:0xf")
    for i in range(4):
        A(f"v_add_f32 v{48+i}, 1.0, v{48+i}")
    for i in range(4):
        A(f"v_rcp_f32 v{48+i}, v{48+i}")
    for i in range(4):
        A(f"v_mul_f32 v{40+i}, v{40+i}, v{48+i}")
    A("v_cvt_pk_bf16_f32 v48, v40, v41")
    A("v_cvt_pk_bf16_f32 v49, v42, v43")
    A("v_lshlrev_b32 v40, 16, v48")
    A("v_and_b32 v41, 0xffff0000, v48")
    A("v_lshlrev_b32 v42, 16, v49")
    A("v_and_b32 v43, 0xffff0000, v49")
    for i in range(4):
        A(f"v_mul_f32 v{40+i}, v{40+i}, v{44+i}")
    A("v_cvt_pk_bf16_f32 v40, v40, v41")
    A("v_cvt_pk_bf16_f32 v42, v42, v43")
    A("s_mov_b64 exec, s[22:23]")
    A("global_store_short v58, v40, s[32:33]")
    A("global_store_short_d16_hi v58, v40, s[32:33] offset:3072")
    A("global_store_short v59, v42, s[32:33]")
    A("global_store_short_d16_hi v59, v42, s[32:33] offset:3072")
    A.label("K4_DONE")
    k_end(A, 3)
    A.label("K4_END")
    A("s_endpgm")


K5_LDS = 8192


def k5(A):
    A("s_cmp_ge_u32 s2, 80")
    A("s_cbranch_scc1 K5_END")
    k_begin(A)
    A("s_load_dwordx2 s[32:33], s[0:1], 112")
    A("s_load_dwordx2 s[30:31], s[0:1], 96")
    A("s_load_dwordx2 s[26:27], s[0:1], 0")
    A("v_lshrrev_b32 v1, 6, v0")
    A("v_readfirstlane_b32 s3, v1")
    A("v_and_b32 v2, 63, v0")
    A("s_mul_i32 s4, s2, 24576")
    A("s_mul_i32 s5, s3, 3072")
    A("s_add_u32 s4, s4, s5")
    A(f"s_add_u32 s4, s4, {WS_WD}")
    A("v_lshrrev_b32 v5, 4, v2")
    A("v_and_b32 v4, 7, v2")
    A("v_lshlrev_b32 v3, 7, v5")
    A("v_lshlrev_b32 v6, 4, v4")
    A("v_add_u32 v3, v3, v6")
    A("v_add_u32 v3, s4, v3")
    A("v_mul_u32_u24 v4, 3072, v4")
    A("v_lshlrev_b32 v6, 4, v5")
    A("v_add_u32 v4, v4, v6")
    A("s_mul_i32 s6, s3, 384")
    A(f"s_add_u32 s6, s6, {WS_ACT}")
    A("v_add_u32 v4, s6, v4")
    A("v_and_b32 v7, 1, v5")
    A("v_lshlrev_b32 v7, 4, v7")
    A(f"v_add_u32 v7, {WS_SEL}, v7")
    A("s_waitcnt lgkmcnt(0)")
    stamp(A, 1)
    BFR, AFR = 40, 64
    for i in range(4):
        A(f"v_mov_b32 v{20+i}, 0")
    A("s_cmp_lg_u32 s3, 0")
    A("s_cbranch_scc1 K5_NOSEL")
    A("global_load_dwordx4 v[8:11], v7, s[32:33]")
    A("global_load_dwordx4 v[12:15], v7, s[32:33] offset:32")
    A.label("K5_NOSEL")
    for i in range(6):
        A(f"global_load_dwordx4 {vr(AFR+4*i,4)}, v4, s[32:33] offset:{64*i}")
        A(f"global_load_dwordx4 {vr(BFR+4*i,4)}, v3, s[32:33] offset:{512*i}")
    for i in range(4):
        A(f"v_mov_b32 v{32+i}, 0")
    A("s_cmp_lg_u32 s3, 0")
    A("s_cbranch_scc1 K5_MM")
    A("v_and_b32 v16, 7, v2")
    A("s_lshl_b32 s6, s2, 3")
    A("v_add_u32 v16, s6, v16")
    A("v_lshrrev_b32 v17, 2, v16")
    A("v_lshlrev_b32 v17, 6, v17")
    A("v_and_b32 v18, 3, v16")
    A("v_lshl_add_u32 v17, v18, 1, v17")
    A(f"v_add_u32 v17, {WS_AT}, v17")
    A("s_waitcnt vmcnt(12)")
    for i in range(4):
        A(f"v_mul_u32_u24 v{20+i}, 1280, v{8+i}")
        A(f"v_lshl_add_u32 v{20+i}, v16, 1, v{20+i}")
        A(f"v_add_u32 v18, {WS_L2}, v{20+i}")
        A(f"global_load_ushort v{24+i}, v18, s[32:33]")
        A(f"global_load_ushort v{28+i}, v{20+i}, s[26:27]")
        A(f"v_lshrrev_b32 v18, 3, v{8+i}")
        A("v_mul_u32_u24 v18, 10240, v18")
        A(f"v_and_b32 v19, 7, v{8+i}")
        A("v_lshl_add_u32 v18, v19, 3, v18")
        A("v_add_u32 v18, v18, v17")
        A(f"global_load_ushort v{36+i}, v18, s[32:33]")
    A("s_waitcnt vmcnt(12)")
    A("s_branch K5_MM2")
    A.label("K5_MM")
    A("s_waitcnt vmcnt(0)")
    A.label("K5_MM2")
    stamp(A, 3)
    for i in range(6):
        A(f"v_mfma_f32_16x16x32_bf16 v[32:35], {vr(AFR+4*i,4)}, {vr(BFR+4*i,4)}, v[32:35]")
    A("v_lshlrev_b32 v88, 4, v2")
    A("s_lshl_b32 s6, s3, 10")
    A("v_add_u32 v89, s6, v88")
    A("ds_write_b128 v89, v[32:35]")
    A("s_waitcnt lgkmcnt(0)")
    A("s_barrier")
    A("s_cmp_lg_u32 s3, 0")
    A("s_cbranch_scc1 K5_DONE")
    for w in range(8):
        A(f"ds_read_b128 {vr(40+4*w,4)}, v88 offset:{1024*w}")
    A("s_waitcnt vmcnt(0) lgkmcnt(0)")
    for st in (16, 8, 4):
        for j in range(st):
            A(f"v_add_f32 v{40+j}, v{40+j}, v{40+st+j}")
    for i in range(4):
        A(f"v_lshlrev_b32 v{28+i}, 16, v{28+i}")
        A(f"v_lshlrev_b32 v{36+i}, 16, v{36+i}")
        A(f"v_add_f32 v{28+i}, v{28+i}, v{36+i}")
        bf16_round(A, 28 + i)
    for i in range(4):
        bf16_round(A, 40 + i)
        A(f"v_mul_f32 v{40+i}, v{40+i}, v{12+i}")
        bf16_round(A, 40 + i)
        A(f"v_lshlrev_b32 v{24+i}, 16, v{24+i}")
        A(f"v_add_f32 v{40+i}, v{40+i}, v{24+i}")
        bf16_round(A, 40 + i)
        A(f"v_add_f32 v{40+i}, v{40+i}, v{28+i}")
        A(f"v_cvt_pk_bf16_f32 v{40+i}, v{40+i}, v{40+i}")
    A("v_and_b32 v16, 15, v2")
    A("v_cmp_gt_u32 vcc, 8, v16")
    A("v_cmp_gt_u32 s[22:23], 2, v5")
    A("s_and_b64 exec, vcc, s[22:23]")
    for i in range(4):
        A(f"global_store_short v{20+i}, v{40+i}, s[30:31]")
    A.label("K5_DONE")
    k_end(A, 4)
    A.label("K5_END")
    A("s_endpgm")


KERNELS = [
    ("k1_kernel", k1, 896, 192, K1_LDS, 128),
    ("k2_kernel", k2, 256, 256, K2_LDS, 160),
    ("k3_kernel", k3, 256, 256, K3_LDS, 88),
    ("k4_kernel", k4, 192, 256, K4_LDS, 96),
    ("k5_kernel", k5, 80, 512, K5_LDS, 96),
]

KD_TMPL = """.amdhsa_kernel {name}
  .amdhsa_next_free_vgpr {vgpr}
  .amdhsa_next_free_sgpr 102
  .amdhsa_accum_offset {acc}
  .amdhsa_group_segment_fixed_size 0
  .amdhsa_kernarg_size 120
  .amdhsa_user_sgpr_count 2
  .amdhsa_user_sgpr_kernarg_segment_ptr 1
  .amdhsa_system_sgpr_workgroup_id_x 1
.end_amdhsa_kernel
"""

HEADER = """; Kernarg layout (120 bytes, ptrs only): in0..in11 at 0..88, d_out 96, d_debug 104, d_ws 112
"""


def build(kernels):
    s = HEADER
    for label, fn, grid, block, lds, vgpr in kernels:
        s += f"; @launch kernel={label} grid=({grid},1,1) block=({block},1,1) lds={lds}\n"
    s += '.amdgcn_target "amdgcn-amd-amdhsa--gfx950"\n.text\n'
    done = set()
    for label, fn, grid, block, lds, vgpr in kernels:
        if label in done:
            continue
        done.add(label)
        A = Asm()
        fn(A)
        s += f".globl {label}\n.p2align 8\n.type {label},@function\n{label}:\n" + A.finish() + "\n"
    s += '.section .rodata,"a"\n'
    done = set()
    for label, fn, grid, block, lds, vgpr in kernels:
        if label in done:
            continue
        done.add(label)
        s += ".p2align 6\n" + KD_TMPL.format(name=label, vgpr=vgpr, acc=min(256, (vgpr + 3) // 4 * 4))
    return s


if __name__ == "__main__":
    if len(sys.argv) > 2 and sys.argv[2] == "stamp":
        STAMP[0] = True
    out = build(KERNELS)
    path = sys.argv[1] if len(sys.argv) > 1 else f"cdna_kernels/{NAME}.s"
    open(path, "w").write(out)
    print("wrote", path, len(out), "bytes")
```

```python
import sys, os, struct
sys.path.insert(0, os.path.dirname(os.path.abspath(__file__)))
from asmlib import Asm

NAME = "sequential_preLN__ssm_conv_s4d__moe_arch_mod__prompt"

WS_UT = 0x0000000
WS_KD = 0x0280000
WS_SC = 0x03C0000
WS_AT = 0x0400000
WS_L2 = 0x0680000
WS_RK = 0x0900000
WS_ACT = 0x0910000
WS_SEL = 0x0918000
WS_WGU = 0x0A00000
WS_WD = 0x0E00000
WS_STAMP = 0x1800000
STAMP = [False]
NSTAMP = 12
ST_OPT = [""]


def k_begin(A):
    if STAMP[0]:
        A("s_memrealtime s[94:95]")
        for i in range(NSTAMP):
            A(f"s_mov_b64 s[{60+2*i}:{61+2*i}], 0")
        A("s_memtime s[60:61]")


def stamp(A, i):
    if STAMP[0]:
        A(f"s_memtime s[{60+2*i}:{61+2*i}]")


def k_end(A, kidx):
    if STAMP[0]:
        A(f"s_memtime s[{60+2*(NSTAMP-2)}:{61+2*(NSTAMP-2)}]")
        A("s_waitcnt vmcnt(0) lgkmcnt(0)")
        A("s_memrealtime s[96:97]")
        A(f"s_memtime s[{60+2*(NSTAMP-1)}:{61+2*(NSTAMP-1)}]")
        A("s_mov_b64 exec, -1")
        A("v_lshrrev_b32 v1, 6, v0")
        A("s_lshl_b32 s98, s2, 3")
        A("v_add_u32 v1, s98, v1")
        A("v_lshlrev_b32 v1, 7, v1")
        A(f"v_add_u32 v1, {WS_STAMP + kidx * 0x200000}, v1")
        A("s_waitcnt lgkmcnt(0)")
        A("v_mov_b32 v2, s94")
        A("v_mov_b32 v3, s95")
        A("v_mov_b32 v4, s96")
        A("v_mov_b32 v5, s97")
        A("global_store_dwordx4 v1, v[2:5], s[32:33]")
        for i in range(0, NSTAMP, 2):
            for j in range(4):
                A(f"v_mov_b32 v{2+j}, s{60+2*i+j}")
            A(f"global_store_dwordx4 v1, v[2:5], s[32:33] offset:{16+8*i}")
    A("s_endpgm")


def fbits(x):
    return struct.unpack("<I", struct.pack("<f", x))[0]


LOG2E = 1.4426950408889634
L2E_HI = fbits(LOG2E)
L2E_HI_F = struct.unpack("<f", struct.pack("<I", L2E_HI))[0]
L2E_LO = fbits(LOG2E - L2E_HI_F)
LN2 = fbits(0.6931471805599453)
INV2PI = fbits(0.15915494309189535)
INV640 = fbits(1.0 / 640.0)
EPS = fbits(1e-5)
ONE_LO = 0x00003f80
ONE_HI = 0x3f800000


def vr(a, n):
    return f"v[{a}:{a+n-1}]"


def bf16_round(A, reg):
    A(f"v_cvt_pk_bf16_f32 v{reg}, v{reg}, v{reg}")
    A(f"v_and_b32 v{reg}, 0xffff0000, v{reg}")


def exp_bf16(A, dst, src, t0, t1):
    A(f"v_mul_f32 v{t0}, s90, v{src}")
    A(f"v_fma_f32 v{t1}, v{src}, s90, -v{t0}")
    A(f"v_fma_f32 v{t1}, v{src}, s91, v{t1}")
    A(f"v_exp_f32 v{dst}, v{t0}")
    A(f"v_mul_f32 v{t1}, s92, v{t1}")
    A(f"v_fma_f32 v{dst}, v{dst}, v{t1}, v{dst}")
    bf16_round(A, dst)


def cmul(A, d, a, b):
    A(f"v_pk_mul_f32 {vr(d,2)}, {vr(a,2)}, {vr(b,2)} op_sel:[0,0] op_sel_hi:[0,1]")
    A(f"v_pk_fma_f32 {vr(d,2)}, {vr(a,2)}, {vr(b,2)}, {vr(d,2)} op_sel:[1,1,0] op_sel_hi:[1,0,1] neg_lo:[0,1,0]")


def ln_finish(A, s1, s2, t):
    A(f"v_mul_f32 v{s1}, {INV640}, v{s1}")
    A(f"v_mul_f32 v{s2}, {INV640}, v{s2}")
    A(f"v_fma_f32 v{s2}, -v{s1}, v{s1}, v{s2}")
    A(f"v_max_f32 v{s2}, 0, v{s2}")
    A(f"v_cvt_pk_bf16_f32 v{t}, v{s1}, v{s2}")
    A(f"v_lshlrev_b32 v{s1}, 16, v{t}")
    A(f"v_and_b32 v{s2}, 0xffff0000, v{t}")
    A(f"v_add_f32 v{s2}, {EPS}, v{s2}")
    bf16_round(A, s2)
    A(f"v_sqrt_f32 v{s2}, v{s2}")
    bf16_round(A, s2)
    A(f"v_rcp_f32 v{s2}, v{s2}")


def pair_swizzle(A, dst, src, tmp):
    A(f"s_and_b32 s{dst}, s{src}, 7")
    A(f"s_lshl_b32 s{dst}, s{dst}, 1")
    A(f"s_bfe_u32 s{tmp}, s{src}, 0x10003")
    A(f"s_or_b32 s{dst}, s{dst}, s{tmp}")
    A(f"s_andn2_b32 s{tmp}, s{src}, 15")
    A(f"s_or_b32 s{dst}, s{dst}, s{tmp}")


def wt_role(A, pfx, first_wg, nwaves_per_wg, lds_per_wave, it_lo, it_hi, kidx, opt, stride):
    A.label(f"{pfx}_WTR")
    A("s_load_dwordx4 s[16:19], s[0:1], 72")
    A("s_load_dwordx2 s[20:21], s[0:1], 88")
    A("v_lshrrev_b32 v1, 6, v0")
    A("v_readfirstlane_b32 s3, v1")
    A("v_and_b32 v2, 63, v0")
    A(f"s_sub_u32 s4, s2, {first_wg}")
    A(f"s_mul_i32 s4, s4, {nwaves_per_wg}")
    A("s_add_u32 s4, s4, s3")
    A(f"s_add_u32 s4, s4, {it_lo}")
    A(f"s_mul_i32 s5, s3, {lds_per_wave}")
    A("v_lshrrev_b32 v3, 3, v2")
    A("v_and_b32 v4, 7, v2")
    A("v_lshlrev_b32 v4, 4, v4")
    A("v_lshrrev_b32 v5, 4, v2")
    A("v_lshlrev_b32 v5, 3, v5")
    A("v_and_b32 v6, 15, v2")
    A("v_lshrrev_b32 v6, 2, v6")
    A("v_add_u32 v5, v5, v6")
    A("v_lshlrev_b32 v5, 7, v5")
    A("v_and_b32 v6, 3, v2")
    A("v_lshlrev_b32 v7, 3, v6")
    A("v_add_u32 v8, v5, v7")
    A("v_add_u32 v8, s5, v8")
    A("v_add_u32 v9, 4080, v8")
    A("v_cmp_gt_u32 vcc, 2, v6")
    A("v_cndmask_b32 v9, v9, v8, vcc")
    A("v_lshlrev_b32 v10, 4, v2")
    A("v_and_b32 v13, 15, v2")
    A("v_lshrrev_b32 v14, 3, v13")
    A("v_mul_u32_u24 v14, 24576, v14")
    A("v_and_b32 v13, 7, v13")
    A("v_lshlrev_b32 v13, 4, v13")
    A("v_add_u32 v14, v14, v13")
    A("v_lshrrev_b32 v13, 4, v2")
    A("v_lshlrev_b32 v13, 7, v13")
    A("v_add_u32 v14, v14, v13")
    A("v_mul_u32_u24 v50, 3072, v3")
    A("v_add_u32 v50, v50, v4")
    A("v_mul_u32_u24 v51, 1280, v3")
    A("v_add_u32 v51, v51, v4")
    A("s_waitcnt lgkmcnt(0)")
    A("s_mov_b32 s6, s4")
    A(f"s_cmp_ge_u32 s6, {it_hi}")
    A(f"s_cbranch_scc1 {pfx}_WT_FIN")
    A.label(f"{pfx}_WT_LOOP")
    A("s_cmp_ge_u32 s6, 480")
    A(f"s_cbranch_scc1 {pfx}_WT_DOWN")
    A("s_mul_hi_u32 s7, s6, 0xccccccd")
    A("s_mul_i32 s8, s7, 20")
    A("s_sub_u32 s8, s6, s8")
    A("s_mul_i32 s9, s8, 98304")
    A("s_lshl_b32 s10, s7, 7")
    A("s_add_u32 s9, s9, s10")
    A("v_add_u32 v11, s9, v50")
    for j in range(4):
        A(f"s_add_u32 s10, s5, {1024*j}")
        A("s_mov_b32 m0, s10")
        A("global_load_lds_dwordx4 v11, s[16:17]")
        A(f"s_add_u32 s10, s5, {4096 + 1024*j}")
        A("s_mov_b32 m0, s10")
        A("global_load_lds_dwordx4 v11, s[18:19]")
        if j < 3:
            A("v_add_u32 v11, 24576, v11")
    A("s_mul_i32 s9, s7, 163840")
    A("s_lshl_b32 s10, s8, 10")
    A("s_add_u32 s9, s9, s10")
    A(f"s_add_u32 s9, s9, {WS_WGU}")
    A("v_add_u32 v12, s9, v10")
    A("s_waitcnt vmcnt(0)")
    for jj in range(8):
        A(f"ds_read_b64_tr_b16 {vr(16+4*jj,2)}, v9 offset:{16*jj}")
        A(f"ds_read_b64_tr_b16 {vr(18+4*jj,2)}, v9 offset:{16*jj + 512}")
    A("s_waitcnt lgkmcnt(0)")
    for jj in range(8):
        A(f"global_store_dwordx4 v12, {vr(16+4*jj,4)}, s[32:33] {opt}")
        if jj < 7:
            A("v_add_u32 v12, 20480, v12")
    A(f"s_branch {pfx}_WT_NEXT")
    A.label(f"{pfx}_WT_DOWN")
    A("s_sub_u32 s11, s6, 480")
    A("s_mul_hi_u32 s7, s11, 0x5555556")
    A("s_mul_i32 s8, s7, 48")
    A("s_sub_u32 s8, s11, s8")
    A("s_mul_i32 s9, s8, 40960")
    A("s_lshl_b32 s10, s7, 7")
    A("s_add_u32 s9, s9, s10")
    A("v_add_u32 v11, s9, v51")
    for j in range(4):
        A(f"s_add_u32 s10, s5, {1024*j}")
        A("s_mov_b32 m0, s10")
        A("global_load_lds_dwordx4 v11, s[20:21]")
        if j < 3:
            A("v_add_u32 v11, 10240, v11")
    A("s_mul_i32 s9, s7, 196608")
    A("s_lshl_b32 s10, s8, 9")
    A("s_add_u32 s9, s9, s10")
    A(f"s_add_u32 s9, s9, {WS_WD}")
    A("v_add_u32 v12, s9, v14")
    A("s_waitcnt vmcnt(0)")
    for jj in range(4):
        A(f"ds_read_b64_tr_b16 {vr(16+4*jj,2)}, v8 offset:{32*jj}")
        A(f"ds_read_b64_tr_b16 {vr(18+4*jj,2)}, v8 offset:{32*jj + 512}")
    A("s_waitcnt lgkmcnt(0)")
    for jj in range(4):
        A(f"global_store_dwordx4 v12, {vr(16+4*jj,4)}, s[32:33] {opt}")
        if jj < 3:
            A("v_add_u32 v12, 49152, v12")
    A.label(f"{pfx}_WT_NEXT")
    A(f"s_add_u32 s6, s6, {stride}")
    A(f"s_cmp_lt_u32 s6, {it_hi}")
    A(f"s_cbranch_scc1 {pfx}_WT_LOOP")
    A.label(f"{pfx}_WT_FIN")
    k_end(A, kidx)


K1_ROWB = 288
K1_BUF = 16 * K1_ROWB
K1_LDS = 3 * 2 * K1_BUF
K1_WT, K1_KG, K1_LN = 0, 640, 256
WT_OPT = [""]


def cmul_batch(A, items):
    for d, a, b in items:
        A(f"v_pk_mul_f32 {vr(d,2)}, {vr(a,2)}, {vr(b,2)} op_sel:[0,0] op_sel_hi:[0,1]")
    for d, a, b in items:
        A(f"v_pk_fma_f32 {vr(d,2)}, {vr(a,2)}, {vr(b,2)}, {vr(d,2)} op_sel:[1,1,0] op_sel_hi:[1,0,1] neg_lo:[0,1,0]")


def k1(A):
    A(f"s_cmp_ge_u32 s2, {K1_WT + K1_KG + K1_LN}")
    A("s_cbranch_scc1 K1_END")
    k_begin(A)
    A("s_load_dwordx2 s[32:33], s[0:1], 112")
    A("s_load_dwordx16 s[16:31], s[0:1], 0")
    A(f"s_cmp_ge_u32 s2, {K1_WT + K1_KG}")
    A("s_cbranch_scc1 K1_LN")
    A(f"s_sub_u32 s35, s2, {K1_WT}")
    A("s_and_b32 s4, s35, 7")
    A("s_lshl_b32 s4, s4, 3")
    A("s_bfe_u32 s5, s35, 0x10005")
    A("s_lshl_b32 s5, s5, 2")
    A("s_or_b32 s4, s4, s5")
    A("s_lshr_b32 s5, s35, 6")
    A("s_lshl_b32 s5, s5, 6")
    A("s_or_b32 s4, s4, s5")
    A("s_bfe_u32 s5, s35, 0x20003")
    A("s_or_b32 s34, s4, s5")
    A("v_lshrrev_b32 v1, 6, v0")
    A("v_readfirstlane_b32 s3, v1")
    A("v_and_b32 v2, 63, v0")
    A(f"s_mov_b32 s90, {L2E_HI}")
    A(f"s_mov_b32 s91, {L2E_LO}")
    A(f"s_mov_b32 s92, {LN2}")
    A("s_mul_i32 s4, s34, 384")
    A("s_lshr_b32 s5, s34, 1")
    A("s_lshl_b32 s5, s5, 2")
    A("v_lshlrev_b32 v1, 1, v0")
    A("v_add_u32 v1, s4, v1")
    A("v_lshlrev_b32 v3, 1, v2")
    A("v_add_u32 v3, s4, v3")
    A("s_waitcnt lgkmcnt(0)")
    A("s_load_dword s6, s[26:27], s5")
    A("global_load_ushort v10, v1, s[18:19]")
    A("global_load_ushort v11, v1, s[20:21]")
    A("global_load_ushort v12, v1, s[22:23]")
    A("global_load_ushort v13, v1, s[24:25]")
    for i in range(3):
        A(f"global_load_ushort v{14+i}, v3, s[22:23] offset:{128*i}")
        A(f"global_load_ushort v{17+i}, v3, s[24:25] offset:{128*i}")
    A("v_and_b32 v3, 15, v2")
    A("v_lshrrev_b32 v4, 4, v2")
    A("s_cmp_eq_u32 s3, 1")
    A("s_cbranch_scc1 K1_A1")
    A("s_cmp_eq_u32 s3, 2")
    A("s_cbranch_scc1 K1_A2")
    A("v_lshrrev_b32 v5, 1, v4")
    A("v_lshlrev_b32 v5, 7, v5")
    A("v_lshl_add_u32 v5, v3, 3, v5")
    A("v_and_b32 v6, 1, v4")
    A("v_lshl_add_u32 v5, v6, 2, v5")
    A("s_branch K1_A3")
    A.label("K1_A1")
    A("v_lshlrev_b32 v5, 1, v3")
    A("v_add_u32 v5, v5, v4")
    A("v_add_u32 v5, 384, v5")
    A("v_lshlrev_b32 v6, 4, v4")
    A("v_add_u32 v6, v6, v3")
    A("v_add_u32 v6, 480, v6")
    A("v_cmp_gt_u32 vcc, 2, v4")
    A("v_cndmask_b32 v5, v6, v5, vcc")
    A("s_branch K1_A3")
    A.label("K1_A2")
    A("v_lshlrev_b32 v5, 6, v4")
    A("v_lshlrev_b32 v6, 2, v3")
    A("v_add_u32 v5, v5, v6")
    A("v_add_u32 v5, 256, v5")
    A("v_lshlrev_b32 v6, 2, v2")
    A("v_add_u32 v6, 520, v6")
    A("v_cmp_gt_u32 vcc, 2, v4")
    A("v_cndmask_b32 v5, v6, v5, vcc")
    A("v_mov_b32 v6, 640")
    A("v_cmp_eq_u32 vcc, 32, v2")
    A("v_cndmask_b32 v5, v5, v6, vcc")
    A.label("K1_A3")
    A("s_lshl_b32 s11, s34, 11")
    A(f"s_add_u32 s11, s11, {WS_KD}")
    A("v_lshlrev_b32 v29, 1, v5")
    A("v_add_u32 v29, s11, v29")
    A(f"s_mul_i32 s7, s3, {2*K1_BUF}")
    A(f"v_mul_u32_u24 v32, {K1_ROWB}, v3")
    A("v_lshlrev_b32 v5, 4, v4")
    A("v_add_u32 v32, v32, v5")
    A("v_add_u32 v32, s7, v32")
    AW = 120
    A("v_lshlrev_b32 v5, 2, v2")
    A(f"v_add_u32 v{AW}, s7, v5")
    for k in range(1, 8):
        A(f"v_add_u32 v{AW+k}, {(k//4)*K1_BUF + (k%4)*4*K1_ROWB}, v{AW}")
    stamp(A, 1)
    A("s_waitcnt lgkmcnt(0)")
    A("s_bitcmp1_b32 s34, 0")
    A("s_cbranch_scc1 K1_ODD")
    A("s_lshl_b32 s6, s6, 16")
    A.label("K1_ODD")
    A("s_and_b32 s6, s6, 0xffff0000")
    A("v_mov_b32 v5, s6")
    exp_bf16(A, 33, 5, 6, 7)
    A("s_waitcnt vmcnt(0)")
    stamp(A, 2)
    for i in range(6):
        A(f"v_and_b32 v{14+i}, 0x7fff, v{14+i}")
    A("v_max3_u32 v14, v14, v15, v16")
    A("v_max3_u32 v17, v17, v18, v19")
    A("v_max_u32 v14, v14, v17")
    A("v_lshlrev_b32 v10, 16, v10")
    A("v_lshlrev_b32 v11, 16, v11")
    A("v_mul_f32 v6, s90, v10")
    A("v_max_u32_dpp v14, v14, v14 row_shr:1 row_mask:0xf bank_mask:0xf")
    A("v_fma_f32 v7, v10, s90, -v6")
    A("v_exp_f32 v34, v6")
    A("v_max_u32_dpp v14, v14, v14 row_shr:2 row_mask:0xf bank_mask:0xf")
    A("v_fma_f32 v7, v10, s91, v7")
    A("v_mul_f32 v35, v11, v33")
    A("v_max_u32_dpp v14, v14, v14 row_shr:4 row_mask:0xf bank_mask:0xf")
    A("v_mul_f32 v7, s92, v7")
    A(f"v_mul_f32 v35, {INV2PI}, v35")
    A("v_max_u32_dpp v14, v14, v14 row_shr:8 row_mask:0xf bank_mask:0xf")
    A("v_fma_f32 v34, v34, v7, v34")
    A("v_lshlrev_b32 v12, 16, v12")
    A("v_max_u32_dpp v14, v14, v14 row_bcast:15 row_mask:0xa bank_mask:0xf")
    A("v_cvt_pk_bf16_f32 v34, v34, v34")
    A("v_lshlrev_b32 v13, 16, v13")
    A("v_max_u32_dpp v14, v14, v14 row_bcast:31 row_mask:0xc bank_mask:0xf")
    A("v_and_b32 v34, 0xffff0000, v34")
    A("v_mul_f32 v34, v34, v33")
    A("v_readlane_b32 s8, v14, 63")
    A("v_mul_f32 v34, s90, v34")
    A("v_sub_f32 v34, 0, v34")
    A("s_lshr_b32 s8, s8, 7")
    A("s_max_u32 s8, s8, 6")
    A("s_min_u32 s8, s8, 253")
    A("s_sub_u32 s9, 260, s8")
    A("s_lshl_b32 s9, s9, 23")
    A("s_sub_u32 s10, s8, 132")

    def direct(t, p):
        lit = "1.0" if p == 1 else hex(fbits(float(p)))
        A(f"v_mul_f32 v{t}, {lit}, v34")
        A(f"v_mul_f32 v{t+1}, {lit}, v35")
        A(f"v_fract_f32 v{t+1}, v{t+1}")

    def direct2(t):
        A(f"v_exp_f32 v{t}, v{t}")
        A(f"v_cos_f32 v{t+2}, v{t+1}")
        A(f"v_sin_f32 v{t+3}, v{t+1}")

    def direct_fin(d, t):
        A(f"v_mul_f32 v{d}, v{t}, v{t+2}")
        A(f"v_mul_f32 v{d+1}, v{t}, v{t+3}")

    C = 36
    g = {i: 38 + 2 * (i - 1) for i in range(1, 9)}
    G128, G256, G512, G1024 = 54, 56, 58, 60
    T = [62, 64, 66, 68, 70, 72, 74, 76]
    PK = list(range(78, 86))
    BF, AF = 86, 102
    h = {1: g[8]}
    for i in range(2, 9):
        h[i] = AF + 2 * (i - 2)
    AF2 = 4
    ACC = [20, 24, 118 - 94]
    ACC = [20, 24, 28 - 0]
    ACC = [20, 24, 114 + 0]
    ACC = [20, 24, 0]
    ACC = [20, 24, 4]
    AF2 = 62

    direct(62, 1)
    direct(66, 8)
    direct(70, 128)
    direct2(62)
    direct2(66)
    direct2(70)
    A(f"v_mul_f32 v{C}, s9, v12")
    A(f"v_mul_f32 v{C+1}, s9, v13")
    A("v_ldexp_f32 v6, v33, s10")
    A("s_lshl_b32 s11, s34, 2")
    A(f"s_add_u32 s11, s11, {WS_SC}")
    A("v_mov_b32 v7, s11")
    A("global_store_dword v7, v6, s[32:33]")
    direct_fin(g[1], 62)
    direct_fin(g[8], 66)
    direct_fin(G128, 70)
    stamp(A, 3)

    def wr(rows_src, buf, neg):
        regs = []
        for k, (row, src) in enumerate(rows_src):
            p = PK[k % 8]
            if src is None:
                A(f"v_mov_b32 v{p}, 0x00003c00")
            else:
                A(f"v_cvt_pk_f16_f32 v{p}, v{src}, {'-' if neg else ''}v{src+1}")
            regs.append(p)
        k = 0
        n = 0
        while k < len(rows_src):
            r0 = rows_src[k][0]
            if k + 1 < len(rows_src) and rows_src[k + 1][0] // 4 == r0 // 4:
                r1 = rows_src[k + 1][0]
                A(f"ds_write2_b32 v{AW + 4*buf + r0//4}, v{regs[k]}, v{regs[k+1]} offset0:{(r0%4)*72} offset1:{(r1%4)*72}")
                k += 2
            else:
                A(f"ds_write_b32 v{AW + 4*buf + r0//4}, v{regs[k]} offset:{(r0%4)*K1_ROWB}")
                k += 1
            n += 1
        return n

    def frags(dst, buf):
        for j in range(4):
            A(f"ds_read_b128 {vr(dst+4*j,4)}, v32 offset:{buf*K1_BUF + 64*j}")

    def mfmas(acc, a, b):
        for j in range(4):
            A(f"v_mfma_f32_16x16x32_f16 {vr(acc,4)}, {vr(a+4*j,4)}, {vr(b+4*j,4)}, {vr(acc,4)}")

    cmul_batch(A, [(g[2], g[1], g[1]), (h[2], h[1], h[1]), (G256, G128, G128)])
    cmul_batch(A, [(g[3], g[2], g[1]), (g[4], g[2], g[2]), (h[3], h[2], h[1]), (h[4], h[2], h[2]), (G512, G256, G256)])
    cmul_batch(A, [(g[5], g[4], g[1]), (g[6], g[4], g[2]), (g[7], g[4], g[3]), (h[5], h[4], h[1]), (h[6], h[4], h[2]),
                   (h[7], h[4], h[3]), (h[8], h[4], h[4]), (G1024, G512, G512)])
    for i in range(4):
        A(f"v_mov_b32 v{20+i}, 0")
        A(f"v_mov_b32 v{24+i}, 0")
        A(f"v_mov_b32 v{4+i}, 0")
    wr([(0, None)] + [(i, h[i]) for i in range(1, 8)], 0, False)
    cmul_batch(A, [(T[i - 1], h[8], h[i]) for i in range(1, 8)])
    wr([(8, h[8])] + [(8 + i, T[i - 1]) for i in range(1, 8)], 0, False)
    frags(BF, 0)
    stamp(A, 4)
    c128 = T[7]
    cmul_batch(A, [(T[i - 1], C, g[i]) for i in range(1, 8)] + [(c128, C, G128)])
    wr([(0, C)] + [(i, T[i - 1]) for i in range(1, 8)], 1, True)
    cmul_batch(A, [(T[i - 1], c128, g[i]) for i in range(1, 8)])
    wr([(8, c128)] + [(8 + i, T[i - 1]) for i in range(1, 8)], 1, True)
    frags(AF, 1)
    cmul_batch(A, [(T[0], C, G512), (T[4], C, G1024)])
    cmul_batch(A, [(T[1], T[0], G128), (T[2], T[0], G256), (T[5], T[4], G256), (T[6], T[4], G512)])
    cmul_batch(A, [(T[3], T[2], G128), (T[7], T[6], G256)])
    n1 = wr([(i, T[i]) for i in range(4)] + [(8 + i, T[4 + i]) for i in range(4)], 0, True)
    c2048 = g[1]
    cmul_batch(A, [(c2048, T[4], G1024)])
    cmul_batch(A, [(T[i], T[i], g[4]) for i in range(0)])
    D4 = [g[3], g[5], g[7], g[8]]
    cmul_batch(A, [(D4[i], T[i], g[4]) for i in range(4)])
    A("s_waitcnt lgkmcnt(%d)" % n1)
    mfmas(20, AF, BF)
    cmul_batch(A, [(T[i], T[4 + i], G128) for i in range(4)])
    wr([(4 + i, D4[i]) for i in range(4)] + [(12 + i, T[i]) for i in range(4)], 0, True)
    frags(AF, 0)
    stamp(A, 5)
    cmul_batch(A, [(T[0], C, G256)])
    cmul_batch(A, [(T[4], T[0], G128), (T[1], T[0], g[2]), (T[2], T[0], g[4]), (T[3], T[0], g[6])])
    cmul_batch(A, [(T[5], T[4], g[2]), (T[6], T[4], g[4]), (T[7], T[4], g[6])])
    n2 = wr([(i, T[i]) for i in range(8)], 1, True)
    n2 += wr([(8, c2048)], 1, True)
    A("s_waitcnt lgkmcnt(%d)" % n2)
    mfmas(24, AF, BF)
    frags(AF2, 1)
    A("s_waitcnt lgkmcnt(0)")
    mfmas(4, AF2, BF)
    A("v_lshlrev_b32 v28, 4, v2")
    A("v_add_u32 v30, s7, v28")
    for t, r in enumerate((20, 24, 4)):
        A(f"ds_write_b128 v30, {vr(r,4)} offset:{1024*t}")
    stamp(A, 6)
    A("s_lshl_b32 s11, s3, 10")
    A("v_add_u32 v28, s11, v28")
    A("s_waitcnt lgkmcnt(0)")
    A("s_barrier")
    stamp(A, 7)
    for w in range(3):
        A(f"ds_read_b128 {vr(40+4*w,4)}, v28 offset:{2*K1_BUF*w}")
    A("s_waitcnt lgkmcnt(0)")
    for i in range(4):
        A(f"v_add_f32 v{40+i}, v{40+i}, v{44+i}")
    for i in range(4):
        A(f"v_add_f32 v{40+i}, v{40+i}, v{48+i}")
    A("v_cvt_pk_f16_f32 v40, v40, v41")
    A("v_cvt_pk_f16_f32 v41, v42, v43")
    A("s_cmp_eq_u32 s3, 1")
    A("s_cbranch_scc1 K1_S1")
    A("global_store_dwordx2 v29, v[40:41], s[32:33]")
    k_end(A, 0)
    A.label("K1_S1")
    A("global_store_short v29, v40, s[32:33]")
    A("global_store_short_d16_hi v29, v40, s[32:33] offset:64")
    A("global_store_short v29, v41, s[32:33] offset:128")
    A("global_store_short_d16_hi v29, v41, s[32:33] offset:192")
    k_end(A, 0)

    A.label("K1_LN")
    A("v_lshrrev_b32 v1, 6, v0")
    A("v_readfirstlane_b32 s3, v1")
    A(f"s_sub_u32 s5, s2, {K1_WT + K1_KG}")
    pair_swizzle(A, 4, 5, 6)
    A("s_mul_i32 s5, s4, 10240")
    A("v_min_u32 v2, 159, v0")
    A("v_lshlrev_b32 v3, 3, v2")
    A("v_add_u32 v3, s5, v3")
    A("v_add_u32 v4, 5120, v3")
    A("v_lshrrev_b32 v5, 4, v0")
    A("v_mul_u32_u24 v6, 1280, v5")
    A("v_and_b32 v7, 15, v0")
    A("v_lshlrev_b32 v7, 4, v7")
    A("v_add_u32 v6, v6, v7")
    A("v_add_u32 v6, s5, v6")
    A("s_waitcnt lgkmcnt(0)")
    A("s_cmp_eq_u32 s3, 2")
    A("s_cbranch_scc1 K1_LNB")
    for i in range(5):
        A(f"global_load_dwordx4 {vr(8+4*i,4)}, v6, s[16:17] offset:{256*i}")
    A.label("K1_LNB")
    for r in range(8):
        A(f"global_load_dwordx2 {vr(40+2*r,2)}, v{3 if r < 4 else 4}, s[16:17] offset:{1280*(r%4)}")
    A(f"v_mov_b32 v34, {ONE_LO}")
    A(f"v_mov_b32 v35, {ONE_HI}")
    A("s_cmp_eq_u32 s3, 2")
    A("s_cbranch_scc1 K1_LNBAR")
    A("v_mov_b32 v30, 0")
    A("v_mov_b32 v31, 0")
    A("v_mov_b32 v36, 0")
    A("v_mov_b32 v37, 0")
    A("v_mov_b32 v32, 0x3f803f80")
    A("s_waitcnt vmcnt(8)")
    for i in range(0, 20, 2):
        A(f"v_dot2c_f32_bf16 v30, v{8+i}, v32")
        A(f"v_dot2c_f32_bf16 v31, v{8+i}, v{8+i}")
        A(f"v_dot2c_f32_bf16 v36, v{9+i}, v32")
        A(f"v_dot2c_f32_bf16 v37, v{9+i}, v{9+i}")
    A("s_nop 2")
    A("v_add_f32 v30, v30, v36")
    A("v_add_f32 v31, v31, v37")
    for sh in (8, 4, 2, 1):
        A(f"v_add_f32_dpp v30, v30, v30 row_ror:{sh} row_mask:0xf bank_mask:0xf")
        A(f"v_add_f32_dpp v31, v31, v31 row_ror:{sh} row_mask:0xf bank_mask:0xf")
    ln_finish(A, 30, 31, 33)
    A("v_sub_f32 v30, 0, v30")
    A("v_lshlrev_b32 v5, 3, v5")
    A("ds_write_b64 v5, v[30:31]")
    A.label("K1_LNBAR")
    stamp(A, 2)
    A("s_waitcnt lgkmcnt(0)")
    A("s_barrier")
    stamp(A, 3)
    A("v_mov_b32 v5, 0")
    for i in range(4):
        A(f"ds_read_b128 {vr(8+4*i,4)}, v5 offset:{16*i}")
    A("v_lshlrev_b32 v3, 14, v2")
    A("s_lshl_b32 s5, s4, 6")
    A("v_add_u32 v3, s5, v3")
    A("s_waitcnt vmcnt(0) lgkmcnt(0)")
    for rp in range(4):
        r0, r1 = 2 * rp, 2 * rp + 1
        tt = [76 + 3 * ch for ch in range(4)]
        for ch in range(4):
            a, b = 40 + 2 * r0 + (ch >> 1), 40 + 2 * r1 + (ch >> 1)
            one = 34 + (ch & 1)
            A(f"v_dot2_f32_bf16 v{tt[ch]}, v{a}, v{one}, v{8+2*r0}")
            A(f"v_dot2_f32_bf16 v{tt[ch]+1}, v{b}, v{one}, v{8+2*r1}")
        for ch in range(4):
            A(f"v_cvt_pk_bf16_f32 v{tt[ch]+2}, v{tt[ch]}, v{tt[ch]+1}")
        for ch in range(4):
            A(f"v_lshlrev_b32 v{tt[ch]}, 16, v{tt[ch]+2}")
            A(f"v_and_b32 v{tt[ch]+1}, 0xffff0000, v{tt[ch]+2}")
        for ch in range(4):
            A(f"v_mul_f32 v{tt[ch]}, v{tt[ch]}, v{9+2*r0}")
            A(f"v_mul_f32 v{tt[ch]+1}, v{tt[ch]+1}, v{9+2*r1}")
        for ch in range(4):
            A(f"v_cvt_pk_bf16_f32 v{tt[ch]+2}, v{tt[ch]}, v{tt[ch]+1}")
        for ch in range(4):
            A(f"v_lshlrev_b32 v{tt[ch]}, 16, v{tt[ch]+2}")
            A(f"v_and_b32 v{tt[ch]+1}, 0xffff0000, v{tt[ch]+2}")
        for ch in range(4):
            A(f"v_cvt_pk_f16_f32 v{60+4*ch+rp}, v{tt[ch]}, v{tt[ch]+1}")
    stamp(A, 4)
    for ch in range(4):
        A(f"global_store_dwordx4 v3, {vr(60+4*ch,4)}, s[32:33] offset:{16*ch} {ST_OPT[0]}")
    k_end(A, 0)

    A.label("K1_END")
    A("s_endpgm")


K2_KE, K2_KO, K2_U, K2_T = 0, 4160, 8320, 12928
K2_WB = 15168
K2_LDS = 4 * K2_WB
K2_NWT = 96
K2_WT_RANGE = [0, 960]


def k2(A):
    A(f"s_cmp_ge_u32 s2, {160 + K2_NWT}")
    A("s_cbranch_scc1 K2_END")
    k_begin(A)
    A("s_load_dwordx2 s[32:33], s[0:1], 112")
    A("s_load_dwordx2 s[28:29], s[0:1], 48")
    A("s_cmp_ge_u32 s2, 160")
    A("s_cbranch_scc1 K2_WTR")
    pair_swizzle(A, 35, 2, 6)
    A("v_lshrrev_b32 v1, 6, v0")
    A("v_readfirstlane_b32 s3, v1")
    A("v_and_b32 v2, 63, v0")
    A("s_lshl_b32 s4, s35, 2")
    A("s_add_u32 s4, s4, s3")
    A(f"s_mul_i32 s5, s3, {K2_WB}")
    A("s_lshl_b32 s6, s4, 11")
    A(f"s_add_u32 s6, s6, {WS_KD}")
    A("s_lshl_b32 s7, s35, 14")
    A("s_lshl_b32 s8, s3, 4")
    A("s_add_u32 s7, s7, s8")
    A("v_lshlrev_b32 v3, 4, v2")
    A("v_add_u32 v3, s6, v3")
    A("v_lshlrev_b32 v5, 6, v2")
    A("v_add_u32 v5, s7, v5")
    A("s_lshl_b32 s9, s4, 2")
    A(f"s_add_u32 s9, s9, {WS_SC}")
    A("s_lshr_b32 s14, s4, 1")
    A("s_lshl_b32 s14, s14, 2")
    A(f"s_add_u32 s12, s5, {K2_T}")
    A("s_mov_b32 m0, s12")
    A("s_waitcnt lgkmcnt(0)")
    stamp(A, 1)
    A("global_load_lds_dwordx4 v3, s[32:33]")
    A("global_load_lds_dwordx4 v3, s[32:33] offset:1024")
    for j in range(4):
        A(f"s_add_u32 s12, s5, {K2_U + 512 + 1024*j}")
        A("s_mov_b32 m0, s12")
        if j:
            A("v_add_u32 v5, 4096, v5")
        A("global_load_lds_dwordx4 v5, s[32:33]")
    A("s_load_dword s10, s[32:33], s9")
    A("s_load_dword s11, s[28:29], s14")
    A("v_and_b32 v6, 15, v2")
    A("v_lshrrev_b32 v7, 4, v2")
    A("v_lshrrev_b32 v8, 1, v7")
    A("v_and_b32 v9, 1, v7")
    A("v_mov_b32 v12, 0")
    A("v_mov_b32 v13, 0")
    A("v_lshlrev_b32 v14, 3, v2")
    A("v_add_u32 v14, s5, v14")
    A(f"ds_write_b64 v14, v[12:13] offset:{K2_U}")
    A("v_lshlrev_b32 v14, 2, v6")
    A("v_add_u32 v14, s5, v14")
    A(f"ds_write_b32 v14, v12 offset:{K2_KE + 4096}")
    A(f"ds_write_b32 v14, v12 offset:{K2_KO + 4096}")
    A("v_sub_u32 v14, 2047, v6")
    A("v_lshlrev_b32 v15, 4, v8")
    A("v_sub_u32 v14, v14, v15")
    A("v_lshlrev_b32 v15, 3, v9")
    A("v_add_u32 v14, v14, v15")
    A("v_lshlrev_b32 v14, 1, v14")
    A(f"v_add_u32 v15, {K2_KO - 2}, v14")
    A("v_and_b32 v16, 1, v6")
    A("v_cmp_eq_u32 vcc, 1, v16")
    A("v_cndmask_b32 v14, v15, v14, vcc")
    A("v_add_u32 v14, s5, v14")
    AB = [20, 21, 22, 23]
    for p in range(4):
        A(f"v_subrev_u32 v{AB[p]}, {512*(2*p+1) + 448}, v14")
    A("v_lshlrev_b32 v15, 5, v6")
    A("v_lshlrev_b32 v16, 5, v8")
    A("v_sub_u32 v15, v15, v16")
    A("v_lshlrev_b32 v16, 4, v9")
    A("v_add_u32 v15, v15, v16")
    A(f"v_add_u32 v15, {K2_U + 512 - 448}, v15")
    BB = 24
    A(f"v_add_u32 v{BB}, s5, v15")
    A("v_lshlrev_b32 v15, 5, v6")
    A("v_lshlrev_b32 v16, 3, v7")
    A("v_add_u32 v15, v15, v16")
    A("v_add_u32 v25, s5, v15")
    A("v_lshlrev_b32 v26, 1, v2")
    A(f"v_sub_u32 v26, {K2_T + 2*(384+255)}, v26")
    A("v_add_u32 v26, s5, v26")
    A("v_lshlrev_b32 v27, 2, v2")
    A(f"v_sub_u32 v27, {K2_T + 512 + 4*127}, v27")
    A("v_add_u32 v27, s5, v27")
    A("v_lshlrev_b32 v28, 4, v2")
    A("v_add_u32 v28, s5, v28")
    A("v_lshlrev_b32 v3, 3, v2")
    A("v_sub_u32 v3, 511, v3")
    for k in range(9):
        A(f"v_subrev_u32 v{30+k}, {k}, v3")
    A("v_max_i32 v38, 0, v38")
    for k in range(9):
        A(f"v_cvt_f32_i32 v{40+k}, v{30+k}")
    for k in range(0, 8, 2):
        A(f"v_cvt_pk_bf16_f32 v{50+k}, v{40+k}, v{41+k}")
        A(f"v_lshrrev_b32 v{51+k}, 16, v{50+k}")
        A(f"v_and_b32 v{50+k}, 0xffff, v{50+k}")
    A("v_cvt_pk_bf16_f32 v58, v48, v48")
    A("v_and_b32 v58, 0xffff, v58")
    A(f"s_add_u32 s12, s5, {K2_T}")
    for k in range(9):
        A(f"v_subrev_u32 v{50+k}, 17024, v{50+k}")
        A(f"v_min_i32 v{30+k}, 127, v{30+k}")
        A(f"v_max_i32 v{50+k}, v{50+k}, v{30+k}")
        A(f"v_lshlrev_b32 v{30+k}, 1, v{50+k}")
        A(f"v_add_u32 v{30+k}, s12, v{30+k}")
    A("v_and_b32 v16, 1, v2")
    A("v_cmp_eq_u32 s[20:21], 1, v16")
    A("s_mov_b32 s22, 0x01000100")
    A("s_mov_b32 s23, 0x03020302")
    AF, BF, ACC = 64, 96, 128
    for i in range(32):
        A(f"v_mov_b32 v{ACC+i}, 0")
    A("s_waitcnt vmcnt(4)")
    stamp(A, 2)
    A("v_subrev_u32 v29, 128, v26")
    for r in range(2):
        w = 40 + 8 * r
        A(f"ds_read_u16 v{w}, v{26 if r == 0 else 29}")
        A(f"ds_read_u16 v{w+1}, v{26 if r == 0 else 29} offset:2")
    A("ds_read_b32 v56, v27")
    A("ds_read_u16 v57, v27 offset:4")
    for k in range(9):
        A(f"ds_read_u16 v{100+k}, v{30+k}")
    A("s_waitcnt lgkmcnt(0)")
    for k in range(4):
        A(f"v_lshl_or_b32 v{60+k}, v{101+2*k}, 16, v{100+2*k}")
    A("v_mov_b32 v59, v108")
    for r in range(2):
        w = 40 + 8 * r
        A(f"v_lshl_or_b32 v{w}, v{w+1}, 16, v{w}")
    for r in range(2):
        w = 40 + 8 * r
        A(f"v_perm_b32 v{w+2}, v{w}, v{w}, s23")
        A(f"v_perm_b32 v{w+4}, v{w}, v{w}, s22")
        A(f"v_alignbit_b32 v{w+1}, v{w}, v{w}, 16")
        A(f"v_mov_b32 v{w+5}, v{w+4}")
        A(f"v_mov_b32 v{w+6}, v{w+2}")
        A(f"v_cndmask_b32 v{w+3}, v{w+2}, v{w+1}, s[20:21]")
        A(f"v_cndmask_b32 v{w+7}, v{w+1}, v{w+4}, s[20:21]")
        A(f"ds_write_b64 v28, {vr(w+2,2)} offset:{K2_KE + 1024*r}")
        A(f"ds_write_b64 v28, {vr(w+4,2)} offset:{K2_KE + 1024*r + 8}")
        A(f"ds_write_b64 v28, {vr(w+6,2)} offset:{K2_KO + 1024*r}")
        A(f"ds_write_b64 v28, {vr(w+4,2)} offset:{K2_KO + 1024*r + 8}")
    A("v_perm_b32 v40, v57, v57, s22")
    A("v_perm_b32 v41, v56, v56, s23")
    A("v_alignbit_b32 v42, v56, v56, 16")
    A("v_perm_b32 v43, v56, v56, s22")
    A("s_mov_b32 s24, 0x07060100")
    A("v_perm_b32 v44, v56, v57, s24")
    A("v_mov_b32 v45, v41")
    A("v_mov_b32 v46, v43")
    A("v_mov_b32 v47, v43")
    A(f"ds_write_b128 v28, v[40:43] offset:{K2_KE + 2048}")
    A(f"ds_write_b128 v28, v[44:47] offset:{K2_KO + 2048}")
    A("v_alignbit_b32 v48, v61, v60, 16")
    A("v_alignbit_b32 v49, v62, v61, 16")
    A("v_alignbit_b32 v50, v63, v62, 16")
    A("v_alignbit_b32 v51, v59, v63, 16")
    A(f"ds_write_b128 v28, v[60:63] offset:{K2_KE + 3072}")
    A(f"ds_write_b128 v28, v[48:51] offset:{K2_KO + 3072}")
    A(f"v_mov_b32 v14, s5")
    A(f"ds_write_b16 v14, v12 offset:{K2_KO + 2*2047}")
    A("s_bitcmp1_b32 s4, 0")
    A("s_cbranch_scc1 K2_ODD")
    A("s_lshl_b32 s11, s11, 16")
    A.label("K2_ODD")
    A("s_and_b32 s11, s11, 0xffff0000")

    def loadA(q, i0):
        p = q // 2
        o = (128 if q % 2 == 0 else 0) + 16 * (7 - i0)
        return [f"ds_read2_b32 {vr(AF+4*q,2)}, v{AB[p]} offset0:{o} offset1:{o+1}",
                f"ds_read2_b32 {vr(AF+4*q+2,2)}, v{AB[p]} offset0:{o+2} offset1:{o+3}"]

    def loadB(tau, i0):
        return [f"ds_read_b128 {vr(BF+4*tau,4)}, v{BB} offset:{512*tau + 64*(7-i0)}"]

    A("s_waitcnt vmcnt(0)")
    stamp(A, 3)
    for q in range(8):
        for s in loadB(7 - q, 0):
            A(s)
    for q in range(8):
        for s in loadA(q, 0):
            A(s)
    queue = []
    for q in range(8):
        queue.append(("B", 7 - q))
    for q in range(8):
        queue += [("A", q), ("A", q)]

    pending = []

    def wait_for(tags):
        while any(tg in tags for _, tg in pending):
            s_, tg = pending.pop(0)
            A(s_)
            queue.append(tg)
        last = -1
        for i, t in enumerate(queue):
            if t in tags:
                last = i
        if last >= 0:
            n = len(queue) - 1 - last
            A(f"s_waitcnt lgkmcnt({min(n, 15)})")
            del queue[:last + 1]

    for i0 in range(8):
        for q in range(8):
            for tau in range(7 - q, -1, -1):
                wait_for({("A", q), ("B", tau)})
                t = q + tau
                A(f"v_mfma_f32_16x16x32_f16 {vr(ACC+4*t,4)}, {vr(AF+4*q,4)}, {vr(BF+4*tau,4)}, {vr(ACC+4*t,4)}")
                if i0 < 7:
                    if tau == 7 - q:
                        pending.insert(0, (loadB(7 - q, i0 + 1)[0], ("B", 7 - q)))
                    if tau == 0:
                        for s in loadA(q, i0 + 1):
                            pending.append((s, ("A", q)))
                if pending:
                    s, tag = pending.pop(0)
                    A(s)
                    queue.append(tag)
    assert not pending or True
    stamp(A, 4)
    for t in range(8):
        A(f"ds_read_b64 {vr(64+2*t,2)}, v25 offset:{K2_U + 512 + 512*t}")
    A(f"v_mov_b32 v34, {ONE_LO}")
    A(f"v_mov_b32 v35, {ONE_HI}")
    A("s_mov_b32 s12, s10")
    A("s_mov_b32 s13, s10")
    A("v_mov_b32 v36, s10")
    A("v_mov_b32 v37, s10")
    A("s_waitcnt lgkmcnt(0)")
    for t in range(8):
        a = ACC + 4 * t
        u = 64 + 2 * t
        tm = 40 + 8 * (t & 1)
        A(f"v_pk_mul_f32 {vr(a,2)}, {vr(a,2)}, v[36:37]")
        A(f"v_pk_mul_f32 {vr(a+2,2)}, {vr(a+2,2)}, v[36:37]")
        A(f"v_fma_mix_f32 v{tm}, v{u}, s11, 0 op_sel:[0,0,0] op_sel_hi:[1,0,0]")
        A(f"v_fma_mix_f32 v{tm+1}, v{u}, s11, 0 op_sel:[1,0,0] op_sel_hi:[1,0,0]")
        A(f"v_fma_mix_f32 v{tm+2}, v{u+1}, s11, 0 op_sel:[0,0,0] op_sel_hi:[1,0,0]")
        A(f"v_fma_mix_f32 v{tm+3}, v{u+1}, s11, 0 op_sel:[1,0,0] op_sel_hi:[1,0,0]")
        A(f"v_cvt_pk_bf16_f32 v{a}, v{a}, v{a+1}")
        A(f"v_cvt_pk_bf16_f32 v{a+1}, v{a+2}, v{a+3}")
        A(f"v_cvt_pk_bf16_f32 v{tm+4}, v{tm}, v{tm+1}")
        A(f"v_cvt_pk_bf16_f32 v{tm+5}, v{tm+2}, v{tm+3}")
        A(f"v_lshlrev_b32 v{tm}, 16, v{tm+4}")
        A(f"v_and_b32 v{tm+1}, 0xffff0000, v{tm+4}")
        A(f"v_lshlrev_b32 v{tm+2}, 16, v{tm+5}")
        A(f"v_and_b32 v{tm+3}, 0xffff0000, v{tm+5}")
        A(f"v_dot2_f32_bf16 v{tm}, v{a}, v34, v{tm}")
        A(f"v_dot2_f32_bf16 v{tm+1}, v{a}, v35, v{tm+1}")
        A(f"v_dot2_f32_bf16 v{tm+2}, v{a+1}, v34, v{tm+2}")
        A(f"v_dot2_f32_bf16 v{tm+3}, v{a+1}, v35, v{tm+3}")
        A(f"v_cvt_pk_bf16_f32 v{a+2}, v{tm}, v{tm+1}")
        A(f"v_cvt_pk_bf16_f32 v{a+3}, v{tm+2}, v{tm+3}")
        A(f"ds_write_b64 v25, {vr(a+2,2)} offset:{K2_KE + 512*t}")
    stamp(A, 5)
    A("s_waitcnt lgkmcnt(0)")
    A("s_barrier")
    A("v_lshrrev_b32 v14, 2, v6")
    A(f"v_mul_u32_u24 v14, {K2_WB}, v14")
    A("v_and_b32 v15, 3, v2")
    A("v_lshlrev_b32 v15, 3, v15")
    A("v_add_u32 v14, v14, v15")
    A("v_lshlrev_b32 v15, 5, v7")
    A("v_add_u32 v14, v14, v15")
    A("s_lshl_b32 s12, s3, 10")
    A("v_add_u32 v14, s12, v14")
    for k in range(8):
        A(f"ds_read_b64_tr_b16 {vr(40+2*k,2)}, v14 offset:{K2_KE + 128*k}")
    A("v_lshrrev_b32 v15, 3, v6")
    A("v_lshlrev_b32 v16, 1, v7")
    A("v_add_u32 v15, v15, v16")
    A("v_mul_u32_u24 v15, 10240, v15")
    A("v_and_b32 v16, 7, v6")
    A("v_lshlrev_b32 v16, 4, v16")
    A("v_add_u32 v15, v15, v16")
    A("s_mul_i32 s12, s3, 655360")
    A("s_lshr_b32 s13, s35, 1")
    A("s_lshl_b32 s13, s13, 7")
    A("s_add_u32 s12, s12, s13")
    A("s_and_b32 s13, s35, 1")
    A("s_lshl_b32 s13, s13, 3")
    A("s_add_u32 s12, s12, s13")
    A(f"s_add_u32 s12, s12, {WS_AT}")
    A("v_add_u32 v15, s12, v15")
    A("s_waitcnt lgkmcnt(0)")
    for k in range(8):
        A(f"global_store_dwordx2 v15, {vr(40+2*k,2)}, s[32:33] {ST_OPT[0]}")
        if k < 7:
            A("v_add_u32 v15, 81920, v15")
    k_end(A, 1)

    wt_role(A, "K2", 160, 4, 12288, K2_WT_RANGE[0], K2_WT_RANGE[1], 1, WT_OPT[0], K2_NWT * 4)
    A.label("K2_END")
    A("s_endpgm")


K3_LDS = 0


def k3(A):
    A("s_cmp_ge_u32 s2, 256")
    A("s_cbranch_scc1 K3_END")
    k_begin(A)
    A("s_load_dwordx2 s[32:33], s[0:1], 112")
    A("s_load_dwordx2 s[26:27], s[0:1], 0")
    A("s_load_dwordx2 s[28:29], s[0:1], 64")
    A("s_load_dwordx2 s[30:31], s[0:1], 96")
    A("v_lshrrev_b32 v7, 5, v0")
    A("v_and_b32 v4, 31, v0")
    A("s_mul_i32 s4, s2, 10240")
    A("v_lshlrev_b32 v5, 4, v4")
    A("v_mul_u32_u24 v6, 1280, v7")
    A("v_add_u32 v6, v6, v5")
    A("v_add_u32 v8, s4, v6")
    A("v_lshlrev_b32 v3, 7, v4")
    A("v_lshl_add_u32 v3, v7, 4, v3")
    A(f"s_add_u32 s5, s4, {WS_AT}")
    A("v_add_u32 v3, s5, v3")
    A("v_add_u32 v9, 8192, v3")
    AR, XR, WR = 20, 32, 44
    for i in range(4):
        A(f"v_mov_b32 v{AR+8+i}, 0")
        A(f"v_mov_b32 v{XR+8+i}, 0")
        A(f"v_mov_b32 v{WR+8+i}, 0")
    A("v_cmp_gt_u32 s[20:21], 16, v4")
    A("s_waitcnt lgkmcnt(0)")
    stamp(A, 1)
    A(f"global_load_dwordx4 {vr(AR,4)}, v3, s[32:33]")
    A(f"global_load_dwordx4 {vr(XR,4)}, v8, s[26:27]")
    A(f"global_load_dwordx4 {vr(AR+4,4)}, v3, s[32:33] offset:4095".replace("offset:4095", "offset:0") if False else
      f"global_load_dwordx4 {vr(XR+4,4)}, v8, s[26:27] offset:512")
    A("v_add_u32 v10, 4096, v3")
    A(f"global_load_dwordx4 {vr(AR+4,4)}, v10, s[32:33]")
    A("s_mov_b64 exec, s[20:21]")
    A(f"global_load_dwordx4 {vr(AR+8,4)}, v9, s[32:33]")
    A(f"global_load_dwordx4 {vr(XR+8,4)}, v8, s[26:27] offset:1024")
    A(f"global_load_dwordx4 {vr(WR+8,4)}, v5, s[28:29] offset:1024")
    A("s_mov_b64 exec, -1")
    A(f"global_load_dwordx4 {vr(WR,4)}, v5, s[28:29]")
    A(f"global_load_dwordx4 {vr(WR+4,4)}, v5, s[28:29] offset:512")
    A(f"v_mov_b32 v12, {ONE_LO}")
    A(f"v_mov_b32 v13, {ONE_HI}")
    A("v_mov_b32 v14, 0x3f803f80")
    for r in (10, 11, 16, 17):
        A(f"v_mov_b32 v{r}, 0")
    A(f"v_add_u32 v9, {WS_L2}, v8")
    H = 56
    T = 68
    A("s_waitcnt vmcnt(3)")
    stamp(A, 2)
    N = 12
    for i in range(N):
        A(f"v_lshlrev_b32 v{T+2*i}, 16, v{AR+i}")
        A(f"v_and_b32 v{T+2*i+1}, 0xffff0000, v{AR+i}")
    for i in range(N):
        A(f"v_dot2_f32_bf16 v{T+2*i}, v{XR+i}, v12, v{T+2*i}")
        A(f"v_dot2_f32_bf16 v{T+2*i+1}, v{XR+i}, v13, v{T+2*i+1}")
    for i in range(N):
        A(f"v_cvt_pk_bf16_f32 v{H+i}, v{T+2*i}, v{T+2*i+1}")
    for i in range(0, N, 2):
        A(f"v_dot2c_f32_bf16 v10, v{H+i}, v14")
        A(f"v_dot2c_f32_bf16 v11, v{H+i}, v{H+i}")
        A(f"v_dot2c_f32_bf16 v16, v{H+i+1}, v14")
        A(f"v_dot2c_f32_bf16 v17, v{H+i+1}, v{H+i+1}")
    A("s_nop 2")
    A("v_add_f32 v10, v10, v16")
    A("v_add_f32 v11, v11, v17")

    def red(regs, tmps):
        for sh in (8, 4, 2, 1):
            for r in regs:
                A(f"v_add_f32_dpp v{r}, v{r}, v{r} row_ror:{sh} row_mask:0xf bank_mask:0xf")
        for r, t in zip(regs, tmps):
            A(f"v_mov_b32 v{t}, v{r}")
        for r, t in zip(regs, tmps):
            A(f"v_permlane16_swap_b32 v{r}, v{t}")
        for r, t in zip(regs, tmps):
            A(f"v_add_f32 v{r}, v{r}, v{t}")
    red([10, 11], [16, 17])
    ln_finish(A, 10, 11, 15)
    A("v_sub_f32 v10, 0, v10")
    stamp(A, 3)
    L, O = AR, XR
    for i in range(N):
        A(f"v_dot2_f32_bf16 v{T+2*i}, v{H+i}, v12, v10")
        A(f"v_dot2_f32_bf16 v{T+2*i+1}, v{H+i}, v13, v10")
    for i in range(N):
        A(f"v_cvt_pk_bf16_f32 v{L+i}, v{T+2*i}, v{T+2*i+1}")
    for i in range(N):
        A(f"v_lshlrev_b32 v{T+2*i}, 16, v{L+i}")
        A(f"v_and_b32 v{T+2*i+1}, 0xffff0000, v{L+i}")
    A("v_mov_b32 v16, v11")
    A("v_mov_b32 v17, v11")
    for i in range(N):
        A(f"v_pk_mul_f32 {vr(T+2*i,2)}, {vr(T+2*i,2)}, v[16:17]")
    for i in range(N):
        A(f"v_cvt_pk_bf16_f32 v{L+i}, v{T+2*i}, v{T+2*i+1}")
    A(f"global_store_dwordx4 v9, {vr(L,4)}, s[32:33] {ST_OPT[0]}")
    A(f"global_store_dwordx4 v9, {vr(L+4,4)}, s[32:33] offset:512 {ST_OPT[0]}")
    A("s_mov_b64 exec, s[20:21]")
    A(f"global_store_dwordx4 v9, {vr(L+8,4)}, s[32:33] offset:1024 {ST_OPT[0]}")
    A("s_mov_b64 exec, -1")
    A("v_mov_b32 v14, 0")
    A("v_mov_b32 v15, 0")
    A("s_waitcnt vmcnt(3)")
    for i in range(0, N, 2):
        A(f"v_dot2c_f32_bf16 v14, v{L+i}, v{WR+i}")
        A(f"v_dot2c_f32_bf16 v15, v{L+i+1}, v{WR+i+1}")
    for i in range(N):
        A(f"v_lshlrev_b32 v{T+2*i}, 16, v{L+i}")
        A(f"v_and_b32 v{T+2*i+1}, 0xffff0000, v{L+i}")
    A("v_add_f32 v14, v14, v15")
    for i in range(N):
        A(f"v_dot2_f32_bf16 v{T+2*i}, v{H+i}, v12, v{T+2*i}")
        A(f"v_dot2_f32_bf16 v{T+2*i+1}, v{H+i}, v13, v{T+2*i+1}")
    for i in range(N):
        A(f"v_cvt_pk_bf16_f32 v{O+i}, v{T+2*i}, v{T+2*i+1}")
    stamp(A, 4)
    A(f"global_store_dwordx4 v8, {vr(O,4)}, s[30:31] {ST_OPT[0]}")
    A(f"global_store_dwordx4 v8, {vr(O+4,4)}, s[30:31] offset:512 {ST_OPT[0]}")
    A("s_mov_b64 exec, s[20:21]")
    A(f"global_store_dwordx4 v8, {vr(O+8,4)}, s[30:31] offset:1024 {ST_OPT[0]}")
    A("s_mov_b64 exec, -1")
    red([14], [15])
    A("v_cvt_pk_bf16_f32 v40, v14, v14")
    A("v_and_b32 v40, 0xffff0000, v40")
    A("v_ashrrev_i32 v41, 31, v40")
    A("v_or_b32 v41, 0x80000000, v41")
    A("v_xor_b32 v40, v40, v41")
    A("v_and_b32 v40, 0xffff0000, v40")
    A("s_lshl_b32 s6, s2, 3")
    A("v_add_u32 v42, s6, v7")
    A("v_sub_u32 v43, 2047, v42")
    A("v_or_b32 v40, v40, v43")
    A("v_lshlrev_b32 v42, 2, v42")
    A(f"v_add_u32 v42, {WS_RK}, v42")
    A("v_cmp_eq_u32 vcc, 0, v4")
    A("s_mov_b64 exec, vcc")
    A("global_store_dword v42, v40, s[32:33]")
    k_end(A, 2)
    A.label("K3_END")
    A("s_endpgm")


K4_LDS = 8192


def k4(A):
    A("s_cmp_ge_u32 s2, 192")
    A("s_cbranch_scc1 K4_END")
    k_begin(A)
    A("s_load_dwordx2 s[32:33], s[0:1], 112")
    A("v_lshrrev_b32 v1, 6, v0")
    A("v_readfirstlane_b32 s3, v1")
    A("v_and_b32 v2, 63, v0")
    A("s_mul_i32 s4, s2, 20480")
    A("s_mul_i32 s5, s3, 5120")
    A("s_add_u32 s4, s4, s5")
    A(f"s_add_u32 s4, s4, {WS_WGU}")
    A("v_lshlrev_b32 v3, 4, v2")
    A("v_add_u32 v3, s4, v3")
    A("v_add_u32 v5, 4096, v3")
    A("v_lshlrev_b32 v4, 5, v0")
    A(f"v_add_u32 v4, {WS_RK}, v4")
    A("s_waitcnt lgkmcnt(0)")
    A("global_load_dwordx4 v[8:11], v4, s[32:33]")
    A("global_load_dwordx4 v[12:15], v4, s[32:33] offset:16")
    BFR = 40
    for i in range(4):
        A(f"global_load_dwordx4 {vr(BFR+4*i,4)}, v3, s[32:33] offset:{1024*i}")
    A(f"global_load_dwordx4 {vr(BFR+16,4)}, v5, s[32:33]")
    stamp(A, 1)
    A("s_waitcnt vmcnt(5)")
    stamp(A, 2)
    net = [(0, 1), (2, 3), (4, 5), (6, 7), (0, 2), (1, 3), (4, 6), (5, 7), (1, 2), (5, 6), (0, 4), (3, 7), (1, 5), (2, 6),
           (1, 4), (3, 6), (2, 4), (3, 5), (3, 4)]
    reg = list(range(8, 16))
    spare = 16
    for a, b in net:
        A(f"v_max_u32 v{spare}, v{reg[a]}, v{reg[b]}")
        A(f"v_min_u32 v{reg[b]}, v{reg[a]}, v{reg[b]}")
        reg[a], spare = spare, reg[a]
    for r in range(8):
        A(f"v_mov_b32 v17, v{reg[0]}")
        for sh in (1, 2, 4, 8):
            A(f"v_max_u32_dpp v17, v17, v17 row_shr:{sh} row_mask:0xf bank_mask:0xf")
        A("v_max_u32_dpp v17, v17, v17 row_bcast:15 row_mask:0xa bank_mask:0xf")
        A("v_max_u32_dpp v17, v17, v17 row_bcast:31 row_mask:0xc bank_mask:0xf")
        A(f"v_readlane_b32 s{40+r}, v17, 63")
        if r < 7:
            A(f"v_cmp_eq_u32 vcc, s{40+r}, v{reg[0]}")
            for k in range(7 - r):
                A(f"v_cndmask_b32 v{reg[k]}, v{reg[k]}, v{reg[k+1]}, vcc")
    stamp(A, 3)
    A("v_mov_b32 v16, s40")
    for r in range(1, 8):
        A(f"v_writelane_b32 v16, s{40+r}, {r}")
    A("s_lshl_b32 s6, s3, 5")
    A("v_lshlrev_b32 v17, 2, v2")
    A("v_add_u32 v17, s6, v17")
    A("v_cmp_gt_u32 vcc, 8, v2")
    A("s_and_saveexec_b64 s[20:21], vcc")
    A("ds_write_b32 v17, v16")
    A("s_mov_b64 exec, s[20:21]")
    A("s_waitcnt lgkmcnt(0)")
    A("s_barrier")
    A("v_and_b32 v17, 31, v2")
    A("v_lshlrev_b32 v17, 2, v17")
    A("ds_read_b32 v16, v17")
    A("v_mov_b32 v18, 0")
    for i in range(8):
        A(f"ds_read_b128 {vr(60+4*i,4)}, v18 offset:{16*i}")
    A("v_mov_b32 v19, 0")
    A("v_mov_b32 v20, 0")
    A("s_waitcnt lgkmcnt(0)")
    sp = ["s[50:51]", "s[52:53]", "s[54:55]", "s[56:57]"]
    for i in range(0, 32, 4):
        for k in range(4):
            A(f"v_cmp_gt_u32 {sp[k]}, v{60+i+k}, v16")
        for k in range(4):
            A(f"v_addc_co_u32 v{19 + (k & 1)}, vcc, 0, v{19 + (k & 1)}, {sp[k]}")
    A("v_add_u32 v19, v19, v20")
    A("v_cmp_gt_u32 vcc, 8, v19")
    A("v_cmp_gt_u32 s[22:23], 32, v2")
    A("s_and_b64 vcc, vcc, s[22:23]")
    A("v_lshlrev_b32 v19, 2, v19")
    A("s_lshl_b32 s6, s3, 6")
    A("s_add_u32 s6, s6, 256")
    A("v_add_u32 v19, s6, v19")
    A("s_and_saveexec_b64 s[20:21], vcc")
    A("ds_write_b32 v19, v16")
    A("s_mov_b64 exec, s[20:21]")
    A("v_and_b32 v17, 7, v2")
    A("v_lshlrev_b32 v17, 2, v17")
    A("v_add_u32 v17, s6, v17")
    A("ds_read_b32 v16, v17")
    A("v_lshrrev_b32 v21, 4, v2")
    A("v_lshlrev_b32 v21, 4, v21")
    A("s_mul_i32 s6, s3, 320")
    A(f"s_add_u32 s6, s6, {WS_L2}")
    A("v_add_u32 v21, s6, v21")
    A("s_waitcnt lgkmcnt(0)")
    A("v_and_b32 v18, 0x7ff, v16")
    A("v_sub_u32 v18, 2047, v18")
    A("v_mul_u32_u24 v20, 1280, v18")
    A("v_add_u32 v20, v20, v21")
    AFR = 60
    for i in range(5):
        A(f"global_load_dwordx4 {vr(AFR+4*i,4)}, v20, s[32:33] offset:{64*i}")
    stamp(A, 4)
    A("s_or_b32 s6, s2, s3")
    A("s_cmp_lg_u32 s6, 0")
    A("s_cbranch_scc1 K4_NOSEL")
    A("v_and_b32 v22, 0xffff0000, v16")
    A("v_ashrrev_i32 v23, 31, v22")
    A("v_not_b32 v23, v23")
    A("v_or_b32 v23, 0x80000000, v23")
    A("v_xor_b32 v22, v22, v23")
    A("v_and_b32 v22, 0xffff0000, v22")
    A(f"v_mul_f32 v22, {hex(fbits(-LOG2E))}, v22")
    A("v_exp_f32 v22, v22")
    A("v_add_f32 v22, 1.0, v22")
    A("v_rcp_f32 v22, v22")
    bf16_round(A, 22)
    A("v_lshlrev_b32 v23, 2, v2")
    A(f"v_add_u32 v23, {WS_SEL}, v23")
    A("v_cmp_gt_u32 vcc, 8, v2")
    A("s_and_saveexec_b64 s[20:21], vcc")
    A("global_store_dword v23, v18, s[32:33]")
    A("global_store_dword v23, v22, s[32:33] offset:32")
    A("s_mov_b64 exec, s[20:21]")
    A.label("K4_NOSEL")
    for i in range(4):
        A(f"v_mov_b32 v{24+i}, 0")
    A("v_lshlrev_b32 v28, 4, v2")
    A("s_lshl_b32 s6, s3, 10")
    A("v_add_u32 v29, s6, v28")
    for i in range(5):
        A(f"s_waitcnt vmcnt({4-i})")
        A(f"v_mfma_f32_16x16x32_bf16 v[24:27], {vr(AFR+4*i,4)}, {vr(BFR+4*i,4)}, v[24:27]")
    stamp(A, 5)
    A("ds_write_b128 v29, v[24:27] offset:1024")
    A("s_waitcnt lgkmcnt(0)")
    A("s_barrier")
    A("s_cmp_lg_u32 s3, 0")
    A("s_cbranch_scc1 K4_DONE")
    for w in range(4):
        A(f"ds_read_b128 {vr(40+4*w,4)}, v28 offset:{1024 + 1024*w}")
    A("v_and_b32 v56, 15, v2")
    A("v_lshrrev_b32 v57, 4, v2")
    A("v_mul_u32_u24 v58, 12288, v57")
    A("v_lshlrev_b32 v59, 1, v56")
    A("v_add_u32 v58, v58, v59")
    A("s_lshl_b32 s6, s2, 4")
    A(f"s_add_u32 s6, s6, {WS_ACT}")
    A("v_add_u32 v58, s6, v58")
    A("v_add_u32 v59, 6144, v58")
    A("v_cmp_gt_u32 vcc, 8, v56")
    A("v_cmp_gt_u32 s[22:23], 2, v57")
    A("s_and_b64 s[22:23], vcc, s[22:23]")
    A("s_waitcnt lgkmcnt(0)")
    for i in range(4):
        A(f"v_add_f32 v{40+i}, v{40+i}, v{44+i}")
        A(f"v_add_f32 v{48+i}, v{48+i}, v{52+i}")
    for i in range(4):
        A(f"v_add_f32 v{40+i}, v{40+i}, v{48+i}")
    A("v_cvt_pk_bf16_f32 v44, v40, v41")
    A("v_cvt_pk_bf16_f32 v45, v42, v43")
    A("v_lshlrev_b32 v40, 16, v44")
    A("v_and_b32 v41, 0xffff0000, v44")
    A("v_lshlrev_b32 v42, 16, v45")
    A("v_and_b32 v43, 0xffff0000, v45")
    for i in range(4):
        A(f"v_mul_f32 v{48+i}, {hex(fbits(-LOG2E))}, v{40+i}")
    for i in range(4):
        A(f"v_exp_f32 v{48+i}, v{48+i}")
    for i in range(4):
        A(f"v_mov_b32_dpp v{44+i}, v{40+i} row_shl:8 row_mask:0xf bank_mask:0xf")
    for i in range(4):
        A(f"v_add_f32 v{48+i}, 1.0, v{48+i}")
    for i in range(4):
        A(f"v_rcp_f32 v{48+i}, v{48+i}")
    for i in range(4):
        A(f"v_mul_f32 v{40+i}, v{40+i}, v{48+i}")
    A("v_cvt_pk_bf16_f32 v48, v40, v41")
    A("v_cvt_pk_bf16_f32 v49, v42, v43")
    A("v_lshlrev_b32 v40, 16, v48")
    A("v_and_b32 v41, 0xffff0000, v48")
    A("v_lshlrev_b32 v42, 16, v49")
    A("v_and_b32 v43, 0xffff0000, v49")
    for i in range(4):
        A(f"v_mul_f32 v{40+i}, v{40+i}, v{44+i}")
    A("v_cvt_pk_bf16_f32 v40, v40, v41")
    A("v_cvt_pk_bf16_f32 v42, v42, v43")
    A("s_mov_b64 exec, s[22:23]")
    A("global_store_short v58, v40, s[32:33]")
    A("global_store_short_d16_hi v58, v40, s[32:33] offset:3072")
    A("global_store_short v59, v42, s[32:33]")
    A("global_store_short_d16_hi v59, v42, s[32:33] offset:3072")
    A.label("K4_DONE")
    k_end(A, 3)
    A.label("K4_END")
    A("s_endpgm")


K5_LDS = 8192


def k5(A):
    A("s_cmp_ge_u32 s2, 80")
    A("s_cbranch_scc1 K5_END")
    k_begin(A)
    A("s_load_dwordx2 s[32:33], s[0:1], 112")
    A("s_load_dwordx2 s[30:31], s[0:1], 96")
    A("s_load_dwordx2 s[26:27], s[0:1], 0")
    A("v_lshrrev_b32 v1, 6, v0")
    A("v_readfirstlane_b32 s3, v1")
    A("v_and_b32 v2, 63, v0")
    A("s_mul_i32 s4, s2, 24576")
    A("s_mul_i32 s5, s3, 3072")
    A("s_add_u32 s4, s4, s5")
    A(f"s_add_u32 s4, s4, {WS_WD}")
    A("v_lshrrev_b32 v5, 4, v2")
    A("v_and_b32 v4, 7, v2")
    A("v_lshlrev_b32 v3, 7, v5")
    A("v_lshlrev_b32 v6, 4, v4")
    A("v_add_u32 v3, v3, v6")
    A("v_add_u32 v3, s4, v3")
    A("v_mul_u32_u24 v4, 3072, v4")
    A("v_lshlrev_b32 v6, 4, v5")
    A("v_add_u32 v4, v4, v6")
    A("s_mul_i32 s6, s3, 384")
    A(f"s_add_u32 s6, s6, {WS_ACT}")
    A("v_add_u32 v4, s6, v4")
    A("v_and_b32 v7, 1, v5")
    A("v_lshlrev_b32 v7, 4, v7")
    A(f"v_add_u32 v7, {WS_SEL}, v7")
    A("s_waitcnt lgkmcnt(0)")
    stamp(A, 1)
    BFR, AFR = 40, 64
    for i in range(4):
        A(f"v_mov_b32 v{20+i}, 0")
    A("s_cmp_lg_u32 s3, 0")
    A("s_cbranch_scc1 K5_NOSEL")
    A("global_load_dwordx4 v[8:11], v7, s[32:33]")
    A("global_load_dwordx4 v[12:15], v7, s[32:33] offset:32")
    A.label("K5_NOSEL")
    A("v_and_b32 v16, 8, v2")
    A("v_cmp_eq_u32 vcc, 0, v16")
    A("s_mov_b64 exec, vcc")
    for i in range(6):
        A(f"global_load_dwordx4 {vr(AFR+4*i,4)}, v4, s[32:33] offset:{64*i}")
        A(f"global_load_dwordx4 {vr(BFR+4*i,4)}, v3, s[32:33] offset:{512*i}")
    A("s_mov_b64 exec, -1")
    for i in range(4):
        A(f"v_mov_b32 v{32+i}, 0")
    A("s_cmp_lg_u32 s3, 0")
    A("s_cbranch_scc1 K5_MM")
    A("v_and_b32 v16, 7, v2")
    A("s_lshl_b32 s6, s2, 3")
    A("v_add_u32 v16, s6, v16")
    A("v_lshrrev_b32 v17, 3, v16")
    A("v_lshlrev_b32 v17, 7, v17")
    A("v_and_b32 v18, 7, v16")
    A("v_lshl_add_u32 v17, v18, 1, v17")
    A(f"v_add_u32 v17, {WS_AT}, v17")
    A("s_waitcnt vmcnt(12)")
    for i in range(4):
        A(f"v_mul_u32_u24 v{20+i}, 1280, v{8+i}")
        A(f"v_lshl_add_u32 v{20+i}, v16, 1, v{20+i}")
        A(f"v_add_u32 v18, {WS_L2}, v{20+i}")
        A(f"global_load_ushort v{24+i}, v18, s[32:33]")
        A(f"global_load_ushort v{28+i}, v{20+i}, s[26:27]")
        A(f"v_lshrrev_b32 v18, 3, v{8+i}")
        A("v_mul_u32_u24 v18, 10240, v18")
        A(f"v_and_b32 v19, 7, v{8+i}")
        A("v_lshl_add_u32 v18, v19, 4, v18")
        A("v_add_u32 v18, v18, v17")
        A(f"global_load_ushort v{36+i}, v18, s[32:33]")
    A("s_waitcnt vmcnt(12)")
    A("s_branch K5_MM2")
    A.label("K5_MM")
    A("s_waitcnt vmcnt(0)")
    A.label("K5_MM2")
    stamp(A, 3)
    for i in range(6):
        A(f"v_mfma_f32_16x16x32_bf16 v[32:35], {vr(AFR+4*i,4)}, {vr(BFR+4*i,4)}, v[32:35]")
    A("v_lshlrev_b32 v88, 4, v2")
    A("s_lshl_b32 s6, s3, 10")
    A("v_add_u32 v89, s6, v88")
    A("ds_write_b128 v89, v[32:35]")
    A("s_waitcnt lgkmcnt(0)")
    A("s_barrier")
    A("s_cmp_lg_u32 s3, 0")
    A("s_cbranch_scc1 K5_DONE")
    for w in range(8):
        A(f"ds_read_b128 {vr(40+4*w,4)}, v88 offset:{1024*w}")
    A("s_waitcnt vmcnt(0) lgkmcnt(0)")
    for st in (16, 8, 4):
        for j in range(st):
            A(f"v_add_f32 v{40+j}, v{40+j}, v{40+st+j}")
    for i in range(4):
        A(f"v_lshlrev_b32 v{28+i}, 16, v{28+i}")
        A(f"v_lshlrev_b32 v{36+i}, 16, v{36+i}")
        A(f"v_add_f32 v{28+i}, v{28+i}, v{36+i}")
        bf16_round(A, 28 + i)
    for i in range(4):
        bf16_round(A, 40 + i)
        A(f"v_mul_f32 v{40+i}, v{40+i}, v{12+i}")
        bf16_round(A, 40 + i)
        A(f"v_lshlrev_b32 v{24+i}, 16, v{24+i}")
        A(f"v_add_f32 v{40+i}, v{40+i}, v{24+i}")
        bf16_round(A, 40 + i)
        A(f"v_add_f32 v{40+i}, v{40+i}, v{28+i}")
        A(f"v_cvt_pk_bf16_f32 v{40+i}, v{40+i}, v{40+i}")
    A("v_and_b32 v16, 15, v2")
    A("v_cmp_gt_u32 vcc, 8, v16")
    A("v_cmp_gt_u32 s[22:23], 2, v5")
    A("s_and_b64 exec, vcc, s[22:23]")
    for i in range(4):
        A(f"global_store_short v{20+i}, v{40+i}, s[30:31]")
    A.label("K5_DONE")
    k_end(A, 4)
    A.label("K5_END")
    A("s_endpgm")


KERNELS = [
    ("k1_kernel", k1, K1_WT + K1_KG + K1_LN, 192, K1_LDS, 128),
    ("k2_kernel", k2, 160 + K2_NWT, 256, K2_LDS, 160),
    ("k3_kernel", k3, 256, 256, K3_LDS, 96),
    ("k4_kernel", k4, 192, 256, K4_LDS, 96),
    ("k5_kernel", k5, 80, 512, K5_LDS, 96),
]

KD_TMPL = """.amdhsa_kernel {name}
  .amdhsa_next_free_vgpr {vgpr}
  .amdhsa_next_free_sgpr 102
  .amdhsa_accum_offset {acc}
  .amdhsa_group_segment_fixed_size 0
  .amdhsa_kernarg_size 120
  .amdhsa_user_sgpr_count 2
  .amdhsa_user_sgpr_kernarg_segment_ptr 1
  .amdhsa_system_sgpr_workgroup_id_x 1
.end_amdhsa_kernel
"""

HEADER = """; Kernarg layout (120 bytes, ptrs only): in0..in11 at 0..88, d_out 96, d_debug 104, d_ws 112
"""


def build(kernels):
    s = HEADER
    for label, fn, grid, block, lds, vgpr in kernels:
        s += f"; @launch kernel={label} grid=({grid},1,1) block=({block},1,1) lds={lds}\n"
    s += '.amdgcn_target "amdgcn-amd-amdhsa--gfx950"\n.text\n'
    done = set()
    for label, fn, grid, block, lds, vgpr in kernels:
        if label in done:
            continue
        done.add(label)
        A = Asm()
        fn(A)
        s += f".globl {label}\n.p2align 8\n.type {label},@function\n{label}:\n" + A.finish() + "\n"
    s += '.section .rodata,"a"\n'
    done = set()
    for label, fn, grid, block, lds, vgpr in kernels:
        if label in done:
            continue
        done.add(label)
        s += ".p2align 6\n" + KD_TMPL.format(name=label, vgpr=vgpr, acc=min(256, (vgpr + 3) // 4 * 4))
    return s


if __name__ == "__main__":
    if len(sys.argv) > 2 and sys.argv[2] == "stamp":
        STAMP[0] = True
    out = build(KERNELS)
    path = sys.argv[1] if len(sys.argv) > 1 else f"cdna_kernels/{NAME}.s"
    open(path, "w").write(out)
    print("wrote", path, len(out), "bytes")
```

```python
import sys, os, struct
sys.path.insert(0, os.path.dirname(os.path.abspath(__file__)))
from asmlib import Asm

NAME = "sequential_preLN__ssm_conv_s4d__moe_arch_mod__prompt"

WS_UT = 0x0000000
WS_KD = 0x0280000
WS_SC = 0x03C0000
WS_AT = 0x0400000
WS_L2 = 0x0680000
WS_RK = 0x0900000
WS_ACT = 0x0910000
WS_SEL = 0x0918000
WS_WGU = 0x0A00000
WS_WD = 0x0E00000
WS_STAMP = 0x1800000
STAMP = [False]
NSTAMP = 12
ST_OPT = [""]


def k_begin(A):
    if STAMP[0]:
        A("s_memrealtime s[94:95]")
        for i in range(NSTAMP):
            A(f"s_mov_b64 s[{60+2*i}:{61+2*i}], 0")
        A("s_memtime s[60:61]")


def stamp(A, i):
    if STAMP[0]:
        A(f"s_memtime s[{60+2*i}:{61+2*i}]")


def k_end(A, kidx):
    if STAMP[0]:
        A(f"s_memtime s[{60+2*(NSTAMP-2)}:{61+2*(NSTAMP-2)}]")
        A("s_waitcnt vmcnt(0) lgkmcnt(0)")
        A("s_memrealtime s[96:97]")
        A(f"s_memtime s[{60+2*(NSTAMP-1)}:{61+2*(NSTAMP-1)}]")
        A("s_mov_b64 exec, -1")
        A("v_lshrrev_b32 v1, 6, v0")
        A("s_lshl_b32 s98, s2, 3")
        A("v_add_u32 v1, s98, v1")
        A("v_lshlrev_b32 v1, 7, v1")
        A(f"v_add_u32 v1, {WS_STAMP + kidx * 0x200000}, v1")
        A("s_waitcnt lgkmcnt(0)")
        A("v_mov_b32 v2, s94")
        A("v_mov_b32 v3, s95")
        A("v_mov_b32 v4, s96")
        A("v_mov_b32 v5, s97")
        A("global_store_dwordx4 v1, v[2:5], s[32:33]")
        for i in range(0, NSTAMP, 2):
            for j in range(4):
                A(f"v_mov_b32 v{2+j}, s{60+2*i+j}")
            A(f"global_store_dwordx4 v1, v[2:5], s[32:33] offset:{16+8*i}")
    A("s_endpgm")


def fbits(x):
    return struct.unpack("<I", struct.pack("<f", x))[0]


LOG2E = 1.4426950408889634
L2E_HI = fbits(LOG2E)
L2E_HI_F = struct.unpack("<f", struct.pack("<I", L2E_HI))[0]
L2E_LO = fbits(LOG2E - L2E_HI_F)
LN2 = fbits(0.6931471805599453)
INV2PI = fbits(0.15915494309189535)
INV640 = fbits(1.0 / 640.0)
EPS = fbits(1e-5)
ONE_LO = 0x00003f80
ONE_HI = 0x3f800000


def vr(a, n):
    return f"v[{a}:{a+n-1}]"


def bf16_round(A, reg):
    A(f"v_cvt_pk_bf16_f32 v{reg}, v{reg}, v{reg}")
    A(f"v_and_b32 v{reg}, 0xffff0000, v{reg}")


def exp_bf16(A, dst, src, t0, t1):
    A(f"v_mul_f32 v{t0}, s90, v{src}")
    A(f"v_fma_f32 v{t1}, v{src}, s90, -v{t0}")
    A(f"v_fma_f32 v{t1}, v{src}, s91, v{t1}")
    A(f"v_exp_f32 v{dst}, v{t0}")
    A(f"v_mul_f32 v{t1}, s92, v{t1}")
    A(f"v_fma_f32 v{dst}, v{dst}, v{t1}, v{dst}")
    bf16_round(A, dst)


def cmul(A, d, a, b):
    A(f"v_pk_mul_f32 {vr(d,2)}, {vr(a,2)}, {vr(b,2)} op_sel:[0,0] op_sel_hi:[0,1]")
    A(f"v_pk_fma_f32 {vr(d,2)}, {vr(a,2)}, {vr(b,2)}, {vr(d,2)} op_sel:[1,1,0] op_sel_hi:[1,0,1] neg_lo:[0,1,0]")


def ln_finish(A, s1, s2, t):
    A(f"v_mul_f32 v{s1}, {INV640}, v{s1}")
    A(f"v_mul_f32 v{s2}, {INV640}, v{s2}")
    A(f"v_fma_f32 v{s2}, -v{s1}, v{s1}, v{s2}")
    A(f"v_max_f32 v{s2}, 0, v{s2}")
    A(f"v_cvt_pk_bf16_f32 v{t}, v{s1}, v{s2}")
    A(f"v_lshlrev_b32 v{s1}, 16, v{t}")
    A(f"v_and_b32 v{s2}, 0xffff0000, v{t}")
    A(f"v_add_f32 v{s2}, {EPS}, v{s2}")
    bf16_round(A, s2)
    A(f"v_sqrt_f32 v{s2}, v{s2}")
    bf16_round(A, s2)
    A(f"v_rcp_f32 v{s2}, v{s2}")


def pair_swizzle(A, dst, src, tmp):
    A(f"s_and_b32 s{dst}, s{src}, 7")
    A(f"s_lshl_b32 s{dst}, s{dst}, 1")
    A(f"s_bfe_u32 s{tmp}, s{src}, 0x10003")
    A(f"s_or_b32 s{dst}, s{dst}, s{tmp}")
    A(f"s_andn2_b32 s{tmp}, s{src}, 15")
    A(f"s_or_b32 s{dst}, s{dst}, s{tmp}")


def wt_role(A, pfx, first_wg, nwaves_per_wg, lds_per_wave, it_lo, it_hi, kidx, opt, stride):
    A.label(f"{pfx}_WTR")
    A("s_load_dwordx4 s[16:19], s[0:1], 72")
    A("s_load_dwordx2 s[20:21], s[0:1], 88")
    A("v_lshrrev_b32 v1, 6, v0")
    A("v_readfirstlane_b32 s3, v1")
    A("v_and_b32 v2, 63, v0")
    A(f"s_sub_u32 s4, s2, {first_wg}")
    A(f"s_mul_i32 s4, s4, {nwaves_per_wg}")
    A("s_add_u32 s4, s4, s3")
    A(f"s_add_u32 s4, s4, {it_lo}")
    A(f"s_mul_i32 s5, s3, {lds_per_wave}")
    A("v_lshrrev_b32 v3, 3, v2")
    A("v_and_b32 v4, 7, v2")
    A("v_lshlrev_b32 v4, 4, v4")
    A("v_lshrrev_b32 v5, 4, v2")
    A("v_lshlrev_b32 v5, 3, v5")
    A("v_and_b32 v6, 15, v2")
    A("v_lshrrev_b32 v6, 2, v6")
    A("v_add_u32 v5, v5, v6")
    A("v_lshlrev_b32 v5, 7, v5")
    A("v_and_b32 v6, 3, v2")
    A("v_lshlrev_b32 v7, 3, v6")
    A("v_add_u32 v8, v5, v7")
    A("v_add_u32 v8, s5, v8")
    A("v_add_u32 v9, 4080, v8")
    A("v_cmp_gt_u32 vcc, 2, v6")
    A("v_cndmask_b32 v9, v9, v8, vcc")
    A("v_lshlrev_b32 v10, 4, v2")
    A("v_and_b32 v13, 15, v2")
    A("v_lshrrev_b32 v14, 3, v13")
    A("v_mul_u32_u24 v14, 24576, v14")
    A("v_and_b32 v13, 7, v13")
    A("v_lshlrev_b32 v13, 4, v13")
    A("v_add_u32 v14, v14, v13")
    A("v_lshrrev_b32 v13, 4, v2")
    A("v_lshlrev_b32 v13, 7, v13")
    A("v_add_u32 v14, v14, v13")
    A("v_mul_u32_u24 v50, 3072, v3")
    A("v_add_u32 v50, v50, v4")
    A("v_mul_u32_u24 v51, 1280, v3")
    A("v_add_u32 v51, v51, v4")
    A("s_waitcnt lgkmcnt(0)")
    A("s_mov_b32 s6, s4")
    A(f"s_cmp_ge_u32 s6, {it_hi}")
    A(f"s_cbranch_scc1 {pfx}_WT_FIN")
    A.label(f"{pfx}_WT_LOOP")
    A("s_cmp_ge_u32 s6, 480")
    A(f"s_cbranch_scc1 {pfx}_WT_DOWN")
    A("s_mul_hi_u32 s7, s6, 0xccccccd")
    A("s_mul_i32 s8, s7, 20")
    A("s_sub_u32 s8, s6, s8")
    A("s_mul_i32 s9, s8, 98304")
    A("s_lshl_b32 s10, s7, 7")
    A("s_add_u32 s9, s9, s10")
    A("v_add_u32 v11, s9, v50")
    for j in range(4):
        A(f"s_add_u32 s10, s5, {1024*j}")
        A("s_mov_b32 m0, s10")
        A("global_load_lds_dwordx4 v11, s[16:17]")
        A(f"s_add_u32 s10, s5, {4096 + 1024*j}")
        A("s_mov_b32 m0, s10")
        A("global_load_lds_dwordx4 v11, s[18:19]")
        if j < 3:
            A("v_add_u32 v11, 24576, v11")
    A("s_mul_i32 s9, s7, 163840")
    A("s_lshl_b32 s10, s8, 10")
    A("s_add_u32 s9, s9, s10")
    A(f"s_add_u32 s9, s9, {WS_WGU}")
    A("v_add_u32 v12, s9, v10")
    A("s_waitcnt vmcnt(0)")
    for jj in range(8):
        A(f"ds_read_b64_tr_b16 {vr(16+4*jj,2)}, v9 offset:{16*jj}")
        A(f"ds_read_b64_tr_b16 {vr(18+4*jj,2)}, v9 offset:{16*jj + 512}")
    A("s_waitcnt lgkmcnt(0)")
    for jj in range(8):
        A(f"global_store_dwordx4 v12, {vr(16+4*jj,4)}, s[32:33] {opt}")
        if jj < 7:
            A("v_add_u32 v12, 20480, v12")
    A(f"s_branch {pfx}_WT_NEXT")
    A.label(f"{pfx}_WT_DOWN")
    A("s_sub_u32 s11, s6, 480")
    A("s_mul_hi_u32 s7, s11, 0x5555556")
    A("s_mul_i32 s8, s7, 48")
    A("s_sub_u32 s8, s11, s8")
    A("s_mul_i32 s9, s8, 40960")
    A("s_lshl_b32 s10, s7, 7")
    A("s_add_u32 s9, s9, s10")
    A("v_add_u32 v11, s9, v51")
    for j in range(4):
        A(f"s_add_u32 s10, s5, {1024*j}")
        A("s_mov_b32 m0, s10")
        A("global_load_lds_dwordx4 v11, s[20:21]")
        if j < 3:
            A("v_add_u32 v11, 10240, v11")
    A("s_mul_i32 s9, s7, 196608")
    A("s_lshl_b32 s10, s8, 9")
    A("s_add_u32 s9, s9, s10")
    A(f"s_add_u32 s9, s9, {WS_WD}")
    A("v_add_u32 v12, s9, v14")
    A("s_waitcnt vmcnt(0)")
    for jj in range(4):
        A(f"ds_read_b64_tr_b16 {vr(16+4*jj,2)}, v8 offset:{32*jj}")
        A(f"ds_read_b64_tr_b16 {vr(18+4*jj,2)}, v8 offset:{32*jj + 512}")
    A("s_waitcnt lgkmcnt(0)")
    for jj in range(4):
        A(f"global_store_dwordx4 v12, {vr(16+4*jj,4)}, s[32:33] {opt}")
        if jj < 3:
            A("v_add_u32 v12, 49152, v12")
    A.label(f"{pfx}_WT_NEXT")
    A(f"s_add_u32 s6, s6, {stride}")
    A(f"s_cmp_lt_u32 s6, {it_hi}")
    A(f"s_cbranch_scc1 {pfx}_WT_LOOP")
    A.label(f"{pfx}_WT_FIN")
    k_end(A, kidx)


K1_ROWB = 288
K1_BUF = 16 * K1_ROWB
K1_LDS = 3 * 2 * K1_BUF
K1_WT, K1_KG, K1_LN = 0, 640, 256
WT_OPT = [""]
CODE_PF = [0]


def cmul_batch(A, items):
    for d, a, b in items:
        A(f"v_pk_mul_f32 {vr(d,2)}, {vr(a,2)}, {vr(b,2)} op_sel:[0,0] op_sel_hi:[0,1]")
    for d, a, b in items:
        A(f"v_pk_fma_f32 {vr(d,2)}, {vr(a,2)}, {vr(b,2)}, {vr(d,2)} op_sel:[1,1,0] op_sel_hi:[1,0,1] neg_lo:[0,1,0]")


def k1(A):
    A(f"s_cmp_ge_u32 s2, {K1_WT + K1_KG + K1_LN}")
    A("s_cbranch_scc1 K1_END")
    k_begin(A)
    A("s_load_dwordx2 s[32:33], s[0:1], 112")
    A("s_load_dwordx16 s[16:31], s[0:1], 0")
    A(f"s_cmp_ge_u32 s2, {K1_WT + K1_KG}")
    A("s_cbranch_scc1 K1_LN")
    A(f"s_sub_u32 s35, s2, {K1_WT}")
    A("s_and_b32 s4, s35, 7")
    A("s_lshl_b32 s4, s4, 3")
    A("s_bfe_u32 s5, s35, 0x10005")
    A("s_lshl_b32 s5, s5, 2")
    A("s_or_b32 s4, s4, s5")
    A("s_lshr_b32 s5, s35, 6")
    A("s_lshl_b32 s5, s5, 6")
    A("s_or_b32 s4, s4, s5")
    A("s_bfe_u32 s5, s35, 0x20003")
    A("s_or_b32 s34, s4, s5")
    A("v_lshrrev_b32 v1, 6, v0")
    A("v_readfirstlane_b32 s3, v1")
    A("v_and_b32 v2, 63, v0")
    A(f"s_mov_b32 s90, {L2E_HI}")
    A(f"s_mov_b32 s91, {L2E_LO}")
    A(f"s_mov_b32 s92, {LN2}")
    A("s_mul_i32 s4, s34, 384")
    A("s_lshr_b32 s5, s34, 1")
    A("s_lshl_b32 s5, s5, 2")
    A("v_lshlrev_b32 v1, 1, v0")
    A("v_add_u32 v1, s4, v1")
    A("v_lshlrev_b32 v3, 1, v2")
    A("v_add_u32 v3, s4, v3")
    A("s_waitcnt lgkmcnt(0)")
    A("s_load_dword s6, s[26:27], s5")
    A("global_load_ushort v10, v1, s[18:19]")
    A("global_load_ushort v11, v1, s[20:21]")
    A("global_load_ushort v12, v1, s[22:23]")
    A("global_load_ushort v13, v1, s[24:25]")
    for i in range(3):
        A(f"global_load_ushort v{14+i}, v3, s[22:23] offset:{128*i}")
        A(f"global_load_ushort v{17+i}, v3, s[24:25] offset:{128*i}")
    A("v_and_b32 v3, 15, v2")
    A("v_lshrrev_b32 v4, 4, v2")
    A("s_cmp_eq_u32 s3, 1")
    A("s_cbranch_scc1 K1_A1")
    A("s_cmp_eq_u32 s3, 2")
    A("s_cbranch_scc1 K1_A2")
    A("v_lshrrev_b32 v5, 1, v4")
    A("v_lshlrev_b32 v5, 7, v5")
    A("v_lshl_add_u32 v5, v3, 3, v5")
    A("v_and_b32 v6, 1, v4")
    A("v_lshl_add_u32 v5, v6, 2, v5")
    A("s_branch K1_A3")
    A.label("K1_A1")
    A("v_lshlrev_b32 v5, 1, v3")
    A("v_add_u32 v5, v5, v4")
    A("v_add_u32 v5, 384, v5")
    A("v_lshlrev_b32 v6, 4, v4")
    A("v_add_u32 v6, v6, v3")
    A("v_add_u32 v6, 480, v6")
    A("v_cmp_gt_u32 vcc, 2, v4")
    A("v_cndmask_b32 v5, v6, v5, vcc")
    A("s_branch K1_A3")
    A.label("K1_A2")
    A("v_lshlrev_b32 v5, 6, v4")
    A("v_lshlrev_b32 v6, 2, v3")
    A("v_add_u32 v5, v5, v6")
    A("v_add_u32 v5, 256, v5")
    A("v_lshlrev_b32 v6, 2, v2")
    A("v_add_u32 v6, 520, v6")
    A("v_cmp_gt_u32 vcc, 2, v4")
    A("v_cndmask_b32 v5, v6, v5, vcc")
    A("v_mov_b32 v6, 640")
    A("v_cmp_eq_u32 vcc, 32, v2")
    A("v_cndmask_b32 v5, v5, v6, vcc")
    A.label("K1_A3")
    A("s_lshl_b32 s11, s34, 11")
    A(f"s_add_u32 s11, s11, {WS_KD}")
    A("v_lshlrev_b32 v29, 1, v5")
    A("v_add_u32 v29, s11, v29")
    A(f"s_mul_i32 s7, s3, {2*K1_BUF}")
    A(f"v_mul_u32_u24 v32, {K1_ROWB}, v3")
    A("v_lshlrev_b32 v5, 4, v4")
    A("v_add_u32 v32, v32, v5")
    A("v_add_u32 v32, s7, v32")
    AW = 120
    A("v_lshlrev_b32 v5, 2, v2")
    A(f"v_add_u32 v{AW}, s7, v5")
    for k in range(1, 8):
        A(f"v_add_u32 v{AW+k}, {(k//4)*K1_BUF + (k%4)*4*K1_ROWB}, v{AW}")
    stamp(A, 1)
    A("s_waitcnt lgkmcnt(0)")
    A("s_bitcmp1_b32 s34, 0")
    A("s_cbranch_scc1 K1_ODD")
    A("s_lshl_b32 s6, s6, 16")
    A.label("K1_ODD")
    A("s_and_b32 s6, s6, 0xffff0000")
    A("v_mov_b32 v5, s6")
    exp_bf16(A, 33, 5, 6, 7)
    A("s_waitcnt vmcnt(0)")
    stamp(A, 2)
    for i in range(6):
        A(f"v_and_b32 v{14+i}, 0x7fff, v{14+i}")
    A("v_max3_u32 v14, v14, v15, v16")
    A("v_max3_u32 v17, v17, v18, v19")
    A("v_max_u32 v14, v14, v17")
    A("v_lshlrev_b32 v10, 16, v10")
    A("v_lshlrev_b32 v11, 16, v11")
    A("v_mul_f32 v6, s90, v10")
    A("v_max_u32_dpp v14, v14, v14 row_shr:1 row_mask:0xf bank_mask:0xf")
    A("v_fma_f32 v7, v10, s90, -v6")
    A("v_exp_f32 v34, v6")
    A("v_max_u32_dpp v14, v14, v14 row_shr:2 row_mask:0xf bank_mask:0xf")
    A("v_fma_f32 v7, v10, s91, v7")
    A("v_mul_f32 v35, v11, v33")
    A("v_max_u32_dpp v14, v14, v14 row_shr:4 row_mask:0xf bank_mask:0xf")
    A("v_mul_f32 v7, s92, v7")
    A(f"v_mul_f32 v35, {INV2PI}, v35")
    A("v_max_u32_dpp v14, v14, v14 row_shr:8 row_mask:0xf bank_mask:0xf")
    A("v_fma_f32 v34, v34, v7, v34")
    A("v_lshlrev_b32 v12, 16, v12")
    A("v_max_u32_dpp v14, v14, v14 row_bcast:15 row_mask:0xa bank_mask:0xf")
    A("v_cvt_pk_bf16_f32 v34, v34, v34")
    A("v_lshlrev_b32 v13, 16, v13")
    A("v_max_u32_dpp v14, v14, v14 row_bcast:31 row_mask:0xc bank_mask:0xf")
    A("v_and_b32 v34, 0xffff0000, v34")
    A("v_mul_f32 v34, v34, v33")
    A("v_readlane_b32 s8, v14, 63")
    A("v_mul_f32 v34, s90, v34")
    A("v_sub_f32 v34, 0, v34")
    A("s_lshr_b32 s8, s8, 7")
    A("s_max_u32 s8, s8, 6")
    A("s_min_u32 s8, s8, 253")
    A("s_sub_u32 s9, 260, s8")
    A("s_lshl_b32 s9, s9, 23")
    A("s_sub_u32 s10, s8, 132")

    def direct(t, p):
        lit = "1.0" if p == 1 else hex(fbits(float(p)))
        A(f"v_mul_f32 v{t}, {lit}, v34")
        A(f"v_mul_f32 v{t+1}, {lit}, v35")
        A(f"v_fract_f32 v{t+1}, v{t+1}")

    def direct2(t):
        A(f"v_exp_f32 v{t}, v{t}")
        A(f"v_cos_f32 v{t+2}, v{t+1}")
        A(f"v_sin_f32 v{t+3}, v{t+1}")

    def direct_fin(d, t):
        A(f"v_mul_f32 v{d}, v{t}, v{t+2}")
        A(f"v_mul_f32 v{d+1}, v{t}, v{t+3}")

    C = 36
    g = {i: 38 + 2 * (i - 1) for i in range(1, 9)}
    G128, G256, G512, G1024 = 54, 56, 58, 60
    T = [62, 64, 66, 68, 70, 72, 74, 76]
    PK = list(range(78, 86))
    BF, AF = 86, 102
    h = {1: g[8]}
    for i in range(2, 9):
        h[i] = AF + 2 * (i - 2)
    AF2 = 4
    ACC = [20, 24, 118 - 94]
    ACC = [20, 24, 28 - 0]
    ACC = [20, 24, 114 + 0]
    ACC = [20, 24, 0]
    ACC = [20, 24, 4]
    AF2 = 62

    direct(62, 1)
    direct(66, 8)
    direct(70, 128)
    direct2(62)
    direct2(66)
    direct2(70)
    A(f"v_mul_f32 v{C}, s9, v12")
    A(f"v_mul_f32 v{C+1}, s9, v13")
    A("v_ldexp_f32 v6, v33, s10")
    A("s_lshl_b32 s11, s34, 2")
    A(f"s_add_u32 s11, s11, {WS_SC}")
    A("v_mov_b32 v7, s11")
    A("global_store_dword v7, v6, s[32:33]")
    direct_fin(g[1], 62)
    direct_fin(g[8], 66)
    direct_fin(G128, 70)
    stamp(A, 3)

    def wr(rows_src, buf, neg):
        regs = []
        for k, (row, src) in enumerate(rows_src):
            p = PK[k % 8]
            if src is None:
                A(f"v_mov_b32 v{p}, 0x00003c00")
            else:
                A(f"v_cvt_pk_f16_f32 v{p}, v{src}, {'-' if neg else ''}v{src+1}")
            regs.append(p)
        k = 0
        n = 0
        while k < len(rows_src):
            r0 = rows_src[k][0]
            if k + 1 < len(rows_src) and rows_src[k + 1][0] // 4 == r0 // 4:
                r1 = rows_src[k + 1][0]
                A(f"ds_write2_b32 v{AW + 4*buf + r0//4}, v{regs[k]}, v{regs[k+1]} offset0:{(r0%4)*72} offset1:{(r1%4)*72}")
                k += 2
            else:
                A(f"ds_write_b32 v{AW + 4*buf + r0//4}, v{regs[k]} offset:{(r0%4)*K1_ROWB}")
                k += 1
            n += 1
        return n

    def frags(dst, buf):
        for j in range(4):
            A(f"ds_read_b128 {vr(dst+4*j,4)}, v32 offset:{buf*K1_BUF + 64*j}")

    def mfmas(acc, a, b):
        for j in range(4):
            A(f"v_mfma_f32_16x16x32_f16 {vr(acc,4)}, {vr(a+4*j,4)}, {vr(b+4*j,4)}, {vr(acc,4)}")

    cmul_batch(A, [(g[2], g[1], g[1]), (h[2], h[1], h[1]), (G256, G128, G128)])
    cmul_batch(A, [(g[3], g[2], g[1]), (g[4], g[2], g[2]), (h[3], h[2], h[1]), (h[4], h[2], h[2]), (G512, G256, G256)])
    cmul_batch(A, [(g[5], g[4], g[1]), (g[6], g[4], g[2]), (g[7], g[4], g[3]), (h[5], h[4], h[1]), (h[6], h[4], h[2]),
                   (h[7], h[4], h[3]), (h[8], h[4], h[4]), (G1024, G512, G512)])
    for i in range(4):
        A(f"v_mov_b32 v{20+i}, 0")
        A(f"v_mov_b32 v{24+i}, 0")
        A(f"v_mov_b32 v{4+i}, 0")
    wr([(0, None)] + [(i, h[i]) for i in range(1, 8)], 0, False)
    cmul_batch(A, [(T[i - 1], h[8], h[i]) for i in range(1, 8)])
    wr([(8, h[8])] + [(8 + i, T[i - 1]) for i in range(1, 8)], 0, False)
    frags(BF, 0)
    stamp(A, 4)
    c128 = T[7]
    cmul_batch(A, [(T[i - 1], C, g[i]) for i in range(1, 8)] + [(c128, C, G128)])
    wr([(0, C)] + [(i, T[i - 1]) for i in range(1, 8)], 1, True)
    cmul_batch(A, [(T[i - 1], c128, g[i]) for i in range(1, 8)])
    wr([(8, c128)] + [(8 + i, T[i - 1]) for i in range(1, 8)], 1, True)
    frags(AF, 1)
    cmul_batch(A, [(T[0], C, G512), (T[4], C, G1024)])
    cmul_batch(A, [(T[1], T[0], G128), (T[2], T[0], G256), (T[5], T[4], G256), (T[6], T[4], G512)])
    cmul_batch(A, [(T[3], T[2], G128), (T[7], T[6], G256)])
    n1 = wr([(i, T[i]) for i in range(4)] + [(8 + i, T[4 + i]) for i in range(4)], 0, True)
    c2048 = g[1]
    cmul_batch(A, [(c2048, T[4], G1024)])
    cmul_batch(A, [(T[i], T[i], g[4]) for i in range(0)])
    D4 = [g[3], g[5], g[7], g[8]]
    cmul_batch(A, [(D4[i], T[i], g[4]) for i in range(4)])
    A("s_waitcnt lgkmcnt(%d)" % n1)
    mfmas(20, AF, BF)
    cmul_batch(A, [(T[i], T[4 + i], G128) for i in range(4)])
    wr([(4 + i, D4[i]) for i in range(4)] + [(12 + i, T[i]) for i in range(4)], 0, True)
    frags(AF, 0)
    stamp(A, 5)
    cmul_batch(A, [(T[0], C, G256)])
    cmul_batch(A, [(T[4], T[0], G128), (T[1], T[0], g[2]), (T[2], T[0], g[4]), (T[3], T[0], g[6])])
    cmul_batch(A, [(T[5], T[4], g[2]), (T[6], T[4], g[4]), (T[7], T[4], g[6])])
    n2 = wr([(i, T[i]) for i in range(8)], 1, True)
    n2 += wr([(8, c2048)], 1, True)
    A("s_waitcnt lgkmcnt(%d)" % n2)
    mfmas(24, AF, BF)
    frags(AF2, 1)
    A("s_waitcnt lgkmcnt(0)")
    mfmas(4, AF2, BF)
    A("v_lshlrev_b32 v28, 4, v2")
    A("v_add_u32 v30, s7, v28")
    for t, r in enumerate((20, 24, 4)):
        A(f"ds_write_b128 v30, {vr(r,4)} offset:{1024*t}")
    stamp(A, 6)
    A("s_lshl_b32 s11, s3, 10")
    A("v_add_u32 v28, s11, v28")
    A("s_waitcnt lgkmcnt(0)")
    A("s_barrier")
    stamp(A, 7)
    for w in range(3):
        A(f"ds_read_b128 {vr(40+4*w,4)}, v28 offset:{2*K1_BUF*w}")
    A("s_waitcnt lgkmcnt(0)")
    for i in range(4):
        A(f"v_add_f32 v{40+i}, v{40+i}, v{44+i}")
    for i in range(4):
        A(f"v_add_f32 v{40+i}, v{40+i}, v{48+i}")
    A("v_cvt_pk_f16_f32 v40, v40, v41")
    A("v_cvt_pk_f16_f32 v41, v42, v43")
    A("s_cmp_eq_u32 s3, 1")
    A("s_cbranch_scc1 K1_S1")
    A("global_store_dwordx2 v29, v[40:41], s[32:33]")
    k_end(A, 0)
    A.label("K1_S1")
    A("global_store_short v29, v40, s[32:33]")
    A("global_store_short_d16_hi v29, v40, s[32:33] offset:64")
    A("global_store_short v29, v41, s[32:33] offset:128")
    A("global_store_short_d16_hi v29, v41, s[32:33] offset:192")
    k_end(A, 0)

    A.label("K1_LN")
    if CODE_PF[0]:
        A(f"s_cmp_ge_u32 s2, {K1_WT + K1_KG + 16}")
        A("s_cbranch_scc1 K1_NOPF")
        A("s_getpc_b64 s[40:41]")
        A.label("K1_PC")
        A("s_add_u32 s40, s40, k2_kernel-K1_PC")
        A("s_addc_u32 s41, s41, 0")
        A("v_lshlrev_b32 v90, 4, v0")
        for i in range(CODE_PF[0]):
            A(f"global_load_dwordx4 v[92:95], v90, s[40:41]")
            A("v_add_u32 v90, 3072, v90")
        A.label("K1_NOPF")
    A("v_lshrrev_b32 v1, 6, v0")
    A("v_readfirstlane_b32 s3, v1")
    A(f"s_sub_u32 s5, s2, {K1_WT + K1_KG}")
    pair_swizzle(A, 4, 5, 6)
    A("s_mul_i32 s5, s4, 10240")
    A("v_min_u32 v2, 159, v0")
    A("v_lshlrev_b32 v3, 3, v2")
    A("v_add_u32 v3, s5, v3")
    A("v_add_u32 v4, 5120, v3")
    A("v_lshrrev_b32 v5, 4, v0")
    A("v_mul_u32_u24 v6, 1280, v5")
    A("v_and_b32 v7, 15, v0")
    A("v_lshlrev_b32 v7, 4, v7")
    A("v_add_u32 v6, v6, v7")
    A("v_add_u32 v6, s5, v6")
    A("s_waitcnt lgkmcnt(0)")
    A("s_cmp_eq_u32 s3, 2")
    A("s_cbranch_scc1 K1_LNB")
    for i in range(5):
        A(f"global_load_dwordx4 {vr(8+4*i,4)}, v6, s[16:17] offset:{256*i}")
    A.label("K1_LNB")
    for r in range(8):
        A(f"global_load_dwordx2 {vr(40+2*r,2)}, v{3 if r < 4 else 4}, s[16:17] offset:{1280*(r%4)}")
    A(f"v_mov_b32 v34, {ONE_LO}")
    A(f"v_mov_b32 v35, {ONE_HI}")
    A("s_cmp_eq_u32 s3, 2")
    A("s_cbranch_scc1 K1_LNBAR")
    A("v_mov_b32 v30, 0")
    A("v_mov_b32 v31, 0")
    A("v_mov_b32 v36, 0")
    A("v_mov_b32 v37, 0")
    A("v_mov_b32 v32, 0x3f803f80")
    A("s_waitcnt vmcnt(8)")
    for i in range(0, 20, 2):
        A(f"v_dot2c_f32_bf16 v30, v{8+i}, v32")
        A(f"v_dot2c_f32_bf16 v31, v{8+i}, v{8+i}")
        A(f"v_dot2c_f32_bf16 v36, v{9+i}, v32")
        A(f"v_dot2c_f32_bf16 v37, v{9+i}, v{9+i}")
    A("s_nop 2")
    A("v_add_f32 v30, v30, v36")
    A("v_add_f32 v31, v31, v37")
    for sh in (8, 4, 2, 1):
        A(f"v_add_f32_dpp v30, v30, v30 row_ror:{sh} row_mask:0xf bank_mask:0xf")
        A(f"v_add_f32_dpp v31, v31, v31 row_ror:{sh} row_mask:0xf bank_mask:0xf")
    ln_finish(A, 30, 31, 33)
    A("v_sub_f32 v30, 0, v30")
    A("v_lshlrev_b32 v5, 3, v5")
    A("ds_write_b64 v5, v[30:31]")
    A.label("K1_LNBAR")
    stamp(A, 2)
    A("s_waitcnt lgkmcnt(0)")
    A("s_barrier")
    stamp(A, 3)
    A("v_mov_b32 v5, 0")
    for i in range(4):
        A(f"ds_read_b128 {vr(8+4*i,4)}, v5 offset:{16*i}")
    A("v_lshlrev_b32 v3, 14, v2")
    A("s_lshl_b32 s5, s4, 6")
    A("v_add_u32 v3, s5, v3")
    A("s_waitcnt vmcnt(0) lgkmcnt(0)")
    for rp in range(4):
        r0, r1 = 2 * rp, 2 * rp + 1
        tt = [76 + 3 * ch for ch in range(4)]
        for ch in range(4):
            a, b = 40 + 2 * r0 + (ch >> 1), 40 + 2 * r1 + (ch >> 1)
            one = 34 + (ch & 1)
            A(f"v_dot2_f32_bf16 v{tt[ch]}, v{a}, v{one}, v{8+2*r0}")
            A(f"v_dot2_f32_bf16 v{tt[ch]+1}, v{b}, v{one}, v{8+2*r1}")
        for ch in range(4):
            A(f"v_cvt_pk_bf16_f32 v{tt[ch]+2}, v{tt[ch]}, v{tt[ch]+1}")
        for ch in range(4):
            A(f"v_lshlrev_b32 v{tt[ch]}, 16, v{tt[ch]+2}")
            A(f"v_and_b32 v{tt[ch]+1}, 0xffff0000, v{tt[ch]+2}")
        for ch in range(4):
            A(f"v_mul_f32 v{tt[ch]}, v{tt[ch]}, v{9+2*r0}")
            A(f"v_mul_f32 v{tt[ch]+1}, v{tt[ch]+1}, v{9+2*r1}")
        for ch in range(4):
            A(f"v_cvt_pk_bf16_f32 v{tt[ch]+2}, v{tt[ch]}, v{tt[ch]+1}")
        for ch in range(4):
            A(f"v_lshlrev_b32 v{tt[ch]}, 16, v{tt[ch]+2}")
            A(f"v_and_b32 v{tt[ch]+1}, 0xffff0000, v{tt[ch]+2}")
        for ch in range(4):
            A(f"v_cvt_pk_f16_f32 v{60+4*ch+rp}, v{tt[ch]}, v{tt[ch]+1}")
    stamp(A, 4)
    for ch in range(4):
        A(f"global_store_dwordx4 v3, {vr(60+4*ch,4)}, s[32:33] offset:{16*ch} {ST_OPT[0]}")
    k_end(A, 0)

    A.label("K1_END")
    A("s_endpgm")


K2_KE, K2_KO, K2_U, K2_T = 0, 4160, 8320, 12928
K2_WB = 15168
K2_LDS = 4 * K2_WB
K2_NWT = 96
K2_WT_RANGE = [0, 960]


def k2(A):
    A(f"s_cmp_ge_u32 s2, {160 + K2_NWT}")
    A("s_cbranch_scc1 K2_END")
    k_begin(A)
    A("s_load_dwordx2 s[32:33], s[0:1], 112")
    A("s_load_dwordx2 s[28:29], s[0:1], 48")
    A("s_cmp_ge_u32 s2, 160")
    A("s_cbranch_scc1 K2_WTR")
    pair_swizzle(A, 35, 2, 6)
    A("v_lshrrev_b32 v1, 6, v0")
    A("v_readfirstlane_b32 s3, v1")
    A("v_and_b32 v2, 63, v0")
    A("s_lshl_b32 s4, s35, 2")
    A("s_add_u32 s4, s4, s3")
    A(f"s_mul_i32 s5, s3, {K2_WB}")
    A("s_lshl_b32 s6, s4, 11")
    A(f"s_add_u32 s6, s6, {WS_KD}")
    A("s_lshl_b32 s7, s35, 14")
    A("s_lshl_b32 s8, s3, 4")
    A("s_add_u32 s7, s7, s8")
    A("v_lshlrev_b32 v3, 4, v2")
    A("v_add_u32 v3, s6, v3")
    A("v_lshlrev_b32 v5, 6, v2")
    A("v_add_u32 v5, s7, v5")
    A("s_lshl_b32 s9, s4, 2")
    A(f"s_add_u32 s9, s9, {WS_SC}")
    A("s_lshr_b32 s14, s4, 1")
    A("s_lshl_b32 s14, s14, 2")
    A(f"s_add_u32 s12, s5, {K2_T}")
    A("s_mov_b32 m0, s12")
    A("s_waitcnt lgkmcnt(0)")
    stamp(A, 1)
    A("global_load_lds_dwordx4 v3, s[32:33]")
    A("global_load_lds_dwordx4 v3, s[32:33] offset:1024")
    for j in range(4):
        A(f"s_add_u32 s12, s5, {K2_U + 512 + 1024*j}")
        A("s_mov_b32 m0, s12")
        if j:
            A("v_add_u32 v5, 4096, v5")
        A("global_load_lds_dwordx4 v5, s[32:33]")
    A("s_load_dword s10, s[32:33], s9")
    A("s_load_dword s11, s[28:29], s14")
    A("v_and_b32 v6, 15, v2")
    A("v_lshrrev_b32 v7, 4, v2")
    A("v_lshrrev_b32 v8, 1, v7")
    A("v_and_b32 v9, 1, v7")
    A("v_mov_b32 v12, 0")
    A("v_mov_b32 v13, 0")
    A("v_lshlrev_b32 v14, 3, v2")
    A("v_add_u32 v14, s5, v14")
    A(f"ds_write_b64 v14, v[12:13] offset:{K2_U}")
    A("v_lshlrev_b32 v14, 2, v6")
    A("v_add_u32 v14, s5, v14")
    A(f"ds_write_b32 v14, v12 offset:{K2_KE + 4096}")
    A(f"ds_write_b32 v14, v12 offset:{K2_KO + 4096}")
    A("v_sub_u32 v14, 2047, v6")
    A("v_lshlrev_b32 v15, 4, v8")
    A("v_sub_u32 v14, v14, v15")
    A("v_lshlrev_b32 v15, 3, v9")
    A("v_add_u32 v14, v14, v15")
    A("v_lshlrev_b32 v14, 1, v14")
    A(f"v_add_u32 v15, {K2_KO - 2}, v14")
    A("v_and_b32 v16, 1, v6")
    A("v_cmp_eq_u32 vcc, 1, v16")
    A("v_cndmask_b32 v14, v15, v14, vcc")
    A("v_add_u32 v14, s5, v14")
    AB = [20, 21, 22, 23]
    for p in range(4):
        A(f"v_subrev_u32 v{AB[p]}, {512*(2*p+1) + 448}, v14")
    A("v_lshlrev_b32 v15, 5, v6")
    A("v_lshlrev_b32 v16, 5, v8")
    A("v_sub_u32 v15, v15, v16")
    A("v_lshlrev_b32 v16, 4, v9")
    A("v_add_u32 v15, v15, v16")
    A(f"v_add_u32 v15, {K2_U + 512 - 448}, v15")
    BB = 24
    A(f"v_add_u32 v{BB}, s5, v15")
    A("v_lshlrev_b32 v15, 5, v6")
    A("v_lshlrev_b32 v16, 3, v7")
    A("v_add_u32 v15, v15, v16")
    A("v_add_u32 v25, s5, v15")
    A("v_lshlrev_b32 v26, 1, v2")
    A(f"v_sub_u32 v26, {K2_T + 2*(384+255)}, v26")
    A("v_add_u32 v26, s5, v26")
    A("v_lshlrev_b32 v27, 2, v2")
    A(f"v_sub_u32 v27, {K2_T + 512 + 4*127}, v27")
    A("v_add_u32 v27, s5, v27")
    A("v_lshlrev_b32 v28, 4, v2")
    A("v_add_u32 v28, s5, v28")
    A("v_lshlrev_b32 v3, 3, v2")
    A("v_sub_u32 v3, 511, v3")
    for k in range(9):
        A(f"v_subrev_u32 v{30+k}, {k}, v3")
    A("v_max_i32 v38, 0, v38")
    for k in range(9):
        A(f"v_cvt_f32_i32 v{40+k}, v{30+k}")
    for k in range(0, 8, 2):
        A(f"v_cvt_pk_bf16_f32 v{50+k}, v{40+k}, v{41+k}")
        A(f"v_lshrrev_b32 v{51+k}, 16, v{50+k}")
        A(f"v_and_b32 v{50+k}, 0xffff, v{50+k}")
    A("v_cvt_pk_bf16_f32 v58, v48, v48")
    A("v_and_b32 v58, 0xffff, v58")
    A(f"s_add_u32 s12, s5, {K2_T}")
    for k in range(9):
        A(f"v_subrev_u32 v{50+k}, 17024, v{50+k}")
        A(f"v_min_i32 v{30+k}, 127, v{30+k}")
        A(f"v_max_i32 v{50+k}, v{50+k}, v{30+k}")
        A(f"v_lshlrev_b32 v{30+k}, 1, v{50+k}")
        A(f"v_add_u32 v{30+k}, s12, v{30+k}")
    A("v_and_b32 v16, 1, v2")
    A("v_cmp_eq_u32 s[20:21], 1, v16")
    A("s_mov_b32 s22, 0x01000100")
    A("s_mov_b32 s23, 0x03020302")
    AF, BF, ACC = 64, 96, 128
    for i in range(32):
        A(f"v_mov_b32 v{ACC+i}, 0")
    A("s_waitcnt vmcnt(4)")
    stamp(A, 2)
    A("v_subrev_u32 v29, 128, v26")
    for r in range(2):
        w = 40 + 8 * r
        A(f"ds_read_u16 v{w}, v{26 if r == 0 else 29}")
        A(f"ds_read_u16 v{w+1}, v{26 if r == 0 else 29} offset:2")
    A("ds_read_b32 v56, v27")
    A("ds_read_u16 v57, v27 offset:4")
    for k in range(9):
        A(f"ds_read_u16 v{100+k}, v{30+k}")
    A("s_waitcnt lgkmcnt(0)")
    for k in range(4):
        A(f"v_lshl_or_b32 v{60+k}, v{101+2*k}, 16, v{100+2*k}")
    A("v_mov_b32 v59, v108")
    for r in range(2):
        w = 40 + 8 * r
        A(f"v_lshl_or_b32 v{w}, v{w+1}, 16, v{w}")
    for r in range(2):
        w = 40 + 8 * r
        A(f"v_perm_b32 v{w+2}, v{w}, v{w}, s23")
        A(f"v_perm_b32 v{w+4}, v{w}, v{w}, s22")
        A(f"v_alignbit_b32 v{w+1}, v{w}, v{w}, 16")
        A(f"v_mov_b32 v{w+5}, v{w+4}")
        A(f"v_mov_b32 v{w+6}, v{w+2}")
        A(f"v_cndmask_b32 v{w+3}, v{w+2}, v{w+1}, s[20:21]")
        A(f"v_cndmask_b32 v{w+7}, v{w+1}, v{w+4}, s[20:21]")
        A(f"ds_write_b64 v28, {vr(w+2,2)} offset:{K2_KE + 1024*r}")
        A(f"ds_write_b64 v28, {vr(w+4,2)} offset:{K2_KE + 1024*r + 8}")
        A(f"ds_write_b64 v28, {vr(w+6,2)} offset:{K2_KO + 1024*r}")
        A(f"ds_write_b64 v28, {vr(w+4,2)} offset:{K2_KO + 1024*r + 8}")
    A("v_perm_b32 v40, v57, v57, s22")
    A("v_perm_b32 v41, v56, v56, s23")
    A("v_alignbit_b32 v42, v56, v56, 16")
    A("v_perm_b32 v43, v56, v56, s22")
    A("s_mov_b32 s24, 0x07060100")
    A("v_perm_b32 v44, v56, v57, s24")
    A("v_mov_b32 v45, v41")
    A("v_mov_b32 v46, v43")
    A("v_mov_b32 v47, v43")
    A(f"ds_write_b128 v28, v[40:43] offset:{K2_KE + 2048}")
    A(f"ds_write_b128 v28, v[44:47] offset:{K2_KO + 2048}")
    A("v_alignbit_b32 v48, v61, v60, 16")
    A("v_alignbit_b32 v49, v62, v61, 16")
    A("v_alignbit_b32 v50, v63, v62, 16")
    A("v_alignbit_b32 v51, v59, v63, 16")
    A(f"ds_write_b128 v28, v[60:63] offset:{K2_KE + 3072}")
    A(f"ds_write_b128 v28, v[48:51] offset:{K2_KO + 3072}")
    A(f"v_mov_b32 v14, s5")
    A(f"ds_write_b16 v14, v12 offset:{K2_KO + 2*2047}")
    A("s_bitcmp1_b32 s4, 0")
    A("s_cbranch_scc1 K2_ODD")
    A("s_lshl_b32 s11, s11, 16")
    A.label("K2_ODD")
    A("s_and_b32 s11, s11, 0xffff0000")

    def loadA(q, i0):
        p = q // 2
        o = (128 if q % 2 == 0 else 0) + 16 * (7 - i0)
        return [f"ds_read2_b32 {vr(AF+4*q,2)}, v{AB[p]} offset0:{o} offset1:{o+1}",
                f"ds_read2_b32 {vr(AF+4*q+2,2)}, v{AB[p]} offset0:{o+2} offset1:{o+3}"]

    def loadB(tau, i0):
        return [f"ds_read_b128 {vr(BF+4*tau,4)}, v{BB} offset:{512*tau + 64*(7-i0)}"]

    A("s_waitcnt vmcnt(0)")
    stamp(A, 3)
    for q in range(8):
        for s in loadB(7 - q, 0):
            A(s)
    for q in range(8):
        for s in loadA(q, 0):
            A(s)
    queue = []
    for q in range(8):
        queue.append(("B", 7 - q))
    for q in range(8):
        queue += [("A", q), ("A", q)]

    pending = []

    def wait_for(tags):
        while any(tg in tags for _, tg in pending):
            s_, tg = pending.pop(0)
            A(s_)
            queue.append(tg)
        last = -1
        for i, t in enumerate(queue):
            if t in tags:
                last = i
        if last >= 0:
            n = len(queue) - 1 - last
            A(f"s_waitcnt lgkmcnt({min(n, 15)})")
            del queue[:last + 1]

    for i0 in range(8):
        for q in range(8):
            for tau in range(7 - q, -1, -1):
                wait_for({("A", q), ("B", tau)})
                t = q + tau
                A(f"v_mfma_f32_16x16x32_f16 {vr(ACC+4*t,4)}, {vr(AF+4*q,4)}, {vr(BF+4*tau,4)}, {vr(ACC+4*t,4)}")
                if i0 < 7:
                    if tau == 7 - q:
                        pending.insert(0, (loadB(7 - q, i0 + 1)[0], ("B", 7 - q)))
                    if tau == 0:
                        for s in loadA(q, i0 + 1):
                            pending.append((s, ("A", q)))
                if pending:
                    s, tag = pending.pop(0)
                    A(s)
                    queue.append(tag)
    assert not pending or True
    stamp(A, 4)
    for t in range(8):
        A(f"ds_read_b64 {vr(64+2*t,2)}, v25 offset:{K2_U + 512 + 512*t}")
    A(f"v_mov_b32 v34, {ONE_LO}")
    A(f"v_mov_b32 v35, {ONE_HI}")
    A("s_mov_b32 s12, s10")
    A("s_mov_b32 s13, s10")
    A("v_mov_b32 v36, s10")
    A("v_mov_b32 v37, s10")
    A("s_waitcnt lgkmcnt(0)")
    for t in range(8):
        a = ACC + 4 * t
        u = 64 + 2 * t
        tm = 40 + 8 * (t & 1)
        A(f"v_pk_mul_f32 {vr(a,2)}, {vr(a,2)}, v[36:37]")
        A(f"v_pk_mul_f32 {vr(a+2,2)}, {vr(a+2,2)}, v[36:37]")
        A(f"v_fma_mix_f32 v{tm}, v{u}, s11, 0 op_sel:[0,0,0] op_sel_hi:[1,0,0]")
        A(f"v_fma_mix_f32 v{tm+1}, v{u}, s11, 0 op_sel:[1,0,0] op_sel_hi:[1,0,0]")
        A(f"v_fma_mix_f32 v{tm+2}, v{u+1}, s11, 0 op_sel:[0,0,0] op_sel_hi:[1,0,0]")
        A(f"v_fma_mix_f32 v{tm+3}, v{u+1}, s11, 0 op_sel:[1,0,0] op_sel_hi:[1,0,0]")
        A(f"v_cvt_pk_bf16_f32 v{a}, v{a}, v{a+1}")
        A(f"v_cvt_pk_bf16_f32 v{a+1}, v{a+2}, v{a+3}")
        A(f"v_cvt_pk_bf16_f32 v{tm+4}, v{tm}, v{tm+1}")
        A(f"v_cvt_pk_bf16_f32 v{tm+5}, v{tm+2}, v{tm+3}")
        A(f"v_lshlrev_b32 v{tm}, 16, v{tm+4}")
        A(f"v_and_b32 v{tm+1}, 0xffff0000, v{tm+4}")
        A(f"v_lshlrev_b32 v{tm+2}, 16, v{tm+5}")
        A(f"v_and_b32 v{tm+3}, 0xffff0000, v{tm+5}")
        A(f"v_dot2_f32_bf16 v{tm}, v{a}, v34, v{tm}")
        A(f"v_dot2_f32_bf16 v{tm+1}, v{a}, v35, v{tm+1}")
        A(f"v_dot2_f32_bf16 v{tm+2}, v{a+1}, v34, v{tm+2}")
        A(f"v_dot2_f32_bf16 v{tm+3}, v{a+1}, v35, v{tm+3}")
        A(f"v_cvt_pk_bf16_f32 v{a+2}, v{tm}, v{tm+1}")
        A(f"v_cvt_pk_bf16_f32 v{a+3}, v{tm+2}, v{tm+3}")
        A(f"ds_write_b64 v25, {vr(a+2,2)} offset:{K2_KE + 512*t}")
    stamp(A, 5)
    A("s_waitcnt lgkmcnt(0)")
    A("s_barrier")
    A("v_lshrrev_b32 v14, 2, v6")
    A(f"v_mul_u32_u24 v14, {K2_WB}, v14")
    A("v_and_b32 v15, 3, v2")
    A("v_lshlrev_b32 v15, 3, v15")
    A("v_add_u32 v14, v14, v15")
    A("v_lshlrev_b32 v15, 5, v7")
    A("v_add_u32 v14, v14, v15")
    A("s_lshl_b32 s12, s3, 10")
    A("v_add_u32 v14, s12, v14")
    for k in range(8):
        A(f"ds_read_b64_tr_b16 {vr(40+2*k,2)}, v14 offset:{K2_KE + 128*k}")
    A("v_lshrrev_b32 v15, 3, v6")
    A("v_lshlrev_b32 v16, 1, v7")
    A("v_add_u32 v15, v15, v16")
    A("v_mul_u32_u24 v15, 10240, v15")
    A("v_and_b32 v16, 7, v6")
    A("v_lshlrev_b32 v16, 4, v16")
    A("v_add_u32 v15, v15, v16")
    A("s_mul_i32 s12, s3, 655360")
    A("s_lshr_b32 s13, s35, 1")
    A("s_lshl_b32 s13, s13, 7")
    A("s_add_u32 s12, s12, s13")
    A("s_and_b32 s13, s35, 1")
    A("s_lshl_b32 s13, s13, 3")
    A("s_add_u32 s12, s12, s13")
    A(f"s_add_u32 s12, s12, {WS_AT}")
    A("v_add_u32 v15, s12, v15")
    A("s_waitcnt lgkmcnt(0)")
    for k in range(8):
        A(f"global_store_dwordx2 v15, {vr(40+2*k,2)}, s[32:33] {ST_OPT[0]}")
        if k < 7:
            A("v_add_u32 v15, 81920, v15")
    k_end(A, 1)

    wt_role(A, "K2", 160, 4, 12288, K2_WT_RANGE[0], K2_WT_RANGE[1], 1, WT_OPT[0], K2_NWT * 4)
    A.label("K2_END")
    A("s_endpgm")


K3_LDS = 0


def k3(A):
    A("s_cmp_ge_u32 s2, 256")
    A("s_cbranch_scc1 K3_END")
    k_begin(A)
    A("s_load_dwordx2 s[32:33], s[0:1], 112")
    A("s_load_dwordx2 s[26:27], s[0:1], 0")
    A("s_load_dwordx2 s[28:29], s[0:1], 64")
    A("s_load_dwordx2 s[30:31], s[0:1], 96")
    A("v_lshrrev_b32 v7, 5, v0")
    A("v_and_b32 v4, 31, v0")
    A("s_mul_i32 s4, s2, 10240")
    A("v_lshlrev_b32 v5, 4, v4")
    A("v_mul_u32_u24 v6, 1280, v7")
    A("v_add_u32 v6, v6, v5")
    A("v_add_u32 v8, s4, v6")
    A("v_lshlrev_b32 v3, 7, v4")
    A("v_lshl_add_u32 v3, v7, 4, v3")
    A(f"s_add_u32 s5, s4, {WS_AT}")
    A("v_add_u32 v3, s5, v3")
    A("v_add_u32 v9, 8192, v3")
    AR, XR, WR = 20, 32, 44
    for i in range(4):
        A(f"v_mov_b32 v{AR+8+i}, 0")
        A(f"v_mov_b32 v{XR+8+i}, 0")
        A(f"v_mov_b32 v{WR+8+i}, 0")
    A("v_cmp_gt_u32 s[20:21], 16, v4")
    A("s_waitcnt lgkmcnt(0)")
    stamp(A, 1)
    A(f"global_load_dwordx4 {vr(AR,4)}, v3, s[32:33]")
    A(f"global_load_dwordx4 {vr(XR,4)}, v8, s[26:27]")
    A(f"global_load_dwordx4 {vr(AR+4,4)}, v3, s[32:33] offset:4095".replace("offset:4095", "offset:0") if False else
      f"global_load_dwordx4 {vr(XR+4,4)}, v8, s[26:27] offset:512")
    A("v_add_u32 v10, 4096, v3")
    A(f"global_load_dwordx4 {vr(AR+4,4)}, v10, s[32:33]")
    A("s_mov_b64 exec, s[20:21]")
    A(f"global_load_dwordx4 {vr(AR+8,4)}, v9, s[32:33]")
    A(f"global_load_dwordx4 {vr(XR+8,4)}, v8, s[26:27] offset:1024")
    A(f"global_load_dwordx4 {vr(WR+8,4)}, v5, s[28:29] offset:1024")
    A("s_mov_b64 exec, -1")
    A(f"global_load_dwordx4 {vr(WR,4)}, v5, s[28:29]")
    A(f"global_load_dwordx4 {vr(WR+4,4)}, v5, s[28:29] offset:512")
    A(f"v_mov_b32 v12, {ONE_LO}")
    A(f"v_mov_b32 v13, {ONE_HI}")
    A("v_mov_b32 v14, 0x3f803f80")
    for r in (10, 11, 16, 17):
        A(f"v_mov_b32 v{r}, 0")
    A(f"v_add_u32 v9, {WS_L2}, v8")
    H = 56
    T = 68
    A("s_waitcnt vmcnt(3)")
    stamp(A, 2)
    N = 12
    for i in range(N):
        A(f"v_lshlrev_b32 v{T+2*i}, 16, v{AR+i}")
        A(f"v_and_b32 v{T+2*i+1}, 0xffff0000, v{AR+i}")
    for i in range(N):
        A(f"v_dot2_f32_bf16 v{T+2*i}, v{XR+i}, v12, v{T+2*i}")
        A(f"v_dot2_f32_bf16 v{T+2*i+1}, v{XR+i}, v13, v{T+2*i+1}")
    for i in range(N):
        A(f"v_cvt_pk_bf16_f32 v{H+i}, v{T+2*i}, v{T+2*i+1}")
    for i in range(0, N, 2):
        A(f"v_dot2c_f32_bf16 v10, v{H+i}, v14")
        A(f"v_dot2c_f32_bf16 v11, v{H+i}, v{H+i}")
        A(f"v_dot2c_f32_bf16 v16, v{H+i+1}, v14")
        A(f"v_dot2c_f32_bf16 v17, v{H+i+1}, v{H+i+1}")
    A("s_nop 2")
    A("v_add_f32 v10, v10, v16")
    A("v_add_f32 v11, v11, v17")

    def red(regs, tmps):
        for sh in (8, 4, 2, 1):
            for r in regs:
                A(f"v_add_f32_dpp v{r}, v{r}, v{r} row_ror:{sh} row_mask:0xf bank_mask:0xf")
        for r, t in zip(regs, tmps):
            A(f"v_mov_b32 v{t}, v{r}")
        for r, t in zip(regs, tmps):
            A(f"v_permlane16_swap_b32 v{r}, v{t}")
        for r, t in zip(regs, tmps):
            A(f"v_add_f32 v{r}, v{r}, v{t}")
    red([10, 11], [16, 17])
    ln_finish(A, 10, 11, 15)
    A("v_sub_f32 v10, 0, v10")
    stamp(A, 3)
    L, O = AR, XR
    for i in range(N):
        A(f"v_dot2_f32_bf16 v{T+2*i}, v{H+i}, v12, v10")
        A(f"v_dot2_f32_bf16 v{T+2*i+1}, v{H+i}, v13, v10")
    for i in range(N):
        A(f"v_cvt_pk_bf16_f32 v{L+i}, v{T+2*i}, v{T+2*i+1}")
    for i in range(N):
        A(f"v_lshlrev_b32 v{T+2*i}, 16, v{L+i}")
        A(f"v_and_b32 v{T+2*i+1}, 0xffff0000, v{L+i}")
    A("v_mov_b32 v16, v11")
    A("v_mov_b32 v17, v11")
    for i in range(N):
        A(f"v_pk_mul_f32 {vr(T+2*i,2)}, {vr(T+2*i,2)}, v[16:17]")
    for i in range(N):
        A(f"v_cvt_pk_bf16_f32 v{L+i}, v{T+2*i}, v{T+2*i+1}")
    A(f"global_store_dwordx4 v9, {vr(L,4)}, s[32:33] {ST_OPT[0]}")
    A(f"global_store_dwordx4 v9, {vr(L+4,4)}, s[32:33] offset:512 {ST_OPT[0]}")
    A("s_mov_b64 exec, s[20:21]")
    A(f"global_store_dwordx4 v9, {vr(L+8,4)}, s[32:33] offset:1024 {ST_OPT[0]}")
    A("s_mov_b64 exec, -1")
    A("v_mov_b32 v14, 0")
    A("v_mov_b32 v15, 0")
    A("s_waitcnt vmcnt(3)")
    for i in range(0, N, 2):
        A(f"v_dot2c_f32_bf16 v14, v{L+i}, v{WR+i}")
        A(f"v_dot2c_f32_bf16 v15, v{L+i+1}, v{WR+i+1}")
    for i in range(N):
        A(f"v_lshlrev_b32 v{T+2*i}, 16, v{L+i}")
        A(f"v_and_b32 v{T+2*i+1}, 0xffff0000, v{L+i}")
    A("v_add_f32 v14, v14, v15")
    for i in range(N):
        A(f"v_dot2_f32_bf16 v{T+2*i}, v{H+i}, v12, v{T+2*i}")
        A(f"v_dot2_f32_bf16 v{T+2*i+1}, v{H+i}, v13, v{T+2*i+1}")
    for i in range(N):
        A(f"v_cvt_pk_bf16_f32 v{O+i}, v{T+2*i}, v{T+2*i+1}")
    stamp(A, 4)
    A(f"global_store_dwordx4 v8, {vr(O,4)}, s[30:31] {ST_OPT[0]}")
    A(f"global_store_dwordx4 v8, {vr(O+4,4)}, s[30:31] offset:512 {ST_OPT[0]}")
    A("s_mov_b64 exec, s[20:21]")
    A(f"global_store_dwordx4 v8, {vr(O+8,4)}, s[30:31] offset:1024 {ST_OPT[0]}")
    A("s_mov_b64 exec, -1")
    red([14], [15])
    A("v_cvt_pk_bf16_f32 v40, v14, v14")
    A("v_and_b32 v40, 0xffff0000, v40")
    A("v_ashrrev_i32 v41, 31, v40")
    A("v_or_b32 v41, 0x80000000, v41")
    A("v_xor_b32 v40, v40, v41")
    A("v_and_b32 v40, 0xffff0000, v40")
    A("s_lshl_b32 s6, s2, 3")
    A("v_add_u32 v42, s6, v7")
    A("v_sub_u32 v43, 2047, v42")
    A("v_or_b32 v40, v40, v43")
    A("v_lshlrev_b32 v42, 2, v42")
    A(f"v_add_u32 v42, {WS_RK}, v42")
    A("v_cmp_eq_u32 vcc, 0, v4")
    A("s_mov_b64 exec, vcc")
    A("global_store_dword v42, v40, s[32:33]")
    k_end(A, 2)
    A.label("K3_END")
    A("s_endpgm")


K4_LDS = 8192


def k4(A):
    A("s_cmp_ge_u32 s2, 192")
    A("s_cbranch_scc1 K4_END")
    k_begin(A)
    A("s_load_dwordx2 s[32:33], s[0:1], 112")
    A("v_lshrrev_b32 v1, 6, v0")
    A("v_readfirstlane_b32 s3, v1")
    A("v_and_b32 v2, 63, v0")
    A("s_mul_i32 s4, s2, 20480")
    A("s_mul_i32 s5, s3, 5120")
    A("s_add_u32 s4, s4, s5")
    A(f"s_add_u32 s4, s4, {WS_WGU}")
    A("v_lshlrev_b32 v3, 4, v2")
    A("v_add_u32 v3, s4, v3")
    A("v_add_u32 v5, 4096, v3")
    A("v_lshlrev_b32 v4, 5, v0")
    A(f"v_add_u32 v4, {WS_RK}, v4")
    A("s_waitcnt lgkmcnt(0)")
    A("global_load_dwordx4 v[8:11], v4, s[32:33]")
    A("global_load_dwordx4 v[12:15], v4, s[32:33] offset:16")
    BFR = 40
    for i in range(4):
        A(f"global_load_dwordx4 {vr(BFR+4*i,4)}, v3, s[32:33] offset:{1024*i}")
    A(f"global_load_dwordx4 {vr(BFR+16,4)}, v5, s[32:33]")
    stamp(A, 1)
    A("s_waitcnt vmcnt(5)")
    stamp(A, 2)
    net = [(0, 1), (2, 3), (4, 5), (6, 7), (0, 2), (1, 3), (4, 6), (5, 7), (1, 2), (5, 6), (0, 4), (3, 7), (1, 5), (2, 6),
           (1, 4), (3, 6), (2, 4), (3, 5), (3, 4)]
    reg = list(range(8, 16))
    spare = 16
    for a, b in net:
        A(f"v_max_u32 v{spare}, v{reg[a]}, v{reg[b]}")
        A(f"v_min_u32 v{reg[b]}, v{reg[a]}, v{reg[b]}")
        reg[a], spare = spare, reg[a]
    for r in range(8):
        A(f"v_mov_b32 v17, v{reg[0]}")
        for sh in (1, 2, 4, 8):
            A(f"v_max_u32_dpp v17, v17, v17 row_shr:{sh} row_mask:0xf bank_mask:0xf")
        A("v_max_u32_dpp v17, v17, v17 row_bcast:15 row_mask:0xa bank_mask:0xf")
        A("v_max_u32_dpp v17, v17, v17 row_bcast:31 row_mask:0xc bank_mask:0xf")
        A(f"v_readlane_b32 s{40+r}, v17, 63")
        if r < 7:
            A(f"v_cmp_eq_u32 vcc, s{40+r}, v{reg[0]}")
            for k in range(7 - r):
                A(f"v_cndmask_b32 v{reg[k]}, v{reg[k]}, v{reg[k+1]}, vcc")
    stamp(A, 3)
    A("v_mov_b32 v16, s40")
    for r in range(1, 8):
        A(f"v_writelane_b32 v16, s{40+r}, {r}")
    A("s_lshl_b32 s6, s3, 5")
    A("v_lshlrev_b32 v17, 2, v2")
    A("v_add_u32 v17, s6, v17")
    A("v_cmp_gt_u32 vcc, 8, v2")
    A("s_and_saveexec_b64 s[20:21], vcc")
    A("ds_write_b32 v17, v16")
    A("s_mov_b64 exec, s[20:21]")
    A("s_waitcnt lgkmcnt(0)")
    A("s_barrier")
    A("v_and_b32 v17, 31, v2")
    A("v_lshlrev_b32 v17, 2, v17")
    A("ds_read_b32 v16, v17")
    A("v_mov_b32 v18, 0")
    for i in range(8):
        A(f"ds_read_b128 {vr(60+4*i,4)}, v18 offset:{16*i}")
    A("v_mov_b32 v19, 0")
    A("v_mov_b32 v20, 0")
    A("s_waitcnt lgkmcnt(0)")
    sp = ["s[50:51]", "s[52:53]", "s[54:55]", "s[56:57]"]
    for i in range(0, 32, 4):
        for k in range(4):
            A(f"v_cmp_gt_u32 {sp[k]}, v{60+i+k}, v16")
        for k in range(4):
            A(f"v_addc_co_u32 v{19 + (k & 1)}, vcc, 0, v{19 + (k & 1)}, {sp[k]}")
    A("v_add_u32 v19, v19, v20")
    A("v_cmp_gt_u32 vcc, 8, v19")
    A("v_cmp_gt_u32 s[22:23], 32, v2")
    A("s_and_b64 vcc, vcc, s[22:23]")
    A("v_lshlrev_b32 v19, 2, v19")
    A("s_lshl_b32 s6, s3, 6")
    A("s_add_u32 s6, s6, 256")
    A("v_add_u32 v19, s6, v19")
    A("s_and_saveexec_b64 s[20:21], vcc")
    A("ds_write_b32 v19, v16")
    A("s_mov_b64 exec, s[20:21]")
    A("v_and_b32 v17, 7, v2")
    A("v_lshlrev_b32 v17, 2, v17")
    A("v_add_u32 v17, s6, v17")
    A("ds_read_b32 v16, v17")
    A("v_lshrrev_b32 v21, 4, v2")
    A("v_lshlrev_b32 v21, 4, v21")
    A("s_mul_i32 s6, s3, 320")
    A(f"s_add_u32 s6, s6, {WS_L2}")
    A("v_add_u32 v21, s6, v21")
    A("s_waitcnt lgkmcnt(0)")
    A("v_and_b32 v18, 0x7ff, v16")
    A("v_sub_u32 v18, 2047, v18")
    A("v_mul_u32_u24 v20, 1280, v18")
    A("v_add_u32 v20, v20, v21")
    AFR = 60
    for i in range(5):
        A(f"global_load_dwordx4 {vr(AFR+4*i,4)}, v20, s[32:33] offset:{64*i}")
    stamp(A, 4)
    A("s_or_b32 s6, s2, s3")
    A("s_cmp_lg_u32 s6, 0")
    A("s_cbranch_scc1 K4_NOSEL")
    A("v_and_b32 v22, 0xffff0000, v16")
    A("v_ashrrev_i32 v23, 31, v22")
    A("v_not_b32 v23, v23")
    A("v_or_b32 v23, 0x80000000, v23")
    A("v_xor_b32 v22, v22, v23")
    A("v_and_b32 v22, 0xffff0000, v22")
    A(f"v_mul_f32 v22, {hex(fbits(-LOG2E))}, v22")
    A("v_exp_f32 v22, v22")
    A("v_add_f32 v22, 1.0, v22")
    A("v_rcp_f32 v22, v22")
    bf16_round(A, 22)
    A("v_lshlrev_b32 v23, 2, v2")
    A(f"v_add_u32 v23, {WS_SEL}, v23")
    A("v_cmp_gt_u32 vcc, 8, v2")
    A("s_and_saveexec_b64 s[20:21], vcc")
    A("global_store_dword v23, v18, s[32:33]")
    A("global_store_dword v23, v22, s[32:33] offset:32")
    A("s_mov_b64 exec, s[20:21]")
    A.label("K4_NOSEL")
    for i in range(4):
        A(f"v_mov_b32 v{24+i}, 0")
    A("v_lshlrev_b32 v28, 4, v2")
    A("s_lshl_b32 s6, s3, 10")
    A("v_add_u32 v29, s6, v28")
    for i in range(5):
        A(f"s_waitcnt vmcnt({4-i})")
        A(f"v_mfma_f32_16x16x32_bf16 v[24:27], {vr(AFR+4*i,4)}, {vr(BFR+4*i,4)}, v[24:27]")
    stamp(A, 5)
    A("ds_write_b128 v29, v[24:27] offset:1024")
    A("s_waitcnt lgkmcnt(0)")
    A("s_barrier")
    A("s_cmp_lg_u32 s3, 0")
    A("s_cbranch_scc1 K4_DONE")
    for w in range(4):
        A(f"ds_read_b128 {vr(40+4*w,4)}, v28 offset:{1024 + 1024*w}")
    A("v_and_b32 v56, 15, v2")
    A("v_lshrrev_b32 v57, 4, v2")
    A("v_mul_u32_u24 v58, 12288, v57")
    A("v_lshlrev_b32 v59, 1, v56")
    A("v_add_u32 v58, v58, v59")
    A("s_lshl_b32 s6, s2, 4")
    A(f"s_add_u32 s6, s6, {WS_ACT}")
    A("v_add_u32 v58, s6, v58")
    A("v_add_u32 v59, 6144, v58")
    A("v_cmp_gt_u32 vcc, 8, v56")
    A("v_cmp_gt_u32 s[22:23], 2, v57")
    A("s_and_b64 s[22:23], vcc, s[22:23]")
    A("s_waitcnt lgkmcnt(0)")
    for i in range(4):
        A(f"v_add_f32 v{40+i}, v{40+i}, v{44+i}")
        A(f"v_add_f32 v{48+i}, v{48+i}, v{52+i}")
    for i in range(4):
        A(f"v_add_f32 v{40+i}, v{40+i}, v{48+i}")
    A("v_cvt_pk_bf16_f32 v44, v40, v41")
    A("v_cvt_pk_bf16_f32 v45, v42, v43")
    A("v_lshlrev_b32 v40, 16, v44")
    A("v_and_b32 v41, 0xffff0000, v44")
    A("v_lshlrev_b32 v42, 16, v45")
    A("v_and_b32 v43, 0xffff0000, v45")
    for i in range(4):
        A(f"v_mul_f32 v{48+i}, {hex(fbits(-LOG2E))}, v{40+i}")
    for i in range(4):
        A(f"v_exp_f32 v{48+i}, v{48+i}")
    for i in range(4):
        A(f"v_mov_b32_dpp v{44+i}, v{40+i} row_shl:8 row_mask:0xf bank_mask:0xf")
    for i in range(4):
        A(f"v_add_f32 v{48+i}, 1.0, v{48+i}")
    for i in range(4):
        A(f"v_rcp_f32 v{48+i}, v{48+i}")
    for i in range(4):
        A(f"v_mul_f32 v{40+i}, v{40+i}, v{48+i}")
    A("v_cvt_pk_bf16_f32 v48, v40, v41")
    A("v_cvt_pk_bf16_f32 v49, v42, v43")
    A("v_lshlrev_b32 v40, 16, v48")
    A("v_and_b32 v41, 0xffff0000, v48")
    A("v_lshlrev_b32 v42, 16, v49")
    A("v_and_b32 v43, 0xffff0000, v49")
    for i in range(4):
        A(f"v_mul_f32 v{40+i}, v{40+i}, v{44+i}")
    A("v_cvt_pk_bf16_f32 v40, v40, v41")
    A("v_cvt_pk_bf16_f32 v42, v42, v43")
    A("s_mov_b64 exec, s[22:23]")
    A("global_store_short v58, v40, s[32:33]")
    A("global_store_short_d16_hi v58, v40, s[32:33] offset:3072")
    A("global_store_short v59, v42, s[32:33]")
    A("global_store_short_d16_hi v59, v42, s[32:33] offset:3072")
    A.label("K4_DONE")
    k_end(A, 3)
    A.label("K4_END")
    A("s_endpgm")


K5_LDS = 8192


def k5(A):
    A("s_cmp_ge_u32 s2, 80")
    A("s_cbranch_scc1 K5_END")
    k_begin(A)
    A("s_load_dwordx2 s[32:33], s[0:1], 112")
    A("s_load_dwordx2 s[30:31], s[0:1], 96")
    A("s_load_dwordx2 s[26:27], s[0:1], 0")
    A("v_lshrrev_b32 v1, 6, v0")
    A("v_readfirstlane_b32 s3, v1")
    A("v_and_b32 v2, 63, v0")
    A("s_mul_i32 s4, s2, 24576")
    A("s_mul_i32 s5, s3, 3072")
    A("s_add_u32 s4, s4, s5")
    A(f"s_add_u32 s4, s4, {WS_WD}")
    A("v_lshrrev_b32 v5, 4, v2")
    A("v_and_b32 v4, 7, v2")
    A("v_lshlrev_b32 v3, 7, v5")
    A("v_lshlrev_b32 v6, 4, v4")
    A("v_add_u32 v3, v3, v6")
    A("v_add_u32 v3, s4, v3")
    A("v_mul_u32_u24 v4, 3072, v4")
    A("v_lshlrev_b32 v6, 4, v5")
    A("v_add_u32 v4, v4, v6")
    A("s_mul_i32 s6, s3, 384")
    A(f"s_add_u32 s6, s6, {WS_ACT}")
    A("v_add_u32 v4, s6, v4")
    A("v_and_b32 v7, 1, v5")
    A("v_lshlrev_b32 v7, 4, v7")
    A(f"v_add_u32 v7, {WS_SEL}, v7")
    A("s_waitcnt lgkmcnt(0)")
    stamp(A, 1)
    BFR, AFR = 40, 64
    for i in range(4):
        A(f"v_mov_b32 v{20+i}, 0")
    A("s_cmp_lg_u32 s3, 0")
    A("s_cbranch_scc1 K5_NOSEL")
    A("global_load_dwordx4 v[8:11], v7, s[32:33]")
    A("global_load_dwordx4 v[12:15], v7, s[32:33] offset:32")
    A.label("K5_NOSEL")
    A("v_and_b32 v16, 8, v2")
    A("v_cmp_eq_u32 vcc, 0, v16")
    A("s_mov_b64 exec, vcc")
    for i in range(6):
        A(f"global_load_dwordx4 {vr(AFR+4*i,4)}, v4, s[32:33] offset:{64*i}")
        A(f"global_load_dwordx4 {vr(BFR+4*i,4)}, v3, s[32:33] offset:{512*i}")
    A("s_mov_b64 exec, -1")
    for i in range(4):
        A(f"v_mov_b32 v{32+i}, 0")
    A("s_cmp_lg_u32 s3, 0")
    A("s_cbranch_scc1 K5_MM")
    A("v_and_b32 v16, 7, v2")
    A("s_lshl_b32 s6, s2, 3")
    A("v_add_u32 v16, s6, v16")
    A("v_lshrrev_b32 v17, 3, v16")
    A("v_lshlrev_b32 v17, 7, v17")
    A("v_and_b32 v18, 7, v16")
    A("v_lshl_add_u32 v17, v18, 1, v17")
    A(f"v_add_u32 v17, {WS_AT}, v17")
    A("s_waitcnt vmcnt(12)")
    for i in range(4):
        A(f"v_mul_u32_u24 v{20+i}, 1280, v{8+i}")
        A(f"v_lshl_add_u32 v{20+i}, v16, 1, v{20+i}")
        A(f"v_add_u32 v18, {WS_L2}, v{20+i}")
        A(f"global_load_ushort v{24+i}, v18, s[32:33]")
        A(f"global_load_ushort v{28+i}, v{20+i}, s[26:27]")
        A(f"v_lshrrev_b32 v18, 3, v{8+i}")
        A("v_mul_u32_u24 v18, 10240, v18")
        A(f"v_and_b32 v19, 7, v{8+i}")
        A("v_lshl_add_u32 v18, v19, 4, v18")
        A("v_add_u32 v18, v18, v17")
        A(f"global_load_ushort v{36+i}, v18, s[32:33]")
    A("s_waitcnt vmcnt(12)")
    A("s_branch K5_MM2")
    A.label("K5_MM")
    A("s_waitcnt vmcnt(0)")
    A.label("K5_MM2")
    stamp(A, 3)
    for i in range(6):
        A(f"v_mfma_f32_16x16x32_bf16 v[32:35], {vr(AFR+4*i,4)}, {vr(BFR+4*i,4)}, v[32:35]")
    A("v_lshlrev_b32 v88, 4, v2")
    A("s_lshl_b32 s6, s3, 10")
    A("v_add_u32 v89, s6, v88")
    A("ds_write_b128 v89, v[32:35]")
    A("s_waitcnt lgkmcnt(0)")
    A("s_barrier")
    A("s_cmp_lg_u32 s3, 0")
    A("s_cbranch_scc1 K5_DONE")
    for w in range(8):
        A(f"ds_read_b128 {vr(40+4*w,4)}, v88 offset:{1024*w}")
    A("s_waitcnt vmcnt(0) lgkmcnt(0)")
    for st in (16, 8, 4):
        for j in range(st):
            A(f"v_add_f32 v{40+j}, v{40+j}, v{40+st+j}")
    for i in range(4):
        A(f"v_lshlrev_b32 v{28+i}, 16, v{28+i}")
        A(f"v_lshlrev_b32 v{36+i}, 16, v{36+i}")
        A(f"v_add_f32 v{28+i}, v{28+i}, v{36+i}")
        bf16_round(A, 28 + i)
    for i in range(4):
        bf16_round(A, 40 + i)
        A(f"v_mul_f32 v{40+i}, v{40+i}, v{12+i}")
        bf16_round(A, 40 + i)
        A(f"v_lshlrev_b32 v{24+i}, 16, v{24+i}")
        A(f"v_add_f32 v{40+i}, v{40+i}, v{24+i}")
        bf16_round(A, 40 + i)
        A(f"v_add_f32 v{40+i}, v{40+i}, v{28+i}")
        A(f"v_cvt_pk_bf16_f32 v{40+i}, v{40+i}, v{40+i}")
    A("v_and_b32 v16, 15, v2")
    A("v_cmp_gt_u32 vcc, 8, v16")
    A("v_cmp_gt_u32 s[22:23], 2, v5")
    A("s_and_b64 exec, vcc, s[22:23]")
    for i in range(4):
        A(f"global_store_short v{20+i}, v{40+i}, s[30:31]")
    A.label("K5_DONE")
    k_end(A, 4)
    A.label("K5_END")
    A("s_endpgm")


KERNELS = [
    ("k1_kernel", k1, K1_WT + K1_KG + K1_LN, 192, K1_LDS, 128),
    ("k2_kernel", k2, 160 + K2_NWT, 256, K2_LDS, 160),
    ("k3_kernel", k3, 256, 256, K3_LDS, 96),
    ("k4_kernel", k4, 192, 256, K4_LDS, 96),
    ("k5_kernel", k5, 80, 512, K5_LDS, 96),
]

KD_TMPL = """.amdhsa_kernel {name}
  .amdhsa_next_free_vgpr {vgpr}
  .amdhsa_next_free_sgpr 102
  .amdhsa_accum_offset {acc}
  .amdhsa_group_segment_fixed_size 0
  .amdhsa_kernarg_size 120
  .amdhsa_user_sgpr_count 2
  .amdhsa_user_sgpr_kernarg_segment_ptr 1
  .amdhsa_system_sgpr_workgroup_id_x 1
.end_amdhsa_kernel
"""

HEADER = """; Kernarg layout (120 bytes, ptrs only): in0..in11 at 0..88, d_out 96, d_debug 104, d_ws 112
"""


def build(kernels):
    s = HEADER
    for label, fn, grid, block, lds, vgpr in kernels:
        s += f"; @launch kernel={label} grid=({grid},1,1) block=({block},1,1) lds={lds}\n"
    s += '.amdgcn_target "amdgcn-amd-amdhsa--gfx950"\n.text\n'
    done = set()
    for label, fn, grid, block, lds, vgpr in kernels:
        if label in done:
            continue
        done.add(label)
        A = Asm()
        fn(A)
        s += f".globl {label}\n.p2align 8\n.type {label},@function\n{label}:\n" + A.finish() + "\n"
    s += '.section .rodata,"a"\n'
    done = set()
    for label, fn, grid, block, lds, vgpr in kernels:
        if label in done:
            continue
        done.add(label)
        s += ".p2align 6\n" + KD_TMPL.format(name=label, vgpr=vgpr, acc=min(256, (vgpr + 3) // 4 * 4))
    return s


if __name__ == "__main__":
    if len(sys.argv) > 2 and sys.argv[2] == "stamp":
        STAMP[0] = True
    out = build(KERNELS)
    path = sys.argv[1] if len(sys.argv) > 1 else f"cdna_kernels/{NAME}.s"
    open(path, "w").write(out)
    print("wrote", path, len(out), "bytes")
```

```python
import sys, os, struct
sys.path.insert(0, os.path.dirname(os.path.abspath(__file__)))
from asmlib import Asm

NAME = "sequential_preLN__ssm_conv_s4d__moe_arch_mod__prompt"

WS_UT = 0x0000000
WS_KD = 0x0280000
WS_SC = 0x03C0000
WS_AT = 0x0400000
WS_L2 = 0x0680000
WS_RK = 0x0900000
WS_ACT = 0x0910000
WS_SEL = 0x0918000
WS_WGU = 0x0A00000
WS_WD = 0x0E00000
WS_STAMP = 0x1800000
STAMP = [False]
NSTAMP = 12
ST_OPT = [""]


def k_begin(A):
    if STAMP[0]:
        A("s_memrealtime s[94:95]")
        for i in range(NSTAMP):
            A(f"s_mov_b64 s[{60+2*i}:{61+2*i}], 0")
        A("s_memtime s[60:61]")


def stamp(A, i):
    if STAMP[0]:
        A(f"s_memtime s[{60+2*i}:{61+2*i}]")


def k_end(A, kidx):
    if STAMP[0]:
        A(f"s_memtime s[{60+2*(NSTAMP-2)}:{61+2*(NSTAMP-2)}]")
        A("s_waitcnt vmcnt(0) lgkmcnt(0)")
        A("s_memrealtime s[96:97]")
        A(f"s_memtime s[{60+2*(NSTAMP-1)}:{61+2*(NSTAMP-1)}]")
        A("s_mov_b64 exec, -1")
        A("v_lshrrev_b32 v1, 6, v0")
        A("s_lshl_b32 s98, s2, 3")
        A("v_add_u32 v1, s98, v1")
        A("v_lshlrev_b32 v1, 7, v1")
        A(f"v_add_u32 v1, {WS_STAMP + kidx * 0x200000}, v1")
        A("s_waitcnt lgkmcnt(0)")
        A("v_mov_b32 v2, s94")
        A("v_mov_b32 v3, s95")
        A("v_mov_b32 v4, s96")
        A("v_mov_b32 v5, s97")
        A("global_store_dwordx4 v1, v[2:5], s[32:33]")
        for i in range(0, NSTAMP, 2):
            for j in range(4):
                A(f"v_mov_b32 v{2+j}, s{60+2*i+j}")
            A(f"global_store_dwordx4 v1, v[2:5], s[32:33] offset:{16+8*i}")
    A("s_endpgm")


def fbits(x):
    return struct.unpack("<I", struct.pack("<f", x))[0]


LOG2E = 1.4426950408889634
L2E_HI = fbits(LOG2E)
L2E_HI_F = struct.unpack("<f", struct.pack("<I", L2E_HI))[0]
L2E_LO = fbits(LOG2E - L2E_HI_F)
LN2 = fbits(0.6931471805599453)
INV2PI = fbits(0.15915494309189535)
INV640 = fbits(1.0 / 640.0)
EPS = fbits(1e-5)
ONE_LO = 0x00003f80
ONE_HI = 0x3f800000


def vr(a, n):
    return f"v[{a}:{a+n-1}]"


def bf16_round(A, reg):
    A(f"v_cvt_pk_bf16_f32 v{reg}, v{reg}, v{reg}")
    A(f"v_and_b32 v{reg}, 0xffff0000, v{reg}")


def exp_bf16(A, dst, src, t0, t1):
    A(f"v_mul_f32 v{t0}, s90, v{src}")
    A(f"v_fma_f32 v{t1}, v{src}, s90, -v{t0}")
    A(f"v_fma_f32 v{t1}, v{src}, s91, v{t1}")
    A(f"v_exp_f32 v{dst}, v{t0}")
    A(f"v_mul_f32 v{t1}, s92, v{t1}")
    A(f"v_fma_f32 v{dst}, v{dst}, v{t1}, v{dst}")
    bf16_round(A, dst)


def cmul(A, d, a, b):
    A(f"v_pk_mul_f32 {vr(d,2)}, {vr(a,2)}, {vr(b,2)} op_sel:[0,0] op_sel_hi:[0,1]")
    A(f"v_pk_fma_f32 {vr(d,2)}, {vr(a,2)}, {vr(b,2)}, {vr(d,2)} op_sel:[1,1,0] op_sel_hi:[1,0,1] neg_lo:[0,1,0]")


def ln_finish(A, s1, s2, t):
    A(f"v_mul_f32 v{s1}, {INV640}, v{s1}")
    A(f"v_mul_f32 v{s2}, {INV640}, v{s2}")
    A(f"v_fma_f32 v{s2}, -v{s1}, v{s1}, v{s2}")
    A(f"v_max_f32 v{s2}, 0, v{s2}")
    A(f"v_cvt_pk_bf16_f32 v{t}, v{s1}, v{s2}")
    A(f"v_lshlrev_b32 v{s1}, 16, v{t}")
    A(f"v_and_b32 v{s2}, 0xffff0000, v{t}")
    A(f"v_add_f32 v{s2}, {EPS}, v{s2}")
    bf16_round(A, s2)
    A(f"v_sqrt_f32 v{s2}, v{s2}")
    bf16_round(A, s2)
    A(f"v_rcp_f32 v{s2}, v{s2}")


def pair_swizzle(A, dst, src, tmp):
    A(f"s_and_b32 s{dst}, s{src}, 7")
    A(f"s_lshl_b32 s{dst}, s{dst}, 1")
    A(f"s_bfe_u32 s{tmp}, s{src}, 0x10003")
    A(f"s_or_b32 s{dst}, s{dst}, s{tmp}")
    A(f"s_andn2_b32 s{tmp}, s{src}, 15")
    A(f"s_or_b32 s{dst}, s{dst}, s{tmp}")


def wt_role(A, pfx, first_wg, nwaves_per_wg, lds_per_wave, it_lo, it_hi, kidx, opt, stride):
    A.label(f"{pfx}_WTR")
    A("s_load_dwordx4 s[16:19], s[0:1], 72")
    A("s_load_dwordx2 s[20:21], s[0:1], 88")
    A("v_lshrrev_b32 v1, 6, v0")
    A("v_readfirstlane_b32 s3, v1")
    A("v_and_b32 v2, 63, v0")
    if nwaves_per_wg > 0:
        A(f"s_sub_u32 s4, s2, {first_wg}")
        A(f"s_mul_i32 s4, s4, {nwaves_per_wg}")
        A("s_add_u32 s4, s4, s3")
        A(f"s_add_u32 s4, s4, {it_lo}")
    elif nwaves_per_wg == -2:
        A("s_sub_u32 s4, s3, 4")
        A("s_mul_i32 s4, s4, 96")
        A("s_add_u32 s4, s4, s2")
    else:
        A("s_sub_u32 s4, s3, 3")
        A("s_mul_i32 s4, s4, 96")
        A("s_add_u32 s4, s4, s2")
    A(f"s_mul_i32 s5, s3, {lds_per_wave}")
    A("v_lshrrev_b32 v3, 3, v2")
    A("v_and_b32 v4, 7, v2")
    A("v_lshlrev_b32 v4, 4, v4")
    A("v_lshrrev_b32 v5, 4, v2")
    A("v_lshlrev_b32 v5, 3, v5")
    A("v_and_b32 v6, 15, v2")
    A("v_lshrrev_b32 v6, 2, v6")
    A("v_add_u32 v5, v5, v6")
    A("v_lshlrev_b32 v5, 7, v5")
    A("v_and_b32 v6, 3, v2")
    A("v_lshlrev_b32 v7, 3, v6")
    A("v_add_u32 v8, v5, v7")
    A("v_add_u32 v8, s5, v8")
    A("v_add_u32 v9, 4080, v8")
    A("v_cmp_gt_u32 vcc, 2, v6")
    A("v_cndmask_b32 v9, v9, v8, vcc")
    A("v_lshlrev_b32 v10, 4, v2")
    A("v_and_b32 v13, 15, v2")
    A("v_lshrrev_b32 v14, 3, v13")
    A("v_mul_u32_u24 v14, 24576, v14")
    A("v_and_b32 v13, 7, v13")
    A("v_lshlrev_b32 v13, 4, v13")
    A("v_add_u32 v14, v14, v13")
    A("v_lshrrev_b32 v13, 4, v2")
    A("v_lshlrev_b32 v13, 7, v13")
    A("v_add_u32 v14, v14, v13")
    A("v_mul_u32_u24 v50, 3072, v3")
    A("v_add_u32 v50, v50, v4")
    A("v_mul_u32_u24 v51, 1280, v3")
    A("v_add_u32 v51, v51, v4")
    A("s_waitcnt lgkmcnt(0)")
    A("s_mov_b32 s6, s4")
    A(f"s_cmp_ge_u32 s6, {it_hi}")
    A(f"s_cbranch_scc1 {pfx}_WT_FIN")
    A.label(f"{pfx}_WT_LOOP")
    A("s_cmp_ge_u32 s6, 480")
    A(f"s_cbranch_scc1 {pfx}_WT_DOWN")
    A("s_mul_hi_u32 s7, s6, 0xccccccd")
    A("s_mul_i32 s8, s7, 20")
    A("s_sub_u32 s8, s6, s8")
    A("s_mul_i32 s9, s8, 98304")
    A("s_lshl_b32 s10, s7, 7")
    A("s_add_u32 s9, s9, s10")
    A("v_add_u32 v11, s9, v50")
    for j in range(4):
        A(f"s_add_u32 s10, s5, {1024*j}")
        A("s_mov_b32 m0, s10")
        A("global_load_lds_dwordx4 v11, s[16:17]")
        A(f"s_add_u32 s10, s5, {4096 + 1024*j}")
        A("s_mov_b32 m0, s10")
        A("global_load_lds_dwordx4 v11, s[18:19]")
        if j < 3:
            A("v_add_u32 v11, 24576, v11")
    A("s_mul_i32 s9, s7, 163840")
    A("s_lshl_b32 s10, s8, 10")
    A("s_add_u32 s9, s9, s10")
    A(f"s_add_u32 s9, s9, {WS_WGU}")
    A("v_add_u32 v12, s9, v10")
    A("s_waitcnt vmcnt(0)")
    for jj in range(8):
        A(f"ds_read_b64_tr_b16 {vr(16+4*jj,2)}, v9 offset:{16*jj}")
        A(f"ds_read_b64_tr_b16 {vr(18+4*jj,2)}, v9 offset:{16*jj + 512}")
    A("s_waitcnt lgkmcnt(0)")
    for jj in range(8):
        A(f"global_store_dwordx4 v12, {vr(16+4*jj,4)}, s[32:33] {opt}")
        if jj < 7:
            A("v_add_u32 v12, 20480, v12")
    A(f"s_branch {pfx}_WT_NEXT")
    A.label(f"{pfx}_WT_DOWN")
    A("s_sub_u32 s11, s6, 480")
    A("s_mul_hi_u32 s7, s11, 0x5555556")
    A("s_mul_i32 s8, s7, 48")
    A("s_sub_u32 s8, s11, s8")
    A("s_mul_i32 s9, s8, 40960")
    A("s_lshl_b32 s10, s7, 7")
    A("s_add_u32 s9, s9, s10")
    A("v_add_u32 v11, s9, v51")
    for j in range(4):
        A(f"s_add_u32 s10, s5, {1024*j}")
        A("s_mov_b32 m0, s10")
        A("global_load_lds_dwordx4 v11, s[20:21]")
        if j < 3:
            A("v_add_u32 v11, 10240, v11")
    A("s_mul_i32 s9, s7, 196608")
    A("s_lshl_b32 s10, s8, 9")
    A("s_add_u32 s9, s9, s10")
    A(f"s_add_u32 s9, s9, {WS_WD}")
    A("v_add_u32 v12, s9, v14")
    A("s_waitcnt vmcnt(0)")
    for jj in range(4):
        A(f"ds_read_b64_tr_b16 {vr(16+4*jj,2)}, v8 offset:{32*jj}")
        A(f"ds_read_b64_tr_b16 {vr(18+4*jj,2)}, v8 offset:{32*jj + 512}")
    A("s_waitcnt lgkmcnt(0)")
    for jj in range(4):
        A(f"global_store_dwordx4 v12, {vr(16+4*jj,4)}, s[32:33] {opt}")
        if jj < 3:
            A("v_add_u32 v12, 49152, v12")
    A.label(f"{pfx}_WT_NEXT")
    A(f"s_add_u32 s6, s6, {stride}")
    A(f"s_cmp_lt_u32 s6, {it_hi}")
    A(f"s_cbranch_scc1 {pfx}_WT_LOOP")
    A.label(f"{pfx}_WT_FIN")
    if PF_X[0] and pfx == "K2":
        A("s_load_dwordx2 s[26:27], s[0:1], 0")
        A("s_sub_u32 s4, s2, 160")
        A("s_lshr_b32 s4, s4, 3")
        A("s_and_b32 s5, s2, 7")
        A("v_lshlrev_b32 v3, 4, v0")
        A("s_waitcnt lgkmcnt(0)")
        for j in range(3):
            A(f"s_add_u32 s6, s4, {12*j}")
            A("s_cmp_ge_u32 s6, 32")
            A(f"s_cbranch_scc1 K2_PFX_END")
            A("s_lshl_b32 s6, s6, 3")
            A("s_add_u32 s6, s6, s5")
            A("s_mul_i32 s6, s6, 10240")
            A("v_add_u32 v4, s6, v3")
            A("global_load_dwordx4 v[8:11], v4, s[26:27]")
            A("v_add_u32 v4, 4096, v4")
            A("global_load_dwordx4 v[8:11], v4, s[26:27]")
            A("v_min_u32 v5, 2032, v3")
            A("v_add_u32 v4, s6, v5")
            A("v_add_u32 v4, 8192, v4")
            A("global_load_dwordx4 v[8:11], v4, s[26:27]")
        A.label("K2_PFX_END")
    k_end(A, kidx)


K1_ROWB = 288
K1_BUF = 16 * K1_ROWB
K1_LDS = 3 * 2 * K1_BUF
K1_WT, K1_KG, K1_LN = 0, 640, 256
WT_OPT = [""]
CODE_PF = [0]
PF_WD = [int(os.environ.get('PF_WD', '0'))]
PF_X = [int(os.environ.get('PF_X', '0'))]


def cmul_batch(A, items):
    for d, a, b in items:
        A(f"v_pk_mul_f32 {vr(d,2)}, {vr(a,2)}, {vr(b,2)} op_sel:[0,0] op_sel_hi:[0,1]")
    for d, a, b in items:
        A(f"v_pk_fma_f32 {vr(d,2)}, {vr(a,2)}, {vr(b,2)}, {vr(d,2)} op_sel:[1,1,0] op_sel_hi:[1,0,1] neg_lo:[0,1,0]")


def k1(A):
    A(f"s_cmp_ge_u32 s2, {K1_WT + K1_KG + K1_LN}")
    A("s_cbranch_scc1 K1_END")
    k_begin(A)
    A("s_load_dwordx2 s[32:33], s[0:1], 112")
    A("s_load_dwordx16 s[16:31], s[0:1], 0")
    A(f"s_cmp_ge_u32 s2, {K1_WT + K1_KG}")
    A("s_cbranch_scc1 K1_LN")
    A(f"s_sub_u32 s35, s2, {K1_WT}")
    A("s_and_b32 s4, s35, 7")
    A("s_lshl_b32 s4, s4, 3")
    A("s_bfe_u32 s5, s35, 0x10005")
    A("s_lshl_b32 s5, s5, 2")
    A("s_or_b32 s4, s4, s5")
    A("s_lshr_b32 s5, s35, 6")
    A("s_lshl_b32 s5, s5, 6")
    A("s_or_b32 s4, s4, s5")
    A("s_bfe_u32 s5, s35, 0x20003")
    A("s_or_b32 s34, s4, s5")
    A("v_lshrrev_b32 v1, 6, v0")
    A("v_readfirstlane_b32 s3, v1")
    A("v_and_b32 v2, 63, v0")
    A(f"s_mov_b32 s90, {L2E_HI}")
    A(f"s_mov_b32 s91, {L2E_LO}")
    A(f"s_mov_b32 s92, {LN2}")
    A("s_mul_i32 s4, s34, 384")
    A("s_lshr_b32 s5, s34, 1")
    A("s_lshl_b32 s5, s5, 2")
    A("v_lshlrev_b32 v1, 1, v0")
    A("v_add_u32 v1, s4, v1")
    A("v_lshlrev_b32 v3, 1, v2")
    A("v_add_u32 v3, s4, v3")
    A("s_waitcnt lgkmcnt(0)")
    A("s_load_dword s6, s[26:27], s5")
    A("global_load_ushort v10, v1, s[18:19]")
    A("global_load_ushort v11, v1, s[20:21]")
    A("global_load_ushort v12, v1, s[22:23]")
    A("global_load_ushort v13, v1, s[24:25]")
    for i in range(3):
        A(f"global_load_ushort v{14+i}, v3, s[22:23] offset:{128*i}")
        A(f"global_load_ushort v{17+i}, v3, s[24:25] offset:{128*i}")
    A("v_and_b32 v3, 15, v2")
    A("v_lshrrev_b32 v4, 4, v2")
    A("s_cmp_eq_u32 s3, 1")
    A("s_cbranch_scc1 K1_A1")
    A("s_cmp_eq_u32 s3, 2")
    A("s_cbranch_scc1 K1_A2")
    A("v_lshrrev_b32 v5, 1, v4")
    A("v_lshlrev_b32 v5, 7, v5")
    A("v_lshl_add_u32 v5, v3, 3, v5")
    A("v_and_b32 v6, 1, v4")
    A("v_lshl_add_u32 v5, v6, 2, v5")
    A("s_branch K1_A3")
    A.label("K1_A1")
    A("v_lshlrev_b32 v5, 1, v3")
    A("v_add_u32 v5, v5, v4")
    A("v_add_u32 v5, 384, v5")
    A("v_lshlrev_b32 v6, 4, v4")
    A("v_add_u32 v6, v6, v3")
    A("v_add_u32 v6, 480, v6")
    A("v_cmp_gt_u32 vcc, 2, v4")
    A("v_cndmask_b32 v5, v6, v5, vcc")
    A("s_branch K1_A3")
    A.label("K1_A2")
    A("v_lshlrev_b32 v5, 6, v4")
    A("v_lshlrev_b32 v6, 2, v3")
    A("v_add_u32 v5, v5, v6")
    A("v_add_u32 v5, 256, v5")
    A("v_lshlrev_b32 v6, 2, v2")
    A("v_add_u32 v6, 520, v6")
    A("v_cmp_gt_u32 vcc, 2, v4")
    A("v_cndmask_b32 v5, v6, v5, vcc")
    A("v_mov_b32 v6, 640")
    A("v_cmp_eq_u32 vcc, 32, v2")
    A("v_cndmask_b32 v5, v5, v6, vcc")
    A.label("K1_A3")
    A("s_lshl_b32 s11, s34, 11")
    A(f"s_add_u32 s11, s11, {WS_KD}")
    A("v_lshlrev_b32 v29, 1, v5")
    A("v_add_u32 v29, s11, v29")
    A(f"s_mul_i32 s7, s3, {2*K1_BUF}")
    A(f"v_mul_u32_u24 v32, {K1_ROWB}, v3")
    A("v_lshlrev_b32 v5, 4, v4")
    A("v_add_u32 v32, v32, v5")
    A("v_add_u32 v32, s7, v32")
    AW = 120
    A("v_lshlrev_b32 v5, 2, v2")
    A(f"v_add_u32 v{AW}, s7, v5")
    for k in range(1, 8):
        A(f"v_add_u32 v{AW+k}, {(k//4)*K1_BUF + (k%4)*4*K1_ROWB}, v{AW}")
    stamp(A, 1)
    A("s_waitcnt lgkmcnt(0)")
    A("s_bitcmp1_b32 s34, 0")
    A("s_cbranch_scc1 K1_ODD")
    A("s_lshl_b32 s6, s6, 16")
    A.label("K1_ODD")
    A("s_and_b32 s6, s6, 0xffff0000")
    A("v_mov_b32 v5, s6")
    exp_bf16(A, 33, 5, 6, 7)
    A("s_waitcnt vmcnt(0)")
    stamp(A, 2)
    for i in range(6):
        A(f"v_and_b32 v{14+i}, 0x7fff, v{14+i}")
    A("v_max3_u32 v14, v14, v15, v16")
    A("v_max3_u32 v17, v17, v18, v19")
    A("v_max_u32 v14, v14, v17")
    A("v_lshlrev_b32 v10, 16, v10")
    A("v_lshlrev_b32 v11, 16, v11")
    A("v_mul_f32 v6, s90, v10")
    A("v_max_u32_dpp v14, v14, v14 row_shr:1 row_mask:0xf bank_mask:0xf")
    A("v_fma_f32 v7, v10, s90, -v6")
    A("v_exp_f32 v34, v6")
    A("v_max_u32_dpp v14, v14, v14 row_shr:2 row_mask:0xf bank_mask:0xf")
    A("v_fma_f32 v7, v10, s91, v7")
    A("v_mul_f32 v35, v11, v33")
    A("v_max_u32_dpp v14, v14, v14 row_shr:4 row_mask:0xf bank_mask:0xf")
    A("v_mul_f32 v7, s92, v7")
    A(f"v_mul_f32 v35, {INV2PI}, v35")
    A("v_max_u32_dpp v14, v14, v14 row_shr:8 row_mask:0xf bank_mask:0xf")
    A("v_fma_f32 v34, v34, v7, v34")
    A("v_lshlrev_b32 v12, 16, v12")
    A("v_max_u32_dpp v14, v14, v14 row_bcast:15 row_mask:0xa bank_mask:0xf")
    A("v_cvt_pk_bf16_f32 v34, v34, v34")
    A("v_lshlrev_b32 v13, 16, v13")
    A("v_max_u32_dpp v14, v14, v14 row_bcast:31 row_mask:0xc bank_mask:0xf")
    A("v_and_b32 v34, 0xffff0000, v34")
    A("v_mul_f32 v34, v34, v33")
    A("v_readlane_b32 s8, v14, 63")
    A("v_mul_f32 v34, s90, v34")
    A("v_sub_f32 v34, 0, v34")
    A("s_lshr_b32 s8, s8, 7")
    A("s_max_u32 s8, s8, 6")
    A("s_min_u32 s8, s8, 253")
    A("s_sub_u32 s9, 260, s8")
    A("s_lshl_b32 s9, s9, 23")
    A("s_sub_u32 s10, s8, 132")

    def direct(t, p):
        lit = "1.0" if p == 1 else hex(fbits(float(p)))
        A(f"v_mul_f32 v{t}, {lit}, v34")
        A(f"v_mul_f32 v{t+1}, {lit}, v35")
        A(f"v_fract_f32 v{t+1}, v{t+1}")

    def direct2(t):
        A(f"v_exp_f32 v{t}, v{t}")
        A(f"v_cos_f32 v{t+2}, v{t+1}")
        A(f"v_sin_f32 v{t+3}, v{t+1}")

    def direct_fin(d, t):
        A(f"v_mul_f32 v{d}, v{t}, v{t+2}")
        A(f"v_mul_f32 v{d+1}, v{t}, v{t+3}")

    C = 36
    g = {i: 38 + 2 * (i - 1) for i in range(1, 9)}
    G128, G256, G512, G1024 = 54, 56, 58, 60
    T = [62, 64, 66, 68, 70, 72, 74, 76]
    PK = list(range(78, 86))
    BF, AF = 86, 102
    h = {1: g[8]}
    for i in range(2, 9):
        h[i] = AF + 2 * (i - 2)
    AF2 = 4
    ACC = [20, 24, 118 - 94]
    ACC = [20, 24, 28 - 0]
    ACC = [20, 24, 114 + 0]
    ACC = [20, 24, 0]
    ACC = [20, 24, 4]
    AF2 = 62

    direct(62, 1)
    direct(66, 8)
    direct(70, 128)
    direct2(62)
    direct2(66)
    direct2(70)
    A(f"v_mul_f32 v{C}, s9, v12")
    A(f"v_mul_f32 v{C+1}, s9, v13")
    A("v_ldexp_f32 v6, v33, s10")
    A("s_lshl_b32 s11, s34, 2")
    A(f"s_add_u32 s11, s11, {WS_SC}")
    A("v_mov_b32 v7, s11")
    A("global_store_dword v7, v6, s[32:33]")
    direct_fin(g[1], 62)
    direct_fin(g[8], 66)
    direct_fin(G128, 70)
    stamp(A, 3)

    def wr(rows_src, buf, neg):
        regs = []
        for k, (row, src) in enumerate(rows_src):
            p = PK[k % 8]
            if src is None:
                A(f"v_mov_b32 v{p}, 0x00003c00")
            else:
                A(f"v_cvt_pk_f16_f32 v{p}, v{src}, {'-' if neg else ''}v{src+1}")
            regs.append(p)
        k = 0
        n = 0
        while k < len(rows_src):
            r0 = rows_src[k][0]
            if k + 1 < len(rows_src) and rows_src[k + 1][0] // 4 == r0 // 4:
                r1 = rows_src[k + 1][0]
                A(f"ds_write2_b32 v{AW + 4*buf + r0//4}, v{regs[k]}, v{regs[k+1]} offset0:{(r0%4)*72} offset1:{(r1%4)*72}")
                k += 2
            else:
                A(f"ds_write_b32 v{AW + 4*buf + r0//4}, v{regs[k]} offset:{(r0%4)*K1_ROWB}")
                k += 1
            n += 1
        return n

    def frags(dst, buf):
        for j in range(4):
            A(f"ds_read_b128 {vr(dst+4*j,4)}, v32 offset:{buf*K1_BUF + 64*j}")

    def mfmas(acc, a, b):
        for j in range(4):
            A(f"v_mfma_f32_16x16x32_f16 {vr(acc,4)}, {vr(a+4*j,4)}, {vr(b+4*j,4)}, {vr(acc,4)}")

    cmul_batch(A, [(g[2], g[1], g[1]), (h[2], h[1], h[1]), (G256, G128, G128)])
    cmul_batch(A, [(g[3], g[2], g[1]), (g[4], g[2], g[2]), (h[3], h[2], h[1]), (h[4], h[2], h[2]), (G512, G256, G256)])
    cmul_batch(A, [(g[5], g[4], g[1]), (g[6], g[4], g[2]), (g[7], g[4], g[3]), (h[5], h[4], h[1]), (h[6], h[4], h[2]),
                   (h[7], h[4], h[3]), (h[8], h[4], h[4]), (G1024, G512, G512)])
    for i in range(4):
        A(f"v_mov_b32 v{20+i}, 0")
        A(f"v_mov_b32 v{24+i}, 0")
        A(f"v_mov_b32 v{4+i}, 0")
    wr([(0, None)] + [(i, h[i]) for i in range(1, 8)], 0, False)
    cmul_batch(A, [(T[i - 1], h[8], h[i]) for i in range(1, 8)])
    wr([(8, h[8])] + [(8 + i, T[i - 1]) for i in range(1, 8)], 0, False)
    frags(BF, 0)
    stamp(A, 4)
    c128 = T[7]
    cmul_batch(A, [(T[i - 1], C, g[i]) for i in range(1, 8)] + [(c128, C, G128)])
    wr([(0, C)] + [(i, T[i - 1]) for i in range(1, 8)], 1, True)
    cmul_batch(A, [(T[i - 1], c128, g[i]) for i in range(1, 8)])
    wr([(8, c128)] + [(8 + i, T[i - 1]) for i in range(1, 8)], 1, True)
    frags(AF, 1)
    cmul_batch(A, [(T[0], C, G512), (T[4], C, G1024)])
    cmul_batch(A, [(T[1], T[0], G128), (T[2], T[0], G256), (T[5], T[4], G256), (T[6], T[4], G512)])
    cmul_batch(A, [(T[3], T[2], G128), (T[7], T[6], G256)])
    n1 = wr([(i, T[i]) for i in range(4)] + [(8 + i, T[4 + i]) for i in range(4)], 0, True)
    c2048 = g[1]
    cmul_batch(A, [(c2048, T[4], G1024)])
    cmul_batch(A, [(T[i], T[i], g[4]) for i in range(0)])
    D4 = [g[3], g[5], g[7], g[8]]
    cmul_batch(A, [(D4[i], T[i], g[4]) for i in range(4)])
    A("s_waitcnt lgkmcnt(%d)" % n1)
    mfmas(20, AF, BF)
    cmul_batch(A, [(T[i], T[4 + i], G128) for i in range(4)])
    wr([(4 + i, D4[i]) for i in range(4)] + [(12 + i, T[i]) for i in range(4)], 0, True)
    frags(AF, 0)
    stamp(A, 5)
    cmul_batch(A, [(T[0], C, G256)])
    cmul_batch(A, [(T[4], T[0], G128), (T[1], T[0], g[2]), (T[2], T[0], g[4]), (T[3], T[0], g[6])])
    cmul_batch(A, [(T[5], T[4], g[2]), (T[6], T[4], g[4]), (T[7], T[4], g[6])])
    n2 = wr([(i, T[i]) for i in range(8)], 1, True)
    n2 += wr([(8, c2048)], 1, True)
    A("s_waitcnt lgkmcnt(%d)" % n2)
    mfmas(24, AF, BF)
    frags(AF2, 1)
    A("s_waitcnt lgkmcnt(0)")
    mfmas(4, AF2, BF)
    A("v_lshlrev_b32 v28, 4, v2")
    A("v_add_u32 v30, s7, v28")
    for t, r in enumerate((20, 24, 4)):
        A(f"ds_write_b128 v30, {vr(r,4)} offset:{1024*t}")
    stamp(A, 6)
    A("s_lshl_b32 s11, s3, 10")
    A("v_add_u32 v28, s11, v28")
    A("s_waitcnt lgkmcnt(0)")
    A("s_barrier")
    stamp(A, 7)
    for w in range(3):
        A(f"ds_read_b128 {vr(40+4*w,4)}, v28 offset:{2*K1_BUF*w}")
    A("s_waitcnt lgkmcnt(0)")
    for i in range(4):
        A(f"v_add_f32 v{40+i}, v{40+i}, v{44+i}")
    for i in range(4):
        A(f"v_add_f32 v{40+i}, v{40+i}, v{48+i}")
    A("v_cvt_pk_f16_f32 v40, v40, v41")
    A("v_cvt_pk_f16_f32 v41, v42, v43")
    A("s_cmp_eq_u32 s3, 1")
    A("s_cbranch_scc1 K1_S1")
    A("global_store_dwordx2 v29, v[40:41], s[32:33]")
    k_end(A, 0)
    A.label("K1_S1")
    A("global_store_short v29, v40, s[32:33]")
    A("global_store_short_d16_hi v29, v40, s[32:33] offset:64")
    A("global_store_short v29, v41, s[32:33] offset:128")
    A("global_store_short_d16_hi v29, v41, s[32:33] offset:192")
    k_end(A, 0)

    A.label("K1_LN")
    if CODE_PF[0]:
        A(f"s_cmp_ge_u32 s2, {K1_WT + K1_KG + 16}")
        A("s_cbranch_scc1 K1_NOPF")
        A("s_getpc_b64 s[40:41]")
        A.label("K1_PC")
        A("s_add_u32 s40, s40, k2_kernel-K1_PC")
        A("s_addc_u32 s41, s41, 0")
        A("v_lshlrev_b32 v90, 4, v0")
        for i in range(CODE_PF[0]):
            A(f"global_load_dwordx4 v[92:95], v90, s[40:41]")
            A("v_add_u32 v90, 3072, v90")
        A.label("K1_NOPF")
    A("v_lshrrev_b32 v1, 6, v0")
    A("v_readfirstlane_b32 s3, v1")
    A(f"s_sub_u32 s5, s2, {K1_WT + K1_KG}")
    pair_swizzle(A, 4, 5, 6)
    A("s_mul_i32 s5, s4, 10240")
    A("v_min_u32 v2, 159, v0")
    A("v_lshlrev_b32 v3, 3, v2")
    A("v_add_u32 v3, s5, v3")
    A("v_add_u32 v4, 5120, v3")
    A("v_lshrrev_b32 v5, 4, v0")
    A("v_mul_u32_u24 v6, 1280, v5")
    A("v_and_b32 v7, 15, v0")
    A("v_lshlrev_b32 v7, 4, v7")
    A("v_add_u32 v6, v6, v7")
    A("v_add_u32 v6, s5, v6")
    A("s_waitcnt lgkmcnt(0)")
    A("s_cmp_eq_u32 s3, 2")
    A("s_cbranch_scc1 K1_LNB")
    for i in range(5):
        A(f"global_load_dwordx4 {vr(8+4*i,4)}, v6, s[16:17] offset:{256*i}")
    A.label("K1_LNB")
    for r in range(8):
        A(f"global_load_dwordx2 {vr(40+2*r,2)}, v{3 if r < 4 else 4}, s[16:17] offset:{1280*(r%4)}")
    A(f"v_mov_b32 v34, {ONE_LO}")
    A(f"v_mov_b32 v35, {ONE_HI}")
    A("s_cmp_eq_u32 s3, 2")
    A("s_cbranch_scc1 K1_LNBAR")
    A("v_mov_b32 v30, 0")
    A("v_mov_b32 v31, 0")
    A("v_mov_b32 v36, 0")
    A("v_mov_b32 v37, 0")
    A("v_mov_b32 v32, 0x3f803f80")
    A("s_waitcnt vmcnt(8)")
    for i in range(0, 20, 2):
        A(f"v_dot2c_f32_bf16 v30, v{8+i}, v32")
        A(f"v_dot2c_f32_bf16 v31, v{8+i}, v{8+i}")
        A(f"v_dot2c_f32_bf16 v36, v{9+i}, v32")
        A(f"v_dot2c_f32_bf16 v37, v{9+i}, v{9+i}")
    A("s_nop 2")
    A("v_add_f32 v30, v30, v36")
    A("v_add_f32 v31, v31, v37")
    for sh in (8, 4, 2, 1):
        A(f"v_add_f32_dpp v30, v30, v30 row_ror:{sh} row_mask:0xf bank_mask:0xf")
        A(f"v_add_f32_dpp v31, v31, v31 row_ror:{sh} row_mask:0xf bank_mask:0xf")
    ln_finish(A, 30, 31, 33)
    A("v_sub_f32 v30, 0, v30")
    A("v_lshlrev_b32 v5, 3, v5")
    A("ds_write_b64 v5, v[30:31]")
    A.label("K1_LNBAR")
    stamp(A, 2)
    A("s_waitcnt lgkmcnt(0)")
    A("s_barrier")
    stamp(A, 3)
    A("v_mov_b32 v5, 0")
    for i in range(4):
        A(f"ds_read_b128 {vr(8+4*i,4)}, v5 offset:{16*i}")
    A("v_lshlrev_b32 v3, 14, v2")
    A("s_lshl_b32 s5, s4, 6")
    A("v_add_u32 v3, s5, v3")
    A("s_waitcnt vmcnt(0) lgkmcnt(0)")
    for rp in range(4):
        r0, r1 = 2 * rp, 2 * rp + 1
        tt = [76 + 3 * ch for ch in range(4)]
        for ch in range(4):
            a, b = 40 + 2 * r0 + (ch >> 1), 40 + 2 * r1 + (ch >> 1)
            one = 34 + (ch & 1)
            A(f"v_dot2_f32_bf16 v{tt[ch]}, v{a}, v{one}, v{8+2*r0}")
            A(f"v_dot2_f32_bf16 v{tt[ch]+1}, v{b}, v{one}, v{8+2*r1}")
        for ch in range(4):
            A(f"v_cvt_pk_bf16_f32 v{tt[ch]+2}, v{tt[ch]}, v{tt[ch]+1}")
        for ch in range(4):
            A(f"v_lshlrev_b32 v{tt[ch]}, 16, v{tt[ch]+2}")
            A(f"v_and_b32 v{tt[ch]+1}, 0xffff0000, v{tt[ch]+2}")
        for ch in range(4):
            A(f"v_mul_f32 v{tt[ch]}, v{tt[ch]}, v{9+2*r0}")
            A(f"v_mul_f32 v{tt[ch]+1}, v{tt[ch]+1}, v{9+2*r1}")
        for ch in range(4):
            A(f"v_cvt_pk_bf16_f32 v{tt[ch]+2}, v{tt[ch]}, v{tt[ch]+1}")
        for ch in range(4):
            A(f"v_lshlrev_b32 v{tt[ch]}, 16, v{tt[ch]+2}")
            A(f"v_and_b32 v{tt[ch]+1}, 0xffff0000, v{tt[ch]+2}")
        for ch in range(4):
            A(f"v_cvt_pk_f16_f32 v{60+4*ch+rp}, v{tt[ch]}, v{tt[ch]+1}")
    stamp(A, 4)
    for ch in range(4):
        A(f"global_store_dwordx4 v3, {vr(60+4*ch,4)}, s[32:33] offset:{16*ch} {ST_OPT[0]}")
    k_end(A, 0)

    A.label("K1_END")
    A("s_endpgm")


K2_KE, K2_KO, K2_U, K2_T = 0, 4160, 8320, 12928
K2_WB = 15168
K2_LDS = 4 * K2_WB
K2_NWT = 96
K2_WT_RANGE = [0, 960]


def k2(A):
    A(f"s_cmp_ge_u32 s2, {160 + K2_NWT}")
    A("s_cbranch_scc1 K2_END")
    k_begin(A)
    A("s_load_dwordx2 s[32:33], s[0:1], 112")
    A("s_load_dwordx2 s[28:29], s[0:1], 48")
    A("s_cmp_ge_u32 s2, 160")
    A("s_cbranch_scc1 K2_WTR")
    pair_swizzle(A, 35, 2, 6)
    A("v_lshrrev_b32 v1, 6, v0")
    A("v_readfirstlane_b32 s3, v1")
    A("v_and_b32 v2, 63, v0")
    A("s_lshl_b32 s4, s35, 2")
    A("s_add_u32 s4, s4, s3")
    A(f"s_mul_i32 s5, s3, {K2_WB}")
    A("s_lshl_b32 s6, s4, 11")
    A(f"s_add_u32 s6, s6, {WS_KD}")
    A("s_lshl_b32 s7, s35, 14")
    A("s_lshl_b32 s8, s3, 4")
    A("s_add_u32 s7, s7, s8")
    A("v_lshlrev_b32 v3, 4, v2")
    A("v_add_u32 v3, s6, v3")
    A("v_lshlrev_b32 v5, 6, v2")
    A("v_add_u32 v5, s7, v5")
    A("s_lshl_b32 s9, s4, 2")
    A(f"s_add_u32 s9, s9, {WS_SC}")
    A("s_lshr_b32 s14, s4, 1")
    A("s_lshl_b32 s14, s14, 2")
    A(f"s_add_u32 s12, s5, {K2_T}")
    A("s_mov_b32 m0, s12")
    A("s_waitcnt lgkmcnt(0)")
    stamp(A, 1)
    A("global_load_lds_dwordx4 v3, s[32:33]")
    A("global_load_lds_dwordx4 v3, s[32:33] offset:1024")
    for j in range(4):
        A(f"s_add_u32 s12, s5, {K2_U + 512 + 1024*j}")
        A("s_mov_b32 m0, s12")
        if j:
            A("v_add_u32 v5, 4096, v5")
        A("global_load_lds_dwordx4 v5, s[32:33]")
    A("s_load_dword s10, s[32:33], s9")
    A("s_load_dword s11, s[28:29], s14")
    A("v_and_b32 v6, 15, v2")
    A("v_lshrrev_b32 v7, 4, v2")
    A("v_lshrrev_b32 v8, 1, v7")
    A("v_and_b32 v9, 1, v7")
    A("v_mov_b32 v12, 0")
    A("v_mov_b32 v13, 0")
    A("v_lshlrev_b32 v14, 3, v2")
    A("v_add_u32 v14, s5, v14")
    A(f"ds_write_b64 v14, v[12:13] offset:{K2_U}")
    A("v_lshlrev_b32 v14, 2, v6")
    A("v_add_u32 v14, s5, v14")
    A(f"ds_write_b32 v14, v12 offset:{K2_KE + 4096}")
    A(f"ds_write_b32 v14, v12 offset:{K2_KO + 4096}")
    A("v_sub_u32 v14, 2047, v6")
    A("v_lshlrev_b32 v15, 4, v8")
    A("v_sub_u32 v14, v14, v15")
    A("v_lshlrev_b32 v15, 3, v9")
    A("v_add_u32 v14, v14, v15")
    A("v_lshlrev_b32 v14, 1, v14")
    A(f"v_add_u32 v15, {K2_KO - 2}, v14")
    A("v_and_b32 v16, 1, v6")
    A("v_cmp_eq_u32 vcc, 1, v16")
    A("v_cndmask_b32 v14, v15, v14, vcc")
    A("v_add_u32 v14, s5, v14")
    AB = [20, 21, 22, 23]
    for p in range(4):
        A(f"v_subrev_u32 v{AB[p]}, {512*(2*p+1) + 448}, v14")
    A("v_lshlrev_b32 v15, 5, v6")
    A("v_lshlrev_b32 v16, 5, v8")
    A("v_sub_u32 v15, v15, v16")
    A("v_lshlrev_b32 v16, 4, v9")
    A("v_add_u32 v15, v15, v16")
    A(f"v_add_u32 v15, {K2_U + 512 - 448}, v15")
    BB = 24
    A(f"v_add_u32 v{BB}, s5, v15")
    A("v_lshlrev_b32 v15, 5, v6")
    A("v_lshlrev_b32 v16, 3, v7")
    A("v_add_u32 v15, v15, v16")
    A("v_add_u32 v25, s5, v15")
    A("v_lshlrev_b32 v26, 1, v2")
    A(f"v_sub_u32 v26, {K2_T + 2*(384+255)}, v26")
    A("v_add_u32 v26, s5, v26")
    A("v_lshlrev_b32 v27, 2, v2")
    A(f"v_sub_u32 v27, {K2_T + 512 + 4*127}, v27")
    A("v_add_u32 v27, s5, v27")
    A("v_lshlrev_b32 v28, 4, v2")
    A("v_add_u32 v28, s5, v28")
    A("v_lshlrev_b32 v3, 3, v2")
    A("v_sub_u32 v3, 511, v3")
    for k in range(9):
        A(f"v_subrev_u32 v{30+k}, {k}, v3")
    A("v_max_i32 v38, 0, v38")
    for k in range(9):
        A(f"v_cvt_f32_i32 v{40+k}, v{30+k}")
    for k in range(0, 8, 2):
        A(f"v_cvt_pk_bf16_f32 v{50+k}, v{40+k}, v{41+k}")
        A(f"v_lshrrev_b32 v{51+k}, 16, v{50+k}")
        A(f"v_and_b32 v{50+k}, 0xffff, v{50+k}")
    A("v_cvt_pk_bf16_f32 v58, v48, v48")
    A("v_and_b32 v58, 0xffff, v58")
    A(f"s_add_u32 s12, s5, {K2_T}")
    for k in range(9):
        A(f"v_subrev_u32 v{50+k}, 17024, v{50+k}")
        A(f"v_min_i32 v{30+k}, 127, v{30+k}")
        A(f"v_max_i32 v{50+k}, v{50+k}, v{30+k}")
        A(f"v_lshlrev_b32 v{30+k}, 1, v{50+k}")
        A(f"v_add_u32 v{30+k}, s12, v{30+k}")
    A("v_and_b32 v16, 1, v2")
    A("v_cmp_eq_u32 s[20:21], 1, v16")
    A("s_mov_b32 s22, 0x01000100")
    A("s_mov_b32 s23, 0x03020302")
    AF, BF, ACC = 64, 96, 128
    for i in range(32):
        A(f"v_mov_b32 v{ACC+i}, 0")
    A("s_waitcnt vmcnt(4)")
    stamp(A, 2)
    A("v_subrev_u32 v29, 128, v26")
    for r in range(2):
        w = 40 + 8 * r
        A(f"ds_read_u16 v{w}, v{26 if r == 0 else 29}")
        A(f"ds_read_u16 v{w+1}, v{26 if r == 0 else 29} offset:2")
    A("ds_read_b32 v56, v27")
    A("ds_read_u16 v57, v27 offset:4")
    for k in range(9):
        A(f"ds_read_u16 v{100+k}, v{30+k}")
    A("s_waitcnt lgkmcnt(0)")
    for k in range(4):
        A(f"v_lshl_or_b32 v{60+k}, v{101+2*k}, 16, v{100+2*k}")
    A("v_mov_b32 v59, v108")
    for r in range(2):
        w = 40 + 8 * r
        A(f"v_lshl_or_b32 v{w}, v{w+1}, 16, v{w}")
    for r in range(2):
        w = 40 + 8 * r
        A(f"v_perm_b32 v{w+2}, v{w}, v{w}, s23")
        A(f"v_perm_b32 v{w+4}, v{w}, v{w}, s22")
        A(f"v_alignbit_b32 v{w+1}, v{w}, v{w}, 16")
        A(f"v_mov_b32 v{w+5}, v{w+4}")
        A(f"v_mov_b32 v{w+6}, v{w+2}")
        A(f"v_cndmask_b32 v{w+3}, v{w+2}, v{w+1}, s[20:21]")
        A(f"v_cndmask_b32 v{w+7}, v{w+1}, v{w+4}, s[20:21]")
        A(f"ds_write_b64 v28, {vr(w+2,2)} offset:{K2_KE + 1024*r}")
        A(f"ds_write_b64 v28, {vr(w+4,2)} offset:{K2_KE + 1024*r + 8}")
        A(f"ds_write_b64 v28, {vr(w+6,2)} offset:{K2_KO + 1024*r}")
        A(f"ds_write_b64 v28, {vr(w+4,2)} offset:{K2_KO + 1024*r + 8}")
    A("v_perm_b32 v40, v57, v57, s22")
    A("v_perm_b32 v41, v56, v56, s23")
    A("v_alignbit_b32 v42, v56, v56, 16")
    A("v_perm_b32 v43, v56, v56, s22")
    A("s_mov_b32 s24, 0x07060100")
    A("v_perm_b32 v44, v56, v57, s24")
    A("v_mov_b32 v45, v41")
    A("v_mov_b32 v46, v43")
    A("v_mov_b32 v47, v43")
    A(f"ds_write_b128 v28, v[40:43] offset:{K2_KE + 2048}")
    A(f"ds_write_b128 v28, v[44:47] offset:{K2_KO + 2048}")
    A("v_alignbit_b32 v48, v61, v60, 16")
    A("v_alignbit_b32 v49, v62, v61, 16")
    A("v_alignbit_b32 v50, v63, v62, 16")
    A("v_alignbit_b32 v51, v59, v63, 16")
    A(f"ds_write_b128 v28, v[60:63] offset:{K2_KE + 3072}")
    A(f"ds_write_b128 v28, v[48:51] offset:{K2_KO + 3072}")
    A(f"v_mov_b32 v14, s5")
    A(f"ds_write_b16 v14, v12 offset:{K2_KO + 2*2047}")
    A("s_bitcmp1_b32 s4, 0")
    A("s_cbranch_scc1 K2_ODD")
    A("s_lshl_b32 s11, s11, 16")
    A.label("K2_ODD")
    A("s_and_b32 s11, s11, 0xffff0000")

    def loadA(q, i0):
        p = q // 2
        o = (128 if q % 2 == 0 else 0) + 16 * (7 - i0)
        return [f"ds_read2_b32 {vr(AF+4*q,2)}, v{AB[p]} offset0:{o} offset1:{o+1}",
                f"ds_read2_b32 {vr(AF+4*q+2,2)}, v{AB[p]} offset0:{o+2} offset1:{o+3}"]

    def loadB(tau, i0):
        return [f"ds_read_b128 {vr(BF+4*tau,4)}, v{BB} offset:{512*tau + 64*(7-i0)}"]

    A("s_waitcnt vmcnt(0)")
    stamp(A, 3)
    for q in range(8):
        for s in loadB(7 - q, 0):
            A(s)
    for q in range(8):
        for s in loadA(q, 0):
            A(s)
    queue = []
    for q in range(8):
        queue.append(("B", 7 - q))
    for q in range(8):
        queue += [("A", q), ("A", q)]

    pending = []

    def wait_for(tags):
        while any(tg in tags for _, tg in pending):
            s_, tg = pending.pop(0)
            A(s_)
            queue.append(tg)
        last = -1
        for i, t in enumerate(queue):
            if t in tags:
                last = i
        if last >= 0:
            n = len(queue) - 1 - last
            A(f"s_waitcnt lgkmcnt({min(n, 15)})")
            del queue[:last + 1]

    for i0 in range(8):
        for q in range(8):
            for tau in range(7 - q, -1, -1):
                wait_for({("A", q), ("B", tau)})
                t = q + tau
                A(f"v_mfma_f32_16x16x32_f16 {vr(ACC+4*t,4)}, {vr(AF+4*q,4)}, {vr(BF+4*tau,4)}, {vr(ACC+4*t,4)}")
                if i0 < 7:
                    if tau == 7 - q:
                        pending.insert(0, (loadB(7 - q, i0 + 1)[0], ("B", 7 - q)))
                    if tau == 0:
                        for s in loadA(q, i0 + 1):
                            pending.append((s, ("A", q)))
                if pending:
                    s, tag = pending.pop(0)
                    A(s)
                    queue.append(tag)
    assert not pending or True
    stamp(A, 4)
    for t in range(8):
        A(f"ds_read_b64 {vr(64+2*t,2)}, v25 offset:{K2_U + 512 + 512*t}")
    A(f"v_mov_b32 v34, {ONE_LO}")
    A(f"v_mov_b32 v35, {ONE_HI}")
    A("s_mov_b32 s12, s10")
    A("s_mov_b32 s13, s10")
    A("v_mov_b32 v36, s10")
    A("v_mov_b32 v37, s10")
    A("s_waitcnt lgkmcnt(0)")
    for t in range(8):
        a = ACC + 4 * t
        u = 64 + 2 * t
        tm = 40 + 8 * (t & 1)
        A(f"v_pk_mul_f32 {vr(a,2)}, {vr(a,2)}, v[36:37]")
        A(f"v_pk_mul_f32 {vr(a+2,2)}, {vr(a+2,2)}, v[36:37]")
        A(f"v_fma_mix_f32 v{tm}, v{u}, s11, 0 op_sel:[0,0,0] op_sel_hi:[1,0,0]")
        A(f"v_fma_mix_f32 v{tm+1}, v{u}, s11, 0 op_sel:[1,0,0] op_sel_hi:[1,0,0]")
        A(f"v_fma_mix_f32 v{tm+2}, v{u+1}, s11, 0 op_sel:[0,0,0] op_sel_hi:[1,0,0]")
        A(f"v_fma_mix_f32 v{tm+3}, v{u+1}, s11, 0 op_sel:[1,0,0] op_sel_hi:[1,0,0]")
        A(f"v_cvt_pk_bf16_f32 v{a}, v{a}, v{a+1}")
        A(f"v_cvt_pk_bf16_f32 v{a+1}, v{a+2}, v{a+3}")
        A(f"v_cvt_pk_bf16_f32 v{tm+4}, v{tm}, v{tm+1}")
        A(f"v_cvt_pk_bf16_f32 v{tm+5}, v{tm+2}, v{tm+3}")
        A(f"v_lshlrev_b32 v{tm}, 16, v{tm+4}")
        A(f"v_and_b32 v{tm+1}, 0xffff0000, v{tm+4}")
        A(f"v_lshlrev_b32 v{tm+2}, 16, v{tm+5}")
        A(f"v_and_b32 v{tm+3}, 0xffff0000, v{tm+5}")
        A(f"v_dot2_f32_bf16 v{tm}, v{a}, v34, v{tm}")
        A(f"v_dot2_f32_bf16 v{tm+1}, v{a}, v35, v{tm+1}")
        A(f"v_dot2_f32_bf16 v{tm+2}, v{a+1}, v34, v{tm+2}")
        A(f"v_dot2_f32_bf16 v{tm+3}, v{a+1}, v35, v{tm+3}")
        A(f"v_cvt_pk_bf16_f32 v{a+2}, v{tm}, v{tm+1}")
        A(f"v_cvt_pk_bf16_f32 v{a+3}, v{tm+2}, v{tm+3}")
        A(f"ds_write_b64 v25, {vr(a+2,2)} offset:{K2_KE + 512*t}")
    stamp(A, 5)
    A("s_waitcnt lgkmcnt(0)")
    A("s_barrier")
    A("v_lshrrev_b32 v14, 2, v6")
    A(f"v_mul_u32_u24 v14, {K2_WB}, v14")
    A("v_and_b32 v15, 3, v2")
    A("v_lshlrev_b32 v15, 3, v15")
    A("v_add_u32 v14, v14, v15")
    A("v_lshlrev_b32 v15, 5, v7")
    A("v_add_u32 v14, v14, v15")
    A("s_lshl_b32 s12, s3, 10")
    A("v_add_u32 v14, s12, v14")
    for k in range(8):
        A(f"ds_read_b64_tr_b16 {vr(40+2*k,2)}, v14 offset:{K2_KE + 128*k}")
    A("v_lshrrev_b32 v15, 3, v6")
    A("v_lshlrev_b32 v16, 1, v7")
    A("v_add_u32 v15, v15, v16")
    A("v_mul_u32_u24 v15, 10240, v15")
    A("v_and_b32 v16, 7, v6")
    A("v_lshlrev_b32 v16, 4, v16")
    A("v_add_u32 v15, v15, v16")
    A("s_mul_i32 s12, s3, 655360")
    A("s_lshr_b32 s13, s35, 1")
    A("s_lshl_b32 s13, s13, 7")
    A("s_add_u32 s12, s12, s13")
    A("s_and_b32 s13, s35, 1")
    A("s_lshl_b32 s13, s13, 3")
    A("s_add_u32 s12, s12, s13")
    A(f"s_add_u32 s12, s12, {WS_AT}")
    A("v_add_u32 v15, s12, v15")
    A("s_waitcnt lgkmcnt(0)")
    for k in range(8):
        A(f"global_store_dwordx2 v15, {vr(40+2*k,2)}, s[32:33] {ST_OPT[0]}")
        if k < 7:
            A("v_add_u32 v15, 81920, v15")
    k_end(A, 1)

    wt_role(A, "K2", 160, 4, 12288, K2_WT_RANGE[0], K2_WT_RANGE[1], 1, WT_OPT[0], K2_NWT * 4)
    A.label("K2_END")
    A("s_endpgm")


K3_LDS = 0


def k3(A):
    A("s_cmp_ge_u32 s2, 256")
    A("s_cbranch_scc1 K3_END")
    k_begin(A)
    A("s_load_dwordx2 s[32:33], s[0:1], 112")
    A("s_load_dwordx2 s[26:27], s[0:1], 0")
    A("s_load_dwordx2 s[28:29], s[0:1], 64")
    A("s_load_dwordx2 s[30:31], s[0:1], 96")
    A("v_lshrrev_b32 v7, 5, v0")
    A("v_and_b32 v4, 31, v0")
    A("s_mul_i32 s4, s2, 10240")
    A("v_lshlrev_b32 v5, 4, v4")
    A("v_mul_u32_u24 v6, 1280, v7")
    A("v_add_u32 v6, v6, v5")
    A("v_add_u32 v8, s4, v6")
    A("v_lshlrev_b32 v3, 7, v4")
    A("v_lshl_add_u32 v3, v7, 4, v3")
    A(f"s_add_u32 s5, s4, {WS_AT}")
    A("v_add_u32 v3, s5, v3")
    A("v_add_u32 v9, 8192, v3")
    AR, XR, WR = 20, 32, 44
    for i in range(4):
        A(f"v_mov_b32 v{AR+8+i}, 0")
        A(f"v_mov_b32 v{XR+8+i}, 0")
        A(f"v_mov_b32 v{WR+8+i}, 0")
    A("v_cmp_gt_u32 s[20:21], 16, v4")
    A("s_waitcnt lgkmcnt(0)")
    stamp(A, 1)
    A(f"global_load_dwordx4 {vr(AR,4)}, v3, s[32:33]")
    A(f"global_load_dwordx4 {vr(XR,4)}, v8, s[26:27]")
    A(f"global_load_dwordx4 {vr(AR+4,4)}, v3, s[32:33] offset:4095".replace("offset:4095", "offset:0") if False else
      f"global_load_dwordx4 {vr(XR+4,4)}, v8, s[26:27] offset:512")
    A("v_add_u32 v10, 4096, v3")
    A(f"global_load_dwordx4 {vr(AR+4,4)}, v10, s[32:33]")
    A("s_mov_b64 exec, s[20:21]")
    A(f"global_load_dwordx4 {vr(AR+8,4)}, v9, s[32:33]")
    A(f"global_load_dwordx4 {vr(XR+8,4)}, v8, s[26:27] offset:1024")
    A(f"global_load_dwordx4 {vr(WR+8,4)}, v5, s[28:29] offset:1024")
    A("s_mov_b64 exec, -1")
    A(f"global_load_dwordx4 {vr(WR,4)}, v5, s[28:29]")
    A(f"global_load_dwordx4 {vr(WR+4,4)}, v5, s[28:29] offset:512")
    A(f"v_mov_b32 v12, {ONE_LO}")
    A(f"v_mov_b32 v13, {ONE_HI}")
    A("v_mov_b32 v14, 0x3f803f80")
    for r in (10, 11, 16, 17):
        A(f"v_mov_b32 v{r}, 0")
    A(f"v_add_u32 v9, {WS_L2}, v8")
    H = 56
    T = 68
    A("s_waitcnt vmcnt(3)")
    stamp(A, 2)
    N = 12
    for i in range(N):
        A(f"v_lshlrev_b32 v{T+2*i}, 16, v{AR+i}")
        A(f"v_and_b32 v{T+2*i+1}, 0xffff0000, v{AR+i}")
    for i in range(N):
        A(f"v_dot2_f32_bf16 v{T+2*i}, v{XR+i}, v12, v{T+2*i}")
        A(f"v_dot2_f32_bf16 v{T+2*i+1}, v{XR+i}, v13, v{T+2*i+1}")
    for i in range(N):
        A(f"v_cvt_pk_bf16_f32 v{H+i}, v{T+2*i}, v{T+2*i+1}")
    for i in range(0, N, 2):
        A(f"v_dot2c_f32_bf16 v10, v{H+i}, v14")
        A(f"v_dot2c_f32_bf16 v11, v{H+i}, v{H+i}")
        A(f"v_dot2c_f32_bf16 v16, v{H+i+1}, v14")
        A(f"v_dot2c_f32_bf16 v17, v{H+i+1}, v{H+i+1}")
    A("s_nop 2")
    A("v_add_f32 v10, v10, v16")
    A("v_add_f32 v11, v11, v17")

    def red(regs, tmps):
        for sh in (8, 4, 2, 1):
            for r in regs:
                A(f"v_add_f32_dpp v{r}, v{r}, v{r} row_ror:{sh} row_mask:0xf bank_mask:0xf")
        for r, t in zip(regs, tmps):
            A(f"v_mov_b32 v{t}, v{r}")
        for r, t in zip(regs, tmps):
            A(f"v_permlane16_swap_b32 v{r}, v{t}")
        for r, t in zip(regs, tmps):
            A(f"v_add_f32 v{r}, v{r}, v{t}")
    red([10, 11], [16, 17])
    ln_finish(A, 10, 11, 15)
    A("v_sub_f32 v10, 0, v10")
    stamp(A, 3)
    L, O = AR, XR
    for i in range(N):
        A(f"v_dot2_f32_bf16 v{T+2*i}, v{H+i}, v12, v10")
        A(f"v_dot2_f32_bf16 v{T+2*i+1}, v{H+i}, v13, v10")
    for i in range(N):
        A(f"v_cvt_pk_bf16_f32 v{L+i}, v{T+2*i}, v{T+2*i+1}")
    for i in range(N):
        A(f"v_lshlrev_b32 v{T+2*i}, 16, v{L+i}")
        A(f"v_and_b32 v{T+2*i+1}, 0xffff0000, v{L+i}")
    A("v_mov_b32 v16, v11")
    A("v_mov_b32 v17, v11")
    for i in range(N):
        A(f"v_pk_mul_f32 {vr(T+2*i,2)}, {vr(T+2*i,2)}, v[16:17]")
    for i in range(N):
        A(f"v_cvt_pk_bf16_f32 v{L+i}, v{T+2*i}, v{T+2*i+1}")
    A(f"global_store_dwordx4 v9, {vr(L,4)}, s[32:33] {ST_OPT[0]}")
    A(f"global_store_dwordx4 v9, {vr(L+4,4)}, s[32:33] offset:512 {ST_OPT[0]}")
    A("s_mov_b64 exec, s[20:21]")
    A(f"global_store_dwordx4 v9, {vr(L+8,4)}, s[32:33] offset:1024 {ST_OPT[0]}")
    A("s_mov_b64 exec, -1")
    A("v_mov_b32 v14, 0")
    A("v_mov_b32 v15, 0")
    A("s_waitcnt vmcnt(3)")
    for i in range(0, N, 2):
        A(f"v_dot2c_f32_bf16 v14, v{L+i}, v{WR+i}")
        A(f"v_dot2c_f32_bf16 v15, v{L+i+1}, v{WR+i+1}")
    for i in range(N):
        A(f"v_lshlrev_b32 v{T+2*i}, 16, v{L+i}")
        A(f"v_and_b32 v{T+2*i+1}, 0xffff0000, v{L+i}")
    A("v_add_f32 v14, v14, v15")
    for i in range(N):
        A(f"v_dot2_f32_bf16 v{T+2*i}, v{H+i}, v12, v{T+2*i}")
        A(f"v_dot2_f32_bf16 v{T+2*i+1}, v{H+i}, v13, v{T+2*i+1}")
    for i in range(N):
        A(f"v_cvt_pk_bf16_f32 v{O+i}, v{T+2*i}, v{T+2*i+1}")
    stamp(A, 4)
    A(f"global_store_dwordx4 v8, {vr(O,4)}, s[30:31] {ST_OPT[0]}")
    A(f"global_store_dwordx4 v8, {vr(O+4,4)}, s[30:31] offset:512 {ST_OPT[0]}")
    A("s_mov_b64 exec, s[20:21]")
    A(f"global_store_dwordx4 v8, {vr(O+8,4)}, s[30:31] offset:1024 {ST_OPT[0]}")
    A("s_mov_b64 exec, -1")
    red([14], [15])
    A("v_cvt_pk_bf16_f32 v40, v14, v14")
    A("v_and_b32 v40, 0xffff0000, v40")
    A("v_ashrrev_i32 v41, 31, v40")
    A("v_or_b32 v41, 0x80000000, v41")
    A("v_xor_b32 v40, v40, v41")
    A("v_and_b32 v40, 0xffff0000, v40")
    A("s_lshl_b32 s6, s2, 3")
    A("v_add_u32 v42, s6, v7")
    A("v_sub_u32 v43, 2047, v42")
    A("v_or_b32 v40, v40, v43")
    A("v_lshlrev_b32 v42, 2, v42")
    A(f"v_add_u32 v42, {WS_RK}, v42")
    A("v_cmp_eq_u32 vcc, 0, v4")
    A("s_mov_b64 exec, vcc")
    A("global_store_dword v42, v40, s[32:33]")
    k_end(A, 2)
    A.label("K3_END")
    A("s_endpgm")


K4_LDS = 8192


def k4(A):
    A(f"s_cmp_ge_u32 s2, {192 + (80 if PF_WD[0] else 0)}")
    A("s_cbranch_scc1 K4_END")
    k_begin(A)
    A("s_load_dwordx2 s[32:33], s[0:1], 112")
    if PF_WD[0]:
        A("s_cmp_lt_u32 s2, 192")
        A("s_cbranch_scc1 K4_MAIN")
        A("s_sub_u32 s4, s2, 192")
        A("s_mul_i32 s4, s4, 24576")
        A(f"s_add_u32 s4, s4, {WS_WD}")
        A("v_lshlrev_b32 v3, 4, v0")
        A("v_add_u32 v3, s4, v3")
        A("s_waitcnt lgkmcnt(0)")
        for i in range(6):
            A(f"global_load_dwordx4 v[8:11], v3, s[32:33]")
            A("v_add_u32 v3, 4096, v3")
        k_end(A, 3)
        A.label("K4_MAIN")
    A("v_lshrrev_b32 v1, 6, v0")
    A("v_readfirstlane_b32 s3, v1")
    A("v_and_b32 v2, 63, v0")
    A("s_mul_i32 s4, s2, 20480")
    A("s_mul_i32 s5, s3, 5120")
    A("s_add_u32 s4, s4, s5")
    A(f"s_add_u32 s4, s4, {WS_WGU}")
    A("v_lshlrev_b32 v3, 4, v2")
    A("v_add_u32 v3, s4, v3")
    A("v_add_u32 v5, 4096, v3")
    A("v_lshlrev_b32 v4, 5, v0")
    A(f"v_add_u32 v4, {WS_RK}, v4")
    A("s_waitcnt lgkmcnt(0)")
    A("global_load_dwordx4 v[8:11], v4, s[32:33]")
    A("global_load_dwordx4 v[12:15], v4, s[32:33] offset:16")
    BFR = 40
    for i in range(4):
        A(f"global_load_dwordx4 {vr(BFR+4*i,4)}, v3, s[32:33] offset:{1024*i}")
    A(f"global_load_dwordx4 {vr(BFR+16,4)}, v5, s[32:33]")
    stamp(A, 1)
    A("s_waitcnt vmcnt(5)")
    stamp(A, 2)
    net = [(0, 1), (2, 3), (4, 5), (6, 7), (0, 2), (1, 3), (4, 6), (5, 7), (1, 2), (5, 6), (0, 4), (3, 7), (1, 5), (2, 6),
           (1, 4), (3, 6), (2, 4), (3, 5), (3, 4)]
    reg = list(range(8, 16))
    spare = 16
    for a, b in net:
        A(f"v_max_u32 v{spare}, v{reg[a]}, v{reg[b]}")
        A(f"v_min_u32 v{reg[b]}, v{reg[a]}, v{reg[b]}")
        reg[a], spare = spare, reg[a]
    for r in range(8):
        A(f"v_mov_b32 v17, v{reg[0]}")
        for sh in (1, 2, 4, 8):
            A(f"v_max_u32_dpp v17, v17, v17 row_shr:{sh} row_mask:0xf bank_mask:0xf")
        A("v_max_u32_dpp v17, v17, v17 row_bcast:15 row_mask:0xa bank_mask:0xf")
        A("v_max_u32_dpp v17, v17, v17 row_bcast:31 row_mask:0xc bank_mask:0xf")
        A(f"v_readlane_b32 s{40+r}, v17, 63")
        if r < 7:
            A(f"v_cmp_eq_u32 vcc, s{40+r}, v{reg[0]}")
            for k in range(7 - r):
                A(f"v_cndmask_b32 v{reg[k]}, v{reg[k]}, v{reg[k+1]}, vcc")
    stamp(A, 3)
    A("v_mov_b32 v16, s40")
    for r in range(1, 8):
        A(f"v_writelane_b32 v16, s{40+r}, {r}")
    A("s_lshl_b32 s6, s3, 5")
    A("v_lshlrev_b32 v17, 2, v2")
    A("v_add_u32 v17, s6, v17")
    A("v_cmp_gt_u32 vcc, 8, v2")
    A("s_and_saveexec_b64 s[20:21], vcc")
    A("ds_write_b32 v17, v16")
    A("s_mov_b64 exec, s[20:21]")
    A("s_waitcnt lgkmcnt(0)")
    A("s_barrier")
    A("v_and_b32 v17, 31, v2")
    A("v_lshlrev_b32 v17, 2, v17")
    A("ds_read_b32 v16, v17")
    A("v_mov_b32 v18, 0")
    for i in range(8):
        A(f"ds_read_b128 {vr(60+4*i,4)}, v18 offset:{16*i}")
    A("v_mov_b32 v19, 0")
    A("v_mov_b32 v20, 0")
    A("s_waitcnt lgkmcnt(0)")
    sp = ["s[50:51]", "s[52:53]", "s[54:55]", "s[56:57]"]
    for i in range(0, 32, 4):
        for k in range(4):
            A(f"v_cmp_gt_u32 {sp[k]}, v{60+i+k}, v16")
        for k in range(4):
            A(f"v_addc_co_u32 v{19 + (k & 1)}, vcc, 0, v{19 + (k & 1)}, {sp[k]}")
    A("v_add_u32 v19, v19, v20")
    A("v_cmp_gt_u32 vcc, 8, v19")
    A("v_cmp_gt_u32 s[22:23], 32, v2")
    A("s_and_b64 vcc, vcc, s[22:23]")
    A("v_lshlrev_b32 v19, 2, v19")
    A("s_lshl_b32 s6, s3, 6")
    A("s_add_u32 s6, s6, 256")
    A("v_add_u32 v19, s6, v19")
    A("s_and_saveexec_b64 s[20:21], vcc")
    A("ds_write_b32 v19, v16")
    A("s_mov_b64 exec, s[20:21]")
    A("v_and_b32 v17, 7, v2")
    A("v_lshlrev_b32 v17, 2, v17")
    A("v_add_u32 v17, s6, v17")
    A("ds_read_b32 v16, v17")
    A("v_lshrrev_b32 v21, 4, v2")
    A("v_lshlrev_b32 v21, 4, v21")
    A("s_mul_i32 s6, s3, 320")
    A(f"s_add_u32 s6, s6, {WS_L2}")
    A("v_add_u32 v21, s6, v21")
    A("s_waitcnt lgkmcnt(0)")
    A("v_and_b32 v18, 0x7ff, v16")
    A("v_sub_u32 v18, 2047, v18")
    A("v_mul_u32_u24 v20, 1280, v18")
    A("v_add_u32 v20, v20, v21")
    AFR = 60
    for i in range(5):
        A(f"global_load_dwordx4 {vr(AFR+4*i,4)}, v20, s[32:33] offset:{64*i}")
    stamp(A, 4)
    A("s_or_b32 s6, s2, s3")
    A("s_cmp_lg_u32 s6, 0")
    A("s_cbranch_scc1 K4_NOSEL")
    A("v_and_b32 v22, 0xffff0000, v16")
    A("v_ashrrev_i32 v23, 31, v22")
    A("v_not_b32 v23, v23")
    A("v_or_b32 v23, 0x80000000, v23")
    A("v_xor_b32 v22, v22, v23")
    A("v_and_b32 v22, 0xffff0000, v22")
    A(f"v_mul_f32 v22, {hex(fbits(-LOG2E))}, v22")
    A("v_exp_f32 v22, v22")
    A("v_add_f32 v22, 1.0, v22")
    A("v_rcp_f32 v22, v22")
    bf16_round(A, 22)
    A("v_lshlrev_b32 v23, 2, v2")
    A(f"v_add_u32 v23, {WS_SEL}, v23")
    A("v_cmp_gt_u32 vcc, 8, v2")
    A("s_and_saveexec_b64 s[20:21], vcc")
    A("global_store_dword v23, v18, s[32:33]")
    A("global_store_dword v23, v22, s[32:33] offset:32")
    A("s_mov_b64 exec, s[20:21]")
    A.label("K4_NOSEL")
    for i in range(4):
        A(f"v_mov_b32 v{24+i}, 0")
    A("v_lshlrev_b32 v28, 4, v2")
    A("s_lshl_b32 s6, s3, 10")
    A("v_add_u32 v29, s6, v28")
    for i in range(5):
        A(f"s_waitcnt vmcnt({4-i})")
        A(f"v_mfma_f32_16x16x32_bf16 v[24:27], {vr(AFR+4*i,4)}, {vr(BFR+4*i,4)}, v[24:27]")
    stamp(A, 5)
    A("ds_write_b128 v29, v[24:27] offset:1024")
    A("s_waitcnt lgkmcnt(0)")
    A("s_barrier")
    A("s_cmp_lg_u32 s3, 0")
    A("s_cbranch_scc1 K4_DONE")
    for w in range(4):
        A(f"ds_read_b128 {vr(40+4*w,4)}, v28 offset:{1024 + 1024*w}")
    A("v_and_b32 v56, 15, v2")
    A("v_lshrrev_b32 v57, 4, v2")
    A("v_mul_u32_u24 v58, 12288, v57")
    A("v_lshlrev_b32 v59, 1, v56")
    A("v_add_u32 v58, v58, v59")
    A("s_lshl_b32 s6, s2, 4")
    A(f"s_add_u32 s6, s6, {WS_ACT}")
    A("v_add_u32 v58, s6, v58")
    A("v_add_u32 v59, 6144, v58")
    A("v_cmp_gt_u32 vcc, 8, v56")
    A("v_cmp_gt_u32 s[22:23], 2, v57")
    A("s_and_b64 s[22:23], vcc, s[22:23]")
    A("s_waitcnt lgkmcnt(0)")
    for i in range(4):
        A(f"v_add_f32 v{40+i}, v{40+i}, v{44+i}")
        A(f"v_add_f32 v{48+i}, v{48+i}, v{52+i}")
    for i in range(4):
        A(f"v_add_f32 v{40+i}, v{40+i}, v{48+i}")
    A("v_cvt_pk_bf16_f32 v44, v40, v41")
    A("v_cvt_pk_bf16_f32 v45, v42, v43")
    A("v_lshlrev_b32 v40, 16, v44")
    A("v_and_b32 v41, 0xffff0000, v44")
    A("v_lshlrev_b32 v42, 16, v45")
    A("v_and_b32 v43, 0xffff0000, v45")
    for i in range(4):
        A(f"v_mul_f32 v{48+i}, {hex(fbits(-LOG2E))}, v{40+i}")
    for i in range(4):
        A(f"v_exp_f32 v{48+i}, v{48+i}")
    for i in range(4):
        A(f"v_mov_b32_dpp v{44+i}, v{40+i} row_shl:8 row_mask:0xf bank_mask:0xf")
    for i in range(4):
        A(f"v_add_f32 v{48+i}, 1.0, v{48+i}")
    for i in range(4):
        A(f"v_rcp_f32 v{48+i}, v{48+i}")
    for i in range(4):
        A(f"v_mul_f32 v{40+i}, v{40+i}, v{48+i}")
    A("v_cvt_pk_bf16_f32 v48, v40, v41")
    A("v_cvt_pk_bf16_f32 v49, v42, v43")
    A("v_lshlrev_b32 v40, 16, v48")
    A("v_and_b32 v41, 0xffff0000, v48")
    A("v_lshlrev_b32 v42, 16, v49")
    A("v_and_b32 v43, 0xffff0000, v49")
    for i in range(4):
        A(f"v_mul_f32 v{40+i}, v{40+i}, v{44+i}")
    A("v_cvt_pk_bf16_f32 v40, v40, v41")
    A("v_cvt_pk_bf16_f32 v42, v42, v43")
    A("s_mov_b64 exec, s[22:23]")
    A("global_store_short v58, v40, s[32:33]")
    A("global_store_short_d16_hi v58, v40, s[32:33] offset:3072")
    A("global_store_short v59, v42, s[32:33]")
    A("global_store_short_d16_hi v59, v42, s[32:33] offset:3072")
    A.label("K4_DONE")
    k_end(A, 3)
    A.label("K4_END")
    A("s_endpgm")


K5_LDS = 8192


def k5(A):
    A("s_cmp_ge_u32 s2, 80")
    A("s_cbranch_scc1 K5_END")
    k_begin(A)
    A("s_load_dwordx2 s[32:33], s[0:1], 112")
    A("s_load_dwordx2 s[30:31], s[0:1], 96")
    A("s_load_dwordx2 s[26:27], s[0:1], 0")
    A("v_lshrrev_b32 v1, 6, v0")
    A("v_readfirstlane_b32 s3, v1")
    A("v_and_b32 v2, 63, v0")
    A("s_mul_i32 s4, s2, 24576")
    A("s_mul_i32 s5, s3, 3072")
    A("s_add_u32 s4, s4, s5")
    A(f"s_add_u32 s4, s4, {WS_WD}")
    A("v_lshrrev_b32 v5, 4, v2")
    A("v_and_b32 v4, 7, v2")
    A("v_lshlrev_b32 v3, 7, v5")
    A("v_lshlrev_b32 v6, 4, v4")
    A("v_add_u32 v3, v3, v6")
    A("v_add_u32 v3, s4, v3")
    A("v_mul_u32_u24 v4, 3072, v4")
    A("v_lshlrev_b32 v6, 4, v5")
    A("v_add_u32 v4, v4, v6")
    A("s_mul_i32 s6, s3, 384")
    A(f"s_add_u32 s6, s6, {WS_ACT}")
    A("v_add_u32 v4, s6, v4")
    A("v_and_b32 v7, 1, v5")
    A("v_lshlrev_b32 v7, 4, v7")
    A(f"v_add_u32 v7, {WS_SEL}, v7")
    A("s_waitcnt lgkmcnt(0)")
    stamp(A, 1)
    BFR, AFR = 40, 64
    for i in range(4):
        A(f"v_mov_b32 v{20+i}, 0")
    A("s_cmp_lg_u32 s3, 0")
    A("s_cbranch_scc1 K5_NOSEL")
    A("global_load_dwordx4 v[8:11], v7, s[32:33]")
    A("global_load_dwordx4 v[12:15], v7, s[32:33] offset:32")
    A.label("K5_NOSEL")
    A("v_and_b32 v16, 8, v2")
    A("v_cmp_eq_u32 vcc, 0, v16")
    A("s_mov_b64 exec, vcc")
    for i in range(6):
        A(f"global_load_dwordx4 {vr(AFR+4*i,4)}, v4, s[32:33] offset:{64*i}")
        A(f"global_load_dwordx4 {vr(BFR+4*i,4)}, v3, s[32:33] offset:{512*i}")
    A("s_mov_b64 exec, -1")
    for i in range(4):
        A(f"v_mov_b32 v{32+i}, 0")
    A("s_cmp_lg_u32 s3, 0")
    A("s_cbranch_scc1 K5_MM")
    A("v_and_b32 v16, 7, v2")
    A("s_lshl_b32 s6, s2, 3")
    A("v_add_u32 v16, s6, v16")
    A("v_lshrrev_b32 v17, 3, v16")
    A("v_lshlrev_b32 v17, 7, v17")
    A("v_and_b32 v18, 7, v16")
    A("v_lshl_add_u32 v17, v18, 1, v17")
    A(f"v_add_u32 v17, {WS_AT}, v17")
    A("s_waitcnt vmcnt(12)")
    for i in range(4):
        A(f"v_mul_u32_u24 v{20+i}, 1280, v{8+i}")
        A(f"v_lshl_add_u32 v{20+i}, v16, 1, v{20+i}")
        A(f"v_add_u32 v18, {WS_L2}, v{20+i}")
        A(f"global_load_ushort v{24+i}, v18, s[32:33]")
        A(f"global_load_ushort v{28+i}, v{20+i}, s[26:27]")
        A(f"v_lshrrev_b32 v18, 3, v{8+i}")
        A("v_mul_u32_u24 v18, 10240, v18")
        A(f"v_and_b32 v19, 7, v{8+i}")
        A("v_lshl_add_u32 v18, v19, 4, v18")
        A("v_add_u32 v18, v18, v17")
        A(f"global_load_ushort v{36+i}, v18, s[32:33]")
    A("s_waitcnt vmcnt(12)")
    A("s_branch K5_MM2")
    A.label("K5_MM")
    A("s_waitcnt vmcnt(0)")
    A.label("K5_MM2")
    stamp(A, 3)
    for i in range(6):
        A(f"v_mfma_f32_16x16x32_bf16 v[32:35], {vr(AFR+4*i,4)}, {vr(BFR+4*i,4)}, v[32:35]")
    A("v_lshlrev_b32 v88, 4, v2")
    A("s_lshl_b32 s6, s3, 10")
    A("v_add_u32 v89, s6, v88")
    A("ds_write_b128 v89, v[32:35]")
    A("s_waitcnt lgkmcnt(0)")
    A("s_barrier")
    A("s_cmp_lg_u32 s3, 0")
    A("s_cbranch_scc1 K5_DONE")
    for w in range(8):
        A(f"ds_read_b128 {vr(40+4*w,4)}, v88 offset:{1024*w}")
    A("s_waitcnt vmcnt(0) lgkmcnt(0)")
    for st in (16, 8, 4):
        for j in range(st):
            A(f"v_add_f32 v{40+j}, v{40+j}, v{40+st+j}")
    for i in range(4):
        A(f"v_lshlrev_b32 v{28+i}, 16, v{28+i}")
        A(f"v_lshlrev_b32 v{36+i}, 16, v{36+i}")
        A(f"v_add_f32 v{28+i}, v{28+i}, v{36+i}")
        bf16_round(A, 28 + i)
    for i in range(4):
        bf16_round(A, 40 + i)
        A(f"v_mul_f32 v{40+i}, v{40+i}, v{12+i}")
        bf16_round(A, 40 + i)
        A(f"v_lshlrev_b32 v{24+i}, 16, v{24+i}")
        A(f"v_add_f32 v{40+i}, v{40+i}, v{24+i}")
        bf16_round(A, 40 + i)
        A(f"v_add_f32 v{40+i}, v{40+i}, v{28+i}")
        A(f"v_cvt_pk_bf16_f32 v{40+i}, v{40+i}, v{40+i}")
    A("v_and_b32 v16, 15, v2")
    A("v_cmp_gt_u32 vcc, 8, v16")
    A("v_cmp_gt_u32 s[22:23], 2, v5")
    A("s_and_b64 exec, vcc, s[22:23]")
    for i in range(4):
        A(f"global_store_short v{20+i}, v{40+i}, s[30:31]")
    A.label("K5_DONE")
    k_end(A, 4)
    A.label("K5_END")
    A("s_endpgm")


KERNELS = [
    ("k1_kernel", k1, K1_WT + K1_KG + K1_LN, 192, K1_LDS, 128),
    ("k2_kernel", k2, 160 + K2_NWT, 256, K2_LDS, 160),
    ("k3_kernel", k3, 256, 256, K3_LDS, 96),
    ("k4_kernel", k4, 192 + (80 if PF_WD[0] else 0), 256, K4_LDS, 96),
    ("k5_kernel", k5, 80, 512, K5_LDS, 96),
]

KD_TMPL = """.amdhsa_kernel {name}
  .amdhsa_next_free_vgpr {vgpr}
  .amdhsa_next_free_sgpr 102
  .amdhsa_accum_offset {acc}
  .amdhsa_group_segment_fixed_size 0
  .amdhsa_kernarg_size 120
  .amdhsa_user_sgpr_count 2
  .amdhsa_user_sgpr_kernarg_segment_ptr 1
  .amdhsa_system_sgpr_workgroup_id_x 1
.end_amdhsa_kernel
"""

HEADER = """; Kernarg layout (120 bytes, ptrs only): in0..in11 at 0..88, d_out 96, d_debug 104, d_ws 112
"""


def build(kernels):
    s = HEADER
    for label, fn, grid, block, lds, vgpr in kernels:
        s += f"; @launch kernel={label} grid=({grid},1,1) block=({block},1,1) lds={lds}\n"
    s += '.amdgcn_target "amdgcn-amd-amdhsa--gfx950"\n.text\n'
    done = set()
    for label, fn, grid, block, lds, vgpr in kernels:
        if label in done:
            continue
        done.add(label)
        A = Asm()
        fn(A)
        s += f".globl {label}\n.p2align 8\n.type {label},@function\n{label}:\n" + A.finish() + "\n"
    s += '.section .rodata,"a"\n'
    done = set()
    for label, fn, grid, block, lds, vgpr in kernels:
        if label in done:
            continue
        done.add(label)
        s += ".p2align 6\n" + KD_TMPL.format(name=label, vgpr=vgpr, acc=min(256, (vgpr + 3) // 4 * 4))
    return s


if __name__ == "__main__":
    if len(sys.argv) > 2 and sys.argv[2] == "stamp":
        STAMP[0] = True
    out = build(KERNELS)
    path = sys.argv[1] if len(sys.argv) > 1 else f"cdna_kernels/{NAME}.s"
    open(path, "w").write(out)
    print("wrote", path, len(out), "bytes")
```

```python
import sys, os
sys.path.insert(0, os.path.dirname(os.path.abspath(__file__)))
import gen3
from gen3 import *

KG_SZ = 2 * K1_BUF
KEO_ST = 27712
KEO_BASE = 0
KA_KE, KA_KO = 0, 4160
KA_U = 12 * KG_SZ
U_ST = 4608
KA_T = KA_U + 4 * U_ST
T_ST = 1600
KA_SC = KA_T + 4 * T_ST
KA_LN = KA_SC + 64
KA_CNT = KA_LN
KA_STATS = KA_LN + 128
KA_STAGE = KA_LN + 192
KA_LDS = KA_STAGE + 10240 + 2560


def group_sync(A, idx, n, lbl):
    A("s_waitcnt lgkmcnt(0)")
    A(f"v_mov_b32 v118, {KA_CNT + 4*idx}")
    A("v_mov_b32 v119, 1")
    A("s_mov_b64 exec, 1")
    A("ds_add_u32 v118, v119")
    A("s_mov_b64 exec, -1")
    A("s_mov_b32 s12, 0")
    A.label(lbl)
    A("ds_read_b32 v119, v118")
    A("s_waitcnt lgkmcnt(0)")
    A("v_readfirstlane_b32 s13, v119")
    A(f"s_cmp_ge_u32 s13, {n}")
    A(f"s_cbranch_scc1 {lbl}_OK")
    A("s_add_u32 s12, s12, 1")
    A(f"s_cmp_lt_u32 s12, {1 << 22}")
    A(f"s_cbranch_scc1 {lbl}")
    A.label(lbl + "_OK")
NPROD = 96
WS_FLAG = 0x0920000
WS_EPOCH = 0x0923000
SC = os.environ.get('SCMOD', 'sc0 sc1')
SPIN_MAX = 1 << 16
POLL_SLEEP = int(os.environ.get('POLL_SLEEP', '8'))
POLL_FIRST = int(os.environ.get('POLL_FIRST', '32'))
FLAG64 = int(os.environ.get('FLAG64', '0'))


def k_end16(A, kidx):
    if STAMP[0]:
        A(f"s_memtime s[{60+2*(NSTAMP-2)}:{61+2*(NSTAMP-2)}]")
        A("s_waitcnt vmcnt(0) lgkmcnt(0)")
        A("s_memrealtime s[96:97]")
        A(f"s_memtime s[{60+2*(NSTAMP-1)}:{61+2*(NSTAMP-1)}]")
        A("s_mov_b64 exec, -1")
        A("v_lshrrev_b32 v1, 6, v0")
        A("s_lshl_b32 s98, s2, 4")
        A("v_add_u32 v1, s98, v1")
        A("v_lshlrev_b32 v1, 7, v1")
        A(f"v_add_u32 v1, {WS_STAMP + kidx * 0x200000}, v1")
        A("s_waitcnt lgkmcnt(0)")
        A("v_mov_b32 v2, s94")
        A("v_mov_b32 v3, s95")
        A("v_mov_b32 v4, s96")
        A("v_mov_b32 v5, s97")
        A("global_store_dwordx4 v1, v[2:5], s[32:33]")
        for i in range(0, NSTAMP, 2):
            for j in range(4):
                A(f"v_mov_b32 v{2+j}, s{60+2*i+j}")
            A(f"global_store_dwordx4 v1, v[2:5], s[32:33] offset:{16+8*i}")
    A("s_endpgm")


gen3.k_end = k_end16
k_end = k_end16


def arrive(A, idx):
    A("s_waitcnt lgkmcnt(0)")
    A(f"v_mov_b32 v118, {KA_CNT + 4*idx}")
    A("v_mov_b32 v119, 1")
    A("s_mov_b64 exec, 1")
    A("ds_add_u32 v118, v119")
    A("s_mov_b64 exec, -1")


def wait_count(A, idx, n, lbl, sleep=1):
    A(f"v_mov_b32 v118, {KA_CNT + 4*idx}")
    A("s_mov_b32 s12, 0")
    A.label(lbl)
    A("ds_read_b32 v119, v118")
    A("s_waitcnt lgkmcnt(0)")
    A("v_readfirstlane_b32 s13, v119")
    A(f"s_cmp_ge_u32 s13, {n}")
    A(f"s_cbranch_scc1 {lbl}_OK")
    A("s_add_u32 s12, s12, 1")
    if sleep:
        A(f"s_sleep {sleep}")
    A(f"s_cmp_lt_u32 s12, {1 << 22}")
    A(f"s_cbranch_scc1 {lbl}")
    A.label(lbl + "_OK")


def arrive_s(A, base_idx, sreg):
    A("s_waitcnt lgkmcnt(0)")
    A(f"s_lshl_b32 s12, s{sreg}, 2")
    A(f"s_add_u32 s12, s12, {KA_CNT + 4*base_idx}")
    A("v_mov_b32 v118, s12")
    A("v_mov_b32 v119, 1")
    A("s_mov_b64 exec, 1")
    A("ds_add_u32 v118, v119")
    A("s_mov_b64 exec, -1")


def wait_s(A, base_idx, sreg, n, lbl):
    A(f"s_lshl_b32 s12, s{sreg}, 2")
    A(f"s_add_u32 s12, s12, {KA_CNT + 4*base_idx}")
    A("v_mov_b32 v118, s12")
    A("s_mov_b32 s12, 0")
    A.label(lbl)
    A("ds_read_b32 v119, v118")
    A("s_waitcnt lgkmcnt(0)")
    A("v_readfirstlane_b32 s13, v119")
    A(f"s_cmp_ge_u32 s13, {n}")
    A(f"s_cbranch_scc1 {lbl}_OK")
    A("s_add_u32 s12, s12, 1")
    A("s_sleep 1")
    A(f"s_cmp_lt_u32 s12, {1 << 22}")
    A(f"s_cbranch_scc1 {lbl}")
    A.label(lbl + "_OK")


def poll_flags(A, lbl):
    if FLAG64:
        A("v_lshlrev_b32 v3, 7, v2")
        A(f"v_add_u32 v3, {WS_FLAG}, v3")
    else:
        A("v_lshrrev_b32 v3, 4, v2")
        A("v_lshlrev_b32 v3, 7, v3")
        A("v_and_b32 v10, 15, v2")
        A("v_lshl_add_u32 v3, v10, 2, v3")
        A(f"v_add_u32 v3, {WS_FLAG}, v3")
    A("s_mov_b32 s12, 0")
    if POLL_FIRST:
        A(f"s_sleep {POLL_FIRST}")
    A.label(lbl)
    if FLAG64:
        A(f"global_load_dwordx4 v[40:43], v3, s[32:33] {SC}")
    else:
        for j in range(4):
            A(f"global_load_dword v{40+j}, v3, s[32:33] offset:{512*j} {SC}")
    A("s_waitcnt vmcnt(0)")
    A("v_cmp_ne_u32 vcc, s15, v40")
    A("v_cmp_ne_u32 s[20:21], s15, v41")
    A("v_cmp_ne_u32 s[22:23], s15, v42")
    A("v_cmp_ne_u32 s[24:25], s15, v43")
    A("s_or_b64 vcc, vcc, s[20:21]")
    A("s_or_b64 s[22:23], s[22:23], s[24:25]")
    A("s_or_b64 vcc, vcc, s[22:23]")
    A("s_cmp_eq_u64 vcc, 0")
    A(f"s_cbranch_scc1 {lbl}_SEEN")
    A("s_add_u32 s12, s12, 1")
    A(f"s_cmp_ge_u32 s12, {SPIN_MAX}")
    A(f"s_cbranch_scc1 {lbl}_SEEN")
    A(f"s_sleep {POLL_SLEEP}")
    A(f"s_branch {lbl}")
    A.label(lbl + "_SEEN")


def poll_epoch(A, lbl):
    A(f"v_mov_b32 v3, {WS_EPOCH}")
    A("s_mov_b32 s12, 0")
    A("s_sleep 48")
    A.label(lbl)
    A(f"global_load_dword v40, v3, s[32:33] {SC}")
    A("s_waitcnt vmcnt(0)")
    A("v_readfirstlane_b32 s13, v40")
    A("s_cmp_eq_u32 s13, s15")
    A(f"s_cbranch_scc1 {lbl}_SEEN")
    A("s_add_u32 s12, s12, 1")
    A(f"s_cmp_ge_u32 s12, {SPIN_MAX}")
    A(f"s_cbranch_scc1 {lbl}_SEEN")
    A("s_sleep 16")
    A(f"s_branch {lbl}")
    A.label(lbl + "_SEEN")


def kgen_wave(A):
    A("s_mul_i32 s4, s34, 384")
    A("s_lshr_b32 s5, s34, 1")
    A("s_lshl_b32 s5, s5, 2")
    A("s_lshl_b32 s8, s36, 7")
    A("s_add_u32 s8, s8, s4")
    A("v_lshlrev_b32 v3, 1, v2")
    A("v_add_u32 v1, s8, v3")
    A("v_add_u32 v3, s4, v3")
    A("s_waitcnt lgkmcnt(0)")
    A("s_load_dword s6, s[26:27], s5")
    A("global_load_ushort v10, v1, s[18:19]")
    A("global_load_ushort v11, v1, s[20:21]")
    A("global_load_ushort v12, v1, s[22:23]")
    A("global_load_ushort v13, v1, s[24:25]")
    for i in range(3):
        A(f"global_load_ushort v{14+i}, v3, s[22:23] offset:{128*i}")
        A(f"global_load_ushort v{17+i}, v3, s[24:25] offset:{128*i}")
    A(f"s_mov_b32 s90, {L2E_HI}")
    A(f"s_mov_b32 s91, {L2E_LO}")
    A(f"s_mov_b32 s92, {LN2}")
    A("v_and_b32 v3, 15, v2")
    A("v_lshrrev_b32 v4, 4, v2")
    A("s_cmp_eq_u32 s36, 1")
    A("s_cbranch_scc1 KA_A1")
    A("s_cmp_eq_u32 s36, 2")
    A("s_cbranch_scc1 KA_A2")
    A("v_lshrrev_b32 v5, 1, v4")
    A("v_lshlrev_b32 v5, 7, v5")
    A("v_lshl_add_u32 v5, v3, 3, v5")
    A("v_and_b32 v6, 1, v4")
    A("v_lshl_add_u32 v5, v6, 2, v5")
    A("s_branch KA_A3")
    A.label("KA_A1")
    A("v_lshlrev_b32 v5, 1, v3")
    A("v_add_u32 v5, v5, v4")
    A("v_add_u32 v5, 384, v5")
    A("v_lshlrev_b32 v6, 4, v4")
    A("v_add_u32 v6, v6, v3")
    A("v_add_u32 v6, 480, v6")
    A("v_cmp_gt_u32 vcc, 2, v4")
    A("v_cndmask_b32 v5, v6, v5, vcc")
    A("s_branch KA_A3")
    A.label("KA_A2")
    A("v_lshlrev_b32 v5, 6, v4")
    A("v_lshlrev_b32 v6, 2, v3")
    A("v_add_u32 v5, v5, v6")
    A("v_add_u32 v5, 256, v5")
    A("v_lshlrev_b32 v6, 2, v2")
    A("v_add_u32 v6, 520, v6")
    A("v_cmp_gt_u32 vcc, 2, v4")
    A("v_cndmask_b32 v5, v6, v5, vcc")
    A("v_mov_b32 v6, 640")
    A("v_cmp_eq_u32 vcc, 32, v2")
    A("v_cndmask_b32 v5, v5, v6, vcc")
    A.label("KA_A3")
    A(f"s_mul_i32 s11, s37, {T_ST}")
    A(f"s_add_u32 s11, s11, {KA_T}")
    A("v_lshlrev_b32 v29, 1, v5")
    A("v_add_u32 v29, s11, v29")
    A(f"v_mul_u32_u24 v32, {K1_ROWB}, v3")
    A("v_lshlrev_b32 v5, 4, v4")
    A("v_add_u32 v32, v32, v5")
    A("v_add_u32 v32, s7, v32")
    AW = 120
    A("v_lshlrev_b32 v5, 2, v2")
    A(f"v_add_u32 v{AW}, s7, v5")
    for k in range(1, 8):
        A(f"v_add_u32 v{AW+k}, {(k//4)*K1_BUF + (k%4)*4*K1_ROWB}, v{AW}")
    stamp(A, 1)
    A("s_waitcnt lgkmcnt(0)")
    A("s_bitcmp1_b32 s34, 0")
    A("s_cbranch_scc1 KA_ODD")
    A("s_lshl_b32 s6, s6, 16")
    A.label("KA_ODD")
    A("s_and_b32 s6, s6, 0xffff0000")
    A("v_mov_b32 v5, s6")
    exp_bf16(A, 33, 5, 6, 7)
    A("s_waitcnt vmcnt(0)")
    stamp(A, 2)
    for i in range(6):
        A(f"v_and_b32 v{14+i}, 0x7fff, v{14+i}")
    A("v_max3_u32 v14, v14, v15, v16")
    A("v_max3_u32 v17, v17, v18, v19")
    A("v_max_u32 v14, v14, v17")
    A("v_lshlrev_b32 v10, 16, v10")
    A("v_lshlrev_b32 v11, 16, v11")
    A("v_mul_f32 v6, s90, v10")
    A("v_max_u32_dpp v14, v14, v14 row_shr:1 row_mask:0xf bank_mask:0xf")
    A("v_fma_f32 v7, v10, s90, -v6")
    A("v_exp_f32 v34, v6")
    A("v_max_u32_dpp v14, v14, v14 row_shr:2 row_mask:0xf bank_mask:0xf")
    A("v_fma_f32 v7, v10, s91, v7")
    A("v_mul_f32 v35, v11, v33")
    A("v_max_u32_dpp v14, v14, v14 row_shr:4 row_mask:0xf bank_mask:0xf")
    A("v_mul_f32 v7, s92, v7")
    A(f"v_mul_f32 v35, {INV2PI}, v35")
    A("v_max_u32_dpp v14, v14, v14 row_shr:8 row_mask:0xf bank_mask:0xf")
    A("v_fma_f32 v34, v34, v7, v34")
    A("v_lshlrev_b32 v12, 16, v12")
    A("v_max_u32_dpp v14, v14, v14 row_bcast:15 row_mask:0xa bank_mask:0xf")
    A("v_cvt_pk_bf16_f32 v34, v34, v34")
    A("v_lshlrev_b32 v13, 16, v13")
    A("v_max_u32_dpp v14, v14, v14 row_bcast:31 row_mask:0xc bank_mask:0xf")
    A("v_and_b32 v34, 0xffff0000, v34")
    A("v_mul_f32 v34, v34, v33")
    A("v_readlane_b32 s8, v14, 63")
    A("v_mul_f32 v34, s90, v34")
    A("v_sub_f32 v34, 0, v34")
    A("s_lshr_b32 s8, s8, 7")
    A("s_max_u32 s8, s8, 6")
    A("s_min_u32 s8, s8, 253")
    A("s_sub_u32 s9, 260, s8")
    A("s_lshl_b32 s9, s9, 23")
    A("s_sub_u32 s10, s8, 132")

    def direct(t, p):
        lit = "1.0" if p == 1 else hex(fbits(float(p)))
        A(f"v_mul_f32 v{t}, {lit}, v34")
        A(f"v_mul_f32 v{t+1}, {lit}, v35")
        A(f"v_fract_f32 v{t+1}, v{t+1}")

    def direct2(t):
        A(f"v_exp_f32 v{t}, v{t}")
        A(f"v_cos_f32 v{t+2}, v{t+1}")
        A(f"v_sin_f32 v{t+3}, v{t+1}")

    def direct_fin(d, t):
        A(f"v_mul_f32 v{d}, v{t}, v{t+2}")
        A(f"v_mul_f32 v{d+1}, v{t}, v{t+3}")

    C = 36
    g = {i: 38 + 2 * (i - 1) for i in range(1, 9)}
    G128, G256, G512, G1024 = 54, 56, 58, 60
    T = [62, 64, 66, 68, 70, 72, 74, 76]
    PK = list(range(78, 86))
    BF, AF = 86, 102
    h = {1: g[8]}
    for i in range(2, 9):
        h[i] = AF + 2 * (i - 2)
    AF2 = 62
    direct(62, 1)
    direct(66, 8)
    direct(70, 128)
    direct2(62)
    direct2(66)
    direct2(70)
    A(f"v_mul_f32 v{C}, s9, v12")
    A(f"v_mul_f32 v{C+1}, s9, v13")
    A("v_ldexp_f32 v6, v33, s10")
    A("s_lshl_b32 s11, s37, 2")
    A(f"s_add_u32 s11, s11, {KA_SC}")
    A("v_mov_b32 v7, s11")
    A("ds_write_b32 v7, v6")
    direct_fin(g[1], 62)
    direct_fin(g[8], 66)
    direct_fin(G128, 70)
    stamp(A, 3)

    def wr(rows_src, buf, neg):
        regs = []
        for k, (row, src) in enumerate(rows_src):
            p = PK[k % 8]
            if src is None:
                A(f"v_mov_b32 v{p}, 0x00003c00")
            else:
                A(f"v_cvt_pk_f16_f32 v{p}, v{src}, {'-' if neg else ''}v{src+1}")
            regs.append(p)
        k = 0
        n = 0
        while k < len(rows_src):
            r0 = rows_src[k][0]
            if k + 1 < len(rows_src) and rows_src[k + 1][0] // 4 == r0 // 4:
                r1 = rows_src[k + 1][0]
                A(f"ds_write2_b32 v{AW + 4*buf + r0//4}, v{regs[k]}, v{regs[k+1]} offset0:{(r0%4)*72} offset1:{(r1%4)*72}")
                k += 2
            else:
                A(f"ds_write_b32 v{AW + 4*buf + r0//4}, v{regs[k]} offset:{(r0%4)*K1_ROWB}")
                k += 1
            n += 1
        return n

    def frags(dst, buf):
        for j in range(4):
            A(f"ds_read_b128 {vr(dst+4*j,4)}, v32 offset:{buf*K1_BUF + 64*j}")

    def mfmas(acc, a, b):
        for j in range(4):
            A(f"v_mfma_f32_16x16x32_f16 {vr(acc,4)}, {vr(a+4*j,4)}, {vr(b+4*j,4)}, {vr(acc,4)}")

    cmul_batch(A, [(g[2], g[1], g[1]), (h[2], h[1], h[1]), (G256, G128, G128)])
    cmul_batch(A, [(g[3], g[2], g[1]), (g[4], g[2], g[2]), (h[3], h[2], h[1]), (h[4], h[2], h[2]), (G512, G256, G256)])
    cmul_batch(A, [(g[5], g[4], g[1]), (g[6], g[4], g[2]), (g[7], g[4], g[3]), (h[5], h[4], h[1]), (h[6], h[4], h[2]),
                   (h[7], h[4], h[3]), (h[8], h[4], h[4]), (G1024, G512, G512)])
    for i in range(4):
        A(f"v_mov_b32 v{20+i}, 0")
        A(f"v_mov_b32 v{24+i}, 0")
        A(f"v_mov_b32 v{4+i}, 0")
    wr([(0, None)] + [(i, h[i]) for i in range(1, 8)], 0, False)
    cmul_batch(A, [(T[i - 1], h[8], h[i]) for i in range(1, 8)])
    wr([(8, h[8])] + [(8 + i, T[i - 1]) for i in range(1, 8)], 0, False)
    frags(BF, 0)
    stamp(A, 4)
    c128 = T[7]
    cmul_batch(A, [(T[i - 1], C, g[i]) for i in range(1, 8)] + [(c128, C, G128)])
    wr([(0, C)] + [(i, T[i - 1]) for i in range(1, 8)], 1, True)
    cmul_batch(A, [(T[i - 1], c128, g[i]) for i in range(1, 8)])
    wr([(8, c128)] + [(8 + i, T[i - 1]) for i in range(1, 8)], 1, True)
    frags(AF, 1)
    cmul_batch(A, [(T[0], C, G512), (T[4], C, G1024)])
    cmul_batch(A, [(T[1], T[0], G128), (T[2], T[0], G256), (T[5], T[4], G256), (T[6], T[4], G512)])
    cmul_batch(A, [(T[3], T[2], G128), (T[7], T[6], G256)])
    n1 = wr([(i, T[i]) for i in range(4)] + [(8 + i, T[4 + i]) for i in range(4)], 0, True)
    c2048 = g[1]
    cmul_batch(A, [(c2048, T[4], G1024)])
    D4 = [g[3], g[5], g[7], g[8]]
    cmul_batch(A, [(D4[i], T[i], g[4]) for i in range(4)])
    A("s_waitcnt lgkmcnt(%d)" % n1)
    mfmas(20, AF, BF)
    cmul_batch(A, [(T[i], T[4 + i], G128) for i in range(4)])
    wr([(4 + i, D4[i]) for i in range(4)] + [(12 + i, T[i]) for i in range(4)], 0, True)
    frags(AF, 0)
    stamp(A, 5)
    cmul_batch(A, [(T[0], C, G256)])
    cmul_batch(A, [(T[4], T[0], G128), (T[1], T[0], g[2]), (T[2], T[0], g[4]), (T[3], T[0], g[6])])
    cmul_batch(A, [(T[5], T[4], g[2]), (T[6], T[4], g[4]), (T[7], T[4], g[6])])
    n2 = wr([(i, T[i]) for i in range(8)], 1, True)
    n2 += wr([(8, c2048)], 1, True)
    A("s_waitcnt lgkmcnt(%d)" % n2)
    mfmas(24, AF, BF)
    frags(AF2, 1)
    A("s_waitcnt lgkmcnt(0)")
    mfmas(4, AF2, BF)
    A("v_lshlrev_b32 v28, 4, v2")
    A("v_add_u32 v30, s7, v28")
    for t, r in enumerate((20, 24, 4)):
        A(f"ds_write_b128 v30, {vr(r,4)} offset:{1024*t}")
    stamp(A, 6)


def expand_round(A, r, lbl):
    A("v_lshlrev_b32 v28, 4, v2")
    A("v_add_u32 v28, s39, v28")
    A("s_mov_b32 s22, 0x01000100")
    A("s_mov_b32 s23, 0x03020302")
    if r < 2:
        A("v_lshlrev_b32 v26, 1, v2")
        A(f"v_sub_u32 v26, {2*(384+255) - 128*r}, v26")
        A("v_add_u32 v26, s40, v26")
        A("ds_read_u16 v40, v26")
        A("ds_read_u16 v41, v26 offset:2")
        A("v_and_b32 v16, 1, v2")
        A("v_cmp_eq_u32 s[20:21], 1, v16")
        A("s_waitcnt lgkmcnt(0)")
        w = 40
        A(f"v_lshl_or_b32 v{w}, v{w+1}, 16, v{w}")
        A(f"v_perm_b32 v{w+2}, v{w}, v{w}, s23")
        A(f"v_perm_b32 v{w+4}, v{w}, v{w}, s22")
        A(f"v_alignbit_b32 v{w+1}, v{w}, v{w}, 16")
        A(f"v_mov_b32 v{w+5}, v{w+4}")
        A(f"v_mov_b32 v{w+6}, v{w+2}")
        A(f"v_cndmask_b32 v{w+3}, v{w+2}, v{w+1}, s[20:21]")
        A(f"v_cndmask_b32 v{w+7}, v{w+1}, v{w+4}, s[20:21]")
        A(f"ds_write_b64 v28, {vr(w+2,2)} offset:{KA_KE + 1024*r}")
        A(f"ds_write_b64 v28, {vr(w+4,2)} offset:{KA_KE + 1024*r + 8}")
        A(f"ds_write_b64 v28, {vr(w+6,2)} offset:{KA_KO + 1024*r}")
        A(f"ds_write_b64 v28, {vr(w+4,2)} offset:{KA_KO + 1024*r + 8}")
    elif r == 2:
        A("v_lshlrev_b32 v27, 2, v2")
        A(f"v_sub_u32 v27, {512 + 4*127}, v27")
        A("v_add_u32 v27, s40, v27")
        A("ds_read_b32 v56, v27")
        A("ds_read_u16 v57, v27 offset:4")
        A("s_mov_b32 s24, 0x07060100")
        A("s_waitcnt lgkmcnt(0)")
        A("v_perm_b32 v40, v57, v57, s22")
        A("v_perm_b32 v41, v56, v56, s23")
        A("v_alignbit_b32 v42, v56, v56, 16")
        A("v_perm_b32 v43, v56, v56, s22")
        A("v_perm_b32 v44, v56, v57, s24")
        A("v_mov_b32 v45, v41")
        A("v_mov_b32 v46, v43")
        A("v_mov_b32 v47, v43")
        A(f"ds_write_b128 v28, v[40:43] offset:{KA_KE + 2048}")
        A(f"ds_write_b128 v28, v[44:47] offset:{KA_KO + 2048}")
    else:
        for k in range(9):
            A(f"ds_read_u16 v{40+k}, v{30+k}")
        A("v_mov_b32 v12, 0")
        A("v_and_b32 v14, 15, v2")
        A("v_lshlrev_b32 v14, 2, v14")
        A("v_add_u32 v14, s39, v14")
        A(f"ds_write_b32 v14, v12 offset:{KA_KE + 4096}")
        A(f"ds_write_b32 v14, v12 offset:{KA_KO + 4096}")
        A("s_waitcnt lgkmcnt(2)")
        for k in range(4):
            A(f"v_lshl_or_b32 v{52+k}, v{41+2*k}, 16, v{40+2*k}")
        A("v_alignbit_b32 v56, v53, v52, 16")
        A("v_alignbit_b32 v57, v54, v53, 16")
        A("v_alignbit_b32 v58, v55, v54, 16")
        A("v_alignbit_b32 v59, v48, v55, 16")
        A(f"ds_write_b128 v28, v[52:55] offset:{KA_KE + 3072}")
        A(f"ds_write_b128 v28, v[56:59] offset:{KA_KO + 3072}")
        A("v_mov_b32 v14, s39")
        A(f"ds_write_b16 v14, v12 offset:{KA_KO + 2*2047}")


def ka(A):
    A("s_cmp_ge_u32 s2, 256")
    A("s_cbranch_scc1 KA_END")
    k_begin(A)
    A("s_load_dwordx16 s[16:31], s[0:1], 0")
    A("s_load_dwordx4 s[44:47], s[0:1], 104")
    A("v_lshrrev_b32 v1, 6, v0")
    A("v_readfirstlane_b32 s3, v1")
    A("v_and_b32 v2, 63, v0")
    A("v_mov_b32 v3, 0")
    A("v_lshlrev_b32 v4, 2, v2")
    A(f"v_add_u32 v4, {KA_CNT}, v4")
    A("s_cmp_lg_u32 s3, 0")
    A("s_cbranch_scc1 KA_NOZ")
    A("s_mov_b64 exec, 0xffffffff")
    A("ds_write_b32 v4, v3")
    A("s_mov_b64 exec, -1")
    A.label("KA_NOZ")
    A(f"s_sub_u32 s4, s2, {NPROD}")
    pair_swizzle(A, 35, 4, 6)
    A("s_waitcnt lgkmcnt(0)")
    A("s_mov_b32 s32, s46")
    A("s_mov_b32 s33, s47")
    A("s_barrier")
    A("s_cmp_lt_u32 s3, 3")
    A("s_cbranch_scc1 KA_LN1")
    A("s_cmp_lg_u32 s3, 3")
    A("s_cbranch_scc1 KA_NOTAG")
    A(f"s_mov_b32 s14, {WS_EPOCH}")
    A("s_load_dword s15, s[32:33], s14")
    A(f"v_mov_b32 v118, {KA_CNT + 96}")
    A("s_waitcnt lgkmcnt(0)")
    A("s_mul_i32 s15, s15, 0x9E3779B1")
    A("s_add_u32 s15, s15, 0x632BE5AB")
    A("v_mov_b32 v119, s15")
    A("ds_write_b32 v118, v119")
    A("s_waitcnt lgkmcnt(0)")
    A(f"v_mov_b32 v118, {KA_CNT + 12}")
    A("v_mov_b32 v119, 1")
    A("s_mov_b64 exec, 1")
    A("ds_add_u32 v118, v119")
    A("s_mov_b64 exec, -1")
    A(f"s_cmp_ge_u32 s2, {NPROD}")
    A("s_cbranch_scc1 KA_CONV")
    A("s_branch KA_WTPOLL")
    A.label("KA_NOTAG")
    A(f"s_cmp_lt_u32 s2, {NPROD}")
    A("s_cbranch_scc1 KA_WT0")
    A("s_sub_u32 s4, s3, 4")
    A("s_mul_i32 s37, s4, 11")
    A("s_lshr_b32 s37, s37, 5")
    A("s_mul_i32 s36, s37, 3")
    A("s_sub_u32 s36, s4, s36")
    A("s_lshl_b32 s34, s35, 2")
    A("s_add_u32 s34, s34, s37")
    A(f"s_mul_i32 s7, s4, {KG_SZ}")
    kgen_wave(A)
    arrive_s(A, 4, 37)
    wait_s(A, 4, 37, 3, "KA_W4")
    stamp(A, 7)
    A(f"s_mul_i32 s11, s37, {3*KG_SZ}")
    A("s_lshl_b32 s12, s36, 10")
    A("s_add_u32 s11, s11, s12")
    A("v_add_u32 v28, s11, v28")
    for w in range(3):
        A(f"ds_read_b128 {vr(40+4*w,4)}, v28 offset:{KG_SZ*w}")
    A("s_waitcnt lgkmcnt(0)")
    for i in range(4):
        A(f"v_add_f32 v{40+i}, v{40+i}, v{44+i}")
    for i in range(4):
        A(f"v_add_f32 v{40+i}, v{40+i}, v{48+i}")
    A("v_cvt_pk_f16_f32 v40, v40, v41")
    A("v_cvt_pk_f16_f32 v41, v42, v43")
    A("s_cmp_eq_u32 s36, 1")
    A("s_cbranch_scc1 KA_S1")
    A("ds_write_b64 v29, v[40:41]")
    A("s_branch KA_S2")
    A.label("KA_S1")
    A("ds_write_b16 v29, v40")
    A("ds_write_b16_d16_hi v29, v40 offset:64")
    A("ds_write_b16 v29, v41 offset:128")
    A("ds_write_b16_d16_hi v29, v41 offset:192")
    A.label("KA_S2")
    arrive_s(A, 8, 37)
    wait_s(A, 8, 37, 3, "KA_W5")
    A(f"s_mul_i32 s39, s37, {KEO_ST}")
    A(f"s_add_u32 s39, s39, {KEO_BASE}")
    A(f"s_mul_i32 s40, s37, {T_ST}")
    A(f"s_add_u32 s40, s40, {KA_T}")
    A("s_cmp_eq_u32 s36, 0")
    A("s_cbranch_scc1 KA_R0")
    A("s_cmp_eq_u32 s36, 1")
    A("s_cbranch_scc1 KA_R1")
    expand_round(A, 2, "R2")
    A("s_branch KA_RX")
    A.label("KA_R0")
    expand_round(A, 0, "R0")
    A("s_branch KA_RX")
    A.label("KA_R1")
    expand_round(A, 1, "R1")
    A.label("KA_RX")
    arrive_s(A, 12, 37)
    k_end(A, 0)

    A.label("KA_CONV")
    A("s_lshl_b32 s4, s35, 2")
    A("s_add_u32 s4, s4, s3")
    A("s_lshr_b32 s14, s4, 1")
    A("s_lshl_b32 s14, s14, 2")
    A(f"s_mul_i32 s39, s3, {KEO_ST}")
    A(f"s_mul_i32 s40, s3, {T_ST}")
    A(f"s_add_u32 s40, s40, {KA_T}")
    A(f"s_mul_i32 s41, s3, {U_ST}")
    A(f"s_add_u32 s41, s41, {KA_U}")
    A("v_and_b32 v6, 15, v2")
    A("v_lshrrev_b32 v7, 4, v2")
    A("v_lshrrev_b32 v8, 1, v7")
    A("v_and_b32 v9, 1, v7")
    A("v_mov_b32 v12, 0")
    A("v_mov_b32 v13, 0")
    A("v_lshlrev_b32 v14, 3, v2")
    A("v_add_u32 v14, s41, v14")
    A("ds_write_b64 v14, v[12:13]")
    A("v_sub_u32 v14, 2047, v6")
    A("v_lshlrev_b32 v15, 4, v8")
    A("v_sub_u32 v14, v14, v15")
    A("v_lshlrev_b32 v15, 3, v9")
    A("v_add_u32 v14, v14, v15")
    A("v_lshlrev_b32 v14, 1, v14")
    A(f"v_add_u32 v15, {KA_KO - 2}, v14")
    A("v_and_b32 v16, 1, v6")
    A("v_cmp_eq_u32 vcc, 1, v16")
    A("v_cndmask_b32 v14, v15, v14, vcc")
    A("v_add_u32 v14, s39, v14")
    AB = [20, 21, 22, 23]
    for p in range(4):
        A(f"v_subrev_u32 v{AB[p]}, {512*(2*p+1) + 448}, v14")
    A("v_lshlrev_b32 v15, 5, v6")
    A("v_lshlrev_b32 v16, 5, v8")
    A("v_sub_u32 v15, v15, v16")
    A("v_lshlrev_b32 v16, 4, v9")
    A("v_add_u32 v15, v15, v16")
    A(f"v_add_u32 v15, {512 - 448}, v15")
    BB = 24
    A(f"v_add_u32 v{BB}, s41, v15")
    A("v_lshlrev_b32 v15, 5, v6")
    A("v_lshlrev_b32 v16, 3, v7")
    A("v_add_u32 v25, v15, v16")
    A("v_lshlrev_b32 v3, 3, v2")
    A("v_sub_u32 v3, 511, v3")
    for k in range(9):
        A(f"v_subrev_u32 v{30+k}, {k}, v3")
    A("v_max_i32 v38, 0, v38")
    for k in range(9):
        A(f"v_cvt_f32_i32 v{40+k}, v{30+k}")
    for k in range(0, 8, 2):
        A(f"v_cvt_pk_bf16_f32 v{50+k}, v{40+k}, v{41+k}")
        A(f"v_lshrrev_b32 v{51+k}, 16, v{50+k}")
        A(f"v_and_b32 v{50+k}, 0xffff, v{50+k}")
    A("v_cvt_pk_bf16_f32 v58, v48, v48")
    A("v_and_b32 v58, 0xffff, v58")
    for k in range(9):
        A(f"v_subrev_u32 v{50+k}, 17024, v{50+k}")
        A(f"v_min_i32 v{30+k}, 127, v{30+k}")
        A(f"v_max_i32 v{50+k}, v{50+k}, v{30+k}")
        A(f"v_lshlrev_b32 v{30+k}, 1, v{50+k}")
        A(f"v_add_u32 v{30+k}, s40, v{30+k}")
    A("v_lshrrev_b32 v5, 2, v2")
    A("v_mul_u32_u24 v5, 10240, v5")
    A("v_and_b32 v4, 3, v2")
    A("v_lshl_add_u32 v5, v4, 4, v5")
    A("s_lshl_b32 s7, s35, 6")
    A("s_mul_i32 s8, s3, 655360")
    A("s_add_u32 s7, s7, s8")
    A(f"s_add_u32 s7, s7, {WS_UT}")
    A("v_add_u32 v5, s7, v5")
    A(f"v_mul_u32_u24 v4, {U_ST}, v4")
    A("v_lshrrev_b32 v3, 2, v2")
    A("v_lshl_add_u32 v4, v3, 4, v4")
    A("s_lshl_b32 s8, s3, 10")
    A(f"s_add_u32 s8, s8, {KA_U + 512}")
    A("v_add_u32 v4, s8, v4")
    A("s_load_dword s11, s[28:29], s14")
    stamp(A, 1)
    A("s_cmp_lg_u32 s3, 3")
    A("s_cbranch_scc1 KA_GOT")
    wait_count(A, 3, 4, "KA_OWN", sleep=4)
    poll_flags(A, "KA_POLL")
    A(f"s_cmp_lg_u32 s2, {NPROD}")
    A("s_cbranch_scc1 KA_GOT")
    A(f"v_mov_b32 v3, {WS_EPOCH}")
    A("v_mov_b32 v10, s15")
    A("s_mov_b64 exec, 1")
    A(f"global_store_dword v3, v10, s[32:33] {SC}")
    A("s_mov_b64 exec, -1")
    A.label("KA_GOT")
    group_sync(A, 2, 4, "KA_GS2")
    stamp(A, 2)
    for j in range(4):
        A(f"global_load_dwordx4 {vr(64+4*j,4)}, v5, s[32:33] {SC}")
        if j < 3:
            A("v_add_u32 v5, 163840, v5")
    wait_s(A, 8, 3, 3, "KA_W5C")
    expand_round(A, 3, "R3")
    A("s_bitcmp1_b32 s4, 0")
    A("s_cbranch_scc1 KA_ODD2")
    A("s_lshl_b32 s11, s11, 16")
    A.label("KA_ODD2")
    A("s_and_b32 s11, s11, 0xffff0000")
    A("s_lshl_b32 s12, s3, 2")
    A(f"s_add_u32 s12, s12, {KA_SC}")
    A("v_mov_b32 v3, s12")
    A("ds_read_b32 v10, v3")
    for j in range(4):
        A(f"s_waitcnt vmcnt({3-j})")
        A(f"ds_write_b128 v4, {vr(64+4*j,4)} offset:{256*j}")
    stamp(A, 3)
    arrive(A, 17)
    AF, BF, ACC = 32, 64, 96
    wait_s(A, 12, 3, 3, "KA_W6")
    wait_count(A, 17, 4, "KA_W7")
    for i in range(32):
        A(f"v_mov_b32 v{ACC+i}, 0")
    stamp(A, 5)

    def loadA(q, i0):
        p = q // 2
        o = (128 if q % 2 == 0 else 0) + 16 * (7 - i0)
        return [f"ds_read2_b32 {vr(AF+4*q,2)}, v{AB[p]} offset0:{o} offset1:{o+1}",
                f"ds_read2_b32 {vr(AF+4*q+2,2)}, v{AB[p]} offset0:{o+2} offset1:{o+3}"]

    def loadB(tau, i0):
        return [f"ds_read_b128 {vr(BF+4*tau,4)}, v{BB} offset:{512*tau + 64*(7-i0)}"]

    queue = []
    for q in range(8):
        A(loadB(7 - q, 0)[0])
        queue.append(("B", 7 - q))
        if q == 0:
            for s in loadA(0, 0):
                A(s)
            queue += [("A", 0), ("A", 0)]
    for q in range(1, 8):
        for s in loadA(q, 0):
            A(s)
        queue += [("A", q), ("A", q)]
    pending = []

    def wait_for(tags):
        while any(tg in tags for _, tg in pending):
            s_, tg = pending.pop(0)
            A(s_)
            queue.append(tg)
        last = -1
        for i, t in enumerate(queue):
            if t in tags:
                last = i
        if last >= 0:
            n = len(queue) - 1 - last
            A(f"s_waitcnt lgkmcnt({min(n, 15)})")
            del queue[:last + 1]

    for i0 in range(8):
        for q in range(8):
            for tau in range(7 - q, -1, -1):
                wait_for({("A", q), ("B", tau)})
                t = q + tau
                A(f"v_mfma_f32_16x16x32_f16 {vr(ACC+4*t,4)}, {vr(AF+4*q,4)}, {vr(BF+4*tau,4)}, {vr(ACC+4*t,4)}")
                if i0 < 7:
                    if tau == 7 - q:
                        pending.insert(0, (loadB(7 - q, i0 + 1)[0], ("B", 7 - q)))
                    if tau == 0:
                        for s in loadA(q, i0 + 1):
                            pending.append((s, ("A", q)))
                if pending:
                    s, tag = pending.pop(0)
                    A(s)
                    queue.append(tag)
    stamp(A, 6)
    A("v_add_u32 v26, s41, v25")
    A("v_add_u32 v27, s39, v25")
    for t in range(8):
        A(f"ds_read_b64 {vr(32+2*t,2)}, v26 offset:{512 + 512*t}")
    A(f"v_mov_b32 v28, {ONE_LO}")
    A(f"v_mov_b32 v29, {ONE_HI}")
    A("v_mov_b32 v11, v10")
    A("s_waitcnt lgkmcnt(0)")
    for t in range(8):
        a = ACC + 4 * t
        u = 32 + 2 * t
        tm = 48 + 8 * (t & 1)
        A(f"v_pk_mul_f32 {vr(a,2)}, {vr(a,2)}, v[10:11]")
        A(f"v_pk_mul_f32 {vr(a+2,2)}, {vr(a+2,2)}, v[10:11]")
        A(f"v_fma_mix_f32 v{tm}, v{u}, s11, 0 op_sel:[0,0,0] op_sel_hi:[1,0,0]")
        A(f"v_fma_mix_f32 v{tm+1}, v{u}, s11, 0 op_sel:[1,0,0] op_sel_hi:[1,0,0]")
        A(f"v_fma_mix_f32 v{tm+2}, v{u+1}, s11, 0 op_sel:[0,0,0] op_sel_hi:[1,0,0]")
        A(f"v_fma_mix_f32 v{tm+3}, v{u+1}, s11, 0 op_sel:[1,0,0] op_sel_hi:[1,0,0]")
        A(f"v_cvt_pk_bf16_f32 v{a}, v{a}, v{a+1}")
        A(f"v_cvt_pk_bf16_f32 v{a+1}, v{a+2}, v{a+3}")
        A(f"v_cvt_pk_bf16_f32 v{tm+4}, v{tm}, v{tm+1}")
        A(f"v_cvt_pk_bf16_f32 v{tm+5}, v{tm+2}, v{tm+3}")
        A(f"v_lshlrev_b32 v{tm}, 16, v{tm+4}")
        A(f"v_and_b32 v{tm+1}, 0xffff0000, v{tm+4}")
        A(f"v_lshlrev_b32 v{tm+2}, 16, v{tm+5}")
        A(f"v_and_b32 v{tm+3}, 0xffff0000, v{tm+5}")
        A(f"v_dot2_f32_bf16 v{tm}, v{a}, v28, v{tm}")
        A(f"v_dot2_f32_bf16 v{tm+1}, v{a}, v29, v{tm+1}")
        A(f"v_dot2_f32_bf16 v{tm+2}, v{a+1}, v28, v{tm+2}")
        A(f"v_dot2_f32_bf16 v{tm+3}, v{a+1}, v29, v{tm+3}")
        A(f"v_cvt_pk_bf16_f32 v{a+2}, v{tm}, v{tm+1}")
        A(f"v_cvt_pk_bf16_f32 v{a+3}, v{tm+2}, v{tm+3}")
        A(f"ds_write_b64 v27, {vr(a+2,2)} offset:{KA_KE + 512*t}")
    stamp(A, 7)
    A("v_lshrrev_b32 v14, 2, v6")
    A(f"v_mul_u32_u24 v14, {KEO_ST}, v14")
    A("v_and_b32 v15, 3, v2")
    A("v_lshlrev_b32 v15, 3, v15")
    A("v_add_u32 v14, v14, v15")
    A("v_lshlrev_b32 v15, 5, v7")
    A("v_add_u32 v14, v14, v15")
    A("s_lshl_b32 s12, s3, 10")
    A("v_add_u32 v14, s12, v14")
    A("v_lshrrev_b32 v15, 3, v6")
    A("v_lshlrev_b32 v16, 1, v7")
    A("v_add_u32 v15, v15, v16")
    A("v_mul_u32_u24 v15, 10240, v15")
    A("v_and_b32 v16, 7, v6")
    A("v_lshlrev_b32 v16, 4, v16")
    A("v_add_u32 v15, v15, v16")
    A("s_mul_i32 s12, s3, 655360")
    A("s_lshr_b32 s13, s35, 1")
    A("s_lshl_b32 s13, s13, 7")
    A("s_add_u32 s12, s12, s13")
    A("s_and_b32 s13, s35, 1")
    A("s_lshl_b32 s13, s13, 3")
    A("s_add_u32 s12, s12, s13")
    A(f"s_add_u32 s12, s12, {WS_AT}")
    A("v_add_u32 v15, s12, v15")
    A("s_waitcnt lgkmcnt(0)")
    A("s_barrier")
    for k in range(8):
        A(f"ds_read_b64_tr_b16 {vr(40+2*k,2)}, v14 offset:{KA_KE + 128*k}")
    for k in range(8):
        A(f"s_waitcnt lgkmcnt({7-k})")
        A(f"global_store_dwordx2 v15, {vr(40+2*k,2)}, s[32:33]")
        if k < 7:
            A("v_add_u32 v15, 81920, v15")
    k_end(A, 0)

    A.label("KA_LN1")
    A("s_setprio 3")
    A("v_mov_b32 v20, v0")
    A("s_mul_i32 s5, s2, 10240")
    A("v_min_u32 v21, 159, v20")
    A("v_lshlrev_b32 v3, 3, v21")
    A("v_add_u32 v3, s5, v3")
    A("v_add_u32 v4, 5120, v3")
    A("v_lshrrev_b32 v5, 4, v20")
    A("v_mul_u32_u24 v6, 1280, v5")
    A("v_and_b32 v7, 15, v20")
    A("v_lshlrev_b32 v7, 4, v7")
    A("v_add_u32 v6, v6, v7")
    A("v_add_u32 v6, s5, v6")
    A("s_cmp_eq_u32 s3, 2")
    A("s_cbranch_scc1 KA_LNB")
    for i in range(5):
        A(f"global_load_dwordx4 {vr(24+4*i,4)}, v6, s[16:17] offset:{256*i}")
    A.label("KA_LNB")
    for r in range(8):
        A(f"global_load_dwordx2 {vr(48+2*r,2)}, v{3 if r < 4 else 4}, s[16:17] offset:{1280*(r%4)}")
    A(f"v_mov_b32 v14, {ONE_LO}")
    A(f"v_mov_b32 v15, {ONE_HI}")
    A("s_cmp_eq_u32 s3, 2")
    A("s_cbranch_scc1 KA_P1")
    for r in (8, 9, 10, 11):
        A(f"v_mov_b32 v{r}, 0")
    A("v_mov_b32 v12, 0x3f803f80")
    A("s_waitcnt vmcnt(8)")
    for i in range(0, 20, 2):
        A(f"v_dot2c_f32_bf16 v8, v{24+i}, v12")
        A(f"v_dot2c_f32_bf16 v9, v{24+i}, v{24+i}")
        A(f"v_dot2c_f32_bf16 v10, v{25+i}, v12")
        A(f"v_dot2c_f32_bf16 v11, v{25+i}, v{25+i}")
    A("s_nop 2")
    A("v_add_f32 v8, v8, v10")
    A("v_add_f32 v9, v9, v11")
    for sh in (8, 4, 2, 1):
        A(f"v_add_f32_dpp v8, v8, v8 row_ror:{sh} row_mask:0xf bank_mask:0xf")
        A(f"v_add_f32_dpp v9, v9, v9 row_ror:{sh} row_mask:0xf bank_mask:0xf")
    ln_finish(A, 8, 9, 10)
    A("v_sub_f32 v8, 0, v8")
    A("v_lshlrev_b32 v5, 3, v5")
    A(f"v_add_u32 v5, {KA_STATS}, v5")
    A("ds_write_b64 v5, v[8:9]")
    A.label("KA_P1")
    group_sync(A, 0, 3, "KA_GS0")
    stamp(A, 8)
    A(f"v_mov_b32 v5, {KA_STATS}")
    for i in range(4):
        A(f"ds_read_b128 {vr(24+4*i,4)}, v5 offset:{16*i}")
    A("v_lshlrev_b32 v3, 6, v21")
    A(f"v_add_u32 v3, {KA_STAGE}, v3")
    A("s_waitcnt vmcnt(0) lgkmcnt(0)")
    for rp in range(4):
        r0, r1 = 2 * rp, 2 * rp + 1
        tt = [84 + 3 * ch for ch in range(4)]
        for ch in range(4):
            a, b = 48 + 2 * r0 + (ch >> 1), 48 + 2 * r1 + (ch >> 1)
            one = 14 + (ch & 1)
            A(f"v_dot2_f32_bf16 v{tt[ch]}, v{a}, v{one}, v{24+2*r0}")
            A(f"v_dot2_f32_bf16 v{tt[ch]+1}, v{b}, v{one}, v{24+2*r1}")
        for ch in range(4):
            A(f"v_cvt_pk_bf16_f32 v{tt[ch]+2}, v{tt[ch]}, v{tt[ch]+1}")
        for ch in range(4):
            A(f"v_lshlrev_b32 v{tt[ch]}, 16, v{tt[ch]+2}")
            A(f"v_and_b32 v{tt[ch]+1}, 0xffff0000, v{tt[ch]+2}")
        for ch in range(4):
            A(f"v_mul_f32 v{tt[ch]}, v{tt[ch]}, v{25+2*r0}")
            A(f"v_mul_f32 v{tt[ch]+1}, v{tt[ch]+1}, v{25+2*r1}")
        for ch in range(4):
            A(f"v_cvt_pk_bf16_f32 v{tt[ch]+2}, v{tt[ch]}, v{tt[ch]+1}")
        for ch in range(4):
            A(f"v_lshlrev_b32 v{tt[ch]}, 16, v{tt[ch]+2}")
            A(f"v_and_b32 v{tt[ch]+1}, 0xffff0000, v{tt[ch]+2}")
        for ch in range(4):
            A(f"v_cvt_pk_f16_f32 v{68+4*ch+rp}, v{tt[ch]}, v{tt[ch]+1}")
    for ch in range(4):
        A(f"ds_write_b128 v3, {vr(68+4*ch,4)} offset:{16*ch}")
    group_sync(A, 1, 3, "KA_GS1")
    A("v_lshlrev_b32 v3, 4, v20")
    A(f"v_add_u32 v4, {KA_STAGE}, v3")
    for j in range(4):
        A(f"ds_read_b128 {vr(24+4*j,4)}, v4 offset:{3072*j}")
    A(f"s_add_u32 s5, s5, {WS_UT}")
    A("v_add_u32 v3, s5, v3")
    A("s_waitcnt lgkmcnt(0)")
    for j in range(3):
        A(f"global_store_dwordx4 v3, {vr(24+4*j,4)}, s[32:33] {SC}")
        A("v_add_u32 v3, 3072, v3")
    A("s_cmp_lg_u32 s3, 0")
    A("s_cbranch_scc1 KA_P3")
    A(f"global_store_dwordx4 v3, {vr(36,4)}, s[32:33] {SC}")
    A.label("KA_P3")
    A("s_waitcnt vmcnt(0)")
    group_sync(A, 3, 4, "KA_GS3")
    stamp(A, 9)
    A("s_cmp_lg_u32 s3, 0")
    A("s_cbranch_scc1 KA_LNX")
    A(f"v_mov_b32 v3, {KA_CNT + 96}")
    A("ds_read_b32 v4, v3")
    A(f"s_lshr_b32 s5, s2, {2 if FLAG64 else 4}")
    A("s_lshl_b32 s5, s5, 7")
    A(f"s_and_b32 s6, s2, {3 if FLAG64 else 15}")
    A("s_lshl_b32 s6, s6, 2")
    A("s_add_u32 s5, s5, s6")
    A(f"s_add_u32 s5, s5, {WS_FLAG}")
    A("v_mov_b32 v3, s5")
    A("s_waitcnt lgkmcnt(0)")
    A("s_mov_b64 exec, 1")
    A(f"global_store_dword v3, v4, s[32:33] {SC}")
    A("s_mov_b64 exec, -1")
    A.label("KA_LNX")
    A("s_setprio 0")
    A(f"s_cmp_ge_u32 s2, {NPROD}")
    A("s_cbranch_scc1 KA_CONV")
    k_end(A, 0)
    A.label("KA_WTPOLL")
    wait_count(A, 3, 4, "KA_OWN2", sleep=4)
    if not os.environ.get("WT_EARLY"):
        poll_epoch(A, "KA_POLL2")
    arrive(A, 16)
    k_end(A, 0)
    A.label("KA_WT0")
    A("s_cmp_ge_u32 s3, 8")
    A("s_cbranch_scc1 KA_WTX")
    wait_count(A, 16, 1, "KA_WTW", sleep=8)
    wt_role(A, "KA", 0, -2, 8192, 0, 960, 0, os.environ.get("WT_MOD", ""), 384)
    A.label("KA_WTX")
    k_end(A, 0)
    A.label("KA_END")
    A("s_endpgm")


KERNELS4 = [
    ("ka_kernel", ka, 256, 1024, KA_LDS, 128),
    ("k3_kernel", k3, 256, 256, K3_LDS, 96),
    ("k4_kernel", k4, 192 + (80 if PF_WD[0] else 0), 256, K4_LDS, 96),
    ("k5_kernel", k5, 80, 512, K5_LDS, 96),
]

if __name__ == "__main__":
    if len(sys.argv) > 2 and sys.argv[2] == "stamp":
        STAMP[0] = True
    out = build(KERNELS4)
    path = sys.argv[1]
    open(path, "w").write(out)
    print("wrote", path, len(out), "bytes")
```

```python
import sys, os, struct
sys.path.insert(0, os.path.dirname(os.path.abspath(__file__)))
from asmlib import Asm

NAME = "sequential_preLN__ssm_conv_s4d__moe_arch_mod__prompt"

WS_UT = 0x0000000
WS_KD = 0x0280000
WS_SC = 0x03C0000
WS_AT = 0x0400000
WS_L2 = 0x0680000
WS_RK = 0x0900000
WS_ACT = 0x0910000
WS_SEL = 0x0918000
WS_WGU = 0x0A00000
WS_WD = 0x0E00000
WS_STAMP = 0x1800000
STAMP = [False]
NSTAMP = 12
ST_OPT = [""]


def k_begin(A):
    if STAMP[0]:
        A("s_memrealtime s[94:95]")
        for i in range(NSTAMP):
            A(f"s_mov_b64 s[{60+2*i}:{61+2*i}], 0")
        A("s_memtime s[60:61]")


def stamp(A, i):
    if STAMP[0]:
        A(f"s_memtime s[{60+2*i}:{61+2*i}]")


def k_end(A, kidx):
    if STAMP[0]:
        A(f"s_memtime s[{60+2*(NSTAMP-2)}:{61+2*(NSTAMP-2)}]")
        A("s_waitcnt vmcnt(0) lgkmcnt(0)")
        A("s_memrealtime s[96:97]")
        A(f"s_memtime s[{60+2*(NSTAMP-1)}:{61+2*(NSTAMP-1)}]")
        A("s_mov_b64 exec, -1")
        A("v_lshrrev_b32 v1, 6, v0")
        A("s_lshl_b32 s98, s2, 3")
        A("v_add_u32 v1, s98, v1")
        A("v_lshlrev_b32 v1, 7, v1")
        A(f"v_add_u32 v1, {WS_STAMP + kidx * 0x200000}, v1")
        A("s_waitcnt lgkmcnt(0)")
        A("v_mov_b32 v2, s94")
        A("v_mov_b32 v3, s95")
        A("v_mov_b32 v4, s96")
        A("v_mov_b32 v5, s97")
        A("global_store_dwordx4 v1, v[2:5], s[32:33]")
        for i in range(0, NSTAMP, 2):
            for j in range(4):
                A(f"v_mov_b32 v{2+j}, s{60+2*i+j}")
            A(f"global_store_dwordx4 v1, v[2:5], s[32:33] offset:{16+8*i}")
    A("s_endpgm")


def fbits(x):
    return struct.unpack("<I", struct.pack("<f", x))[0]


LOG2E = 1.4426950408889634
L2E_HI = fbits(LOG2E)
L2E_HI_F = struct.unpack("<f", struct.pack("<I", L2E_HI))[0]
L2E_LO = fbits(LOG2E - L2E_HI_F)
LN2 = fbits(0.6931471805599453)
INV2PI = fbits(0.15915494309189535)
INV640 = fbits(1.0 / 640.0)
EPS = fbits(1e-5)
ONE_LO = 0x00003f80
ONE_HI = 0x3f800000


def vr(a, n):
    return f"v[{a}:{a+n-1}]"


def bf16_round(A, reg):
    A(f"v_cvt_pk_bf16_f32 v{reg}, v{reg}, v{reg}")
    A(f"v_and_b32 v{reg}, 0xffff0000, v{reg}")


def exp_bf16(A, dst, src, t0, t1):
    A(f"v_mul_f32 v{t0}, s90, v{src}")
    A(f"v_fma_f32 v{t1}, v{src}, s90, -v{t0}")
    A(f"v_fma_f32 v{t1}, v{src}, s91, v{t1}")
    A(f"v_exp_f32 v{dst}, v{t0}")
    A(f"v_mul_f32 v{t1}, s92, v{t1}")
    A(f"v_fma_f32 v{dst}, v{dst}, v{t1}, v{dst}")
    bf16_round(A, dst)


def cmul(A, d, a, b):
    A(f"v_pk_mul_f32 {vr(d,2)}, {vr(a,2)}, {vr(b,2)} op_sel:[0,0] op_sel_hi:[0,1]")
    A(f"v_pk_fma_f32 {vr(d,2)}, {vr(a,2)}, {vr(b,2)}, {vr(d,2)} op_sel:[1,1,0] op_sel_hi:[1,0,1] neg_lo:[0,1,0]")


def ln_finish(A, s1, s2, t):
    A(f"v_mul_f32 v{s1}, {INV640}, v{s1}")
    A(f"v_mul_f32 v{s2}, {INV640}, v{s2}")
    A(f"v_fma_f32 v{s2}, -v{s1}, v{s1}, v{s2}")
    A(f"v_max_f32 v{s2}, 0, v{s2}")
    A(f"v_cvt_pk_bf16_f32 v{t}, v{s1}, v{s2}")
    A(f"v_lshlrev_b32 v{s1}, 16, v{t}")
    A(f"v_and_b32 v{s2}, 0xffff0000, v{t}")
    A(f"v_add_f32 v{s2}, {EPS}, v{s2}")
    bf16_round(A, s2)
    A(f"v_sqrt_f32 v{s2}, v{s2}")
    bf16_round(A, s2)
    A(f"v_rcp_f32 v{s2}, v{s2}")


def pair_swizzle(A, dst, src, tmp):
    A(f"s_and_b32 s{dst}, s{src}, 7")
    A(f"s_lshl_b32 s{dst}, s{dst}, 1")
    A(f"s_bfe_u32 s{tmp}, s{src}, 0x10003")
    A(f"s_or_b32 s{dst}, s{dst}, s{tmp}")
    A(f"s_andn2_b32 s{tmp}, s{src}, 15")
    A(f"s_or_b32 s{dst}, s{dst}, s{tmp}")


def wt_role(A, pfx, first_wg, nwaves_per_wg, lds_per_wave, it_lo, it_hi, kidx, opt, stride):
    A.label(f"{pfx}_WTR")
    A("s_load_dwordx4 s[16:19], s[0:1], 72")
    A("s_load_dwordx2 s[20:21], s[0:1], 88")
    A("v_lshrrev_b32 v1, 6, v0")
    A("v_readfirstlane_b32 s3, v1")
    A("v_and_b32 v2, 63, v0")
    if nwaves_per_wg > 0:
        A(f"s_sub_u32 s4, s2, {first_wg}")
        A(f"s_mul_i32 s4, s4, {nwaves_per_wg}")
        A("s_add_u32 s4, s4, s3")
        A(f"s_add_u32 s4, s4, {it_lo}")
    elif nwaves_per_wg == -2:
        A("s_sub_u32 s4, s3, 4")
        A("s_mul_i32 s4, s4, 96")
        A("s_add_u32 s4, s4, s2")
    else:
        A("s_sub_u32 s4, s3, 3")
        A("s_mul_i32 s4, s4, 96")
        A("s_add_u32 s4, s4, s2")
    A(f"s_mul_i32 s5, s3, {lds_per_wave}")
    A("v_lshrrev_b32 v3, 3, v2")
    A("v_and_b32 v4, 7, v2")
    A("v_lshlrev_b32 v4, 4, v4")
    A("v_lshrrev_b32 v5, 4, v2")
    A("v_lshlrev_b32 v5, 3, v5")
    A("v_and_b32 v6, 15, v2")
    A("v_lshrrev_b32 v6, 2, v6")
    A("v_add_u32 v5, v5, v6")
    A("v_lshlrev_b32 v5, 7, v5")
    A("v_and_b32 v6, 3, v2")
    A("v_lshlrev_b32 v7, 3, v6")
    A("v_add_u32 v8, v5, v7")
    A("v_add_u32 v8, s5, v8")
    A("v_add_u32 v9, 4080, v8")
    A("v_cmp_gt_u32 vcc, 2, v6")
    A("v_cndmask_b32 v9, v9, v8, vcc")
    A("v_lshlrev_b32 v10, 4, v2")
    A("v_and_b32 v13, 15, v2")
    A("v_lshrrev_b32 v14, 3, v13")
    A("v_mul_u32_u24 v14, 24576, v14")
    A("v_and_b32 v13, 7, v13")
    A("v_lshlrev_b32 v13, 4, v13")
    A("v_add_u32 v14, v14, v13")
    A("v_lshrrev_b32 v13, 4, v2")
    A("v_lshlrev_b32 v13, 7, v13")
    A("v_add_u32 v14, v14, v13")
    A("v_mul_u32_u24 v50, 3072, v3")
    A("v_add_u32 v50, v50, v4")
    A("v_mul_u32_u24 v51, 1280, v3")
    A("v_add_u32 v51, v51, v4")
    A("s_waitcnt lgkmcnt(0)")
    A("s_mov_b32 s6, s4")
    A(f"s_cmp_ge_u32 s6, {it_hi}")
    A(f"s_cbranch_scc1 {pfx}_WT_FIN")
    A.label(f"{pfx}_WT_LOOP")
    A("s_cmp_ge_u32 s6, 480")
    A(f"s_cbranch_scc1 {pfx}_WT_DOWN")
    A("s_mul_hi_u32 s7, s6, 0xccccccd")
    A("s_mul_i32 s8, s7, 20")
    A("s_sub_u32 s8, s6, s8")
    A("s_mul_i32 s9, s8, 98304")
    A("s_lshl_b32 s10, s7, 7")
    A("s_add_u32 s9, s9, s10")
    A("v_add_u32 v11, s9, v50")
    for j in range(4):
        A(f"s_add_u32 s10, s5, {1024*j}")
        A("s_mov_b32 m0, s10")
        A("global_load_lds_dwordx4 v11, s[16:17]")
        A(f"s_add_u32 s10, s5, {4096 + 1024*j}")
        A("s_mov_b32 m0, s10")
        A("global_load_lds_dwordx4 v11, s[18:19]")
        if j < 3:
            A("v_add_u32 v11, 24576, v11")
    A("s_mul_i32 s9, s7, 163840")
    A("s_lshl_b32 s10, s8, 10")
    A("s_add_u32 s9, s9, s10")
    A(f"s_add_u32 s9, s9, {WS_WGU}")
    A("v_add_u32 v12, s9, v10")
    A("s_waitcnt vmcnt(0)")
    for jj in range(8):
        A(f"ds_read_b64_tr_b16 {vr(16+4*jj,2)}, v9 offset:{16*jj}")
        A(f"ds_read_b64_tr_b16 {vr(18+4*jj,2)}, v9 offset:{16*jj + 512}")
    A("s_waitcnt lgkmcnt(0)")
    for jj in range(8):
        A(f"global_store_dwordx4 v12, {vr(16+4*jj,4)}, s[32:33] {opt}")
        if jj < 7:
            A("v_add_u32 v12, 20480, v12")
    A(f"s_branch {pfx}_WT_NEXT")
    A.label(f"{pfx}_WT_DOWN")
    A("s_sub_u32 s11, s6, 480")
    A("s_mul_hi_u32 s7, s11, 0x5555556")
    A("s_mul_i32 s8, s7, 48")
    A("s_sub_u32 s8, s11, s8")
    A("s_mul_i32 s9, s8, 40960")
    A("s_lshl_b32 s10, s7, 7")
    A("s_add_u32 s9, s9, s10")
    A("v_add_u32 v11, s9, v51")
    for j in range(4):
        A(f"s_add_u32 s10, s5, {1024*j}")
        A("s_mov_b32 m0, s10")
        A("global_load_lds_dwordx4 v11, s[20:21]")
        if j < 3:
            A("v_add_u32 v11, 10240, v11")
    A("s_mul_i32 s9, s7, 196608")
    A("s_lshl_b32 s10, s8, 9")
    A("s_add_u32 s9, s9, s10")
    A(f"s_add_u32 s9, s9, {WS_WD}")
    A("v_add_u32 v12, s9, v14")
    A("s_waitcnt vmcnt(0)")
    for jj in range(4):
        A(f"ds_read_b64_tr_b16 {vr(16+4*jj,2)}, v8 offset:{32*jj}")
        A(f"ds_read_b64_tr_b16 {vr(18+4*jj,2)}, v8 offset:{32*jj + 512}")
    A("s_waitcnt lgkmcnt(0)")
    for jj in range(4):
        A(f"global_store_dwordx4 v12, {vr(16+4*jj,4)}, s[32:33] {opt}")
        if jj < 3:
            A("v_add_u32 v12, 49152, v12")
    A.label(f"{pfx}_WT_NEXT")
    A(f"s_add_u32 s6, s6, {stride}")
    A(f"s_cmp_lt_u32 s6, {it_hi}")
    A(f"s_cbranch_scc1 {pfx}_WT_LOOP")
    A.label(f"{pfx}_WT_FIN")
    if PF_X[0] and pfx == "K2":
        A("s_load_dwordx2 s[26:27], s[0:1], 0")
        A("s_sub_u32 s4, s2, 160")
        A("s_lshr_b32 s4, s4, 3")
        A("s_and_b32 s5, s2, 7")
        A("v_lshlrev_b32 v3, 4, v0")
        A("s_waitcnt lgkmcnt(0)")
        for j in range(3):
            A(f"s_add_u32 s6, s4, {12*j}")
            A("s_cmp_ge_u32 s6, 32")
            A(f"s_cbranch_scc1 K2_PFX_END")
            A("s_lshl_b32 s6, s6, 3")
            A("s_add_u32 s6, s6, s5")
            A("s_mul_i32 s6, s6, 10240")
            A("v_add_u32 v4, s6, v3")
            A("global_load_dwordx4 v[8:11], v4, s[26:27]")
            A("v_add_u32 v4, 4096, v4")
            A("global_load_dwordx4 v[8:11], v4, s[26:27]")
            A("v_min_u32 v5, 2032, v3")
            A("v_add_u32 v4, s6, v5")
            A("v_add_u32 v4, 8192, v4")
            A("global_load_dwordx4 v[8:11], v4, s[26:27]")
        A.label("K2_PFX_END")
    k_end(A, kidx)


K1_ROWB = 288
K1_BUF = 16 * K1_ROWB
K1_LDS = 3 * 2 * K1_BUF
K1_WT, K1_KG, K1_LN = 0, 640, 256
WT_OPT = [""]
CODE_PF = [0]
PF_WD = [int(os.environ.get('PF_WD', '0'))]
PF_X = [int(os.environ.get('PF_X', '0'))]


def cmul_batch(A, items):
    for d, a, b in items:
        A(f"v_pk_mul_f32 {vr(d,2)}, {vr(a,2)}, {vr(b,2)} op_sel:[0,0] op_sel_hi:[0,1]")
    for d, a, b in items:
        A(f"v_pk_fma_f32 {vr(d,2)}, {vr(a,2)}, {vr(b,2)}, {vr(d,2)} op_sel:[1,1,0] op_sel_hi:[1,0,1] neg_lo:[0,1,0]")


def k1(A):
    A(f"s_cmp_ge_u32 s2, {K1_WT + K1_KG + K1_LN}")
    A("s_cbranch_scc1 K1_END")
    k_begin(A)
    A("s_load_dwordx2 s[32:33], s[0:1], 112")
    A("s_load_dwordx16 s[16:31], s[0:1], 0")
    A(f"s_cmp_ge_u32 s2, {K1_WT + K1_KG}")
    A("s_cbranch_scc1 K1_LN")
    A(f"s_sub_u32 s35, s2, {K1_WT}")
    A("s_and_b32 s4, s35, 7")
    A("s_lshl_b32 s4, s4, 3")
    A("s_bfe_u32 s5, s35, 0x10005")
    A("s_lshl_b32 s5, s5, 2")
    A("s_or_b32 s4, s4, s5")
    A("s_lshr_b32 s5, s35, 6")
    A("s_lshl_b32 s5, s5, 6")
    A("s_or_b32 s4, s4, s5")
    A("s_bfe_u32 s5, s35, 0x20003")
    A("s_or_b32 s34, s4, s5")
    A("v_lshrrev_b32 v1, 6, v0")
    A("v_readfirstlane_b32 s3, v1")
    A("v_and_b32 v2, 63, v0")
    A(f"s_mov_b32 s90, {L2E_HI}")
    A(f"s_mov_b32 s91, {L2E_LO}")
    A(f"s_mov_b32 s92, {LN2}")
    A("s_mul_i32 s4, s34, 384")
    A("s_lshr_b32 s5, s34, 1")
    A("s_lshl_b32 s5, s5, 2")
    A("v_lshlrev_b32 v1, 1, v0")
    A("v_add_u32 v1, s4, v1")
    A("v_lshlrev_b32 v3, 1, v2")
    A("v_add_u32 v3, s4, v3")
    A("s_waitcnt lgkmcnt(0)")
    A("s_load_dword s6, s[26:27], s5")
    A("global_load_ushort v10, v1, s[18:19]")
    A("global_load_ushort v11, v1, s[20:21]")
    A("global_load_ushort v12, v1, s[22:23]")
    A("global_load_ushort v13, v1, s[24:25]")
    for i in range(3):
        A(f"global_load_ushort v{14+i}, v3, s[22:23] offset:{128*i}")
        A(f"global_load_ushort v{17+i}, v3, s[24:25] offset:{128*i}")
    A("v_and_b32 v3, 15, v2")
    A("v_lshrrev_b32 v4, 4, v2")
    A("s_cmp_eq_u32 s3, 1")
    A("s_cbranch_scc1 K1_A1")
    A("s_cmp_eq_u32 s3, 2")
    A("s_cbranch_scc1 K1_A2")
    A("v_lshrrev_b32 v5, 1, v4")
    A("v_lshlrev_b32 v5, 7, v5")
    A("v_lshl_add_u32 v5, v3, 3, v5")
    A("v_and_b32 v6, 1, v4")
    A("v_lshl_add_u32 v5, v6, 2, v5")
    A("s_branch K1_A3")
    A.label("K1_A1")
    A("v_lshlrev_b32 v5, 1, v3")
    A("v_add_u32 v5, v5, v4")
    A("v_add_u32 v5, 384, v5")
    A("v_lshlrev_b32 v6, 4, v4")
    A("v_add_u32 v6, v6, v3")
    A("v_add_u32 v6, 480, v6")
    A("v_cmp_gt_u32 vcc, 2, v4")
    A("v_cndmask_b32 v5, v6, v5, vcc")
    A("s_branch K1_A3")
    A.label("K1_A2")
    A("v_lshlrev_b32 v5, 6, v4")
    A("v_lshlrev_b32 v6, 2, v3")
    A("v_add_u32 v5, v5, v6")
    A("v_add_u32 v5, 256, v5")
    A("v_lshlrev_b32 v6, 2, v2")
    A("v_add_u32 v6, 520, v6")
    A("v_cmp_gt_u32 vcc, 2, v4")
    A("v_cndmask_b32 v5, v6, v5, vcc")
    A("v_mov_b32 v6, 640")
    A("v_cmp_eq_u32 vcc, 32, v2")
    A("v_cndmask_b32 v5, v5, v6, vcc")
    A.label("K1_A3")
    A("s_lshl_b32 s11, s34, 11")
    A(f"s_add_u32 s11, s11, {WS_KD}")
    A("v_lshlrev_b32 v29, 1, v5")
    A("v_add_u32 v29, s11, v29")
    A(f"s_mul_i32 s7, s3, {2*K1_BUF}")
    A(f"v_mul_u32_u24 v32, {K1_ROWB}, v3")
    A("v_lshlrev_b32 v5, 4, v4")
    A("v_add_u32 v32, v32, v5")
    A("v_add_u32 v32, s7, v32")
    AW = 120
    A("v_lshlrev_b32 v5, 2, v2")
    A(f"v_add_u32 v{AW}, s7, v5")
    for k in range(1, 8):
        A(f"v_add_u32 v{AW+k}, {(k//4)*K1_BUF + (k%4)*4*K1_ROWB}, v{AW}")
    stamp(A, 1)
    A("s_waitcnt lgkmcnt(0)")
    A("s_bitcmp1_b32 s34, 0")
    A("s_cbranch_scc1 K1_ODD")
    A("s_lshl_b32 s6, s6, 16")
    A.label("K1_ODD")
    A("s_and_b32 s6, s6, 0xffff0000")
    A("v_mov_b32 v5, s6")
    exp_bf16(A, 33, 5, 6, 7)
    A("s_waitcnt vmcnt(0)")
    stamp(A, 2)
    for i in range(6):
        A(f"v_and_b32 v{14+i}, 0x7fff, v{14+i}")
    A("v_max3_u32 v14, v14, v15, v16")
    A("v_max3_u32 v17, v17, v18, v19")
    A("v_max_u32 v14, v14, v17")
    A("v_lshlrev_b32 v10, 16, v10")
    A("v_lshlrev_b32 v11, 16, v11")
    A("v_mul_f32 v6, s90, v10")
    A("v_max_u32_dpp v14, v14, v14 row_shr:1 row_mask:0xf bank_mask:0xf")
    A("v_fma_f32 v7, v10, s90, -v6")
    A("v_exp_f32 v34, v6")
    A("v_max_u32_dpp v14, v14, v14 row_shr:2 row_mask:0xf bank_mask:0xf")
    A("v_fma_f32 v7, v10, s91, v7")
    A("v_mul_f32 v35, v11, v33")
    A("v_max_u32_dpp v14, v14, v14 row_shr:4 row_mask:0xf bank_mask:0xf")
    A("v_mul_f32 v7, s92, v7")
    A(f"v_mul_f32 v35, {INV2PI}, v35")
    A("v_max_u32_dpp v14, v14, v14 row_shr:8 row_mask:0xf bank_mask:0xf")
    A("v_fma_f32 v34, v34, v7, v34")
    A("v_lshlrev_b32 v12, 16, v12")
    A("v_max_u32_dpp v14, v14, v14 row_bcast:15 row_mask:0xa bank_mask:0xf")
    A("v_cvt_pk_bf16_f32 v34, v34, v34")
    A("v_lshlrev_b32 v13, 16, v13")
    A("v_max_u32_dpp v14, v14, v14 row_bcast:31 row_mask:0xc bank_mask:0xf")
    A("v_and_b32 v34, 0xffff0000, v34")
    A("v_mul_f32 v34, v34, v33")
    A("v_readlane_b32 s8, v14, 63")
    A("v_mul_f32 v34, s90, v34")
    A("v_sub_f32 v34, 0, v34")
    A("s_lshr_b32 s8, s8, 7")
    A("s_max_u32 s8, s8, 6")
    A("s_min_u32 s8, s8, 253")
    A("s_sub_u32 s9, 260, s8")
    A("s_lshl_b32 s9, s9, 23")
    A("s_sub_u32 s10, s8, 132")

    def direct(t, p):
        lit = "1.0" if p == 1 else hex(fbits(float(p)))
        A(f"v_mul_f32 v{t}, {lit}, v34")
        A(f"v_mul_f32 v{t+1}, {lit}, v35")
        A(f"v_fract_f32 v{t+1}, v{t+1}")

    def direct2(t):
        A(f"v_exp_f32 v{t}, v{t}")
        A(f"v_cos_f32 v{t+2}, v{t+1}")
        A(f"v_sin_f32 v{t+3}, v{t+1}")

    def direct_fin(d, t):
        A(f"v_mul_f32 v{d}, v{t}, v{t+2}")
        A(f"v_mul_f32 v{d+1}, v{t}, v{t+3}")

    C = 36
    g = {i: 38 + 2 * (i - 1) for i in range(1, 9)}
    G128, G256, G512, G1024 = 54, 56, 58, 60
    T = [62, 64, 66, 68, 70, 72, 74, 76]
    PK = list(range(78, 86))
    BF, AF = 86, 102
    h = {1: g[8]}
    for i in range(2, 9):
        h[i] = AF + 2 * (i - 2)
    AF2 = 4
    ACC = [20, 24, 118 - 94]
    ACC = [20, 24, 28 - 0]
    ACC = [20, 24, 114 + 0]
    ACC = [20, 24, 0]
    ACC = [20, 24, 4]
    AF2 = 62

    direct(62, 1)
    direct(66, 8)
    direct(70, 128)
    direct2(62)
    direct2(66)
    direct2(70)
    A(f"v_mul_f32 v{C}, s9, v12")
    A(f"v_mul_f32 v{C+1}, s9, v13")
    A("v_ldexp_f32 v6, v33, s10")
    A("s_lshl_b32 s11, s34, 2")
    A(f"s_add_u32 s11, s11, {WS_SC}")
    A("v_mov_b32 v7, s11")
    A("global_store_dword v7, v6, s[32:33]")
    direct_fin(g[1], 62)
    direct_fin(g[8], 66)
    direct_fin(G128, 70)
    stamp(A, 3)

    def wr(rows_src, buf, neg):
        regs = []
        for k, (row, src) in enumerate(rows_src):
            p = PK[k % 8]
            if src is None:
                A(f"v_mov_b32 v{p}, 0x00003c00")
            else:
                A(f"v_cvt_pk_f16_f32 v{p}, v{src}, {'-' if neg else ''}v{src+1}")
            regs.append(p)
        k = 0
        n = 0
        while k < len(rows_src):
            r0 = rows_src[k][0]
            if k + 1 < len(rows_src) and rows_src[k + 1][0] // 4 == r0 // 4:
                r1 = rows_src[k + 1][0]
                A(f"ds_write2_b32 v{AW + 4*buf + r0//4}, v{regs[k]}, v{regs[k+1]} offset0:{(r0%4)*72} offset1:{(r1%4)*72}")
                k += 2
            else:
                A(f"ds_write_b32 v{AW + 4*buf + r0//4}, v{regs[k]} offset:{(r0%4)*K1_ROWB}")
                k += 1
            n += 1
        return n

    def frags(dst, buf):
        for j in range(4):
            A(f"ds_read_b128 {vr(dst+4*j,4)}, v32 offset:{buf*K1_BUF + 64*j}")

    def mfmas(acc, a, b):
        for j in range(4):
            A(f"v_mfma_f32_16x16x32_f16 {vr(acc,4)}, {vr(a+4*j,4)}, {vr(b+4*j,4)}, {vr(acc,4)}")

    cmul_batch(A, [(g[2], g[1], g[1]), (h[2], h[1], h[1]), (G256, G128, G128)])
    cmul_batch(A, [(g[3], g[2], g[1]), (g[4], g[2], g[2]), (h[3], h[2], h[1]), (h[4], h[2], h[2]), (G512, G256, G256)])
    cmul_batch(A, [(g[5], g[4], g[1]), (g[6], g[4], g[2]), (g[7], g[4], g[3]), (h[5], h[4], h[1]), (h[6], h[4], h[2]),
                   (h[7], h[4], h[3]), (h[8], h[4], h[4]), (G1024, G512, G512)])
    for i in range(4):
        A(f"v_mov_b32 v{20+i}, 0")
        A(f"v_mov_b32 v{24+i}, 0")
        A(f"v_mov_b32 v{4+i}, 0")
    wr([(0, None)] + [(i, h[i]) for i in range(1, 8)], 0, False)
    cmul_batch(A, [(T[i - 1], h[8], h[i]) for i in range(1, 8)])
    wr([(8, h[8])] + [(8 + i, T[i - 1]) for i in range(1, 8)], 0, False)
    frags(BF, 0)
    stamp(A, 4)
    c128 = T[7]
    cmul_batch(A, [(T[i - 1], C, g[i]) for i in range(1, 8)] + [(c128, C, G128)])
    wr([(0, C)] + [(i, T[i - 1]) for i in range(1, 8)], 1, True)
    cmul_batch(A, [(T[i - 1], c128, g[i]) for i in range(1, 8)])
    wr([(8, c128)] + [(8 + i, T[i - 1]) for i in range(1, 8)], 1, True)
    frags(AF, 1)
    cmul_batch(A, [(T[0], C, G512), (T[4], C, G1024)])
    cmul_batch(A, [(T[1], T[0], G128), (T[2], T[0], G256), (T[5], T[4], G256), (T[6], T[4], G512)])
    cmul_batch(A, [(T[3], T[2], G128), (T[7], T[6], G256)])
    n1 = wr([(i, T[i]) for i in range(4)] + [(8 + i, T[4 + i]) for i in range(4)], 0, True)
    c2048 = g[1]
    cmul_batch(A, [(c2048, T[4], G1024)])
    cmul_batch(A, [(T[i], T[i], g[4]) for i in range(0)])
    D4 = [g[3], g[5], g[7], g[8]]
    cmul_batch(A, [(D4[i], T[i], g[4]) for i in range(4)])
    A("s_waitcnt lgkmcnt(%d)" % n1)
    mfmas(20, AF, BF)
    cmul_batch(A, [(T[i], T[4 + i], G128) for i in range(4)])
    wr([(4 + i, D4[i]) for i in range(4)] + [(12 + i, T[i]) for i in range(4)], 0, True)
    frags(AF, 0)
    stamp(A, 5)
    cmul_batch(A, [(T[0], C, G256)])
    cmul_batch(A, [(T[4], T[0], G128), (T[1], T[0], g[2]), (T[2], T[0], g[4]), (T[3], T[0], g[6])])
    cmul_batch(A, [(T[5], T[4], g[2]), (T[6], T[4], g[4]), (T[7], T[4], g[6])])
    n2 = wr([(i, T[i]) for i in range(8)], 1, True)
    n2 += wr([(8, c2048)], 1, True)
    A("s_waitcnt lgkmcnt(%d)" % n2)
    mfmas(24, AF, BF)
    frags(AF2, 1)
    A("s_waitcnt lgkmcnt(0)")
    mfmas(4, AF2, BF)
    A("v_lshlrev_b32 v28, 4, v2")
    A("v_add_u32 v30, s7, v28")
    for t, r in enumerate((20, 24, 4)):
        A(f"ds_write_b128 v30, {vr(r,4)} offset:{1024*t}")
    stamp(A, 6)
    A("s_lshl_b32 s11, s3, 10")
    A("v_add_u32 v28, s11, v28")
    A("s_waitcnt lgkmcnt(0)")
    A("s_barrier")
    stamp(A, 7)
    for w in range(3):
        A(f"ds_read_b128 {vr(40+4*w,4)}, v28 offset:{2*K1_BUF*w}")
    A("s_waitcnt lgkmcnt(0)")
    for i in range(4):
        A(f"v_add_f32 v{40+i}, v{40+i}, v{44+i}")
    for i in range(4):
        A(f"v_add_f32 v{40+i}, v{40+i}, v{48+i}")
    A("v_cvt_pk_f16_f32 v40, v40, v41")
    A("v_cvt_pk_f16_f32 v41, v42, v43")
    A("s_cmp_eq_u32 s3, 1")
    A("s_cbranch_scc1 K1_S1")
    A("global_store_dwordx2 v29, v[40:41], s[32:33]")
    k_end(A, 0)
    A.label("K1_S1")
    A("global_store_short v29, v40, s[32:33]")
    A("global_store_short_d16_hi v29, v40, s[32:33] offset:64")
    A("global_store_short v29, v41, s[32:33] offset:128")
    A("global_store_short_d16_hi v29, v41, s[32:33] offset:192")
    k_end(A, 0)

    A.label("K1_LN")
    if CODE_PF[0]:
        A(f"s_cmp_ge_u32 s2, {K1_WT + K1_KG + 16}")
        A("s_cbranch_scc1 K1_NOPF")
        A("s_getpc_b64 s[40:41]")
        A.label("K1_PC")
        A("s_add_u32 s40, s40, k2_kernel-K1_PC")
        A("s_addc_u32 s41, s41, 0")
        A("v_lshlrev_b32 v90, 4, v0")
        for i in range(CODE_PF[0]):
            A(f"global_load_dwordx4 v[92:95], v90, s[40:41]")
            A("v_add_u32 v90, 3072, v90")
        A.label("K1_NOPF")
    A("v_lshrrev_b32 v1, 6, v0")
    A("v_readfirstlane_b32 s3, v1")
    A(f"s_sub_u32 s5, s2, {K1_WT + K1_KG}")
    pair_swizzle(A, 4, 5, 6)
    A("s_mul_i32 s5, s4, 10240")
    A("v_min_u32 v2, 159, v0")
    A("v_lshlrev_b32 v3, 3, v2")
    A("v_add_u32 v3, s5, v3")
    A("v_add_u32 v4, 5120, v3")
    A("v_lshrrev_b32 v5, 4, v0")
    A("v_mul_u32_u24 v6, 1280, v5")
    A("v_and_b32 v7, 15, v0")
    A("v_lshlrev_b32 v7, 4, v7")
    A("v_add_u32 v6, v6, v7")
    A("v_add_u32 v6, s5, v6")
    A("s_waitcnt lgkmcnt(0)")
    A("s_cmp_eq_u32 s3, 2")
    A("s_cbranch_scc1 K1_LNB")
    for i in range(5):
        A(f"global_load_dwordx4 {vr(8+4*i,4)}, v6, s[16:17] offset:{256*i}")
    A.label("K1_LNB")
    for r in range(8):
        A(f"global_load_dwordx2 {vr(40+2*r,2)}, v{3 if r < 4 else 4}, s[16:17] offset:{1280*(r%4)}")
    A(f"v_mov_b32 v34, {ONE_LO}")
    A(f"v_mov_b32 v35, {ONE_HI}")
    A("s_cmp_eq_u32 s3, 2")
    A("s_cbranch_scc1 K1_LNBAR")
    A("v_mov_b32 v30, 0")
    A("v_mov_b32 v31, 0")
    A("v_mov_b32 v36, 0")
    A("v_mov_b32 v37, 0")
    A("v_mov_b32 v32, 0x3f803f80")
    A("s_waitcnt vmcnt(8)")
    for i in range(0, 20, 2):
        A(f"v_dot2c_f32_bf16 v30, v{8+i}, v32")
        A(f"v_dot2c_f32_bf16 v31, v{8+i}, v{8+i}")
        A(f"v_dot2c_f32_bf16 v36, v{9+i}, v32")
        A(f"v_dot2c_f32_bf16 v37, v{9+i}, v{9+i}")
    A("s_nop 2")
    A("v_add_f32 v30, v30, v36")
    A("v_add_f32 v31, v31, v37")
    for sh in (8, 4, 2, 1):
        A(f"v_add_f32_dpp v30, v30, v30 row_ror:{sh} row_mask:0xf bank_mask:0xf")
        A(f"v_add_f32_dpp v31, v31, v31 row_ror:{sh} row_mask:0xf bank_mask:0xf")
    ln_finish(A, 30, 31, 33)
    A("v_sub_f32 v30, 0, v30")
    A("v_lshlrev_b32 v5, 3, v5")
    A("ds_write_b64 v5, v[30:31]")
    A.label("K1_LNBAR")
    stamp(A, 2)
    A("s_waitcnt lgkmcnt(0)")
    A("s_barrier")
    stamp(A, 3)
    A("v_mov_b32 v5, 0")
    for i in range(4):
        A(f"ds_read_b128 {vr(8+4*i,4)}, v5 offset:{16*i}")
    A("v_lshlrev_b32 v3, 14, v2")
    A("s_lshl_b32 s5, s4, 6")
    A("v_add_u32 v3, s5, v3")
    A("s_waitcnt vmcnt(0) lgkmcnt(0)")
    for rp in range(4):
        r0, r1 = 2 * rp, 2 * rp + 1
        tt = [76 + 3 * ch for ch in range(4)]
        for ch in range(4):
            a, b = 40 + 2 * r0 + (ch >> 1), 40 + 2 * r1 + (ch >> 1)
            one = 34 + (ch & 1)
            A(f"v_dot2_f32_bf16 v{tt[ch]}, v{a}, v{one}, v{8+2*r0}")
            A(f"v_dot2_f32_bf16 v{tt[ch]+1}, v{b}, v{one}, v{8+2*r1}")
        for ch in range(4):
            A(f"v_cvt_pk_bf16_f32 v{tt[ch]+2}, v{tt[ch]}, v{tt[ch]+1}")
        for ch in range(4):
            A(f"v_lshlrev_b32 v{tt[ch]}, 16, v{tt[ch]+2}")
            A(f"v_and_b32 v{tt[ch]+1}, 0xffff0000, v{tt[ch]+2}")
        for ch in range(4):
            A(f"v_mul_f32 v{tt[ch]}, v{tt[ch]}, v{9+2*r0}")
            A(f"v_mul_f32 v{tt[ch]+1}, v{tt[ch]+1}, v{9+2*r1}")
        for ch in range(4):
            A(f"v_cvt_pk_bf16_f32 v{tt[ch]+2}, v{tt[ch]}, v{tt[ch]+1}")
        for ch in range(4):
            A(f"v_lshlrev_b32 v{tt[ch]}, 16, v{tt[ch]+2}")
            A(f"v_and_b32 v{tt[ch]+1}, 0xffff0000, v{tt[ch]+2}")
        for ch in range(4):
            A(f"v_cvt_pk_f16_f32 v{60+4*ch+rp}, v{tt[ch]}, v{tt[ch]+1}")
    stamp(A, 4)
    for ch in range(4):
        A(f"global_store_dwordx4 v3, {vr(60+4*ch,4)}, s[32:33] offset:{16*ch} {ST_OPT[0]}")
    k_end(A, 0)

    A.label("K1_END")
    A("s_endpgm")


K2_KE, K2_KO, K2_U, K2_T = 0, 4160, 8320, 12928
K2_WB = 15168
K2_LDS = 4 * K2_WB
K2_NWT = 96
K2_WT_RANGE = [0, 960]


def k2(A):
    A(f"s_cmp_ge_u32 s2, {160 + K2_NWT}")
    A("s_cbranch_scc1 K2_END")
    k_begin(A)
    A("s_load_dwordx2 s[32:33], s[0:1], 112")
    A("s_load_dwordx2 s[28:29], s[0:1], 48")
    A("s_cmp_ge_u32 s2, 160")
    A("s_cbranch_scc1 K2_WTR")
    pair_swizzle(A, 35, 2, 6)
    A("v_lshrrev_b32 v1, 6, v0")
    A("v_readfirstlane_b32 s3, v1")
    A("v_and_b32 v2, 63, v0")
    A("s_lshl_b32 s4, s35, 2")
    A("s_add_u32 s4, s4, s3")
    A(f"s_mul_i32 s5, s3, {K2_WB}")
    A("s_lshl_b32 s6, s4, 11")
    A(f"s_add_u32 s6, s6, {WS_KD}")
    A("s_lshl_b32 s7, s35, 14")
    A("s_lshl_b32 s8, s3, 4")
    A("s_add_u32 s7, s7, s8")
    A("v_lshlrev_b32 v3, 4, v2")
    A("v_add_u32 v3, s6, v3")
    A("v_lshlrev_b32 v5, 6, v2")
    A("v_add_u32 v5, s7, v5")
    A("s_lshl_b32 s9, s4, 2")
    A(f"s_add_u32 s9, s9, {WS_SC}")
    A("s_lshr_b32 s14, s4, 1")
    A("s_lshl_b32 s14, s14, 2")
    A(f"s_add_u32 s12, s5, {K2_T}")
    A("s_mov_b32 m0, s12")
    A("s_waitcnt lgkmcnt(0)")
    stamp(A, 1)
    A("global_load_lds_dwordx4 v3, s[32:33]")
    A("global_load_lds_dwordx4 v3, s[32:33] offset:1024")
    for j in range(4):
        A(f"s_add_u32 s12, s5, {K2_U + 512 + 1024*j}")
        A("s_mov_b32 m0, s12")
        if j:
            A("v_add_u32 v5, 4096, v5")
        A("global_load_lds_dwordx4 v5, s[32:33]")
    A("s_load_dword s10, s[32:33], s9")
    A("s_load_dword s11, s[28:29], s14")
    A("v_and_b32 v6, 15, v2")
    A("v_lshrrev_b32 v7, 4, v2")
    A("v_lshrrev_b32 v8, 1, v7")
    A("v_and_b32 v9, 1, v7")
    A("v_mov_b32 v12, 0")
    A("v_mov_b32 v13, 0")
    A("v_lshlrev_b32 v14, 3, v2")
    A("v_add_u32 v14, s5, v14")
    A(f"ds_write_b64 v14, v[12:13] offset:{K2_U}")
    A("v_lshlrev_b32 v14, 2, v6")
    A("v_add_u32 v14, s5, v14")
    A(f"ds_write_b32 v14, v12 offset:{K2_KE + 4096}")
    A(f"ds_write_b32 v14, v12 offset:{K2_KO + 4096}")
    A("v_sub_u32 v14, 2047, v6")
    A("v_lshlrev_b32 v15, 4, v8")
    A("v_sub_u32 v14, v14, v15")
    A("v_lshlrev_b32 v15, 3, v9")
    A("v_add_u32 v14, v14, v15")
    A("v_lshlrev_b32 v14, 1, v14")
    A(f"v_add_u32 v15, {K2_KO - 2}, v14")
    A("v_and_b32 v16, 1, v6")
    A("v_cmp_eq_u32 vcc, 1, v16")
    A("v_cndmask_b32 v14, v15, v14, vcc")
    A("v_add_u32 v14, s5, v14")
    AB = [20, 21, 22, 23]
    for p in range(4):
        A(f"v_subrev_u32 v{AB[p]}, {512*(2*p+1) + 448}, v14")
    A("v_lshlrev_b32 v15, 5, v6")
    A("v_lshlrev_b32 v16, 5, v8")
    A("v_sub_u32 v15, v15, v16")
    A("v_lshlrev_b32 v16, 4, v9")
    A("v_add_u32 v15, v15, v16")
    A(f"v_add_u32 v15, {K2_U + 512 - 448}, v15")
    BB = 24
    A(f"v_add_u32 v{BB}, s5, v15")
    A("v_lshlrev_b32 v15, 5, v6")
    A("v_lshlrev_b32 v16, 3, v7")
    A("v_add_u32 v15, v15, v16")
    A("v_add_u32 v25, s5, v15")
    A("v_lshlrev_b32 v26, 1, v2")
    A(f"v_sub_u32 v26, {K2_T + 2*(384+255)}, v26")
    A("v_add_u32 v26, s5, v26")
    A("v_lshlrev_b32 v27, 2, v2")
    A(f"v_sub_u32 v27, {K2_T + 512 + 4*127}, v27")
    A("v_add_u32 v27, s5, v27")
    A("v_lshlrev_b32 v28, 4, v2")
    A("v_add_u32 v28, s5, v28")
    A("v_lshlrev_b32 v3, 3, v2")
    A("v_sub_u32 v3, 511, v3")
    for k in range(9):
        A(f"v_subrev_u32 v{30+k}, {k}, v3")
    A("v_max_i32 v38, 0, v38")
    for k in range(9):
        A(f"v_cvt_f32_i32 v{40+k}, v{30+k}")
    for k in range(0, 8, 2):
        A(f"v_cvt_pk_bf16_f32 v{50+k}, v{40+k}, v{41+k}")
        A(f"v_lshrrev_b32 v{51+k}, 16, v{50+k}")
        A(f"v_and_b32 v{50+k}, 0xffff, v{50+k}")
    A("v_cvt_pk_bf16_f32 v58, v48, v48")
    A("v_and_b32 v58, 0xffff, v58")
    A(f"s_add_u32 s12, s5, {K2_T}")
    for k in range(9):
        A(f"v_subrev_u32 v{50+k}, 17024, v{50+k}")
        A(f"v_min_i32 v{30+k}, 127, v{30+k}")
        A(f"v_max_i32 v{50+k}, v{50+k}, v{30+k}")
        A(f"v_lshlrev_b32 v{30+k}, 1, v{50+k}")
        A(f"v_add_u32 v{30+k}, s12, v{30+k}")
    A("v_and_b32 v16, 1, v2")
    A("v_cmp_eq_u32 s[20:21], 1, v16")
    A("s_mov_b32 s22, 0x01000100")
    A("s_mov_b32 s23, 0x03020302")
    AF, BF, ACC = 64, 96, 128
    for i in range(32):
        A(f"v_mov_b32 v{ACC+i}, 0")
    A("s_waitcnt vmcnt(4)")
    stamp(A, 2)
    A("v_subrev_u32 v29, 128, v26")
    for r in range(2):
        w = 40 + 8 * r
        A(f"ds_read_u16 v{w}, v{26 if r == 0 else 29}")
        A(f"ds_read_u16 v{w+1}, v{26 if r == 0 else 29} offset:2")
    A("ds_read_b32 v56, v27")
    A("ds_read_u16 v57, v27 offset:4")
    for k in range(9):
        A(f"ds_read_u16 v{100+k}, v{30+k}")
    A("s_waitcnt lgkmcnt(0)")
    for k in range(4):
        A(f"v_lshl_or_b32 v{60+k}, v{101+2*k}, 16, v{100+2*k}")
    A("v_mov_b32 v59, v108")
    for r in range(2):
        w = 40 + 8 * r
        A(f"v_lshl_or_b32 v{w}, v{w+1}, 16, v{w}")
    for r in range(2):
        w = 40 + 8 * r
        A(f"v_perm_b32 v{w+2}, v{w}, v{w}, s23")
        A(f"v_perm_b32 v{w+4}, v{w}, v{w}, s22")
        A(f"v_alignbit_b32 v{w+1}, v{w}, v{w}, 16")
        A(f"v_mov_b32 v{w+5}, v{w+4}")
        A(f"v_mov_b32 v{w+6}, v{w+2}")
        A(f"v_cndmask_b32 v{w+3}, v{w+2}, v{w+1}, s[20:21]")
        A(f"v_cndmask_b32 v{w+7}, v{w+1}, v{w+4}, s[20:21]")
        A(f"ds_write_b64 v28, {vr(w+2,2)} offset:{K2_KE + 1024*r}")
        A(f"ds_write_b64 v28, {vr(w+4,2)} offset:{K2_KE + 1024*r + 8}")
        A(f"ds_write_b64 v28, {vr(w+6,2)} offset:{K2_KO + 1024*r}")
        A(f"ds_write_b64 v28, {vr(w+4,2)} offset:{K2_KO + 1024*r + 8}")
    A("v_perm_b32 v40, v57, v57, s22")
    A("v_perm_b32 v41, v56, v56, s23")
    A("v_alignbit_b32 v42, v56, v56, 16")
    A("v_perm_b32 v43, v56, v56, s22")
    A("s_mov_b32 s24, 0x07060100")
    A("v_perm_b32 v44, v56, v57, s24")
    A("v_mov_b32 v45, v41")
    A("v_mov_b32 v46, v43")
    A("v_mov_b32 v47, v43")
    A(f"ds_write_b128 v28, v[40:43] offset:{K2_KE + 2048}")
    A(f"ds_write_b128 v28, v[44:47] offset:{K2_KO + 2048}")
    A("v_alignbit_b32 v48, v61, v60, 16")
    A("v_alignbit_b32 v49, v62, v61, 16")
    A("v_alignbit_b32 v50, v63, v62, 16")
    A("v_alignbit_b32 v51, v59, v63, 16")
    A(f"ds_write_b128 v28, v[60:63] offset:{K2_KE + 3072}")
    A(f"ds_write_b128 v28, v[48:51] offset:{K2_KO + 3072}")
    A(f"v_mov_b32 v14, s5")
    A(f"ds_write_b16 v14, v12 offset:{K2_KO + 2*2047}")
    A("s_bitcmp1_b32 s4, 0")
    A("s_cbranch_scc1 K2_ODD")
    A("s_lshl_b32 s11, s11, 16")
    A.label("K2_ODD")
    A("s_and_b32 s11, s11, 0xffff0000")

    def loadA(q, i0):
        p = q // 2
        o = (128 if q % 2 == 0 else 0) + 16 * (7 - i0)
        return [f"ds_read2_b32 {vr(AF+4*q,2)}, v{AB[p]} offset0:{o} offset1:{o+1}",
                f"ds_read2_b32 {vr(AF+4*q+2,2)}, v{AB[p]} offset0:{o+2} offset1:{o+3}"]

    def loadB(tau, i0):
        return [f"ds_read_b128 {vr(BF+4*tau,4)}, v{BB} offset:{512*tau + 64*(7-i0)}"]

    A("s_waitcnt vmcnt(0)")
    stamp(A, 3)
    for q in range(8):
        for s in loadB(7 - q, 0):
            A(s)
    for q in range(8):
        for s in loadA(q, 0):
            A(s)
    queue = []
    for q in range(8):
        queue.append(("B", 7 - q))
    for q in range(8):
        queue += [("A", q), ("A", q)]

    pending = []

    def wait_for(tags):
        while any(tg in tags for _, tg in pending):
            s_, tg = pending.pop(0)
            A(s_)
            queue.append(tg)
        last = -1
        for i, t in enumerate(queue):
            if t in tags:
                last = i
        if last >= 0:
            n = len(queue) - 1 - last
            A(f"s_waitcnt lgkmcnt({min(n, 15)})")
            del queue[:last + 1]

    for i0 in range(8):
        for q in range(8):
            for tau in range(7 - q, -1, -1):
                wait_for({("A", q), ("B", tau)})
                t = q + tau
                A(f"v_mfma_f32_16x16x32_f16 {vr(ACC+4*t,4)}, {vr(AF+4*q,4)}, {vr(BF+4*tau,4)}, {vr(ACC+4*t,4)}")
                if i0 < 7:
                    if tau == 7 - q:
                        pending.insert(0, (loadB(7 - q, i0 + 1)[0], ("B", 7 - q)))
                    if tau == 0:
                        for s in loadA(q, i0 + 1):
                            pending.append((s, ("A", q)))
                if pending:
                    s, tag = pending.pop(0)
                    A(s)
                    queue.append(tag)
    assert not pending or True
    stamp(A, 4)
    for t in range(8):
        A(f"ds_read_b64 {vr(64+2*t,2)}, v25 offset:{K2_U + 512 + 512*t}")
    A(f"v_mov_b32 v34, {ONE_LO}")
    A(f"v_mov_b32 v35, {ONE_HI}")
    A("s_mov_b32 s12, s10")
    A("s_mov_b32 s13, s10")
    A("v_mov_b32 v36, s10")
    A("v_mov_b32 v37, s10")
    A("s_waitcnt lgkmcnt(0)")
    for t in range(8):
        a = ACC + 4 * t
        u = 64 + 2 * t
        tm = 40 + 8 * (t & 1)
        A(f"v_pk_mul_f32 {vr(a,2)}, {vr(a,2)}, v[36:37]")
        A(f"v_pk_mul_f32 {vr(a+2,2)}, {vr(a+2,2)}, v[36:37]")
        A(f"v_fma_mix_f32 v{tm}, v{u}, s11, 0 op_sel:[0,0,0] op_sel_hi:[1,0,0]")
        A(f"v_fma_mix_f32 v{tm+1}, v{u}, s11, 0 op_sel:[1,0,0] op_sel_hi:[1,0,0]")
        A(f"v_fma_mix_f32 v{tm+2}, v{u+1}, s11, 0 op_sel:[0,0,0] op_sel_hi:[1,0,0]")
        A(f"v_fma_mix_f32 v{tm+3}, v{u+1}, s11, 0 op_sel:[1,0,0] op_sel_hi:[1,0,0]")
        A(f"v_cvt_pk_bf16_f32 v{a}, v{a}, v{a+1}")
        A(f"v_cvt_pk_bf16_f32 v{a+1}, v{a+2}, v{a+3}")
        A(f"v_cvt_pk_bf16_f32 v{tm+4}, v{tm}, v{tm+1}")
        A(f"v_cvt_pk_bf16_f32 v{tm+5}, v{tm+2}, v{tm+3}")
        A(f"v_lshlrev_b32 v{tm}, 16, v{tm+4}")
        A(f"v_and_b32 v{tm+1}, 0xffff0000, v{tm+4}")
        A(f"v_lshlrev_b32 v{tm+2}, 16, v{tm+5}")
        A(f"v_and_b32 v{tm+3}, 0xffff0000, v{tm+5}")
        A(f"v_dot2_f32_bf16 v{tm}, v{a}, v34, v{tm}")
        A(f"v_dot2_f32_bf16 v{tm+1}, v{a}, v35, v{tm+1}")
        A(f"v_dot2_f32_bf16 v{tm+2}, v{a+1}, v34, v{tm+2}")
        A(f"v_dot2_f32_bf16 v{tm+3}, v{a+1}, v35, v{tm+3}")
        A(f"v_cvt_pk_bf16_f32 v{a+2}, v{tm}, v{tm+1}")
        A(f"v_cvt_pk_bf16_f32 v{a+3}, v{tm+2}, v{tm+3}")
        A(f"ds_write_b64 v25, {vr(a+2,2)} offset:{K2_KE + 512*t}")
    stamp(A, 5)
    A("s_waitcnt lgkmcnt(0)")
    A("s_barrier")
    A("v_lshrrev_b32 v14, 2, v6")
    A(f"v_mul_u32_u24 v14, {K2_WB}, v14")
    A("v_and_b32 v15, 3, v2")
    A("v_lshlrev_b32 v15, 3, v15")
    A("v_add_u32 v14, v14, v15")
    A("v_lshlrev_b32 v15, 5, v7")
    A("v_add_u32 v14, v14, v15")
    A("s_lshl_b32 s12, s3, 10")
    A("v_add_u32 v14, s12, v14")
    for k in range(8):
        A(f"ds_read_b64_tr_b16 {vr(40+2*k,2)}, v14 offset:{K2_KE + 128*k}")
    A("v_lshrrev_b32 v15, 3, v6")
    A("v_lshlrev_b32 v16, 1, v7")
    A("v_add_u32 v15, v15, v16")
    A("v_mul_u32_u24 v15, 10240, v15")
    A("v_and_b32 v16, 7, v6")
    A("v_lshlrev_b32 v16, 4, v16")
    A("v_add_u32 v15, v15, v16")
    A("s_mul_i32 s12, s3, 655360")
    A("s_lshr_b32 s13, s35, 1")
    A("s_lshl_b32 s13, s13, 7")
    A("s_add_u32 s12, s12, s13")
    A("s_and_b32 s13, s35, 1")
    A("s_lshl_b32 s13, s13, 3")
    A("s_add_u32 s12, s12, s13")
    A(f"s_add_u32 s12, s12, {WS_AT}")
    A("v_add_u32 v15, s12, v15")
    A("s_waitcnt lgkmcnt(0)")
    for k in range(8):
        A(f"global_store_dwordx2 v15, {vr(40+2*k,2)}, s[32:33] {ST_OPT[0]}")
        if k < 7:
            A("v_add_u32 v15, 81920, v15")
    k_end(A, 1)

    wt_role(A, "K2", 160, 4, 12288, K2_WT_RANGE[0], K2_WT_RANGE[1], 1, WT_OPT[0], K2_NWT * 4)
    A.label("K2_END")
    A("s_endpgm")


K3_LDS = 0


def k3(A):
    A("s_cmp_ge_u32 s2, 256")
    A("s_cbranch_scc1 K3_END")
    k_begin(A)
    A("s_load_dwordx2 s[32:33], s[0:1], 112")
    A("s_load_dwordx2 s[26:27], s[0:1], 0")
    A("s_load_dwordx2 s[28:29], s[0:1], 64")
    A("s_load_dwordx2 s[30:31], s[0:1], 96")
    A("v_lshrrev_b32 v7, 5, v0")
    A("v_and_b32 v4, 31, v0")
    A("s_mul_i32 s4, s2, 10240")
    A("v_lshlrev_b32 v5, 4, v4")
    A("v_mul_u32_u24 v6, 1280, v7")
    A("v_add_u32 v6, v6, v5")
    A("v_add_u32 v8, s4, v6")
    A("v_lshlrev_b32 v3, 7, v4")
    A("v_lshl_add_u32 v3, v7, 4, v3")
    A(f"s_add_u32 s5, s4, {WS_AT}")
    A("v_add_u32 v3, s5, v3")
    A("v_add_u32 v9, 8192, v3")
    AR, XR, WR = 20, 32, 44
    for i in range(4):
        A(f"v_mov_b32 v{AR+8+i}, 0")
        A(f"v_mov_b32 v{XR+8+i}, 0")
        A(f"v_mov_b32 v{WR+8+i}, 0")
    A("v_cmp_gt_u32 s[20:21], 16, v4")
    A("s_waitcnt lgkmcnt(0)")
    stamp(A, 1)
    A(f"global_load_dwordx4 {vr(AR,4)}, v3, s[32:33]")
    A(f"global_load_dwordx4 {vr(XR,4)}, v8, s[26:27]")
    A(f"global_load_dwordx4 {vr(AR+4,4)}, v3, s[32:33] offset:4095".replace("offset:4095", "offset:0") if False else
      f"global_load_dwordx4 {vr(XR+4,4)}, v8, s[26:27] offset:512")
    A("v_add_u32 v10, 4096, v3")
    A(f"global_load_dwordx4 {vr(AR+4,4)}, v10, s[32:33]")
    A("s_mov_b64 exec, s[20:21]")
    A(f"global_load_dwordx4 {vr(AR+8,4)}, v9, s[32:33]")
    A(f"global_load_dwordx4 {vr(XR+8,4)}, v8, s[26:27] offset:1024")
    A(f"global_load_dwordx4 {vr(WR+8,4)}, v5, s[28:29] offset:1024")
    A("s_mov_b64 exec, -1")
    A(f"global_load_dwordx4 {vr(WR,4)}, v5, s[28:29]")
    A(f"global_load_dwordx4 {vr(WR+4,4)}, v5, s[28:29] offset:512")
    A(f"v_mov_b32 v12, {ONE_LO}")
    A(f"v_mov_b32 v13, {ONE_HI}")
    A("v_mov_b32 v14, 0x3f803f80")
    for r in (10, 11, 16, 17):
        A(f"v_mov_b32 v{r}, 0")
    A(f"v_add_u32 v9, {WS_L2}, v8")
    H = 56
    T = 68
    A("s_waitcnt vmcnt(3)")
    stamp(A, 2)
    N = 12
    for i in range(N):
        A(f"v_lshlrev_b32 v{T+2*i}, 16, v{AR+i}")
        A(f"v_and_b32 v{T+2*i+1}, 0xffff0000, v{AR+i}")
    for i in range(N):
        A(f"v_dot2_f32_bf16 v{T+2*i}, v{XR+i}, v12, v{T+2*i}")
        A(f"v_dot2_f32_bf16 v{T+2*i+1}, v{XR+i}, v13, v{T+2*i+1}")
    for i in range(N):
        A(f"v_cvt_pk_bf16_f32 v{H+i}, v{T+2*i}, v{T+2*i+1}")
    for i in range(0, N, 2):
        A(f"v_dot2c_f32_bf16 v10, v{H+i}, v14")
        A(f"v_dot2c_f32_bf16 v11, v{H+i}, v{H+i}")
        A(f"v_dot2c_f32_bf16 v16, v{H+i+1}, v14")
        A(f"v_dot2c_f32_bf16 v17, v{H+i+1}, v{H+i+1}")
    A("s_nop 2")
    A("v_add_f32 v10, v10, v16")
    A("v_add_f32 v11, v11, v17")

    def red(regs, tmps):
        for sh in (8, 4, 2, 1):
            for r in regs:
                A(f"v_add_f32_dpp v{r}, v{r}, v{r} row_ror:{sh} row_mask:0xf bank_mask:0xf")
        for r, t in zip(regs, tmps):
            A(f"v_mov_b32 v{t}, v{r}")
        for r, t in zip(regs, tmps):
            A(f"v_permlane16_swap_b32 v{r}, v{t}")
        for r, t in zip(regs, tmps):
            A(f"v_add_f32 v{r}, v{r}, v{t}")
    red([10, 11], [16, 17])
    ln_finish(A, 10, 11, 15)
    A("v_sub_f32 v10, 0, v10")
    stamp(A, 3)
    L, O = AR, XR
    for i in range(N):
        A(f"v_dot2_f32_bf16 v{T+2*i}, v{H+i}, v12, v10")
        A(f"v_dot2_f32_bf16 v{T+2*i+1}, v{H+i}, v13, v10")
    for i in range(N):
        A(f"v_cvt_pk_bf16_f32 v{L+i}, v{T+2*i}, v{T+2*i+1}")
    for i in range(N):
        A(f"v_lshlrev_b32 v{T+2*i}, 16, v{L+i}")
        A(f"v_and_b32 v{T+2*i+1}, 0xffff0000, v{L+i}")
    A("v_mov_b32 v16, v11")
    A("v_mov_b32 v17, v11")
    for i in range(N):
        A(f"v_pk_mul_f32 {vr(T+2*i,2)}, {vr(T+2*i,2)}, v[16:17]")
    for i in range(N):
        A(f"v_cvt_pk_bf16_f32 v{L+i}, v{T+2*i}, v{T+2*i+1}")
    m2 = os.environ.get("K3_L2MOD", "")
    A(f"global_store_dwordx4 v9, {vr(L,4)}, s[32:33] {m2}")
    A(f"global_store_dwordx4 v9, {vr(L+4,4)}, s[32:33] offset:512 {m2}")
    A("s_mov_b64 exec, s[20:21]")
    A(f"global_store_dwordx4 v9, {vr(L+8,4)}, s[32:33] offset:1024 {m2}")
    A("s_mov_b64 exec, -1")
    A("v_mov_b32 v14, 0")
    A("v_mov_b32 v15, 0")
    A("s_waitcnt vmcnt(3)")
    for i in range(0, N, 2):
        A(f"v_dot2c_f32_bf16 v14, v{L+i}, v{WR+i}")
        A(f"v_dot2c_f32_bf16 v15, v{L+i+1}, v{WR+i+1}")
    for i in range(N):
        A(f"v_lshlrev_b32 v{T+2*i}, 16, v{L+i}")
        A(f"v_and_b32 v{T+2*i+1}, 0xffff0000, v{L+i}")
    A("v_add_f32 v14, v14, v15")
    for i in range(N):
        A(f"v_dot2_f32_bf16 v{T+2*i}, v{H+i}, v12, v{T+2*i}")
        A(f"v_dot2_f32_bf16 v{T+2*i+1}, v{H+i}, v13, v{T+2*i+1}")
    for i in range(N):
        A(f"v_cvt_pk_bf16_f32 v{O+i}, v{T+2*i}, v{T+2*i+1}")
    stamp(A, 4)
    m3 = os.environ.get("K3_OUTMOD", "")
    A(f"global_store_dwordx4 v8, {vr(O,4)}, s[30:31] {m3}")
    A(f"global_store_dwordx4 v8, {vr(O+4,4)}, s[30:31] offset:512 {m3}")
    A("s_mov_b64 exec, s[20:21]")
    A(f"global_store_dwordx4 v8, {vr(O+8,4)}, s[30:31] offset:1024 {m3}")
    A("s_mov_b64 exec, -1")
    red([14], [15])
    A("v_cvt_pk_bf16_f32 v40, v14, v14")
    A("v_and_b32 v40, 0xffff0000, v40")
    A("v_ashrrev_i32 v41, 31, v40")
    A("v_or_b32 v41, 0x80000000, v41")
    A("v_xor_b32 v40, v40, v41")
    A("v_and_b32 v40, 0xffff0000, v40")
    A("s_lshl_b32 s6, s2, 3")
    A("v_add_u32 v42, s6, v7")
    A("v_sub_u32 v43, 2047, v42")
    A("v_or_b32 v40, v40, v43")
    A("v_lshlrev_b32 v42, 2, v42")
    A(f"v_add_u32 v42, {WS_RK}, v42")
    A("v_cmp_eq_u32 vcc, 0, v4")
    A("s_mov_b64 exec, vcc")
    A("global_store_dword v42, v40, s[32:33]")
    k_end(A, 2)
    A.label("K3_END")
    A("s_endpgm")


K4_LDS = 8192


def k4(A):
    A(f"s_cmp_ge_u32 s2, {192 + (80 if PF_WD[0] else 0)}")
    A("s_cbranch_scc1 K4_END")
    k_begin(A)
    A("s_load_dwordx2 s[32:33], s[0:1], 112")
    if PF_WD[0]:
        A("s_cmp_lt_u32 s2, 192")
        A("s_cbranch_scc1 K4_MAIN")
        A("s_sub_u32 s4, s2, 192")
        A("s_mul_i32 s4, s4, 24576")
        A(f"s_add_u32 s4, s4, {WS_WD}")
        A("v_lshlrev_b32 v3, 4, v0")
        A("v_add_u32 v3, s4, v3")
        A("s_waitcnt lgkmcnt(0)")
        for i in range(6):
            A(f"global_load_dwordx4 v[8:11], v3, s[32:33]")
            A("v_add_u32 v3, 4096, v3")
        k_end(A, 3)
        A.label("K4_MAIN")
    A("v_lshrrev_b32 v1, 6, v0")
    A("v_readfirstlane_b32 s3, v1")
    A("v_and_b32 v2, 63, v0")
    A("s_mul_i32 s4, s2, 20480")
    A("s_mul_i32 s5, s3, 5120")
    A("s_add_u32 s4, s4, s5")
    A(f"s_add_u32 s4, s4, {WS_WGU}")
    A("v_lshlrev_b32 v3, 4, v2")
    A("v_add_u32 v3, s4, v3")
    A("v_add_u32 v5, 4096, v3")
    A("v_lshlrev_b32 v4, 5, v0")
    A(f"v_add_u32 v4, {WS_RK}, v4")
    A("s_waitcnt lgkmcnt(0)")
    A("global_load_dwordx4 v[8:11], v4, s[32:33]")
    A("global_load_dwordx4 v[12:15], v4, s[32:33] offset:16")
    BFR = 40
    stamp(A, 1)
    A("s_waitcnt vmcnt(0)")
    for i in range(4):
        A(f"global_load_dwordx4 {vr(BFR+4*i,4)}, v3, s[32:33] offset:{1024*i}")
    A(f"global_load_dwordx4 {vr(BFR+16,4)}, v5, s[32:33]")
    stamp(A, 2)
    net = [(0, 1), (2, 3), (4, 5), (6, 7), (0, 2), (1, 3), (4, 6), (5, 7), (1, 2), (5, 6), (0, 4), (3, 7), (1, 5), (2, 6),
           (1, 4), (3, 6), (2, 4), (3, 5), (3, 4)]
    reg = list(range(8, 16))
    spare = 16
    for a_, b_ in net:
        A(f"v_max_u32 v{spare}, v{reg[a_]}, v{reg[b_]}")
        A(f"v_min_u32 v{reg[b_]}, v{reg[a_]}, v{reg[b_]}")
        reg[a_], spare = spare, reg[a_]
    steps = [("row_shr:1", "0xf"), ("row_shr:2", "0xf"), ("row_shr:4", "0xf"), ("row_shr:8", "0xf"),
             ("row_bcast:15", "0xa"), ("row_bcast:31", "0xc")]
    for r in range(4):
        A(f"v_mov_b32 v17, v{reg[0]}")
        A(f"v_mov_b32 v18, v{reg[1]}")
        for ctl, mask in steps:
            bc = " bound_ctrl:0" if ctl.startswith("row_shr") else ""
            A(f"v_min_u32_dpp v19, v17, v17 {ctl} row_mask:{mask} bank_mask:0xf{bc}")
            A(f"v_max_u32_dpp v17, v17, v17 {ctl} row_mask:{mask} bank_mask:0xf{bc}")
            A(f"v_max_u32_dpp v20, v18, v18 {ctl} row_mask:{mask} bank_mask:0xf{bc}")
            A("v_max_u32 v18, v19, v20")
        A(f"v_readlane_b32 s{40+2*r}, v17, 63")
        A(f"v_readlane_b32 s{41+2*r}, v18, 63")
        if r < 3:
            left = 8 - 2 * r
            for wsel in (40 + 2 * r, 41 + 2 * r):
                A(f"v_cmp_eq_u32 vcc, s{wsel}, v{reg[0]}")
                left -= 1
                for k in range(left):
                    A(f"v_cndmask_b32 v{reg[k]}, v{reg[k]}, v{reg[k+1]}, vcc")
    stamp(A, 3)
    A("v_mov_b32 v16, s40")
    for r in range(1, 8):
        A(f"v_writelane_b32 v16, s{40+r}, {r}")
    A("s_lshl_b32 s6, s3, 5")
    A("v_lshlrev_b32 v17, 2, v2")
    A("v_add_u32 v17, s6, v17")
    A("v_cmp_gt_u32 vcc, 8, v2")
    A("s_and_saveexec_b64 s[20:21], vcc")
    A("ds_write_b32 v17, v16")
    A("s_mov_b64 exec, s[20:21]")
    A("v_and_b32 v17, 31, v2")
    A("v_lshlrev_b32 v17, 2, v17")
    A("v_lshrrev_b32 v18, 5, v2")
    A("v_lshlrev_b32 v18, 6, v18")
    A("v_mov_b32 v19, 0")
    A("v_mov_b32 v20, 0")
    A("s_waitcnt lgkmcnt(0)")
    A("s_barrier")
    A("ds_read_b32 v16, v17")
    for i in range(4):
        A(f"ds_read_b128 {vr(60+4*i,4)}, v18 offset:{16*i}")
    A("s_waitcnt lgkmcnt(0)")
    sp = ["s[50:51]", "s[52:53]", "s[54:55]", "s[56:57]"]
    for i in range(0, 16, 4):
        for k in range(4):
            A(f"v_cmp_gt_u32 {sp[k]}, v{60+i+k}, v16")
        for k in range(4):
            A(f"v_addc_co_u32 v{19 + (k & 1)}, vcc, 0, v{19 + (k & 1)}, {sp[k]}")
    A("v_add_u32 v19, v19, v20")
    A("v_mov_b32 v20, v19")
    A("v_permlane32_swap_b32 v19, v20")
    A("v_add_u32 v19, v19, v20")
    A("v_cmp_gt_u32 vcc, 8, v19")
    A("v_cmp_gt_u32 s[22:23], 32, v2")
    A("s_and_b64 vcc, vcc, s[22:23]")
    A("v_lshlrev_b32 v19, 2, v19")
    A("s_lshl_b32 s6, s3, 6")
    A("s_add_u32 s6, s6, 256")
    A("v_add_u32 v19, s6, v19")
    A("s_and_saveexec_b64 s[20:21], vcc")
    A("ds_write_b32 v19, v16")
    A("s_mov_b64 exec, s[20:21]")
    A("v_and_b32 v17, 7, v2")
    A("v_lshlrev_b32 v17, 2, v17")
    A("v_add_u32 v17, s6, v17")
    A("ds_read_b32 v16, v17")
    A("v_lshrrev_b32 v21, 4, v2")
    A("v_lshlrev_b32 v21, 4, v21")
    A("s_mul_i32 s6, s3, 320")
    A(f"s_add_u32 s6, s6, {WS_L2}")
    A("v_add_u32 v21, s6, v21")
    A("s_waitcnt lgkmcnt(0)")
    A("v_and_b32 v18, 0x7ff, v16")
    A("v_sub_u32 v18, 2047, v18")
    A("v_mul_u32_u24 v20, 1280, v18")
    A("v_add_u32 v20, v20, v21")
    AFR = 60
    for i in range(5):
        A(f"global_load_dwordx4 {vr(AFR+4*i,4)}, v20, s[32:33] offset:{64*i}")
    stamp(A, 4)
    A("s_or_b32 s6, s2, s3")
    A("s_cmp_lg_u32 s6, 0")
    A("s_cbranch_scc1 K4_NOSEL")
    A("v_and_b32 v22, 0xffff0000, v16")
    A("v_ashrrev_i32 v23, 31, v22")
    A("v_not_b32 v23, v23")
    A("v_or_b32 v23, 0x80000000, v23")
    A("v_xor_b32 v22, v22, v23")
    A("v_and_b32 v22, 0xffff0000, v22")
    A(f"v_mul_f32 v22, {hex(fbits(-LOG2E))}, v22")
    A("v_exp_f32 v22, v22")
    A("v_add_f32 v22, 1.0, v22")
    A("v_rcp_f32 v22, v22")
    bf16_round(A, 22)
    A("v_lshlrev_b32 v23, 2, v2")
    A(f"v_add_u32 v23, {WS_SEL}, v23")
    A("v_cmp_gt_u32 vcc, 8, v2")
    A("s_and_saveexec_b64 s[20:21], vcc")
    A("global_store_dword v23, v18, s[32:33]")
    A("global_store_dword v23, v22, s[32:33] offset:32")
    A("s_mov_b64 exec, s[20:21]")
    A.label("K4_NOSEL")
    for i in range(4):
        A(f"v_mov_b32 v{24+i}, 0")
    A("v_lshlrev_b32 v28, 4, v2")
    A("s_lshl_b32 s6, s3, 10")
    A("v_add_u32 v29, s6, v28")
    for i in range(5):
        A(f"s_waitcnt vmcnt({4-i})")
        A(f"v_mfma_f32_16x16x32_bf16 v[24:27], {vr(AFR+4*i,4)}, {vr(BFR+4*i,4)}, v[24:27]")
    stamp(A, 5)
    A("ds_write_b128 v29, v[24:27] offset:1024")
    A("s_waitcnt lgkmcnt(0)")
    A("s_barrier")
    A("s_cmp_lg_u32 s3, 0")
    A("s_cbranch_scc1 K4_DONE")
    for w in range(4):
        A(f"ds_read_b128 {vr(40+4*w,4)}, v28 offset:{1024 + 1024*w}")
    A("v_and_b32 v56, 15, v2")
    A("v_lshrrev_b32 v57, 4, v2")
    A("v_mul_u32_u24 v58, 12288, v57")
    A("v_lshlrev_b32 v59, 1, v56")
    A("v_add_u32 v58, v58, v59")
    A("s_lshl_b32 s6, s2, 4")
    A(f"s_add_u32 s6, s6, {WS_ACT}")
    A("v_add_u32 v58, s6, v58")
    A("v_add_u32 v59, 6144, v58")
    A("v_cmp_gt_u32 vcc, 8, v56")
    A("v_cmp_gt_u32 s[22:23], 2, v57")
    A("s_and_b64 s[22:23], vcc, s[22:23]")
    A("s_waitcnt lgkmcnt(0)")
    for i in range(4):
        A(f"v_add_f32 v{40+i}, v{40+i}, v{44+i}")
        A(f"v_add_f32 v{48+i}, v{48+i}, v{52+i}")
    for i in range(4):
        A(f"v_add_f32 v{40+i}, v{40+i}, v{48+i}")
    A("v_cvt_pk_bf16_f32 v44, v40, v41")
    A("v_cvt_pk_bf16_f32 v45, v42, v43")
    A("v_lshlrev_b32 v40, 16, v44")
    A("v_and_b32 v41, 0xffff0000, v44")
    A("v_lshlrev_b32 v42, 16, v45")
    A("v_and_b32 v43, 0xffff0000, v45")
    for i in range(4):
        A(f"v_mul_f32 v{48+i}, {hex(fbits(-LOG2E))}, v{40+i}")
    for i in range(4):
        A(f"v_exp_f32 v{48+i}, v{48+i}")
    for i in range(4):
        A(f"v_mov_b32_dpp v{44+i}, v{40+i} row_shl:8 row_mask:0xf bank_mask:0xf")
    for i in range(4):
        A(f"v_add_f32 v{48+i}, 1.0, v{48+i}")
    for i in range(4):
        A(f"v_rcp_f32 v{48+i}, v{48+i}")
    for i in range(4):
        A(f"v_mul_f32 v{40+i}, v{40+i}, v{48+i}")
    A("v_cvt_pk_bf16_f32 v48, v40, v41")
    A("v_cvt_pk_bf16_f32 v49, v42, v43")
    A("v_lshlrev_b32 v40, 16, v48")
    A("v_and_b32 v41, 0xffff0000, v48")
    A("v_lshlrev_b32 v42, 16, v49")
    A("v_and_b32 v43, 0xffff0000, v49")
    for i in range(4):
        A(f"v_mul_f32 v{40+i}, v{40+i}, v{44+i}")
    A("v_cvt_pk_bf16_f32 v40, v40, v41")
    A("v_cvt_pk_bf16_f32 v42, v42, v43")
    A("s_mov_b64 exec, s[22:23]")
    A("global_store_short v58, v40, s[32:33]")
    A("global_store_short_d16_hi v58, v40, s[32:33] offset:3072")
    A("global_store_short v59, v42, s[32:33]")
    A("global_store_short_d16_hi v59, v42, s[32:33] offset:3072")
    A.label("K4_DONE")
    k_end(A, 3)
    A.label("K4_END")
    A("s_endpgm")


K5_LDS = 8192


def k5(A):
    A("s_cmp_ge_u32 s2, 80")
    A("s_cbranch_scc1 K5_END")
    k_begin(A)
    A("s_load_dwordx2 s[32:33], s[0:1], 112")
    A("s_load_dwordx2 s[30:31], s[0:1], 96")
    A("s_load_dwordx2 s[26:27], s[0:1], 0")
    A("v_lshrrev_b32 v1, 6, v0")
    A("v_readfirstlane_b32 s3, v1")
    A("v_and_b32 v2, 63, v0")
    A("s_mul_i32 s4, s2, 24576")
    A("s_mul_i32 s5, s3, 3072")
    A("s_add_u32 s4, s4, s5")
    A(f"s_add_u32 s4, s4, {WS_WD}")
    A("v_lshrrev_b32 v5, 4, v2")
    A("v_and_b32 v4, 7, v2")
    A("v_bfe_u32 v8, v2, 3, 1")
    A("v_lshlrev_b32 v3, 7, v5")
    A("v_lshl_add_u32 v3, v4, 4, v3")
    A("v_lshl_add_u32 v3, v8, 9, v3")
    A("v_add_u32 v3, s4, v3")
    A("v_mul_u32_u24 v4, 3072, v4")
    A("v_lshl_add_u32 v4, v5, 4, v4")
    A("v_lshl_add_u32 v4, v8, 6, v4")
    A("s_mul_i32 s6, s3, 384")
    A(f"s_add_u32 s6, s6, {WS_ACT}")
    A("v_add_u32 v4, s6, v4")
    A("v_and_b32 v7, 1, v5")
    A("v_lshlrev_b32 v7, 4, v7")
    A(f"v_add_u32 v7, {WS_SEL}, v7")
    for i in range(4):
        A(f"v_mov_b32 v{20+i}, 0")
        A(f"v_mov_b32 v{32+i}, 0")
    A("s_waitcnt lgkmcnt(0)")
    stamp(A, 1)
    BFR, AFR = 40, 64
    A("s_cmp_lg_u32 s3, 0")
    A("s_cbranch_scc1 K5_NOSEL")
    A("global_load_dwordx4 v[8:11], v7, s[32:33]")
    A("global_load_dwordx4 v[12:15], v7, s[32:33] offset:32")
    A.label("K5_NOSEL")
    for i in range(3):
        A(f"global_load_dwordx4 {vr(AFR+4*i,4)}, v4, s[32:33] offset:{128*i}")
        A(f"global_load_dwordx4 {vr(BFR+4*i,4)}, v3, s[32:33] offset:{1024*i}")
    A("s_cmp_lg_u32 s3, 0")
    A("s_cbranch_scc1 K5_MM")
    A("v_and_b32 v16, 7, v2")
    A("s_lshl_b32 s6, s2, 3")
    A("v_add_u32 v16, s6, v16")
    A("v_lshrrev_b32 v17, 3, v16")
    A("v_lshlrev_b32 v17, 7, v17")
    A("v_and_b32 v18, 7, v16")
    A("v_lshl_add_u32 v17, v18, 1, v17")
    A(f"v_add_u32 v17, {WS_AT}, v17")
    A("s_waitcnt vmcnt(6)")
    for i in range(4):
        A(f"v_mul_u32_u24 v{20+i}, 1280, v{8+i}")
        A(f"v_lshl_add_u32 v{20+i}, v16, 1, v{20+i}")
        A(f"v_add_u32 v18, {WS_L2}, v{20+i}")
        A(f"global_load_ushort v{24+i}, v18, s[32:33]")
        A(f"global_load_ushort v{28+i}, v{20+i}, s[26:27]")
        A(f"v_lshrrev_b32 v18, 3, v{8+i}")
        A("v_mul_u32_u24 v18, 10240, v18")
        A(f"v_and_b32 v19, 7, v{8+i}")
        A("v_lshl_add_u32 v18, v19, 4, v18")
        A("v_add_u32 v18, v18, v17")
        A(f"global_load_ushort v{36+i}, v18, s[32:33]")
    A("s_waitcnt vmcnt(12)")
    A("s_branch K5_MM2")
    A.label("K5_MM")
    A("s_waitcnt vmcnt(0)")
    A.label("K5_MM2")
    stamp(A, 3)
    for i in range(3):
        A(f"v_mfma_f32_16x16x32_bf16 v[32:35], {vr(AFR+4*i,4)}, {vr(BFR+4*i,4)}, v[32:35]")
    A("v_lshlrev_b32 v88, 4, v2")
    A("s_lshl_b32 s6, s3, 10")
    A("v_add_u32 v89, s6, v88")
    for i in range(4):
        A(f"v_mov_b32 v{84+i}, v{32+i}")
    for i in range(4):
        A(f"v_permlane32_swap_b32 v{32+i}, v{84+i}")
    for i in range(4):
        A(f"v_add_f32_dpp v{32+i}, v{84+i}, v{32+i} row_shl:8 row_mask:0xf bank_mask:0xf")
    A("ds_write_b128 v89, v[32:35]")
    A("s_waitcnt lgkmcnt(0)")
    A("s_barrier")
    A("s_cmp_lg_u32 s3, 0")
    A("s_cbranch_scc1 K5_DONE")
    for w in range(8):
        A(f"ds_read_b128 {vr(40+4*w,4)}, v88 offset:{1024*w}")
    A("s_waitcnt vmcnt(0)")
    for i in range(4):
        A(f"v_lshlrev_b32 v{28+i}, 16, v{28+i}")
        A(f"v_lshlrev_b32 v{36+i}, 16, v{36+i}")
        A(f"v_lshlrev_b32 v{24+i}, 16, v{24+i}")
    for i in range(4):
        A(f"v_add_f32 v{28+i}, v{28+i}, v{36+i}")
    A("v_cvt_pk_bf16_f32 v36, v28, v29")
    A("v_cvt_pk_bf16_f32 v37, v30, v31")
    A("v_lshlrev_b32 v28, 16, v36")
    A("v_and_b32 v29, 0xffff0000, v36")
    A("v_lshlrev_b32 v30, 16, v37")
    A("v_and_b32 v31, 0xffff0000, v37")
    A("s_waitcnt lgkmcnt(0)")
    for st in (16, 8, 4):
        for j in range(st):
            A(f"v_add_f32 v{40+j}, v{40+j}, v{40+st+j}")

    def rnd4(base):
        A(f"v_cvt_pk_bf16_f32 v44, v{base}, v{base+1}")
        A(f"v_cvt_pk_bf16_f32 v45, v{base+2}, v{base+3}")
        A(f"v_lshlrev_b32 v{base}, 16, v44")
        A(f"v_and_b32 v{base+1}, 0xffff0000, v44")
        A(f"v_lshlrev_b32 v{base+2}, 16, v45")
        A(f"v_and_b32 v{base+3}, 0xffff0000, v45")
    rnd4(40)
    for i in range(4):
        A(f"v_mul_f32 v{40+i}, v{40+i}, v{12+i}")
    rnd4(40)
    for i in range(4):
        A(f"v_add_f32 v{40+i}, v{40+i}, v{24+i}")
    rnd4(40)
    for i in range(4):
        A(f"v_add_f32 v{40+i}, v{40+i}, v{28+i}")
    A("v_cvt_pk_bf16_f32 v40, v40, v41")
    A("v_cvt_pk_bf16_f32 v42, v42, v43")
    A("v_and_b32 v16, 15, v2")
    A("v_cmp_gt_u32 vcc, 8, v16")
    A("v_cmp_gt_u32 s[22:23], 2, v5")
    A("s_and_b64 exec, vcc, s[22:23]")
    A("global_store_short v20, v40, s[30:31]")
    A("global_store_short_d16_hi v21, v40, s[30:31]")
    A("global_store_short v22, v42, s[30:31]")
    A("global_store_short_d16_hi v23, v42, s[30:31]")
    A.label("K5_DONE")
    k_end(A, 4)
    A.label("K5_END")
    A("s_endpgm")


KERNELS = [
    ("k1_kernel", k1, K1_WT + K1_KG + K1_LN, 192, K1_LDS, 128),
    ("k2_kernel", k2, 160 + K2_NWT, 256, K2_LDS, 160),
    ("k3_kernel", k3, 256, 256, K3_LDS, 96),
    ("k4_kernel", k4, 192 + (80 if PF_WD[0] else 0), 256, K4_LDS, 96),
    ("k5_kernel", k5, 80, 512, K5_LDS, 96),
]

KD_TMPL = """.amdhsa_kernel {name}
  .amdhsa_next_free_vgpr {vgpr}
  .amdhsa_next_free_sgpr 102
  .amdhsa_accum_offset {acc}
  .amdhsa_group_segment_fixed_size 0
  .amdhsa_kernarg_size 120
  .amdhsa_user_sgpr_count 2
  .amdhsa_user_sgpr_kernarg_segment_ptr 1
  .amdhsa_system_sgpr_workgroup_id_x 1
.end_amdhsa_kernel
"""

HEADER = """; Kernarg layout (120 bytes, ptrs only): in0..in11 at 0..88, d_out 96, d_debug 104, d_ws 112
"""


def build(kernels):
    s = HEADER
    for label, fn, grid, block, lds, vgpr in kernels:
        s += f"; @launch kernel={label} grid=({grid},1,1) block=({block},1,1) lds={lds}\n"
    s += '.amdgcn_target "amdgcn-amd-amdhsa--gfx950"\n.text\n'
    done = set()
    for label, fn, grid, block, lds, vgpr in kernels:
        if label in done:
            continue
        done.add(label)
        A = Asm()
        fn(A)
        s += f".globl {label}\n.p2align 8\n.type {label},@function\n{label}:\n" + A.finish() + "\n"
    s += '.section .rodata,"a"\n'
    done = set()
    for label, fn, grid, block, lds, vgpr in kernels:
        if label in done:
            continue
        done.add(label)
        s += ".p2align 6\n" + KD_TMPL.format(name=label, vgpr=vgpr, acc=min(256, (vgpr + 3) // 4 * 4))
    return s


if __name__ == "__main__":
    if len(sys.argv) > 2 and sys.argv[2] == "stamp":
        STAMP[0] = True
    out = build(KERNELS)
    path = sys.argv[1] if len(sys.argv) > 1 else f"cdna_kernels/{NAME}.s"
    open(path, "w").write(out)
    print("wrote", path, len(out), "bytes")
```

```python
import sys, os
sys.path.insert(0, os.path.dirname(os.path.abspath(__file__)))
import gen3
from gen3 import *

KG_SZ = 2 * K1_BUF
KEO_ST = 27712
KEO_BASE = 0
KA_KE, KA_KO = 0, 4160
KA_U = 12 * KG_SZ
U_ST = 4608
KA_T = KA_U + 4 * U_ST
T_ST = 1600
KA_SC = KA_T + 4 * T_ST
KA_LN = KA_SC + 64
KA_CNT = KA_LN
KA_STATS = KA_LN + 128
KA_STAGE = KA_LN + 192
KA_LDS = KA_STAGE + 10240 + 2560


def group_sync(A, idx, n, lbl):
    A("s_waitcnt lgkmcnt(0)")
    A(f"v_mov_b32 v18, {KA_CNT + 4*idx}")
    A("v_mov_b32 v19, 1")
    A("s_mov_b64 exec, 1")
    A("ds_add_u32 v18, v19")
    A("s_mov_b64 exec, -1")
    A("s_mov_b32 s12, 0")
    A.label(lbl)
    A("ds_read_b32 v19, v18")
    A("s_waitcnt lgkmcnt(0)")
    A("v_readfirstlane_b32 s13, v19")
    A(f"s_cmp_ge_u32 s13, {n}")
    A(f"s_cbranch_scc1 {lbl}_OK")
    A("s_add_u32 s12, s12, 1")
    A(f"s_cmp_lt_u32 s12, {1 << 22}")
    A(f"s_cbranch_scc1 {lbl}")
    A.label(lbl + "_OK")
NPROD = 96
WS_FLAG = 0x0920000
WS_EPOCH = 0x0923000
SC = os.environ.get('SCMOD', 'sc0 sc1')
SPIN_MAX = 1 << 16
POLL_SLEEP = int(os.environ.get('POLL_SLEEP', '8'))
POLL_FIRST = int(os.environ.get('POLL_FIRST', '32'))
FLAG64 = int(os.environ.get('FLAG64', '0'))


def k_end16(A, kidx):
    if STAMP[0]:
        A(f"s_memtime s[{60+2*(NSTAMP-2)}:{61+2*(NSTAMP-2)}]")
        A("s_waitcnt vmcnt(0) lgkmcnt(0)")
        A("s_memrealtime s[96:97]")
        A(f"s_memtime s[{60+2*(NSTAMP-1)}:{61+2*(NSTAMP-1)}]")
        A("s_mov_b64 exec, -1")
        A("v_lshrrev_b32 v1, 6, v0")
        A("s_lshl_b32 s98, s2, 4")
        A("v_add_u32 v1, s98, v1")
        A("v_lshlrev_b32 v1, 7, v1")
        A(f"v_add_u32 v1, {WS_STAMP + kidx * 0x200000}, v1")
        A("s_waitcnt lgkmcnt(0)")
        A("v_mov_b32 v2, s94")
        A("v_mov_b32 v3, s95")
        A("v_mov_b32 v4, s96")
        A("v_mov_b32 v5, s97")
        A("global_store_dwordx4 v1, v[2:5], s[32:33]")
        for i in range(0, NSTAMP, 2):
            for j in range(4):
                A(f"v_mov_b32 v{2+j}, s{60+2*i+j}")
            A(f"global_store_dwordx4 v1, v[2:5], s[32:33] offset:{16+8*i}")
    A("s_endpgm")


gen3.k_end = k_end16
k_end = k_end16


def arrive(A, idx):
    A("s_waitcnt lgkmcnt(0)")
    A(f"v_mov_b32 v18, {KA_CNT + 4*idx}")
    A("v_mov_b32 v19, 1")
    A("s_mov_b64 exec, 1")
    A("ds_add_u32 v18, v19")
    A("s_mov_b64 exec, -1")


def wait_count(A, idx, n, lbl, sleep=1):
    A(f"v_mov_b32 v18, {KA_CNT + 4*idx}")
    A("s_mov_b32 s12, 0")
    A.label(lbl)
    A("ds_read_b32 v19, v18")
    A("s_waitcnt lgkmcnt(0)")
    A("v_readfirstlane_b32 s13, v19")
    A(f"s_cmp_ge_u32 s13, {n}")
    A(f"s_cbranch_scc1 {lbl}_OK")
    A("s_add_u32 s12, s12, 1")
    if sleep:
        A(f"s_sleep {sleep}")
    A(f"s_cmp_lt_u32 s12, {1 << 22}")
    A(f"s_cbranch_scc1 {lbl}")
    A.label(lbl + "_OK")


def arrive_s(A, base_idx, sreg):
    A("s_waitcnt lgkmcnt(0)")
    A(f"s_lshl_b32 s12, s{sreg}, 2")
    A(f"s_add_u32 s12, s12, {KA_CNT + 4*base_idx}")
    A("v_mov_b32 v18, s12")
    A("v_mov_b32 v19, 1")
    A("s_mov_b64 exec, 1")
    A("ds_add_u32 v18, v19")
    A("s_mov_b64 exec, -1")


def wait_s(A, base_idx, sreg, n, lbl):
    A(f"s_lshl_b32 s12, s{sreg}, 2")
    A(f"s_add_u32 s12, s12, {KA_CNT + 4*base_idx}")
    A("v_mov_b32 v18, s12")
    A("s_mov_b32 s12, 0")
    A.label(lbl)
    A("ds_read_b32 v19, v18")
    A("s_waitcnt lgkmcnt(0)")
    A("v_readfirstlane_b32 s13, v19")
    A(f"s_cmp_ge_u32 s13, {n}")
    A(f"s_cbranch_scc1 {lbl}_OK")
    A("s_add_u32 s12, s12, 1")
    A("s_sleep 1")
    A(f"s_cmp_lt_u32 s12, {1 << 22}")
    A(f"s_cbranch_scc1 {lbl}")
    A.label(lbl + "_OK")


def poll_flags(A, lbl):
    if FLAG64:
        A("v_lshlrev_b32 v3, 7, v2")
        A(f"v_add_u32 v3, {WS_FLAG}, v3")
    else:
        A("v_lshrrev_b32 v3, 4, v2")
        A("v_lshlrev_b32 v3, 7, v3")
        A("v_and_b32 v10, 15, v2")
        A("v_lshl_add_u32 v3, v10, 2, v3")
        A(f"v_add_u32 v3, {WS_FLAG}, v3")
    A("s_mov_b32 s12, 0")
    if POLL_FIRST:
        A(f"s_sleep {POLL_FIRST}")
    A.label(lbl)
    if FLAG64:
        A(f"global_load_dwordx4 v[40:43], v3, s[32:33] {SC}")
    else:
        for j in range(4):
            A(f"global_load_dword v{40+j}, v3, s[32:33] offset:{512*j} {SC}")
    A("s_waitcnt vmcnt(0)")
    A("v_cmp_ne_u32 vcc, s15, v40")
    A("v_cmp_ne_u32 s[20:21], s15, v41")
    A("v_cmp_ne_u32 s[22:23], s15, v42")
    A("v_cmp_ne_u32 s[24:25], s15, v43")
    A("s_or_b64 vcc, vcc, s[20:21]")
    A("s_or_b64 s[22:23], s[22:23], s[24:25]")
    A("s_or_b64 vcc, vcc, s[22:23]")
    A("s_cmp_eq_u64 vcc, 0")
    A(f"s_cbranch_scc1 {lbl}_SEEN")
    A("s_add_u32 s12, s12, 1")
    A(f"s_cmp_ge_u32 s12, {SPIN_MAX}")
    A(f"s_cbranch_scc1 {lbl}_SEEN")
    A(f"s_sleep {POLL_SLEEP}")
    A(f"s_branch {lbl}")
    A.label(lbl + "_SEEN")


def poll_epoch(A, lbl):
    A(f"v_mov_b32 v3, {WS_EPOCH}")
    A("s_mov_b32 s12, 0")
    A("s_sleep 48")
    A.label(lbl)
    A(f"global_load_dword v40, v3, s[32:33] {SC}")
    A("s_waitcnt vmcnt(0)")
    A("v_readfirstlane_b32 s13, v40")
    A("s_cmp_eq_u32 s13, s15")
    A(f"s_cbranch_scc1 {lbl}_SEEN")
    A("s_add_u32 s12, s12, 1")
    A(f"s_cmp_ge_u32 s12, {SPIN_MAX}")
    A(f"s_cbranch_scc1 {lbl}_SEEN")
    A("s_sleep 16")
    A(f"s_branch {lbl}")
    A.label(lbl + "_SEEN")


def kgen_wave(A):
    A(f"s_mov_b32 s90, {L2E_HI}")
    A(f"s_mov_b32 s91, {L2E_LO}")
    A(f"s_mov_b32 s92, {LN2}")
    A("v_and_b32 v3, 15, v2")
    A("v_lshrrev_b32 v4, 4, v2")
    A("s_cmp_eq_u32 s36, 1")
    A("s_cbranch_scc1 KA_A1")
    A("s_cmp_eq_u32 s36, 2")
    A("s_cbranch_scc1 KA_A2")
    A("v_lshrrev_b32 v5, 1, v4")
    A("v_lshlrev_b32 v5, 7, v5")
    A("v_lshl_add_u32 v5, v3, 3, v5")
    A("v_and_b32 v6, 1, v4")
    A("v_lshl_add_u32 v5, v6, 2, v5")
    A("s_branch KA_A3")
    A.label("KA_A1")
    A("v_lshlrev_b32 v5, 1, v3")
    A("v_add_u32 v5, v5, v4")
    A("v_add_u32 v5, 384, v5")
    A("v_lshlrev_b32 v6, 4, v4")
    A("v_add_u32 v6, v6, v3")
    A("v_add_u32 v6, 480, v6")
    A("v_cmp_gt_u32 vcc, 2, v4")
    A("v_cndmask_b32 v5, v6, v5, vcc")
    A("s_branch KA_A3")
    A.label("KA_A2")
    A("v_lshlrev_b32 v5, 6, v4")
    A("v_lshlrev_b32 v6, 2, v3")
    A("v_add_u32 v5, v5, v6")
    A("v_add_u32 v5, 256, v5")
    A("v_lshlrev_b32 v6, 2, v2")
    A("v_add_u32 v6, 520, v6")
    A("v_cmp_gt_u32 vcc, 2, v4")
    A("v_cndmask_b32 v5, v6, v5, vcc")
    A("v_mov_b32 v6, 640")
    A("v_cmp_eq_u32 vcc, 32, v2")
    A("v_cndmask_b32 v5, v5, v6, vcc")
    A.label("KA_A3")
    A(f"s_mul_i32 s11, s37, {T_ST}")
    A(f"s_add_u32 s11, s11, {KA_T}")
    A("v_lshlrev_b32 v29, 1, v5")
    A("v_add_u32 v29, s11, v29")
    A(f"v_mul_u32_u24 v32, {K1_ROWB}, v3")
    A("v_lshlrev_b32 v5, 4, v4")
    A("v_add_u32 v32, v32, v5")
    A("v_add_u32 v32, s7, v32")
    AW = 120
    A("v_lshlrev_b32 v5, 2, v2")
    A(f"v_add_u32 v{AW}, s7, v5")
    for k in range(1, 8):
        A(f"v_add_u32 v{AW+k}, {(k//4)*K1_BUF + (k%4)*4*K1_ROWB}, v{AW}")
    stamp(A, 1)
    A("s_waitcnt lgkmcnt(0)")
    A("s_bitcmp1_b32 s34, 0")
    A("s_cbranch_scc1 KA_ODD")
    A("s_lshl_b32 s6, s6, 16")
    A.label("KA_ODD")
    A("s_and_b32 s6, s6, 0xffff0000")
    A("v_mov_b32 v5, s6")
    exp_bf16(A, 33, 5, 6, 7)
    A("s_waitcnt vmcnt(0)")
    stamp(A, 2)
    for i in range(6):
        A(f"v_and_b32 v{14+i}, 0x7fff, v{14+i}")
    A("v_max3_u32 v14, v14, v15, v16")
    A("v_max3_u32 v17, v17, v18, v19")
    A("v_max_u32 v14, v14, v17")
    A("v_lshlrev_b32 v10, 16, v10")
    A("v_lshlrev_b32 v11, 16, v11")
    A("v_mul_f32 v6, s90, v10")
    A("v_max_u32_dpp v14, v14, v14 row_shr:1 row_mask:0xf bank_mask:0xf")
    A("v_fma_f32 v7, v10, s90, -v6")
    A("v_exp_f32 v34, v6")
    A("v_max_u32_dpp v14, v14, v14 row_shr:2 row_mask:0xf bank_mask:0xf")
    A("v_fma_f32 v7, v10, s91, v7")
    A("v_mul_f32 v35, v11, v33")
    A("v_max_u32_dpp v14, v14, v14 row_shr:4 row_mask:0xf bank_mask:0xf")
    A("v_mul_f32 v7, s92, v7")
    A(f"v_mul_f32 v35, {INV2PI}, v35")
    A("v_max_u32_dpp v14, v14, v14 row_shr:8 row_mask:0xf bank_mask:0xf")
    A("v_fma_f32 v34, v34, v7, v34")
    A("v_lshlrev_b32 v12, 16, v12")
    A("v_max_u32_dpp v14, v14, v14 row_bcast:15 row_mask:0xa bank_mask:0xf")
    A("v_cvt_pk_bf16_f32 v34, v34, v34")
    A("v_lshlrev_b32 v13, 16, v13")
    A("v_max_u32_dpp v14, v14, v14 row_bcast:31 row_mask:0xc bank_mask:0xf")
    A("v_and_b32 v34, 0xffff0000, v34")
    A("v_mul_f32 v34, v34, v33")
    A("v_readlane_b32 s8, v14, 63")
    A("v_mul_f32 v34, s90, v34")
    A("v_sub_f32 v34, 0, v34")
    A("s_lshr_b32 s8, s8, 7")
    A("s_max_u32 s8, s8, 6")
    A("s_min_u32 s8, s8, 253")
    A("s_sub_u32 s9, 260, s8")
    A("s_lshl_b32 s9, s9, 23")
    A("s_sub_u32 s10, s8, 132")

    def direct(t, p):
        lit = "1.0" if p == 1 else hex(fbits(float(p)))
        A(f"v_mul_f32 v{t}, {lit}, v34")
        A(f"v_mul_f32 v{t+1}, {lit}, v35")
        A(f"v_fract_f32 v{t+1}, v{t+1}")

    def direct2(t):
        A(f"v_exp_f32 v{t}, v{t}")
        A(f"v_cos_f32 v{t+2}, v{t+1}")
        A(f"v_sin_f32 v{t+3}, v{t+1}")

    def direct_fin(d, t):
        A(f"v_mul_f32 v{d}, v{t}, v{t+2}")
        A(f"v_mul_f32 v{d+1}, v{t}, v{t+3}")

    C = 36
    g = {i: 38 + 2 * (i - 1) for i in range(1, 9)}
    G128, G256, G512, G1024 = 54, 56, 58, 60
    T = [62, 64, 66, 68, 70, 72, 74, 76]
    PK = list(range(78, 86))
    BF, AF = 86, 102
    h = {1: g[8]}
    for i in range(2, 9):
        h[i] = AF + 2 * (i - 2)
    AF2 = 62
    direct(62, 1)
    direct(66, 8)
    direct(70, 128)
    direct2(62)
    direct2(66)
    direct2(70)
    A(f"v_mul_f32 v{C}, s9, v12")
    A(f"v_mul_f32 v{C+1}, s9, v13")
    A("v_ldexp_f32 v6, v33, s10")
    A("s_lshl_b32 s11, s37, 2")
    A(f"s_add_u32 s11, s11, {KA_SC}")
    A("v_mov_b32 v7, s11")
    A("ds_write_b32 v7, v6")
    direct_fin(g[1], 62)
    direct_fin(g[8], 66)
    direct_fin(G128, 70)
    stamp(A, 3)

    def wr(rows_src, buf, neg):
        regs = []
        for k, (row, src) in enumerate(rows_src):
            p = PK[k % 8]
            if src is None:
                A(f"v_mov_b32 v{p}, 0x00003c00")
            else:
                A(f"v_cvt_pk_f16_f32 v{p}, v{src}, {'-' if neg else ''}v{src+1}")
            regs.append(p)
        k = 0
        n = 0
        while k < len(rows_src):
            r0 = rows_src[k][0]
            if k + 1 < len(rows_src) and rows_src[k + 1][0] // 4 == r0 // 4:
                r1 = rows_src[k + 1][0]
                A(f"ds_write2_b32 v{AW + 4*buf + r0//4}, v{regs[k]}, v{regs[k+1]} offset0:{(r0%4)*72} offset1:{(r1%4)*72}")
                k += 2
            else:
                A(f"ds_write_b32 v{AW + 4*buf + r0//4}, v{regs[k]} offset:{(r0%4)*K1_ROWB}")
                k += 1
            n += 1
        return n

    def frags(dst, buf):
        for j in range(4):
            A(f"ds_read_b128 {vr(dst+4*j,4)}, v32 offset:{buf*K1_BUF + 64*j}")

    def mfmas(acc, a, b):
        for j in range(4):
            A(f"v_mfma_f32_16x16x32_f16 {vr(acc,4)}, {vr(a+4*j,4)}, {vr(b+4*j,4)}, {vr(acc,4)}")

    cmul_batch(A, [(g[2], g[1], g[1]), (h[2], h[1], h[1]), (G256, G128, G128)])
    cmul_batch(A, [(g[3], g[2], g[1]), (g[4], g[2], g[2]), (h[3], h[2], h[1]), (h[4], h[2], h[2]), (G512, G256, G256)])
    cmul_batch(A, [(g[5], g[4], g[1]), (g[6], g[4], g[2]), (g[7], g[4], g[3]), (h[5], h[4], h[1]), (h[6], h[4], h[2]),
                   (h[7], h[4], h[3]), (h[8], h[4], h[4]), (G1024, G512, G512)])
    for i in range(4):
        A(f"v_mov_b32 v{20+i}, 0")
        A(f"v_mov_b32 v{24+i}, 0")
        A(f"v_mov_b32 v{4+i}, 0")
    wr([(0, None)] + [(i, h[i]) for i in range(1, 8)], 0, False)
    cmul_batch(A, [(T[i - 1], h[8], h[i]) for i in range(1, 8)])
    wr([(8, h[8])] + [(8 + i, T[i - 1]) for i in range(1, 8)], 0, False)
    frags(BF, 0)
    stamp(A, 4)
    c128 = T[7]
    cmul_batch(A, [(T[i - 1], C, g[i]) for i in range(1, 8)] + [(c128, C, G128)])
    wr([(0, C)] + [(i, T[i - 1]) for i in range(1, 8)], 1, True)
    cmul_batch(A, [(T[i - 1], c128, g[i]) for i in range(1, 8)])
    wr([(8, c128)] + [(8 + i, T[i - 1]) for i in range(1, 8)], 1, True)
    frags(AF, 1)
    cmul_batch(A, [(T[0], C, G512), (T[4], C, G1024)])
    cmul_batch(A, [(T[1], T[0], G128), (T[2], T[0], G256), (T[5], T[4], G256), (T[6], T[4], G512)])
    cmul_batch(A, [(T[3], T[2], G128), (T[7], T[6], G256)])
    n1 = wr([(i, T[i]) for i in range(4)] + [(8 + i, T[4 + i]) for i in range(4)], 0, True)
    c2048 = g[1]
    cmul_batch(A, [(c2048, T[4], G1024)])
    D4 = [g[3], g[5], g[7], g[8]]
    cmul_batch(A, [(D4[i], T[i], g[4]) for i in range(4)])
    A("s_waitcnt lgkmcnt(%d)" % n1)
    mfmas(20, AF, BF)
    cmul_batch(A, [(T[i], T[4 + i], G128) for i in range(4)])
    wr([(4 + i, D4[i]) for i in range(4)] + [(12 + i, T[i]) for i in range(4)], 0, True)
    frags(AF, 0)
    stamp(A, 5)
    cmul_batch(A, [(T[0], C, G256)])
    cmul_batch(A, [(T[4], T[0], G128), (T[1], T[0], g[2]), (T[2], T[0], g[4]), (T[3], T[0], g[6])])
    cmul_batch(A, [(T[5], T[4], g[2]), (T[6], T[4], g[4]), (T[7], T[4], g[6])])
    n2 = wr([(i, T[i]) for i in range(8)], 1, True)
    n2 += wr([(8, c2048)], 1, True)
    A("s_waitcnt lgkmcnt(%d)" % n2)
    mfmas(24, AF, BF)
    frags(AF2, 1)
    A("s_waitcnt lgkmcnt(0)")
    mfmas(4, AF2, BF)
    A("v_lshlrev_b32 v28, 4, v2")
    A("v_add_u32 v30, s7, v28")
    for t, r in enumerate((20, 24, 4)):
        A(f"ds_write_b128 v30, {vr(r,4)} offset:{1024*t}")
    stamp(A, 6)


def expand_round(A, r, lbl):
    A("v_lshlrev_b32 v28, 4, v2")
    A("v_add_u32 v28, s39, v28")
    A("s_mov_b32 s22, 0x01000100")
    A("s_mov_b32 s23, 0x03020302")
    if r < 2:
        A("v_lshlrev_b32 v26, 1, v2")
        A(f"v_sub_u32 v26, {2*(384+255) - 128*r}, v26")
        A("v_add_u32 v26, s40, v26")
        A("ds_read_u16 v40, v26")
        A("ds_read_u16 v41, v26 offset:2")
        A("v_and_b32 v16, 1, v2")
        A("v_cmp_eq_u32 s[20:21], 1, v16")
        A("s_waitcnt lgkmcnt(0)")
        w = 40
        A(f"v_lshl_or_b32 v{w}, v{w+1}, 16, v{w}")
        A(f"v_perm_b32 v{w+2}, v{w}, v{w}, s23")
        A(f"v_perm_b32 v{w+4}, v{w}, v{w}, s22")
        A(f"v_alignbit_b32 v{w+1}, v{w}, v{w}, 16")
        A(f"v_mov_b32 v{w+5}, v{w+4}")
        A(f"v_mov_b32 v{w+6}, v{w+2}")
        A(f"v_cndmask_b32 v{w+3}, v{w+2}, v{w+1}, s[20:21]")
        A(f"v_cndmask_b32 v{w+7}, v{w+1}, v{w+4}, s[20:21]")
        A(f"ds_write_b64 v28, {vr(w+2,2)} offset:{KA_KE + 1024*r}")
        A(f"ds_write_b64 v28, {vr(w+4,2)} offset:{KA_KE + 1024*r + 8}")
        A(f"ds_write_b64 v28, {vr(w+6,2)} offset:{KA_KO + 1024*r}")
        A(f"ds_write_b64 v28, {vr(w+4,2)} offset:{KA_KO + 1024*r + 8}")
    elif r == 2:
        A("v_lshlrev_b32 v27, 2, v2")
        A(f"v_sub_u32 v27, {512 + 4*127}, v27")
        A("v_add_u32 v27, s40, v27")
        A("ds_read_b32 v56, v27")
        A("ds_read_u16 v57, v27 offset:4")
        A("s_mov_b32 s24, 0x07060100")
        A("s_waitcnt lgkmcnt(0)")
        A("v_perm_b32 v40, v57, v57, s22")
        A("v_perm_b32 v41, v56, v56, s23")
        A("v_alignbit_b32 v42, v56, v56, 16")
        A("v_perm_b32 v43, v56, v56, s22")
        A("v_perm_b32 v44, v56, v57, s24")
        A("v_mov_b32 v45, v41")
        A("v_mov_b32 v46, v43")
        A("v_mov_b32 v47, v43")
        A(f"ds_write_b128 v28, v[40:43] offset:{KA_KE + 2048}")
        A(f"ds_write_b128 v28, v[44:47] offset:{KA_KO + 2048}")
    else:
        for k in range(9):
            A(f"ds_read_u16 v{40+k}, v{30+k}")
        A("v_mov_b32 v12, 0")
        A("v_and_b32 v14, 15, v2")
        A("v_lshlrev_b32 v14, 2, v14")
        A("v_add_u32 v14, s39, v14")
        A(f"ds_write_b32 v14, v12 offset:{KA_KE + 4096}")
        A(f"ds_write_b32 v14, v12 offset:{KA_KO + 4096}")
        A("s_waitcnt lgkmcnt(2)")
        for k in range(4):
            A(f"v_lshl_or_b32 v{52+k}, v{41+2*k}, 16, v{40+2*k}")
        A("v_alignbit_b32 v56, v53, v52, 16")
        A("v_alignbit_b32 v57, v54, v53, 16")
        A("v_alignbit_b32 v58, v55, v54, 16")
        A("v_alignbit_b32 v59, v48, v55, 16")
        A(f"ds_write_b128 v28, v[52:55] offset:{KA_KE + 3072}")
        A(f"ds_write_b128 v28, v[56:59] offset:{KA_KO + 3072}")
        A("v_mov_b32 v14, s39")
        A(f"ds_write_b16 v14, v12 offset:{KA_KO + 2*2047}")


def ka(A):
    A("s_cmp_ge_u32 s2, 256")
    A("s_cbranch_scc1 KA_END")
    k_begin(A)
    A("s_load_dwordx16 s[16:31], s[0:1], 0")
    A("s_load_dwordx4 s[44:47], s[0:1], 104")
    A("v_lshrrev_b32 v1, 6, v0")
    A("v_readfirstlane_b32 s3, v1")
    A("v_and_b32 v2, 63, v0")
    A("v_mov_b32 v3, 0")
    A("v_lshlrev_b32 v4, 2, v2")
    A(f"v_add_u32 v4, {KA_CNT}, v4")
    A("s_cmp_lg_u32 s3, 0")
    A("s_cbranch_scc1 KA_NOZ")
    A("s_mov_b64 exec, 0xffffffff")
    A("ds_write_b32 v4, v3")
    A("s_mov_b64 exec, -1")
    A.label("KA_NOZ")
    A(f"s_sub_u32 s4, s2, {NPROD}")
    pair_swizzle(A, 35, 4, 6)
    A("s_sub_u32 s4, s3, 4")
    A("s_mul_i32 s37, s4, 11")
    A("s_lshr_b32 s37, s37, 5")
    A("s_mul_i32 s36, s37, 3")
    A("s_sub_u32 s36, s4, s36")
    A("s_lshl_b32 s34, s35, 2")
    A("s_add_u32 s34, s34, s37")
    A(f"s_mul_i32 s7, s4, {KG_SZ}")
    A("s_mul_i32 s4, s34, 384")
    A("s_lshr_b32 s5, s34, 1")
    A("s_lshl_b32 s5, s5, 2")
    A("s_lshl_b32 s8, s36, 7")
    A("s_add_u32 s8, s8, s4")
    A("v_lshlrev_b32 v3, 1, v2")
    A("v_add_u32 v1, s8, v3")
    A("v_add_u32 v3, s4, v3")
    A("s_waitcnt lgkmcnt(0)")
    A("s_mov_b32 s32, s46")
    A("s_mov_b32 s33, s47")
    A("s_cmp_lt_u32 s3, 4")
    A("s_cbranch_scc1 KA_B0")
    A(f"s_cmp_lt_u32 s2, {NPROD}")
    A("s_cbranch_scc1 KA_B0")
    A("s_load_dword s6, s[26:27], s5")
    A("global_load_ushort v10, v1, s[18:19]")
    A("global_load_ushort v11, v1, s[20:21]")
    A("global_load_ushort v12, v1, s[22:23]")
    A("global_load_ushort v13, v1, s[24:25]")
    for i in range(3):
        A(f"global_load_ushort v{14+i}, v3, s[22:23] offset:{128*i}")
        A(f"global_load_ushort v{17+i}, v3, s[24:25] offset:{128*i}")
    A.label("KA_B0")
    A("s_barrier")
    A("s_cmp_lt_u32 s3, 3")
    A("s_cbranch_scc1 KA_LN1")
    A("s_cmp_lg_u32 s3, 3")
    A("s_cbranch_scc1 KA_NOTAG")
    A(f"s_mov_b32 s14, {WS_EPOCH}")
    A("s_load_dword s15, s[32:33], s14")
    A(f"v_mov_b32 v18, {KA_CNT + 96}")
    A("s_waitcnt lgkmcnt(0)")
    A("s_mul_i32 s15, s15, 0x9E3779B1")
    A("s_add_u32 s15, s15, 0x632BE5AB")
    A("v_mov_b32 v19, s15")
    A("ds_write_b32 v18, v19")
    A("s_waitcnt lgkmcnt(0)")
    A(f"v_mov_b32 v18, {KA_CNT + 12}")
    A("v_mov_b32 v19, 1")
    A("s_mov_b64 exec, 1")
    A("ds_add_u32 v18, v19")
    A("s_mov_b64 exec, -1")
    A(f"s_cmp_ge_u32 s2, {NPROD}")
    A("s_cbranch_scc1 KA_CONV")
    A("s_branch KA_WTPOLL")
    A.label("KA_NOTAG")
    A(f"s_cmp_lt_u32 s2, {NPROD}")
    A("s_cbranch_scc1 KA_WT0")
    kgen_wave(A)
    arrive_s(A, 4, 37)
    wait_s(A, 4, 37, 3, "KA_W4")
    stamp(A, 7)
    A(f"s_mul_i32 s11, s37, {3*KG_SZ}")
    A("s_lshl_b32 s12, s36, 10")
    A("s_add_u32 s11, s11, s12")
    A("v_add_u32 v28, s11, v28")
    for w in range(3):
        A(f"ds_read_b128 {vr(40+4*w,4)}, v28 offset:{KG_SZ*w}")
    A("s_waitcnt lgkmcnt(0)")
    for i in range(4):
        A(f"v_add_f32 v{40+i}, v{40+i}, v{44+i}")
    for i in range(4):
        A(f"v_add_f32 v{40+i}, v{40+i}, v{48+i}")
    A("v_cvt_pk_f16_f32 v40, v40, v41")
    A("v_cvt_pk_f16_f32 v41, v42, v43")
    A("s_cmp_eq_u32 s36, 1")
    A("s_cbranch_scc1 KA_S1")
    A("ds_write_b64 v29, v[40:41]")
    A("s_branch KA_S2")
    A.label("KA_S1")
    A("ds_write_b16 v29, v40")
    A("ds_write_b16_d16_hi v29, v40 offset:64")
    A("ds_write_b16 v29, v41 offset:128")
    A("ds_write_b16_d16_hi v29, v41 offset:192")
    A.label("KA_S2")
    arrive_s(A, 8, 37)
    wait_s(A, 8, 37, 3, "KA_W5")
    A(f"s_mul_i32 s39, s37, {KEO_ST}")
    A(f"s_add_u32 s39, s39, {KEO_BASE}")
    A(f"s_mul_i32 s40, s37, {T_ST}")
    A(f"s_add_u32 s40, s40, {KA_T}")
    A("s_cmp_eq_u32 s36, 0")
    A("s_cbranch_scc1 KA_R0")
    A("s_cmp_eq_u32 s36, 1")
    A("s_cbranch_scc1 KA_R1")
    expand_round(A, 2, "R2")
    A("s_branch KA_RX")
    A.label("KA_R0")
    expand_round(A, 0, "R0")
    A("s_branch KA_RX")
    A.label("KA_R1")
    expand_round(A, 1, "R1")
    A.label("KA_RX")
    arrive_s(A, 12, 37)
    k_end(A, 0)

    A.label("KA_CONV")
    A("s_lshl_b32 s4, s35, 2")
    A("s_add_u32 s4, s4, s3")
    A("s_lshr_b32 s14, s4, 1")
    A("s_lshl_b32 s14, s14, 2")
    A(f"s_mul_i32 s39, s3, {KEO_ST}")
    A(f"s_mul_i32 s40, s3, {T_ST}")
    A(f"s_add_u32 s40, s40, {KA_T}")
    A(f"s_mul_i32 s41, s3, {U_ST}")
    A(f"s_add_u32 s41, s41, {KA_U}")
    A("v_and_b32 v6, 15, v2")
    A("v_lshrrev_b32 v7, 4, v2")
    A("v_lshrrev_b32 v8, 1, v7")
    A("v_and_b32 v9, 1, v7")
    A("v_mov_b32 v12, 0")
    A("v_mov_b32 v13, 0")
    A("v_lshlrev_b32 v14, 3, v2")
    A("v_add_u32 v14, s41, v14")
    A("ds_write_b64 v14, v[12:13]")
    A("v_sub_u32 v14, 2047, v6")
    A("v_lshlrev_b32 v15, 4, v8")
    A("v_sub_u32 v14, v14, v15")
    A("v_lshlrev_b32 v15, 3, v9")
    A("v_add_u32 v14, v14, v15")
    A("v_lshlrev_b32 v14, 1, v14")
    A(f"v_add_u32 v15, {KA_KO - 2}, v14")
    A("v_and_b32 v16, 1, v6")
    A("v_cmp_eq_u32 vcc, 1, v16")
    A("v_cndmask_b32 v14, v15, v14, vcc")
    A("v_add_u32 v14, s39, v14")
    AB = [20, 21, 22, 23]
    for p in range(4):
        A(f"v_subrev_u32 v{AB[p]}, {512*(2*p+1) + 448}, v14")
    A("v_lshlrev_b32 v15, 5, v6")
    A("v_lshlrev_b32 v16, 5, v8")
    A("v_sub_u32 v15, v15, v16")
    A("v_lshlrev_b32 v16, 4, v9")
    A("v_add_u32 v15, v15, v16")
    A(f"v_add_u32 v15, {512 - 448}, v15")
    BB = 24
    A(f"v_add_u32 v{BB}, s41, v15")
    A("v_lshlrev_b32 v15, 5, v6")
    A("v_lshlrev_b32 v16, 3, v7")
    A("v_add_u32 v25, v15, v16")
    A("v_lshlrev_b32 v3, 3, v2")
    A("v_sub_u32 v3, 511, v3")
    for k in range(9):
        A(f"v_subrev_u32 v{30+k}, {k}, v3")
    A("v_max_i32 v38, 0, v38")
    for k in range(9):
        A(f"v_cvt_f32_i32 v{40+k}, v{30+k}")
    for k in range(0, 8, 2):
        A(f"v_cvt_pk_bf16_f32 v{50+k}, v{40+k}, v{41+k}")
        A(f"v_lshrrev_b32 v{51+k}, 16, v{50+k}")
        A(f"v_and_b32 v{50+k}, 0xffff, v{50+k}")
    A("v_cvt_pk_bf16_f32 v58, v48, v48")
    A("v_and_b32 v58, 0xffff, v58")
    for k in range(9):
        A(f"v_subrev_u32 v{50+k}, 17024, v{50+k}")
        A(f"v_min_i32 v{30+k}, 127, v{30+k}")
        A(f"v_max_i32 v{50+k}, v{50+k}, v{30+k}")
        A(f"v_lshlrev_b32 v{30+k}, 1, v{50+k}")
        A(f"v_add_u32 v{30+k}, s40, v{30+k}")
    A("v_lshrrev_b32 v5, 2, v2")
    A("v_mul_u32_u24 v5, 10240, v5")
    A("v_and_b32 v4, 3, v2")
    A("v_lshl_add_u32 v5, v4, 4, v5")
    A("s_lshl_b32 s7, s35, 6")
    A("s_mul_i32 s8, s3, 655360")
    A("s_add_u32 s7, s7, s8")
    A(f"s_add_u32 s7, s7, {WS_UT}")
    A("v_add_u32 v5, s7, v5")
    A(f"v_mul_u32_u24 v4, {U_ST}, v4")
    A("v_lshrrev_b32 v3, 2, v2")
    A("v_lshl_add_u32 v4, v3, 4, v4")
    A("s_lshl_b32 s8, s3, 10")
    A(f"s_add_u32 s8, s8, {KA_U + 512}")
    A("v_add_u32 v4, s8, v4")
    A("s_load_dword s11, s[28:29], s14")
    stamp(A, 1)
    A("s_cmp_lg_u32 s3, 3")
    A("s_cbranch_scc1 KA_GOT")
    wait_count(A, 3, 4, "KA_OWN", sleep=4)
    poll_flags(A, "KA_POLL")
    A(f"s_cmp_lg_u32 s2, {NPROD}")
    A("s_cbranch_scc1 KA_GOT")
    A(f"v_mov_b32 v3, {WS_EPOCH}")
    A("v_mov_b32 v10, s15")
    A("s_mov_b64 exec, 1")
    A(f"global_store_dword v3, v10, s[32:33] {SC}")
    A("s_mov_b64 exec, -1")
    A.label("KA_GOT")
    AF, BF, ACC = 32, 64, 96
    for i in range(32):
        A(f"v_mov_b32 v{ACC+i}, 0")
    A("s_bitcmp1_b32 s4, 0")
    group_sync(A, 2, 4, "KA_GS2")
    stamp(A, 2)
    for j in range(4):
        A(f"global_load_dwordx4 {vr(64+4*j,4)}, v5, s[32:33] {SC}")
        if j < 3:
            A("v_add_u32 v5, 163840, v5")
    A("s_bitcmp1_b32 s4, 0")
    A("s_cbranch_scc1 KA_ODD2")
    A("s_lshl_b32 s11, s11, 16")
    A.label("KA_ODD2")
    A("s_and_b32 s11, s11, 0xffff0000")
    for j in range(4):
        A(f"s_waitcnt vmcnt({3-j})")
        A(f"ds_write_b128 v4, {vr(64+4*j,4)} offset:{256*j}")
    arrive(A, 17)
    stamp(A, 3)
    wait_s(A, 8, 3, 3, "KA_W5C")
    expand_round(A, 3, "R3")
    A("s_lshl_b32 s12, s3, 2")
    A(f"s_add_u32 s12, s12, {KA_SC}")
    A("v_mov_b32 v3, s12")
    A("ds_read_b32 v10, v3")
    wait_s(A, 12, 3, 3, "KA_W6")
    wait_count(A, 17, 4, "KA_W7", sleep=0)
    stamp(A, 5)

    def loadA(q, i0):
        p = q // 2
        o = (128 if q % 2 == 0 else 0) + 16 * (7 - i0)
        return [f"ds_read2_b32 {vr(AF+4*q,2)}, v{AB[p]} offset0:{o} offset1:{o+1}",
                f"ds_read2_b32 {vr(AF+4*q+2,2)}, v{AB[p]} offset0:{o+2} offset1:{o+3}"]

    def loadB(tau, i0):
        return [f"ds_read_b128 {vr(BF+4*tau,4)}, v{BB} offset:{512*tau + 64*(7-i0)}"]

    queue = []
    for q in range(8):
        A(loadB(7 - q, 0)[0])
        queue.append(("B", 7 - q))
        if q == 0:
            for s in loadA(0, 0):
                A(s)
            queue += [("A", 0), ("A", 0)]
    for q in range(1, 8):
        for s in loadA(q, 0):
            A(s)
        queue += [("A", q), ("A", q)]
    pending = []

    def wait_for(tags):
        while any(tg in tags for _, tg in pending):
            s_, tg = pending.pop(0)
            A(s_)
            queue.append(tg)
        last = -1
        for i, t in enumerate(queue):
            if t in tags:
                last = i
        if last >= 0:
            n = len(queue) - 1 - last
            A(f"s_waitcnt lgkmcnt({min(n, 15)})")
            del queue[:last + 1]

    for i0 in range(8):
        for q in range(8):
            for tau in range(7 - q, -1, -1):
                wait_for({("A", q), ("B", tau)})
                t = q + tau
                A(f"v_mfma_f32_16x16x32_f16 {vr(ACC+4*t,4)}, {vr(AF+4*q,4)}, {vr(BF+4*tau,4)}, {vr(ACC+4*t,4)}")
                if i0 < 7:
                    if tau == 7 - q:
                        pending.insert(0, (loadB(7 - q, i0 + 1)[0], ("B", 7 - q)))
                    if tau == 0:
                        for s in loadA(q, i0 + 1):
                            pending.append((s, ("A", q)))
                if pending:
                    s, tag = pending.pop(0)
                    A(s)
                    queue.append(tag)
    stamp(A, 6)
    A("v_add_u32 v26, s41, v25")
    A("v_add_u32 v27, s39, v25")
    for t in range(8):
        A(f"ds_read_b64 {vr(32+2*t,2)}, v26 offset:{512 + 512*t}")
    A(f"v_mov_b32 v28, {ONE_LO}")
    A(f"v_mov_b32 v29, {ONE_HI}")
    A("v_mov_b32 v11, v10")
    A("s_waitcnt lgkmcnt(0)")
    for t in range(8):
        a = ACC + 4 * t
        u = 32 + 2 * t
        tm = 48 + 8 * (t & 1)
        A(f"v_pk_mul_f32 {vr(a,2)}, {vr(a,2)}, v[10:11]")
        A(f"v_pk_mul_f32 {vr(a+2,2)}, {vr(a+2,2)}, v[10:11]")
        A(f"v_fma_mix_f32 v{tm}, v{u}, s11, 0 op_sel:[0,0,0] op_sel_hi:[1,0,0]")
        A(f"v_fma_mix_f32 v{tm+1}, v{u}, s11, 0 op_sel:[1,0,0] op_sel_hi:[1,0,0]")
        A(f"v_fma_mix_f32 v{tm+2}, v{u+1}, s11, 0 op_sel:[0,0,0] op_sel_hi:[1,0,0]")
        A(f"v_fma_mix_f32 v{tm+3}, v{u+1}, s11, 0 op_sel:[1,0,0] op_sel_hi:[1,0,0]")
        A(f"v_cvt_pk_bf16_f32 v{a}, v{a}, v{a+1}")
        A(f"v_cvt_pk_bf16_f32 v{a+1}, v{a+2}, v{a+3}")
        A(f"v_cvt_pk_bf16_f32 v{tm+4}, v{tm}, v{tm+1}")
        A(f"v_cvt_pk_bf16_f32 v{tm+5}, v{tm+2}, v{tm+3}")
        A(f"v_lshlrev_b32 v{tm}, 16, v{tm+4}")
        A(f"v_and_b32 v{tm+1}, 0xffff0000, v{tm+4}")
        A(f"v_lshlrev_b32 v{tm+2}, 16, v{tm+5}")
        A(f"v_and_b32 v{tm+3}, 0xffff0000, v{tm+5}")
        A(f"v_dot2_f32_bf16 v{tm}, v{a}, v28, v{tm}")
        A(f"v_dot2_f32_bf16 v{tm+1}, v{a}, v29, v{tm+1}")
        A(f"v_dot2_f32_bf16 v{tm+2}, v{a+1}, v28, v{tm+2}")
        A(f"v_dot2_f32_bf16 v{tm+3}, v{a+1}, v29, v{tm+3}")
        A(f"v_cvt_pk_bf16_f32 v{a+2}, v{tm}, v{tm+1}")
        A(f"v_cvt_pk_bf16_f32 v{a+3}, v{tm+2}, v{tm+3}")
        A(f"ds_write_b64 v27, {vr(a+2,2)} offset:{KA_KE + 512*t}")
    stamp(A, 7)
    A("v_lshrrev_b32 v14, 2, v6")
    A(f"v_mul_u32_u24 v14, {KEO_ST}, v14")
    A("v_and_b32 v15, 3, v2")
    A("v_lshlrev_b32 v15, 3, v15")
    A("v_add_u32 v14, v14, v15")
    A("v_lshlrev_b32 v15, 5, v7")
    A("v_add_u32 v14, v14, v15")
    A("s_lshl_b32 s12, s3, 10")
    A("v_add_u32 v14, s12, v14")
    A("v_lshrrev_b32 v15, 3, v6")
    A("v_lshlrev_b32 v16, 1, v7")
    A("v_add_u32 v15, v15, v16")
    A("v_mul_u32_u24 v15, 10240, v15")
    A("v_and_b32 v16, 7, v6")
    A("v_lshlrev_b32 v16, 4, v16")
    A("v_add_u32 v15, v15, v16")
    A("s_mul_i32 s12, s3, 655360")
    A("s_lshr_b32 s13, s35, 1")
    A("s_lshl_b32 s13, s13, 7")
    A("s_add_u32 s12, s12, s13")
    A("s_and_b32 s13, s35, 1")
    A("s_lshl_b32 s13, s13, 3")
    A("s_add_u32 s12, s12, s13")
    A(f"s_add_u32 s12, s12, {WS_AT}")
    A("v_add_u32 v15, s12, v15")
    A("s_waitcnt lgkmcnt(0)")
    A("s_barrier")
    for k in range(8):
        A(f"ds_read_b64_tr_b16 {vr(40+2*k,2)}, v14 offset:{KA_KE + 128*k}")
    for k in range(8):
        A(f"s_waitcnt lgkmcnt({7-k})")
        A(f"global_store_dwordx2 v15, {vr(40+2*k,2)}, s[32:33]")
        if k < 7:
            A("v_add_u32 v15, 81920, v15")
    k_end(A, 0)

    A.label("KA_LN1")
    A("s_setprio 3")
    A("v_mov_b32 v20, v0")
    A("s_mul_i32 s5, s2, 10240")
    A("v_min_u32 v21, 159, v20")
    A("v_lshlrev_b32 v3, 3, v21")
    A("v_add_u32 v3, s5, v3")
    A("v_add_u32 v4, 5120, v3")
    A("v_lshrrev_b32 v5, 4, v20")
    A("v_mul_u32_u24 v6, 1280, v5")
    A("v_and_b32 v7, 15, v20")
    A("v_lshlrev_b32 v7, 4, v7")
    A("v_add_u32 v6, v6, v7")
    A("v_add_u32 v6, s5, v6")
    A("s_cmp_eq_u32 s3, 2")
    A("s_cbranch_scc1 KA_LNB")
    for i in range(5):
        A(f"global_load_dwordx4 {vr(24+4*i,4)}, v6, s[16:17] offset:{256*i}")
    A.label("KA_LNB")
    for r in range(8):
        A(f"global_load_dwordx2 {vr(48+2*r,2)}, v{3 if r < 4 else 4}, s[16:17] offset:{1280*(r%4)}")
    A(f"v_mov_b32 v14, {ONE_LO}")
    A(f"v_mov_b32 v15, {ONE_HI}")
    A("s_cmp_eq_u32 s3, 2")
    A("s_cbranch_scc1 KA_P1")
    for r in (8, 9, 10, 11):
        A(f"v_mov_b32 v{r}, 0")
    A("v_mov_b32 v12, 0x3f803f80")
    A("s_waitcnt vmcnt(8)")
    for i in range(0, 20, 2):
        A(f"v_dot2c_f32_bf16 v8, v{24+i}, v12")
        A(f"v_dot2c_f32_bf16 v9, v{24+i}, v{24+i}")
        A(f"v_dot2c_f32_bf16 v10, v{25+i}, v12")
        A(f"v_dot2c_f32_bf16 v11, v{25+i}, v{25+i}")
    A("s_nop 2")
    A("v_add_f32 v8, v8, v10")
    A("v_add_f32 v9, v9, v11")
    for sh in (8, 4, 2, 1):
        A(f"v_add_f32_dpp v8, v8, v8 row_ror:{sh} row_mask:0xf bank_mask:0xf")
        A(f"v_add_f32_dpp v9, v9, v9 row_ror:{sh} row_mask:0xf bank_mask:0xf")
    ln_finish(A, 8, 9, 10)
    A("v_sub_f32 v8, 0, v8")
    A("v_lshlrev_b32 v5, 3, v5")
    A(f"v_add_u32 v5, {KA_STATS}, v5")
    A("ds_write_b64 v5, v[8:9]")
    A.label("KA_P1")
    group_sync(A, 0, 3, "KA_GS0")
    stamp(A, 8)
    A(f"v_mov_b32 v5, {KA_STATS}")
    for i in range(4):
        A(f"ds_read_b128 {vr(24+4*i,4)}, v5 offset:{16*i}")
    A("v_lshlrev_b32 v3, 6, v21")
    A(f"v_add_u32 v3, {KA_STAGE}, v3")
    A("s_waitcnt vmcnt(0) lgkmcnt(0)")
    for rp in range(4):
        r0, r1 = 2 * rp, 2 * rp + 1
        tt = [84 + 3 * ch for ch in range(4)]
        for ch in range(4):
            a, b = 48 + 2 * r0 + (ch >> 1), 48 + 2 * r1 + (ch >> 1)
            one = 14 + (ch & 1)
            A(f"v_dot2_f32_bf16 v{tt[ch]}, v{a}, v{one}, v{24+2*r0}")
            A(f"v_dot2_f32_bf16 v{tt[ch]+1}, v{b}, v{one}, v{24+2*r1}")
        for ch in range(4):
            A(f"v_cvt_pk_bf16_f32 v{tt[ch]+2}, v{tt[ch]}, v{tt[ch]+1}")
        for ch in range(4):
            A(f"v_lshlrev_b32 v{tt[ch]}, 16, v{tt[ch]+2}")
            A(f"v_and_b32 v{tt[ch]+1}, 0xffff0000, v{tt[ch]+2}")
        for ch in range(4):
            A(f"v_mul_f32 v{tt[ch]}, v{tt[ch]}, v{25+2*r0}")
            A(f"v_mul_f32 v{tt[ch]+1}, v{tt[ch]+1}, v{25+2*r1}")
        for ch in range(4):
            A(f"v_cvt_pk_bf16_f32 v{tt[ch]+2}, v{tt[ch]}, v{tt[ch]+1}")
        for ch in range(4):
            A(f"v_lshlrev_b32 v{tt[ch]}, 16, v{tt[ch]+2}")
            A(f"v_and_b32 v{tt[ch]+1}, 0xffff0000, v{tt[ch]+2}")
        for ch in range(4):
            A(f"v_cvt_pk_f16_f32 v{68+4*ch+rp}, v{tt[ch]}, v{tt[ch]+1}")
    for ch in range(4):
        A(f"ds_write_b128 v3, {vr(68+4*ch,4)} offset:{16*ch}")
    group_sync(A, 1, 3, "KA_GS1")
    A("v_lshlrev_b32 v3, 4, v20")
    A(f"v_add_u32 v4, {KA_STAGE}, v3")
    for j in range(4):
        A(f"ds_read_b128 {vr(24+4*j,4)}, v4 offset:{3072*j}")
    A(f"s_add_u32 s5, s5, {WS_UT}")
    A("v_add_u32 v3, s5, v3")
    A("s_waitcnt lgkmcnt(0)")
    for j in range(3):
        A(f"global_store_dwordx4 v3, {vr(24+4*j,4)}, s[32:33] {SC}")
        A("v_add_u32 v3, 3072, v3")
    A("s_cmp_lg_u32 s3, 0")
    A("s_cbranch_scc1 KA_P3")
    A(f"global_store_dwordx4 v3, {vr(36,4)}, s[32:33] {SC}")
    A.label("KA_P3")
    A("s_waitcnt vmcnt(0)")
    group_sync(A, 3, 4, "KA_GS3")
    stamp(A, 9)
    A("s_cmp_lg_u32 s3, 0")
    A("s_cbranch_scc1 KA_LNX")
    A(f"v_mov_b32 v3, {KA_CNT + 96}")
    A("ds_read_b32 v4, v3")
    A(f"s_lshr_b32 s5, s2, {2 if FLAG64 else 4}")
    A("s_lshl_b32 s5, s5, 7")
    A(f"s_and_b32 s6, s2, {3 if FLAG64 else 15}")
    A("s_lshl_b32 s6, s6, 2")
    A("s_add_u32 s5, s5, s6")
    A(f"s_add_u32 s5, s5, {WS_FLAG}")
    A("v_mov_b32 v3, s5")
    A("s_waitcnt lgkmcnt(0)")
    A("s_mov_b64 exec, 1")
    A(f"global_store_dword v3, v4, s[32:33] {SC}")
    A("s_mov_b64 exec, -1")
    A.label("KA_LNX")
    A("s_setprio 0")
    A(f"s_cmp_ge_u32 s2, {NPROD}")
    A("s_cbranch_scc1 KA_CONV")
    k_end(A, 0)
    A.label("KA_WTPOLL")
    wait_count(A, 3, 4, "KA_OWN2", sleep=4)
    if not os.environ.get("WT_EARLY"):
        poll_epoch(A, "KA_POLL2")
    arrive(A, 16)
    k_end(A, 0)
    A.label("KA_WT0")
    A("s_cmp_ge_u32 s3, 8")
    A("s_cbranch_scc1 KA_WTX")
    wait_count(A, 16, 1, "KA_WTW", sleep=8)
    wt_role(A, "KA", 0, -2, 8192, 0, 960, 0, os.environ.get("WT_MOD", ""), 384)
    A.label("KA_WTX")
    k_end(A, 0)
    A.label("KA_END")
    A("s_endpgm")


KERNELS4 = [
    ("ka_kernel", ka, 256, 1024, KA_LDS, 128),
    ("k3_kernel", k3, 256, 256, K3_LDS, 96),
    ("k4_kernel", k4, 192 + (80 if PF_WD[0] else 0), 256, K4_LDS, 96),
    ("k5_kernel", k5, 80, 512, K5_LDS, 96),
]

if __name__ == "__main__":
    if len(sys.argv) > 2 and sys.argv[2] == "stamp":
        STAMP[0] = True
    out = build(KERNELS4)
    path = sys.argv[1]
    open(path, "w").write(out)
    print("wrote", path, len(out), "bytes")
```

```python
import sys, os
sys.path.insert(0, os.path.dirname(os.path.abspath(__file__)))
import gen3, gen8
from gen8 import *

WS_FLAG2 = 0x0924000
KC_LDS = 10240
KC_FIRST = int(os.environ.get("KC_FIRST", "48"))
KC_SLEEP = int(os.environ.get("KC_SLEEP", "6"))


def select8(A, after_keys):
    A("v_lshlrev_b32 v4, 5, v0")
    A(f"v_add_u32 v4, {WS_RK}, v4")
    A("global_load_dwordx4 v[8:11], v4, s[32:33]")
    A("global_load_dwordx4 v[12:15], v4, s[32:33] offset:16")
    stamp(A, 1)
    A("s_waitcnt vmcnt(0)")
    after_keys()
    stamp(A, 2)
    net = [(0, 1), (2, 3), (4, 5), (6, 7), (0, 2), (1, 3), (4, 6), (5, 7), (1, 2), (5, 6), (0, 4), (3, 7), (1, 5), (2, 6),
           (1, 4), (3, 6), (2, 4), (3, 5), (3, 4)]
    reg = list(range(8, 16))
    spare = 16
    for a_, b_ in net:
        A(f"v_max_u32 v{spare}, v{reg[a_]}, v{reg[b_]}")
        A(f"v_min_u32 v{reg[b_]}, v{reg[a_]}, v{reg[b_]}")
        reg[a_], spare = spare, reg[a_]
    steps = [("row_shr:1", "0xf"), ("row_shr:2", "0xf"), ("row_shr:4", "0xf"), ("row_shr:8", "0xf"),
             ("row_bcast:15", "0xa"), ("row_bcast:31", "0xc")]
    for r in range(4):
        A(f"v_mov_b32 v17, v{reg[0]}")
        A(f"v_mov_b32 v18, v{reg[1]}")
        for ctl, mask in steps:
            bc = " bound_ctrl:0" if ctl.startswith("row_shr") else ""
            A(f"v_min_u32_dpp v19, v17, v17 {ctl} row_mask:{mask} bank_mask:0xf{bc}")
            A(f"v_max_u32_dpp v17, v17, v17 {ctl} row_mask:{mask} bank_mask:0xf{bc}")
            A(f"v_max_u32_dpp v20, v18, v18 {ctl} row_mask:{mask} bank_mask:0xf{bc}")
            A("v_max_u32 v18, v19, v20")
        A(f"v_readlane_b32 s{40+2*r}, v17, 63")
        A(f"v_readlane_b32 s{41+2*r}, v18, 63")
        if r < 3:
            left = 8 - 2 * r
            for wsel in (40 + 2 * r, 41 + 2 * r):
                A(f"v_cmp_eq_u32 vcc, s{wsel}, v{reg[0]}")
                left -= 1
                for k in range(left):
                    A(f"v_cndmask_b32 v{reg[k]}, v{reg[k]}, v{reg[k+1]}, vcc")
    stamp(A, 3)
    A("v_mov_b32 v16, s40")
    for r in range(1, 8):
        A(f"v_writelane_b32 v16, s{40+r}, {r}")
    A("s_lshl_b32 s6, s3, 5")
    A("v_lshlrev_b32 v17, 2, v2")
    A("v_add_u32 v17, s6, v17")
    A("v_cmp_gt_u32 vcc, 8, v2")
    A("s_and_saveexec_b64 s[20:21], vcc")
    A("ds_write_b32 v17, v16")
    A("s_mov_b64 exec, s[20:21]")
    A("v_and_b32 v17, 31, v2")
    A("v_lshlrev_b32 v17, 2, v17")
    A("v_lshrrev_b32 v18, 5, v2")
    A("v_lshlrev_b32 v18, 6, v18")
    A("v_mov_b32 v19, 0")
    A("v_mov_b32 v20, 0")
    A("s_waitcnt lgkmcnt(0)")
    A("s_barrier")
    A("ds_read_b32 v16, v17")
    for i in range(4):
        A(f"ds_read_b128 {vr(60+4*i,4)}, v18 offset:{16*i}")
    A("s_waitcnt lgkmcnt(0)")
    sp = ["s[50:51]", "s[52:53]", "s[54:55]", "s[56:57]"]
    for i in range(0, 16, 4):
        for k in range(4):
            A(f"v_cmp_gt_u32 {sp[k]}, v{60+i+k}, v16")
        for k in range(4):
            A(f"v_addc_co_u32 v{19 + (k & 1)}, vcc, 0, v{19 + (k & 1)}, {sp[k]}")
    A("v_add_u32 v19, v19, v20")
    A("v_mov_b32 v20, v19")
    A("v_permlane32_swap_b32 v19, v20")
    A("v_add_u32 v19, v19, v20")
    A("v_cmp_gt_u32 vcc, 8, v19")
    A("v_cmp_gt_u32 s[22:23], 32, v2")
    A("s_and_b64 vcc, vcc, s[22:23]")
    A("v_lshlrev_b32 v19, 2, v19")
    A("s_lshl_b32 s6, s3, 6")
    A("s_add_u32 s6, s6, 256")
    A("v_add_u32 v19, s6, v19")
    A("s_and_saveexec_b64 s[20:21], vcc")
    A("ds_write_b32 v19, v16")
    A("s_mov_b64 exec, s[20:21]")


def kc(A):
    A("s_cmp_ge_u32 s2, 272")
    A("s_cbranch_scc1 KC_END")
    k_begin(A)
    A("s_load_dwordx2 s[32:33], s[0:1], 112")
    A("s_load_dwordx2 s[30:31], s[0:1], 96")
    A("s_load_dwordx2 s[26:27], s[0:1], 0")
    A("v_lshrrev_b32 v1, 6, v0")
    A("v_readfirstlane_b32 s3, v1")
    A("v_and_b32 v2, 63, v0")
    A(f"s_mov_b32 s14, {WS_EPOCH}")
    A("s_cmp_ge_u32 s2, 192")
    A("s_cbranch_scc1 KC_F2")
    A("s_cmp_ge_u32 s3, 4")
    A("s_cbranch_scc1 KC_END")
    A("s_mul_i32 s4, s2, 20480")
    A("s_mul_i32 s5, s3, 5120")
    A("s_add_u32 s4, s4, s5")
    A(f"s_add_u32 s4, s4, {WS_WGU}")
    A("v_lshlrev_b32 v3, 4, v2")
    A("v_add_u32 v3, s4, v3")
    A("v_add_u32 v5, 4096, v3")
    A("s_waitcnt lgkmcnt(0)")
    A("s_load_dword s15, s[32:33], s14")
    BFR, AFR = 40, 60

    def w1():
        for i in range(4):
            A(f"global_load_dwordx4 {vr(BFR+4*i,4)}, v3, s[32:33] offset:{1024*i}")
        A(f"global_load_dwordx4 {vr(BFR+16,4)}, v5, s[32:33]")
    select8(A, w1)
    A("v_and_b32 v17, 7, v2")
    A("v_lshlrev_b32 v17, 2, v17")
    A("v_add_u32 v17, s6, v17")
    A("ds_read_b32 v16, v17")
    A("v_lshrrev_b32 v21, 4, v2")
    A("v_lshlrev_b32 v21, 4, v21")
    A("s_mul_i32 s6, s3, 320")
    A(f"s_add_u32 s6, s6, {WS_L2}")
    A("v_add_u32 v21, s6, v21")
    A("s_waitcnt lgkmcnt(0)")
    A("v_and_b32 v18, 0x7ff, v16")
    A("v_sub_u32 v18, 2047, v18")
    A("v_mul_u32_u24 v20, 1280, v18")
    A("v_add_u32 v20, v20, v21")
    for i in range(5):
        A(f"global_load_dwordx4 {vr(AFR+4*i,4)}, v20, s[32:33] offset:{64*i}")
    stamp(A, 4)
    for i in range(4):
        A(f"v_mov_b32 v{24+i}, 0")
    A("v_lshlrev_b32 v28, 4, v2")
    A("s_lshl_b32 s6, s3, 10")
    A("v_add_u32 v29, s6, v28")
    for i in range(5):
        A(f"s_waitcnt vmcnt({4-i})")
        A(f"v_mfma_f32_16x16x32_bf16 v[24:27], {vr(AFR+4*i,4)}, {vr(BFR+4*i,4)}, v[24:27]")
    stamp(A, 5)
    A("ds_write_b128 v29, v[24:27] offset:1024")
    A("s_waitcnt lgkmcnt(0)")
    A("s_barrier")
    A("s_cmp_lg_u32 s3, 0")
    A("s_cbranch_scc1 KC_DONE")
    for w in range(4):
        A(f"ds_read_b128 {vr(40+4*w,4)}, v28 offset:{1024 + 1024*w}")
    A("v_and_b32 v56, 15, v2")
    A("v_lshrrev_b32 v57, 4, v2")
    A("v_lshlrev_b32 v58, 6, v57")
    A("v_lshl_add_u32 v58, v56, 1, v58")
    A("s_lshl_b32 s6, s2, 7")
    A(f"s_add_u32 s6, s6, {WS_ACT}")
    A("v_add_u32 v58, s6, v58")
    A("v_cmp_gt_u32 vcc, 8, v56")
    A("v_cmp_gt_u32 s[22:23], 2, v57")
    A("s_and_b64 s[22:23], vcc, s[22:23]")
    A("s_mul_i32 s15, s15, 0x85EBCA6B")
    A("s_add_u32 s15, s15, 0x27D4EB2F")
    A("s_lshr_b32 s5, s2, 4")
    A("s_lshl_b32 s5, s5, 7")
    A("s_and_b32 s6, s2, 15")
    A("s_lshl_b32 s6, s6, 2")
    A("s_add_u32 s5, s5, s6")
    A(f"s_add_u32 s5, s5, {WS_FLAG2}")
    A("v_mov_b32 v59, s5")
    A("v_mov_b32 v57, s15")
    A("s_waitcnt lgkmcnt(0)")
    for i in range(4):
        A(f"v_add_f32 v{40+i}, v{40+i}, v{44+i}")
        A(f"v_add_f32 v{48+i}, v{48+i}, v{52+i}")
    for i in range(4):
        A(f"v_add_f32 v{40+i}, v{40+i}, v{48+i}")
    A("v_cvt_pk_bf16_f32 v44, v40, v41")
    A("v_cvt_pk_bf16_f32 v45, v42, v43")
    A("v_lshlrev_b32 v40, 16, v44")
    A("v_and_b32 v41, 0xffff0000, v44")
    A("v_lshlrev_b32 v42, 16, v45")
    A("v_and_b32 v43, 0xffff0000, v45")
    for i in range(4):
        A(f"v_mul_f32 v{48+i}, {hex(fbits(-LOG2E))}, v{40+i}")
    for i in range(4):
        A(f"v_exp_f32 v{48+i}, v{48+i}")
    for i in range(4):
        A(f"v_mov_b32_dpp v{44+i}, v{40+i} row_shl:8 row_mask:0xf bank_mask:0xf")
    for i in range(4):
        A(f"v_add_f32 v{48+i}, 1.0, v{48+i}")
    for i in range(4):
        A(f"v_rcp_f32 v{48+i}, v{48+i}")
    for i in range(4):
        A(f"v_mul_f32 v{40+i}, v{40+i}, v{48+i}")
    A("v_cvt_pk_bf16_f32 v48, v40, v41")
    A("v_cvt_pk_bf16_f32 v49, v42, v43")
    A("v_lshlrev_b32 v40, 16, v48")
    A("v_and_b32 v41, 0xffff0000, v48")
    A("v_lshlrev_b32 v42, 16, v49")
    A("v_and_b32 v43, 0xffff0000, v49")
    for i in range(4):
        A(f"v_mul_f32 v{40+i}, v{40+i}, v{44+i}")
    A("v_cvt_pk_bf16_f32 v40, v40, v41")
    A("v_cvt_pk_bf16_f32 v42, v42, v43")
    A("s_mov_b64 exec, s[22:23]")
    A(f"global_store_short v58, v40, s[32:33] {SC}")
    A(f"global_store_short_d16_hi v58, v40, s[32:33] offset:16 {SC}")
    A(f"global_store_short v58, v42, s[32:33] offset:32 {SC}")
    A(f"global_store_short_d16_hi v58, v42, s[32:33] offset:48 {SC}")
    A("s_waitcnt vmcnt(0)")
    A("s_mov_b64 exec, 1")
    A(f"global_store_dword v59, v57, s[32:33] {SC}")
    A.label("KC_DONE")
    k_end(A, 3)

    A.label("KC_F2")
    A("s_sub_u32 s34, s2, 192")
    A("v_lshrrev_b32 v5, 4, v2")
    A("v_and_b32 v4, 7, v2")
    A("v_bfe_u32 v6, v2, 3, 1")
    A("v_lshlrev_b32 v3, 7, v5")
    A("v_lshl_add_u32 v3, v4, 4, v3")
    A("v_lshl_add_u32 v3, v6, 9, v3")
    A("s_mul_i32 s5, s3, 3072")
    A("v_add_u32 v3, s5, v3")
    A(f"v_add_u32 v30, {WS_ACT}, v3")
    A("s_mul_i32 s4, s34, 24576")
    A(f"s_add_u32 s4, s4, {WS_WD}")
    A("v_add_u32 v3, s4, v3")
    for i in range(4):
        A(f"v_mov_b32 v{36+i}, 0")
        A(f"v_mov_b32 v{32+i}, 0")
    B2, A2 = 76, 88
    A("s_waitcnt lgkmcnt(0)")
    A("s_load_dword s15, s[32:33], s14")

    def w2():
        for i in range(3):
            A(f"global_load_dwordx4 {vr(B2+4*i,4)}, v3, s[32:33] offset:{1024*i}")
    A("s_cmp_ge_u32 s3, 4")
    A("s_cbranch_scc1 KC_F2HI")
    select8(A, w2)
    A("s_cmp_lg_u32 s3, 0")
    A("s_cbranch_scc1 KC_F2B2")
    A("v_and_b32 v17, 1, v5")
    A("v_lshlrev_b32 v17, 4, v17")
    A("v_add_u32 v17, s6, v17")
    A("ds_read_b128 v[8:11], v17")
    A("v_and_b32 v16, 7, v2")
    A("s_lshl_b32 s6, s34, 3")
    A("v_add_u32 v16, s6, v16")
    A("v_lshrrev_b32 v17, 3, v16")
    A("v_lshlrev_b32 v17, 7, v17")
    A("v_and_b32 v18, 7, v16")
    A("v_lshl_add_u32 v17, v18, 1, v17")
    A(f"v_add_u32 v17, {WS_AT}, v17")
    A("s_waitcnt lgkmcnt(0)")
    for i in range(4):
        A(f"v_and_b32 v{40+i}, 0x7ff, v{8+i}")
        A(f"v_sub_u32 v{40+i}, 2047, v{40+i}")
    for i in range(4):
        A(f"v_mul_u32_u24 v{36+i}, 1280, v{40+i}")
        A(f"v_lshl_add_u32 v{36+i}, v16, 1, v{36+i}")
        A(f"v_add_u32 v18, {WS_L2}, v{36+i}")
        A(f"global_load_ushort v{20+i}, v18, s[32:33]")
        A(f"global_load_ushort v{24+i}, v{36+i}, s[26:27]")
        A(f"v_lshrrev_b32 v18, 3, v{40+i}")
        A("v_mul_u32_u24 v18, 10240, v18")
        A(f"v_and_b32 v19, 7, v{40+i}")
        A("v_lshl_add_u32 v18, v19, 4, v18")
        A("v_add_u32 v18, v18, v17")
        A(f"global_load_ushort v{44+i}, v18, s[32:33]")
    for i in range(4):
        A(f"v_and_b32 v{12+i}, 0xffff0000, v{8+i}")
        A(f"v_ashrrev_i32 v{48+i}, 31, v{12+i}")
    for i in range(4):
        A(f"v_not_b32 v{48+i}, v{48+i}")
        A(f"v_or_b32 v{48+i}, 0x80000000, v{48+i}")
        A(f"v_xor_b32 v{12+i}, v{12+i}, v{48+i}")
        A(f"v_and_b32 v{12+i}, 0xffff0000, v{12+i}")
        A(f"v_mul_f32 v{12+i}, {hex(fbits(-LOG2E))}, v{12+i}")
    for i in range(4):
        A(f"v_exp_f32 v{12+i}, v{12+i}")
    for i in range(4):
        A(f"v_add_f32 v{12+i}, 1.0, v{12+i}")
    for i in range(4):
        A(f"v_rcp_f32 v{12+i}, v{12+i}")
    A("v_cvt_pk_bf16_f32 v48, v12, v13")
    A("v_cvt_pk_bf16_f32 v49, v14, v15")
    A("v_lshlrev_b32 v12, 16, v48")
    A("v_and_b32 v13, 0xffff0000, v48")
    A("v_lshlrev_b32 v14, 16, v49")
    A("v_and_b32 v15, 0xffff0000, v49")
    A("s_waitcnt vmcnt(0)")
    for i in range(4):
        A(f"v_lshlrev_b32 v{24+i}, 16, v{24+i}")
        A(f"v_lshlrev_b32 v{44+i}, 16, v{44+i}")
        A(f"v_lshlrev_b32 v{20+i}, 16, v{20+i}")
    for i in range(4):
        A(f"v_add_f32 v{24+i}, v{24+i}, v{44+i}")
    A("v_cvt_pk_bf16_f32 v48, v24, v25")
    A("v_cvt_pk_bf16_f32 v49, v26, v27")
    A("v_lshlrev_b32 v24, 16, v48")
    A("v_and_b32 v25, 0xffff0000, v48")
    A("v_lshlrev_b32 v26, 16, v49")
    A("v_and_b32 v27, 0xffff0000, v49")
    A("s_branch KC_F2B2")
    A.label("KC_F2HI")
    w2()
    A("s_barrier")
    A("s_cmp_lg_u32 s3, 7")
    A("s_cbranch_scc1 KC_F2B2")
    A("v_lshrrev_b32 v8, 4, v2")
    A("v_lshlrev_b32 v8, 7, v8")
    A("v_and_b32 v9, 15, v2")
    A("v_lshl_add_u32 v8, v9, 2, v8")
    A(f"v_add_u32 v8, {WS_FLAG2}, v8")
    A("s_waitcnt lgkmcnt(0)")
    A("s_mul_i32 s15, s15, 0x85EBCA6B")
    A("s_add_u32 s15, s15, 0x27D4EB2F")
    A("s_mov_b32 s12, 0")
    A(f"s_sleep {KC_FIRST}")
    A.label("KC_POLL")
    for j in range(3):
        A(f"global_load_dword v{10+j}, v8, s[32:33] offset:{512*j} {SC}")
    A("s_waitcnt vmcnt(0)")
    A("v_cmp_ne_u32 vcc, s15, v10")
    A("v_cmp_ne_u32 s[20:21], s15, v11")
    A("v_cmp_ne_u32 s[22:23], s15, v12")
    A("s_or_b64 vcc, vcc, s[20:21]")
    A("s_or_b64 vcc, vcc, s[22:23]")
    A("s_cmp_eq_u64 vcc, 0")
    A("s_cbranch_scc1 KC_F2B2")
    A("s_add_u32 s12, s12, 1")
    A(f"s_cmp_ge_u32 s12, {SPIN_MAX}")
    A("s_cbranch_scc1 KC_F2B2")
    A(f"s_sleep {KC_SLEEP}")
    A("s_branch KC_POLL")
    A.label("KC_F2B2")
    stamp(A, 4)
    A("s_barrier")
    for i in range(3):
        A(f"global_load_dwordx4 {vr(A2+4*i,4)}, v30, s[32:33] offset:{1024*i} {SC}")
    A("v_lshlrev_b32 v28, 4, v2")
    A("s_lshl_b32 s6, s3, 10")
    A("v_add_u32 v29, s6, v28")
    for i in range(3):
        A(f"s_waitcnt vmcnt({2-i})")
        A(f"v_mfma_f32_16x16x32_bf16 v[32:35], {vr(A2+4*i,4)}, {vr(B2+4*i,4)}, v[32:35]")
    stamp(A, 5)
    for i in range(4):
        A(f"v_mov_b32 v{60+i}, v{32+i}")
    for i in range(4):
        A(f"v_permlane32_swap_b32 v{32+i}, v{60+i}")
    for i in range(4):
        A(f"v_add_f32_dpp v{32+i}, v{60+i}, v{32+i} row_shl:8 row_mask:0xf bank_mask:0xf")
    A("ds_write_b128 v29, v[32:35] offset:1024")
    A("s_waitcnt lgkmcnt(0)")
    A("s_barrier")
    A("s_cmp_lg_u32 s3, 0")
    A("s_cbranch_scc1 KC_DONE2")
    for w in range(8):
        A(f"ds_read_b128 {vr(40+4*w,4)}, v28 offset:{1024 + 1024*w}")
    A("s_waitcnt lgkmcnt(0)")
    for st in (16, 8, 4):
        for j in range(st):
            A(f"v_add_f32 v{40+j}, v{40+j}, v{40+st+j}")

    def rnd4(base):
        A(f"v_cvt_pk_bf16_f32 v44, v{base}, v{base+1}")
        A(f"v_cvt_pk_bf16_f32 v45, v{base+2}, v{base+3}")
        A(f"v_lshlrev_b32 v{base}, 16, v44")
        A(f"v_and_b32 v{base+1}, 0xffff0000, v44")
        A(f"v_lshlrev_b32 v{base+2}, 16, v45")
        A(f"v_and_b32 v{base+3}, 0xffff0000, v45")
    rnd4(40)
    for i in range(4):
        A(f"v_mul_f32 v{40+i}, v{40+i}, v{12+i}")
    rnd4(40)
    for i in range(4):
        A(f"v_add_f32 v{40+i}, v{40+i}, v{20+i}")
    rnd4(40)
    for i in range(4):
        A(f"v_add_f32 v{40+i}, v{40+i}, v{24+i}")
    A("v_cvt_pk_bf16_f32 v40, v40, v41")
    A("v_cvt_pk_bf16_f32 v42, v42, v43")
    A("v_and_b32 v16, 15, v2")
    A("v_cmp_gt_u32 vcc, 8, v16")
    A("v_cmp_gt_u32 s[22:23], 2, v5")
    A("s_and_b64 exec, vcc, s[22:23]")
    A("global_store_short v36, v40, s[30:31]")
    A("global_store_short_d16_hi v37, v40, s[30:31]")
    A("global_store_short v38, v42, s[30:31]")
    A("global_store_short_d16_hi v39, v42, s[30:31]")
    A.label("KC_DONE2")
    k_end(A, 3)
    A.label("KC_END")
    A("s_endpgm")


KERNELS9 = [
    ("ka_kernel", ka, 256, 1024, KA_LDS, 128),
    ("k3_kernel", k3, 256, 256, K3_LDS, 96),
    ("kc_kernel", kc, 272, 512, KC_LDS, 104),
]

if __name__ == "__main__":
    if len(sys.argv) > 2 and sys.argv[2] == "stamp":
        STAMP[0] = True
    out = build(KERNELS9)
    open(sys.argv[1], "w").write(out)
    print("wrote", sys.argv[1], len(out), "bytes")
```

```python
import sys, os, struct
sys.path.insert(0, os.path.dirname(os.path.abspath(__file__)))
from asmlib import Asm

NAME = "sequential_preLN__ssm_conv_s4d__moe_arch_mod__prompt"

WS_UT = 0x0000000
WS_KD = 0x0280000
WS_SC = 0x03C0000
WS_AT = 0x0400000
WS_L2 = 0x0680000
WS_RK = 0x0900000
WS_ACT = 0x0910000
WS_SEL = 0x0918000
WS_WGU = 0x0A00000
WS_WD = 0x0E00000
WS_STAMP = 0x1800000
STAMP = [False]
NSTAMP = 12
ST_OPT = [""]


def k_begin(A):
    if STAMP[0]:
        A("s_memrealtime s[94:95]")
        for i in range(NSTAMP):
            A(f"s_mov_b64 s[{60+2*i}:{61+2*i}], 0")
        A("s_memtime s[60:61]")


def stamp(A, i):
    if STAMP[0]:
        A(f"s_memtime s[{60+2*i}:{61+2*i}]")


def k_end(A, kidx):
    if STAMP[0]:
        A(f"s_memtime s[{60+2*(NSTAMP-2)}:{61+2*(NSTAMP-2)}]")
        A("s_waitcnt vmcnt(0) lgkmcnt(0)")
        A("s_memrealtime s[96:97]")
        A(f"s_memtime s[{60+2*(NSTAMP-1)}:{61+2*(NSTAMP-1)}]")
        A("s_mov_b64 exec, -1")
        A("v_lshrrev_b32 v1, 6, v0")
        A("s_lshl_b32 s98, s2, 3")
        A("v_add_u32 v1, s98, v1")
        A("v_lshlrev_b32 v1, 7, v1")
        A(f"v_add_u32 v1, {WS_STAMP + kidx * 0x200000}, v1")
        A("s_waitcnt lgkmcnt(0)")
        A("v_mov_b32 v2, s94")
        A("v_mov_b32 v3, s95")
        A("v_mov_b32 v4, s96")
        A("v_mov_b32 v5, s97")
        A("global_store_dwordx4 v1, v[2:5], s[32:33]")
        for i in range(0, NSTAMP, 2):
            for j in range(4):
                A(f"v_mov_b32 v{2+j}, s{60+2*i+j}")
            A(f"global_store_dwordx4 v1, v[2:5], s[32:33] offset:{16+8*i}")
    A("s_endpgm")


def fbits(x):
    return struct.unpack("<I", struct.pack("<f", x))[0]


LOG2E = 1.4426950408889634
L2E_HI = fbits(LOG2E)
L2E_HI_F = struct.unpack("<f", struct.pack("<I", L2E_HI))[0]
L2E_LO = fbits(LOG2E - L2E_HI_F)
LN2 = fbits(0.6931471805599453)
INV2PI = fbits(0.15915494309189535)
INV640 = fbits(1.0 / 640.0)
EPS = fbits(1e-5)
ONE_LO = 0x00003f80
ONE_HI = 0x3f800000


def vr(a, n):
    return f"v[{a}:{a+n-1}]"


def bf16_round(A, reg):
    A(f"v_cvt_pk_bf16_f32 v{reg}, v{reg}, v{reg}")
    A(f"v_and_b32 v{reg}, 0xffff0000, v{reg}")


def exp_bf16(A, dst, src, t0, t1):
    A(f"v_mul_f32 v{t0}, s90, v{src}")
    A(f"v_fma_f32 v{t1}, v{src}, s90, -v{t0}")
    A(f"v_fma_f32 v{t1}, v{src}, s91, v{t1}")
    A(f"v_exp_f32 v{dst}, v{t0}")
    A(f"v_mul_f32 v{t1}, s92, v{t1}")
    A(f"v_fma_f32 v{dst}, v{dst}, v{t1}, v{dst}")
    bf16_round(A, dst)


def cmul(A, d, a, b):
    A(f"v_pk_mul_f32 {vr(d,2)}, {vr(a,2)}, {vr(b,2)} op_sel:[0,0] op_sel_hi:[0,1]")
    A(f"v_pk_fma_f32 {vr(d,2)}, {vr(a,2)}, {vr(b,2)}, {vr(d,2)} op_sel:[1,1,0] op_sel_hi:[1,0,1] neg_lo:[0,1,0]")


def ln_finish(A, s1, s2, t):
    A(f"v_mul_f32 v{s1}, {INV640}, v{s1}")
    A(f"v_mul_f32 v{s2}, {INV640}, v{s2}")
    A(f"v_fma_f32 v{s2}, -v{s1}, v{s1}, v{s2}")
    A(f"v_max_f32 v{s2}, 0, v{s2}")
    A(f"v_cvt_pk_bf16_f32 v{t}, v{s1}, v{s2}")
    A(f"v_lshlrev_b32 v{s1}, 16, v{t}")
    A(f"v_and_b32 v{s2}, 0xffff0000, v{t}")
    A(f"v_add_f32 v{s2}, {EPS}, v{s2}")
    bf16_round(A, s2)
    A(f"v_sqrt_f32 v{s2}, v{s2}")
    bf16_round(A, s2)
    A(f"v_rcp_f32 v{s2}, v{s2}")


def pair_swizzle(A, dst, src, tmp):
    A(f"s_and_b32 s{dst}, s{src}, 7")
    A(f"s_lshl_b32 s{dst}, s{dst}, 1")
    A(f"s_bfe_u32 s{tmp}, s{src}, 0x10003")
    A(f"s_or_b32 s{dst}, s{dst}, s{tmp}")
    A(f"s_andn2_b32 s{tmp}, s{src}, 15")
    A(f"s_or_b32 s{dst}, s{dst}, s{tmp}")


def wt_role(A, pfx, first_wg, nwaves_per_wg, lds_per_wave, it_lo, it_hi, kidx, opt, stride):
    A.label(f"{pfx}_WTR")
    A("s_load_dwordx4 s[16:19], s[0:1], 72")
    A("s_load_dwordx2 s[20:21], s[0:1], 88")
    A("v_lshrrev_b32 v1, 6, v0")
    A("v_readfirstlane_b32 s3, v1")
    A("v_and_b32 v2, 63, v0")
    if nwaves_per_wg > 0:
        A(f"s_sub_u32 s4, s2, {first_wg}")
        A(f"s_mul_i32 s4, s4, {nwaves_per_wg}")
        A("s_add_u32 s4, s4, s3")
        A(f"s_add_u32 s4, s4, {it_lo}")
    elif nwaves_per_wg == -2:
        A("s_sub_u32 s4, s3, 4")
        A("s_mul_i32 s4, s4, 96")
        A("s_add_u32 s4, s4, s2")
    else:
        A("s_sub_u32 s4, s3, 3")
        A("s_mul_i32 s4, s4, 96")
        A("s_add_u32 s4, s4, s2")
    A(f"s_mul_i32 s5, s3, {lds_per_wave}")
    A("v_lshrrev_b32 v3, 3, v2")
    A("v_and_b32 v4, 7, v2")
    A("v_lshlrev_b32 v4, 4, v4")
    A("v_lshrrev_b32 v5, 4, v2")
    A("v_lshlrev_b32 v5, 3, v5")
    A("v_and_b32 v6, 15, v2")
    A("v_lshrrev_b32 v6, 2, v6")
    A("v_add_u32 v5, v5, v6")
    A("v_lshlrev_b32 v5, 7, v5")
    A("v_and_b32 v6, 3, v2")
    A("v_lshlrev_b32 v7, 3, v6")
    A("v_add_u32 v8, v5, v7")
    A("v_add_u32 v8, s5, v8")
    A("v_add_u32 v9, 4080, v8")
    A("v_cmp_gt_u32 vcc, 2, v6")
    A("v_cndmask_b32 v9, v9, v8, vcc")
    A("v_lshlrev_b32 v10, 4, v2")
    A("v_and_b32 v13, 15, v2")
    A("v_lshrrev_b32 v14, 3, v13")
    A("v_mul_u32_u24 v14, 24576, v14")
    A("v_and_b32 v13, 7, v13")
    A("v_lshlrev_b32 v13, 4, v13")
    A("v_add_u32 v14, v14, v13")
    A("v_lshrrev_b32 v13, 4, v2")
    A("v_lshlrev_b32 v13, 7, v13")
    A("v_add_u32 v14, v14, v13")
    A("v_mul_u32_u24 v50, 3072, v3")
    A("v_add_u32 v50, v50, v4")
    A("v_mul_u32_u24 v51, 1280, v3")
    A("v_add_u32 v51, v51, v4")
    A("s_waitcnt lgkmcnt(0)")
    A("s_mov_b32 s6, s4")
    A(f"s_cmp_ge_u32 s6, {it_hi}")
    A(f"s_cbranch_scc1 {pfx}_WT_FIN")
    A.label(f"{pfx}_WT_LOOP")
    A("s_cmp_ge_u32 s6, 480")
    A(f"s_cbranch_scc1 {pfx}_WT_DOWN")
    A("s_mul_hi_u32 s7, s6, 0xccccccd")
    A("s_mul_i32 s8, s7, 20")
    A("s_sub_u32 s8, s6, s8")
    A("s_mul_i32 s9, s8, 98304")
    A("s_lshl_b32 s10, s7, 7")
    A("s_add_u32 s9, s9, s10")
    A("v_add_u32 v11, s9, v50")
    for j in range(4):
        A(f"s_add_u32 s10, s5, {1024*j}")
        A("s_mov_b32 m0, s10")
        A("global_load_lds_dwordx4 v11, s[16:17]")
        A(f"s_add_u32 s10, s5, {4096 + 1024*j}")
        A("s_mov_b32 m0, s10")
        A("global_load_lds_dwordx4 v11, s[18:19]")
        if j < 3:
            A("v_add_u32 v11, 24576, v11")
    A("s_mul_i32 s9, s7, 163840")
    A("s_lshl_b32 s10, s8, 10")
    A("s_add_u32 s9, s9, s10")
    A(f"s_add_u32 s9, s9, {WS_WGU}")
    A("v_add_u32 v12, s9, v10")
    A("s_waitcnt vmcnt(0)")
    for jj in range(8):
        A(f"ds_read_b64_tr_b16 {vr(16+4*jj,2)}, v9 offset:{16*jj}")
        A(f"ds_read_b64_tr_b16 {vr(18+4*jj,2)}, v9 offset:{16*jj + 512}")
    A("s_waitcnt lgkmcnt(0)")
    for jj in range(8):
        A(f"global_store_dwordx4 v12, {vr(16+4*jj,4)}, s[32:33] {opt}")
        if jj < 7:
            A("v_add_u32 v12, 20480, v12")
    A(f"s_branch {pfx}_WT_NEXT")
    A.label(f"{pfx}_WT_DOWN")
    A("s_sub_u32 s11, s6, 480")
    A("s_mul_hi_u32 s7, s11, 0x5555556")
    A("s_mul_i32 s8, s7, 48")
    A("s_sub_u32 s8, s11, s8")
    A("s_mul_i32 s9, s8, 40960")
    A("s_lshl_b32 s10, s7, 7")
    A("s_add_u32 s9, s9, s10")
    A("v_add_u32 v11, s9, v51")
    for j in range(4):
        A(f"s_add_u32 s10, s5, {1024*j}")
        A("s_mov_b32 m0, s10")
        A("global_load_lds_dwordx4 v11, s[20:21]")
        if j < 3:
            A("v_add_u32 v11, 10240, v11")
    A("s_mul_i32 s9, s7, 196608")
    A("s_lshl_b32 s10, s8, 9")
    A("s_add_u32 s9, s9, s10")
    A(f"s_add_u32 s9, s9, {WS_WD}")
    A("v_add_u32 v12, s9, v14")
    A("s_waitcnt vmcnt(0)")
    for jj in range(4):
        A(f"ds_read_b64_tr_b16 {vr(16+4*jj,2)}, v8 offset:{32*jj}")
        A(f"ds_read_b64_tr_b16 {vr(18+4*jj,2)}, v8 offset:{32*jj + 512}")
    A("s_waitcnt lgkmcnt(0)")
    for jj in range(4):
        A(f"global_store_dwordx4 v12, {vr(16+4*jj,4)}, s[32:33] {opt}")
        if jj < 3:
            A("v_add_u32 v12, 49152, v12")
    A.label(f"{pfx}_WT_NEXT")
    A(f"s_add_u32 s6, s6, {stride}")
    A(f"s_cmp_lt_u32 s6, {it_hi}")
    A(f"s_cbranch_scc1 {pfx}_WT_LOOP")
    A.label(f"{pfx}_WT_FIN")
    if PF_X[0] and pfx == "K2":
        A("s_load_dwordx2 s[26:27], s[0:1], 0")
        A("s_sub_u32 s4, s2, 160")
        A("s_lshr_b32 s4, s4, 3")
        A("s_and_b32 s5, s2, 7")
        A("v_lshlrev_b32 v3, 4, v0")
        A("s_waitcnt lgkmcnt(0)")
        for j in range(3):
            A(f"s_add_u32 s6, s4, {12*j}")
            A("s_cmp_ge_u32 s6, 32")
            A(f"s_cbranch_scc1 K2_PFX_END")
            A("s_lshl_b32 s6, s6, 3")
            A("s_add_u32 s6, s6, s5")
            A("s_mul_i32 s6, s6, 10240")
            A("v_add_u32 v4, s6, v3")
            A("global_load_dwordx4 v[8:11], v4, s[26:27]")
            A("v_add_u32 v4, 4096, v4")
            A("global_load_dwordx4 v[8:11], v4, s[26:27]")
            A("v_min_u32 v5, 2032, v3")
            A("v_add_u32 v4, s6, v5")
            A("v_add_u32 v4, 8192, v4")
            A("global_load_dwordx4 v[8:11], v4, s[26:27]")
        A.label("K2_PFX_END")
    k_end(A, kidx)


K1_ROWB = 288
K1_BUF = 16 * K1_ROWB
K1_LDS = 3 * 2 * K1_BUF
K1_WT, K1_KG, K1_LN = 0, 640, 256
WT_OPT = [""]
CODE_PF = [0]
K3_PREFILL = [False]
PF_WD = [int(os.environ.get('PF_WD', '0'))]
PF_X = [int(os.environ.get('PF_X', '0'))]


def cmul_batch(A, items):
    for d, a, b in items:
        A(f"v_pk_mul_f32 {vr(d,2)}, {vr(a,2)}, {vr(b,2)} op_sel:[0,0] op_sel_hi:[0,1]")
    for d, a, b in items:
        A(f"v_pk_fma_f32 {vr(d,2)}, {vr(a,2)}, {vr(b,2)}, {vr(d,2)} op_sel:[1,1,0] op_sel_hi:[1,0,1] neg_lo:[0,1,0]")


def k1(A):
    A(f"s_cmp_ge_u32 s2, {K1_WT + K1_KG + K1_LN}")
    A("s_cbranch_scc1 K1_END")
    k_begin(A)
    A("s_load_dwordx2 s[32:33], s[0:1], 112")
    A("s_load_dwordx16 s[16:31], s[0:1], 0")
    A(f"s_cmp_ge_u32 s2, {K1_WT + K1_KG}")
    A("s_cbranch_scc1 K1_LN")
    A(f"s_sub_u32 s35, s2, {K1_WT}")
    A("s_and_b32 s4, s35, 7")
    A("s_lshl_b32 s4, s4, 3")
    A("s_bfe_u32 s5, s35, 0x10005")
    A("s_lshl_b32 s5, s5, 2")
    A("s_or_b32 s4, s4, s5")
    A("s_lshr_b32 s5, s35, 6")
    A("s_lshl_b32 s5, s5, 6")
    A("s_or_b32 s4, s4, s5")
    A("s_bfe_u32 s5, s35, 0x20003")
    A("s_or_b32 s34, s4, s5")
    A("v_lshrrev_b32 v1, 6, v0")
    A("v_readfirstlane_b32 s3, v1")
    A("v_and_b32 v2, 63, v0")
    A(f"s_mov_b32 s90, {L2E_HI}")
    A(f"s_mov_b32 s91, {L2E_LO}")
    A(f"s_mov_b32 s92, {LN2}")
    A("s_mul_i32 s4, s34, 384")
    A("s_lshr_b32 s5, s34, 1")
    A("s_lshl_b32 s5, s5, 2")
    A("v_lshlrev_b32 v1, 1, v0")
    A("v_add_u32 v1, s4, v1")
    A("v_lshlrev_b32 v3, 1, v2")
    A("v_add_u32 v3, s4, v3")
    A("s_waitcnt lgkmcnt(0)")
    A("s_load_dword s6, s[26:27], s5")
    A("global_load_ushort v10, v1, s[18:19]")
    A("global_load_ushort v11, v1, s[20:21]")
    A("global_load_ushort v12, v1, s[22:23]")
    A("global_load_ushort v13, v1, s[24:25]")
    for i in range(3):
        A(f"global_load_ushort v{14+i}, v3, s[22:23] offset:{128*i}")
        A(f"global_load_ushort v{17+i}, v3, s[24:25] offset:{128*i}")
    A("v_and_b32 v3, 15, v2")
    A("v_lshrrev_b32 v4, 4, v2")
    A("s_cmp_eq_u32 s3, 1")
    A("s_cbranch_scc1 K1_A1")
    A("s_cmp_eq_u32 s3, 2")
    A("s_cbranch_scc1 K1_A2")
    A("v_lshrrev_b32 v5, 1, v4")
    A("v_lshlrev_b32 v5, 7, v5")
    A("v_lshl_add_u32 v5, v3, 3, v5")
    A("v_and_b32 v6, 1, v4")
    A("v_lshl_add_u32 v5, v6, 2, v5")
    A("s_branch K1_A3")
    A.label("K1_A1")
    A("v_lshlrev_b32 v5, 1, v3")
    A("v_add_u32 v5, v5, v4")
    A("v_add_u32 v5, 384, v5")
    A("v_lshlrev_b32 v6, 4, v4")
    A("v_add_u32 v6, v6, v3")
    A("v_add_u32 v6, 480, v6")
    A("v_cmp_gt_u32 vcc, 2, v4")
    A("v_cndmask_b32 v5, v6, v5, vcc")
    A("s_branch K1_A3")
    A.label("K1_A2")
    A("v_lshlrev_b32 v5, 6, v4")
    A("v_lshlrev_b32 v6, 2, v3")
    A("v_add_u32 v5, v5, v6")
    A("v_add_u32 v5, 256, v5")
    A("v_lshlrev_b32 v6, 2, v2")
    A("v_add_u32 v6, 520, v6")
    A("v_cmp_gt_u32 vcc, 2, v4")
    A("v_cndmask_b32 v5, v6, v5, vcc")
    A("v_mov_b32 v6, 640")
    A("v_cmp_eq_u32 vcc, 32, v2")
    A("v_cndmask_b32 v5, v5, v6, vcc")
    A.label("K1_A3")
    A("s_lshl_b32 s11, s34, 11")
    A(f"s_add_u32 s11, s11, {WS_KD}")
    A("v_lshlrev_b32 v29, 1, v5")
    A("v_add_u32 v29, s11, v29")
    A(f"s_mul_i32 s7, s3, {2*K1_BUF}")
    A(f"v_mul_u32_u24 v32, {K1_ROWB}, v3")
    A("v_lshlrev_b32 v5, 4, v4")
    A("v_add_u32 v32, v32, v5")
    A("v_add_u32 v32, s7, v32")
    AW = 120
    A("v_lshlrev_b32 v5, 2, v2")
    A(f"v_add_u32 v{AW}, s7, v5")
    for k in range(1, 8):
        A(f"v_add_u32 v{AW+k}, {(k//4)*K1_BUF + (k%4)*4*K1_ROWB}, v{AW}")
    stamp(A, 1)
    A("s_waitcnt lgkmcnt(0)")
    A("s_bitcmp1_b32 s34, 0")
    A("s_cbranch_scc1 K1_ODD")
    A("s_lshl_b32 s6, s6, 16")
    A.label("K1_ODD")
    A("s_and_b32 s6, s6, 0xffff0000")
    A("v_mov_b32 v5, s6")
    exp_bf16(A, 33, 5, 6, 7)
    A("s_waitcnt vmcnt(0)")
    stamp(A, 2)
    for i in range(6):
        A(f"v_and_b32 v{14+i}, 0x7fff, v{14+i}")
    A("v_max3_u32 v14, v14, v15, v16")
    A("v_max3_u32 v17, v17, v18, v19")
    A("v_max_u32 v14, v14, v17")
    A("v_lshlrev_b32 v10, 16, v10")
    A("v_lshlrev_b32 v11, 16, v11")
    A("v_mul_f32 v6, s90, v10")
    A("v_max_u32_dpp v14, v14, v14 row_shr:1 row_mask:0xf bank_mask:0xf")
    A("v_fma_f32 v7, v10, s90, -v6")
    A("v_exp_f32 v34, v6")
    A("v_max_u32_dpp v14, v14, v14 row_shr:2 row_mask:0xf bank_mask:0xf")
    A("v_fma_f32 v7, v10, s91, v7")
    A("v_mul_f32 v35, v11, v33")
    A("v_max_u32_dpp v14, v14, v14 row_shr:4 row_mask:0xf bank_mask:0xf")
    A("v_mul_f32 v7, s92, v7")
    A(f"v_mul_f32 v35, {INV2PI}, v35")
    A("v_max_u32_dpp v14, v14, v14 row_shr:8 row_mask:0xf bank_mask:0xf")
    A("v_fma_f32 v34, v34, v7, v34")
    A("v_lshlrev_b32 v12, 16, v12")
    A("v_max_u32_dpp v14, v14, v14 row_bcast:15 row_mask:0xa bank_mask:0xf")
    A("v_cvt_pk_bf16_f32 v34, v34, v34")
    A("v_lshlrev_b32 v13, 16, v13")
    A("v_max_u32_dpp v14, v14, v14 row_bcast:31 row_mask:0xc bank_mask:0xf")
    A("v_and_b32 v34, 0xffff0000, v34")
    A("v_mul_f32 v34, v34, v33")
    A("v_readlane_b32 s8, v14, 63")
    A("v_mul_f32 v34, s90, v34")
    A("v_sub_f32 v34, 0, v34")
    A("s_lshr_b32 s8, s8, 7")
    A("s_max_u32 s8, s8, 6")
    A("s_min_u32 s8, s8, 253")
    A("s_sub_u32 s9, 260, s8")
    A("s_lshl_b32 s9, s9, 23")
    A("s_sub_u32 s10, s8, 132")

    def direct(t, p):
        lit = "1.0" if p == 1 else hex(fbits(float(p)))
        A(f"v_mul_f32 v{t}, {lit}, v34")
        A(f"v_mul_f32 v{t+1}, {lit}, v35")
        A(f"v_fract_f32 v{t+1}, v{t+1}")

    def direct2(t):
        A(f"v_exp_f32 v{t}, v{t}")
        A(f"v_cos_f32 v{t+2}, v{t+1}")
        A(f"v_sin_f32 v{t+3}, v{t+1}")

    def direct_fin(d, t):
        A(f"v_mul_f32 v{d}, v{t}, v{t+2}")
        A(f"v_mul_f32 v{d+1}, v{t}, v{t+3}")

    C = 36
    g = {i: 38 + 2 * (i - 1) for i in range(1, 9)}
    G128, G256, G512, G1024 = 54, 56, 58, 60
    T = [62, 64, 66, 68, 70, 72, 74, 76]
    PK = list(range(78, 86))
    BF, AF = 86, 102
    h = {1: g[8]}
    for i in range(2, 9):
        h[i] = AF + 2 * (i - 2)
    AF2 = 4
    ACC = [20, 24, 118 - 94]
    ACC = [20, 24, 28 - 0]
    ACC = [20, 24, 114 + 0]
    ACC = [20, 24, 0]
    ACC = [20, 24, 4]
    AF2 = 62

    direct(62, 1)
    direct(66, 8)
    direct(70, 128)
    direct2(62)
    direct2(66)
    direct2(70)
    A(f"v_mul_f32 v{C}, s9, v12")
    A(f"v_mul_f32 v{C+1}, s9, v13")
    A("v_ldexp_f32 v6, v33, s10")
    A("s_lshl_b32 s11, s34, 2")
    A(f"s_add_u32 s11, s11, {WS_SC}")
    A("v_mov_b32 v7, s11")
    A("global_store_dword v7, v6, s[32:33]")
    direct_fin(g[1], 62)
    direct_fin(g[8], 66)
    direct_fin(G128, 70)
    stamp(A, 3)

    def wr(rows_src, buf, neg):
        regs = []
        for k, (row, src) in enumerate(rows_src):
            p = PK[k % 8]
            if src is None:
                A(f"v_mov_b32 v{p}, 0x00003c00")
            else:
                A(f"v_cvt_pk_f16_f32 v{p}, v{src}, {'-' if neg else ''}v{src+1}")
            regs.append(p)
        k = 0
        n = 0
        while k < len(rows_src):
            r0 = rows_src[k][0]
            if k + 1 < len(rows_src) and rows_src[k + 1][0] // 4 == r0 // 4:
                r1 = rows_src[k + 1][0]
                A(f"ds_write2_b32 v{AW + 4*buf + r0//4}, v{regs[k]}, v{regs[k+1]} offset0:{(r0%4)*72} offset1:{(r1%4)*72}")
                k += 2
            else:
                A(f"ds_write_b32 v{AW + 4*buf + r0//4}, v{regs[k]} offset:{(r0%4)*K1_ROWB}")
                k += 1
            n += 1
        return n

    def frags(dst, buf):
        for j in range(4):
            A(f"ds_read_b128 {vr(dst+4*j,4)}, v32 offset:{buf*K1_BUF + 64*j}")

    def mfmas(acc, a, b):
        for j in range(4):
            A(f"v_mfma_f32_16x16x32_f16 {vr(acc,4)}, {vr(a+4*j,4)}, {vr(b+4*j,4)}, {vr(acc,4)}")

    cmul_batch(A, [(g[2], g[1], g[1]), (h[2], h[1], h[1]), (G256, G128, G128)])
    cmul_batch(A, [(g[3], g[2], g[1]), (g[4], g[2], g[2]), (h[3], h[2], h[1]), (h[4], h[2], h[2]), (G512, G256, G256)])
    cmul_batch(A, [(g[5], g[4], g[1]), (g[6], g[4], g[2]), (g[7], g[4], g[3]), (h[5], h[4], h[1]), (h[6], h[4], h[2]),
                   (h[7], h[4], h[3]), (h[8], h[4], h[4]), (G1024, G512, G512)])
    for i in range(4):
        A(f"v_mov_b32 v{20+i}, 0")
        A(f"v_mov_b32 v{24+i}, 0")
        A(f"v_mov_b32 v{4+i}, 0")
    wr([(0, None)] + [(i, h[i]) for i in range(1, 8)], 0, False)
    cmul_batch(A, [(T[i - 1], h[8], h[i]) for i in range(1, 8)])
    wr([(8, h[8])] + [(8 + i, T[i - 1]) for i in range(1, 8)], 0, False)
    frags(BF, 0)
    stamp(A, 4)
    c128 = T[7]
    cmul_batch(A, [(T[i - 1], C, g[i]) for i in range(1, 8)] + [(c128, C, G128)])
    wr([(0, C)] + [(i, T[i - 1]) for i in range(1, 8)], 1, True)
    cmul_batch(A, [(T[i - 1], c128, g[i]) for i in range(1, 8)])
    wr([(8, c128)] + [(8 + i, T[i - 1]) for i in range(1, 8)], 1, True)
    frags(AF, 1)
    cmul_batch(A, [(T[0], C, G512), (T[4], C, G1024)])
    cmul_batch(A, [(T[1], T[0], G128), (T[2], T[0], G256), (T[5], T[4], G256), (T[6], T[4], G512)])
    cmul_batch(A, [(T[3], T[2], G128), (T[7], T[6], G256)])
    n1 = wr([(i, T[i]) for i in range(4)] + [(8 + i, T[4 + i]) for i in range(4)], 0, True)
    c2048 = g[1]
    cmul_batch(A, [(c2048, T[4], G1024)])
    cmul_batch(A, [(T[i], T[i], g[4]) for i in range(0)])
    D4 = [g[3], g[5], g[7], g[8]]
    cmul_batch(A, [(D4[i], T[i], g[4]) for i in range(4)])
    A("s_waitcnt lgkmcnt(%d)" % n1)
    mfmas(20, AF, BF)
    cmul_batch(A, [(T[i], T[4 + i], G128) for i in range(4)])
    wr([(4 + i, D4[i]) for i in range(4)] + [(12 + i, T[i]) for i in range(4)], 0, True)
    frags(AF, 0)
    stamp(A, 5)
    cmul_batch(A, [(T[0], C, G256)])
    cmul_batch(A, [(T[4], T[0], G128), (T[1], T[0], g[2]), (T[2], T[0], g[4]), (T[3], T[0], g[6])])
    cmul_batch(A, [(T[5], T[4], g[2]), (T[6], T[4], g[4]), (T[7], T[4], g[6])])
    n2 = wr([(i, T[i]) for i in range(8)], 1, True)
    n2 += wr([(8, c2048)], 1, True)
    A("s_waitcnt lgkmcnt(%d)" % n2)
    mfmas(24, AF, BF)
    frags(AF2, 1)
    A("s_waitcnt lgkmcnt(0)")
    mfmas(4, AF2, BF)
    A("v_lshlrev_b32 v28, 4, v2")
    A("v_add_u32 v30, s7, v28")
    for t, r in enumerate((20, 24, 4)):
        A(f"ds_write_b128 v30, {vr(r,4)} offset:{1024*t}")
    stamp(A, 6)
    A("s_lshl_b32 s11, s3, 10")
    A("v_add_u32 v28, s11, v28")
    A("s_waitcnt lgkmcnt(0)")
    A("s_barrier")
    stamp(A, 7)
    for w in range(3):
        A(f"ds_read_b128 {vr(40+4*w,4)}, v28 offset:{2*K1_BUF*w}")
    A("s_waitcnt lgkmcnt(0)")
    for i in range(4):
        A(f"v_add_f32 v{40+i}, v{40+i}, v{44+i}")
    for i in range(4):
        A(f"v_add_f32 v{40+i}, v{40+i}, v{48+i}")
    A("v_cvt_pk_f16_f32 v40, v40, v41")
    A("v_cvt_pk_f16_f32 v41, v42, v43")
    A("s_cmp_eq_u32 s3, 1")
    A("s_cbranch_scc1 K1_S1")
    A("global_store_dwordx2 v29, v[40:41], s[32:33]")
    k_end(A, 0)
    A.label("K1_S1")
    A("global_store_short v29, v40, s[32:33]")
    A("global_store_short_d16_hi v29, v40, s[32:33] offset:64")
    A("global_store_short v29, v41, s[32:33] offset:128")
    A("global_store_short_d16_hi v29, v41, s[32:33] offset:192")
    k_end(A, 0)

    A.label("K1_LN")
    if CODE_PF[0]:
        A(f"s_cmp_ge_u32 s2, {K1_WT + K1_KG + 16}")
        A("s_cbranch_scc1 K1_NOPF")
        A("s_getpc_b64 s[40:41]")
        A.label("K1_PC")
        A("s_add_u32 s40, s40, k2_kernel-K1_PC")
        A("s_addc_u32 s41, s41, 0")
        A("v_lshlrev_b32 v90, 4, v0")
        for i in range(CODE_PF[0]):
            A(f"global_load_dwordx4 v[92:95], v90, s[40:41]")
            A("v_add_u32 v90, 3072, v90")
        A.label("K1_NOPF")
    A("v_lshrrev_b32 v1, 6, v0")
    A("v_readfirstlane_b32 s3, v1")
    A(f"s_sub_u32 s5, s2, {K1_WT + K1_KG}")
    pair_swizzle(A, 4, 5, 6)
    A("s_mul_i32 s5, s4, 10240")
    A("v_min_u32 v2, 159, v0")
    A("v_lshlrev_b32 v3, 3, v2")
    A("v_add_u32 v3, s5, v3")
    A("v_add_u32 v4, 5120, v3")
    A("v_lshrrev_b32 v5, 4, v0")
    A("v_mul_u32_u24 v6, 1280, v5")
    A("v_and_b32 v7, 15, v0")
    A("v_lshlrev_b32 v7, 4, v7")
    A("v_add_u32 v6, v6, v7")
    A("v_add_u32 v6, s5, v6")
    A("s_waitcnt lgkmcnt(0)")
    A("s_cmp_eq_u32 s3, 2")
    A("s_cbranch_scc1 K1_LNB")
    for i in range(5):
        A(f"global_load_dwordx4 {vr(8+4*i,4)}, v6, s[16:17] offset:{256*i}")
    A.label("K1_LNB")
    for r in range(8):
        A(f"global_load_dwordx2 {vr(40+2*r,2)}, v{3 if r < 4 else 4}, s[16:17] offset:{1280*(r%4)}")
    A(f"v_mov_b32 v34, {ONE_LO}")
    A(f"v_mov_b32 v35, {ONE_HI}")
    A("s_cmp_eq_u32 s3, 2")
    A("s_cbranch_scc1 K1_LNBAR")
    A("v_mov_b32 v30, 0")
    A("v_mov_b32 v31, 0")
    A("v_mov_b32 v36, 0")
    A("v_mov_b32 v37, 0")
    A("v_mov_b32 v32, 0x3f803f80")
    A("s_waitcnt vmcnt(8)")
    for i in range(0, 20, 2):
        A(f"v_dot2c_f32_bf16 v30, v{8+i}, v32")
        A(f"v_dot2c_f32_bf16 v31, v{8+i}, v{8+i}")
        A(f"v_dot2c_f32_bf16 v36, v{9+i}, v32")
        A(f"v_dot2c_f32_bf16 v37, v{9+i}, v{9+i}")
    A("s_nop 2")
    A("v_add_f32 v30, v30, v36")
    A("v_add_f32 v31, v31, v37")
    for sh in (8, 4, 2, 1):
        A(f"v_add_f32_dpp v30, v30, v30 row_ror:{sh} row_mask:0xf bank_mask:0xf")
        A(f"v_add_f32_dpp v31, v31, v31 row_ror:{sh} row_mask:0xf bank_mask:0xf")
    ln_finish(A, 30, 31, 33)
    A("v_sub_f32 v30, 0, v30")
    A("v_lshlrev_b32 v5, 3, v5")
    A("ds_write_b64 v5, v[30:31]")
    A.label("K1_LNBAR")
    stamp(A, 2)
    A("s_waitcnt lgkmcnt(0)")
    A("s_barrier")
    stamp(A, 3)
    A("v_mov_b32 v5, 0")
    for i in range(4):
        A(f"ds_read_b128 {vr(8+4*i,4)}, v5 offset:{16*i}")
    A("v_lshlrev_b32 v3, 14, v2")
    A("s_lshl_b32 s5, s4, 6")
    A("v_add_u32 v3, s5, v3")
    A("s_waitcnt vmcnt(0) lgkmcnt(0)")
    for rp in range(4):
        r0, r1 = 2 * rp, 2 * rp + 1
        tt = [76 + 3 * ch for ch in range(4)]
        for ch in range(4):
            a, b = 40 + 2 * r0 + (ch >> 1), 40 + 2 * r1 + (ch >> 1)
            one = 34 + (ch & 1)
            A(f"v_dot2_f32_bf16 v{tt[ch]}, v{a}, v{one}, v{8+2*r0}")
            A(f"v_dot2_f32_bf16 v{tt[ch]+1}, v{b}, v{one}, v{8+2*r1}")
        for ch in range(4):
            A(f"v_cvt_pk_bf16_f32 v{tt[ch]+2}, v{tt[ch]}, v{tt[ch]+1}")
        for ch in range(4):
            A(f"v_lshlrev_b32 v{tt[ch]}, 16, v{tt[ch]+2}")
            A(f"v_and_b32 v{tt[ch]+1}, 0xffff0000, v{tt[ch]+2}")
        for ch in range(4):
            A(f"v_mul_f32 v{tt[ch]}, v{tt[ch]}, v{9+2*r0}")
            A(f"v_mul_f32 v{tt[ch]+1}, v{tt[ch]+1}, v{9+2*r1}")
        for ch in range(4):
            A(f"v_cvt_pk_bf16_f32 v{tt[ch]+2}, v{tt[ch]}, v{tt[ch]+1}")
        for ch in range(4):
            A(f"v_lshlrev_b32 v{tt[ch]}, 16, v{tt[ch]+2}")
            A(f"v_and_b32 v{tt[ch]+1}, 0xffff0000, v{tt[ch]+2}")
        for ch in range(4):
            A(f"v_cvt_pk_f16_f32 v{60+4*ch+rp}, v{tt[ch]}, v{tt[ch]+1}")
    stamp(A, 4)
    for ch in range(4):
        A(f"global_store_dwordx4 v3, {vr(60+4*ch,4)}, s[32:33] offset:{16*ch} {ST_OPT[0]}")
    k_end(A, 0)

    A.label("K1_END")
    A("s_endpgm")


K2_KE, K2_KO, K2_U, K2_T = 0, 4160, 8320, 12928
K2_WB = 15168
K2_LDS = 4 * K2_WB
K2_NWT = 96
K2_WT_RANGE = [0, 960]


def k2(A):
    A(f"s_cmp_ge_u32 s2, {160 + K2_NWT}")
    A("s_cbranch_scc1 K2_END")
    k_begin(A)
    A("s_load_dwordx2 s[32:33], s[0:1], 112")
    A("s_load_dwordx2 s[28:29], s[0:1], 48")
    A("s_cmp_ge_u32 s2, 160")
    A("s_cbranch_scc1 K2_WTR")
    pair_swizzle(A, 35, 2, 6)
    A("v_lshrrev_b32 v1, 6, v0")
    A("v_readfirstlane_b32 s3, v1")
    A("v_and_b32 v2, 63, v0")
    A("s_lshl_b32 s4, s35, 2")
    A("s_add_u32 s4, s4, s3")
    A(f"s_mul_i32 s5, s3, {K2_WB}")
    A("s_lshl_b32 s6, s4, 11")
    A(f"s_add_u32 s6, s6, {WS_KD}")
    A("s_lshl_b32 s7, s35, 14")
    A("s_lshl_b32 s8, s3, 4")
    A("s_add_u32 s7, s7, s8")
    A("v_lshlrev_b32 v3, 4, v2")
    A("v_add_u32 v3, s6, v3")
    A("v_lshlrev_b32 v5, 6, v2")
    A("v_add_u32 v5, s7, v5")
    A("s_lshl_b32 s9, s4, 2")
    A(f"s_add_u32 s9, s9, {WS_SC}")
    A("s_lshr_b32 s14, s4, 1")
    A("s_lshl_b32 s14, s14, 2")
    A(f"s_add_u32 s12, s5, {K2_T}")
    A("s_mov_b32 m0, s12")
    A("s_waitcnt lgkmcnt(0)")
    stamp(A, 1)
    A("global_load_lds_dwordx4 v3, s[32:33]")
    A("global_load_lds_dwordx4 v3, s[32:33] offset:1024")
    for j in range(4):
        A(f"s_add_u32 s12, s5, {K2_U + 512 + 1024*j}")
        A("s_mov_b32 m0, s12")
        if j:
            A("v_add_u32 v5, 4096, v5")
        A("global_load_lds_dwordx4 v5, s[32:33]")
    A("s_load_dword s10, s[32:33], s9")
    A("s_load_dword s11, s[28:29], s14")
    A("v_and_b32 v6, 15, v2")
    A("v_lshrrev_b32 v7, 4, v2")
    A("v_lshrrev_b32 v8, 1, v7")
    A("v_and_b32 v9, 1, v7")
    A("v_mov_b32 v12, 0")
    A("v_mov_b32 v13, 0")
    A("v_lshlrev_b32 v14, 3, v2")
    A("v_add_u32 v14, s5, v14")
    A(f"ds_write_b64 v14, v[12:13] offset:{K2_U}")
    A("v_lshlrev_b32 v14, 2, v6")
    A("v_add_u32 v14, s5, v14")
    A(f"ds_write_b32 v14, v12 offset:{K2_KE + 4096}")
    A(f"ds_write_b32 v14, v12 offset:{K2_KO + 4096}")
    A("v_sub_u32 v14, 2047, v6")
    A("v_lshlrev_b32 v15, 4, v8")
    A("v_sub_u32 v14, v14, v15")
    A("v_lshlrev_b32 v15, 3, v9")
    A("v_add_u32 v14, v14, v15")
    A("v_lshlrev_b32 v14, 1, v14")
    A(f"v_add_u32 v15, {K2_KO - 2}, v14")
    A("v_and_b32 v16, 1, v6")
    A("v_cmp_eq_u32 vcc, 1, v16")
    A("v_cndmask_b32 v14, v15, v14, vcc")
    A("v_add_u32 v14, s5, v14")
    AB = [20, 21, 22, 23]
    for p in range(4):
        A(f"v_subrev_u32 v{AB[p]}, {512*(2*p+1) + 448}, v14")
    A("v_lshlrev_b32 v15, 5, v6")
    A("v_lshlrev_b32 v16, 5, v8")
    A("v_sub_u32 v15, v15, v16")
    A("v_lshlrev_b32 v16, 4, v9")
    A("v_add_u32 v15, v15, v16")
    A(f"v_add_u32 v15, {K2_U + 512 - 448}, v15")
    BB = 24
    A(f"v_add_u32 v{BB}, s5, v15")
    A("v_lshlrev_b32 v15, 5, v6")
    A("v_lshlrev_b32 v16, 3, v7")
    A("v_add_u32 v15, v15, v16")
    A("v_add_u32 v25, s5, v15")
    A("v_lshlrev_b32 v26, 1, v2")
    A(f"v_sub_u32 v26, {K2_T + 2*(384+255)}, v26")
    A("v_add_u32 v26, s5, v26")
    A("v_lshlrev_b32 v27, 2, v2")
    A(f"v_sub_u32 v27, {K2_T + 512 + 4*127}, v27")
    A("v_add_u32 v27, s5, v27")
    A("v_lshlrev_b32 v28, 4, v2")
    A("v_add_u32 v28, s5, v28")
    A("v_lshlrev_b32 v3, 3, v2")
    A("v_sub_u32 v3, 511, v3")
    for k in range(9):
        A(f"v_subrev_u32 v{30+k}, {k}, v3")
    A("v_max_i32 v38, 0, v38")
    for k in range(9):
        A(f"v_cvt_f32_i32 v{40+k}, v{30+k}")
    for k in range(0, 8, 2):
        A(f"v_cvt_pk_bf16_f32 v{50+k}, v{40+k}, v{41+k}")
        A(f"v_lshrrev_b32 v{51+k}, 16, v{50+k}")
        A(f"v_and_b32 v{50+k}, 0xffff, v{50+k}")
    A("v_cvt_pk_bf16_f32 v58, v48, v48")
    A("v_and_b32 v58, 0xffff, v58")
    A(f"s_add_u32 s12, s5, {K2_T}")
    for k in range(9):
        A(f"v_subrev_u32 v{50+k}, 17024, v{50+k}")
        A(f"v_min_i32 v{30+k}, 127, v{30+k}")
        A(f"v_max_i32 v{50+k}, v{50+k}, v{30+k}")
        A(f"v_lshlrev_b32 v{30+k}, 1, v{50+k}")
        A(f"v_add_u32 v{30+k}, s12, v{30+k}")
    A("v_and_b32 v16, 1, v2")
    A("v_cmp_eq_u32 s[20:21], 1, v16")
    A("s_mov_b32 s22, 0x01000100")
    A("s_mov_b32 s23, 0x03020302")
    AF, BF, ACC = 64, 96, 128
    for i in range(32):
        A(f"v_mov_b32 v{ACC+i}, 0")
    A("s_waitcnt vmcnt(4)")
    stamp(A, 2)
    A("v_subrev_u32 v29, 128, v26")
    for r in range(2):
        w = 40 + 8 * r
        A(f"ds_read_u16 v{w}, v{26 if r == 0 else 29}")
        A(f"ds_read_u16 v{w+1}, v{26 if r == 0 else 29} offset:2")
    A("ds_read_b32 v56, v27")
    A("ds_read_u16 v57, v27 offset:4")
    for k in range(9):
        A(f"ds_read_u16 v{100+k}, v{30+k}")
    A("s_waitcnt lgkmcnt(0)")
    for k in range(4):
        A(f"v_lshl_or_b32 v{60+k}, v{101+2*k}, 16, v{100+2*k}")
    A("v_mov_b32 v59, v108")
    for r in range(2):
        w = 40 + 8 * r
        A(f"v_lshl_or_b32 v{w}, v{w+1}, 16, v{w}")
    for r in range(2):
        w = 40 + 8 * r
        A(f"v_perm_b32 v{w+2}, v{w}, v{w}, s23")
        A(f"v_perm_b32 v{w+4}, v{w}, v{w}, s22")
        A(f"v_alignbit_b32 v{w+1}, v{w}, v{w}, 16")
        A(f"v_mov_b32 v{w+5}, v{w+4}")
        A(f"v_mov_b32 v{w+6}, v{w+2}")
        A(f"v_cndmask_b32 v{w+3}, v{w+2}, v{w+1}, s[20:21]")
        A(f"v_cndmask_b32 v{w+7}, v{w+1}, v{w+4}, s[20:21]")
        A(f"ds_write_b64 v28, {vr(w+2,2)} offset:{K2_KE + 1024*r}")
        A(f"ds_write_b64 v28, {vr(w+4,2)} offset:{K2_KE + 1024*r + 8}")
        A(f"ds_write_b64 v28, {vr(w+6,2)} offset:{K2_KO + 1024*r}")
        A(f"ds_write_b64 v28, {vr(w+4,2)} offset:{K2_KO + 1024*r + 8}")
    A("v_perm_b32 v40, v57, v57, s22")
    A("v_perm_b32 v41, v56, v56, s23")
    A("v_alignbit_b32 v42, v56, v56, 16")
    A("v_perm_b32 v43, v56, v56, s22")
    A("s_mov_b32 s24, 0x07060100")
    A("v_perm_b32 v44, v56, v57, s24")
    A("v_mov_b32 v45, v41")
    A("v_mov_b32 v46, v43")
    A("v_mov_b32 v47, v43")
    A(f"ds_write_b128 v28, v[40:43] offset:{K2_KE + 2048}")
    A(f"ds_write_b128 v28, v[44:47] offset:{K2_KO + 2048}")
    A("v_alignbit_b32 v48, v61, v60, 16")
    A("v_alignbit_b32 v49, v62, v61, 16")
    A("v_alignbit_b32 v50, v63, v62, 16")
    A("v_alignbit_b32 v51, v59, v63, 16")
    A(f"ds_write_b128 v28, v[60:63] offset:{K2_KE + 3072}")
    A(f"ds_write_b128 v28, v[48:51] offset:{K2_KO + 3072}")
    A(f"v_mov_b32 v14, s5")
    A(f"ds_write_b16 v14, v12 offset:{K2_KO + 2*2047}")
    A("s_bitcmp1_b32 s4, 0")
    A("s_cbranch_scc1 K2_ODD")
    A("s_lshl_b32 s11, s11, 16")
    A.label("K2_ODD")
    A("s_and_b32 s11, s11, 0xffff0000")

    def loadA(q, i0):
        p = q // 2
        o = (128 if q % 2 == 0 else 0) + 16 * (7 - i0)
        return [f"ds_read2_b32 {vr(AF+4*q,2)}, v{AB[p]} offset0:{o} offset1:{o+1}",
                f"ds_read2_b32 {vr(AF+4*q+2,2)}, v{AB[p]} offset0:{o+2} offset1:{o+3}"]

    def loadB(tau, i0):
        return [f"ds_read_b128 {vr(BF+4*tau,4)}, v{BB} offset:{512*tau + 64*(7-i0)}"]

    A("s_waitcnt vmcnt(0)")
    stamp(A, 3)
    for q in range(8):
        for s in loadB(7 - q, 0):
            A(s)
    for q in range(8):
        for s in loadA(q, 0):
            A(s)
    queue = []
    for q in range(8):
        queue.append(("B", 7 - q))
    for q in range(8):
        queue += [("A", q), ("A", q)]

    pending = []

    def wait_for(tags):
        while any(tg in tags for _, tg in pending):
            s_, tg = pending.pop(0)
            A(s_)
            queue.append(tg)
        last = -1
        for i, t in enumerate(queue):
            if t in tags:
                last = i
        if last >= 0:
            n = len(queue) - 1 - last
            A(f"s_waitcnt lgkmcnt({min(n, 15)})")
            del queue[:last + 1]

    for i0 in range(8):
        for q in range(8):
            for tau in range(7 - q, -1, -1):
                wait_for({("A", q), ("B", tau)})
                t = q + tau
                A(f"v_mfma_f32_16x16x32_f16 {vr(ACC+4*t,4)}, {vr(AF+4*q,4)}, {vr(BF+4*tau,4)}, {vr(ACC+4*t,4)}")
                if i0 < 7:
                    if tau == 7 - q:
                        pending.insert(0, (loadB(7 - q, i0 + 1)[0], ("B", 7 - q)))
                    if tau == 0:
                        for s in loadA(q, i0 + 1):
                            pending.append((s, ("A", q)))
                if pending:
                    s, tag = pending.pop(0)
                    A(s)
                    queue.append(tag)
    assert not pending or True
    stamp(A, 4)
    for t in range(8):
        A(f"ds_read_b64 {vr(64+2*t,2)}, v25 offset:{K2_U + 512 + 512*t}")
    A(f"v_mov_b32 v34, {ONE_LO}")
    A(f"v_mov_b32 v35, {ONE_HI}")
    A("s_mov_b32 s12, s10")
    A("s_mov_b32 s13, s10")
    A("v_mov_b32 v36, s10")
    A("v_mov_b32 v37, s10")
    A("s_waitcnt lgkmcnt(0)")
    for t in range(8):
        a = ACC + 4 * t
        u = 64 + 2 * t
        tm = 40 + 8 * (t & 1)
        A(f"v_pk_mul_f32 {vr(a,2)}, {vr(a,2)}, v[36:37]")
        A(f"v_pk_mul_f32 {vr(a+2,2)}, {vr(a+2,2)}, v[36:37]")
        A(f"v_fma_mix_f32 v{tm}, v{u}, s11, 0 op_sel:[0,0,0] op_sel_hi:[1,0,0]")
        A(f"v_fma_mix_f32 v{tm+1}, v{u}, s11, 0 op_sel:[1,0,0] op_sel_hi:[1,0,0]")
        A(f"v_fma_mix_f32 v{tm+2}, v{u+1}, s11, 0 op_sel:[0,0,0] op_sel_hi:[1,0,0]")
        A(f"v_fma_mix_f32 v{tm+3}, v{u+1}, s11, 0 op_sel:[1,0,0] op_sel_hi:[1,0,0]")
        A(f"v_cvt_pk_bf16_f32 v{a}, v{a}, v{a+1}")
        A(f"v_cvt_pk_bf16_f32 v{a+1}, v{a+2}, v{a+3}")
        A(f"v_cvt_pk_bf16_f32 v{tm+4}, v{tm}, v{tm+1}")
        A(f"v_cvt_pk_bf16_f32 v{tm+5}, v{tm+2}, v{tm+3}")
        A(f"v_lshlrev_b32 v{tm}, 16, v{tm+4}")
        A(f"v_and_b32 v{tm+1}, 0xffff0000, v{tm+4}")
        A(f"v_lshlrev_b32 v{tm+2}, 16, v{tm+5}")
        A(f"v_and_b32 v{tm+3}, 0xffff0000, v{tm+5}")
        A(f"v_dot2_f32_bf16 v{tm}, v{a}, v34, v{tm}")
        A(f"v_dot2_f32_bf16 v{tm+1}, v{a}, v35, v{tm+1}")
        A(f"v_dot2_f32_bf16 v{tm+2}, v{a+1}, v34, v{tm+2}")
        A(f"v_dot2_f32_bf16 v{tm+3}, v{a+1}, v35, v{tm+3}")
        A(f"v_cvt_pk_bf16_f32 v{a+2}, v{tm}, v{tm+1}")
        A(f"v_cvt_pk_bf16_f32 v{a+3}, v{tm+2}, v{tm+3}")
        A(f"ds_write_b64 v25, {vr(a+2,2)} offset:{K2_KE + 512*t}")
    stamp(A, 5)
    A("s_waitcnt lgkmcnt(0)")
    A("s_barrier")
    A("v_lshrrev_b32 v14, 2, v6")
    A(f"v_mul_u32_u24 v14, {K2_WB}, v14")
    A("v_and_b32 v15, 3, v2")
    A("v_lshlrev_b32 v15, 3, v15")
    A("v_add_u32 v14, v14, v15")
    A("v_lshlrev_b32 v15, 5, v7")
    A("v_add_u32 v14, v14, v15")
    A("s_lshl_b32 s12, s3, 10")
    A("v_add_u32 v14, s12, v14")
    for k in range(8):
        A(f"ds_read_b64_tr_b16 {vr(40+2*k,2)}, v14 offset:{K2_KE + 128*k}")
    A("v_lshrrev_b32 v15, 3, v6")
    A("v_lshlrev_b32 v16, 1, v7")
    A("v_add_u32 v15, v15, v16")
    A("v_mul_u32_u24 v15, 10240, v15")
    A("v_and_b32 v16, 7, v6")
    A("v_lshlrev_b32 v16, 4, v16")
    A("v_add_u32 v15, v15, v16")
    A("s_mul_i32 s12, s3, 655360")
    A("s_lshr_b32 s13, s35, 1")
    A("s_lshl_b32 s13, s13, 7")
    A("s_add_u32 s12, s12, s13")
    A("s_and_b32 s13, s35, 1")
    A("s_lshl_b32 s13, s13, 3")
    A("s_add_u32 s12, s12, s13")
    A(f"s_add_u32 s12, s12, {WS_AT}")
    A("v_add_u32 v15, s12, v15")
    A("s_waitcnt lgkmcnt(0)")
    for k in range(8):
        A(f"global_store_dwordx2 v15, {vr(40+2*k,2)}, s[32:33] {ST_OPT[0]}")
        if k < 7:
            A("v_add_u32 v15, 81920, v15")
    k_end(A, 1)

    wt_role(A, "K2", 160, 4, 12288, K2_WT_RANGE[0], K2_WT_RANGE[1], 1, WT_OPT[0], K2_NWT * 4)
    A.label("K2_END")
    A("s_endpgm")


K3_LDS = 0


def k3(A):
    A("s_cmp_ge_u32 s2, 256")
    A("s_cbranch_scc1 K3_END")
    k_begin(A)
    A("s_load_dwordx2 s[32:33], s[0:1], 112")
    A("s_load_dwordx2 s[26:27], s[0:1], 0")
    A("s_load_dwordx2 s[28:29], s[0:1], 64")
    A("s_load_dwordx2 s[30:31], s[0:1], 96")
    A("v_lshrrev_b32 v7, 5, v0")
    A("v_and_b32 v4, 31, v0")
    A("s_mul_i32 s4, s2, 10240")
    A("v_lshlrev_b32 v5, 4, v4")
    A("v_mul_u32_u24 v6, 1280, v7")
    A("v_add_u32 v6, v6, v5")
    A("v_add_u32 v8, s4, v6")
    A("v_lshlrev_b32 v3, 7, v4")
    A("v_lshl_add_u32 v3, v7, 4, v3")
    A(f"s_add_u32 s5, s4, {WS_AT}")
    A("v_add_u32 v3, s5, v3")
    A("v_add_u32 v9, 8192, v3")
    AR, XR, WR = 20, 32, 44
    for i in range(4):
        A(f"v_mov_b32 v{AR+8+i}, 0")
        A(f"v_mov_b32 v{XR+8+i}, 0")
        A(f"v_mov_b32 v{WR+8+i}, 0")
    A("v_cmp_gt_u32 s[20:21], 16, v4")
    A("s_waitcnt lgkmcnt(0)")
    stamp(A, 1)
    A(f"global_load_dwordx4 {vr(AR,4)}, v3, s[32:33]")
    A(f"global_load_dwordx4 {vr(XR,4)}, v8, s[26:27]")
    if K3_PREFILL[0]:
        A("s_mul_i32 s7, s2, 96")
        A(f"s_add_u32 s7, s7, {WS_ACT}")
        A("v_lshlrev_b32 v14, 2, v0")
        A("v_add_u32 v14, s7, v14")
        A("v_mov_b32 v15, -1")
        A("v_cmp_gt_u32 vcc, 24, v0")
        A("s_mov_b64 exec, vcc")
        A("s_cbranch_execz K3_NOPRE")
        A("global_store_dword v14, v15, s[32:33]")
        A.label("K3_NOPRE")
        A("s_mov_b64 exec, -1")
    A(f"global_load_dwordx4 {vr(AR+4,4)}, v3, s[32:33] offset:4095".replace("offset:4095", "offset:0") if False else
      f"global_load_dwordx4 {vr(XR+4,4)}, v8, s[26:27] offset:512")
    A("v_add_u32 v10, 4096, v3")
    A(f"global_load_dwordx4 {vr(AR+4,4)}, v10, s[32:33]")
    A("s_mov_b64 exec, s[20:21]")
    A(f"global_load_dwordx4 {vr(AR+8,4)}, v9, s[32:33]")
    A(f"global_load_dwordx4 {vr(XR+8,4)}, v8, s[26:27] offset:1024")
    A(f"global_load_dwordx4 {vr(WR+8,4)}, v5, s[28:29] offset:1024")
    A("s_mov_b64 exec, -1")
    A(f"global_load_dwordx4 {vr(WR,4)}, v5, s[28:29]")
    A(f"global_load_dwordx4 {vr(WR+4,4)}, v5, s[28:29] offset:512")
    A(f"v_mov_b32 v12, {ONE_LO}")
    A(f"v_mov_b32 v13, {ONE_HI}")
    A("v_mov_b32 v14, 0x3f803f80")
    for r in (10, 11, 16, 17):
        A(f"v_mov_b32 v{r}, 0")
    A(f"v_add_u32 v9, {WS_L2}, v8")
    H = 56
    T = 68
    A("s_waitcnt vmcnt(3)")
    stamp(A, 2)
    N = 12
    for i in range(N):
        A(f"v_lshlrev_b32 v{T+2*i}, 16, v{AR+i}")
        A(f"v_and_b32 v{T+2*i+1}, 0xffff0000, v{AR+i}")
    for i in range(N):
        A(f"v_dot2_f32_bf16 v{T+2*i}, v{XR+i}, v12, v{T+2*i}")
        A(f"v_dot2_f32_bf16 v{T+2*i+1}, v{XR+i}, v13, v{T+2*i+1}")
    for i in range(N):
        A(f"v_cvt_pk_bf16_f32 v{H+i}, v{T+2*i}, v{T+2*i+1}")
    for i in range(0, N, 2):
        A(f"v_dot2c_f32_bf16 v10, v{H+i}, v14")
        A(f"v_dot2c_f32_bf16 v11, v{H+i}, v{H+i}")
        A(f"v_dot2c_f32_bf16 v16, v{H+i+1}, v14")
        A(f"v_dot2c_f32_bf16 v17, v{H+i+1}, v{H+i+1}")
    A("s_nop 2")
    A("v_add_f32 v10, v10, v16")
    A("v_add_f32 v11, v11, v17")

    def red(regs, tmps):
        for sh in (8, 4, 2, 1):
            for r in regs:
                A(f"v_add_f32_dpp v{r}, v{r}, v{r} row_ror:{sh} row_mask:0xf bank_mask:0xf")
        for r, t in zip(regs, tmps):
            A(f"v_mov_b32 v{t}, v{r}")
        for r, t in zip(regs, tmps):
            A(f"v_permlane16_swap_b32 v{r}, v{t}")
        for r, t in zip(regs, tmps):
            A(f"v_add_f32 v{r}, v{r}, v{t}")
    red([10, 11], [16, 17])
    ln_finish(A, 10, 11, 15)
    A("v_sub_f32 v10, 0, v10")
    stamp(A, 3)
    L, O = AR, XR
    for i in range(N):
        A(f"v_dot2_f32_bf16 v{T+2*i}, v{H+i}, v12, v10")
        A(f"v_dot2_f32_bf16 v{T+2*i+1}, v{H+i}, v13, v10")
    for i in range(N):
        A(f"v_cvt_pk_bf16_f32 v{L+i}, v{T+2*i}, v{T+2*i+1}")
    for i in range(N):
        A(f"v_lshlrev_b32 v{T+2*i}, 16, v{L+i}")
        A(f"v_and_b32 v{T+2*i+1}, 0xffff0000, v{L+i}")
    A("v_mov_b32 v16, v11")
    A("v_mov_b32 v17, v11")
    for i in range(N):
        A(f"v_pk_mul_f32 {vr(T+2*i,2)}, {vr(T+2*i,2)}, v[16:17]")
    for i in range(N):
        A(f"v_cvt_pk_bf16_f32 v{L+i}, v{T+2*i}, v{T+2*i+1}")
    m2 = os.environ.get("K3_L2MOD", "")
    A(f"global_store_dwordx4 v9, {vr(L,4)}, s[32:33] {m2}")
    A(f"global_store_dwordx4 v9, {vr(L+4,4)}, s[32:33] offset:512 {m2}")
    A("s_mov_b64 exec, s[20:21]")
    A(f"global_store_dwordx4 v9, {vr(L+8,4)}, s[32:33] offset:1024 {m2}")
    A("s_mov_b64 exec, -1")
    A("v_mov_b32 v14, 0")
    A("v_mov_b32 v15, 0")
    A("s_waitcnt vmcnt(3)")
    for i in range(0, N, 2):
        A(f"v_dot2c_f32_bf16 v14, v{L+i}, v{WR+i}")
        A(f"v_dot2c_f32_bf16 v15, v{L+i+1}, v{WR+i+1}")
    for i in range(N):
        A(f"v_lshlrev_b32 v{T+2*i}, 16, v{L+i}")
        A(f"v_and_b32 v{T+2*i+1}, 0xffff0000, v{L+i}")
    A("v_add_f32 v14, v14, v15")
    for i in range(N):
        A(f"v_dot2_f32_bf16 v{T+2*i}, v{H+i}, v12, v{T+2*i}")
        A(f"v_dot2_f32_bf16 v{T+2*i+1}, v{H+i}, v13, v{T+2*i+1}")
    for i in range(N):
        A(f"v_cvt_pk_bf16_f32 v{O+i}, v{T+2*i}, v{T+2*i+1}")
    stamp(A, 4)
    m3 = os.environ.get("K3_OUTMOD", "")
    A(f"global_store_dwordx4 v8, {vr(O,4)}, s[30:31] {m3}")
    A(f"global_store_dwordx4 v8, {vr(O+4,4)}, s[30:31] offset:512 {m3}")
    A("s_mov_b64 exec, s[20:21]")
    A(f"global_store_dwordx4 v8, {vr(O+8,4)}, s[30:31] offset:1024 {m3}")
    A("s_mov_b64 exec, -1")
    red([14], [15])
    A("v_cvt_pk_bf16_f32 v40, v14, v14")
    A("v_and_b32 v40, 0xffff0000, v40")
    A("v_ashrrev_i32 v41, 31, v40")
    A("v_or_b32 v41, 0x80000000, v41")
    A("v_xor_b32 v40, v40, v41")
    A("v_and_b32 v40, 0xffff0000, v40")
    A("s_lshl_b32 s6, s2, 3")
    A("v_add_u32 v42, s6, v7")
    A("v_sub_u32 v43, 2047, v42")
    A("v_or_b32 v40, v40, v43")
    A("v_lshlrev_b32 v42, 2, v42")
    A(f"v_add_u32 v42, {WS_RK}, v42")
    A("v_cmp_eq_u32 vcc, 0, v4")
    A("s_mov_b64 exec, vcc")
    A("global_store_dword v42, v40, s[32:33]")
    k_end(A, 2)
    A.label("K3_END")
    A("s_endpgm")


K4_LDS = 8192


def k4(A):
    A(f"s_cmp_ge_u32 s2, {192 + (80 if PF_WD[0] else 0)}")
    A("s_cbranch_scc1 K4_END")
    k_begin(A)
    A("s_load_dwordx2 s[32:33], s[0:1], 112")
    if PF_WD[0]:
        A("s_cmp_lt_u32 s2, 192")
        A("s_cbranch_scc1 K4_MAIN")
        A("s_sub_u32 s4, s2, 192")
        A("s_mul_i32 s4, s4, 24576")
        A(f"s_add_u32 s4, s4, {WS_WD}")
        A("v_lshlrev_b32 v3, 4, v0")
        A("v_add_u32 v3, s4, v3")
        A("s_waitcnt lgkmcnt(0)")
        for i in range(6):
            A(f"global_load_dwordx4 v[8:11], v3, s[32:33]")
            A("v_add_u32 v3, 4096, v3")
        k_end(A, 3)
        A.label("K4_MAIN")
    A("v_lshrrev_b32 v1, 6, v0")
    A("v_readfirstlane_b32 s3, v1")
    A("v_and_b32 v2, 63, v0")
    A("s_mul_i32 s4, s2, 20480")
    A("s_mul_i32 s5, s3, 5120")
    A("s_add_u32 s4, s4, s5")
    A(f"s_add_u32 s4, s4, {WS_WGU}")
    A("v_lshlrev_b32 v3, 4, v2")
    A("v_add_u32 v3, s4, v3")
    A("v_add_u32 v5, 4096, v3")
    A("v_lshlrev_b32 v4, 5, v0")
    A(f"v_add_u32 v4, {WS_RK}, v4")
    A("s_waitcnt lgkmcnt(0)")
    A("global_load_dwordx4 v[8:11], v4, s[32:33]")
    A("global_load_dwordx4 v[12:15], v4, s[32:33] offset:16")
    BFR = 40
    stamp(A, 1)
    A("s_waitcnt vmcnt(0)")
    for i in range(4):
        A(f"global_load_dwordx4 {vr(BFR+4*i,4)}, v3, s[32:33] offset:{1024*i}")
    A(f"global_load_dwordx4 {vr(BFR+16,4)}, v5, s[32:33]")
    stamp(A, 2)
    net = [(0, 1), (2, 3), (4, 5), (6, 7), (0, 2), (1, 3), (4, 6), (5, 7), (1, 2), (5, 6), (0, 4), (3, 7), (1, 5), (2, 6),
           (1, 4), (3, 6), (2, 4), (3, 5), (3, 4)]
    reg = list(range(8, 16))
    spare = 16
    for a_, b_ in net:
        A(f"v_max_u32 v{spare}, v{reg[a_]}, v{reg[b_]}")
        A(f"v_min_u32 v{reg[b_]}, v{reg[a_]}, v{reg[b_]}")
        reg[a_], spare = spare, reg[a_]
    steps = [("row_shr:1", "0xf"), ("row_shr:2", "0xf"), ("row_shr:4", "0xf"), ("row_shr:8", "0xf"),
             ("row_bcast:15", "0xa"), ("row_bcast:31", "0xc")]
    for r in range(4):
        A(f"v_mov_b32 v17, v{reg[0]}")
        A(f"v_mov_b32 v18, v{reg[1]}")
        for ctl, mask in steps:
            bc = " bound_ctrl:0" if ctl.startswith("row_shr") else ""
            A(f"v_min_u32_dpp v19, v17, v17 {ctl} row_mask:{mask} bank_mask:0xf{bc}")
            A(f"v_max_u32_dpp v17, v17, v17 {ctl} row_mask:{mask} bank_mask:0xf{bc}")
            A(f"v_max_u32_dpp v20, v18, v18 {ctl} row_mask:{mask} bank_mask:0xf{bc}")
            A("v_max_u32 v18, v19, v20")
        A(f"v_readlane_b32 s{40+2*r}, v17, 63")
        A(f"v_readlane_b32 s{41+2*r}, v18, 63")
        if r < 3:
            left = 8 - 2 * r
            for wsel in (40 + 2 * r, 41 + 2 * r):
                A(f"v_cmp_eq_u32 vcc, s{wsel}, v{reg[0]}")
                left -= 1
                for k in range(left):
                    A(f"v_cndmask_b32 v{reg[k]}, v{reg[k]}, v{reg[k+1]}, vcc")
    stamp(A, 3)
    A("v_mov_b32 v16, s40")
    for r in range(1, 8):
        A(f"v_writelane_b32 v16, s{40+r}, {r}")
    A("s_lshl_b32 s6, s3, 5")
    A("v_lshlrev_b32 v17, 2, v2")
    A("v_add_u32 v17, s6, v17")
    A("v_cmp_gt_u32 vcc, 8, v2")
    A("s_and_saveexec_b64 s[20:21], vcc")
    A("ds_write_b32 v17, v16")
    A("s_mov_b64 exec, s[20:21]")
    A("v_and_b32 v17, 31, v2")
    A("v_lshlrev_b32 v17, 2, v17")
    A("v_lshrrev_b32 v18, 5, v2")
    A("v_lshlrev_b32 v18, 6, v18")
    A("v_mov_b32 v19, 0")
    A("v_mov_b32 v20, 0")
    A("s_waitcnt lgkmcnt(0)")
    A("s_barrier")
    A("ds_read_b32 v16, v17")
    for i in range(4):
        A(f"ds_read_b128 {vr(60+4*i,4)}, v18 offset:{16*i}")
    A("s_waitcnt lgkmcnt(0)")
    sp = ["s[50:51]", "s[52:53]", "s[54:55]", "s[56:57]"]
    for i in range(0, 16, 4):
        for k in range(4):
            A(f"v_cmp_gt_u32 {sp[k]}, v{60+i+k}, v16")
        for k in range(4):
            A(f"v_addc_co_u32 v{19 + (k & 1)}, vcc, 0, v{19 + (k & 1)}, {sp[k]}")
    A("v_add_u32 v19, v19, v20")
    A("v_mov_b32 v20, v19")
    A("v_permlane32_swap_b32 v19, v20")
    A("v_add_u32 v19, v19, v20")
    A("v_cmp_gt_u32 vcc, 8, v19")
    A("v_cmp_gt_u32 s[22:23], 32, v2")
    A("s_and_b64 vcc, vcc, s[22:23]")
    A("v_lshlrev_b32 v19, 2, v19")
    A("s_lshl_b32 s6, s3, 6")
    A("s_add_u32 s6, s6, 256")
    A("v_add_u32 v19, s6, v19")
    A("s_and_saveexec_b64 s[20:21], vcc")
    A("ds_write_b32 v19, v16")
    A("s_mov_b64 exec, s[20:21]")
    A("v_and_b32 v17, 7, v2")
    A("v_lshlrev_b32 v17, 2, v17")
    A("v_add_u32 v17, s6, v17")
    A("ds_read_b32 v16, v17")
    A("v_lshrrev_b32 v21, 4, v2")
    A("v_lshlrev_b32 v21, 4, v21")
    A("s_mul_i32 s6, s3, 320")
    A(f"s_add_u32 s6, s6, {WS_L2}")
    A("v_add_u32 v21, s6, v21")
    A("s_waitcnt lgkmcnt(0)")
    A("v_and_b32 v18, 0x7ff, v16")
    A("v_sub_u32 v18, 2047, v18")
    A("v_mul_u32_u24 v20, 1280, v18")
    A("v_add_u32 v20, v20, v21")
    AFR = 60
    for i in range(5):
        A(f"global_load_dwordx4 {vr(AFR+4*i,4)}, v20, s[32:33] offset:{64*i}")
    stamp(A, 4)
    A("s_or_b32 s6, s2, s3")
    A("s_cmp_lg_u32 s6, 0")
    A("s_cbranch_scc1 K4_NOSEL")
    A("v_and_b32 v22, 0xffff0000, v16")
    A("v_ashrrev_i32 v23, 31, v22")
    A("v_not_b32 v23, v23")
    A("v_or_b32 v23, 0x80000000, v23")
    A("v_xor_b32 v22, v22, v23")
    A("v_and_b32 v22, 0xffff0000, v22")
    A(f"v_mul_f32 v22, {hex(fbits(-LOG2E))}, v22")
    A("v_exp_f32 v22, v22")
    A("v_add_f32 v22, 1.0, v22")
    A("v_rcp_f32 v22, v22")
    bf16_round(A, 22)
    A("v_lshlrev_b32 v23, 2, v2")
    A(f"v_add_u32 v23, {WS_SEL}, v23")
    A("v_cmp_gt_u32 vcc, 8, v2")
    A("s_and_saveexec_b64 s[20:21], vcc")
    A("global_store_dword v23, v18, s[32:33]")
    A("global_store_dword v23, v22, s[32:33] offset:32")
    A("s_mov_b64 exec, s[20:21]")
    A.label("K4_NOSEL")
    for i in range(4):
        A(f"v_mov_b32 v{24+i}, 0")
    A("v_lshlrev_b32 v28, 4, v2")
    A("s_lshl_b32 s6, s3, 10")
    A("v_add_u32 v29, s6, v28")
    for i in range(5):
        A(f"s_waitcnt vmcnt({4-i})")
        A(f"v_mfma_f32_16x16x32_bf16 v[24:27], {vr(AFR+4*i,4)}, {vr(BFR+4*i,4)}, v[24:27]")
    stamp(A, 5)
    A("ds_write_b128 v29, v[24:27] offset:1024")
    A("s_waitcnt lgkmcnt(0)")
    A("s_barrier")
    A("s_cmp_lg_u32 s3, 0")
    A("s_cbranch_scc1 K4_DONE")
    for w in range(4):
        A(f"ds_read_b128 {vr(40+4*w,4)}, v28 offset:{1024 + 1024*w}")
    A("v_and_b32 v56, 15, v2")
    A("v_lshrrev_b32 v57, 4, v2")
    A("v_mul_u32_u24 v58, 12288, v57")
    A("v_lshlrev_b32 v59, 1, v56")
    A("v_add_u32 v58, v58, v59")
    A("s_lshl_b32 s6, s2, 4")
    A(f"s_add_u32 s6, s6, {WS_ACT}")
    A("v_add_u32 v58, s6, v58")
    A("v_add_u32 v59, 6144, v58")
    A("v_cmp_gt_u32 vcc, 8, v56")
    A("v_cmp_gt_u32 s[22:23], 2, v57")
    A("s_and_b64 s[22:23], vcc, s[22:23]")
    A("s_waitcnt lgkmcnt(0)")
    for i in range(4):
        A(f"v_add_f32 v{40+i}, v{40+i}, v{44+i}")
        A(f"v_add_f32 v{48+i}, v{48+i}, v{52+i}")
    for i in range(4):
        A(f"v_add_f32 v{40+i}, v{40+i}, v{48+i}")
    A("v_cvt_pk_bf16_f32 v44, v40, v41")
    A("v_cvt_pk_bf16_f32 v45, v42, v43")
    A("v_lshlrev_b32 v40, 16, v44")
    A("v_and_b32 v41, 0xffff0000, v44")
    A("v_lshlrev_b32 v42, 16, v45")
    A("v_and_b32 v43, 0xffff0000, v45")
    for i in range(4):
        A(f"v_mul_f32 v{48+i}, {hex(fbits(-LOG2E))}, v{40+i}")
    for i in range(4):
        A(f"v_exp_f32 v{48+i}, v{48+i}")
    for i in range(4):
        A(f"v_mov_b32_dpp v{44+i}, v{40+i} row_shl:8 row_mask:0xf bank_mask:0xf")
    for i in range(4):
        A(f"v_add_f32 v{48+i}, 1.0, v{48+i}")
    for i in range(4):
        A(f"v_rcp_f32 v{48+i}, v{48+i}")
    for i in range(4):
        A(f"v_mul_f32 v{40+i}, v{40+i}, v{48+i}")
    A("v_cvt_pk_bf16_f32 v48, v40, v41")
    A("v_cvt_pk_bf16_f32 v49, v42, v43")
    A("v_lshlrev_b32 v40, 16, v48")
    A("v_and_b32 v41, 0xffff0000, v48")
    A("v_lshlrev_b32 v42, 16, v49")
    A("v_and_b32 v43, 0xffff0000, v49")
    for i in range(4):
        A(f"v_mul_f32 v{40+i}, v{40+i}, v{44+i}")
    A("v_cvt_pk_bf16_f32 v40, v40, v41")
    A("v_cvt_pk_bf16_f32 v42, v42, v43")
    A("s_mov_b64 exec, s[22:23]")
    A("global_store_short v58, v40, s[32:33]")
    A("global_store_short_d16_hi v58, v40, s[32:33] offset:3072")
    A("global_store_short v59, v42, s[32:33]")
    A("global_store_short_d16_hi v59, v42, s[32:33] offset:3072")
    A.label("K4_DONE")
    k_end(A, 3)
    A.label("K4_END")
    A("s_endpgm")


K5_LDS = 8192


def k5(A):
    A("s_cmp_ge_u32 s2, 80")
    A("s_cbranch_scc1 K5_END")
    k_begin(A)
    A("s_load_dwordx2 s[32:33], s[0:1], 112")
    A("s_load_dwordx2 s[30:31], s[0:1], 96")
    A("s_load_dwordx2 s[26:27], s[0:1], 0")
    A("v_lshrrev_b32 v1, 6, v0")
    A("v_readfirstlane_b32 s3, v1")
    A("v_and_b32 v2, 63, v0")
    A("s_mul_i32 s4, s2, 24576")
    A("s_mul_i32 s5, s3, 3072")
    A("s_add_u32 s4, s4, s5")
    A(f"s_add_u32 s4, s4, {WS_WD}")
    A("v_lshrrev_b32 v5, 4, v2")
    A("v_and_b32 v4, 7, v2")
    A("v_bfe_u32 v8, v2, 3, 1")
    A("v_lshlrev_b32 v3, 7, v5")
    A("v_lshl_add_u32 v3, v4, 4, v3")
    A("v_lshl_add_u32 v3, v8, 9, v3")
    A("v_add_u32 v3, s4, v3")
    A("v_mul_u32_u24 v4, 3072, v4")
    A("v_lshl_add_u32 v4, v5, 4, v4")
    A("v_lshl_add_u32 v4, v8, 6, v4")
    A("s_mul_i32 s6, s3, 384")
    A(f"s_add_u32 s6, s6, {WS_ACT}")
    A("v_add_u32 v4, s6, v4")
    A("v_and_b32 v7, 1, v5")
    A("v_lshlrev_b32 v7, 4, v7")
    A(f"v_add_u32 v7, {WS_SEL}, v7")
    for i in range(4):
        A(f"v_mov_b32 v{20+i}, 0")
        A(f"v_mov_b32 v{32+i}, 0")
    A("s_waitcnt lgkmcnt(0)")
    stamp(A, 1)
    BFR, AFR = 40, 64
    A("s_cmp_lg_u32 s3, 0")
    A("s_cbranch_scc1 K5_NOSEL")
    A("global_load_dwordx4 v[8:11], v7, s[32:33]")
    A("global_load_dwordx4 v[12:15], v7, s[32:33] offset:32")
    A.label("K5_NOSEL")
    for i in range(3):
        A(f"global_load_dwordx4 {vr(AFR+4*i,4)}, v4, s[32:33] offset:{128*i}")
        A(f"global_load_dwordx4 {vr(BFR+4*i,4)}, v3, s[32:33] offset:{1024*i}")
    A("s_cmp_lg_u32 s3, 0")
    A("s_cbranch_scc1 K5_MM")
    A("v_and_b32 v16, 7, v2")
    A("s_lshl_b32 s6, s2, 3")
    A("v_add_u32 v16, s6, v16")
    A("v_lshrrev_b32 v17, 3, v16")
    A("v_lshlrev_b32 v17, 7, v17")
    A("v_and_b32 v18, 7, v16")
    A("v_lshl_add_u32 v17, v18, 1, v17")
    A(f"v_add_u32 v17, {WS_AT}, v17")
    A("s_waitcnt vmcnt(6)")
    for i in range(4):
        A(f"v_mul_u32_u24 v{20+i}, 1280, v{8+i}")
        A(f"v_lshl_add_u32 v{20+i}, v16, 1, v{20+i}")
        A(f"v_add_u32 v18, {WS_L2}, v{20+i}")
        A(f"global_load_ushort v{24+i}, v18, s[32:33]")
        A(f"global_load_ushort v{28+i}, v{20+i}, s[26:27]")
        A(f"v_lshrrev_b32 v18, 3, v{8+i}")
        A("v_mul_u32_u24 v18, 10240, v18")
        A(f"v_and_b32 v19, 7, v{8+i}")
        A("v_lshl_add_u32 v18, v19, 4, v18")
        A("v_add_u32 v18, v18, v17")
        A(f"global_load_ushort v{36+i}, v18, s[32:33]")
    A("s_waitcnt vmcnt(12)")
    A("s_branch K5_MM2")
    A.label("K5_MM")
    A("s_waitcnt vmcnt(0)")
    A.label("K5_MM2")
    stamp(A, 3)
    for i in range(3):
        A(f"v_mfma_f32_16x16x32_bf16 v[32:35], {vr(AFR+4*i,4)}, {vr(BFR+4*i,4)}, v[32:35]")
    A("v_lshlrev_b32 v88, 4, v2")
    A("s_lshl_b32 s6, s3, 10")
    A("v_add_u32 v89, s6, v88")
    for i in range(4):
        A(f"v_mov_b32 v{84+i}, v{32+i}")
    for i in range(4):
        A(f"v_permlane32_swap_b32 v{32+i}, v{84+i}")
    for i in range(4):
        A(f"v_add_f32_dpp v{32+i}, v{84+i}, v{32+i} row_shl:8 row_mask:0xf bank_mask:0xf")
    A("ds_write_b128 v89, v[32:35]")
    A("s_waitcnt lgkmcnt(0)")
    A("s_barrier")
    A("s_cmp_lg_u32 s3, 0")
    A("s_cbranch_scc1 K5_DONE")
    for w in range(8):
        A(f"ds_read_b128 {vr(40+4*w,4)}, v88 offset:{1024*w}")
    A("s_waitcnt vmcnt(0)")
    for i in range(4):
        A(f"v_lshlrev_b32 v{28+i}, 16, v{28+i}")
        A(f"v_lshlrev_b32 v{36+i}, 16, v{36+i}")
        A(f"v_lshlrev_b32 v{24+i}, 16, v{24+i}")
    for i in range(4):
        A(f"v_add_f32 v{28+i}, v{28+i}, v{36+i}")
    A("v_cvt_pk_bf16_f32 v36, v28, v29")
    A("v_cvt_pk_bf16_f32 v37, v30, v31")
    A("v_lshlrev_b32 v28, 16, v36")
    A("v_and_b32 v29, 0xffff0000, v36")
    A("v_lshlrev_b32 v30, 16, v37")
    A("v_and_b32 v31, 0xffff0000, v37")
    A("s_waitcnt lgkmcnt(0)")
    for st in (16, 8, 4):
        for j in range(st):
            A(f"v_add_f32 v{40+j}, v{40+j}, v{40+st+j}")

    def rnd4(base):
        A(f"v_cvt_pk_bf16_f32 v44, v{base}, v{base+1}")
        A(f"v_cvt_pk_bf16_f32 v45, v{base+2}, v{base+3}")
        A(f"v_lshlrev_b32 v{base}, 16, v44")
        A(f"v_and_b32 v{base+1}, 0xffff0000, v44")
        A(f"v_lshlrev_b32 v{base+2}, 16, v45")
        A(f"v_and_b32 v{base+3}, 0xffff0000, v45")
    rnd4(40)
    for i in range(4):
        A(f"v_mul_f32 v{40+i}, v{40+i}, v{12+i}")
    rnd4(40)
    for i in range(4):
        A(f"v_add_f32 v{40+i}, v{40+i}, v{24+i}")
    rnd4(40)
    for i in range(4):
        A(f"v_add_f32 v{40+i}, v{40+i}, v{28+i}")
    A("v_cvt_pk_bf16_f32 v40, v40, v41")
    A("v_cvt_pk_bf16_f32 v42, v42, v43")
    A("v_and_b32 v16, 15, v2")
    A("v_cmp_gt_u32 vcc, 8, v16")
    A("v_cmp_gt_u32 s[22:23], 2, v5")
    A("s_and_b64 exec, vcc, s[22:23]")
    A("global_store_short v20, v40, s[30:31]")
    A("global_store_short_d16_hi v21, v40, s[30:31]")
    A("global_store_short v22, v42, s[30:31]")
    A("global_store_short_d16_hi v23, v42, s[30:31]")
    A.label("K5_DONE")
    k_end(A, 4)
    A.label("K5_END")
    A("s_endpgm")


KERNELS = [
    ("k1_kernel", k1, K1_WT + K1_KG + K1_LN, 192, K1_LDS, 128),
    ("k2_kernel", k2, 160 + K2_NWT, 256, K2_LDS, 160),
    ("k3_kernel", k3, 256, 256, K3_LDS, 96),
    ("k4_kernel", k4, 192 + (80 if PF_WD[0] else 0), 256, K4_LDS, 96),
    ("k5_kernel", k5, 80, 512, K5_LDS, 96),
]

KD_TMPL = """.amdhsa_kernel {name}
  .amdhsa_next_free_vgpr {vgpr}
  .amdhsa_next_free_sgpr 102
  .amdhsa_accum_offset {acc}
  .amdhsa_group_segment_fixed_size 0
  .amdhsa_kernarg_size 120
  .amdhsa_user_sgpr_count 2
  .amdhsa_user_sgpr_kernarg_segment_ptr 1
  .amdhsa_system_sgpr_workgroup_id_x 1
.end_amdhsa_kernel
"""

HEADER = """; Kernarg layout (120 bytes, ptrs only): in0..in11 at 0..88, d_out 96, d_debug 104, d_ws 112
"""


def build(kernels):
    s = HEADER
    for label, fn, grid, block, lds, vgpr in kernels:
        s += f"; @launch kernel={label} grid=({grid},1,1) block=({block},1,1) lds={lds}\n"
    s += '.amdgcn_target "amdgcn-amd-amdhsa--gfx950"\n.text\n'
    done = set()
    for label, fn, grid, block, lds, vgpr in kernels:
        if label in done:
            continue
        done.add(label)
        A = Asm()
        fn(A)
        s += f".globl {label}\n.p2align 8\n.type {label},@function\n{label}:\n" + A.finish() + "\n"
    s += '.section .rodata,"a"\n'
    done = set()
    for label, fn, grid, block, lds, vgpr in kernels:
        if label in done:
            continue
        done.add(label)
        s += ".p2align 6\n" + KD_TMPL.format(name=label, vgpr=vgpr, acc=min(256, (vgpr + 3) // 4 * 4))
    return s


if __name__ == "__main__":
    if len(sys.argv) > 2 and sys.argv[2] == "stamp":
        STAMP[0] = True
    out = build(KERNELS)
    path = sys.argv[1] if len(sys.argv) > 1 else f"cdna_kernels/{NAME}.s"
    open(path, "w").write(out)
    print("wrote", path, len(out), "bytes")
```

```python
import sys, os
sys.path.insert(0, os.path.dirname(os.path.abspath(__file__)))
import gen3
import gen8
from gen8 import *

WS_FLAG2 = 0x0924000
KC_LDS = 10240
KC_FIRST = int(os.environ.get("KC_FIRST", "48"))
KC_SLEEP = int(os.environ.get("KC_SLEEP", "6"))


def select8(A, after_keys):
    A("v_lshlrev_b32 v4, 5, v0")
    A(f"v_add_u32 v4, {WS_RK}, v4")
    A("global_load_dwordx4 v[8:11], v4, s[32:33]")
    A("global_load_dwordx4 v[12:15], v4, s[32:33] offset:16")
    stamp(A, 1)
    A("s_waitcnt vmcnt(0)")
    after_keys()
    stamp(A, 2)
    net = [(0, 1), (2, 3), (4, 5), (6, 7), (0, 2), (1, 3), (4, 6), (5, 7), (1, 2), (5, 6), (0, 4), (3, 7), (1, 5), (2, 6),
           (1, 4), (3, 6), (2, 4), (3, 5), (3, 4)]
    reg = list(range(8, 16))
    spare = 16
    for a_, b_ in net:
        A(f"v_max_u32 v{spare}, v{reg[a_]}, v{reg[b_]}")
        A(f"v_min_u32 v{reg[b_]}, v{reg[a_]}, v{reg[b_]}")
        reg[a_], spare = spare, reg[a_]
    steps = [("row_shr:1", "0xf"), ("row_shr:2", "0xf"), ("row_shr:4", "0xf"), ("row_shr:8", "0xf"),
             ("row_bcast:15", "0xa"), ("row_bcast:31", "0xc")]
    for r in range(4):
        A(f"v_mov_b32 v17, v{reg[0]}")
        A(f"v_mov_b32 v18, v{reg[1]}")
        for ctl, mask in steps:
            bc = " bound_ctrl:0" if ctl.startswith("row_shr") else ""
            A(f"v_min_u32_dpp v19, v17, v17 {ctl} row_mask:{mask} bank_mask:0xf{bc}")
            A(f"v_max_u32_dpp v17, v17, v17 {ctl} row_mask:{mask} bank_mask:0xf{bc}")
            A(f"v_max_u32_dpp v20, v18, v18 {ctl} row_mask:{mask} bank_mask:0xf{bc}")
            A("v_max_u32 v18, v19, v20")
        A(f"v_readlane_b32 s{40+2*r}, v17, 63")
        A(f"v_readlane_b32 s{41+2*r}, v18, 63")
        if r < 3:
            left = 8 - 2 * r
            for wsel in (40 + 2 * r, 41 + 2 * r):
                A(f"v_cmp_eq_u32 vcc, s{wsel}, v{reg[0]}")
                left -= 1
                for k in range(left):
                    A(f"v_cndmask_b32 v{reg[k]}, v{reg[k]}, v{reg[k+1]}, vcc")
    stamp(A, 3)
    A("v_mov_b32 v16, s40")
    for r in range(1, 8):
        A(f"v_writelane_b32 v16, s{40+r}, {r}")
    A("s_lshl_b32 s6, s3, 5")
    A("v_lshlrev_b32 v17, 2, v2")
    A("v_add_u32 v17, s6, v17")
    A("v_cmp_gt_u32 vcc, 8, v2")
    A("s_and_saveexec_b64 s[20:21], vcc")
    A("ds_write_b32 v17, v16")
    A("s_mov_b64 exec, s[20:21]")
    A("v_and_b32 v17, 31, v2")
    A("v_lshlrev_b32 v17, 2, v17")
    A("v_lshrrev_b32 v18, 5, v2")
    A("v_lshlrev_b32 v18, 6, v18")
    A("v_mov_b32 v19, 0")
    A("v_mov_b32 v20, 0")
    A("s_waitcnt lgkmcnt(0)")
    A("s_barrier")
    A("ds_read_b32 v16, v17")
    for i in range(4):
        A(f"ds_read_b128 {vr(60+4*i,4)}, v18 offset:{16*i}")
    A("s_waitcnt lgkmcnt(0)")
    sp = ["s[50:51]", "s[52:53]", "s[54:55]", "s[56:57]"]
    for i in range(0, 16, 4):
        for k in range(4):
            A(f"v_cmp_gt_u32 {sp[k]}, v{60+i+k}, v16")
        for k in range(4):
            A(f"v_addc_co_u32 v{19 + (k & 1)}, vcc, 0, v{19 + (k & 1)}, {sp[k]}")
    A("v_add_u32 v19, v19, v20")
    A("v_mov_b32 v20, v19")
    A("v_permlane32_swap_b32 v19, v20")
    A("v_add_u32 v19, v19, v20")
    A("v_cmp_gt_u32 vcc, 8, v19")
    A("v_cmp_gt_u32 s[22:23], 32, v2")
    A("s_and_b64 vcc, vcc, s[22:23]")
    A("v_lshlrev_b32 v19, 2, v19")
    A("s_lshl_b32 s6, s3, 6")
    A("s_add_u32 s6, s6, 256")
    A("v_add_u32 v19, s6, v19")
    A("s_and_saveexec_b64 s[20:21], vcc")
    A("ds_write_b32 v19, v16")
    A("s_mov_b64 exec, s[20:21]")


def k3s(A):
    gen3.K3_PREFILL[0] = True
    k3(A)


def kc(A):
    A("s_cmp_ge_u32 s2, 272")
    A("s_cbranch_scc1 KC_END")
    k_begin(A)
    A("s_load_dwordx2 s[32:33], s[0:1], 112")
    A("s_load_dwordx2 s[30:31], s[0:1], 96")
    A("s_load_dwordx2 s[26:27], s[0:1], 0")
    A("v_lshrrev_b32 v1, 6, v0")
    A("v_readfirstlane_b32 s3, v1")
    A("v_and_b32 v2, 63, v0")
    A(f"s_mov_b32 s14, {WS_EPOCH}")
    A("s_cmp_ge_u32 s2, 192")
    A("s_cbranch_scc1 KC_F2")
    A("s_cmp_ge_u32 s3, 4")
    A("s_cbranch_scc1 KC_END")
    A("s_mul_i32 s4, s2, 20480")
    A("s_mul_i32 s5, s3, 5120")
    A("s_add_u32 s4, s4, s5")
    A(f"s_add_u32 s4, s4, {WS_WGU}")
    A("v_lshlrev_b32 v3, 4, v2")
    A("v_add_u32 v3, s4, v3")
    A("v_add_u32 v5, 4096, v3")
    A("s_waitcnt lgkmcnt(0)")
    BFR, AFR = 40, 60

    def w1():
        for i in range(4):
            A(f"global_load_dwordx4 {vr(BFR+4*i,4)}, v3, s[32:33] offset:{1024*i}")
        A(f"global_load_dwordx4 {vr(BFR+16,4)}, v5, s[32:33]")
    select8(A, w1)
    A("v_and_b32 v17, 7, v2")
    A("v_lshlrev_b32 v17, 2, v17")
    A("v_add_u32 v17, s6, v17")
    A("ds_read_b32 v16, v17")
    A("v_lshrrev_b32 v21, 4, v2")
    A("v_lshlrev_b32 v21, 4, v21")
    A("s_mul_i32 s6, s3, 320")
    A(f"s_add_u32 s6, s6, {WS_L2}")
    A("v_add_u32 v21, s6, v21")
    A("s_waitcnt lgkmcnt(0)")
    A("v_and_b32 v18, 0x7ff, v16")
    A("v_sub_u32 v18, 2047, v18")
    A("v_mul_u32_u24 v20, 1280, v18")
    A("v_add_u32 v20, v20, v21")
    for i in range(5):
        A(f"global_load_dwordx4 {vr(AFR+4*i,4)}, v20, s[32:33] offset:{64*i}")
    stamp(A, 4)
    for i in range(4):
        A(f"v_mov_b32 v{24+i}, 0")
    A("v_lshlrev_b32 v28, 4, v2")
    A("s_lshl_b32 s6, s3, 10")
    A("v_add_u32 v29, s6, v28")
    for i in range(5):
        A(f"s_waitcnt vmcnt({4-i})")
        A(f"v_mfma_f32_16x16x32_bf16 v[24:27], {vr(AFR+4*i,4)}, {vr(BFR+4*i,4)}, v[24:27]")
    stamp(A, 5)
    A("ds_write_b128 v29, v[24:27] offset:1024")
    A("s_waitcnt lgkmcnt(0)")
    A("s_barrier")
    A("s_cmp_lg_u32 s3, 0")
    A("s_cbranch_scc1 KC_DONE")
    A("v_lshrrev_b32 v56, 3, v2")
    A("v_and_b32 v57, 7, v2")
    A("v_lshrrev_b32 v58, 2, v56")
    A("v_lshlrev_b32 v58, 8, v58")
    A("v_lshl_add_u32 v58, v57, 4, v58")
    A("v_and_b32 v59, 3, v56")
    A("v_lshl_add_u32 v58, v59, 2, v58")
    for w in range(4):
        A(f"ds_read_b32 v{40+w}, v58 offset:{1024 + 1024*w}")
        A(f"ds_read_b32 v{44+w}, v58 offset:{1024 + 1024*w + 128}")
    A("v_lshlrev_b32 v59, 1, v2")
    A("s_lshl_b32 s6, s2, 7")
    A(f"s_add_u32 s6, s6, {WS_ACT}")
    A("v_add_u32 v59, s6, v59")
    A("s_waitcnt lgkmcnt(0)")
    A("v_add_f32 v40, v40, v41")
    A("v_add_f32 v42, v42, v43")
    A("v_add_f32 v44, v44, v45")
    A("v_add_f32 v46, v46, v47")
    A("v_add_f32 v40, v40, v42")
    A("v_add_f32 v44, v44, v46")
    A("v_cvt_pk_bf16_f32 v41, v40, v44")
    A("v_lshlrev_b32 v40, 16, v41")
    A("v_and_b32 v44, 0xffff0000, v41")
    A(f"v_mul_f32 v42, {hex(fbits(-LOG2E))}, v40")
    A("v_exp_f32 v42, v42")
    A("v_add_f32 v42, 1.0, v42")
    A("v_rcp_f32 v42, v42")
    A("v_mul_f32 v40, v40, v42")
    A("v_cvt_pk_bf16_f32 v40, v40, v40")
    A("v_and_b32 v40, 0xffff0000, v40")
    A("v_mul_f32 v40, v40, v44")
    A("v_cvt_pk_bf16_f32 v40, v40, v40")
    A(f"global_store_short v59, v40, s[32:33] {SC}")
    A.label("KC_DONE")
    k_end(A, 3)

    A.label("KC_F2")
    A("s_sub_u32 s34, s2, 192")
    A("v_lshrrev_b32 v5, 4, v2")
    A("v_and_b32 v4, 7, v2")
    A("v_bfe_u32 v6, v2, 3, 1")
    A("v_lshlrev_b32 v3, 7, v5")
    A("v_lshl_add_u32 v3, v4, 4, v3")
    A("v_lshl_add_u32 v3, v6, 9, v3")
    A("s_mul_i32 s5, s3, 3072")
    A("v_add_u32 v3, s5, v3")
    A(f"v_add_u32 v30, {WS_ACT}, v3")
    A("s_mul_i32 s4, s34, 24576")
    A(f"s_add_u32 s4, s4, {WS_WD}")
    A("v_add_u32 v3, s4, v3")
    for i in range(4):
        A(f"v_mov_b32 v{36+i}, 0")
        A(f"v_mov_b32 v{32+i}, 0")
    B2, A2 = 76, 88
    A("s_waitcnt lgkmcnt(0)")

    def w2():
        for i in range(3):
            A(f"global_load_dwordx4 {vr(B2+4*i,4)}, v3, s[32:33] offset:{1024*i}")
    A("s_cmp_ge_u32 s3, 4")
    A("s_cbranch_scc1 KC_F2HI")
    select8(A, w2)
    A("s_cmp_lg_u32 s3, 0")
    A("s_cbranch_scc1 KC_F2SL")
    A("v_lshrrev_b32 v17, 3, v2")
    A("v_lshlrev_b32 v17, 2, v17")
    A("v_add_u32 v17, s6, v17")
    A("ds_read_b32 v8, v17")
    A("v_and_b32 v16, 7, v2")
    A("s_lshl_b32 s6, s34, 3")
    A("v_add_u32 v16, s6, v16")
    A("s_lshl_b32 s6, s34, 7")
    A(f"s_add_u32 s6, s6, {WS_AT}")
    A("v_and_b32 v17, 7, v2")
    A("v_lshlrev_b32 v17, 1, v17")
    A("v_add_u32 v17, s6, v17")
    A("s_waitcnt lgkmcnt(0)")
    A("v_and_b32 v40, 0x7ff, v8")
    A("v_sub_u32 v40, 2047, v40")
    A("v_mul_u32_u24 v36, 1280, v40")
    A("v_lshl_add_u32 v36, v16, 1, v36")
    A(f"v_add_u32 v18, {WS_L2}, v36")
    A("global_load_ushort v20, v18, s[32:33]")
    A("global_load_ushort v24, v36, s[26:27]")
    A("v_lshrrev_b32 v18, 3, v40")
    A("v_mul_u32_u24 v18, 10240, v18")
    A("v_and_b32 v19, 7, v40")
    A("v_lshl_add_u32 v18, v19, 4, v18")
    A("v_add_u32 v18, v18, v17")
    A("global_load_ushort v44, v18, s[32:33]")
    A("v_and_b32 v12, 0xffff0000, v8")
    A("v_ashrrev_i32 v48, 31, v12")
    A("v_not_b32 v48, v48")
    A("v_or_b32 v48, 0x80000000, v48")
    A("v_xor_b32 v12, v12, v48")
    A("v_and_b32 v12, 0xffff0000, v12")
    A(f"v_mul_f32 v12, {hex(fbits(-LOG2E))}, v12")
    A("v_exp_f32 v12, v12")
    A("v_add_f32 v12, 1.0, v12")
    A("v_rcp_f32 v12, v12")
    bf16_round(A, 12)
    A("s_waitcnt vmcnt(0)")
    A("v_lshlrev_b32 v24, 16, v24")
    A("v_lshlrev_b32 v44, 16, v44")
    A("v_lshlrev_b32 v20, 16, v20")
    A("v_add_f32 v24, v24, v44")
    bf16_round(A, 24)
    A(f"s_sleep {max(KC_FIRST - 28, 1)}")
    A("s_branch KC_F2B2")
    A.label("KC_F2SL")
    A(f"s_sleep {max(KC_FIRST - 10, 1)}")
    A("s_branch KC_F2B2")
    A.label("KC_F2HI")
    w2()
    A("s_barrier")
    A(f"s_sleep {KC_FIRST}")
    A.label("KC_F2B2")
    stamp(A, 4)
    A("s_mov_b32 s12, 0")
    A("v_mov_b32 v61, 0xffff")
    A.label("KC_POLL")
    for i in range(3):
        A(f"global_load_dwordx4 {vr(A2+4*i,4)}, v30, s[32:33] offset:{1024*i} {SC}")
    A("s_waitcnt vmcnt(0)")
    A(f"v_pk_max_u16 v62, v{A2}, v{A2+1}")
    A(f"v_pk_max_u16 v63, v{A2+2}, v{A2+3}")
    for i in range(4, 12, 2):
        A(f"v_pk_max_u16 v62, v62, v{A2+i}")
        A(f"v_pk_max_u16 v63, v63, v{A2+i+1}")
    A("v_pk_max_u16 v62, v62, v63")
    A("v_lshrrev_b32 v63, 16, v62")
    A("v_and_b32 v62, 0xffff, v62")
    A("v_max_u32 v62, v62, v63")
    A("v_cmp_eq_u32 vcc, v61, v62")
    A("s_cmp_eq_u64 vcc, 0")
    A("s_cbranch_scc1 KC_ACT")
    A("s_add_u32 s12, s12, 1")
    A(f"s_cmp_ge_u32 s12, {SPIN_MAX}")
    A("s_cbranch_scc1 KC_ACT")
    A(f"s_sleep {KC_SLEEP}")
    A("s_branch KC_POLL")
    A.label("KC_ACT")
    A("v_lshlrev_b32 v28, 4, v2")
    A("s_lshl_b32 s6, s3, 10")
    A("v_add_u32 v29, s6, v28")
    for i in range(3):
        A(f"v_mfma_f32_16x16x32_bf16 v[32:35], {vr(A2+4*i,4)}, {vr(B2+4*i,4)}, v[32:35]")
    stamp(A, 5)
    for i in range(4):
        A(f"v_mov_b32 v{60+i}, v{32+i}")
    for i in range(4):
        A(f"v_permlane32_swap_b32 v{32+i}, v{60+i}")
    for i in range(4):
        A(f"v_add_f32_dpp v{32+i}, v{60+i}, v{32+i} row_shl:8 row_mask:0xf bank_mask:0xf")
    A("ds_write_b128 v29, v[32:35] offset:1024")
    A("s_waitcnt lgkmcnt(0)")
    A("s_barrier")
    A("s_cmp_lg_u32 s3, 0")
    A("s_cbranch_scc1 KC_DONE2")
    A("v_lshrrev_b32 v56, 3, v2")
    A("v_and_b32 v57, 7, v2")
    A("v_lshrrev_b32 v58, 2, v56")
    A("v_lshlrev_b32 v58, 8, v58")
    A("v_lshl_add_u32 v58, v57, 4, v58")
    A("v_and_b32 v59, 3, v56")
    A("v_lshl_add_u32 v58, v59, 2, v58")
    for w in range(8):
        A(f"ds_read_b32 v{40+w}, v58 offset:{1024 + 1024*w}")
    A("s_waitcnt lgkmcnt(0)")
    for st in (4, 2, 1):
        for j in range(st):
            A(f"v_add_f32 v{40+j}, v{40+j}, v{40+st+j}")
    bf16_round(A, 40)
    A("v_mul_f32 v40, v40, v12")
    bf16_round(A, 40)
    A("v_add_f32 v40, v40, v20")
    bf16_round(A, 40)
    A("v_add_f32 v40, v40, v24")
    A("v_cvt_pk_bf16_f32 v40, v40, v40")
    A("global_store_short v36, v40, s[30:31]")
    A.label("KC_DONE2")
    k_end(A, 3)
    A.label("KC_END")
    A("s_endpgm")


KERNELS10 = [
    ("ka_kernel", ka, 256, 1024, KA_LDS, 128),
    ("k3_kernel", k3s, 256, 256, K3_LDS, 96),
    ("kc_kernel", kc, 272, 512, KC_LDS, 104),
]

if __name__ == "__main__":
    if len(sys.argv) > 2 and sys.argv[2] == "stamp":
        STAMP[0] = True
    out = build(KERNELS10)
    open(sys.argv[1], "w").write(out)
    print("wrote", sys.argv[1], len(out), "bytes")
```

```python
import sys, os
sys.path.insert(0, os.path.dirname(os.path.abspath(__file__)))
import gen3
from gen3 import *

KG_SZ = 2 * K1_BUF
KEO_ST = 27712
KEO_BASE = 0
KA_KE, KA_KO = 0, 4160
KA_U = 12 * KG_SZ
U_ST = 4608
KA_T = KA_U + 4 * U_ST
T_ST = 1600
KA_SC = KA_T + 4 * T_ST
KA_LN = KA_SC + 64
KA_CNT = KA_LN
KA_STATS = KA_LN + 128
KA_STAGE = KA_LN + 192
KA_LDS = KA_STAGE + 10240 + 2560


def group_sync(A, idx, n, lbl):
    A("s_waitcnt lgkmcnt(0)")
    A(f"v_mov_b32 v18, {KA_CNT + 4*idx}")
    A("v_mov_b32 v19, 1")
    A("s_mov_b64 exec, 1")
    A("ds_add_u32 v18, v19")
    A("s_mov_b64 exec, -1")
    A("s_mov_b32 s12, 0")
    A.label(lbl)
    A("ds_read_b32 v19, v18")
    A("s_waitcnt lgkmcnt(0)")
    A("v_readfirstlane_b32 s13, v19")
    A(f"s_cmp_ge_u32 s13, {n}")
    A(f"s_cbranch_scc1 {lbl}_OK")
    A("s_add_u32 s12, s12, 1")
    A(f"s_cmp_lt_u32 s12, {1 << 22}")
    A(f"s_cbranch_scc1 {lbl}")
    A.label(lbl + "_OK")
NPROD = 96
WS_FLAG = 0x0920000
WS_EPOCH = 0x0923000
SC = os.environ.get('SCMOD', 'sc1')
PMOD = os.environ.get('PMOD', SC)
FMOD = os.environ.get('FMOD', SC)
SPIN_MAX = 1 << 16
POLL_SLEEP = int(os.environ.get('POLL_SLEEP', '8'))
POLL_FIRST = int(os.environ.get('POLL_FIRST', '32'))
FLAG64 = int(os.environ.get('FLAG64', '0'))


def k_end16(A, kidx):
    if STAMP[0]:
        A(f"s_memtime s[{60+2*(NSTAMP-2)}:{61+2*(NSTAMP-2)}]")
        A("s_waitcnt vmcnt(0) lgkmcnt(0)")
        A("s_memrealtime s[96:97]")
        A(f"s_memtime s[{60+2*(NSTAMP-1)}:{61+2*(NSTAMP-1)}]")
        A("s_mov_b64 exec, -1")
        A("v_lshrrev_b32 v1, 6, v0")
        A("s_lshl_b32 s98, s2, 4")
        A("v_add_u32 v1, s98, v1")
        A("v_lshlrev_b32 v1, 7, v1")
        A(f"v_add_u32 v1, {WS_STAMP + kidx * 0x200000}, v1")
        A("s_waitcnt lgkmcnt(0)")
        A("v_mov_b32 v2, s94")
        A("v_mov_b32 v3, s95")
        A("v_mov_b32 v4, s96")
        A("v_mov_b32 v5, s97")
        A("global_store_dwordx4 v1, v[2:5], s[32:33]")
        for i in range(0, NSTAMP, 2):
            for j in range(4):
                A(f"v_mov_b32 v{2+j}, s{60+2*i+j}")
            A(f"global_store_dwordx4 v1, v[2:5], s[32:33] offset:{16+8*i}")
    A("s_endpgm")


gen3.k_end = k_end16
k_end = k_end16


def arrive(A, idx):
    A("s_waitcnt lgkmcnt(0)")
    A(f"v_mov_b32 v18, {KA_CNT + 4*idx}")
    A("v_mov_b32 v19, 1")
    A("s_mov_b64 exec, 1")
    A("ds_add_u32 v18, v19")
    A("s_mov_b64 exec, -1")


def wait_count(A, idx, n, lbl, sleep=1):
    A(f"v_mov_b32 v18, {KA_CNT + 4*idx}")
    A("s_mov_b32 s12, 0")
    A.label(lbl)
    A("ds_read_b32 v19, v18")
    A("s_waitcnt lgkmcnt(0)")
    A("v_readfirstlane_b32 s13, v19")
    A(f"s_cmp_ge_u32 s13, {n}")
    A(f"s_cbranch_scc1 {lbl}_OK")
    A("s_add_u32 s12, s12, 1")
    if sleep:
        A(f"s_sleep {sleep}")
    A(f"s_cmp_lt_u32 s12, {1 << 22}")
    A(f"s_cbranch_scc1 {lbl}")
    A.label(lbl + "_OK")


def arrive_s(A, base_idx, sreg):
    A("s_waitcnt lgkmcnt(0)")
    A(f"s_lshl_b32 s12, s{sreg}, 2")
    A(f"s_add_u32 s12, s12, {KA_CNT + 4*base_idx}")
    A("v_mov_b32 v18, s12")
    A("v_mov_b32 v19, 1")
    A("s_mov_b64 exec, 1")
    A("ds_add_u32 v18, v19")
    A("s_mov_b64 exec, -1")


def wait_s(A, base_idx, sreg, n, lbl):
    A(f"s_lshl_b32 s12, s{sreg}, 2")
    A(f"s_add_u32 s12, s12, {KA_CNT + 4*base_idx}")
    A("v_mov_b32 v18, s12")
    A("s_mov_b32 s12, 0")
    A.label(lbl)
    A("ds_read_b32 v19, v18")
    A("s_waitcnt lgkmcnt(0)")
    A("v_readfirstlane_b32 s13, v19")
    A(f"s_cmp_ge_u32 s13, {n}")
    A(f"s_cbranch_scc1 {lbl}_OK")
    A("s_add_u32 s12, s12, 1")
    A("s_sleep 1")
    A(f"s_cmp_lt_u32 s12, {1 << 22}")
    A(f"s_cbranch_scc1 {lbl}")
    A.label(lbl + "_OK")


def poll_flags(A, lbl):
    if FLAG64:
        A("v_lshlrev_b32 v3, 7, v2")
        A(f"v_add_u32 v3, {WS_FLAG}, v3")
    else:
        A("v_lshrrev_b32 v3, 4, v2")
        A("v_lshlrev_b32 v3, 7, v3")
        A("v_and_b32 v10, 15, v2")
        A("v_lshl_add_u32 v3, v10, 2, v3")
        A(f"v_add_u32 v3, {WS_FLAG}, v3")
    A("s_mov_b32 s12, 0")
    if POLL_FIRST:
        A(f"s_sleep {POLL_FIRST}")
    A.label(lbl)
    if FLAG64:
        A(f"global_load_dwordx4 v[40:43], v3, s[32:33] {PMOD}")
    else:
        for j in range(4):
            A(f"global_load_dword v{40+j}, v3, s[32:33] offset:{512*j} {PMOD}")
    A("s_waitcnt vmcnt(0)")
    A("v_cmp_ne_u32 vcc, s15, v40")
    A("v_cmp_ne_u32 s[20:21], s15, v41")
    A("v_cmp_ne_u32 s[22:23], s15, v42")
    A("v_cmp_ne_u32 s[24:25], s15, v43")
    A("s_or_b64 vcc, vcc, s[20:21]")
    A("s_or_b64 s[22:23], s[22:23], s[24:25]")
    A("s_or_b64 vcc, vcc, s[22:23]")
    A("s_cmp_eq_u64 vcc, 0")
    A(f"s_cbranch_scc1 {lbl}_SEEN")
    A("s_add_u32 s12, s12, 1")
    A(f"s_cmp_ge_u32 s12, {SPIN_MAX}")
    A(f"s_cbranch_scc1 {lbl}_SEEN")
    A(f"s_sleep {POLL_SLEEP}")
    A(f"s_branch {lbl}")
    A.label(lbl + "_SEEN")


def poll_epoch(A, lbl):
    A(f"v_mov_b32 v3, {WS_EPOCH}")
    A("s_mov_b32 s12, 0")
    A("s_sleep 48")
    A.label(lbl)
    A(f"global_load_dword v40, v3, s[32:33] {SC}")
    A("s_waitcnt vmcnt(0)")
    A("v_readfirstlane_b32 s13, v40")
    A("s_cmp_eq_u32 s13, s15")
    A(f"s_cbranch_scc1 {lbl}_SEEN")
    A("s_add_u32 s12, s12, 1")
    A(f"s_cmp_ge_u32 s12, {SPIN_MAX}")
    A(f"s_cbranch_scc1 {lbl}_SEEN")
    A("s_sleep 16")
    A(f"s_branch {lbl}")
    A.label(lbl + "_SEEN")


def kgen_wave(A):
    A(f"s_mov_b32 s90, {L2E_HI}")
    A(f"s_mov_b32 s91, {L2E_LO}")
    A(f"s_mov_b32 s92, {LN2}")
    A("v_and_b32 v3, 15, v2")
    A("v_lshrrev_b32 v4, 4, v2")
    A("s_cmp_eq_u32 s36, 1")
    A("s_cbranch_scc1 KA_A1")
    A("s_cmp_eq_u32 s36, 2")
    A("s_cbranch_scc1 KA_A2")
    A("v_lshrrev_b32 v5, 1, v4")
    A("v_lshlrev_b32 v5, 7, v5")
    A("v_lshl_add_u32 v5, v3, 3, v5")
    A("v_and_b32 v6, 1, v4")
    A("v_lshl_add_u32 v5, v6, 2, v5")
    A("s_branch KA_A3")
    A.label("KA_A1")
    A("v_lshlrev_b32 v5, 1, v3")
    A("v_add_u32 v5, v5, v4")
    A("v_add_u32 v5, 384, v5")
    A("v_lshlrev_b32 v6, 4, v4")
    A("v_add_u32 v6, v6, v3")
    A("v_add_u32 v6, 480, v6")
    A("v_cmp_gt_u32 vcc, 2, v4")
    A("v_cndmask_b32 v5, v6, v5, vcc")
    A("s_branch KA_A3")
    A.label("KA_A2")
    A("v_lshlrev_b32 v5, 6, v4")
    A("v_lshlrev_b32 v6, 2, v3")
    A("v_add_u32 v5, v5, v6")
    A("v_add_u32 v5, 256, v5")
    A("v_lshlrev_b32 v6, 2, v2")
    A("v_add_u32 v6, 520, v6")
    A("v_cmp_gt_u32 vcc, 2, v4")
    A("v_cndmask_b32 v5, v6, v5, vcc")
    A("v_mov_b32 v6, 640")
    A("v_cmp_eq_u32 vcc, 32, v2")
    A("v_cndmask_b32 v5, v5, v6, vcc")
    A.label("KA_A3")
    A(f"s_mul_i32 s11, s37, {T_ST}")
    A(f"s_add_u32 s11, s11, {KA_T}")
    A("v_lshlrev_b32 v29, 1, v5")
    A("v_add_u32 v29, s11, v29")
    A(f"v_mul_u32_u24 v32, {K1_ROWB}, v3")
    A("v_lshlrev_b32 v5, 4, v4")
    A("v_add_u32 v32, v32, v5")
    A("v_add_u32 v32, s7, v32")
    AW = 120
    A("v_lshlrev_b32 v5, 2, v2")
    A(f"v_add_u32 v{AW}, s7, v5")
    for k in range(1, 8):
        A(f"v_add_u32 v{AW+k}, {(k//4)*K1_BUF + (k%4)*4*K1_ROWB}, v{AW}")
    stamp(A, 1)
    A("s_waitcnt lgkmcnt(0)")
    A("s_bitcmp1_b32 s34, 0")
    A("s_cbranch_scc1 KA_ODD")
    A("s_lshl_b32 s6, s6, 16")
    A.label("KA_ODD")
    A("s_and_b32 s6, s6, 0xffff0000")
    A("v_mov_b32 v5, s6")
    exp_bf16(A, 33, 5, 6, 7)
    A("s_waitcnt vmcnt(0)")
    stamp(A, 2)
    for i in range(6):
        A(f"v_and_b32 v{14+i}, 0x7fff, v{14+i}")
    A("v_max3_u32 v14, v14, v15, v16")
    A("v_max3_u32 v17, v17, v18, v19")
    A("v_max_u32 v14, v14, v17")
    A("v_lshlrev_b32 v10, 16, v10")
    A("v_lshlrev_b32 v11, 16, v11")
    A("v_mul_f32 v6, s90, v10")
    A("v_max_u32_dpp v14, v14, v14 row_shr:1 row_mask:0xf bank_mask:0xf")
    A("v_fma_f32 v7, v10, s90, -v6")
    A("v_exp_f32 v34, v6")
    A("v_max_u32_dpp v14, v14, v14 row_shr:2 row_mask:0xf bank_mask:0xf")
    A("v_fma_f32 v7, v10, s91, v7")
    A("v_mul_f32 v35, v11, v33")
    A("v_max_u32_dpp v14, v14, v14 row_shr:4 row_mask:0xf bank_mask:0xf")
    A("v_mul_f32 v7, s92, v7")
    A(f"v_mul_f32 v35, {INV2PI}, v35")
    A("v_max_u32_dpp v14, v14, v14 row_shr:8 row_mask:0xf bank_mask:0xf")
    A("v_fma_f32 v34, v34, v7, v34")
    A("v_lshlrev_b32 v12, 16, v12")
    A("v_max_u32_dpp v14, v14, v14 row_bcast:15 row_mask:0xa bank_mask:0xf")
    A("v_cvt_pk_bf16_f32 v34, v34, v34")
    A("v_lshlrev_b32 v13, 16, v13")
    A("v_max_u32_dpp v14, v14, v14 row_bcast:31 row_mask:0xc bank_mask:0xf")
    A("v_and_b32 v34, 0xffff0000, v34")
    A("v_mul_f32 v34, v34, v33")
    A("v_readlane_b32 s8, v14, 63")
    A("v_mul_f32 v34, s90, v34")
    A("v_sub_f32 v34, 0, v34")
    A("s_lshr_b32 s8, s8, 7")
    A("s_max_u32 s8, s8, 6")
    A("s_min_u32 s8, s8, 253")
    A("s_sub_u32 s9, 260, s8")
    A("s_lshl_b32 s9, s9, 23")
    A("s_sub_u32 s10, s8, 132")

    def direct(t, p):
        lit = "1.0" if p == 1 else hex(fbits(float(p)))
        A(f"v_mul_f32 v{t}, {lit}, v34")
        A(f"v_mul_f32 v{t+1}, {lit}, v35")
        A(f"v_fract_f32 v{t+1}, v{t+1}")

    def direct2(t):
        A(f"v_exp_f32 v{t}, v{t}")
        A(f"v_cos_f32 v{t+2}, v{t+1}")
        A(f"v_sin_f32 v{t+3}, v{t+1}")

    def direct_fin(d, t):
        A(f"v_mul_f32 v{d}, v{t}, v{t+2}")
        A(f"v_mul_f32 v{d+1}, v{t}, v{t+3}")

    C = 36
    g = {i: 38 + 2 * (i - 1) for i in range(1, 9)}
    G128, G256, G512, G1024 = 54, 56, 58, 60
    T = [62, 64, 66, 68, 70, 72, 74, 76]
    PK = list(range(78, 86))
    BF, AF = 86, 102
    h = {1: g[8]}
    for i in range(2, 9):
        h[i] = AF + 2 * (i - 2)
    AF2 = 62
    direct(62, 1)
    direct(66, 8)
    direct(70, 128)
    direct2(62)
    direct2(66)
    direct2(70)
    A(f"v_mul_f32 v{C}, s9, v12")
    A(f"v_mul_f32 v{C+1}, s9, v13")
    A("v_ldexp_f32 v6, v33, s10")
    A("s_lshl_b32 s11, s37, 2")
    A(f"s_add_u32 s11, s11, {KA_SC}")
    A("v_mov_b32 v7, s11")
    A("ds_write_b32 v7, v6")
    direct_fin(g[1], 62)
    direct_fin(g[8], 66)
    direct_fin(G128, 70)
    stamp(A, 3)

    def wr(rows_src, buf, neg):
        regs = []
        for k, (row, src) in enumerate(rows_src):
            p = PK[k % 8]
            if src is None:
                A(f"v_mov_b32 v{p}, 0x00003c00")
            else:
                A(f"v_cvt_pk_f16_f32 v{p}, v{src}, {'-' if neg else ''}v{src+1}")
            regs.append(p)
        k = 0
        n = 0
        while k < len(rows_src):
            r0 = rows_src[k][0]
            if k + 1 < len(rows_src) and rows_src[k + 1][0] // 4 == r0 // 4:
                r1 = rows_src[k + 1][0]
                A(f"ds_write2_b32 v{AW + 4*buf + r0//4}, v{regs[k]}, v{regs[k+1]} offset0:{(r0%4)*72} offset1:{(r1%4)*72}")
                k += 2
            else:
                A(f"ds_write_b32 v{AW + 4*buf + r0//4}, v{regs[k]} offset:{(r0%4)*K1_ROWB}")
                k += 1
            n += 1
        return n

    def frags(dst, buf):
        for j in range(4):
            A(f"ds_read_b128 {vr(dst+4*j,4)}, v32 offset:{buf*K1_BUF + 64*j}")

    def mfmas(acc, a, b):
        for j in range(4):
            A(f"v_mfma_f32_16x16x32_f16 {vr(acc,4)}, {vr(a+4*j,4)}, {vr(b+4*j,4)}, {vr(acc,4)}")

    cmul_batch(A, [(g[2], g[1], g[1]), (h[2], h[1], h[1]), (G256, G128, G128)])
    cmul_batch(A, [(g[3], g[2], g[1]), (g[4], g[2], g[2]), (h[3], h[2], h[1]), (h[4], h[2], h[2]), (G512, G256, G256)])
    cmul_batch(A, [(g[5], g[4], g[1]), (g[6], g[4], g[2]), (g[7], g[4], g[3]), (h[5], h[4], h[1]), (h[6], h[4], h[2]),
                   (h[7], h[4], h[3]), (h[8], h[4], h[4]), (G1024, G512, G512)])
    for i in range(4):
        A(f"v_mov_b32 v{20+i}, 0")
        A(f"v_mov_b32 v{24+i}, 0")
        A(f"v_mov_b32 v{4+i}, 0")
    wr([(0, None)] + [(i, h[i]) for i in range(1, 8)], 0, False)
    cmul_batch(A, [(T[i - 1], h[8], h[i]) for i in range(1, 8)])
    wr([(8, h[8])] + [(8 + i, T[i - 1]) for i in range(1, 8)], 0, False)
    frags(BF, 0)
    stamp(A, 4)
    c128 = T[7]
    cmul_batch(A, [(T[i - 1], C, g[i]) for i in range(1, 8)] + [(c128, C, G128)])
    wr([(0, C)] + [(i, T[i - 1]) for i in range(1, 8)], 1, True)
    cmul_batch(A, [(T[i - 1], c128, g[i]) for i in range(1, 8)])
    wr([(8, c128)] + [(8 + i, T[i - 1]) for i in range(1, 8)], 1, True)
    frags(AF, 1)
    cmul_batch(A, [(T[0], C, G512), (T[4], C, G1024)])
    cmul_batch(A, [(T[1], T[0], G128), (T[2], T[0], G256), (T[5], T[4], G256), (T[6], T[4], G512)])
    cmul_batch(A, [(T[3], T[2], G128), (T[7], T[6], G256)])
    n1 = wr([(i, T[i]) for i in range(4)] + [(8 + i, T[4 + i]) for i in range(4)], 0, True)
    c2048 = g[1]
    cmul_batch(A, [(c2048, T[4], G1024)])
    D4 = [g[3], g[5], g[7], g[8]]
    cmul_batch(A, [(D4[i], T[i], g[4]) for i in range(4)])
    A("s_waitcnt lgkmcnt(%d)" % n1)
    mfmas(20, AF, BF)
    cmul_batch(A, [(T[i], T[4 + i], G128) for i in range(4)])
    wr([(4 + i, D4[i]) for i in range(4)] + [(12 + i, T[i]) for i in range(4)], 0, True)
    frags(AF, 0)
    stamp(A, 5)
    cmul_batch(A, [(T[0], C, G256)])
    cmul_batch(A, [(T[4], T[0], G128), (T[1], T[0], g[2]), (T[2], T[0], g[4]), (T[3], T[0], g[6])])
    cmul_batch(A, [(T[5], T[4], g[2]), (T[6], T[4], g[4]), (T[7], T[4], g[6])])
    n2 = wr([(i, T[i]) for i in range(8)], 1, True)
    n2 += wr([(8, c2048)], 1, True)
    A("s_waitcnt lgkmcnt(%d)" % n2)
    mfmas(24, AF, BF)
    frags(AF2, 1)
    A("s_waitcnt lgkmcnt(0)")
    mfmas(4, AF2, BF)
    A("v_lshlrev_b32 v28, 4, v2")
    A("v_add_u32 v30, s7, v28")
    for t, r in enumerate((20, 24, 4)):
        A(f"ds_write_b128 v30, {vr(r,4)} offset:{1024*t}")
    stamp(A, 6)


def expand_round(A, r, lbl):
    A("v_lshlrev_b32 v28, 4, v2")
    A("v_add_u32 v28, s39, v28")
    A("s_mov_b32 s22, 0x01000100")
    A("s_mov_b32 s23, 0x03020302")
    if r < 2:
        A("v_lshlrev_b32 v26, 1, v2")
        A(f"v_sub_u32 v26, {2*(384+255) - 128*r}, v26")
        A("v_add_u32 v26, s40, v26")
        A("ds_read_u16 v40, v26")
        A("ds_read_u16 v41, v26 offset:2")
        A("v_and_b32 v16, 1, v2")
        A("v_cmp_eq_u32 s[20:21], 1, v16")
        A("s_waitcnt lgkmcnt(0)")
        w = 40
        A(f"v_lshl_or_b32 v{w}, v{w+1}, 16, v{w}")
        A(f"v_perm_b32 v{w+2}, v{w}, v{w}, s23")
        A(f"v_perm_b32 v{w+4}, v{w}, v{w}, s22")
        A(f"v_alignbit_b32 v{w+1}, v{w}, v{w}, 16")
        A(f"v_mov_b32 v{w+5}, v{w+4}")
        A(f"v_mov_b32 v{w+6}, v{w+2}")
        A(f"v_cndmask_b32 v{w+3}, v{w+2}, v{w+1}, s[20:21]")
        A(f"v_cndmask_b32 v{w+7}, v{w+1}, v{w+4}, s[20:21]")
        A(f"ds_write_b64 v28, {vr(w+2,2)} offset:{KA_KE + 1024*r}")
        A(f"ds_write_b64 v28, {vr(w+4,2)} offset:{KA_KE + 1024*r + 8}")
        A(f"ds_write_b64 v28, {vr(w+6,2)} offset:{KA_KO + 1024*r}")
        A(f"ds_write_b64 v28, {vr(w+4,2)} offset:{KA_KO + 1024*r + 8}")
    elif r == 2:
        A("v_lshlrev_b32 v27, 2, v2")
        A(f"v_sub_u32 v27, {512 + 4*127}, v27")
        A("v_add_u32 v27, s40, v27")
        A("ds_read_b32 v56, v27")
        A("ds_read_u16 v57, v27 offset:4")
        A("s_mov_b32 s24, 0x07060100")
        A("s_waitcnt lgkmcnt(0)")
        A("v_perm_b32 v40, v57, v57, s22")
        A("v_perm_b32 v41, v56, v56, s23")
        A("v_alignbit_b32 v42, v56, v56, 16")
        A("v_perm_b32 v43, v56, v56, s22")
        A("v_perm_b32 v44, v56, v57, s24")
        A("v_mov_b32 v45, v41")
        A("v_mov_b32 v46, v43")
        A("v_mov_b32 v47, v43")
        A(f"ds_write_b128 v28, v[40:43] offset:{KA_KE + 2048}")
        A(f"ds_write_b128 v28, v[44:47] offset:{KA_KO + 2048}")
    else:
        for k in range(9):
            A(f"ds_read_u16 v{40+k}, v{30+k}")
        A("v_mov_b32 v12, 0")
        A("v_and_b32 v14, 15, v2")
        A("v_lshlrev_b32 v14, 2, v14")
        A("v_add_u32 v14, s39, v14")
        A(f"ds_write_b32 v14, v12 offset:{KA_KE + 4096}")
        A(f"ds_write_b32 v14, v12 offset:{KA_KO + 4096}")
        A("s_waitcnt lgkmcnt(2)")
        for k in range(4):
            A(f"v_lshl_or_b32 v{52+k}, v{41+2*k}, 16, v{40+2*k}")
        A("v_alignbit_b32 v56, v53, v52, 16")
        A("v_alignbit_b32 v57, v54, v53, 16")
        A("v_alignbit_b32 v58, v55, v54, 16")
        A("v_alignbit_b32 v59, v48, v55, 16")
        A(f"ds_write_b128 v28, v[52:55] offset:{KA_KE + 3072}")
        A(f"ds_write_b128 v28, v[56:59] offset:{KA_KO + 3072}")
        A("v_mov_b32 v14, s39")
        A(f"ds_write_b16 v14, v12 offset:{KA_KO + 2*2047}")


def ka(A):
    A("s_cmp_ge_u32 s2, 256")
    A("s_cbranch_scc1 KA_END")
    k_begin(A)
    A("s_load_dwordx16 s[16:31], s[0:1], 0")
    A("s_load_dwordx4 s[44:47], s[0:1], 104")
    A("v_lshrrev_b32 v1, 6, v0")
    A("v_readfirstlane_b32 s3, v1")
    A("v_and_b32 v2, 63, v0")
    A("v_mov_b32 v3, 0")
    A("v_lshlrev_b32 v4, 2, v2")
    A(f"v_add_u32 v4, {KA_CNT}, v4")
    A("s_cmp_lg_u32 s3, 0")
    A("s_cbranch_scc1 KA_NOZ")
    A("s_mov_b64 exec, 0xffffffff")
    A("ds_write_b32 v4, v3")
    A("s_mov_b64 exec, -1")
    A.label("KA_NOZ")
    A(f"s_sub_u32 s4, s2, {NPROD}")
    pair_swizzle(A, 35, 4, 6)
    A("s_sub_u32 s4, s3, 4")
    A("s_mul_i32 s37, s4, 11")
    A("s_lshr_b32 s37, s37, 5")
    A("s_mul_i32 s36, s37, 3")
    A("s_sub_u32 s36, s4, s36")
    A("s_lshl_b32 s34, s35, 2")
    A("s_add_u32 s34, s34, s37")
    A(f"s_mul_i32 s7, s4, {KG_SZ}")
    A("s_mul_i32 s4, s34, 384")
    A("s_lshr_b32 s5, s34, 1")
    A("s_lshl_b32 s5, s5, 2")
    A("s_lshl_b32 s8, s36, 7")
    A("s_add_u32 s8, s8, s4")
    A("v_lshlrev_b32 v3, 1, v2")
    A("v_add_u32 v1, s8, v3")
    A("v_add_u32 v3, s4, v3")
    A("s_waitcnt lgkmcnt(0)")
    A("s_mov_b32 s32, s46")
    A("s_mov_b32 s33, s47")
    A("s_cmp_lt_u32 s3, 4")
    A("s_cbranch_scc1 KA_B0")
    A(f"s_cmp_lt_u32 s2, {NPROD}")
    A("s_cbranch_scc1 KA_B0")
    A("s_load_dword s6, s[26:27], s5")
    A("global_load_ushort v10, v1, s[18:19]")
    A("global_load_ushort v11, v1, s[20:21]")
    A("global_load_ushort v12, v1, s[22:23]")
    A("global_load_ushort v13, v1, s[24:25]")
    for i in range(3):
        A(f"global_load_ushort v{14+i}, v3, s[22:23] offset:{128*i}")
        A(f"global_load_ushort v{17+i}, v3, s[24:25] offset:{128*i}")
    A.label("KA_B0")
    A("s_barrier")
    A("s_cmp_lt_u32 s3, 3")
    A("s_cbranch_scc1 KA_LN1")
    A("s_cmp_lg_u32 s3, 3")
    A("s_cbranch_scc1 KA_NOTAG")
    A(f"s_mov_b32 s14, {WS_EPOCH}")
    A("s_load_dword s15, s[32:33], s14")
    A(f"v_mov_b32 v18, {KA_CNT + 96}")
    A("s_waitcnt lgkmcnt(0)")
    A("s_mul_i32 s15, s15, 0x9E3779B1")
    A("s_add_u32 s15, s15, 0x632BE5AB")
    A("v_mov_b32 v19, s15")
    A("ds_write_b32 v18, v19")
    A("s_waitcnt lgkmcnt(0)")
    A(f"v_mov_b32 v18, {KA_CNT + 12}")
    A("v_mov_b32 v19, 1")
    A("s_mov_b64 exec, 1")
    A("ds_add_u32 v18, v19")
    A("s_mov_b64 exec, -1")
    A(f"s_cmp_ge_u32 s2, {NPROD}")
    A("s_cbranch_scc1 KA_CONV")
    A("s_branch KA_WTPOLL")
    A.label("KA_NOTAG")
    A(f"s_cmp_lt_u32 s2, {NPROD}")
    A("s_cbranch_scc1 KA_WT0")
    kgen_wave(A)
    arrive_s(A, 4, 37)
    wait_s(A, 4, 37, 3, "KA_W4")
    stamp(A, 7)
    A(f"s_mul_i32 s11, s37, {3*KG_SZ}")
    A("s_lshl_b32 s12, s36, 10")
    A("s_add_u32 s11, s11, s12")
    A("v_add_u32 v28, s11, v28")
    for w in range(3):
        A(f"ds_read_b128 {vr(40+4*w,4)}, v28 offset:{KG_SZ*w}")
    A("s_waitcnt lgkmcnt(0)")
    for i in range(4):
        A(f"v_add_f32 v{40+i}, v{40+i}, v{44+i}")
    for i in range(4):
        A(f"v_add_f32 v{40+i}, v{40+i}, v{48+i}")
    A("v_cvt_pk_f16_f32 v40, v40, v41")
    A("v_cvt_pk_f16_f32 v41, v42, v43")
    A("s_cmp_eq_u32 s36, 1")
    A("s_cbranch_scc1 KA_S1")
    A("ds_write_b64 v29, v[40:41]")
    A("s_branch KA_S2")
    A.label("KA_S1")
    A("ds_write_b16 v29, v40")
    A("ds_write_b16_d16_hi v29, v40 offset:64")
    A("ds_write_b16 v29, v41 offset:128")
    A("ds_write_b16_d16_hi v29, v41 offset:192")
    A.label("KA_S2")
    arrive_s(A, 8, 37)
    wait_s(A, 8, 37, 3, "KA_W5")
    A(f"s_mul_i32 s39, s37, {KEO_ST}")
    A(f"s_add_u32 s39, s39, {KEO_BASE}")
    A(f"s_mul_i32 s40, s37, {T_ST}")
    A(f"s_add_u32 s40, s40, {KA_T}")
    A("s_cmp_eq_u32 s36, 0")
    A("s_cbranch_scc1 KA_R0")
    A("s_cmp_eq_u32 s36, 1")
    A("s_cbranch_scc1 KA_R1")
    expand_round(A, 2, "R2")
    A("s_branch KA_RX")
    A.label("KA_R0")
    expand_round(A, 0, "R0")
    A("s_branch KA_RX")
    A.label("KA_R1")
    expand_round(A, 1, "R1")
    A.label("KA_RX")
    arrive_s(A, 12, 37)
    k_end(A, 0)

    A.label("KA_CONV")
    A("s_lshl_b32 s4, s35, 2")
    A("s_add_u32 s4, s4, s3")
    A("s_lshr_b32 s14, s4, 1")
    A("s_lshl_b32 s14, s14, 2")
    A(f"s_mul_i32 s39, s3, {KEO_ST}")
    A(f"s_mul_i32 s40, s3, {T_ST}")
    A(f"s_add_u32 s40, s40, {KA_T}")
    A(f"s_mul_i32 s41, s3, {U_ST}")
    A(f"s_add_u32 s41, s41, {KA_U}")
    A("v_and_b32 v6, 15, v2")
    A("v_lshrrev_b32 v7, 4, v2")
    A("v_lshrrev_b32 v8, 1, v7")
    A("v_and_b32 v9, 1, v7")
    A("v_mov_b32 v12, 0")
    A("v_mov_b32 v13, 0")
    A("v_lshlrev_b32 v14, 3, v2")
    A("v_add_u32 v14, s41, v14")
    A("ds_write_b64 v14, v[12:13]")
    A("v_sub_u32 v14, 2047, v6")
    A("v_lshlrev_b32 v15, 4, v8")
    A("v_sub_u32 v14, v14, v15")
    A("v_lshlrev_b32 v15, 3, v9")
    A("v_add_u32 v14, v14, v15")
    A("v_lshlrev_b32 v14, 1, v14")
    A(f"v_add_u32 v15, {KA_KO - 2}, v14")
    A("v_and_b32 v16, 1, v6")
    A("v_cmp_eq_u32 vcc, 1, v16")
    A("v_cndmask_b32 v14, v15, v14, vcc")
    A("v_add_u32 v14, s39, v14")
    AB = [20, 21, 22, 23]
    for p in range(4):
        A(f"v_subrev_u32 v{AB[p]}, {512*(2*p+1) + 448}, v14")
    A("v_lshlrev_b32 v15, 5, v6")
    A("v_lshlrev_b32 v16, 5, v8")
    A("v_sub_u32 v15, v15, v16")
    A("v_lshlrev_b32 v16, 4, v9")
    A("v_add_u32 v15, v15, v16")
    A(f"v_add_u32 v15, {512 - 448}, v15")
    BB = 24
    A(f"v_add_u32 v{BB}, s41, v15")
    A("v_lshlrev_b32 v15, 5, v6")
    A("v_lshlrev_b32 v16, 3, v7")
    A("v_add_u32 v25, v15, v16")
    A("v_lshlrev_b32 v3, 3, v2")
    A("v_sub_u32 v3, 511, v3")
    for k in range(9):
        A(f"v_subrev_u32 v{30+k}, {k}, v3")
    A("v_max_i32 v38, 0, v38")
    for k in range(9):
        A(f"v_cvt_f32_i32 v{40+k}, v{30+k}")
    for k in range(0, 8, 2):
        A(f"v_cvt_pk_bf16_f32 v{50+k}, v{40+k}, v{41+k}")
        A(f"v_lshrrev_b32 v{51+k}, 16, v{50+k}")
        A(f"v_and_b32 v{50+k}, 0xffff, v{50+k}")
    A("v_cvt_pk_bf16_f32 v58, v48, v48")
    A("v_and_b32 v58, 0xffff, v58")
    for k in range(9):
        A(f"v_subrev_u32 v{50+k}, 17024, v{50+k}")
        A(f"v_min_i32 v{30+k}, 127, v{30+k}")
        A(f"v_max_i32 v{50+k}, v{50+k}, v{30+k}")
        A(f"v_lshlrev_b32 v{30+k}, 1, v{50+k}")
        A(f"v_add_u32 v{30+k}, s40, v{30+k}")
    A("v_lshrrev_b32 v5, 2, v2")
    A("v_mul_u32_u24 v5, 10240, v5")
    A("v_and_b32 v4, 3, v2")
    A("v_lshl_add_u32 v5, v4, 4, v5")
    A("s_lshl_b32 s7, s35, 6")
    A("s_mul_i32 s8, s3, 655360")
    A("s_add_u32 s7, s7, s8")
    A(f"s_add_u32 s7, s7, {WS_UT}")
    A("v_add_u32 v5, s7, v5")
    A(f"v_mul_u32_u24 v4, {U_ST}, v4")
    A("v_lshrrev_b32 v3, 2, v2")
    A("v_lshl_add_u32 v4, v3, 4, v4")
    A("s_lshl_b32 s8, s3, 10")
    A(f"s_add_u32 s8, s8, {KA_U + 512}")
    A("v_add_u32 v4, s8, v4")
    A("s_load_dword s11, s[28:29], s14")
    stamp(A, 1)
    A("s_cmp_lg_u32 s3, 3")
    A("s_cbranch_scc1 KA_GOT")
    wait_count(A, 3, 4, "KA_OWN", sleep=4)
    poll_flags(A, "KA_POLL")
    A(f"s_cmp_lg_u32 s2, {NPROD}")
    A("s_cbranch_scc1 KA_GOT")
    A(f"v_mov_b32 v3, {WS_EPOCH}")
    A("v_mov_b32 v10, s15")
    A("s_mov_b64 exec, 1")
    A(f"global_store_dword v3, v10, s[32:33] {SC}")
    A("s_mov_b64 exec, -1")
    A.label("KA_GOT")
    AF, BF, ACC = 32, 64, 96
    for i in range(32):
        A(f"v_mov_b32 v{ACC+i}, 0")
    A("s_bitcmp1_b32 s4, 0")
    group_sync(A, 2, 4, "KA_GS2")
    stamp(A, 2)
    for j in range(4):
        A(f"global_load_dwordx4 {vr(64+4*j,4)}, v5, s[32:33] {SC}")
        if j < 3:
            A("v_add_u32 v5, 163840, v5")
    A("s_bitcmp1_b32 s4, 0")
    A("s_cbranch_scc1 KA_ODD2")
    A("s_lshl_b32 s11, s11, 16")
    A.label("KA_ODD2")
    A("s_and_b32 s11, s11, 0xffff0000")
    for j in range(4):
        A(f"s_waitcnt vmcnt({3-j})")
        A(f"ds_write_b128 v4, {vr(64+4*j,4)} offset:{256*j}")
    arrive(A, 17)
    stamp(A, 3)
    wait_s(A, 8, 3, 3, "KA_W5C")
    expand_round(A, 3, "R3")
    A("s_lshl_b32 s12, s3, 2")
    A(f"s_add_u32 s12, s12, {KA_SC}")
    A("v_mov_b32 v3, s12")
    A("ds_read_b32 v10, v3")
    wait_s(A, 12, 3, 3, "KA_W6")
    wait_count(A, 17, 4, "KA_W7", sleep=0)
    stamp(A, 5)

    def loadA(q, i0):
        p = q // 2
        o = (128 if q % 2 == 0 else 0) + 16 * (7 - i0)
        return [f"ds_read2_b32 {vr(AF+4*q,2)}, v{AB[p]} offset0:{o} offset1:{o+1}",
                f"ds_read2_b32 {vr(AF+4*q+2,2)}, v{AB[p]} offset0:{o+2} offset1:{o+3}"]

    def loadB(tau, i0):
        return [f"ds_read_b128 {vr(BF+4*tau,4)}, v{BB} offset:{512*tau + 64*(7-i0)}"]

    queue = []
    for q in range(8):
        A(loadB(7 - q, 0)[0])
        queue.append(("B", 7 - q))
        if q == 0:
            for s in loadA(0, 0):
                A(s)
            queue += [("A", 0), ("A", 0)]
    for q in range(1, 8):
        for s in loadA(q, 0):
            A(s)
        queue += [("A", q), ("A", q)]
    pending = []

    def wait_for(tags):
        while any(tg in tags for _, tg in pending):
            s_, tg = pending.pop(0)
            A(s_)
            queue.append(tg)
        last = -1
        for i, t in enumerate(queue):
            if t in tags:
                last = i
        if last >= 0:
            n = len(queue) - 1 - last
            A(f"s_waitcnt lgkmcnt({min(n, 15)})")
            del queue[:last + 1]

    for i0 in range(8):
        for q in range(8):
            for tau in range(7 - q, -1, -1):
                wait_for({("A", q), ("B", tau)})
                t = q + tau
                A(f"v_mfma_f32_16x16x32_f16 {vr(ACC+4*t,4)}, {vr(AF+4*q,4)}, {vr(BF+4*tau,4)}, {vr(ACC+4*t,4)}")
                if i0 < 7:
                    if tau == 7 - q:
                        pending.insert(0, (loadB(7 - q, i0 + 1)[0], ("B", 7 - q)))
                    if tau == 0:
                        for s in loadA(q, i0 + 1):
                            pending.append((s, ("A", q)))
                if pending:
                    s, tag = pending.pop(0)
                    A(s)
                    queue.append(tag)
    stamp(A, 6)
    A("v_add_u32 v26, s41, v25")
    A("v_add_u32 v27, s39, v25")
    for t in range(8):
        A(f"ds_read_b64 {vr(32+2*t,2)}, v26 offset:{512 + 512*t}")
    A(f"v_mov_b32 v28, {ONE_LO}")
    A(f"v_mov_b32 v29, {ONE_HI}")
    A("v_mov_b32 v11, v10")
    A("s_waitcnt lgkmcnt(0)")
    for t in range(8):
        a = ACC + 4 * t
        u = 32 + 2 * t
        tm = 48 + 8 * (t & 1)
        A(f"v_pk_mul_f32 {vr(a,2)}, {vr(a,2)}, v[10:11]")
        A(f"v_pk_mul_f32 {vr(a+2,2)}, {vr(a+2,2)}, v[10:11]")
        A(f"v_fma_mix_f32 v{tm}, v{u}, s11, 0 op_sel:[0,0,0] op_sel_hi:[1,0,0]")
        A(f"v_fma_mix_f32 v{tm+1}, v{u}, s11, 0 op_sel:[1,0,0] op_sel_hi:[1,0,0]")
        A(f"v_fma_mix_f32 v{tm+2}, v{u+1}, s11, 0 op_sel:[0,0,0] op_sel_hi:[1,0,0]")
        A(f"v_fma_mix_f32 v{tm+3}, v{u+1}, s11, 0 op_sel:[1,0,0] op_sel_hi:[1,0,0]")
        A(f"v_cvt_pk_bf16_f32 v{a}, v{a}, v{a+1}")
        A(f"v_cvt_pk_bf16_f32 v{a+1}, v{a+2}, v{a+3}")
        A(f"v_cvt_pk_bf16_f32 v{tm+4}, v{tm}, v{tm+1}")
        A(f"v_cvt_pk_bf16_f32 v{tm+5}, v{tm+2}, v{tm+3}")
        A(f"v_lshlrev_b32 v{tm}, 16, v{tm+4}")
        A(f"v_and_b32 v{tm+1}, 0xffff0000, v{tm+4}")
        A(f"v_lshlrev_b32 v{tm+2}, 16, v{tm+5}")
        A(f"v_and_b32 v{tm+3}, 0xffff0000, v{tm+5}")
        A(f"v_dot2_f32_bf16 v{tm}, v{a}, v28, v{tm}")
        A(f"v_dot2_f32_bf16 v{tm+1}, v{a}, v29, v{tm+1}")
        A(f"v_dot2_f32_bf16 v{tm+2}, v{a+1}, v28, v{tm+2}")
        A(f"v_dot2_f32_bf16 v{tm+3}, v{a+1}, v29, v{tm+3}")
        A(f"v_cvt_pk_bf16_f32 v{a+2}, v{tm}, v{tm+1}")
        A(f"v_cvt_pk_bf16_f32 v{a+3}, v{tm+2}, v{tm+3}")
        A(f"ds_write_b64 v27, {vr(a+2,2)} offset:{KA_KE + 512*t}")
    stamp(A, 7)
    A("v_lshrrev_b32 v14, 2, v6")
    A(f"v_mul_u32_u24 v14, {KEO_ST}, v14")
    A("v_and_b32 v15, 3, v2")
    A("v_lshlrev_b32 v15, 3, v15")
    A("v_add_u32 v14, v14, v15")
    A("v_lshlrev_b32 v15, 5, v7")
    A("v_add_u32 v14, v14, v15")
    A("s_lshl_b32 s12, s3, 10")
    A("v_add_u32 v14, s12, v14")
    A("v_lshrrev_b32 v15, 3, v6")
    A("v_lshlrev_b32 v16, 1, v7")
    A("v_add_u32 v15, v15, v16")
    A("v_mul_u32_u24 v15, 10240, v15")
    A("v_and_b32 v16, 7, v6")
    A("v_lshlrev_b32 v16, 4, v16")
    A("v_add_u32 v15, v15, v16")
    A("s_mul_i32 s12, s3, 655360")
    A("s_lshr_b32 s13, s35, 1")
    A("s_lshl_b32 s13, s13, 7")
    A("s_add_u32 s12, s12, s13")
    A("s_and_b32 s13, s35, 1")
    A("s_lshl_b32 s13, s13, 3")
    A("s_add_u32 s12, s12, s13")
    A(f"s_add_u32 s12, s12, {WS_AT}")
    A("v_add_u32 v15, s12, v15")
    A("s_waitcnt lgkmcnt(0)")
    A("s_barrier")
    for k in range(8):
        A(f"ds_read_b64_tr_b16 {vr(40+2*k,2)}, v14 offset:{KA_KE + 128*k}")
    for k in range(8):
        A(f"s_waitcnt lgkmcnt({7-k})")
        A(f"global_store_dwordx2 v15, {vr(40+2*k,2)}, s[32:33]")
        if k < 7:
            A("v_add_u32 v15, 81920, v15")
    k_end(A, 0)

    A.label("KA_LN1")
    A("s_setprio 3")
    A("v_mov_b32 v20, v0")
    A("s_mul_i32 s5, s2, 10240")
    A("v_min_u32 v21, 159, v20")
    A("v_lshlrev_b32 v3, 3, v21")
    A("v_add_u32 v3, s5, v3")
    A("v_add_u32 v4, 5120, v3")
    A("v_lshrrev_b32 v5, 4, v20")
    A("v_mul_u32_u24 v6, 1280, v5")
    A("v_and_b32 v7, 15, v20")
    A("v_lshlrev_b32 v7, 4, v7")
    A("v_add_u32 v6, v6, v7")
    A("v_add_u32 v6, s5, v6")
    A("s_cmp_eq_u32 s3, 2")
    A("s_cbranch_scc1 KA_LNB")
    for i in range(5):
        A(f"global_load_dwordx4 {vr(24+4*i,4)}, v6, s[16:17] offset:{256*i}")
    A.label("KA_LNB")
    for r in range(8):
        A(f"global_load_dwordx2 {vr(48+2*r,2)}, v{3 if r < 4 else 4}, s[16:17] offset:{1280*(r%4)}")
    A(f"v_mov_b32 v14, {ONE_LO}")
    A(f"v_mov_b32 v15, {ONE_HI}")
    A("s_cmp_eq_u32 s3, 2")
    A("s_cbranch_scc1 KA_P1")
    for r in (8, 9, 10, 11):
        A(f"v_mov_b32 v{r}, 0")
    A("v_mov_b32 v12, 0x3f803f80")
    A("s_waitcnt vmcnt(8)")
    for i in range(0, 20, 2):
        A(f"v_dot2c_f32_bf16 v8, v{24+i}, v12")
        A(f"v_dot2c_f32_bf16 v9, v{24+i}, v{24+i}")
        A(f"v_dot2c_f32_bf16 v10, v{25+i}, v12")
        A(f"v_dot2c_f32_bf16 v11, v{25+i}, v{25+i}")
    A("s_nop 2")
    A("v_add_f32 v8, v8, v10")
    A("v_add_f32 v9, v9, v11")
    for sh in (8, 4, 2, 1):
        A(f"v_add_f32_dpp v8, v8, v8 row_ror:{sh} row_mask:0xf bank_mask:0xf")
        A(f"v_add_f32_dpp v9, v9, v9 row_ror:{sh} row_mask:0xf bank_mask:0xf")
    ln_finish(A, 8, 9, 10)
    A("v_sub_f32 v8, 0, v8")
    A("v_lshlrev_b32 v5, 3, v5")
    A(f"v_add_u32 v5, {KA_STATS}, v5")
    A("ds_write_b64 v5, v[8:9]")
    A.label("KA_P1")
    group_sync(A, 0, 3, "KA_GS0")
    stamp(A, 8)
    A(f"v_mov_b32 v5, {KA_STATS}")
    for i in range(4):
        A(f"ds_read_b128 {vr(24+4*i,4)}, v5 offset:{16*i}")
    A("v_lshlrev_b32 v3, 6, v21")
    A(f"v_add_u32 v3, {KA_STAGE}, v3")
    A("s_waitcnt vmcnt(0) lgkmcnt(0)")
    for rp in range(4):
        r0, r1 = 2 * rp, 2 * rp + 1
        tt = [84 + 3 * ch for ch in range(4)]
        for ch in range(4):
            a, b = 48 + 2 * r0 + (ch >> 1), 48 + 2 * r1 + (ch >> 1)
            one = 14 + (ch & 1)
            A(f"v_dot2_f32_bf16 v{tt[ch]}, v{a}, v{one}, v{24+2*r0}")
            A(f"v_dot2_f32_bf16 v{tt[ch]+1}, v{b}, v{one}, v{24+2*r1}")
        for ch in range(4):
            A(f"v_cvt_pk_bf16_f32 v{tt[ch]+2}, v{tt[ch]}, v{tt[ch]+1}")
        for ch in range(4):
            A(f"v_lshlrev_b32 v{tt[ch]}, 16, v{tt[ch]+2}")
            A(f"v_and_b32 v{tt[ch]+1}, 0xffff0000, v{tt[ch]+2}")
        for ch in range(4):
            A(f"v_mul_f32 v{tt[ch]}, v{tt[ch]}, v{25+2*r0}")
            A(f"v_mul_f32 v{tt[ch]+1}, v{tt[ch]+1}, v{25+2*r1}")
        for ch in range(4):
            A(f"v_cvt_pk_bf16_f32 v{tt[ch]+2}, v{tt[ch]}, v{tt[ch]+1}")
        for ch in range(4):
            A(f"v_lshlrev_b32 v{tt[ch]}, 16, v{tt[ch]+2}")
            A(f"v_and_b32 v{tt[ch]+1}, 0xffff0000, v{tt[ch]+2}")
        for ch in range(4):
            A(f"v_cvt_pk_f16_f32 v{68+4*ch+rp}, v{tt[ch]}, v{tt[ch]+1}")
    for ch in range(4):
        A(f"ds_write_b128 v3, {vr(68+4*ch,4)} offset:{16*ch}")
    group_sync(A, 1, 3, "KA_GS1")
    A("v_lshlrev_b32 v3, 4, v20")
    A(f"v_add_u32 v4, {KA_STAGE}, v3")
    for j in range(4):
        A(f"ds_read_b128 {vr(24+4*j,4)}, v4 offset:{3072*j}")
    A(f"s_add_u32 s5, s5, {WS_UT}")
    A("v_add_u32 v3, s5, v3")
    A("s_waitcnt lgkmcnt(0)")
    for j in range(3):
        A(f"global_store_dwordx4 v3, {vr(24+4*j,4)}, s[32:33] {SC}")
        A("v_add_u32 v3, 3072, v3")
    A("s_cmp_lg_u32 s3, 0")
    A("s_cbranch_scc1 KA_P3")
    A(f"global_store_dwordx4 v3, {vr(36,4)}, s[32:33] {SC}")
    A.label("KA_P3")
    A("s_waitcnt vmcnt(0)")
    group_sync(A, 3, 4, "KA_GS3")
    stamp(A, 9)
    A("s_cmp_lg_u32 s3, 0")
    A("s_cbranch_scc1 KA_LNX")
    A(f"v_mov_b32 v3, {KA_CNT + 96}")
    A("ds_read_b32 v4, v3")
    A(f"s_lshr_b32 s5, s2, {2 if FLAG64 else 4}")
    A("s_lshl_b32 s5, s5, 7")
    A(f"s_and_b32 s6, s2, {3 if FLAG64 else 15}")
    A("s_lshl_b32 s6, s6, 2")
    A("s_add_u32 s5, s5, s6")
    A(f"s_add_u32 s5, s5, {WS_FLAG}")
    A("v_mov_b32 v3, s5")
    A("s_waitcnt lgkmcnt(0)")
    A("s_mov_b64 exec, 1")
    A(f"global_store_dword v3, v4, s[32:33] {FMOD}")
    A("s_mov_b64 exec, -1")
    A.label("KA_LNX")
    A("s_setprio 0")
    A(f"s_cmp_ge_u32 s2, {NPROD}")
    A("s_cbranch_scc1 KA_CONV")
    k_end(A, 0)
    A.label("KA_WTPOLL")
    wait_count(A, 3, 4, "KA_OWN2", sleep=4)
    if not os.environ.get("WT_EARLY"):
        poll_epoch(A, "KA_POLL2")
    arrive(A, 16)
    k_end(A, 0)
    A.label("KA_WT0")
    A("s_cmp_ge_u32 s3, 8")
    A("s_cbranch_scc1 KA_WTX")
    wait_count(A, 16, 1, "KA_WTW", sleep=8)
    wt_role(A, "KA", 0, -2, 8192, 0, 960, 0, os.environ.get("WT_MOD", ""), 384)
    A.label("KA_WTX")
    k_end(A, 0)
    A.label("KA_END")
    A("s_endpgm")


KERNELS4 = [
    ("ka_kernel", ka, 256, 1024, KA_LDS, 128),
    ("k3_kernel", k3, 256, 256, K3_LDS, 96),
    ("k4_kernel", k4, 192 + (80 if PF_WD[0] else 0), 256, K4_LDS, 96),
    ("k5_kernel", k5, 80, 512, K5_LDS, 96),
]

if __name__ == "__main__":
    if len(sys.argv) > 2 and sys.argv[2] == "stamp":
        STAMP[0] = True
    out = build(KERNELS4)
    path = sys.argv[1]
    open(path, "w").write(out)
    print("wrote", path, len(out), "bytes")
```

```python
import sys, os
sys.path.insert(0, os.path.dirname(os.path.abspath(__file__)))
import gen3
from gen3 import *

KG_SZ = 2 * K1_BUF
KEO_ST = 27712
KEO_BASE = 0
KA_KE, KA_KO = 0, 4160
KA_U = 12 * KG_SZ
U_ST = 4608
KA_T = KA_U + 4 * U_ST
T_ST = 1600
KA_SC = KA_T + 4 * T_ST
KA_LN = KA_SC + 64
KA_CNT = KA_LN
KA_STATS = KA_LN + 128
KA_STAGE = KA_LN + 192
KA_LDS = KA_STAGE + 10240 + 2560


def group_sync(A, idx, n, lbl):
    A("s_waitcnt lgkmcnt(0)")
    A(f"v_mov_b32 v18, {KA_CNT + 4*idx}")
    A("v_mov_b32 v19, 1")
    A("s_mov_b64 exec, 1")
    A("ds_add_u32 v18, v19")
    A("s_mov_b64 exec, -1")
    A("s_mov_b32 s12, 0")
    A.label(lbl)
    A("ds_read_b32 v19, v18")
    A("s_waitcnt lgkmcnt(0)")
    A("v_readfirstlane_b32 s13, v19")
    A(f"s_cmp_ge_u32 s13, {n}")
    A(f"s_cbranch_scc1 {lbl}_OK")
    A("s_add_u32 s12, s12, 1")
    A(f"s_cmp_lt_u32 s12, {1 << 22}")
    A(f"s_cbranch_scc1 {lbl}")
    A.label(lbl + "_OK")
NPROD = 96
PREFILL = [False]
WS_FLAG = 0x0920000
WS_EPOCH = 0x0923000
SC = os.environ.get('SCMOD', 'sc1')
PMOD = os.environ.get('PMOD', SC)
FMOD = os.environ.get('FMOD', SC)
SPIN_MAX = 1 << 16
POLL_SLEEP = int(os.environ.get('POLL_SLEEP', '8'))
POLL_FIRST = int(os.environ.get('POLL_FIRST', '32'))
FLAG64 = int(os.environ.get('FLAG64', '0'))


def k_end16(A, kidx):
    if STAMP[0]:
        A(f"s_memtime s[{60+2*(NSTAMP-2)}:{61+2*(NSTAMP-2)}]")
        A("s_waitcnt vmcnt(0) lgkmcnt(0)")
        A("s_memrealtime s[96:97]")
        A(f"s_memtime s[{60+2*(NSTAMP-1)}:{61+2*(NSTAMP-1)}]")
        A("s_mov_b64 exec, -1")
        A("v_lshrrev_b32 v1, 6, v0")
        A("s_lshl_b32 s98, s2, 4")
        A("v_add_u32 v1, s98, v1")
        A("v_lshlrev_b32 v1, 7, v1")
        A(f"v_add_u32 v1, {WS_STAMP + kidx * 0x200000}, v1")
        A("s_waitcnt lgkmcnt(0)")
        A("v_mov_b32 v2, s94")
        A("v_mov_b32 v3, s95")
        A("v_mov_b32 v4, s96")
        A("v_mov_b32 v5, s97")
        A("global_store_dwordx4 v1, v[2:5], s[32:33]")
        for i in range(0, NSTAMP, 2):
            for j in range(4):
                A(f"v_mov_b32 v{2+j}, s{60+2*i+j}")
            A(f"global_store_dwordx4 v1, v[2:5], s[32:33] offset:{16+8*i}")
    A("s_endpgm")


gen3.k_end = k_end16
k_end = k_end16


def arrive(A, idx):
    A("s_waitcnt lgkmcnt(0)")
    A(f"v_mov_b32 v18, {KA_CNT + 4*idx}")
    A("v_mov_b32 v19, 1")
    A("s_mov_b64 exec, 1")
    A("ds_add_u32 v18, v19")
    A("s_mov_b64 exec, -1")


def wait_count(A, idx, n, lbl, sleep=1):
    A(f"v_mov_b32 v18, {KA_CNT + 4*idx}")
    A("s_mov_b32 s12, 0")
    A.label(lbl)
    A("ds_read_b32 v19, v18")
    A("s_waitcnt lgkmcnt(0)")
    A("v_readfirstlane_b32 s13, v19")
    A(f"s_cmp_ge_u32 s13, {n}")
    A(f"s_cbranch_scc1 {lbl}_OK")
    A("s_add_u32 s12, s12, 1")
    if sleep:
        A(f"s_sleep {sleep}")
    A(f"s_cmp_lt_u32 s12, {1 << 22}")
    A(f"s_cbranch_scc1 {lbl}")
    A.label(lbl + "_OK")


def arrive_s(A, base_idx, sreg):
    A("s_waitcnt lgkmcnt(0)")
    A(f"s_lshl_b32 s12, s{sreg}, 2")
    A(f"s_add_u32 s12, s12, {KA_CNT + 4*base_idx}")
    A("v_mov_b32 v18, s12")
    A("v_mov_b32 v19, 1")
    A("s_mov_b64 exec, 1")
    A("ds_add_u32 v18, v19")
    A("s_mov_b64 exec, -1")


def wait_s(A, base_idx, sreg, n, lbl):
    A(f"s_lshl_b32 s12, s{sreg}, 2")
    A(f"s_add_u32 s12, s12, {KA_CNT + 4*base_idx}")
    A("v_mov_b32 v18, s12")
    A("s_mov_b32 s12, 0")
    A.label(lbl)
    A("ds_read_b32 v19, v18")
    A("s_waitcnt lgkmcnt(0)")
    A("v_readfirstlane_b32 s13, v19")
    A(f"s_cmp_ge_u32 s13, {n}")
    A(f"s_cbranch_scc1 {lbl}_OK")
    A("s_add_u32 s12, s12, 1")
    A("s_sleep 1")
    A(f"s_cmp_lt_u32 s12, {1 << 22}")
    A(f"s_cbranch_scc1 {lbl}")
    A.label(lbl + "_OK")


def poll_flags(A, lbl):
    if FLAG64:
        A("v_lshlrev_b32 v3, 7, v2")
        A(f"v_add_u32 v3, {WS_FLAG}, v3")
    else:
        A("v_lshrrev_b32 v3, 4, v2")
        A("v_lshlrev_b32 v3, 7, v3")
        A("v_and_b32 v10, 15, v2")
        A("v_lshl_add_u32 v3, v10, 2, v3")
        A(f"v_add_u32 v3, {WS_FLAG}, v3")
    A("s_mov_b32 s12, 0")
    if POLL_FIRST:
        A(f"s_sleep {POLL_FIRST}")
    A.label(lbl)
    if FLAG64:
        A(f"global_load_dwordx4 v[40:43], v3, s[32:33] {PMOD}")
    else:
        for j in range(4):
            A(f"global_load_dword v{40+j}, v3, s[32:33] offset:{512*j} {PMOD}")
    A("s_waitcnt vmcnt(0)")
    A("v_cmp_ne_u32 vcc, s15, v40")
    A("v_cmp_ne_u32 s[20:21], s15, v41")
    A("v_cmp_ne_u32 s[22:23], s15, v42")
    A("v_cmp_ne_u32 s[24:25], s15, v43")
    A("s_or_b64 vcc, vcc, s[20:21]")
    A("s_or_b64 s[22:23], s[22:23], s[24:25]")
    A("s_or_b64 vcc, vcc, s[22:23]")
    A("s_cmp_eq_u64 vcc, 0")
    A(f"s_cbranch_scc1 {lbl}_SEEN")
    A("s_add_u32 s12, s12, 1")
    A(f"s_cmp_ge_u32 s12, {SPIN_MAX}")
    A(f"s_cbranch_scc1 {lbl}_SEEN")
    A(f"s_sleep {POLL_SLEEP}")
    A(f"s_branch {lbl}")
    A.label(lbl + "_SEEN")


def poll_epoch(A, lbl):
    A(f"v_mov_b32 v3, {WS_EPOCH}")
    A("s_mov_b32 s12, 0")
    A("s_sleep 48")
    A.label(lbl)
    A(f"global_load_dword v40, v3, s[32:33] {SC}")
    A("s_waitcnt vmcnt(0)")
    A("v_readfirstlane_b32 s13, v40")
    A("s_cmp_eq_u32 s13, s15")
    A(f"s_cbranch_scc1 {lbl}_SEEN")
    A("s_add_u32 s12, s12, 1")
    A(f"s_cmp_ge_u32 s12, {SPIN_MAX}")
    A(f"s_cbranch_scc1 {lbl}_SEEN")
    A("s_sleep 16")
    A(f"s_branch {lbl}")
    A.label(lbl + "_SEEN")


def kgen_wave(A):
    A(f"s_mov_b32 s90, {L2E_HI}")
    A(f"s_mov_b32 s91, {L2E_LO}")
    A(f"s_mov_b32 s92, {LN2}")
    A("v_and_b32 v3, 15, v2")
    A("v_lshrrev_b32 v4, 4, v2")
    A("s_cmp_eq_u32 s36, 1")
    A("s_cbranch_scc1 KA_A1")
    A("s_cmp_eq_u32 s36, 2")
    A("s_cbranch_scc1 KA_A2")
    A("v_lshrrev_b32 v5, 1, v4")
    A("v_lshlrev_b32 v5, 7, v5")
    A("v_lshl_add_u32 v5, v3, 3, v5")
    A("v_and_b32 v6, 1, v4")
    A("v_lshl_add_u32 v5, v6, 2, v5")
    A("s_branch KA_A3")
    A.label("KA_A1")
    A("v_lshlrev_b32 v5, 1, v3")
    A("v_add_u32 v5, v5, v4")
    A("v_add_u32 v5, 384, v5")
    A("v_lshlrev_b32 v6, 4, v4")
    A("v_add_u32 v6, v6, v3")
    A("v_add_u32 v6, 480, v6")
    A("v_cmp_gt_u32 vcc, 2, v4")
    A("v_cndmask_b32 v5, v6, v5, vcc")
    A("s_branch KA_A3")
    A.label("KA_A2")
    A("v_lshlrev_b32 v5, 6, v4")
    A("v_lshlrev_b32 v6, 2, v3")
    A("v_add_u32 v5, v5, v6")
    A("v_add_u32 v5, 256, v5")
    A("v_lshlrev_b32 v6, 2, v2")
    A("v_add_u32 v6, 520, v6")
    A("v_cmp_gt_u32 vcc, 2, v4")
    A("v_cndmask_b32 v5, v6, v5, vcc")
    A("v_mov_b32 v6, 640")
    A("v_cmp_eq_u32 vcc, 32, v2")
    A("v_cndmask_b32 v5, v5, v6, vcc")
    A.label("KA_A3")
    A(f"s_mul_i32 s11, s37, {T_ST}")
    A(f"s_add_u32 s11, s11, {KA_T}")
    A("v_lshlrev_b32 v29, 1, v5")
    A("v_add_u32 v29, s11, v29")
    A(f"v_mul_u32_u24 v32, {K1_ROWB}, v3")
    A("v_lshlrev_b32 v5, 4, v4")
    A("v_add_u32 v32, v32, v5")
    A("v_add_u32 v32, s7, v32")
    AW = 120
    A("v_lshlrev_b32 v5, 2, v2")
    A(f"v_add_u32 v{AW}, s7, v5")
    for k in range(1, 8):
        A(f"v_add_u32 v{AW+k}, {(k//4)*K1_BUF + (k%4)*4*K1_ROWB}, v{AW}")
    stamp(A, 1)
    A("s_waitcnt lgkmcnt(0)")
    A("s_bitcmp1_b32 s34, 0")
    A("s_cbranch_scc1 KA_ODD")
    A("s_lshl_b32 s6, s6, 16")
    A.label("KA_ODD")
    A("s_and_b32 s6, s6, 0xffff0000")
    A("v_mov_b32 v5, s6")
    exp_bf16(A, 33, 5, 6, 7)
    A("s_waitcnt vmcnt(0)")
    stamp(A, 2)
    for i in range(6):
        A(f"v_and_b32 v{14+i}, 0x7fff, v{14+i}")
    A("v_max3_u32 v14, v14, v15, v16")
    A("v_max3_u32 v17, v17, v18, v19")
    A("v_max_u32 v14, v14, v17")
    A("v_lshlrev_b32 v10, 16, v10")
    A("v_lshlrev_b32 v11, 16, v11")
    A("v_mul_f32 v6, s90, v10")
    A("v_max_u32_dpp v14, v14, v14 row_shr:1 row_mask:0xf bank_mask:0xf")
    A("v_fma_f32 v7, v10, s90, -v6")
    A("v_exp_f32 v34, v6")
    A("v_max_u32_dpp v14, v14, v14 row_shr:2 row_mask:0xf bank_mask:0xf")
    A("v_fma_f32 v7, v10, s91, v7")
    A("v_mul_f32 v35, v11, v33")
    A("v_max_u32_dpp v14, v14, v14 row_shr:4 row_mask:0xf bank_mask:0xf")
    A("v_mul_f32 v7, s92, v7")
    A(f"v_mul_f32 v35, {INV2PI}, v35")
    A("v_max_u32_dpp v14, v14, v14 row_shr:8 row_mask:0xf bank_mask:0xf")
    A("v_fma_f32 v34, v34, v7, v34")
    A("v_lshlrev_b32 v12, 16, v12")
    A("v_max_u32_dpp v14, v14, v14 row_bcast:15 row_mask:0xa bank_mask:0xf")
    A("v_cvt_pk_bf16_f32 v34, v34, v34")
    A("v_lshlrev_b32 v13, 16, v13")
    A("v_max_u32_dpp v14, v14, v14 row_bcast:31 row_mask:0xc bank_mask:0xf")
    A("v_and_b32 v34, 0xffff0000, v34")
    A("v_mul_f32 v34, v34, v33")
    A("v_readlane_b32 s8, v14, 63")
    A("v_mul_f32 v34, s90, v34")
    A("v_sub_f32 v34, 0, v34")
    A("s_lshr_b32 s8, s8, 7")
    A("s_max_u32 s8, s8, 6")
    A("s_min_u32 s8, s8, 253")
    A("s_sub_u32 s9, 260, s8")
    A("s_lshl_b32 s9, s9, 23")
    A("s_sub_u32 s10, s8, 132")

    def direct(t, p):
        lit = "1.0" if p == 1 else hex(fbits(float(p)))
        A(f"v_mul_f32 v{t}, {lit}, v34")
        A(f"v_mul_f32 v{t+1}, {lit}, v35")
        A(f"v_fract_f32 v{t+1}, v{t+1}")

    def direct2(t):
        A(f"v_exp_f32 v{t}, v{t}")
        A(f"v_cos_f32 v{t+2}, v{t+1}")
        A(f"v_sin_f32 v{t+3}, v{t+1}")

    def direct_fin(d, t):
        A(f"v_mul_f32 v{d}, v{t}, v{t+2}")
        A(f"v_mul_f32 v{d+1}, v{t}, v{t+3}")

    C = 36
    g = {i: 38 + 2 * (i - 1) for i in range(1, 9)}
    G128, G256, G512, G1024 = 54, 56, 58, 60
    T = [62, 64, 66, 68, 70, 72, 74, 76]
    PK = list(range(78, 86))
    BF, AF = 86, 102
    h = {1: g[8]}
    for i in range(2, 9):
        h[i] = AF + 2 * (i - 2)
    AF2 = 62
    direct(62, 1)
    direct(66, 8)
    direct(70, 128)
    direct2(62)
    direct2(66)
    direct2(70)
    A(f"v_mul_f32 v{C}, s9, v12")
    A(f"v_mul_f32 v{C+1}, s9, v13")
    A("v_ldexp_f32 v6, v33, s10")
    A("s_lshl_b32 s11, s37, 2")
    A(f"s_add_u32 s11, s11, {KA_SC}")
    A("v_mov_b32 v7, s11")
    A("ds_write_b32 v7, v6")
    direct_fin(g[1], 62)
    direct_fin(g[8], 66)
    direct_fin(G128, 70)
    stamp(A, 3)

    def wr(rows_src, buf, neg):
        regs = []
        for k, (row, src) in enumerate(rows_src):
            p = PK[k % 8]
            if src is None:
                A(f"v_mov_b32 v{p}, 0x00003c00")
            else:
                A(f"v_cvt_pk_f16_f32 v{p}, v{src}, {'-' if neg else ''}v{src+1}")
            regs.append(p)
        k = 0
        n = 0
        while k < len(rows_src):
            r0 = rows_src[k][0]
            if k + 1 < len(rows_src) and rows_src[k + 1][0] // 4 == r0 // 4:
                r1 = rows_src[k + 1][0]
                A(f"ds_write2_b32 v{AW + 4*buf + r0//4}, v{regs[k]}, v{regs[k+1]} offset0:{(r0%4)*72} offset1:{(r1%4)*72}")
                k += 2
            else:
                A(f"ds_write_b32 v{AW + 4*buf + r0//4}, v{regs[k]} offset:{(r0%4)*K1_ROWB}")
                k += 1
            n += 1
        return n

    def frags(dst, buf):
        for j in range(4):
            A(f"ds_read_b128 {vr(dst+4*j,4)}, v32 offset:{buf*K1_BUF + 64*j}")

    def mfmas(acc, a, b):
        for j in range(4):
            A(f"v_mfma_f32_16x16x32_f16 {vr(acc,4)}, {vr(a+4*j,4)}, {vr(b+4*j,4)}, {vr(acc,4)}")

    cmul_batch(A, [(g[2], g[1], g[1]), (h[2], h[1], h[1]), (G256, G128, G128)])
    cmul_batch(A, [(g[3], g[2], g[1]), (g[4], g[2], g[2]), (h[3], h[2], h[1]), (h[4], h[2], h[2]), (G512, G256, G256)])
    cmul_batch(A, [(g[5], g[4], g[1]), (g[6], g[4], g[2]), (g[7], g[4], g[3]), (h[5], h[4], h[1]), (h[6], h[4], h[2]),
                   (h[7], h[4], h[3]), (h[8], h[4], h[4]), (G1024, G512, G512)])
    for i in range(4):
        A(f"v_mov_b32 v{20+i}, 0")
        A(f"v_mov_b32 v{24+i}, 0")
        A(f"v_mov_b32 v{4+i}, 0")
    wr([(0, None)] + [(i, h[i]) for i in range(1, 8)], 0, False)
    cmul_batch(A, [(T[i - 1], h[8], h[i]) for i in range(1, 8)])
    wr([(8, h[8])] + [(8 + i, T[i - 1]) for i in range(1, 8)], 0, False)
    frags(BF, 0)
    stamp(A, 4)
    c128 = T[7]
    cmul_batch(A, [(T[i - 1], C, g[i]) for i in range(1, 8)] + [(c128, C, G128)])
    wr([(0, C)] + [(i, T[i - 1]) for i in range(1, 8)], 1, True)
    cmul_batch(A, [(T[i - 1], c128, g[i]) for i in range(1, 8)])
    wr([(8, c128)] + [(8 + i, T[i - 1]) for i in range(1, 8)], 1, True)
    frags(AF, 1)
    cmul_batch(A, [(T[0], C, G512), (T[4], C, G1024)])
    cmul_batch(A, [(T[1], T[0], G128), (T[2], T[0], G256), (T[5], T[4], G256), (T[6], T[4], G512)])
    cmul_batch(A, [(T[3], T[2], G128), (T[7], T[6], G256)])
    n1 = wr([(i, T[i]) for i in range(4)] + [(8 + i, T[4 + i]) for i in range(4)], 0, True)
    c2048 = g[1]
    cmul_batch(A, [(c2048, T[4], G1024)])
    D4 = [g[3], g[5], g[7], g[8]]
    cmul_batch(A, [(D4[i], T[i], g[4]) for i in range(4)])
    A("s_waitcnt lgkmcnt(%d)" % n1)
    mfmas(20, AF, BF)
    cmul_batch(A, [(T[i], T[4 + i], G128) for i in range(4)])
    wr([(4 + i, D4[i]) for i in range(4)] + [(12 + i, T[i]) for i in range(4)], 0, True)
    frags(AF, 0)
    stamp(A, 5)
    cmul_batch(A, [(T[0], C, G256)])
    cmul_batch(A, [(T[4], T[0], G128), (T[1], T[0], g[2]), (T[2], T[0], g[4]), (T[3], T[0], g[6])])
    cmul_batch(A, [(T[5], T[4], g[2]), (T[6], T[4], g[4]), (T[7], T[4], g[6])])
    n2 = wr([(i, T[i]) for i in range(8)], 1, True)
    n2 += wr([(8, c2048)], 1, True)
    A("s_waitcnt lgkmcnt(%d)" % n2)
    mfmas(24, AF, BF)
    frags(AF2, 1)
    A("s_waitcnt lgkmcnt(0)")
    mfmas(4, AF2, BF)
    A("v_lshlrev_b32 v28, 4, v2")
    A("v_add_u32 v30, s7, v28")
    for t, r in enumerate((20, 24, 4)):
        A(f"ds_write_b128 v30, {vr(r,4)} offset:{1024*t}")
    stamp(A, 6)


def expand_round(A, r, lbl):
    A("v_lshlrev_b32 v28, 4, v2")
    A("v_add_u32 v28, s39, v28")
    A("s_mov_b32 s22, 0x01000100")
    A("s_mov_b32 s23, 0x03020302")
    if r < 2:
        A("v_lshlrev_b32 v26, 1, v2")
        A(f"v_sub_u32 v26, {2*(384+255) - 128*r}, v26")
        A("v_add_u32 v26, s40, v26")
        A("ds_read_u16 v40, v26")
        A("ds_read_u16 v41, v26 offset:2")
        A("v_and_b32 v16, 1, v2")
        A("v_cmp_eq_u32 s[20:21], 1, v16")
        A("s_waitcnt lgkmcnt(0)")
        w = 40
        A(f"v_lshl_or_b32 v{w}, v{w+1}, 16, v{w}")
        A(f"v_perm_b32 v{w+2}, v{w}, v{w}, s23")
        A(f"v_perm_b32 v{w+4}, v{w}, v{w}, s22")
        A(f"v_alignbit_b32 v{w+1}, v{w}, v{w}, 16")
        A(f"v_mov_b32 v{w+5}, v{w+4}")
        A(f"v_mov_b32 v{w+6}, v{w+2}")
        A(f"v_cndmask_b32 v{w+3}, v{w+2}, v{w+1}, s[20:21]")
        A(f"v_cndmask_b32 v{w+7}, v{w+1}, v{w+4}, s[20:21]")
        A(f"ds_write_b64 v28, {vr(w+2,2)} offset:{KA_KE + 1024*r}")
        A(f"ds_write_b64 v28, {vr(w+4,2)} offset:{KA_KE + 1024*r + 8}")
        A(f"ds_write_b64 v28, {vr(w+6,2)} offset:{KA_KO + 1024*r}")
        A(f"ds_write_b64 v28, {vr(w+4,2)} offset:{KA_KO + 1024*r + 8}")
    elif r == 2:
        A("v_lshlrev_b32 v27, 2, v2")
        A(f"v_sub_u32 v27, {512 + 4*127}, v27")
        A("v_add_u32 v27, s40, v27")
        A("ds_read_b32 v56, v27")
        A("ds_read_u16 v57, v27 offset:4")
        A("s_mov_b32 s24, 0x07060100")
        A("s_waitcnt lgkmcnt(0)")
        A("v_perm_b32 v40, v57, v57, s22")
        A("v_perm_b32 v41, v56, v56, s23")
        A("v_alignbit_b32 v42, v56, v56, 16")
        A("v_perm_b32 v43, v56, v56, s22")
        A("v_perm_b32 v44, v56, v57, s24")
        A("v_mov_b32 v45, v41")
        A("v_mov_b32 v46, v43")
        A("v_mov_b32 v47, v43")
        A(f"ds_write_b128 v28, v[40:43] offset:{KA_KE + 2048}")
        A(f"ds_write_b128 v28, v[44:47] offset:{KA_KO + 2048}")
    else:
        for k in range(9):
            A(f"ds_read_u16 v{40+k}, v{30+k}")
        A("v_mov_b32 v12, 0")
        A("v_and_b32 v14, 15, v2")
        A("v_lshlrev_b32 v14, 2, v14")
        A("v_add_u32 v14, s39, v14")
        A(f"ds_write_b32 v14, v12 offset:{KA_KE + 4096}")
        A(f"ds_write_b32 v14, v12 offset:{KA_KO + 4096}")
        A("s_waitcnt lgkmcnt(2)")
        for k in range(4):
            A(f"v_lshl_or_b32 v{52+k}, v{41+2*k}, 16, v{40+2*k}")
        A("v_alignbit_b32 v56, v53, v52, 16")
        A("v_alignbit_b32 v57, v54, v53, 16")
        A("v_alignbit_b32 v58, v55, v54, 16")
        A("v_alignbit_b32 v59, v48, v55, 16")
        A(f"ds_write_b128 v28, v[52:55] offset:{KA_KE + 3072}")
        A(f"ds_write_b128 v28, v[56:59] offset:{KA_KO + 3072}")
        A("v_mov_b32 v14, s39")
        A(f"ds_write_b16 v14, v12 offset:{KA_KO + 2*2047}")


def ka(A):
    A("s_cmp_ge_u32 s2, 256")
    A("s_cbranch_scc1 KA_END")
    k_begin(A)
    A("s_load_dwordx16 s[16:31], s[0:1], 0")
    A("s_load_dwordx4 s[44:47], s[0:1], 104")
    A("v_lshrrev_b32 v1, 6, v0")
    A("v_readfirstlane_b32 s3, v1")
    A("v_and_b32 v2, 63, v0")
    A("v_mov_b32 v3, 0")
    A("v_lshlrev_b32 v4, 2, v2")
    A(f"v_add_u32 v4, {KA_CNT}, v4")
    A("s_cmp_lg_u32 s3, 0")
    A("s_cbranch_scc1 KA_NOZ")
    A("s_mov_b64 exec, 0xffffffff")
    A("ds_write_b32 v4, v3")
    A("s_mov_b64 exec, -1")
    A.label("KA_NOZ")
    A(f"s_sub_u32 s4, s2, {NPROD}")
    pair_swizzle(A, 35, 4, 6)
    A("s_sub_u32 s4, s3, 4")
    A("s_mul_i32 s37, s4, 11")
    A("s_lshr_b32 s37, s37, 5")
    A("s_mul_i32 s36, s37, 3")
    A("s_sub_u32 s36, s4, s36")
    A("s_lshl_b32 s34, s35, 2")
    A("s_add_u32 s34, s34, s37")
    A(f"s_mul_i32 s7, s4, {KG_SZ}")
    A("s_mul_i32 s4, s34, 384")
    A("s_lshr_b32 s5, s34, 1")
    A("s_lshl_b32 s5, s5, 2")
    A("s_lshl_b32 s8, s36, 7")
    A("s_add_u32 s8, s8, s4")
    A("v_lshlrev_b32 v3, 1, v2")
    A("v_add_u32 v1, s8, v3")
    A("v_add_u32 v3, s4, v3")
    A("s_waitcnt lgkmcnt(0)")
    A("s_mov_b32 s32, s46")
    A("s_mov_b32 s33, s47")
    A("s_cmp_lt_u32 s3, 4")
    A("s_cbranch_scc1 KA_B0")
    A(f"s_cmp_lt_u32 s2, {NPROD}")
    A("s_cbranch_scc1 KA_B0")
    A("s_load_dword s6, s[26:27], s5")
    A("global_load_ushort v10, v1, s[18:19]")
    A("global_load_ushort v11, v1, s[20:21]")
    A("global_load_ushort v12, v1, s[22:23]")
    A("global_load_ushort v13, v1, s[24:25]")
    for i in range(3):
        A(f"global_load_ushort v{14+i}, v3, s[22:23] offset:{128*i}")
        A(f"global_load_ushort v{17+i}, v3, s[24:25] offset:{128*i}")
    A.label("KA_B0")
    A("s_barrier")
    A("s_cmp_lt_u32 s3, 3")
    A("s_cbranch_scc1 KA_LN1")
    A("s_cmp_lg_u32 s3, 3")
    A("s_cbranch_scc1 KA_NOTAG")
    A(f"s_mov_b32 s14, {WS_EPOCH}")
    A("s_load_dword s15, s[32:33], s14")
    A(f"v_mov_b32 v18, {KA_CNT + 96}")
    A("s_waitcnt lgkmcnt(0)")
    A("s_mul_i32 s15, s15, 0x9E3779B1")
    A("s_add_u32 s15, s15, 0x632BE5AB")
    A("v_mov_b32 v19, s15")
    A("ds_write_b32 v18, v19")
    A("s_waitcnt lgkmcnt(0)")
    A(f"v_mov_b32 v18, {KA_CNT + 12}")
    A("v_mov_b32 v19, 1")
    A("s_mov_b64 exec, 1")
    A("ds_add_u32 v18, v19")
    A("s_mov_b64 exec, -1")
    A(f"s_cmp_ge_u32 s2, {NPROD}")
    A("s_cbranch_scc1 KA_CONV")
    A("s_branch KA_WTPOLL")
    A.label("KA_NOTAG")
    A(f"s_cmp_lt_u32 s2, {NPROD}")
    A("s_cbranch_scc1 KA_WT0")
    kgen_wave(A)
    arrive_s(A, 4, 37)
    wait_s(A, 4, 37, 3, "KA_W4")
    stamp(A, 7)
    A(f"s_mul_i32 s11, s37, {3*KG_SZ}")
    A("s_lshl_b32 s12, s36, 10")
    A("s_add_u32 s11, s11, s12")
    A("v_add_u32 v28, s11, v28")
    for w in range(3):
        A(f"ds_read_b128 {vr(40+4*w,4)}, v28 offset:{KG_SZ*w}")
    A("s_waitcnt lgkmcnt(0)")
    for i in range(4):
        A(f"v_add_f32 v{40+i}, v{40+i}, v{44+i}")
    for i in range(4):
        A(f"v_add_f32 v{40+i}, v{40+i}, v{48+i}")
    A("v_cvt_pk_f16_f32 v40, v40, v41")
    A("v_cvt_pk_f16_f32 v41, v42, v43")
    A("s_cmp_eq_u32 s36, 1")
    A("s_cbranch_scc1 KA_S1")
    A("ds_write_b64 v29, v[40:41]")
    A("s_branch KA_S2")
    A.label("KA_S1")
    A("ds_write_b16 v29, v40")
    A("ds_write_b16_d16_hi v29, v40 offset:64")
    A("ds_write_b16 v29, v41 offset:128")
    A("ds_write_b16_d16_hi v29, v41 offset:192")
    A.label("KA_S2")
    arrive_s(A, 8, 37)
    wait_s(A, 8, 37, 3, "KA_W5")
    A(f"s_mul_i32 s39, s37, {KEO_ST}")
    A(f"s_add_u32 s39, s39, {KEO_BASE}")
    A(f"s_mul_i32 s40, s37, {T_ST}")
    A(f"s_add_u32 s40, s40, {KA_T}")
    A("s_cmp_eq_u32 s36, 0")
    A("s_cbranch_scc1 KA_R0")
    A("s_cmp_eq_u32 s36, 1")
    A("s_cbranch_scc1 KA_R1")
    expand_round(A, 2, "R2")
    A("s_branch KA_RX")
    A.label("KA_R0")
    expand_round(A, 0, "R0")
    A("s_branch KA_RX")
    A.label("KA_R1")
    expand_round(A, 1, "R1")
    A.label("KA_RX")
    arrive_s(A, 12, 37)
    k_end(A, 0)

    A.label("KA_CONV")
    A("s_lshl_b32 s4, s35, 2")
    A("s_add_u32 s4, s4, s3")
    A("s_lshr_b32 s14, s4, 1")
    A("s_lshl_b32 s14, s14, 2")
    A(f"s_mul_i32 s39, s3, {KEO_ST}")
    A(f"s_mul_i32 s40, s3, {T_ST}")
    A(f"s_add_u32 s40, s40, {KA_T}")
    A(f"s_mul_i32 s41, s3, {U_ST}")
    A(f"s_add_u32 s41, s41, {KA_U}")
    A("v_and_b32 v6, 15, v2")
    A("v_lshrrev_b32 v7, 4, v2")
    A("v_lshrrev_b32 v8, 1, v7")
    A("v_and_b32 v9, 1, v7")
    A("v_mov_b32 v12, 0")
    A("v_mov_b32 v13, 0")
    A("v_lshlrev_b32 v14, 3, v2")
    A("v_add_u32 v14, s41, v14")
    A("ds_write_b64 v14, v[12:13]")
    A("v_sub_u32 v14, 2047, v6")
    A("v_lshlrev_b32 v15, 4, v8")
    A("v_sub_u32 v14, v14, v15")
    A("v_lshlrev_b32 v15, 3, v9")
    A("v_add_u32 v14, v14, v15")
    A("v_lshlrev_b32 v14, 1, v14")
    A(f"v_add_u32 v15, {KA_KO - 2}, v14")
    A("v_and_b32 v16, 1, v6")
    A("v_cmp_eq_u32 vcc, 1, v16")
    A("v_cndmask_b32 v14, v15, v14, vcc")
    A("v_add_u32 v14, s39, v14")
    AB = [20, 21, 22, 23]
    for p in range(4):
        A(f"v_subrev_u32 v{AB[p]}, {512*(2*p+1) + 448}, v14")
    A("v_lshlrev_b32 v15, 5, v6")
    A("v_lshlrev_b32 v16, 5, v8")
    A("v_sub_u32 v15, v15, v16")
    A("v_lshlrev_b32 v16, 4, v9")
    A("v_add_u32 v15, v15, v16")
    A(f"v_add_u32 v15, {512 - 448}, v15")
    BB = 24
    A(f"v_add_u32 v{BB}, s41, v15")
    A("v_lshlrev_b32 v15, 5, v6")
    A("v_lshlrev_b32 v16, 3, v7")
    A("v_add_u32 v25, v15, v16")
    A("v_lshlrev_b32 v3, 3, v2")
    A("v_sub_u32 v3, 511, v3")
    for k in range(9):
        A(f"v_subrev_u32 v{30+k}, {k}, v3")
    A("v_max_i32 v38, 0, v38")
    for k in range(9):
        A(f"v_cvt_f32_i32 v{40+k}, v{30+k}")
    for k in range(0, 8, 2):
        A(f"v_cvt_pk_bf16_f32 v{50+k}, v{40+k}, v{41+k}")
        A(f"v_lshrrev_b32 v{51+k}, 16, v{50+k}")
        A(f"v_and_b32 v{50+k}, 0xffff, v{50+k}")
    A("v_cvt_pk_bf16_f32 v58, v48, v48")
    A("v_and_b32 v58, 0xffff, v58")
    for k in range(9):
        A(f"v_subrev_u32 v{50+k}, 17024, v{50+k}")
        A(f"v_min_i32 v{30+k}, 127, v{30+k}")
        A(f"v_max_i32 v{50+k}, v{50+k}, v{30+k}")
        A(f"v_lshlrev_b32 v{30+k}, 1, v{50+k}")
        A(f"v_add_u32 v{30+k}, s40, v{30+k}")
    A("v_lshrrev_b32 v5, 2, v2")
    A("v_mul_u32_u24 v5, 10240, v5")
    A("v_and_b32 v4, 3, v2")
    A("v_lshl_add_u32 v5, v4, 4, v5")
    A("s_lshl_b32 s7, s35, 6")
    A("s_mul_i32 s8, s3, 655360")
    A("s_add_u32 s7, s7, s8")
    A(f"s_add_u32 s7, s7, {WS_UT}")
    A("v_add_u32 v5, s7, v5")
    A(f"v_mul_u32_u24 v4, {U_ST}, v4")
    A("v_lshrrev_b32 v3, 2, v2")
    A("v_lshl_add_u32 v4, v3, 4, v4")
    A("s_lshl_b32 s8, s3, 10")
    A(f"s_add_u32 s8, s8, {KA_U + 512}")
    A("v_add_u32 v4, s8, v4")
    A("s_load_dword s11, s[28:29], s14")
    stamp(A, 1)
    A("s_cmp_lg_u32 s3, 3")
    A("s_cbranch_scc1 KA_GOT")
    wait_count(A, 3, 4, "KA_OWN", sleep=4)
    poll_flags(A, "KA_POLL")
    A(f"s_cmp_lg_u32 s2, {NPROD}")
    A("s_cbranch_scc1 KA_GOT")
    A(f"v_mov_b32 v3, {WS_EPOCH}")
    A("v_mov_b32 v10, s15")
    A("s_mov_b64 exec, 1")
    A(f"global_store_dword v3, v10, s[32:33] {SC}")
    A("s_mov_b64 exec, -1")
    A.label("KA_GOT")
    AF, BF, ACC = 32, 64, 96
    for i in range(32):
        A(f"v_mov_b32 v{ACC+i}, 0")
    A("s_bitcmp1_b32 s4, 0")
    group_sync(A, 2, 4, "KA_GS2")
    stamp(A, 2)
    for j in range(4):
        A(f"global_load_dwordx4 {vr(64+4*j,4)}, v5, s[32:33] {SC}")
        if j < 3:
            A("v_add_u32 v5, 163840, v5")
    A("s_bitcmp1_b32 s4, 0")
    A("s_cbranch_scc1 KA_ODD2")
    A("s_lshl_b32 s11, s11, 16")
    A.label("KA_ODD2")
    A("s_and_b32 s11, s11, 0xffff0000")
    for j in range(4):
        A(f"s_waitcnt vmcnt({3-j})")
        A(f"ds_write_b128 v4, {vr(64+4*j,4)} offset:{256*j}")
    arrive(A, 17)
    stamp(A, 3)
    wait_s(A, 8, 3, 3, "KA_W5C")
    expand_round(A, 3, "R3")
    A("s_lshl_b32 s12, s3, 2")
    A(f"s_add_u32 s12, s12, {KA_SC}")
    A("v_mov_b32 v3, s12")
    A("ds_read_b32 v10, v3")
    wait_s(A, 12, 3, 3, "KA_W6")
    wait_count(A, 17, 4, "KA_W7", sleep=0)
    stamp(A, 5)

    def loadA(q, i0):
        p = q // 2
        o = (128 if q % 2 == 0 else 0) + 16 * (7 - i0)
        return [f"ds_read2_b32 {vr(AF+4*q,2)}, v{AB[p]} offset0:{o} offset1:{o+1}",
                f"ds_read2_b32 {vr(AF+4*q+2,2)}, v{AB[p]} offset0:{o+2} offset1:{o+3}"]

    def loadB(tau, i0):
        return [f"ds_read_b128 {vr(BF+4*tau,4)}, v{BB} offset:{512*tau + 64*(7-i0)}"]

    queue = []
    for q in range(8):
        A(loadB(7 - q, 0)[0])
        queue.append(("B", 7 - q))
        if q == 0:
            for s in loadA(0, 0):
                A(s)
            queue += [("A", 0), ("A", 0)]
    for q in range(1, 8):
        for s in loadA(q, 0):
            A(s)
        queue += [("A", q), ("A", q)]
    pending = []

    def wait_for(tags):
        while any(tg in tags for _, tg in pending):
            s_, tg = pending.pop(0)
            A(s_)
            queue.append(tg)
        last = -1
        for i, t in enumerate(queue):
            if t in tags:
                last = i
        if last >= 0:
            n = len(queue) - 1 - last
            A(f"s_waitcnt lgkmcnt({min(n, 15)})")
            del queue[:last + 1]

    for i0 in range(8):
        for q in range(8):
            for tau in range(7 - q, -1, -1):
                wait_for({("A", q), ("B", tau)})
                t = q + tau
                A(f"v_mfma_f32_16x16x32_f16 {vr(ACC+4*t,4)}, {vr(AF+4*q,4)}, {vr(BF+4*tau,4)}, {vr(ACC+4*t,4)}")
                if i0 < 7:
                    if tau == 7 - q:
                        pending.insert(0, (loadB(7 - q, i0 + 1)[0], ("B", 7 - q)))
                    if tau == 0:
                        for s in loadA(q, i0 + 1):
                            pending.append((s, ("A", q)))
                if pending:
                    s, tag = pending.pop(0)
                    A(s)
                    queue.append(tag)
    stamp(A, 6)
    A("v_add_u32 v26, s41, v25")
    A("v_add_u32 v27, s39, v25")
    for t in range(8):
        A(f"ds_read_b64 {vr(32+2*t,2)}, v26 offset:{512 + 512*t}")
    A(f"v_mov_b32 v28, {ONE_LO}")
    A(f"v_mov_b32 v29, {ONE_HI}")
    A("v_mov_b32 v11, v10")
    A("s_waitcnt lgkmcnt(0)")
    for t in range(8):
        a = ACC + 4 * t
        u = 32 + 2 * t
        tm = 48 + 8 * (t & 1)
        A(f"v_pk_mul_f32 {vr(a,2)}, {vr(a,2)}, v[10:11]")
        A(f"v_pk_mul_f32 {vr(a+2,2)}, {vr(a+2,2)}, v[10:11]")
        A(f"v_fma_mix_f32 v{tm}, v{u}, s11, 0 op_sel:[0,0,0] op_sel_hi:[1,0,0]")
        A(f"v_fma_mix_f32 v{tm+1}, v{u}, s11, 0 op_sel:[1,0,0] op_sel_hi:[1,0,0]")
        A(f"v_fma_mix_f32 v{tm+2}, v{u+1}, s11, 0 op_sel:[0,0,0] op_sel_hi:[1,0,0]")
        A(f"v_fma_mix_f32 v{tm+3}, v{u+1}, s11, 0 op_sel:[1,0,0] op_sel_hi:[1,0,0]")
        A(f"v_cvt_pk_bf16_f32 v{a}, v{a}, v{a+1}")
        A(f"v_cvt_pk_bf16_f32 v{a+1}, v{a+2}, v{a+3}")
        A(f"v_cvt_pk_bf16_f32 v{tm+4}, v{tm}, v{tm+1}")
        A(f"v_cvt_pk_bf16_f32 v{tm+5}, v{tm+2}, v{tm+3}")
        A(f"v_lshlrev_b32 v{tm}, 16, v{tm+4}")
        A(f"v_and_b32 v{tm+1}, 0xffff0000, v{tm+4}")
        A(f"v_lshlrev_b32 v{tm+2}, 16, v{tm+5}")
        A(f"v_and_b32 v{tm+3}, 0xffff0000, v{tm+5}")
        A(f"v_dot2_f32_bf16 v{tm}, v{a}, v28, v{tm}")
        A(f"v_dot2_f32_bf16 v{tm+1}, v{a}, v29, v{tm+1}")
        A(f"v_dot2_f32_bf16 v{tm+2}, v{a+1}, v28, v{tm+2}")
        A(f"v_dot2_f32_bf16 v{tm+3}, v{a+1}, v29, v{tm+3}")
        A(f"v_cvt_pk_bf16_f32 v{a+2}, v{tm}, v{tm+1}")
        A(f"v_cvt_pk_bf16_f32 v{a+3}, v{tm+2}, v{tm+3}")
        A(f"ds_write_b64 v27, {vr(a+2,2)} offset:{KA_KE + 512*t}")
    stamp(A, 7)
    A("v_lshrrev_b32 v14, 2, v6")
    A(f"v_mul_u32_u24 v14, {KEO_ST}, v14")
    A("v_and_b32 v15, 3, v2")
    A("v_lshlrev_b32 v15, 3, v15")
    A("v_add_u32 v14, v14, v15")
    A("v_lshlrev_b32 v15, 5, v7")
    A("v_add_u32 v14, v14, v15")
    A("s_lshl_b32 s12, s3, 10")
    A("v_add_u32 v14, s12, v14")
    A("v_lshrrev_b32 v15, 3, v6")
    A("v_lshlrev_b32 v16, 1, v7")
    A("v_add_u32 v15, v15, v16")
    A("v_mul_u32_u24 v15, 10240, v15")
    A("v_and_b32 v16, 7, v6")
    A("v_lshlrev_b32 v16, 4, v16")
    A("v_add_u32 v15, v15, v16")
    A("s_mul_i32 s12, s3, 655360")
    A("s_lshr_b32 s13, s35, 1")
    A("s_lshl_b32 s13, s13, 7")
    A("s_add_u32 s12, s12, s13")
    A("s_and_b32 s13, s35, 1")
    A("s_lshl_b32 s13, s13, 3")
    A("s_add_u32 s12, s12, s13")
    A(f"s_add_u32 s12, s12, {WS_AT}")
    A("v_add_u32 v15, s12, v15")
    A("s_waitcnt lgkmcnt(0)")
    A("s_barrier")
    for k in range(8):
        A(f"ds_read_b64_tr_b16 {vr(40+2*k,2)}, v14 offset:{KA_KE + 128*k}")
    for k in range(8):
        A(f"s_waitcnt lgkmcnt({7-k})")
        A(f"global_store_dwordx2 v15, {vr(40+2*k,2)}, s[32:33]")
        if k < 7:
            A("v_add_u32 v15, 81920, v15")
    k_end(A, 0)

    A.label("KA_LN1")
    A("s_setprio 3")
    A("v_mov_b32 v20, v0")
    A("s_mul_i32 s5, s2, 10240")
    A("v_min_u32 v21, 159, v20")
    A("v_lshlrev_b32 v3, 3, v21")
    A("v_add_u32 v3, s5, v3")
    A("v_add_u32 v4, 5120, v3")
    A("v_lshrrev_b32 v5, 4, v20")
    A("v_mul_u32_u24 v6, 1280, v5")
    A("v_and_b32 v7, 15, v20")
    A("v_lshlrev_b32 v7, 4, v7")
    A("v_add_u32 v6, v6, v7")
    A("v_add_u32 v6, s5, v6")
    A("s_cmp_eq_u32 s3, 2")
    A("s_cbranch_scc1 KA_LNB")
    for i in range(5):
        A(f"global_load_dwordx4 {vr(24+4*i,4)}, v6, s[16:17] offset:{256*i}")
    A.label("KA_LNB")
    for r in range(8):
        A(f"global_load_dwordx2 {vr(48+2*r,2)}, v{3 if r < 4 else 4}, s[16:17] offset:{1280*(r%4)}")
    A(f"v_mov_b32 v14, {ONE_LO}")
    A(f"v_mov_b32 v15, {ONE_HI}")
    A("s_cmp_eq_u32 s3, 2")
    A("s_cbranch_scc1 KA_P1")
    for r in (8, 9, 10, 11):
        A(f"v_mov_b32 v{r}, 0")
    A("v_mov_b32 v12, 0x3f803f80")
    A("s_waitcnt vmcnt(8)")
    for i in range(0, 20, 2):
        A(f"v_dot2c_f32_bf16 v8, v{24+i}, v12")
        A(f"v_dot2c_f32_bf16 v9, v{24+i}, v{24+i}")
        A(f"v_dot2c_f32_bf16 v10, v{25+i}, v12")
        A(f"v_dot2c_f32_bf16 v11, v{25+i}, v{25+i}")
    A("s_nop 2")
    A("v_add_f32 v8, v8, v10")
    A("v_add_f32 v9, v9, v11")
    for sh in (8, 4, 2, 1):
        A(f"v_add_f32_dpp v8, v8, v8 row_ror:{sh} row_mask:0xf bank_mask:0xf")
        A(f"v_add_f32_dpp v9, v9, v9 row_ror:{sh} row_mask:0xf bank_mask:0xf")
    ln_finish(A, 8, 9, 10)
    A("v_sub_f32 v8, 0, v8")
    A("v_lshlrev_b32 v5, 3, v5")
    A(f"v_add_u32 v5, {KA_STATS}, v5")
    A("ds_write_b64 v5, v[8:9]")
    A.label("KA_P1")
    group_sync(A, 0, 3, "KA_GS0")
    stamp(A, 8)
    A(f"v_mov_b32 v5, {KA_STATS}")
    for i in range(4):
        A(f"ds_read_b128 {vr(24+4*i,4)}, v5 offset:{16*i}")
    A("v_lshlrev_b32 v3, 6, v21")
    A(f"v_add_u32 v3, {KA_STAGE}, v3")
    A("s_waitcnt vmcnt(0) lgkmcnt(0)")
    for rp in range(4):
        r0, r1 = 2 * rp, 2 * rp + 1
        tt = [84 + 3 * ch for ch in range(4)]
        for ch in range(4):
            a, b = 48 + 2 * r0 + (ch >> 1), 48 + 2 * r1 + (ch >> 1)
            one = 14 + (ch & 1)
            A(f"v_dot2_f32_bf16 v{tt[ch]}, v{a}, v{one}, v{24+2*r0}")
            A(f"v_dot2_f32_bf16 v{tt[ch]+1}, v{b}, v{one}, v{24+2*r1}")
        for ch in range(4):
            A(f"v_cvt_pk_bf16_f32 v{tt[ch]+2}, v{tt[ch]}, v{tt[ch]+1}")
        for ch in range(4):
            A(f"v_lshlrev_b32 v{tt[ch]}, 16, v{tt[ch]+2}")
            A(f"v_and_b32 v{tt[ch]+1}, 0xffff0000, v{tt[ch]+2}")
        for ch in range(4):
            A(f"v_mul_f32 v{tt[ch]}, v{tt[ch]}, v{25+2*r0}")
            A(f"v_mul_f32 v{tt[ch]+1}, v{tt[ch]+1}, v{25+2*r1}")
        for ch in range(4):
            A(f"v_cvt_pk_bf16_f32 v{tt[ch]+2}, v{tt[ch]}, v{tt[ch]+1}")
        for ch in range(4):
            A(f"v_lshlrev_b32 v{tt[ch]}, 16, v{tt[ch]+2}")
            A(f"v_and_b32 v{tt[ch]+1}, 0xffff0000, v{tt[ch]+2}")
        for ch in range(4):
            A(f"v_cvt_pk_f16_f32 v{68+4*ch+rp}, v{tt[ch]}, v{tt[ch]+1}")
    for ch in range(4):
        A(f"ds_write_b128 v3, {vr(68+4*ch,4)} offset:{16*ch}")
    group_sync(A, 1, 3, "KA_GS1")
    A("v_lshlrev_b32 v3, 4, v20")
    A(f"v_add_u32 v4, {KA_STAGE}, v3")
    for j in range(4):
        A(f"ds_read_b128 {vr(24+4*j,4)}, v4 offset:{3072*j}")
    A(f"s_add_u32 s5, s5, {WS_UT}")
    A("v_add_u32 v3, s5, v3")
    A("s_waitcnt lgkmcnt(0)")
    for j in range(3):
        A(f"global_store_dwordx4 v3, {vr(24+4*j,4)}, s[32:33] {SC}")
        A("v_add_u32 v3, 3072, v3")
    A("s_cmp_lg_u32 s3, 0")
    A("s_cbranch_scc1 KA_P3")
    A(f"global_store_dwordx4 v3, {vr(36,4)}, s[32:33] {SC}")
    A.label("KA_P3")
    A("s_waitcnt vmcnt(0)")
    group_sync(A, 3, 4, "KA_GS3")
    stamp(A, 9)
    A("s_cmp_lg_u32 s3, 0")
    A("s_cbranch_scc1 KA_LNX")
    A(f"v_mov_b32 v3, {KA_CNT + 96}")
    A("ds_read_b32 v4, v3")
    A(f"s_lshr_b32 s5, s2, {2 if FLAG64 else 4}")
    A("s_lshl_b32 s5, s5, 7")
    A(f"s_and_b32 s6, s2, {3 if FLAG64 else 15}")
    A("s_lshl_b32 s6, s6, 2")
    A("s_add_u32 s5, s5, s6")
    A(f"s_add_u32 s5, s5, {WS_FLAG}")
    A("v_mov_b32 v3, s5")
    A("s_waitcnt lgkmcnt(0)")
    A("s_mov_b64 exec, 1")
    A(f"global_store_dword v3, v4, s[32:33] {FMOD}")
    A("s_mov_b64 exec, -1")
    A.label("KA_LNX")
    A("s_setprio 0")
    A(f"s_cmp_ge_u32 s2, {NPROD}")
    A("s_cbranch_scc1 KA_CONV")
    k_end(A, 0)
    A.label("KA_WTPOLL")
    wait_count(A, 3, 4, "KA_OWN2", sleep=4)
    if not os.environ.get("WT_EARLY"):
        poll_epoch(A, "KA_POLL2")
    arrive(A, 16)
    k_end(A, 0)
    A.label("KA_WT0")
    A("s_cmp_ge_u32 s3, 8")
    A("s_cbranch_scc1 KA_PRE" if PREFILL[0] else "s_cbranch_scc1 KA_WTX")
    wait_count(A, 16, 1, "KA_WTW", sleep=8)
    wt_role(A, "KA", 0, -2, 8192, 0, 960, 0, os.environ.get("WT_MOD", ""), 384)
    if PREFILL[0]:
        A.label("KA_PRE")
        A("s_cmp_lg_u32 s3, 8")
        A("s_cbranch_scc1 KA_WTX")
        A("s_cmp_ge_u32 s2, 32")
        A("s_cbranch_scc1 KA_WTX")
        A("s_lshl_b32 s4, s2, 10")
        A(f"s_add_u32 s5, s4, {WS_RK}")
        A(f"s_add_u32 s6, s4, {WS_ACT - 8192}")
        A("s_cmp_lt_u32 s2, 8")
        A("s_cselect_b32 s5, s5, s6")
        A("v_lshlrev_b32 v3, 4, v2")
        A("v_add_u32 v3, s5, v3")
        for i in range(4):
            A(f"v_mov_b32 v{4+i}, -1")
        A("global_store_dwordx4 v3, v[4:7], s[32:33]")
    A.label("KA_WTX")
    k_end(A, 0)
    A.label("KA_END")
    A("s_endpgm")


KERNELS4 = [
    ("ka_kernel", ka, 256, 1024, KA_LDS, 128),
    ("k3_kernel", k3, 256, 256, K3_LDS, 96),
    ("k4_kernel", k4, 192 + (80 if PF_WD[0] else 0), 256, K4_LDS, 96),
    ("k5_kernel", k5, 80, 512, K5_LDS, 96),
]

if __name__ == "__main__":
    if len(sys.argv) > 2 and sys.argv[2] == "stamp":
        STAMP[0] = True
    out = build(KERNELS4)
    path = sys.argv[1]
    open(path, "w").write(out)
    print("wrote", path, len(out), "bytes")
```

```python
import sys, os
sys.path.insert(0, os.path.dirname(os.path.abspath(__file__)))
import gen3, gen8, gen10
from gen10 import *

KD_LDS = 18432
KD_F1_FIRST = int(os.environ.get("KD_F1_FIRST", "8"))
KD_F2_FIRST = int(os.environ.get("KD_F2_FIRST", "64"))
KD_KSLEEP = int(os.environ.get("KD_KSLEEP", "6"))
NROW = 256


def sel_part1(A, lbl, first_sleep):
    A(f"v_lshlrev_b32 v4, {KEY_STRIDE.bit_length() - 1}, v0")
    A(f"v_add_u32 v4, {WS_RK}, v4")
    A("s_mov_b32 s12, 0")
    A("v_mov_b32 v21, -1")
    if first_sleep:
        A(f"s_sleep {first_sleep}")
    A.label(lbl)
    A(f"global_load_dwordx4 v[8:11], v4, s[32:33] {SC}")
    A(f"global_load_dwordx4 v[12:15], v4, s[32:33] offset:16 {SC}")
    A("s_waitcnt vmcnt(0)")
    A("v_max3_u32 v16, v8, v9, v10")
    A("v_max3_u32 v17, v11, v12, v13")
    A("v_max3_u32 v16, v16, v14, v15")
    A("v_max_u32 v16, v16, v17")
    A("v_cmp_eq_u32 vcc, v21, v16")
    A("s_cmp_eq_u64 vcc, 0")
    A(f"s_cbranch_scc1 {lbl}_OK")
    A("s_add_u32 s12, s12, 1")
    A(f"s_cmp_ge_u32 s12, {SPIN_MAX}")
    A(f"s_cbranch_scc1 {lbl}_OK")
    A(f"s_sleep {KD_KSLEEP}")
    A(f"s_branch {lbl}")
    A.label(lbl + "_OK")
    stamp(A, 5)
    net = [(0, 1), (2, 3), (4, 5), (6, 7), (0, 2), (1, 3), (4, 6), (5, 7), (1, 2), (5, 6), (0, 4), (3, 7), (1, 5), (2, 6),
           (1, 4), (3, 6), (2, 4), (3, 5), (3, 4)]
    reg = list(range(8, 16))
    spare = 16
    for a_, b_ in net:
        A(f"v_max_u32 v{spare}, v{reg[a_]}, v{reg[b_]}")
        A(f"v_min_u32 v{reg[b_]}, v{reg[a_]}, v{reg[b_]}")
        reg[a_], spare = spare, reg[a_]
    steps = [("row_shr:1", "0xf"), ("row_shr:2", "0xf"), ("row_shr:4", "0xf"), ("row_shr:8", "0xf"),
             ("row_bcast:15", "0xa"), ("row_bcast:31", "0xc")]
    for r in range(4):
        A(f"v_mov_b32 v17, v{reg[0]}")
        A(f"v_mov_b32 v18, v{reg[1]}")
        for ctl, mask in steps:
            bc = " bound_ctrl:0" if ctl.startswith("row_shr") else ""
            A(f"v_min_u32_dpp v19, v17, v17 {ctl} row_mask:{mask} bank_mask:0xf{bc}")
            A(f"v_max_u32_dpp v17, v17, v17 {ctl} row_mask:{mask} bank_mask:0xf{bc}")
            A(f"v_max_u32_dpp v20, v18, v18 {ctl} row_mask:{mask} bank_mask:0xf{bc}")
            A("v_max_u32 v18, v19, v20")
        A(f"v_readlane_b32 s{40+2*r}, v17, 63")
        A(f"v_readlane_b32 s{41+2*r}, v18, 63")
        if r < 3:
            left = 8 - 2 * r
            for wsel in (40 + 2 * r, 41 + 2 * r):
                A(f"v_cmp_eq_u32 vcc, s{wsel}, v{reg[0]}")
                left -= 1
                for k in range(left):
                    A(f"v_cndmask_b32 v{reg[k]}, v{reg[k]}, v{reg[k+1]}, vcc")
    A("v_mov_b32 v16, s40")
    for r in range(1, 8):
        A(f"v_writelane_b32 v16, s{40+r}, {r}")
    A("s_lshl_b32 s6, s3, 5")
    A("v_lshlrev_b32 v17, 2, v2")
    A("v_add_u32 v17, s6, v17")
    A("v_cmp_gt_u32 vcc, 8, v2")
    A("s_and_saveexec_b64 s[20:21], vcc")
    A("ds_write_b32 v17, v16")
    A("s_mov_b64 exec, s[20:21]")


def sel_part2(A):
    A("v_and_b32 v17, 31, v2")
    A("v_lshlrev_b32 v17, 2, v17")
    A("v_lshrrev_b32 v18, 5, v2")
    A("v_lshlrev_b32 v18, 6, v18")
    A("v_mov_b32 v19, 0")
    A("v_mov_b32 v20, 0")
    A("s_waitcnt lgkmcnt(0)")
    A("s_barrier")
    A("ds_read_b32 v16, v17")
    for i in range(4):
        A(f"ds_read_b128 {vr(60+4*i,4)}, v18 offset:{16*i}")
    A("s_waitcnt lgkmcnt(0)")
    sp = ["s[50:51]", "s[52:53]", "s[54:55]", "s[56:57]"]
    for i in range(0, 16, 4):
        for k in range(4):
            A(f"v_cmp_gt_u32 {sp[k]}, v{60+i+k}, v16")
        for k in range(4):
            A(f"v_addc_co_u32 v{19 + (k & 1)}, vcc, 0, v{19 + (k & 1)}, {sp[k]}")
    A("v_add_u32 v19, v19, v20")
    A("v_mov_b32 v20, v19")
    A("v_permlane32_swap_b32 v19, v20")
    A("v_add_u32 v19, v19, v20")
    A("v_cmp_gt_u32 vcc, 8, v19")
    A("v_cmp_gt_u32 s[22:23], 32, v2")
    A("s_and_b64 vcc, vcc, s[22:23]")
    A("v_lshlrev_b32 v19, 2, v19")
    A("s_lshl_b32 s6, s3, 6")
    A("s_add_u32 s6, s6, 256")
    A("v_add_u32 v19, s6, v19")
    A("s_and_saveexec_b64 s[20:21], vcc")
    A("ds_write_b32 v19, v16")
    A("s_mov_b64 exec, s[20:21]")


def kd(A):
    A("s_cmp_ge_u32 s2, 256")
    A("s_cbranch_scc1 KD_END")
    k_begin(A)
    A("s_load_dwordx2 s[32:33], s[0:1], 112")
    A("s_load_dwordx2 s[26:27], s[0:1], 0")
    A("s_load_dwordx2 s[28:29], s[0:1], 64")
    A("s_load_dwordx2 s[30:31], s[0:1], 96")
    A("v_lshrrev_b32 v1, 6, v0")
    A("v_readfirstlane_b32 s3, v1")
    A("v_and_b32 v2, 63, v0")
    A("s_and_b32 s35, s3, 3")
    A("s_cmp_ge_u32 s2, 192")
    A("s_cselect_b32 s36, 1, 0")
    A("s_sub_u32 s34, s2, 192")
    A("s_cmp_lt_u32 s34, 16")
    A("s_cselect_b32 s38, s36, 0")
    A("s_mov_b32 s37, s2")
    A("s_mul_i32 s7, s37, 20480")
    A("s_mul_i32 s8, s35, 5120")
    A("s_add_u32 s7, s7, s8")
    A(f"s_add_u32 s7, s7, {WS_WGU}")
    A("v_lshlrev_b32 v96, 4, v2")
    A("v_add_u32 v96, s7, v96")
    A("v_add_u32 v97, 4096, v96")
    A("v_lshrrev_b32 v5, 4, v2")
    A("v_and_b32 v4, 7, v2")
    A("v_bfe_u32 v6, v2, 3, 1")
    A("v_lshlrev_b32 v98, 7, v5")
    A("v_lshl_add_u32 v98, v4, 4, v98")
    A("v_lshl_add_u32 v98, v6, 9, v98")
    A("s_mul_i32 s5, s3, 3072")
    A("v_add_u32 v98, s5, v98")
    A(f"v_add_u32 v99, {WS_ACT}, v98")
    A("s_mul_i32 s4, s34, 24576")
    A(f"s_add_u32 s4, s4, {WS_WD}")
    A("v_add_u32 v98, s4, v98")
    A(f"v_add_u32 v97, {64*24576}, v98".replace("v97", "v95"))
    FR, A2, FRB = 100, 112, 124

    def frag_loads(tag):
        A("s_cmp_eq_u32 s36, 1")
        A(f"s_cbranch_scc1 KD_L2_{tag}")
        for i in range(4):
            A(f"global_load_dwordx4 {vr(FR+4*i,4)}, v96, s[32:33] offset:{1024*i}")
        A(f"global_load_dwordx4 {vr(FR+16,4)}, v97, s[32:33]")
        A(f"s_branch KD_LX_{tag}")
        A.label(f"KD_L2_{tag}")
        for i in range(3):
            A(f"global_load_dwordx4 {vr(FR+4*i,4)}, v98, s[32:33] offset:{1024*i}")
        A("s_cmp_eq_u32 s38, 0")
        A(f"s_cbranch_scc1 KD_LX_{tag}")
        for i in range(3):
            A(f"global_load_dwordx4 {vr(FRB+4*i,4)}, v95, s[32:33] offset:{1024*i}")
        A.label(f"KD_LX_{tag}")

    A("s_cmp_lt_u32 s3, 4")
    A("s_cbranch_scc1 KD_ROW")
    A("s_cmp_eq_u32 s36, 0")
    A("s_cbranch_scc1 KD_END")
    A("s_waitcnt lgkmcnt(0)")
    A("s_sleep 32")
    frag_loads("hi")
    A("s_barrier")
    A("s_branch KD_SEL2")
    A.label("KD_ROW")
    A("v_lshrrev_b32 v7, 5, v0")
    A("v_and_b32 v4, 31, v0")
    A("s_mul_i32 s4, s2, 10240")
    A("v_lshlrev_b32 v5, 4, v4")
    A("v_mul_u32_u24 v6, 1280, v7")
    A("v_add_u32 v6, v6, v5")
    A("v_add_u32 v8, s4, v6")
    A("v_lshlrev_b32 v3, 7, v4")
    A("v_lshl_add_u32 v3, v7, 4, v3")
    A(f"s_add_u32 s5, s4, {WS_AT}")
    A("v_add_u32 v3, s5, v3")
    A("v_add_u32 v9, 8192, v3")
    A("v_add_u32 v10, 4096, v3")
    AR, XR, WR = 20, 32, 44
    for i in range(4):
        A(f"v_mov_b32 v{AR+8+i}, 0")
        A(f"v_mov_b32 v{XR+8+i}, 0")
        A(f"v_mov_b32 v{WR+8+i}, 0")
    A("v_cmp_gt_u32 s[24:25], 16, v4")
    A("s_waitcnt lgkmcnt(0)")
    stamp(A, 1)
    A(f"global_load_dwordx4 {vr(AR,4)}, v3, s[32:33]")
    A(f"global_load_dwordx4 {vr(XR,4)}, v8, s[26:27]")
    A(f"global_load_dwordx4 {vr(XR+4,4)}, v8, s[26:27] offset:512")
    A(f"global_load_dwordx4 {vr(AR+4,4)}, v10, s[32:33]")
    A("s_mov_b64 exec, s[24:25]")
    A(f"global_load_dwordx4 {vr(AR+8,4)}, v9, s[32:33]")
    A(f"global_load_dwordx4 {vr(XR+8,4)}, v8, s[26:27] offset:1024")
    A(f"global_load_dwordx4 {vr(WR+8,4)}, v5, s[28:29] offset:1024")
    A("s_mov_b64 exec, -1")
    A(f"global_load_dwordx4 {vr(WR,4)}, v5, s[28:29]")
    A(f"global_load_dwordx4 {vr(WR+4,4)}, v5, s[28:29] offset:512")
    A(f"v_mov_b32 v12, {ONE_LO}")
    A(f"v_mov_b32 v13, {ONE_HI}")
    A("v_mov_b32 v14, 0x3f803f80")
    for r in (10, 11, 16, 17):
        A(f"v_mov_b32 v{r}, 0")
    A(f"v_add_u32 v9, {WS_L2}, v8")
    H, T = 56, 68
    A("s_waitcnt vmcnt(3)")
    stamp(A, 2)
    frag_loads("lo")
    N = 12
    for i in range(N):
        A(f"v_lshlrev_b32 v{T+2*i}, 16, v{AR+i}")
        A(f"v_and_b32 v{T+2*i+1}, 0xffff0000, v{AR+i}")
    for i in range(N):
        A(f"v_dot2_f32_bf16 v{T+2*i}, v{XR+i}, v12, v{T+2*i}")
        A(f"v_dot2_f32_bf16 v{T+2*i+1}, v{XR+i}, v13, v{T+2*i+1}")
    for i in range(N):
        A(f"v_cvt_pk_bf16_f32 v{H+i}, v{T+2*i}, v{T+2*i+1}")
    for i in range(0, N, 2):
        A(f"v_dot2c_f32_bf16 v10, v{H+i}, v14")
        A(f"v_dot2c_f32_bf16 v11, v{H+i}, v{H+i}")
        A(f"v_dot2c_f32_bf16 v16, v{H+i+1}, v14")
        A(f"v_dot2c_f32_bf16 v17, v{H+i+1}, v{H+i+1}")
    A("s_nop 2")
    A("v_add_f32 v10, v10, v16")
    A("v_add_f32 v11, v11, v17")

    def red(regs, tmps):
        for sh in (8, 4, 2, 1):
            for r in regs:
                A(f"v_add_f32_dpp v{r}, v{r}, v{r} row_ror:{sh} row_mask:0xf bank_mask:0xf")
        for r, t in zip(regs, tmps):
            A(f"v_mov_b32 v{t}, v{r}")
        for r, t in zip(regs, tmps):
            A(f"v_permlane16_swap_b32 v{r}, v{t}")
        for r, t in zip(regs, tmps):
            A(f"v_add_f32 v{r}, v{r}, v{t}")
    red([10, 11], [16, 17])
    ln_finish(A, 10, 11, 15)
    A("v_sub_f32 v10, 0, v10")
    L, O = AR, XR
    for i in range(N):
        A(f"v_dot2_f32_bf16 v{T+2*i}, v{H+i}, v12, v10")
        A(f"v_dot2_f32_bf16 v{T+2*i+1}, v{H+i}, v13, v10")
    for i in range(N):
        A(f"v_cvt_pk_bf16_f32 v{L+i}, v{T+2*i}, v{T+2*i+1}")
    for i in range(N):
        A(f"v_lshlrev_b32 v{T+2*i}, 16, v{L+i}")
        A(f"v_and_b32 v{T+2*i+1}, 0xffff0000, v{L+i}")
    A("v_mov_b32 v16, v11")
    A("v_mov_b32 v17, v11")
    for i in range(N):
        A(f"v_pk_mul_f32 {vr(T+2*i,2)}, {vr(T+2*i,2)}, v[16:17]")
    for i in range(N):
        A(f"v_cvt_pk_bf16_f32 v{L+i}, v{T+2*i}, v{T+2*i+1}")
    A(f"global_store_dwordx4 v9, {vr(L,4)}, s[32:33] {SC}")
    A(f"global_store_dwordx4 v9, {vr(L+4,4)}, s[32:33] offset:512 {SC}")
    A("s_mov_b64 exec, s[24:25]")
    A(f"global_store_dwordx4 v9, {vr(L+8,4)}, s[32:33] offset:1024 {SC}")
    A("s_mov_b64 exec, -1")
    A("v_mov_b32 v14, 0")
    A("v_mov_b32 v15, 0")
    for i in range(N):
        A(f"v_lshlrev_b32 v{T+2*i}, 16, v{L+i}")
        A(f"v_and_b32 v{T+2*i+1}, 0xffff0000, v{L+i}")
    for i in range(N):
        A(f"v_dot2_f32_bf16 v{T+2*i}, v{H+i}, v12, v{T+2*i}")
        A(f"v_dot2_f32_bf16 v{T+2*i+1}, v{H+i}, v13, v{T+2*i+1}")
    for i in range(N):
        A(f"v_cvt_pk_bf16_f32 v{O+i}, v{T+2*i}, v{T+2*i+1}")
    A(f"global_store_dwordx4 v8, {vr(O,4)}, s[30:31] {SC}")
    A(f"global_store_dwordx4 v8, {vr(O+4,4)}, s[30:31] offset:512 {SC}")
    A("s_mov_b64 exec, s[24:25]")
    A(f"global_store_dwordx4 v8, {vr(O+8,4)}, s[30:31] offset:1024 {SC}")
    A("s_mov_b64 exec, -1")
    stamp(A, 3)
    A("s_waitcnt vmcnt(6)")
    for i in range(0, N, 2):
        A(f"v_dot2c_f32_bf16 v14, v{L+i}, v{WR+i}")
        A(f"v_dot2c_f32_bf16 v15, v{L+i+1}, v{WR+i+1}")
    A("s_nop 2")
    A("v_add_f32 v14, v14, v15")
    red([14], [15])
    A("v_cvt_pk_bf16_f32 v40, v14, v14")
    A("v_and_b32 v40, 0xffff0000, v40")
    A("v_ashrrev_i32 v41, 31, v40")
    A("v_or_b32 v41, 0x80000000, v41")
    A("v_xor_b32 v40, v40, v41")
    A("v_and_b32 v40, 0xffff0000, v40")
    A("s_lshl_b32 s6, s2, 3")
    A("v_add_u32 v42, s6, v7")
    A("v_sub_u32 v43, 2047, v42")
    A("v_or_b32 v40, v40, v43")
    A("v_lshlrev_b32 v42, 2, v7")
    A("v_cmp_eq_u32 vcc, 0, v4")
    A("s_mov_b64 exec, vcc")
    A("ds_write_b32 v42, v40 offset:896")
    A("s_mov_b64 exec, -1")
    A("s_waitcnt vmcnt(0) lgkmcnt(0)")
    A("s_barrier")
    A("s_cmp_lg_u32 s3, 0")
    A("s_cbranch_scc1 KD_KPUB")
    A("v_lshlrev_b32 v42, 2, v2")
    A("ds_read_b32 v40, v42 offset:896")
    A(f"s_lshl_b32 s6, s2, {KEY_STRIDE.bit_length() - 1}")
    A(f"s_add_u32 s6, s6, {WS_RK}")
    A("v_add_u32 v42, s6, v42")
    A("s_waitcnt lgkmcnt(0)")
    A("s_mov_b64 exec, 0xff")
    A(f"global_store_dword v42, v40, s[32:33] {SC}")
    A("s_mov_b64 exec, -1")
    A.label("KD_KPUB")
    stamp(A, 4)
    sel_part1(A, "KD_KP", KD_F1_FIRST)
    A.label("KD_SEL2")
    sel_part2(A)
    A("s_cmp_eq_u32 s36, 1")
    A("s_cbranch_scc1 KD_F2")
    AFR = 60
    A("v_and_b32 v17, 7, v2")
    A("v_lshlrev_b32 v17, 2, v17")
    A("v_add_u32 v17, s6, v17")
    A("ds_read_b32 v16, v17")
    A("v_lshrrev_b32 v21, 4, v2")
    A("v_lshlrev_b32 v21, 4, v21")
    A("s_mul_i32 s6, s35, 320")
    A(f"s_add_u32 s6, s6, {WS_L2}")
    A("v_add_u32 v21, s6, v21")
    A("s_waitcnt lgkmcnt(0)")
    A("v_and_b32 v18, 0x7ff, v16")
    A("v_sub_u32 v18, 2047, v18")
    A("v_mul_u32_u24 v20, 1280, v18")
    A("v_add_u32 v20, v20, v21")
    for i in range(5):
        A(f"global_load_dwordx4 {vr(AFR+4*i,4)}, v20, s[32:33] offset:{64*i} {SC}")
    stamp(A, 6)
    for i in range(4):
        A(f"v_mov_b32 v{24+i}, 0")
    A("v_lshlrev_b32 v28, 4, v2")
    A("s_lshl_b32 s6, s3, 10")
    A("v_add_u32 v29, s6, v28")
    for i in range(5):
        A(f"s_waitcnt vmcnt({4-i})")
        A(f"v_mfma_f32_16x16x32_bf16 v[24:27], {vr(AFR+4*i,4)}, {vr(FR+4*i,4)}, v[24:27]")
    stamp(A, 7)
    A("ds_write_b128 v29, v[24:27] offset:1024")
    A("s_waitcnt lgkmcnt(0)")
    A("s_barrier")
    A("s_cmp_lg_u32 s35, 0")
    A("s_cbranch_scc1 KD_DONE")
    A("v_lshrrev_b32 v56, 3, v2")
    A("v_and_b32 v57, 7, v2")
    A("v_lshrrev_b32 v58, 2, v56")
    A("v_lshlrev_b32 v58, 8, v58")
    A("v_lshl_add_u32 v58, v57, 4, v58")
    A("v_and_b32 v59, 3, v56")
    A("v_lshl_add_u32 v58, v59, 2, v58")
    A("s_lshl_b32 s6, s3, 10")
    A("v_add_u32 v58, s6, v58")
    for w in range(4):
        A(f"ds_read_b32 v{40+w}, v58 offset:{1024 + 1024*w}")
        A(f"ds_read_b32 v{44+w}, v58 offset:{1024 + 1024*w + 128}")
    A("v_lshlrev_b32 v59, 1, v2")
    A("s_lshl_b32 s6, s37, 7")
    A(f"s_add_u32 s6, s6, {WS_ACT}")
    A("v_add_u32 v59, s6, v59")
    A("s_waitcnt lgkmcnt(0)")
    A("v_add_f32 v40, v40, v41")
    A("v_add_f32 v42, v42, v43")
    A("v_add_f32 v44, v44, v45")
    A("v_add_f32 v46, v46, v47")
    A("v_add_f32 v40, v40, v42")
    A("v_add_f32 v44, v44, v46")
    A("v_cvt_pk_bf16_f32 v41, v40, v44")
    A("v_lshlrev_b32 v40, 16, v41")
    A("v_and_b32 v44, 0xffff0000, v41")
    A(f"v_mul_f32 v42, {hex(fbits(-LOG2E))}, v40")
    A("v_exp_f32 v42, v42")
    A("v_add_f32 v42, 1.0, v42")
    A("v_rcp_f32 v42, v42")
    A("v_mul_f32 v40, v40, v42")
    A("v_cvt_pk_bf16_f32 v40, v40, v40")
    A("v_and_b32 v40, 0xffff0000, v40")
    A("v_mul_f32 v40, v40, v44")
    A("v_cvt_pk_bf16_f32 v40, v40, v40")
    A(f"global_store_short v59, v40, s[32:33] {SC}")
    A.label("KD_DONE")
    k_end(A, 2)

    A.label("KD_F2")
    for i in range(4):
        A(f"v_mov_b32 v{36+i}, 0")
        A(f"v_mov_b32 v{32+i}, 0")
        A(f"v_mov_b32 v{52+i}, 0")
    A("s_add_u32 s39, s34, 64")
    A("s_cmp_eq_u32 s3, 0")
    A("s_cselect_b32 s39, s34, s39")
    A("s_cselect_b32 s9, 1, 0")
    A("s_cmp_eq_u32 s3, 1")
    A("s_cselect_b32 s10, s38, 0")
    A("s_or_b32 s9, s9, s10")
    A("s_cmp_eq_u32 s9, 0")
    A("s_cbranch_scc1 KD_F2SL")
    A("v_lshrrev_b32 v17, 3, v2")
    A("v_lshlrev_b32 v17, 2, v17")
    A("v_add_u32 v17, s6, v17")
    A("ds_read_b32 v8, v17")
    A("v_and_b32 v16, 7, v2")
    A("s_lshl_b32 s6, s39, 3")
    A("v_add_u32 v16, s6, v16")
    A("s_lshl_b32 s6, s39, 7")
    A(f"s_add_u32 s6, s6, {WS_AT}")
    A("v_and_b32 v17, 7, v2")
    A("v_lshlrev_b32 v17, 1, v17")
    A("v_add_u32 v17, s6, v17")
    A("s_waitcnt lgkmcnt(0)")
    A("v_and_b32 v40, 0x7ff, v8")
    A("v_sub_u32 v40, 2047, v40")
    A("v_mul_u32_u24 v36, 1280, v40")
    A("v_lshl_add_u32 v36, v16, 1, v36")
    A(f"v_add_u32 v18, {WS_L2}, v36")
    A(f"global_load_ushort v20, v18, s[32:33] {SC}")
    A("global_load_ushort v24, v36, s[26:27]")
    A("v_lshrrev_b32 v18, 3, v40")
    A("v_mul_u32_u24 v18, 10240, v18")
    A("v_and_b32 v19, 7, v40")
    A("v_lshl_add_u32 v18, v19, 4, v18")
    A("v_add_u32 v18, v18, v17")
    A("global_load_ushort v44, v18, s[32:33]")
    A("v_and_b32 v12, 0xffff0000, v8")
    A("v_ashrrev_i32 v48, 31, v12")
    A("v_not_b32 v48, v48")
    A("v_or_b32 v48, 0x80000000, v48")
    A("v_xor_b32 v12, v12, v48")
    A("v_and_b32 v12, 0xffff0000, v12")
    A(f"v_mul_f32 v12, {hex(fbits(-LOG2E))}, v12")
    A("v_exp_f32 v12, v12")
    A("v_add_f32 v12, 1.0, v12")
    A("v_rcp_f32 v12, v12")
    bf16_round(A, 12)
    A("s_waitcnt vmcnt(0)")
    A("v_lshlrev_b32 v24, 16, v24")
    A("v_lshlrev_b32 v44, 16, v44")
    A("v_lshlrev_b32 v20, 16, v20")
    A("v_add_f32 v24, v24, v44")
    bf16_round(A, 24)
    A(f"s_sleep {KD_A0}")
    A("s_branch KD_F2B2")
    A.label("KD_F2SL")
    A(f"s_sleep {KD_A1}")
    A.label("KD_F2B2")
    stamp(A, 6)
    A("s_mov_b32 s12, 0")
    A("v_mov_b32 v61, 0xffff")
    A.label("KD_POLL")
    for i in range(3):
        A(f"global_load_dwordx4 {vr(A2+4*i,4)}, v99, s[32:33] offset:{1024*i} {SC}")
    A("s_waitcnt vmcnt(0)")
    A(f"v_pk_max_u16 v62, v{A2}, v{A2+1}")
    A(f"v_pk_max_u16 v63, v{A2+2}, v{A2+3}")
    for i in range(4, 12, 2):
        A(f"v_pk_max_u16 v62, v62, v{A2+i}")
        A(f"v_pk_max_u16 v63, v63, v{A2+i+1}")
    A("v_pk_max_u16 v62, v62, v63")
    A("v_lshrrev_b32 v63, 16, v62")
    A("v_and_b32 v62, 0xffff, v62")
    A("v_max_u32 v62, v62, v63")
    A("v_cmp_eq_u32 vcc, v61, v62")
    A("s_cmp_eq_u64 vcc, 0")
    A("s_cbranch_scc1 KD_ACT")
    A("s_add_u32 s12, s12, 1")
    A(f"s_cmp_ge_u32 s12, {SPIN_MAX}")
    A("s_cbranch_scc1 KD_ACT")
    A(f"s_sleep {KC_SLEEP}")
    A("s_branch KD_POLL")
    A.label("KD_ACT")
    A("v_lshlrev_b32 v28, 4, v2")
    A("s_lshl_b32 s6, s3, 10")
    A("v_add_u32 v29, s6, v28")
    for i in range(3):
        A(f"v_mfma_f32_16x16x32_bf16 v[32:35], {vr(A2+4*i,4)}, {vr(FR+4*i,4)}, v[32:35]")
    A("s_cmp_eq_u32 s38, 0")
    A("s_cbranch_scc1 KD_NOB")
    for i in range(3):
        A(f"v_mfma_f32_16x16x32_bf16 v[52:55], {vr(A2+4*i,4)}, {vr(FRB+4*i,4)}, v[52:55]")
    for i in range(4):
        A(f"v_mov_b32 v{64+i}, v{52+i}")
    for i in range(4):
        A(f"v_permlane32_swap_b32 v{52+i}, v{64+i}")
    for i in range(4):
        A(f"v_add_f32_dpp v{52+i}, v{64+i}, v{52+i} row_shl:8 row_mask:0xf bank_mask:0xf")
    A("ds_write_b128 v29, v[52:55] offset:9216")
    A.label("KD_NOB")
    stamp(A, 7)
    for i in range(4):
        A(f"v_mov_b32 v{60+i}, v{32+i}")
    for i in range(4):
        A(f"v_permlane32_swap_b32 v{32+i}, v{60+i}")
    for i in range(4):
        A(f"v_add_f32_dpp v{32+i}, v{60+i}, v{32+i} row_shl:8 row_mask:0xf bank_mask:0xf")
    A("ds_write_b128 v29, v[32:35] offset:1024")
    A("s_waitcnt lgkmcnt(0)")
    A("s_barrier")
    A("s_cmp_eq_u32 s9, 0")
    A("s_cbranch_scc1 KD_DONE2")
    A("v_lshrrev_b32 v56, 3, v2")
    A("v_and_b32 v57, 7, v2")
    A("v_lshrrev_b32 v58, 2, v56")
    A("v_lshlrev_b32 v58, 8, v58")
    A("v_lshl_add_u32 v58, v57, 4, v58")
    A("v_and_b32 v59, 3, v56")
    A("v_lshl_add_u32 v58, v59, 2, v58")
    A("s_lshl_b32 s6, s3, 13")
    A("v_add_u32 v58, s6, v58")
    for w in range(8):
        A(f"ds_read_b32 v{40+w}, v58 offset:{1024 + 1024*w}")
    A("s_waitcnt lgkmcnt(0)")
    for st in (4, 2, 1):
        for j in range(st):
            A(f"v_add_f32 v{40+j}, v{40+j}, v{40+st+j}")
    bf16_round(A, 40)
    A("v_mul_f32 v40, v40, v12")
    bf16_round(A, 40)
    A("v_add_f32 v40, v40, v20")
    bf16_round(A, 40)
    A("v_add_f32 v40, v40, v24")
    A("v_cvt_pk_bf16_f32 v40, v40, v40")
    A(f"global_store_short v36, v40, s[30:31] {SC}")
    A.label("KD_DONE2")
    k_end(A, 2)
    A.label("KD_END")
    A("s_endpgm")


KD_A0 = int(os.environ.get("KD_A0", "16"))
KD_A1 = int(os.environ.get("KD_A1", "36"))

gen8.PREFILL[0] = True
KERNELS12 = [
    ("ka_kernel", ka, 256, 1024, KA_LDS, 128),
    ("kd_kernel", kd, 256, 512, KD_LDS, 136),
]

if __name__ == "__main__":
    if len(sys.argv) > 2 and sys.argv[2] == "stamp":
        STAMP[0] = True
    out = build(KERNELS12)
    open(sys.argv[1], "w").write(out)
    print("wrote", sys.argv[1], len(out), "bytes")
```

```python
import sys, os
sys.path.insert(0, os.path.dirname(os.path.abspath(__file__)))
import gen3
from gen3 import *

KG_SZ = 2 * K1_BUF
KEO_ST = 27712
KEO_BASE = 0
KA_KE, KA_KO = 0, 4160
KA_U = 12 * KG_SZ
U_ST = 4608
KA_T = KA_U + 4 * U_ST
T_ST = 1600
KA_SC = KA_T + 4 * T_ST
KA_LN = KA_SC + 64
KA_CNT = KA_LN
KA_STATS = KA_LN + 128
KA_STAGE = KA_LN + 192
KA_LDS = KA_STAGE + 10240 + 2560


def group_sync(A, idx, n, lbl):
    A("s_waitcnt lgkmcnt(0)")
    A(f"v_mov_b32 v18, {KA_CNT + 4*idx}")
    A("v_mov_b32 v19, 1")
    A("s_mov_b64 exec, 1")
    A("ds_add_u32 v18, v19")
    A("s_mov_b64 exec, -1")
    A("s_mov_b32 s12, 0")
    A.label(lbl)
    A("ds_read_b32 v19, v18")
    A("s_waitcnt lgkmcnt(0)")
    A("v_readfirstlane_b32 s13, v19")
    A(f"s_cmp_ge_u32 s13, {n}")
    A(f"s_cbranch_scc1 {lbl}_OK")
    A("s_add_u32 s12, s12, 1")
    A(f"s_cmp_lt_u32 s12, {1 << 22}")
    A(f"s_cbranch_scc1 {lbl}")
    A.label(lbl + "_OK")
NPROD = 96
PREFILL = [False]
KEY_STRIDE = int(os.environ.get('KEY_STRIDE', '32'))
WS_FLAG = 0x0930000
WS_EPOCH = 0x0928000
SC = os.environ.get('SCMOD', 'sc1')
PMOD = os.environ.get('PMOD', SC)
FMOD = os.environ.get('FMOD', SC)
SPIN_MAX = 1 << 16
POLL_SLEEP = int(os.environ.get('POLL_SLEEP', '8'))
POLL_FIRST = int(os.environ.get('POLL_FIRST', '32'))
FLAG64 = int(os.environ.get('FLAG64', '0'))


def k_end16(A, kidx):
    if STAMP[0]:
        A(f"s_memtime s[{60+2*(NSTAMP-2)}:{61+2*(NSTAMP-2)}]")
        A("s_waitcnt vmcnt(0) lgkmcnt(0)")
        A("s_memrealtime s[96:97]")
        A(f"s_memtime s[{60+2*(NSTAMP-1)}:{61+2*(NSTAMP-1)}]")
        A("s_mov_b64 exec, -1")
        A("v_lshrrev_b32 v1, 6, v0")
        A("s_lshl_b32 s98, s2, 4")
        A("v_add_u32 v1, s98, v1")
        A("v_lshlrev_b32 v1, 7, v1")
        A(f"v_add_u32 v1, {WS_STAMP + kidx * 0x200000}, v1")
        A("s_waitcnt lgkmcnt(0)")
        A("v_mov_b32 v2, s94")
        A("v_mov_b32 v3, s95")
        A("v_mov_b32 v4, s96")
        A("v_mov_b32 v5, s97")
        A("global_store_dwordx4 v1, v[2:5], s[32:33]")
        for i in range(0, NSTAMP, 2):
            for j in range(4):
                A(f"v_mov_b32 v{2+j}, s{60+2*i+j}")
            A(f"global_store_dwordx4 v1, v[2:5], s[32:33] offset:{16+8*i}")
    A("s_endpgm")


gen3.k_end = k_end16
k_end = k_end16


def arrive(A, idx):
    A("s_waitcnt lgkmcnt(0)")
    A(f"v_mov_b32 v18, {KA_CNT + 4*idx}")
    A("v_mov_b32 v19, 1")
    A("s_mov_b64 exec, 1")
    A("ds_add_u32 v18, v19")
    A("s_mov_b64 exec, -1")


def wait_count(A, idx, n, lbl, sleep=1):
    A(f"v_mov_b32 v18, {KA_CNT + 4*idx}")
    A("s_mov_b32 s12, 0")
    A.label(lbl)
    A("ds_read_b32 v19, v18")
    A("s_waitcnt lgkmcnt(0)")
    A("v_readfirstlane_b32 s13, v19")
    A(f"s_cmp_ge_u32 s13, {n}")
    A(f"s_cbranch_scc1 {lbl}_OK")
    A("s_add_u32 s12, s12, 1")
    if sleep:
        A(f"s_sleep {sleep}")
    A(f"s_cmp_lt_u32 s12, {1 << 22}")
    A(f"s_cbranch_scc1 {lbl}")
    A.label(lbl + "_OK")


def arrive_s(A, base_idx, sreg):
    A("s_waitcnt lgkmcnt(0)")
    A(f"s_lshl_b32 s12, s{sreg}, 2")
    A(f"s_add_u32 s12, s12, {KA_CNT + 4*base_idx}")
    A("v_mov_b32 v18, s12")
    A("v_mov_b32 v19, 1")
    A("s_mov_b64 exec, 1")
    A("ds_add_u32 v18, v19")
    A("s_mov_b64 exec, -1")


def wait_s(A, base_idx, sreg, n, lbl):
    A(f"s_lshl_b32 s12, s{sreg}, 2")
    A(f"s_add_u32 s12, s12, {KA_CNT + 4*base_idx}")
    A("v_mov_b32 v18, s12")
    A("s_mov_b32 s12, 0")
    A.label(lbl)
    A("ds_read_b32 v19, v18")
    A("s_waitcnt lgkmcnt(0)")
    A("v_readfirstlane_b32 s13, v19")
    A(f"s_cmp_ge_u32 s13, {n}")
    A(f"s_cbranch_scc1 {lbl}_OK")
    A("s_add_u32 s12, s12, 1")
    A("s_sleep 1")
    A(f"s_cmp_lt_u32 s12, {1 << 22}")
    A(f"s_cbranch_scc1 {lbl}")
    A.label(lbl + "_OK")


def poll_flags(A, lbl):
    if FLAG64 == 2:
        A("v_lshlrev_b32 v3, 7, v2")
        A(f"v_add_u32 v3, {WS_FLAG}, v3")
        for j in range(1, 4):
            A(f"v_add_u32 v{44+j}, {8192*j}, v3")
    elif FLAG64:
        A("v_lshlrev_b32 v3, 7, v2")
        A(f"v_add_u32 v3, {WS_FLAG}, v3")
    else:
        A("v_lshrrev_b32 v3, 4, v2")
        A("v_lshlrev_b32 v3, 7, v3")
        A("v_and_b32 v10, 15, v2")
        A("v_lshl_add_u32 v3, v10, 2, v3")
        A(f"v_add_u32 v3, {WS_FLAG}, v3")
    A("s_mov_b32 s12, 0")
    if POLL_FIRST:
        A(f"s_sleep {POLL_FIRST}")
    A.label(lbl)
    if FLAG64 == 2:
        A(f"global_load_dword v40, v3, s[32:33] {PMOD}")
        for j in range(1, 4):
            A(f"global_load_dword v{40+j}, v{44+j}, s[32:33] {PMOD}")
    elif FLAG64:
        A(f"global_load_dwordx4 v[40:43], v3, s[32:33] {PMOD}")
    else:
        for j in range(4):
            A(f"global_load_dword v{40+j}, v3, s[32:33] offset:{512*j} {PMOD}")
    A("s_waitcnt vmcnt(0)")
    A("v_cmp_ne_u32 vcc, s15, v40")
    A("v_cmp_ne_u32 s[20:21], s15, v41")
    A("v_cmp_ne_u32 s[22:23], s15, v42")
    A("v_cmp_ne_u32 s[24:25], s15, v43")
    A("s_or_b64 vcc, vcc, s[20:21]")
    A("s_or_b64 s[22:23], s[22:23], s[24:25]")
    A("s_or_b64 vcc, vcc, s[22:23]")
    A("s_cmp_eq_u64 vcc, 0")
    A(f"s_cbranch_scc1 {lbl}_SEEN")
    A("s_add_u32 s12, s12, 1")
    A(f"s_cmp_ge_u32 s12, {SPIN_MAX}")
    A(f"s_cbranch_scc1 {lbl}_SEEN")
    A(f"s_sleep {POLL_SLEEP}")
    A(f"s_branch {lbl}")
    A.label(lbl + "_SEEN")


def poll_epoch(A, lbl):
    A(f"v_mov_b32 v3, {WS_EPOCH}")
    A("s_mov_b32 s12, 0")
    A("s_sleep 48")
    A.label(lbl)
    A(f"global_load_dword v40, v3, s[32:33] {SC}")
    A("s_waitcnt vmcnt(0)")
    A("v_readfirstlane_b32 s13, v40")
    A("s_cmp_eq_u32 s13, s15")
    A(f"s_cbranch_scc1 {lbl}_SEEN")
    A("s_add_u32 s12, s12, 1")
    A(f"s_cmp_ge_u32 s12, {SPIN_MAX}")
    A(f"s_cbranch_scc1 {lbl}_SEEN")
    A("s_sleep 16")
    A(f"s_branch {lbl}")
    A.label(lbl + "_SEEN")


def kgen_wave(A):
    A(f"s_mov_b32 s90, {L2E_HI}")
    A(f"s_mov_b32 s91, {L2E_LO}")
    A(f"s_mov_b32 s92, {LN2}")
    A("v_and_b32 v3, 15, v2")
    A("v_lshrrev_b32 v4, 4, v2")
    A("s_cmp_eq_u32 s36, 1")
    A("s_cbranch_scc1 KA_A1")
    A("s_cmp_eq_u32 s36, 2")
    A("s_cbranch_scc1 KA_A2")
    A("v_lshrrev_b32 v5, 1, v4")
    A("v_lshlrev_b32 v5, 7, v5")
    A("v_lshl_add_u32 v5, v3, 3, v5")
    A("v_and_b32 v6, 1, v4")
    A("v_lshl_add_u32 v5, v6, 2, v5")
    A("s_branch KA_A3")
    A.label("KA_A1")
    A("v_lshlrev_b32 v5, 1, v3")
    A("v_add_u32 v5, v5, v4")
    A("v_add_u32 v5, 384, v5")
    A("v_lshlrev_b32 v6, 4, v4")
    A("v_add_u32 v6, v6, v3")
    A("v_add_u32 v6, 480, v6")
    A("v_cmp_gt_u32 vcc, 2, v4")
    A("v_cndmask_b32 v5, v6, v5, vcc")
    A("s_branch KA_A3")
    A.label("KA_A2")
    A("v_lshlrev_b32 v5, 6, v4")
    A("v_lshlrev_b32 v6, 2, v3")
    A("v_add_u32 v5, v5, v6")
    A("v_add_u32 v5, 256, v5")
    A("v_lshlrev_b32 v6, 2, v2")
    A("v_add_u32 v6, 520, v6")
    A("v_cmp_gt_u32 vcc, 2, v4")
    A("v_cndmask_b32 v5, v6, v5, vcc")
    A("v_mov_b32 v6, 640")
    A("v_cmp_eq_u32 vcc, 32, v2")
    A("v_cndmask_b32 v5, v5, v6, vcc")
    A.label("KA_A3")
    A(f"s_mul_i32 s11, s37, {T_ST}")
    A(f"s_add_u32 s11, s11, {KA_T}")
    A("v_lshlrev_b32 v29, 1, v5")
    A("v_add_u32 v29, s11, v29")
    A(f"v_mul_u32_u24 v32, {K1_ROWB}, v3")
    A("v_lshlrev_b32 v5, 4, v4")
    A("v_add_u32 v32, v32, v5")
    A("v_add_u32 v32, s7, v32")
    AW = 120
    A("v_lshlrev_b32 v5, 2, v2")
    A(f"v_add_u32 v{AW}, s7, v5")
    for k in range(1, 8):
        A(f"v_add_u32 v{AW+k}, {(k//4)*K1_BUF + (k%4)*4*K1_ROWB}, v{AW}")
    stamp(A, 1)
    A("s_waitcnt lgkmcnt(0)")
    A("s_bitcmp1_b32 s34, 0")
    A("s_cbranch_scc1 KA_ODD")
    A("s_lshl_b32 s6, s6, 16")
    A.label("KA_ODD")
    A("s_and_b32 s6, s6, 0xffff0000")
    A("v_mov_b32 v5, s6")
    exp_bf16(A, 33, 5, 6, 7)
    A("s_waitcnt vmcnt(0)")
    stamp(A, 2)
    for i in range(6):
        A(f"v_and_b32 v{14+i}, 0x7fff, v{14+i}")
    A("v_max3_u32 v14, v14, v15, v16")
    A("v_max3_u32 v17, v17, v18, v19")
    A("v_max_u32 v14, v14, v17")
    A("v_lshlrev_b32 v10, 16, v10")
    A("v_lshlrev_b32 v11, 16, v11")
    A("v_mul_f32 v6, s90, v10")
    A("v_max_u32_dpp v14, v14, v14 row_shr:1 row_mask:0xf bank_mask:0xf")
    A("v_fma_f32 v7, v10, s90, -v6")
    A("v_exp_f32 v34, v6")
    A("v_max_u32_dpp v14, v14, v14 row_shr:2 row_mask:0xf bank_mask:0xf")
    A("v_fma_f32 v7, v10, s91, v7")
    A("v_mul_f32 v35, v11, v33")
    A("v_max_u32_dpp v14, v14, v14 row_shr:4 row_mask:0xf bank_mask:0xf")
    A("v_mul_f32 v7, s92, v7")
    A(f"v_mul_f32 v35, {INV2PI}, v35")
    A("v_max_u32_dpp v14, v14, v14 row_shr:8 row_mask:0xf bank_mask:0xf")
    A("v_fma_f32 v34, v34, v7, v34")
    A("v_lshlrev_b32 v12, 16, v12")
    A("v_max_u32_dpp v14, v14, v14 row_bcast:15 row_mask:0xa bank_mask:0xf")
    A("v_cvt_pk_bf16_f32 v34, v34, v34")
    A("v_lshlrev_b32 v13, 16, v13")
    A("v_max_u32_dpp v14, v14, v14 row_bcast:31 row_mask:0xc bank_mask:0xf")
    A("v_and_b32 v34, 0xffff0000, v34")
    A("v_mul_f32 v34, v34, v33")
    A("v_readlane_b32 s8, v14, 63")
    A("v_mul_f32 v34, s90, v34")
    A("v_sub_f32 v34, 0, v34")
    A("s_lshr_b32 s8, s8, 7")
    A("s_max_u32 s8, s8, 6")
    A("s_min_u32 s8, s8, 253")
    A("s_sub_u32 s9, 260, s8")
    A("s_lshl_b32 s9, s9, 23")
    A("s_sub_u32 s10, s8, 132")

    def direct(t, p):
        lit = "1.0" if p == 1 else hex(fbits(float(p)))
        A(f"v_mul_f32 v{t}, {lit}, v34")
        A(f"v_mul_f32 v{t+1}, {lit}, v35")
        A(f"v_fract_f32 v{t+1}, v{t+1}")

    def direct2(t):
        A(f"v_exp_f32 v{t}, v{t}")
        A(f"v_cos_f32 v{t+2}, v{t+1}")
        A(f"v_sin_f32 v{t+3}, v{t+1}")

    def direct_fin(d, t):
        A(f"v_mul_f32 v{d}, v{t}, v{t+2}")
        A(f"v_mul_f32 v{d+1}, v{t}, v{t+3}")

    C = 36
    g = {i: 38 + 2 * (i - 1) for i in range(1, 9)}
    G128, G256, G512, G1024 = 54, 56, 58, 60
    T = [62, 64, 66, 68, 70, 72, 74, 76]
    PK = list(range(78, 86))
    BF, AF = 86, 102
    h = {1: g[8]}
    for i in range(2, 9):
        h[i] = AF + 2 * (i - 2)
    AF2 = 62
    direct(62, 1)
    direct(66, 8)
    direct(70, 128)
    direct2(62)
    direct2(66)
    direct2(70)
    A(f"v_mul_f32 v{C}, s9, v12")
    A(f"v_mul_f32 v{C+1}, s9, v13")
    A("v_ldexp_f32 v6, v33, s10")
    A("s_lshl_b32 s11, s37, 2")
    A(f"s_add_u32 s11, s11, {KA_SC}")
    A("v_mov_b32 v7, s11")
    A("ds_write_b32 v7, v6")
    direct_fin(g[1], 62)
    direct_fin(g[8], 66)
    direct_fin(G128, 70)
    stamp(A, 3)

    def wr(rows_src, buf, neg):
        regs = []
        for k, (row, src) in enumerate(rows_src):
            p = PK[k % 8]
            if src is None:
                A(f"v_mov_b32 v{p}, 0x00003c00")
            else:
                A(f"v_cvt_pk_f16_f32 v{p}, v{src}, {'-' if neg else ''}v{src+1}")
            regs.append(p)
        k = 0
        n = 0
        while k < len(rows_src):
            r0 = rows_src[k][0]
            if k + 1 < len(rows_src) and rows_src[k + 1][0] // 4 == r0 // 4:
                r1 = rows_src[k + 1][0]
                A(f"ds_write2_b32 v{AW + 4*buf + r0//4}, v{regs[k]}, v{regs[k+1]} offset0:{(r0%4)*72} offset1:{(r1%4)*72}")
                k += 2
            else:
                A(f"ds_write_b32 v{AW + 4*buf + r0//4}, v{regs[k]} offset:{(r0%4)*K1_ROWB}")
                k += 1
            n += 1
        return n

    def frags(dst, buf):
        for j in range(4):
            A(f"ds_read_b128 {vr(dst+4*j,4)}, v32 offset:{buf*K1_BUF + 64*j}")

    def mfmas(acc, a, b):
        for j in range(4):
            A(f"v_mfma_f32_16x16x32_f16 {vr(acc,4)}, {vr(a+4*j,4)}, {vr(b+4*j,4)}, {vr(acc,4)}")

    cmul_batch(A, [(g[2], g[1], g[1]), (h[2], h[1], h[1]), (G256, G128, G128)])
    cmul_batch(A, [(g[3], g[2], g[1]), (g[4], g[2], g[2]), (h[3], h[2], h[1]), (h[4], h[2], h[2]), (G512, G256, G256)])
    cmul_batch(A, [(g[5], g[4], g[1]), (g[6], g[4], g[2]), (g[7], g[4], g[3]), (h[5], h[4], h[1]), (h[6], h[4], h[2]),
                   (h[7], h[4], h[3]), (h[8], h[4], h[4]), (G1024, G512, G512)])
    for i in range(4):
        A(f"v_mov_b32 v{20+i}, 0")
        A(f"v_mov_b32 v{24+i}, 0")
        A(f"v_mov_b32 v{4+i}, 0")
    wr([(0, None)] + [(i, h[i]) for i in range(1, 8)], 0, False)
    cmul_batch(A, [(T[i - 1], h[8], h[i]) for i in range(1, 8)])
    wr([(8, h[8])] + [(8 + i, T[i - 1]) for i in range(1, 8)], 0, False)
    frags(BF, 0)
    stamp(A, 4)
    c128 = T[7]
    cmul_batch(A, [(T[i - 1], C, g[i]) for i in range(1, 8)] + [(c128, C, G128)])
    wr([(0, C)] + [(i, T[i - 1]) for i in range(1, 8)], 1, True)
    cmul_batch(A, [(T[i - 1], c128, g[i]) for i in range(1, 8)])
    wr([(8, c128)] + [(8 + i, T[i - 1]) for i in range(1, 8)], 1, True)
    frags(AF, 1)
    cmul_batch(A, [(T[0], C, G512), (T[4], C, G1024)])
    cmul_batch(A, [(T[1], T[0], G128), (T[2], T[0], G256), (T[5], T[4], G256), (T[6], T[4], G512)])
    cmul_batch(A, [(T[3], T[2], G128), (T[7], T[6], G256)])
    n1 = wr([(i, T[i]) for i in range(4)] + [(8 + i, T[4 + i]) for i in range(4)], 0, True)
    c2048 = g[1]
    cmul_batch(A, [(c2048, T[4], G1024)])
    D4 = [g[3], g[5], g[7], g[8]]
    cmul_batch(A, [(D4[i], T[i], g[4]) for i in range(4)])
    A("s_waitcnt lgkmcnt(%d)" % n1)
    mfmas(20, AF, BF)
    cmul_batch(A, [(T[i], T[4 + i], G128) for i in range(4)])
    wr([(4 + i, D4[i]) for i in range(4)] + [(12 + i, T[i]) for i in range(4)], 0, True)
    frags(AF, 0)
    stamp(A, 5)
    cmul_batch(A, [(T[0], C, G256)])
    cmul_batch(A, [(T[4], T[0], G128), (T[1], T[0], g[2]), (T[2], T[0], g[4]), (T[3], T[0], g[6])])
    cmul_batch(A, [(T[5], T[4], g[2]), (T[6], T[4], g[4]), (T[7], T[4], g[6])])
    n2 = wr([(i, T[i]) for i in range(8)], 1, True)
    n2 += wr([(8, c2048)], 1, True)
    A("s_waitcnt lgkmcnt(%d)" % n2)
    mfmas(24, AF, BF)
    frags(AF2, 1)
    A("s_waitcnt lgkmcnt(0)")
    mfmas(4, AF2, BF)
    A("v_lshlrev_b32 v28, 4, v2")
    A("v_add_u32 v30, s7, v28")
    for t, r in enumerate((20, 24, 4)):
        A(f"ds_write_b128 v30, {vr(r,4)} offset:{1024*t}")
    stamp(A, 6)


def expand_round(A, r, lbl):
    A("v_lshlrev_b32 v28, 4, v2")
    A("v_add_u32 v28, s39, v28")
    A("s_mov_b32 s22, 0x01000100")
    A("s_mov_b32 s23, 0x03020302")
    if r < 2:
        A("v_lshlrev_b32 v26, 1, v2")
        A(f"v_sub_u32 v26, {2*(384+255) - 128*r}, v26")
        A("v_add_u32 v26, s40, v26")
        A("ds_read_u16 v40, v26")
        A("ds_read_u16 v41, v26 offset:2")
        A("v_and_b32 v16, 1, v2")
        A("v_cmp_eq_u32 s[20:21], 1, v16")
        A("s_waitcnt lgkmcnt(0)")
        w = 40
        A(f"v_lshl_or_b32 v{w}, v{w+1}, 16, v{w}")
        A(f"v_perm_b32 v{w+2}, v{w}, v{w}, s23")
        A(f"v_perm_b32 v{w+4}, v{w}, v{w}, s22")
        A(f"v_alignbit_b32 v{w+1}, v{w}, v{w}, 16")
        A(f"v_mov_b32 v{w+5}, v{w+4}")
        A(f"v_mov_b32 v{w+6}, v{w+2}")
        A(f"v_cndmask_b32 v{w+3}, v{w+2}, v{w+1}, s[20:21]")
        A(f"v_cndmask_b32 v{w+7}, v{w+1}, v{w+4}, s[20:21]")
        A(f"ds_write_b64 v28, {vr(w+2,2)} offset:{KA_KE + 1024*r}")
        A(f"ds_write_b64 v28, {vr(w+4,2)} offset:{KA_KE + 1024*r + 8}")
        A(f"ds_write_b64 v28, {vr(w+6,2)} offset:{KA_KO + 1024*r}")
        A(f"ds_write_b64 v28, {vr(w+4,2)} offset:{KA_KO + 1024*r + 8}")
    elif r == 2:
        A("v_lshlrev_b32 v27, 2, v2")
        A(f"v_sub_u32 v27, {512 + 4*127}, v27")
        A("v_add_u32 v27, s40, v27")
        A("ds_read_b32 v56, v27")
        A("ds_read_u16 v57, v27 offset:4")
        A("s_mov_b32 s24, 0x07060100")
        A("s_waitcnt lgkmcnt(0)")
        A("v_perm_b32 v40, v57, v57, s22")
        A("v_perm_b32 v41, v56, v56, s23")
        A("v_alignbit_b32 v42, v56, v56, 16")
        A("v_perm_b32 v43, v56, v56, s22")
        A("v_perm_b32 v44, v56, v57, s24")
        A("v_mov_b32 v45, v41")
        A("v_mov_b32 v46, v43")
        A("v_mov_b32 v47, v43")
        A(f"ds_write_b128 v28, v[40:43] offset:{KA_KE + 2048}")
        A(f"ds_write_b128 v28, v[44:47] offset:{KA_KO + 2048}")
    else:
        for k in range(9):
            A(f"ds_read_u16 v{40+k}, v{30+k}")
        A("v_mov_b32 v12, 0")
        A("v_and_b32 v14, 15, v2")
        A("v_lshlrev_b32 v14, 2, v14")
        A("v_add_u32 v14, s39, v14")
        A(f"ds_write_b32 v14, v12 offset:{KA_KE + 4096}")
        A(f"ds_write_b32 v14, v12 offset:{KA_KO + 4096}")
        A("s_waitcnt lgkmcnt(2)")
        for k in range(4):
            A(f"v_lshl_or_b32 v{52+k}, v{41+2*k}, 16, v{40+2*k}")
        A("v_alignbit_b32 v56, v53, v52, 16")
        A("v_alignbit_b32 v57, v54, v53, 16")
        A("v_alignbit_b32 v58, v55, v54, 16")
        A("v_alignbit_b32 v59, v48, v55, 16")
        A(f"ds_write_b128 v28, v[52:55] offset:{KA_KE + 3072}")
        A(f"ds_write_b128 v28, v[56:59] offset:{KA_KO + 3072}")
        A("v_mov_b32 v14, s39")
        A(f"ds_write_b16 v14, v12 offset:{KA_KO + 2*2047}")


def ka(A):
    A("s_cmp_ge_u32 s2, 256")
    A("s_cbranch_scc1 KA_END")
    k_begin(A)
    A("s_load_dwordx16 s[16:31], s[0:1], 0")
    A("s_load_dwordx4 s[44:47], s[0:1], 104")
    A("v_lshrrev_b32 v1, 6, v0")
    A("v_readfirstlane_b32 s3, v1")
    A("v_and_b32 v2, 63, v0")
    A("v_mov_b32 v3, 0")
    A("v_lshlrev_b32 v4, 2, v2")
    A(f"v_add_u32 v4, {KA_CNT}, v4")
    A("s_cmp_lg_u32 s3, 0")
    A("s_cbranch_scc1 KA_NOZ")
    A("s_mov_b64 exec, 0xffffffff")
    A("ds_write_b32 v4, v3")
    A("s_mov_b64 exec, -1")
    A.label("KA_NOZ")
    A(f"s_sub_u32 s4, s2, {NPROD}")
    pair_swizzle(A, 35, 4, 6)
    A("s_sub_u32 s4, s3, 4")
    A("s_mul_i32 s37, s4, 11")
    A("s_lshr_b32 s37, s37, 5")
    A("s_mul_i32 s36, s37, 3")
    A("s_sub_u32 s36, s4, s36")
    A("s_lshl_b32 s34, s35, 2")
    A("s_add_u32 s34, s34, s37")
    A(f"s_mul_i32 s7, s4, {KG_SZ}")
    A("s_mul_i32 s4, s34, 384")
    A("s_lshr_b32 s5, s34, 1")
    A("s_lshl_b32 s5, s5, 2")
    A("s_lshl_b32 s8, s36, 7")
    A("s_add_u32 s8, s8, s4")
    A("v_lshlrev_b32 v3, 1, v2")
    A("v_add_u32 v1, s8, v3")
    A("v_add_u32 v3, s4, v3")
    A("s_waitcnt lgkmcnt(0)")
    A("s_mov_b32 s32, s46")
    A("s_mov_b32 s33, s47")
    A("s_cmp_lt_u32 s3, 4")
    A("s_cbranch_scc1 KA_B0")
    A(f"s_cmp_lt_u32 s2, {NPROD}")
    A("s_cbranch_scc1 KA_B0")
    A("s_load_dword s6, s[26:27], s5")
    A("global_load_ushort v10, v1, s[18:19]")
    A("global_load_ushort v11, v1, s[20:21]")
    A("global_load_ushort v12, v1, s[22:23]")
    A("global_load_ushort v13, v1, s[24:25]")
    for i in range(3):
        A(f"global_load_ushort v{14+i}, v3, s[22:23] offset:{128*i}")
        A(f"global_load_ushort v{17+i}, v3, s[24:25] offset:{128*i}")
    A.label("KA_B0")
    A("s_barrier")
    A("s_cmp_lt_u32 s3, 3")
    A("s_cbranch_scc1 KA_LN1")
    A("s_cmp_lg_u32 s3, 3")
    A("s_cbranch_scc1 KA_NOTAG")
    A(f"s_mov_b32 s14, {WS_EPOCH}")
    A("s_load_dword s15, s[32:33], s14")
    A(f"v_mov_b32 v18, {KA_CNT + 96}")
    A("s_waitcnt lgkmcnt(0)")
    A("s_mul_i32 s15, s15, 0x9E3779B1")
    A("s_add_u32 s15, s15, 0x632BE5AB")
    A("v_mov_b32 v19, s15")
    A("ds_write_b32 v18, v19")
    A("s_waitcnt lgkmcnt(0)")
    A(f"v_mov_b32 v18, {KA_CNT + 12}")
    A("v_mov_b32 v19, 1")
    A("s_mov_b64 exec, 1")
    A("ds_add_u32 v18, v19")
    A("s_mov_b64 exec, -1")
    A(f"s_cmp_ge_u32 s2, {NPROD}")
    A("s_cbranch_scc1 KA_CONV")
    A("s_branch KA_WTPOLL")
    A.label("KA_NOTAG")
    A(f"s_cmp_lt_u32 s2, {NPROD}")
    A("s_cbranch_scc1 KA_WT0")
    kgen_wave(A)
    arrive_s(A, 4, 37)
    wait_s(A, 4, 37, 3, "KA_W4")
    stamp(A, 7)
    A(f"s_mul_i32 s11, s37, {3*KG_SZ}")
    A("s_lshl_b32 s12, s36, 10")
    A("s_add_u32 s11, s11, s12")
    A("v_add_u32 v28, s11, v28")
    for w in range(3):
        A(f"ds_read_b128 {vr(40+4*w,4)}, v28 offset:{KG_SZ*w}")
    A("s_waitcnt lgkmcnt(0)")
    for i in range(4):
        A(f"v_add_f32 v{40+i}, v{40+i}, v{44+i}")
    for i in range(4):
        A(f"v_add_f32 v{40+i}, v{40+i}, v{48+i}")
    A("v_cvt_pk_f16_f32 v40, v40, v41")
    A("v_cvt_pk_f16_f32 v41, v42, v43")
    A("s_cmp_eq_u32 s36, 1")
    A("s_cbranch_scc1 KA_S1")
    A("ds_write_b64 v29, v[40:41]")
    A("s_branch KA_S2")
    A.label("KA_S1")
    A("ds_write_b16 v29, v40")
    A("ds_write_b16_d16_hi v29, v40 offset:64")
    A("ds_write_b16 v29, v41 offset:128")
    A("ds_write_b16_d16_hi v29, v41 offset:192")
    A.label("KA_S2")
    arrive_s(A, 8, 37)
    wait_s(A, 8, 37, 3, "KA_W5")
    A(f"s_mul_i32 s39, s37, {KEO_ST}")
    A(f"s_add_u32 s39, s39, {KEO_BASE}")
    A(f"s_mul_i32 s40, s37, {T_ST}")
    A(f"s_add_u32 s40, s40, {KA_T}")
    A("s_cmp_eq_u32 s36, 0")
    A("s_cbranch_scc1 KA_R0")
    A("s_cmp_eq_u32 s36, 1")
    A("s_cbranch_scc1 KA_R1")
    expand_round(A, 2, "R2")
    A("s_branch KA_RX")
    A.label("KA_R0")
    expand_round(A, 0, "R0")
    A("s_branch KA_RX")
    A.label("KA_R1")
    expand_round(A, 1, "R1")
    A.label("KA_RX")
    arrive_s(A, 12, 37)
    k_end(A, 0)

    A.label("KA_CONV")
    A("s_lshl_b32 s4, s35, 2")
    A("s_add_u32 s4, s4, s3")
    A("s_lshr_b32 s14, s4, 1")
    A("s_lshl_b32 s14, s14, 2")
    A(f"s_mul_i32 s39, s3, {KEO_ST}")
    A(f"s_mul_i32 s40, s3, {T_ST}")
    A(f"s_add_u32 s40, s40, {KA_T}")
    A(f"s_mul_i32 s41, s3, {U_ST}")
    A(f"s_add_u32 s41, s41, {KA_U}")
    A("v_and_b32 v6, 15, v2")
    A("v_lshrrev_b32 v7, 4, v2")
    A("v_lshrrev_b32 v8, 1, v7")
    A("v_and_b32 v9, 1, v7")
    A("v_mov_b32 v12, 0")
    A("v_mov_b32 v13, 0")
    A("v_lshlrev_b32 v14, 3, v2")
    A("v_add_u32 v14, s41, v14")
    A("ds_write_b64 v14, v[12:13]")
    A("v_sub_u32 v14, 2047, v6")
    A("v_lshlrev_b32 v15, 4, v8")
    A("v_sub_u32 v14, v14, v15")
    A("v_lshlrev_b32 v15, 3, v9")
    A("v_add_u32 v14, v14, v15")
    A("v_lshlrev_b32 v14, 1, v14")
    A(f"v_add_u32 v15, {KA_KO - 2}, v14")
    A("v_and_b32 v16, 1, v6")
    A("v_cmp_eq_u32 vcc, 1, v16")
    A("v_cndmask_b32 v14, v15, v14, vcc")
    A("v_add_u32 v14, s39, v14")
    AB = [20, 21, 22, 23]
    for p in range(4):
        A(f"v_subrev_u32 v{AB[p]}, {512*(2*p+1) + 448}, v14")
    A("v_lshlrev_b32 v15, 5, v6")
    A("v_lshlrev_b32 v16, 5, v8")
    A("v_sub_u32 v15, v15, v16")
    A("v_lshlrev_b32 v16, 4, v9")
    A("v_add_u32 v15, v15, v16")
    A(f"v_add_u32 v15, {512 - 448}, v15")
    BB = 24
    A(f"v_add_u32 v{BB}, s41, v15")
    A("v_lshlrev_b32 v15, 5, v6")
    A("v_lshlrev_b32 v16, 3, v7")
    A("v_add_u32 v25, v15, v16")
    A("v_lshlrev_b32 v3, 3, v2")
    A("v_sub_u32 v3, 511, v3")
    for k in range(9):
        A(f"v_subrev_u32 v{30+k}, {k}, v3")
    A("v_max_i32 v38, 0, v38")
    for k in range(9):
        A(f"v_cvt_f32_i32 v{40+k}, v{30+k}")
    for k in range(0, 8, 2):
        A(f"v_cvt_pk_bf16_f32 v{50+k}, v{40+k}, v{41+k}")
        A(f"v_lshrrev_b32 v{51+k}, 16, v{50+k}")
        A(f"v_and_b32 v{50+k}, 0xffff, v{50+k}")
    A("v_cvt_pk_bf16_f32 v58, v48, v48")
    A("v_and_b32 v58, 0xffff, v58")
    for k in range(9):
        A(f"v_subrev_u32 v{50+k}, 17024, v{50+k}")
        A(f"v_min_i32 v{30+k}, 127, v{30+k}")
        A(f"v_max_i32 v{50+k}, v{50+k}, v{30+k}")
        A(f"v_lshlrev_b32 v{30+k}, 1, v{50+k}")
        A(f"v_add_u32 v{30+k}, s40, v{30+k}")
    A("v_lshrrev_b32 v5, 2, v2")
    A("v_mul_u32_u24 v5, 10240, v5")
    A("v_and_b32 v4, 3, v2")
    A("v_lshl_add_u32 v5, v4, 4, v5")
    A("s_lshl_b32 s7, s35, 6")
    A("s_mul_i32 s8, s3, 655360")
    A("s_add_u32 s7, s7, s8")
    A(f"s_add_u32 s7, s7, {WS_UT}")
    A("v_add_u32 v5, s7, v5")
    A(f"v_mul_u32_u24 v4, {U_ST}, v4")
    A("v_lshrrev_b32 v3, 2, v2")
    A("v_lshl_add_u32 v4, v3, 4, v4")
    A("s_lshl_b32 s8, s3, 10")
    A(f"s_add_u32 s8, s8, {KA_U + 512}")
    A("v_add_u32 v4, s8, v4")
    A("s_load_dword s11, s[28:29], s14")
    stamp(A, 1)
    A("s_cmp_lg_u32 s3, 3")
    A("s_cbranch_scc1 KA_GOT")
    wait_count(A, 3, 4, "KA_OWN", sleep=4)
    poll_flags(A, "KA_POLL")
    A(f"s_cmp_lg_u32 s2, {NPROD}")
    A("s_cbranch_scc1 KA_GOT")
    A(f"v_mov_b32 v3, {WS_EPOCH}")
    A("v_mov_b32 v10, s15")
    A("s_mov_b64 exec, 1")
    A(f"global_store_dword v3, v10, s[32:33] {SC}")
    A("s_mov_b64 exec, -1")
    A.label("KA_GOT")
    AF, BF, ACC = 32, 64, 96
    for i in range(32):
        A(f"v_mov_b32 v{ACC+i}, 0")
    A("s_bitcmp1_b32 s4, 0")
    group_sync(A, 2, 4, "KA_GS2")
    stamp(A, 2)
    for j in range(4):
        A(f"global_load_dwordx4 {vr(64+4*j,4)}, v5, s[32:33] {SC}")
        if j < 3:
            A("v_add_u32 v5, 163840, v5")
    A("s_bitcmp1_b32 s4, 0")
    A("s_cbranch_scc1 KA_ODD2")
    A("s_lshl_b32 s11, s11, 16")
    A.label("KA_ODD2")
    A("s_and_b32 s11, s11, 0xffff0000")
    for j in range(4):
        A(f"s_waitcnt vmcnt({3-j})")
        A(f"ds_write_b128 v4, {vr(64+4*j,4)} offset:{256*j}")
    arrive(A, 17)
    stamp(A, 3)
    wait_s(A, 8, 3, 3, "KA_W5C")
    expand_round(A, 3, "R3")
    A("s_lshl_b32 s12, s3, 2")
    A(f"s_add_u32 s12, s12, {KA_SC}")
    A("v_mov_b32 v3, s12")
    A("ds_read_b32 v10, v3")
    wait_s(A, 12, 3, 3, "KA_W6")
    wait_count(A, 17, 4, "KA_W7", sleep=0)
    stamp(A, 5)

    def loadA(q, i0):
        p = q // 2
        o = (128 if q % 2 == 0 else 0) + 16 * (7 - i0)
        return [f"ds_read2_b32 {vr(AF+4*q,2)}, v{AB[p]} offset0:{o} offset1:{o+1}",
                f"ds_read2_b32 {vr(AF+4*q+2,2)}, v{AB[p]} offset0:{o+2} offset1:{o+3}"]

    def loadB(tau, i0):
        return [f"ds_read_b128 {vr(BF+4*tau,4)}, v{BB} offset:{512*tau + 64*(7-i0)}"]

    queue = []
    for q in range(8):
        A(loadB(7 - q, 0)[0])
        queue.append(("B", 7 - q))
        if q == 0:
            for s in loadA(0, 0):
                A(s)
            queue += [("A", 0), ("A", 0)]
    for q in range(1, 8):
        for s in loadA(q, 0):
            A(s)
        queue += [("A", q), ("A", q)]
    pending = []

    def wait_for(tags):
        while any(tg in tags for _, tg in pending):
            s_, tg = pending.pop(0)
            A(s_)
            queue.append(tg)
        last = -1
        for i, t in enumerate(queue):
            if t in tags:
                last = i
        if last >= 0:
            n = len(queue) - 1 - last
            A(f"s_waitcnt lgkmcnt({min(n, 15)})")
            del queue[:last + 1]

    for i0 in range(8):
        for q in range(8):
            for tau in range(7 - q, -1, -1):
                wait_for({("A", q), ("B", tau)})
                t = q + tau
                A(f"v_mfma_f32_16x16x32_f16 {vr(ACC+4*t,4)}, {vr(AF+4*q,4)}, {vr(BF+4*tau,4)}, {vr(ACC+4*t,4)}")
                if i0 < 7:
                    if tau == 7 - q:
                        pending.insert(0, (loadB(7 - q, i0 + 1)[0], ("B", 7 - q)))
                    if tau == 0:
                        for s in loadA(q, i0 + 1):
                            pending.append((s, ("A", q)))
                if pending:
                    s, tag = pending.pop(0)
                    A(s)
                    queue.append(tag)
    stamp(A, 6)
    A("v_add_u32 v26, s41, v25")
    A("v_add_u32 v27, s39, v25")
    for t in range(8):
        A(f"ds_read_b64 {vr(32+2*t,2)}, v26 offset:{512 + 512*t}")
    A(f"v_mov_b32 v28, {ONE_LO}")
    A(f"v_mov_b32 v29, {ONE_HI}")
    A("v_mov_b32 v11, v10")
    A("s_waitcnt lgkmcnt(0)")
    for t in range(8):
        a = ACC + 4 * t
        u = 32 + 2 * t
        tm = 48 + 8 * (t & 1)
        A(f"v_pk_mul_f32 {vr(a,2)}, {vr(a,2)}, v[10:11]")
        A(f"v_pk_mul_f32 {vr(a+2,2)}, {vr(a+2,2)}, v[10:11]")
        A(f"v_fma_mix_f32 v{tm}, v{u}, s11, 0 op_sel:[0,0,0] op_sel_hi:[1,0,0]")
        A(f"v_fma_mix_f32 v{tm+1}, v{u}, s11, 0 op_sel:[1,0,0] op_sel_hi:[1,0,0]")
        A(f"v_fma_mix_f32 v{tm+2}, v{u+1}, s11, 0 op_sel:[0,0,0] op_sel_hi:[1,0,0]")
        A(f"v_fma_mix_f32 v{tm+3}, v{u+1}, s11, 0 op_sel:[1,0,0] op_sel_hi:[1,0,0]")
        A(f"v_cvt_pk_bf16_f32 v{a}, v{a}, v{a+1}")
        A(f"v_cvt_pk_bf16_f32 v{a+1}, v{a+2}, v{a+3}")
        A(f"v_cvt_pk_bf16_f32 v{tm+4}, v{tm}, v{tm+1}")
        A(f"v_cvt_pk_bf16_f32 v{tm+5}, v{tm+2}, v{tm+3}")
        A(f"v_lshlrev_b32 v{tm}, 16, v{tm+4}")
        A(f"v_and_b32 v{tm+1}, 0xffff0000, v{tm+4}")
        A(f"v_lshlrev_b32 v{tm+2}, 16, v{tm+5}")
        A(f"v_and_b32 v{tm+3}, 0xffff0000, v{tm+5}")
        A(f"v_dot2_f32_bf16 v{tm}, v{a}, v28, v{tm}")
        A(f"v_dot2_f32_bf16 v{tm+1}, v{a}, v29, v{tm+1}")
        A(f"v_dot2_f32_bf16 v{tm+2}, v{a+1}, v28, v{tm+2}")
        A(f"v_dot2_f32_bf16 v{tm+3}, v{a+1}, v29, v{tm+3}")
        A(f"v_cvt_pk_bf16_f32 v{a+2}, v{tm}, v{tm+1}")
        A(f"v_cvt_pk_bf16_f32 v{a+3}, v{tm+2}, v{tm+3}")
        A(f"ds_write_b64 v27, {vr(a+2,2)} offset:{KA_KE + 512*t}")
    stamp(A, 7)
    A("v_lshrrev_b32 v14, 2, v6")
    A(f"v_mul_u32_u24 v14, {KEO_ST}, v14")
    A("v_and_b32 v15, 3, v2")
    A("v_lshlrev_b32 v15, 3, v15")
    A("v_add_u32 v14, v14, v15")
    A("v_lshlrev_b32 v15, 5, v7")
    A("v_add_u32 v14, v14, v15")
    A("s_lshl_b32 s12, s3, 10")
    A("v_add_u32 v14, s12, v14")
    A("v_lshrrev_b32 v15, 3, v6")
    A("v_lshlrev_b32 v16, 1, v7")
    A("v_add_u32 v15, v15, v16")
    A("v_mul_u32_u24 v15, 10240, v15")
    A("v_and_b32 v16, 7, v6")
    A("v_lshlrev_b32 v16, 4, v16")
    A("v_add_u32 v15, v15, v16")
    A("s_mul_i32 s12, s3, 655360")
    A("s_lshr_b32 s13, s35, 1")
    A("s_lshl_b32 s13, s13, 7")
    A("s_add_u32 s12, s12, s13")
    A("s_and_b32 s13, s35, 1")
    A("s_lshl_b32 s13, s13, 3")
    A("s_add_u32 s12, s12, s13")
    A(f"s_add_u32 s12, s12, {WS_AT}")
    A("v_add_u32 v15, s12, v15")
    A("s_waitcnt lgkmcnt(0)")
    A("s_barrier")
    for k in range(8):
        A(f"ds_read_b64_tr_b16 {vr(40+2*k,2)}, v14 offset:{KA_KE + 128*k}")
    for k in range(8):
        A(f"s_waitcnt lgkmcnt({7-k})")
        A(f"global_store_dwordx2 v15, {vr(40+2*k,2)}, s[32:33]")
        if k < 7:
            A("v_add_u32 v15, 81920, v15")
    k_end(A, 0)

    A.label("KA_LN1")
    A("s_setprio 3")
    A("v_mov_b32 v20, v0")
    A("s_mul_i32 s5, s2, 10240")
    A("v_min_u32 v21, 159, v20")
    A("v_lshlrev_b32 v3, 3, v21")
    A("v_add_u32 v3, s5, v3")
    A("v_add_u32 v4, 5120, v3")
    A("v_lshrrev_b32 v5, 4, v20")
    A("v_mul_u32_u24 v6, 1280, v5")
    A("v_and_b32 v7, 15, v20")
    A("v_lshlrev_b32 v7, 4, v7")
    A("v_add_u32 v6, v6, v7")
    A("v_add_u32 v6, s5, v6")
    A("s_cmp_eq_u32 s3, 2")
    A("s_cbranch_scc1 KA_LNB")
    for i in range(5):
        A(f"global_load_dwordx4 {vr(24+4*i,4)}, v6, s[16:17] offset:{256*i}")
    A.label("KA_LNB")
    for r in range(8):
        A(f"global_load_dwordx2 {vr(48+2*r,2)}, v{3 if r < 4 else 4}, s[16:17] offset:{1280*(r%4)}")
    A(f"v_mov_b32 v14, {ONE_LO}")
    A(f"v_mov_b32 v15, {ONE_HI}")
    A("s_cmp_eq_u32 s3, 2")
    A("s_cbranch_scc1 KA_P1")
    for r in (8, 9, 10, 11):
        A(f"v_mov_b32 v{r}, 0")
    A("v_mov_b32 v12, 0x3f803f80")
    A("s_waitcnt vmcnt(8)")
    for i in range(0, 20, 2):
        A(f"v_dot2c_f32_bf16 v8, v{24+i}, v12")
        A(f"v_dot2c_f32_bf16 v9, v{24+i}, v{24+i}")
        A(f"v_dot2c_f32_bf16 v10, v{25+i}, v12")
        A(f"v_dot2c_f32_bf16 v11, v{25+i}, v{25+i}")
    A("s_nop 2")
    A("v_add_f32 v8, v8, v10")
    A("v_add_f32 v9, v9, v11")
    for sh in (8, 4, 2, 1):
        A(f"v_add_f32_dpp v8, v8, v8 row_ror:{sh} row_mask:0xf bank_mask:0xf")
        A(f"v_add_f32_dpp v9, v9, v9 row_ror:{sh} row_mask:0xf bank_mask:0xf")
    ln_finish(A, 8, 9, 10)
    A("v_sub_f32 v8, 0, v8")
    A("v_lshlrev_b32 v5, 3, v5")
    A(f"v_add_u32 v5, {KA_STATS}, v5")
    A("ds_write_b64 v5, v[8:9]")
    A.label("KA_P1")
    group_sync(A, 0, 3, "KA_GS0")
    stamp(A, 8)
    A(f"v_mov_b32 v5, {KA_STATS}")
    for i in range(4):
        A(f"ds_read_b128 {vr(24+4*i,4)}, v5 offset:{16*i}")
    A("v_lshlrev_b32 v3, 6, v21")
    A(f"v_add_u32 v3, {KA_STAGE}, v3")
    A("s_waitcnt vmcnt(0) lgkmcnt(0)")
    for rp in range(4):
        r0, r1 = 2 * rp, 2 * rp + 1
        tt = [84 + 3 * ch for ch in range(4)]
        for ch in range(4):
            a, b = 48 + 2 * r0 + (ch >> 1), 48 + 2 * r1 + (ch >> 1)
            one = 14 + (ch & 1)
            A(f"v_dot2_f32_bf16 v{tt[ch]}, v{a}, v{one}, v{24+2*r0}")
            A(f"v_dot2_f32_bf16 v{tt[ch]+1}, v{b}, v{one}, v{24+2*r1}")
        for ch in range(4):
            A(f"v_cvt_pk_bf16_f32 v{tt[ch]+2}, v{tt[ch]}, v{tt[ch]+1}")
        for ch in range(4):
            A(f"v_lshlrev_b32 v{tt[ch]}, 16, v{tt[ch]+2}")
            A(f"v_and_b32 v{tt[ch]+1}, 0xffff0000, v{tt[ch]+2}")
        for ch in range(4):
            A(f"v_mul_f32 v{tt[ch]}, v{tt[ch]}, v{25+2*r0}")
            A(f"v_mul_f32 v{tt[ch]+1}, v{tt[ch]+1}, v{25+2*r1}")
        for ch in range(4):
            A(f"v_cvt_pk_bf16_f32 v{tt[ch]+2}, v{tt[ch]}, v{tt[ch]+1}")
        for ch in range(4):
            A(f"v_lshlrev_b32 v{tt[ch]}, 16, v{tt[ch]+2}")
            A(f"v_and_b32 v{tt[ch]+1}, 0xffff0000, v{tt[ch]+2}")
        for ch in range(4):
            A(f"v_cvt_pk_f16_f32 v{68+4*ch+rp}, v{tt[ch]}, v{tt[ch]+1}")
    for ch in range(4):
        A(f"ds_write_b128 v3, {vr(68+4*ch,4)} offset:{16*ch}")
    group_sync(A, 1, 3, "KA_GS1")
    A("v_lshlrev_b32 v3, 4, v20")
    A(f"v_add_u32 v4, {KA_STAGE}, v3")
    for j in range(4):
        A(f"ds_read_b128 {vr(24+4*j,4)}, v4 offset:{3072*j}")
    A(f"s_add_u32 s5, s5, {WS_UT}")
    A("v_add_u32 v3, s5, v3")
    A("s_waitcnt lgkmcnt(0)")
    for j in range(3):
        A(f"global_store_dwordx4 v3, {vr(24+4*j,4)}, s[32:33] {SC}")
        A("v_add_u32 v3, 3072, v3")
    A("s_cmp_lg_u32 s3, 0")
    A("s_cbranch_scc1 KA_P3")
    A(f"global_store_dwordx4 v3, {vr(36,4)}, s[32:33] {SC}")
    A.label("KA_P3")
    A("s_waitcnt vmcnt(0)")
    group_sync(A, 3, 4, "KA_GS3")
    stamp(A, 9)
    A("s_cmp_lg_u32 s3, 0")
    A("s_cbranch_scc1 KA_LNX")
    A(f"v_mov_b32 v3, {KA_CNT + 96}")
    A("ds_read_b32 v4, v3")
    A(f"s_lshr_b32 s5, s2, {0 if FLAG64 == 2 else 2 if FLAG64 else 4}")
    A("s_lshl_b32 s5, s5, 7")
    A(f"s_and_b32 s6, s2, {0 if FLAG64 == 2 else 3 if FLAG64 else 15}")
    A("s_lshl_b32 s6, s6, 2")
    A("s_add_u32 s5, s5, s6")
    A(f"s_add_u32 s5, s5, {WS_FLAG}")
    A("v_mov_b32 v3, s5")
    A("s_waitcnt lgkmcnt(0)")
    A("s_mov_b64 exec, 1")
    A(f"global_store_dword v3, v4, s[32:33] {FMOD}")
    A("s_mov_b64 exec, -1")
    A.label("KA_LNX")
    A("s_setprio 0")
    A(f"s_cmp_ge_u32 s2, {NPROD}")
    A("s_cbranch_scc1 KA_CONV")
    k_end(A, 0)
    A.label("KA_WTPOLL")
    wait_count(A, 3, 4, "KA_OWN2", sleep=4)
    if not os.environ.get("WT_EARLY"):
        poll_epoch(A, "KA_POLL2")
    arrive(A, 16)
    k_end(A, 0)
    A.label("KA_WT0")
    A("s_cmp_ge_u32 s3, 8")
    A("s_cbranch_scc1 KA_PRE" if PREFILL[0] else "s_cbranch_scc1 KA_WTX")
    wait_count(A, 16, 1, "KA_WTW", sleep=8)
    wt_role(A, "KA", 0, -2, 8192, 0, 960, 0, os.environ.get("WT_MOD", ""), 384)
    if PREFILL[0]:
        A.label("KA_PRE")
        A("s_cmp_lg_u32 s3, 8")
        A("s_cbranch_scc1 KA_WTX")
        nk = 256 * KEY_STRIDE // 1024
        A(f"s_cmp_ge_u32 s2, {nk + 24}")
        A("s_cbranch_scc1 KA_WTX")
        A("s_lshl_b32 s4, s2, 10")
        A(f"s_add_u32 s5, s4, {WS_RK}")
        A(f"s_add_u32 s6, s4, {WS_ACT - 1024 * nk}")
        A(f"s_cmp_lt_u32 s2, {nk}")
        A("s_cselect_b32 s5, s5, s6")
        A("v_lshlrev_b32 v3, 4, v2")
        A("v_add_u32 v3, s5, v3")
        for i in range(4):
            A(f"v_mov_b32 v{4+i}, -1")
        A("global_store_dwordx4 v3, v[4:7], s[32:33]")
    A.label("KA_WTX")
    k_end(A, 0)
    A.label("KA_END")
    A("s_endpgm")


KERNELS4 = [
    ("ka_kernel", ka, 256, 1024, KA_LDS, 128),
    ("k3_kernel", k3, 256, 256, K3_LDS, 96),
    ("k4_kernel", k4, 192 + (80 if PF_WD[0] else 0), 256, K4_LDS, 96),
    ("k5_kernel", k5, 80, 512, K5_LDS, 96),
]

if __name__ == "__main__":
    if len(sys.argv) > 2 and sys.argv[2] == "stamp":
        STAMP[0] = True
    out = build(KERNELS4)
    path = sys.argv[1]
    open(path, "w").write(out)
    print("wrote", path, len(out), "bytes")
```

```python
import sys, os
sys.path.insert(0, os.path.dirname(os.path.abspath(__file__)))
import gen3
from gen3 import *

KG_SZ = 2 * K1_BUF
KEO_ST = 27712
KEO_BASE = 0
KA_KE, KA_KO = 0, 4160
KA_U = 12 * KG_SZ
U_ST = 4608
KA_T = KA_U + 4 * U_ST
T_ST = 1600
KA_SC = KA_T + 4 * T_ST
KA_LN = KA_SC + 64
KA_CNT = KA_LN
KA_STATS = KA_LN + 128
KA_STAGE = KA_LN + 192
KA_LDS = KA_STAGE + 10240 + 2560


def group_sync(A, idx, n, lbl):
    A("s_waitcnt lgkmcnt(0)")
    A(f"v_mov_b32 v18, {KA_CNT + 4*idx}")
    A("v_mov_b32 v19, 1")
    A("s_mov_b64 exec, 1")
    A("ds_add_u32 v18, v19")
    A("s_mov_b64 exec, -1")
    A("s_mov_b32 s12, 0")
    A.label(lbl)
    A("ds_read_b32 v19, v18")
    A("s_waitcnt lgkmcnt(0)")
    A("v_readfirstlane_b32 s13, v19")
    A(f"s_cmp_ge_u32 s13, {n}")
    A(f"s_cbranch_scc1 {lbl}_OK")
    A("s_add_u32 s12, s12, 1")
    A(f"s_cmp_lt_u32 s12, {1 << 22}")
    A(f"s_cbranch_scc1 {lbl}")
    A.label(lbl + "_OK")
NPROD = 96
PREFILL = [False]
KEY_STRIDE = int(os.environ.get('KEY_STRIDE', '32'))
WS_FLAG = 0x0930000
WS_EPOCH = 0x0928000
SC = os.environ.get('SCMOD', 'sc1')
PMOD = os.environ.get('PMOD', SC)
FMOD = os.environ.get('FMOD', SC)
SPIN_MAX = 1 << 16
POLL_SLEEP = int(os.environ.get('POLL_SLEEP', '8'))
POLL_FIRST = int(os.environ.get('POLL_FIRST', '32'))
FLAG64 = int(os.environ.get('FLAG64', '0'))


def k_end16(A, kidx):
    if STAMP[0]:
        A(f"s_memtime s[{60+2*(NSTAMP-2)}:{61+2*(NSTAMP-2)}]")
        A("s_waitcnt vmcnt(0) lgkmcnt(0)")
        A("s_memrealtime s[96:97]")
        A(f"s_memtime s[{60+2*(NSTAMP-1)}:{61+2*(NSTAMP-1)}]")
        A("s_mov_b64 exec, -1")
        A("v_lshrrev_b32 v1, 6, v0")
        A("s_lshl_b32 s98, s2, 4")
        A("v_add_u32 v1, s98, v1")
        A("v_lshlrev_b32 v1, 7, v1")
        A(f"v_add_u32 v1, {WS_STAMP + kidx * 0x200000}, v1")
        A("s_waitcnt lgkmcnt(0)")
        A("v_mov_b32 v2, s94")
        A("v_mov_b32 v3, s95")
        A("v_mov_b32 v4, s96")
        A("v_mov_b32 v5, s97")
        A("global_store_dwordx4 v1, v[2:5], s[32:33]")
        for i in range(0, NSTAMP, 2):
            for j in range(4):
                A(f"v_mov_b32 v{2+j}, s{60+2*i+j}")
            A(f"global_store_dwordx4 v1, v[2:5], s[32:33] offset:{16+8*i}")
    A("s_endpgm")


gen3.k_end = k_end16
k_end = k_end16


def arrive(A, idx):
    A("s_waitcnt lgkmcnt(0)")
    A(f"v_mov_b32 v18, {KA_CNT + 4*idx}")
    A("v_mov_b32 v19, 1")
    A("s_mov_b64 exec, 1")
    A("ds_add_u32 v18, v19")
    A("s_mov_b64 exec, -1")


def wait_count(A, idx, n, lbl, sleep=1):
    A(f"v_mov_b32 v18, {KA_CNT + 4*idx}")
    A("s_mov_b32 s12, 0")
    A.label(lbl)
    A("ds_read_b32 v19, v18")
    A("s_waitcnt lgkmcnt(0)")
    A("v_readfirstlane_b32 s13, v19")
    A(f"s_cmp_ge_u32 s13, {n}")
    A(f"s_cbranch_scc1 {lbl}_OK")
    A("s_add_u32 s12, s12, 1")
    if sleep:
        A(f"s_sleep {sleep}")
    A(f"s_cmp_lt_u32 s12, {1 << 22}")
    A(f"s_cbranch_scc1 {lbl}")
    A.label(lbl + "_OK")


def arrive_s(A, base_idx, sreg):
    A("s_waitcnt lgkmcnt(0)")
    A(f"s_lshl_b32 s12, s{sreg}, 2")
    A(f"s_add_u32 s12, s12, {KA_CNT + 4*base_idx}")
    A("v_mov_b32 v18, s12")
    A("v_mov_b32 v19, 1")
    A("s_mov_b64 exec, 1")
    A("ds_add_u32 v18, v19")
    A("s_mov_b64 exec, -1")


def wait_s(A, base_idx, sreg, n, lbl):
    A(f"s_lshl_b32 s12, s{sreg}, 2")
    A(f"s_add_u32 s12, s12, {KA_CNT + 4*base_idx}")
    A("v_mov_b32 v18, s12")
    A("s_mov_b32 s12, 0")
    A.label(lbl)
    A("ds_read_b32 v19, v18")
    A("s_waitcnt lgkmcnt(0)")
    A("v_readfirstlane_b32 s13, v19")
    A(f"s_cmp_ge_u32 s13, {n}")
    A(f"s_cbranch_scc1 {lbl}_OK")
    A("s_add_u32 s12, s12, 1")
    A("s_sleep 1")
    A(f"s_cmp_lt_u32 s12, {1 << 22}")
    A(f"s_cbranch_scc1 {lbl}")
    A.label(lbl + "_OK")


def poll_flags(A, lbl):
    if FLAG64 == 2:
        A("v_lshlrev_b32 v3, 7, v2")
        A(f"v_add_u32 v3, {WS_FLAG}, v3")
        for j in range(1, 4):
            A(f"v_add_u32 v{44+j}, {8192*j}, v3")
    elif FLAG64:
        A("v_lshlrev_b32 v3, 7, v2")
        A(f"v_add_u32 v3, {WS_FLAG}, v3")
    else:
        A("v_lshrrev_b32 v3, 4, v2")
        A("v_lshlrev_b32 v3, 7, v3")
        A("v_and_b32 v10, 15, v2")
        A("v_lshl_add_u32 v3, v10, 2, v3")
        A(f"v_add_u32 v3, {WS_FLAG}, v3")
    A("s_mov_b32 s12, 0")
    if POLL_FIRST:
        A(f"s_sleep {POLL_FIRST}")
    A.label(lbl)
    if FLAG64 == 2:
        A(f"global_load_dword v40, v3, s[32:33] {PMOD}")
        for j in range(1, 4):
            A(f"global_load_dword v{40+j}, v{44+j}, s[32:33] {PMOD}")
    elif FLAG64:
        A(f"global_load_dwordx4 v[40:43], v3, s[32:33] {PMOD}")
    else:
        for j in range(4):
            A(f"global_load_dword v{40+j}, v3, s[32:33] offset:{512*j} {PMOD}")
    A("s_waitcnt vmcnt(0)")
    A("v_cmp_ne_u32 vcc, s15, v40")
    A("v_cmp_ne_u32 s[20:21], s15, v41")
    A("v_cmp_ne_u32 s[22:23], s15, v42")
    A("v_cmp_ne_u32 s[24:25], s15, v43")
    A("s_or_b64 vcc, vcc, s[20:21]")
    A("s_or_b64 s[22:23], s[22:23], s[24:25]")
    A("s_or_b64 vcc, vcc, s[22:23]")
    A("s_cmp_eq_u64 vcc, 0")
    A(f"s_cbranch_scc1 {lbl}_SEEN")
    A("s_add_u32 s12, s12, 1")
    A(f"s_cmp_ge_u32 s12, {SPIN_MAX}")
    A(f"s_cbranch_scc1 {lbl}_SEEN")
    A(f"s_sleep {POLL_SLEEP}")
    A(f"s_branch {lbl}")
    A.label(lbl + "_SEEN")


def poll_epoch(A, lbl):
    A(f"v_mov_b32 v3, {WS_EPOCH}")
    A("s_mov_b32 s12, 0")
    A("s_sleep 48")
    A.label(lbl)
    A(f"global_load_dword v40, v3, s[32:33] {SC}")
    A("s_waitcnt vmcnt(0)")
    A("v_readfirstlane_b32 s13, v40")
    A("s_cmp_eq_u32 s13, s15")
    A(f"s_cbranch_scc1 {lbl}_SEEN")
    A("s_add_u32 s12, s12, 1")
    A(f"s_cmp_ge_u32 s12, {SPIN_MAX}")
    A(f"s_cbranch_scc1 {lbl}_SEEN")
    A("s_sleep 16")
    A(f"s_branch {lbl}")
    A.label(lbl + "_SEEN")


def kgen_wave(A):
    A(f"s_mov_b32 s90, {L2E_HI}")
    A(f"s_mov_b32 s91, {L2E_LO}")
    A(f"s_mov_b32 s92, {LN2}")
    A("v_and_b32 v3, 15, v2")
    A("v_lshrrev_b32 v4, 4, v2")
    A("s_cmp_eq_u32 s36, 1")
    A("s_cbranch_scc1 KA_A1")
    A("s_cmp_eq_u32 s36, 2")
    A("s_cbranch_scc1 KA_A2")
    A("v_lshrrev_b32 v5, 1, v4")
    A("v_lshlrev_b32 v5, 7, v5")
    A("v_lshl_add_u32 v5, v3, 3, v5")
    A("v_and_b32 v6, 1, v4")
    A("v_lshl_add_u32 v5, v6, 2, v5")
    A("s_branch KA_A3")
    A.label("KA_A1")
    A("v_lshlrev_b32 v5, 1, v3")
    A("v_add_u32 v5, v5, v4")
    A("v_add_u32 v5, 384, v5")
    A("v_lshlrev_b32 v6, 4, v4")
    A("v_add_u32 v6, v6, v3")
    A("v_add_u32 v6, 480, v6")
    A("v_cmp_gt_u32 vcc, 2, v4")
    A("v_cndmask_b32 v5, v6, v5, vcc")
    A("s_branch KA_A3")
    A.label("KA_A2")
    A("v_lshlrev_b32 v5, 6, v4")
    A("v_lshlrev_b32 v6, 2, v3")
    A("v_add_u32 v5, v5, v6")
    A("v_add_u32 v5, 256, v5")
    A("v_lshlrev_b32 v6, 2, v2")
    A("v_add_u32 v6, 520, v6")
    A("v_cmp_gt_u32 vcc, 2, v4")
    A("v_cndmask_b32 v5, v6, v5, vcc")
    A("v_mov_b32 v6, 640")
    A("v_cmp_eq_u32 vcc, 32, v2")
    A("v_cndmask_b32 v5, v5, v6, vcc")
    A.label("KA_A3")
    A(f"s_mul_i32 s11, s37, {T_ST}")
    A(f"s_add_u32 s11, s11, {KA_T}")
    A("v_lshlrev_b32 v29, 1, v5")
    A("v_add_u32 v29, s11, v29")
    A(f"v_mul_u32_u24 v32, {K1_ROWB}, v3")
    A("v_lshlrev_b32 v5, 4, v4")
    A("v_add_u32 v32, v32, v5")
    A("v_add_u32 v32, s7, v32")
    AW = 120
    A("v_lshlrev_b32 v5, 2, v2")
    A(f"v_add_u32 v{AW}, s7, v5")
    for k in range(1, 8):
        A(f"v_add_u32 v{AW+k}, {(k//4)*K1_BUF + (k%4)*4*K1_ROWB}, v{AW}")
    stamp(A, 1)
    A("s_waitcnt lgkmcnt(0)")
    A("s_bitcmp1_b32 s34, 0")
    A("s_cbranch_scc1 KA_ODD")
    A("s_lshl_b32 s6, s6, 16")
    A.label("KA_ODD")
    A("s_and_b32 s6, s6, 0xffff0000")
    A("v_mov_b32 v5, s6")
    exp_bf16(A, 33, 5, 6, 7)
    A("s_waitcnt vmcnt(0)")
    stamp(A, 2)
    for i in range(6):
        A(f"v_and_b32 v{14+i}, 0x7fff, v{14+i}")
    A("v_max3_u32 v14, v14, v15, v16")
    A("v_max3_u32 v17, v17, v18, v19")
    A("v_max_u32 v14, v14, v17")
    A("v_lshlrev_b32 v10, 16, v10")
    A("v_lshlrev_b32 v11, 16, v11")
    A("v_mul_f32 v6, s90, v10")
    A("v_max_u32_dpp v14, v14, v14 row_shr:1 row_mask:0xf bank_mask:0xf")
    A("v_fma_f32 v7, v10, s90, -v6")
    A("v_exp_f32 v34, v6")
    A("v_max_u32_dpp v14, v14, v14 row_shr:2 row_mask:0xf bank_mask:0xf")
    A("v_fma_f32 v7, v10, s91, v7")
    A("v_mul_f32 v35, v11, v33")
    A("v_max_u32_dpp v14, v14, v14 row_shr:4 row_mask:0xf bank_mask:0xf")
    A("v_mul_f32 v7, s92, v7")
    A(f"v_mul_f32 v35, {INV2PI}, v35")
    A("v_max_u32_dpp v14, v14, v14 row_shr:8 row_mask:0xf bank_mask:0xf")
    A("v_fma_f32 v34, v34, v7, v34")
    A("v_lshlrev_b32 v12, 16, v12")
    A("v_max_u32_dpp v14, v14, v14 row_bcast:15 row_mask:0xa bank_mask:0xf")
    A("v_cvt_pk_bf16_f32 v34, v34, v34")
    A("v_lshlrev_b32 v13, 16, v13")
    A("v_max_u32_dpp v14, v14, v14 row_bcast:31 row_mask:0xc bank_mask:0xf")
    A("v_and_b32 v34, 0xffff0000, v34")
    A("v_mul_f32 v34, v34, v33")
    A("v_readlane_b32 s8, v14, 63")
    A("v_mul_f32 v34, s90, v34")
    A("v_sub_f32 v34, 0, v34")
    A("s_lshr_b32 s8, s8, 7")
    A("s_max_u32 s8, s8, 6")
    A("s_min_u32 s8, s8, 253")
    A("s_sub_u32 s9, 260, s8")
    A("s_lshl_b32 s9, s9, 23")
    A("s_sub_u32 s10, s8, 132")

    def direct(t, p):
        lit = "1.0" if p == 1 else hex(fbits(float(p)))
        A(f"v_mul_f32 v{t}, {lit}, v34")
        A(f"v_mul_f32 v{t+1}, {lit}, v35")
        A(f"v_fract_f32 v{t+1}, v{t+1}")

    def direct2(t):
        A(f"v_exp_f32 v{t}, v{t}")
        A(f"v_cos_f32 v{t+2}, v{t+1}")
        A(f"v_sin_f32 v{t+3}, v{t+1}")

    def direct_fin(d, t):
        A(f"v_mul_f32 v{d}, v{t}, v{t+2}")
        A(f"v_mul_f32 v{d+1}, v{t}, v{t+3}")

    C = 36
    g = {i: 38 + 2 * (i - 1) for i in range(1, 9)}
    G128, G256, G512, G1024 = 54, 56, 58, 60
    T = [62, 64, 66, 68, 70, 72, 74, 76]
    PK = list(range(78, 86))
    BF, AF = 86, 102
    h = {1: g[8]}
    for i in range(2, 9):
        h[i] = AF + 2 * (i - 2)
    AF2 = 62
    direct(62, 1)
    direct(66, 8)
    direct(70, 128)
    direct2(62)
    direct2(66)
    direct2(70)
    A(f"v_mul_f32 v{C}, s9, v12")
    A(f"v_mul_f32 v{C+1}, s9, v13")
    A("v_ldexp_f32 v6, v33, s10")
    A("s_lshl_b32 s11, s37, 2")
    A(f"s_add_u32 s11, s11, {KA_SC}")
    A("v_mov_b32 v7, s11")
    A("ds_write_b32 v7, v6")
    direct_fin(g[1], 62)
    direct_fin(g[8], 66)
    direct_fin(G128, 70)
    stamp(A, 3)

    def wr(rows_src, buf, neg):
        regs = []
        for k, (row, src) in enumerate(rows_src):
            p = PK[k % 8]
            if src is None:
                A(f"v_mov_b32 v{p}, 0x00003c00")
            else:
                A(f"v_cvt_pk_f16_f32 v{p}, v{src}, {'-' if neg else ''}v{src+1}")
            regs.append(p)
        k = 0
        n = 0
        while k < len(rows_src):
            r0 = rows_src[k][0]
            if k + 1 < len(rows_src) and rows_src[k + 1][0] // 4 == r0 // 4:
                r1 = rows_src[k + 1][0]
                A(f"ds_write2_b32 v{AW + 4*buf + r0//4}, v{regs[k]}, v{regs[k+1]} offset0:{(r0%4)*72} offset1:{(r1%4)*72}")
                k += 2
            else:
                A(f"ds_write_b32 v{AW + 4*buf + r0//4}, v{regs[k]} offset:{(r0%4)*K1_ROWB}")
                k += 1
            n += 1
        return n

    def frags(dst, buf):
        for j in range(4):
            A(f"ds_read_b128 {vr(dst+4*j,4)}, v32 offset:{buf*K1_BUF + 64*j}")

    def mfmas(acc, a, b):
        for j in range(4):
            A(f"v_mfma_f32_16x16x32_f16 {vr(acc,4)}, {vr(a+4*j,4)}, {vr(b+4*j,4)}, {vr(acc,4)}")

    cmul_batch(A, [(g[2], g[1], g[1]), (h[2], h[1], h[1]), (G256, G128, G128)])
    cmul_batch(A, [(g[3], g[2], g[1]), (g[4], g[2], g[2]), (h[3], h[2], h[1]), (h[4], h[2], h[2]), (G512, G256, G256)])
    cmul_batch(A, [(g[5], g[4], g[1]), (g[6], g[4], g[2]), (g[7], g[4], g[3]), (h[5], h[4], h[1]), (h[6], h[4], h[2]),
                   (h[7], h[4], h[3]), (h[8], h[4], h[4]), (G1024, G512, G512)])
    for i in range(4):
        A(f"v_mov_b32 v{20+i}, 0")
        A(f"v_mov_b32 v{24+i}, 0")
        A(f"v_mov_b32 v{4+i}, 0")
    wr([(0, None)] + [(i, h[i]) for i in range(1, 8)], 0, False)
    cmul_batch(A, [(T[i - 1], h[8], h[i]) for i in range(1, 8)])
    wr([(8, h[8])] + [(8 + i, T[i - 1]) for i in range(1, 8)], 0, False)
    frags(BF, 0)
    stamp(A, 4)
    c128 = T[7]
    cmul_batch(A, [(T[i - 1], C, g[i]) for i in range(1, 8)] + [(c128, C, G128)])
    wr([(0, C)] + [(i, T[i - 1]) for i in range(1, 8)], 1, True)
    cmul_batch(A, [(T[i - 1], c128, g[i]) for i in range(1, 8)])
    wr([(8, c128)] + [(8 + i, T[i - 1]) for i in range(1, 8)], 1, True)
    frags(AF, 1)
    cmul_batch(A, [(T[0], C, G512), (T[4], C, G1024)])
    cmul_batch(A, [(T[1], T[0], G128), (T[2], T[0], G256), (T[5], T[4], G256), (T[6], T[4], G512)])
    cmul_batch(A, [(T[3], T[2], G128), (T[7], T[6], G256)])
    n1 = wr([(i, T[i]) for i in range(4)] + [(8 + i, T[4 + i]) for i in range(4)], 0, True)
    c2048 = g[1]
    cmul_batch(A, [(c2048, T[4], G1024)])
    D4 = [g[3], g[5], g[7], g[8]]
    cmul_batch(A, [(D4[i], T[i], g[4]) for i in range(4)])
    A("s_waitcnt lgkmcnt(%d)" % n1)
    mfmas(20, AF, BF)
    cmul_batch(A, [(T[i], T[4 + i], G128) for i in range(4)])
    wr([(4 + i, D4[i]) for i in range(4)] + [(12 + i, T[i]) for i in range(4)], 0, True)
    frags(AF, 0)
    stamp(A, 5)
    cmul_batch(A, [(T[0], C, G256)])
    cmul_batch(A, [(T[4], T[0], G128), (T[1], T[0], g[2]), (T[2], T[0], g[4]), (T[3], T[0], g[6])])
    cmul_batch(A, [(T[5], T[4], g[2]), (T[6], T[4], g[4]), (T[7], T[4], g[6])])
    n2 = wr([(i, T[i]) for i in range(8)], 1, True)
    n2 += wr([(8, c2048)], 1, True)
    A("s_waitcnt lgkmcnt(%d)" % n2)
    mfmas(24, AF, BF)
    frags(AF2, 1)
    A("s_waitcnt lgkmcnt(0)")
    mfmas(4, AF2, BF)
    A("v_lshlrev_b32 v28, 4, v2")
    A("v_add_u32 v30, s7, v28")
    for t, r in enumerate((20, 24, 4)):
        A(f"ds_write_b128 v30, {vr(r,4)} offset:{1024*t}")
    stamp(A, 6)


def expand_round(A, r, lbl):
    A("v_lshlrev_b32 v28, 4, v2")
    A("v_add_u32 v28, s39, v28")
    A("s_mov_b32 s22, 0x01000100")
    A("s_mov_b32 s23, 0x03020302")
    if r < 2:
        A("v_lshlrev_b32 v26, 1, v2")
        A(f"v_sub_u32 v26, {2*(384+255) - 128*r}, v26")
        A("v_add_u32 v26, s40, v26")
        A("ds_read_u16 v40, v26")
        A("ds_read_u16 v41, v26 offset:2")
        A("v_and_b32 v16, 1, v2")
        A("v_cmp_eq_u32 s[20:21], 1, v16")
        A("s_waitcnt lgkmcnt(0)")
        w = 40
        A(f"v_lshl_or_b32 v{w}, v{w+1}, 16, v{w}")
        A(f"v_perm_b32 v{w+2}, v{w}, v{w}, s23")
        A(f"v_perm_b32 v{w+4}, v{w}, v{w}, s22")
        A(f"v_alignbit_b32 v{w+1}, v{w}, v{w}, 16")
        A(f"v_mov_b32 v{w+5}, v{w+4}")
        A(f"v_mov_b32 v{w+6}, v{w+2}")
        A(f"v_cndmask_b32 v{w+3}, v{w+2}, v{w+1}, s[20:21]")
        A(f"v_cndmask_b32 v{w+7}, v{w+1}, v{w+4}, s[20:21]")
        A(f"ds_write_b64 v28, {vr(w+2,2)} offset:{KA_KE + 1024*r}")
        A(f"ds_write_b64 v28, {vr(w+4,2)} offset:{KA_KE + 1024*r + 8}")
        A(f"ds_write_b64 v28, {vr(w+6,2)} offset:{KA_KO + 1024*r}")
        A(f"ds_write_b64 v28, {vr(w+4,2)} offset:{KA_KO + 1024*r + 8}")
    elif r == 2:
        A("v_lshlrev_b32 v27, 2, v2")
        A(f"v_sub_u32 v27, {512 + 4*127}, v27")
        A("v_add_u32 v27, s40, v27")
        A("ds_read_b32 v56, v27")
        A("ds_read_u16 v57, v27 offset:4")
        A("s_mov_b32 s24, 0x07060100")
        A("s_waitcnt lgkmcnt(0)")
        A("v_perm_b32 v40, v57, v57, s22")
        A("v_perm_b32 v41, v56, v56, s23")
        A("v_alignbit_b32 v42, v56, v56, 16")
        A("v_perm_b32 v43, v56, v56, s22")
        A("v_perm_b32 v44, v56, v57, s24")
        A("v_mov_b32 v45, v41")
        A("v_mov_b32 v46, v43")
        A("v_mov_b32 v47, v43")
        A(f"ds_write_b128 v28, v[40:43] offset:{KA_KE + 2048}")
        A(f"ds_write_b128 v28, v[44:47] offset:{KA_KO + 2048}")
    else:
        for k in range(9):
            A(f"ds_read_u16 v{40+k}, v{30+k}")
        A("v_mov_b32 v12, 0")
        A("v_and_b32 v14, 15, v2")
        A("v_lshlrev_b32 v14, 2, v14")
        A("v_add_u32 v14, s39, v14")
        A(f"ds_write_b32 v14, v12 offset:{KA_KE + 4096}")
        A(f"ds_write_b32 v14, v12 offset:{KA_KO + 4096}")
        A("s_waitcnt lgkmcnt(2)")
        for k in range(4):
            A(f"v_lshl_or_b32 v{52+k}, v{41+2*k}, 16, v{40+2*k}")
        A("v_alignbit_b32 v56, v53, v52, 16")
        A("v_alignbit_b32 v57, v54, v53, 16")
        A("v_alignbit_b32 v58, v55, v54, 16")
        A("v_alignbit_b32 v59, v48, v55, 16")
        A(f"ds_write_b128 v28, v[52:55] offset:{KA_KE + 3072}")
        A(f"ds_write_b128 v28, v[56:59] offset:{KA_KO + 3072}")
        A("v_mov_b32 v14, s39")
        A(f"ds_write_b16 v14, v12 offset:{KA_KO + 2*2047}")


def ka(A):
    A("s_cmp_ge_u32 s2, 256")
    A("s_cbranch_scc1 KA_END")
    k_begin(A)
    A("s_load_dwordx16 s[16:31], s[0:1], 0")
    A("s_load_dwordx4 s[44:47], s[0:1], 104")
    A("v_lshrrev_b32 v1, 6, v0")
    A("v_readfirstlane_b32 s3, v1")
    A("v_and_b32 v2, 63, v0")
    A("v_mov_b32 v3, 0")
    A("v_lshlrev_b32 v4, 2, v2")
    A(f"v_add_u32 v4, {KA_CNT}, v4")
    A("s_cmp_lg_u32 s3, 0")
    A("s_cbranch_scc1 KA_NOZ")
    A("s_mov_b64 exec, 0xffffffff")
    A("ds_write_b32 v4, v3")
    A("s_mov_b64 exec, -1")
    A.label("KA_NOZ")
    A(f"s_sub_u32 s4, s2, {NPROD}")
    pair_swizzle(A, 35, 4, 6)
    A("s_sub_u32 s4, s3, 4")
    A("s_mul_i32 s37, s4, 11")
    A("s_lshr_b32 s37, s37, 5")
    A("s_mul_i32 s36, s37, 3")
    A("s_sub_u32 s36, s4, s36")
    A("s_lshl_b32 s34, s35, 2")
    A("s_add_u32 s34, s34, s37")
    A(f"s_mul_i32 s7, s4, {KG_SZ}")
    A("s_mul_i32 s4, s34, 384")
    A("s_lshr_b32 s5, s34, 1")
    A("s_lshl_b32 s5, s5, 2")
    A("s_lshl_b32 s8, s36, 7")
    A("s_add_u32 s8, s8, s4")
    A("v_lshlrev_b32 v3, 1, v2")
    A("v_add_u32 v1, s8, v3")
    A("v_add_u32 v3, s4, v3")
    A("s_waitcnt lgkmcnt(0)")
    A("s_mov_b32 s32, s46")
    A("s_mov_b32 s33, s47")
    A("s_cmp_lt_u32 s3, 4")
    A("s_cbranch_scc1 KA_B0")
    A(f"s_cmp_lt_u32 s2, {NPROD}")
    A("s_cbranch_scc1 KA_B0")
    A("s_load_dword s6, s[26:27], s5")
    A("global_load_ushort v10, v1, s[18:19]")
    A("global_load_ushort v11, v1, s[20:21]")
    A("global_load_ushort v12, v1, s[22:23]")
    A("global_load_ushort v13, v1, s[24:25]")
    for i in range(3):
        A(f"global_load_ushort v{14+i}, v3, s[22:23] offset:{128*i}")
        A(f"global_load_ushort v{17+i}, v3, s[24:25] offset:{128*i}")
    A.label("KA_B0")
    A("s_barrier")
    A("s_cmp_lt_u32 s3, 4")
    A("s_cbranch_scc1 KA_LN1")
    A.label("KA_NOTAG")
    A(f"s_cmp_lt_u32 s2, {NPROD}")
    A("s_cbranch_scc1 KA_WT0")
    kgen_wave(A)
    arrive_s(A, 4, 37)
    wait_s(A, 4, 37, 3, "KA_W4")
    stamp(A, 7)
    A(f"s_mul_i32 s11, s37, {3*KG_SZ}")
    A("s_lshl_b32 s12, s36, 10")
    A("s_add_u32 s11, s11, s12")
    A("v_add_u32 v28, s11, v28")
    for w in range(3):
        A(f"ds_read_b128 {vr(40+4*w,4)}, v28 offset:{KG_SZ*w}")
    A("s_waitcnt lgkmcnt(0)")
    for i in range(4):
        A(f"v_add_f32 v{40+i}, v{40+i}, v{44+i}")
    for i in range(4):
        A(f"v_add_f32 v{40+i}, v{40+i}, v{48+i}")
    A("v_cvt_pk_f16_f32 v40, v40, v41")
    A("v_cvt_pk_f16_f32 v41, v42, v43")
    A("s_cmp_eq_u32 s36, 1")
    A("s_cbranch_scc1 KA_S1")
    A("ds_write_b64 v29, v[40:41]")
    A("s_branch KA_S2")
    A.label("KA_S1")
    A("ds_write_b16 v29, v40")
    A("ds_write_b16_d16_hi v29, v40 offset:64")
    A("ds_write_b16 v29, v41 offset:128")
    A("ds_write_b16_d16_hi v29, v41 offset:192")
    A.label("KA_S2")
    arrive_s(A, 8, 37)
    wait_s(A, 8, 37, 3, "KA_W5")
    A(f"s_mul_i32 s39, s37, {KEO_ST}")
    A(f"s_add_u32 s39, s39, {KEO_BASE}")
    A(f"s_mul_i32 s40, s37, {T_ST}")
    A(f"s_add_u32 s40, s40, {KA_T}")
    A("s_cmp_eq_u32 s36, 0")
    A("s_cbranch_scc1 KA_R0")
    A("s_cmp_eq_u32 s36, 1")
    A("s_cbranch_scc1 KA_R1")
    expand_round(A, 2, "R2")
    A("s_branch KA_RX")
    A.label("KA_R0")
    expand_round(A, 0, "R0")
    A("s_branch KA_RX")
    A.label("KA_R1")
    expand_round(A, 1, "R1")
    A.label("KA_RX")
    arrive_s(A, 12, 37)
    k_end(A, 0)

    A.label("KA_CONV")
    A("s_lshl_b32 s4, s35, 2")
    A("s_add_u32 s4, s4, s3")
    A("s_lshr_b32 s14, s4, 1")
    A("s_lshl_b32 s14, s14, 2")
    A(f"s_mul_i32 s39, s3, {KEO_ST}")
    A(f"s_mul_i32 s40, s3, {T_ST}")
    A(f"s_add_u32 s40, s40, {KA_T}")
    A(f"s_mul_i32 s41, s3, {U_ST}")
    A(f"s_add_u32 s41, s41, {KA_U}")
    A("v_and_b32 v6, 15, v2")
    A("v_lshrrev_b32 v7, 4, v2")
    A("v_lshrrev_b32 v8, 1, v7")
    A("v_and_b32 v9, 1, v7")
    A("v_mov_b32 v12, 0")
    A("v_mov_b32 v13, 0")
    A("v_lshlrev_b32 v14, 3, v2")
    A("v_add_u32 v14, s41, v14")
    A("ds_write_b64 v14, v[12:13]")
    A("v_sub_u32 v14, 2047, v6")
    A("v_lshlrev_b32 v15, 4, v8")
    A("v_sub_u32 v14, v14, v15")
    A("v_lshlrev_b32 v15, 3, v9")
    A("v_add_u32 v14, v14, v15")
    A("v_lshlrev_b32 v14, 1, v14")
    A(f"v_add_u32 v15, {KA_KO - 2}, v14")
    A("v_and_b32 v16, 1, v6")
    A("v_cmp_eq_u32 vcc, 1, v16")
    A("v_cndmask_b32 v14, v15, v14, vcc")
    A("v_add_u32 v14, s39, v14")
    AB = [20, 21, 22, 23]
    for p in range(4):
        A(f"v_subrev_u32 v{AB[p]}, {512*(2*p+1) + 448}, v14")
    A("v_lshlrev_b32 v15, 5, v6")
    A("v_lshlrev_b32 v16, 5, v8")
    A("v_sub_u32 v15, v15, v16")
    A("v_lshlrev_b32 v16, 4, v9")
    A("v_add_u32 v15, v15, v16")
    A(f"v_add_u32 v15, {512 - 448}, v15")
    BB = 24
    A(f"v_add_u32 v{BB}, s41, v15")
    A("v_lshlrev_b32 v15, 5, v6")
    A("v_lshlrev_b32 v16, 3, v7")
    A("v_add_u32 v25, v15, v16")
    A("v_lshlrev_b32 v3, 3, v2")
    A("v_sub_u32 v3, 511, v3")
    for k in range(9):
        A(f"v_subrev_u32 v{30+k}, {k}, v3")
    A("v_max_i32 v38, 0, v38")
    for k in range(9):
        A(f"v_cvt_f32_i32 v{40+k}, v{30+k}")
    for k in range(0, 8, 2):
        A(f"v_cvt_pk_bf16_f32 v{50+k}, v{40+k}, v{41+k}")
        A(f"v_lshrrev_b32 v{51+k}, 16, v{50+k}")
        A(f"v_and_b32 v{50+k}, 0xffff, v{50+k}")
    A("v_cvt_pk_bf16_f32 v58, v48, v48")
    A("v_and_b32 v58, 0xffff, v58")
    for k in range(9):
        A(f"v_subrev_u32 v{50+k}, 17024, v{50+k}")
        A(f"v_min_i32 v{30+k}, 127, v{30+k}")
        A(f"v_max_i32 v{50+k}, v{50+k}, v{30+k}")
        A(f"v_lshlrev_b32 v{30+k}, 1, v{50+k}")
        A(f"v_add_u32 v{30+k}, s40, v{30+k}")
    A("v_lshrrev_b32 v5, 3, v2")
    A("v_mul_u32_u24 v5, 20480, v5")
    A("v_and_b32 v4, 7, v2")
    A("v_lshl_add_u32 v5, v4, 4, v5")
    A("s_lshl_b32 s7, s35, 7")
    A("s_mul_i32 s8, s3, 655360")
    A("s_add_u32 s7, s7, s8")
    A(f"s_add_u32 s7, s7, {WS_UT}")
    A("v_add_u32 v5, s7, v5")
    A("v_and_b32 v4, 3, v2")
    A(f"v_mul_u32_u24 v4, {U_ST}, v4")
    A("v_lshrrev_b32 v3, 3, v2")
    A("v_lshl_add_u32 v4, v3, 5, v4")
    A("v_bfe_u32 v3, v2, 2, 1")
    A("v_lshl_add_u32 v4, v3, 4, v4")
    A("s_lshl_b32 s8, s3, 10")
    A(f"s_add_u32 s8, s8, {KA_U + 512}")
    A("v_add_u32 v4, s8, v4")
    A("s_load_dword s11, s[28:29], s14")
    stamp(A, 1)
    A("s_cmp_lg_u32 s3, 3")
    A("s_cbranch_scc1 KA_GOT")
    wait_count(A, 3, 4, "KA_OWN", sleep=4)
    poll_flags(A, "KA_POLL")
    A(f"s_cmp_lg_u32 s2, {NPROD}")
    A("s_cbranch_scc1 KA_GOT")
    A(f"v_mov_b32 v3, {WS_EPOCH}")
    A("v_mov_b32 v10, s15")
    A("s_mov_b64 exec, 1")
    A(f"global_store_dword v3, v10, s[32:33] {SC}")
    A("s_mov_b64 exec, -1")
    A.label("KA_GOT")
    AF, BF, ACC = 32, 64, 96
    for i in range(32):
        A(f"v_mov_b32 v{ACC+i}, 0")
    A("s_bitcmp1_b32 s4, 0")
    group_sync(A, 2, 4, "KA_GS2")
    stamp(A, 2)
    for j in range(4):
        A(f"global_load_dwordx4 {vr(64+4*j,4)}, v5, s[32:33] {SC}")
        if j < 3:
            A("v_add_u32 v5, 163840, v5")
    A("s_bitcmp1_b32 s4, 0")
    A("s_cbranch_scc1 KA_ODD2")
    A("s_lshl_b32 s11, s11, 16")
    A.label("KA_ODD2")
    A("s_and_b32 s11, s11, 0xffff0000")
    for j in range(4):
        A(f"s_waitcnt vmcnt({3-j})")
        A(f"ds_write_b128 v4, {vr(64+4*j,4)} offset:{256*j}")
    arrive(A, 17)
    stamp(A, 3)
    wait_s(A, 8, 3, 3, "KA_W5C")
    expand_round(A, 3, "R3")
    A("s_lshl_b32 s12, s3, 2")
    A(f"s_add_u32 s12, s12, {KA_SC}")
    A("v_mov_b32 v3, s12")
    A("ds_read_b32 v10, v3")
    wait_s(A, 12, 3, 3, "KA_W6")
    wait_count(A, 17, 4, "KA_W7", sleep=0)
    stamp(A, 5)

    def loadA(q, i0):
        p = q // 2
        o = (128 if q % 2 == 0 else 0) + 16 * (7 - i0)
        return [f"ds_read2_b32 {vr(AF+4*q,2)}, v{AB[p]} offset0:{o} offset1:{o+1}",
                f"ds_read2_b32 {vr(AF+4*q+2,2)}, v{AB[p]} offset0:{o+2} offset1:{o+3}"]

    def loadB(tau, i0):
        return [f"ds_read_b128 {vr(BF+4*tau,4)}, v{BB} offset:{512*tau + 64*(7-i0)}"]

    queue = []
    for q in range(8):
        A(loadB(7 - q, 0)[0])
        queue.append(("B", 7 - q))
        if q == 0:
            for s in loadA(0, 0):
                A(s)
            queue += [("A", 0), ("A", 0)]
    for q in range(1, 8):
        for s in loadA(q, 0):
            A(s)
        queue += [("A", q), ("A", q)]
    pending = []

    def wait_for(tags):
        while any(tg in tags for _, tg in pending):
            s_, tg = pending.pop(0)
            A(s_)
            queue.append(tg)
        last = -1
        for i, t in enumerate(queue):
            if t in tags:
                last = i
        if last >= 0:
            n = len(queue) - 1 - last
            A(f"s_waitcnt lgkmcnt({min(n, 15)})")
            del queue[:last + 1]

    for i0 in range(8):
        for q in range(8):
            for tau in range(7 - q, -1, -1):
                wait_for({("A", q), ("B", tau)})
                t = q + tau
                A(f"v_mfma_f32_16x16x32_f16 {vr(ACC+4*t,4)}, {vr(AF+4*q,4)}, {vr(BF+4*tau,4)}, {vr(ACC+4*t,4)}")
                if i0 < 7:
                    if tau == 7 - q:
                        pending.insert(0, (loadB(7 - q, i0 + 1)[0], ("B", 7 - q)))
                    if tau == 0:
                        for s in loadA(q, i0 + 1):
                            pending.append((s, ("A", q)))
                if pending:
                    s, tag = pending.pop(0)
                    A(s)
                    queue.append(tag)
    stamp(A, 6)
    A("v_add_u32 v26, s41, v25")
    A("v_add_u32 v27, s39, v25")
    for t in range(8):
        A(f"ds_read_b64 {vr(32+2*t,2)}, v26 offset:{512 + 512*t}")
    A(f"v_mov_b32 v28, {ONE_LO}")
    A(f"v_mov_b32 v29, {ONE_HI}")
    A("v_mov_b32 v11, v10")
    A("s_waitcnt lgkmcnt(0)")
    for t in range(8):
        a = ACC + 4 * t
        u = 32 + 2 * t
        tm = 48 + 8 * (t & 1)
        A(f"v_pk_mul_f32 {vr(a,2)}, {vr(a,2)}, v[10:11]")
        A(f"v_pk_mul_f32 {vr(a+2,2)}, {vr(a+2,2)}, v[10:11]")
        A(f"v_fma_mix_f32 v{tm}, v{u}, s11, 0 op_sel:[0,0,0] op_sel_hi:[1,0,0]")
        A(f"v_fma_mix_f32 v{tm+1}, v{u}, s11, 0 op_sel:[1,0,0] op_sel_hi:[1,0,0]")
        A(f"v_fma_mix_f32 v{tm+2}, v{u+1}, s11, 0 op_sel:[0,0,0] op_sel_hi:[1,0,0]")
        A(f"v_fma_mix_f32 v{tm+3}, v{u+1}, s11, 0 op_sel:[1,0,0] op_sel_hi:[1,0,0]")
        A(f"v_cvt_pk_bf16_f32 v{a}, v{a}, v{a+1}")
        A(f"v_cvt_pk_bf16_f32 v{a+1}, v{a+2}, v{a+3}")
        A(f"v_cvt_pk_bf16_f32 v{tm+4}, v{tm}, v{tm+1}")
        A(f"v_cvt_pk_bf16_f32 v{tm+5}, v{tm+2}, v{tm+3}")
        A(f"v_lshlrev_b32 v{tm}, 16, v{tm+4}")
        A(f"v_and_b32 v{tm+1}, 0xffff0000, v{tm+4}")
        A(f"v_lshlrev_b32 v{tm+2}, 16, v{tm+5}")
        A(f"v_and_b32 v{tm+3}, 0xffff0000, v{tm+5}")
        A(f"v_dot2_f32_bf16 v{tm}, v{a}, v28, v{tm}")
        A(f"v_dot2_f32_bf16 v{tm+1}, v{a}, v29, v{tm+1}")
        A(f"v_dot2_f32_bf16 v{tm+2}, v{a+1}, v28, v{tm+2}")
        A(f"v_dot2_f32_bf16 v{tm+3}, v{a+1}, v29, v{tm+3}")
        A(f"v_cvt_pk_bf16_f32 v{a+2}, v{tm}, v{tm+1}")
        A(f"v_cvt_pk_bf16_f32 v{a+3}, v{tm+2}, v{tm+3}")
        A(f"ds_write_b64 v27, {vr(a+2,2)} offset:{KA_KE + 512*t}")
    stamp(A, 7)
    A("v_lshrrev_b32 v14, 2, v6")
    A(f"v_mul_u32_u24 v14, {KEO_ST}, v14")
    A("v_and_b32 v15, 3, v2")
    A("v_lshlrev_b32 v15, 3, v15")
    A("v_add_u32 v14, v14, v15")
    A("v_lshlrev_b32 v15, 5, v7")
    A("v_add_u32 v14, v14, v15")
    A("s_lshl_b32 s12, s3, 10")
    A("v_add_u32 v14, s12, v14")
    A("v_lshrrev_b32 v15, 3, v6")
    A("v_lshlrev_b32 v16, 1, v7")
    A("v_add_u32 v15, v15, v16")
    A("v_mul_u32_u24 v15, 10240, v15")
    A("v_and_b32 v16, 7, v6")
    A("v_lshlrev_b32 v16, 4, v16")
    A("v_add_u32 v15, v15, v16")
    A("s_mul_i32 s12, s3, 655360")
    A("s_lshr_b32 s13, s35, 1")
    A("s_lshl_b32 s13, s13, 7")
    A("s_add_u32 s12, s12, s13")
    A("s_and_b32 s13, s35, 1")
    A("s_lshl_b32 s13, s13, 3")
    A("s_add_u32 s12, s12, s13")
    A(f"s_add_u32 s12, s12, {WS_AT}")
    A("v_add_u32 v15, s12, v15")
    A("s_waitcnt lgkmcnt(0)")
    A("s_barrier")
    for k in range(8):
        A(f"ds_read_b64_tr_b16 {vr(40+2*k,2)}, v14 offset:{KA_KE + 128*k}")
    for k in range(8):
        A(f"s_waitcnt lgkmcnt({7-k})")
        A(f"global_store_dwordx2 v15, {vr(40+2*k,2)}, s[32:33]")
        if k < 7:
            A("v_add_u32 v15, 81920, v15")
    k_end(A, 0)

    A.label("KA_LN1")
    A("s_setprio 3")
    A(f"s_mov_b32 s14, {WS_EPOCH}")
    A("s_load_dword s15, s[32:33], s14")
    A("v_lshrrev_b32 v7, 5, v0")
    A("v_and_b32 v4, 31, v0")
    A("s_mul_i32 s5, s2, 10240")
    A("v_lshlrev_b32 v5, 4, v4")
    A("v_mul_u32_u24 v6, 1280, v7")
    A("v_add_u32 v6, v6, v5")
    A("v_add_u32 v8, s5, v6")
    XR, T = 24, 40
    for i in range(4):
        A(f"v_mov_b32 v{XR+8+i}, 0")
    A("v_cmp_gt_u32 s[24:25], 16, v4")
    A(f"global_load_dwordx4 {vr(XR,4)}, v8, s[16:17]")
    A(f"global_load_dwordx4 {vr(XR+4,4)}, v8, s[16:17] offset:512")
    A("s_mov_b64 exec, s[24:25]")
    A(f"global_load_dwordx4 {vr(XR+8,4)}, v8, s[16:17] offset:1024")
    A("s_mov_b64 exec, -1")
    A(f"v_mov_b32 v12, {ONE_LO}")
    A(f"v_mov_b32 v13, {ONE_HI}")
    A("v_mov_b32 v14, 0x3f803f80")
    for r in (10, 11, 16, 17):
        A(f"v_mov_b32 v{r}, 0")
    A("v_bfe_u32 v9, v0, 5, 1")
    A("v_lshlrev_b32 v9, 1, v9")
    A("v_and_b32 v15, 6, v4")
    A("v_xor_b32 v9, v9, v15")
    A("v_lshlrev_b32 v9, 4, v9")
    A("v_lshl_add_u32 v9, v4, 7, v9")
    A("s_lshl_b32 s6, s3, 2")
    A(f"s_add_u32 s6, s6, {KA_STAGE}")
    A("v_add_u32 v9, s6, v9")
    A("v_xor_b32 v20, 64, v9".replace("v_xor_b32 v20, 64, v9", "v_subrev_u32 v20, s6, v9"))
    A("v_xor_b32 v20, 64, v20")
    A("v_add_u32 v20, s6, v20")
    A("v_lshrrev_b32 v21, 3, v0")
    A("v_and_b32 v21, 6, v21")
    A("v_xor_b32 v21, v21, v0")
    A("v_lshlrev_b32 v21, 4, v21")
    A(f"v_add_u32 v21, {KA_STAGE}, v21")
    A("v_lshrrev_b32 v22, 2, v0")
    A("v_lshlrev_b32 v22, 7, v22")
    A("v_and_b32 v23, 3, v0")
    A("v_lshl_add_u32 v22, v23, 4, v22")
    A("s_lshr_b32 s7, s2, 1")
    A("s_mul_i32 s7, s7, 20480")
    A("s_and_b32 s8, s2, 1")
    A("s_lshl_b32 s8, s8, 6")
    A("s_add_u32 s7, s7, s8")
    A(f"s_add_u32 s7, s7, {WS_UT}")
    A("v_add_u32 v22, s7, v22")
    A("s_waitcnt vmcnt(0)")
    stamp(A, 8)
    N = 12
    for i in range(0, N, 2):
        A(f"v_dot2c_f32_bf16 v10, v{XR+i}, v14")
        A(f"v_dot2c_f32_bf16 v11, v{XR+i}, v{XR+i}")
        A(f"v_dot2c_f32_bf16 v16, v{XR+i+1}, v14")
        A(f"v_dot2c_f32_bf16 v17, v{XR+i+1}, v{XR+i+1}")
    A("s_nop 2")
    A("v_add_f32 v10, v10, v16")
    A("v_add_f32 v11, v11, v17")
    for sh in (8, 4, 2, 1):
        A(f"v_add_f32_dpp v10, v10, v10 row_ror:{sh} row_mask:0xf bank_mask:0xf")
        A(f"v_add_f32_dpp v11, v11, v11 row_ror:{sh} row_mask:0xf bank_mask:0xf")
    A("v_mov_b32 v16, v10")
    A("v_mov_b32 v17, v11")
    A("v_permlane16_swap_b32 v10, v16")
    A("v_permlane16_swap_b32 v11, v17")
    A("v_add_f32 v10, v10, v16")
    A("v_add_f32 v11, v11, v17")
    ln_finish(A, 10, 11, 15)
    A("v_sub_f32 v10, 0, v10")
    A("v_mov_b32 v16, v11")
    A("v_mov_b32 v17, v11")
    for i in range(N):
        A(f"v_dot2_f32_bf16 v{T+2*i}, v{XR+i}, v12, v10")
        A(f"v_dot2_f32_bf16 v{T+2*i+1}, v{XR+i}, v13, v10")
    for i in range(N):
        A(f"v_cvt_pk_bf16_f32 v{XR+i}, v{T+2*i}, v{T+2*i+1}")
    for i in range(N):
        A(f"v_lshlrev_b32 v{T+2*i}, 16, v{XR+i}")
        A(f"v_and_b32 v{T+2*i+1}, 0xffff0000, v{XR+i}")
    for i in range(N):
        A(f"v_pk_mul_f32 {vr(T+2*i,2)}, {vr(T+2*i,2)}, v[16:17]")
    for i in range(N):
        A(f"v_cvt_pk_bf16_f32 v{XR+i}, v{T+2*i}, v{T+2*i+1}")
    for i in range(N):
        A(f"v_lshlrev_b32 v{T+2*i}, 16, v{XR+i}")
        A(f"v_and_b32 v{T+2*i+1}, 0xffff0000, v{XR+i}")
    P = 64
    for i in range(N):
        A(f"v_cvt_pk_f16_f32 v{P+i}, v{T+2*i}, v{T+2*i+1}")
    for i in range(0, N, 2):
        A(f"v_permlane32_swap_b32 v{P+i}, v{P+i+1}")
    A("s_mov_b32 s22, 0x05040100")
    A("s_mov_b32 s23, 0x07060302")
    for i in range(0, N, 2):
        A(f"v_perm_b32 v{T+i}, v{P+i+1}, v{P+i}, s22")
        A(f"v_perm_b32 v{T+i+1}, v{P+i+1}, v{P+i}, s23")
    for sl in range(3):
        if sl == 2:
            A("s_mov_b64 exec, s[24:25]")
        for k in range(2):
            i = 4 * sl + 2 * k
            A(f"v_add_u32 v23, {4096*sl}, v{9 if k == 0 else 20}")
            A(f"ds_write2_b32 v23, v{T+i}, v{T+i+1} offset0:0 offset1:4")
    A("s_mov_b64 exec, -1")
    group_sync(A, 1, 4, "KA_GS1")
    for j in range(3):
        A(f"ds_read_b128 {vr(24+4*j,4)}, v21 offset:{4096*j}")
    A("s_waitcnt lgkmcnt(0)")
    A(f"global_store_dwordx4 v22, {vr(24,4)}, s[32:33] {SC}")
    A("v_add_u32 v22, 8192, v22")
    A(f"global_store_dwordx4 v22, {vr(28,4)}, s[32:33] {SC}")
    A("s_cmp_ge_u32 s3, 2")
    A("s_cbranch_scc1 KA_P3")
    A("v_add_u32 v22, 8192, v22")
    A(f"global_store_dwordx4 v22, {vr(32,4)}, s[32:33] {SC}")
    A.label("KA_P3")
    A("s_mul_i32 s15, s15, 0x9E3779B1")
    A("s_add_u32 s15, s15, 0x632BE5AB")
    A("s_waitcnt vmcnt(0)")
    group_sync(A, 3, 4, "KA_GS3")
    stamp(A, 9)
    A("s_setprio 0")
    A("s_cmp_lg_u32 s3, 0")
    A("s_cbranch_scc1 KA_LNX")
    A(f"s_lshr_b32 s5, s2, {0 if FLAG64 == 2 else 2 if FLAG64 else 4}")
    A("s_lshl_b32 s5, s5, 7")
    A(f"s_and_b32 s6, s2, {0 if FLAG64 == 2 else 3 if FLAG64 else 15}")
    A("s_lshl_b32 s6, s6, 2")
    A("s_add_u32 s5, s5, s6")
    A(f"s_add_u32 s5, s5, {WS_FLAG}")
    A("v_mov_b32 v3, s5")
    A("v_mov_b32 v4, s15")
    A("s_mov_b64 exec, 1")
    A(f"global_store_dword v3, v4, s[32:33] {FMOD}")
    A("s_mov_b64 exec, -1")
    A.label("KA_LNX")
    A(f"s_cmp_ge_u32 s2, {NPROD}")
    A("s_cbranch_scc1 KA_CONV")
    A("s_cmp_eq_u32 s3, 3")
    A("s_cbranch_scc1 KA_WTPOLL")
    k_end(A, 0)
    A.label("KA_WTPOLL")
    wait_count(A, 3, 4, "KA_OWN2", sleep=4)
    if not os.environ.get("WT_EARLY"):
        poll_epoch(A, "KA_POLL2")
    arrive(A, 16)
    k_end(A, 0)
    A.label("KA_WT0")
    A("s_cmp_ge_u32 s3, 8")
    A("s_cbranch_scc1 KA_PRE" if PREFILL[0] else "s_cbranch_scc1 KA_WTX")
    wait_count(A, 16, 1, "KA_WTW", sleep=8)
    wt_role(A, "KA", 0, -2, 8192, 0, 960, 0, os.environ.get("WT_MOD", ""), 384)
    if PREFILL[0]:
        A.label("KA_PRE")
        A("s_cmp_lg_u32 s3, 8")
        A("s_cbranch_scc1 KA_WTX")
        nk = 256 * KEY_STRIDE // 1024
        A(f"s_cmp_ge_u32 s2, {nk + 24}")
        A("s_cbranch_scc1 KA_WTX")
        A("s_lshl_b32 s4, s2, 10")
        A(f"s_add_u32 s5, s4, {WS_RK}")
        A(f"s_add_u32 s6, s4, {WS_ACT - 1024 * nk}")
        A(f"s_cmp_lt_u32 s2, {nk}")
        A("s_cselect_b32 s5, s5, s6")
        A("v_lshlrev_b32 v3, 4, v2")
        A("v_add_u32 v3, s5, v3")
        for i in range(4):
            A(f"v_mov_b32 v{4+i}, -1")
        A("global_store_dwordx4 v3, v[4:7], s[32:33]")
    A.label("KA_WTX")
    k_end(A, 0)
    A.label("KA_END")
    A("s_endpgm")


KERNELS4 = [
    ("ka_kernel", ka, 256, 1024, KA_LDS, 128),
    ("k3_kernel", k3, 256, 256, K3_LDS, 96),
    ("k4_kernel", k4, 192 + (80 if PF_WD[0] else 0), 256, K4_LDS, 96),
    ("k5_kernel", k5, 80, 512, K5_LDS, 96),
]

if __name__ == "__main__":
    if len(sys.argv) > 2 and sys.argv[2] == "stamp":
        STAMP[0] = True
    out = build(KERNELS4)
    path = sys.argv[1]
    open(path, "w").write(out)
    print("wrote", path, len(out), "bytes")
```

```python
import sys, os
sys.path.insert(0, os.path.dirname(os.path.abspath(__file__)))
import gen3, gen10
import gen14 as gen8
from gen10 import *
from gen14 import *

KD_LDS = 18432
KD_F1_FIRST = int(os.environ.get("KD_F1_FIRST", "8"))
KD_F2_FIRST = int(os.environ.get("KD_F2_FIRST", "64"))
KD_KSLEEP = int(os.environ.get("KD_KSLEEP", "6"))
NROW = 256


def sel_part1(A, lbl, first_sleep):
    A(f"v_lshlrev_b32 v4, {KEY_STRIDE.bit_length() - 1}, v0")
    A(f"v_add_u32 v4, {WS_RK}, v4")
    A("s_mov_b32 s12, 0")
    A("v_mov_b32 v21, -1")
    if first_sleep:
        A(f"s_sleep {first_sleep}")
    A.label(lbl)
    A(f"global_load_dwordx4 v[8:11], v4, s[32:33] {SC}")
    A(f"global_load_dwordx4 v[12:15], v4, s[32:33] offset:16 {SC}")
    A("s_waitcnt vmcnt(0)")
    A("v_max3_u32 v16, v8, v9, v10")
    A("v_max3_u32 v17, v11, v12, v13")
    A("v_max3_u32 v16, v16, v14, v15")
    A("v_max_u32 v16, v16, v17")
    A("v_cmp_eq_u32 vcc, v21, v16")
    A("s_cmp_eq_u64 vcc, 0")
    A(f"s_cbranch_scc1 {lbl}_OK")
    A("s_add_u32 s12, s12, 1")
    A(f"s_cmp_ge_u32 s12, {SPIN_MAX}")
    A(f"s_cbranch_scc1 {lbl}_OK")
    A(f"s_sleep {KD_KSLEEP}")
    A(f"s_branch {lbl}")
    A.label(lbl + "_OK")
    stamp(A, 5)
    net = [(0, 1), (2, 3), (4, 5), (6, 7), (0, 2), (1, 3), (4, 6), (5, 7), (1, 2), (5, 6), (0, 4), (3, 7), (1, 5), (2, 6),
           (1, 4), (3, 6), (2, 4), (3, 5), (3, 4)]
    reg = list(range(8, 16))
    spare = 16
    for a_, b_ in net:
        A(f"v_max_u32 v{spare}, v{reg[a_]}, v{reg[b_]}")
        A(f"v_min_u32 v{reg[b_]}, v{reg[a_]}, v{reg[b_]}")
        reg[a_], spare = spare, reg[a_]
    steps = [("row_shr:1", "0xf"), ("row_shr:2", "0xf"), ("row_shr:4", "0xf"), ("row_shr:8", "0xf"),
             ("row_bcast:15", "0xa"), ("row_bcast:31", "0xc")]
    for r in range(4):
        A(f"v_mov_b32 v17, v{reg[0]}")
        A(f"v_mov_b32 v18, v{reg[1]}")
        for ctl, mask in steps:
            bc = " bound_ctrl:0" if ctl.startswith("row_shr") else ""
            A(f"v_min_u32_dpp v19, v17, v17 {ctl} row_mask:{mask} bank_mask:0xf{bc}")
            A(f"v_max_u32_dpp v17, v17, v17 {ctl} row_mask:{mask} bank_mask:0xf{bc}")
            A(f"v_max_u32_dpp v20, v18, v18 {ctl} row_mask:{mask} bank_mask:0xf{bc}")
            A("v_max_u32 v18, v19, v20")
        A(f"v_readlane_b32 s{40+2*r}, v17, 63")
        A(f"v_readlane_b32 s{41+2*r}, v18, 63")
        if r < 3:
            left = 8 - 2 * r
            for wsel in (40 + 2 * r, 41 + 2 * r):
                A(f"v_cmp_eq_u32 vcc, s{wsel}, v{reg[0]}")
                left -= 1
                for k in range(left):
                    A(f"v_cndmask_b32 v{reg[k]}, v{reg[k]}, v{reg[k+1]}, vcc")
    A("v_mov_b32 v16, s40")
    for r in range(1, 8):
        A(f"v_writelane_b32 v16, s{40+r}, {r}")
    A("s_lshl_b32 s6, s3, 5")
    A("v_lshlrev_b32 v17, 2, v2")
    A("v_add_u32 v17, s6, v17")
    A("v_cmp_gt_u32 vcc, 8, v2")
    A("s_and_saveexec_b64 s[20:21], vcc")
    A("ds_write_b32 v17, v16")
    A("s_mov_b64 exec, s[20:21]")


def sel_part2(A):
    A("v_and_b32 v17, 31, v2")
    A("v_lshlrev_b32 v17, 2, v17")
    A("v_lshrrev_b32 v18, 5, v2")
    A("v_lshlrev_b32 v18, 6, v18")
    A("v_mov_b32 v19, 0")
    A("v_mov_b32 v20, 0")
    A("s_waitcnt lgkmcnt(0)")
    A("s_barrier")
    A("ds_read_b32 v16, v17")
    for i in range(4):
        A(f"ds_read_b128 {vr(60+4*i,4)}, v18 offset:{16*i}")
    A("s_waitcnt lgkmcnt(0)")
    sp = ["s[50:51]", "s[52:53]", "s[54:55]", "s[56:57]"]
    for i in range(0, 16, 4):
        for k in range(4):
            A(f"v_cmp_gt_u32 {sp[k]}, v{60+i+k}, v16")
        for k in range(4):
            A(f"v_addc_co_u32 v{19 + (k & 1)}, vcc, 0, v{19 + (k & 1)}, {sp[k]}")
    A("v_add_u32 v19, v19, v20")
    A("v_mov_b32 v20, v19")
    A("v_permlane32_swap_b32 v19, v20")
    A("v_add_u32 v19, v19, v20")
    A("v_cmp_gt_u32 vcc, 8, v19")
    A("v_cmp_gt_u32 s[22:23], 32, v2")
    A("s_and_b64 vcc, vcc, s[22:23]")
    A("v_lshlrev_b32 v19, 2, v19")
    A("s_lshl_b32 s6, s3, 6")
    A("s_add_u32 s6, s6, 256")
    A("v_add_u32 v19, s6, v19")
    A("s_and_saveexec_b64 s[20:21], vcc")
    A("ds_write_b32 v19, v16")
    A("s_mov_b64 exec, s[20:21]")


def kd(A):
    A("s_cmp_ge_u32 s2, 256")
    A("s_cbranch_scc1 KD_END")
    k_begin(A)
    A("s_load_dwordx2 s[32:33], s[0:1], 112")
    A("s_load_dwordx2 s[26:27], s[0:1], 0")
    A("s_load_dwordx2 s[28:29], s[0:1], 64")
    A("s_load_dwordx2 s[30:31], s[0:1], 96")
    A("v_lshrrev_b32 v1, 6, v0")
    A("v_readfirstlane_b32 s3, v1")
    A("v_and_b32 v2, 63, v0")
    A("s_and_b32 s35, s3, 3")
    A("s_cmp_ge_u32 s2, 192")
    A("s_cselect_b32 s36, 1, 0")
    A("s_sub_u32 s34, s2, 192")
    A("s_cmp_lt_u32 s34, 16")
    A("s_cselect_b32 s38, s36, 0")
    A("s_mov_b32 s37, s2")
    A("s_mul_i32 s7, s37, 20480")
    A("s_mul_i32 s8, s35, 5120")
    A("s_add_u32 s7, s7, s8")
    A(f"s_add_u32 s7, s7, {WS_WGU}")
    A("v_lshlrev_b32 v96, 4, v2")
    A("v_add_u32 v96, s7, v96")
    A("v_add_u32 v97, 4096, v96")
    A("v_lshrrev_b32 v5, 4, v2")
    A("v_and_b32 v4, 7, v2")
    A("v_bfe_u32 v6, v2, 3, 1")
    A("v_lshlrev_b32 v98, 7, v5")
    A("v_lshl_add_u32 v98, v4, 4, v98")
    A("v_lshl_add_u32 v98, v6, 9, v98")
    A("s_mul_i32 s5, s3, 3072")
    A("v_add_u32 v98, s5, v98")
    A(f"v_add_u32 v99, {WS_ACT}, v98")
    A("s_mul_i32 s4, s34, 24576")
    A(f"s_add_u32 s4, s4, {WS_WD}")
    A("v_add_u32 v98, s4, v98")
    A(f"v_add_u32 v97, {64*24576}, v98".replace("v97", "v95"))
    FR, A2, FRB = 100, 112, 124
    A("v_mov_b32 v148, 0")
    A("v_mov_b32 v149, 0")

    def frag_loads(tag):
        A("s_cmp_eq_u32 s36, 1")
        A(f"s_cbranch_scc1 KD_L2_{tag}")
        for i in range(4):
            A(f"global_load_dwordx4 {vr(FR+4*i,4)}, v96, s[32:33] offset:{1024*i}")
        A(f"global_load_dwordx4 {vr(FR+16,4)}, v97, s[32:33]")
        A(f"s_branch KD_LX_{tag}")
        A.label(f"KD_L2_{tag}")
        for i in range(3):
            A(f"global_load_dwordx4 {vr(FR+4*i,4)}, v98, s[32:33] offset:{1024*i}")
        A("s_cmp_eq_u32 s38, 0")
        A(f"s_cbranch_scc1 KD_LX_{tag}")
        for i in range(3):
            A(f"global_load_dwordx4 {vr(FRB+4*i,4)}, v95, s[32:33] offset:{1024*i}")
        A.label(f"KD_LX_{tag}")

    A("s_cmp_lt_u32 s3, 4")
    A("s_cbranch_scc1 KD_ROW")
    A("s_cmp_eq_u32 s36, 0")
    A("s_cbranch_scc1 KD_END")
    A("s_waitcnt lgkmcnt(0)")
    A("s_sleep 32")
    frag_loads("hi")
    A("s_barrier")
    A("s_branch KD_SEL2")
    A.label("KD_ROW")
    A("v_lshrrev_b32 v7, 5, v0")
    A("v_and_b32 v4, 31, v0")
    A("s_mul_i32 s4, s2, 10240")
    A("v_lshlrev_b32 v5, 4, v4")
    A("v_mul_u32_u24 v6, 1280, v7")
    A("v_add_u32 v6, v6, v5")
    A("v_add_u32 v8, s4, v6")
    A("v_lshlrev_b32 v3, 7, v4")
    A("v_lshl_add_u32 v3, v7, 4, v3")
    A(f"s_add_u32 s5, s4, {WS_AT}")
    A("v_add_u32 v3, s5, v3")
    A("v_add_u32 v9, 8192, v3")
    A("v_add_u32 v10, 4096, v3")
    AR, XR, WR = 20, 32, 44
    for i in range(4):
        A(f"v_mov_b32 v{AR+8+i}, 0")
        A(f"v_mov_b32 v{XR+8+i}, 0")
        A(f"v_mov_b32 v{WR+8+i}, 0")
    A("v_cmp_gt_u32 s[24:25], 16, v4")
    A("s_waitcnt lgkmcnt(0)")
    stamp(A, 1)
    A(f"global_load_dwordx4 {vr(AR,4)}, v3, s[32:33]")
    A(f"global_load_dwordx4 {vr(XR,4)}, v8, s[26:27]")
    A(f"global_load_dwordx4 {vr(XR+4,4)}, v8, s[26:27] offset:512")
    A(f"global_load_dwordx4 {vr(AR+4,4)}, v10, s[32:33]")
    A("s_mov_b64 exec, s[24:25]")
    A(f"global_load_dwordx4 {vr(AR+8,4)}, v9, s[32:33]")
    A(f"global_load_dwordx4 {vr(XR+8,4)}, v8, s[26:27] offset:1024")
    A(f"global_load_dwordx4 {vr(WR+8,4)}, v5, s[28:29] offset:1024")
    A("s_mov_b64 exec, -1")
    A(f"global_load_dwordx4 {vr(WR,4)}, v5, s[28:29]")
    A(f"global_load_dwordx4 {vr(WR+4,4)}, v5, s[28:29] offset:512")
    A(f"v_mov_b32 v12, {ONE_LO}")
    A(f"v_mov_b32 v13, {ONE_HI}")
    A("v_mov_b32 v14, 0x3f803f80")
    for r in (10, 11, 16, 17):
        A(f"v_mov_b32 v{r}, 0")
    A(f"v_add_u32 v9, {WS_L2}, v8")
    H, T = 56, 68
    A("s_waitcnt vmcnt(3)")
    stamp(A, 2)
    frag_loads("lo")
    N = 12
    for i in range(N):
        A(f"v_lshlrev_b32 v{T+2*i}, 16, v{AR+i}")
        A(f"v_and_b32 v{T+2*i+1}, 0xffff0000, v{AR+i}")
    for i in range(N):
        A(f"v_dot2_f32_bf16 v{T+2*i}, v{XR+i}, v12, v{T+2*i}")
        A(f"v_dot2_f32_bf16 v{T+2*i+1}, v{XR+i}, v13, v{T+2*i+1}")
    for i in range(N):
        A(f"v_cvt_pk_bf16_f32 v{H+i}, v{T+2*i}, v{T+2*i+1}")
    for i in range(0, N, 2):
        A(f"v_dot2c_f32_bf16 v10, v{H+i}, v14")
        A(f"v_dot2c_f32_bf16 v11, v{H+i}, v{H+i}")
        A(f"v_dot2c_f32_bf16 v16, v{H+i+1}, v14")
        A(f"v_dot2c_f32_bf16 v17, v{H+i+1}, v{H+i+1}")
    A("s_nop 2")
    A("v_add_f32 v10, v10, v16")
    A("v_add_f32 v11, v11, v17")

    def red(regs, tmps):
        for sh in (8, 4, 2, 1):
            for r in regs:
                A(f"v_add_f32_dpp v{r}, v{r}, v{r} row_ror:{sh} row_mask:0xf bank_mask:0xf")
        for r, t in zip(regs, tmps):
            A(f"v_mov_b32 v{t}, v{r}")
        for r, t in zip(regs, tmps):
            A(f"v_permlane16_swap_b32 v{r}, v{t}")
        for r, t in zip(regs, tmps):
            A(f"v_add_f32 v{r}, v{r}, v{t}")
    red([10, 11], [16, 17])
    ln_finish(A, 10, 11, 15)
    A("v_sub_f32 v10, 0, v10")
    L, O = AR, XR
    for i in range(N):
        A(f"v_dot2_f32_bf16 v{T+2*i}, v{H+i}, v12, v10")
        A(f"v_dot2_f32_bf16 v{T+2*i+1}, v{H+i}, v13, v10")
    for i in range(N):
        A(f"v_cvt_pk_bf16_f32 v{L+i}, v{T+2*i}, v{T+2*i+1}")
    for i in range(N):
        A(f"v_lshlrev_b32 v{T+2*i}, 16, v{L+i}")
        A(f"v_and_b32 v{T+2*i+1}, 0xffff0000, v{L+i}")
    A("v_mov_b32 v16, v11")
    A("v_mov_b32 v17, v11")
    for i in range(N):
        A(f"v_pk_mul_f32 {vr(T+2*i,2)}, {vr(T+2*i,2)}, v[16:17]")
    for i in range(N):
        A(f"v_cvt_pk_bf16_f32 v{L+i}, v{T+2*i}, v{T+2*i+1}")
    A(f"global_store_dwordx4 v9, {vr(L,4)}, s[32:33] {SC}")
    A(f"global_store_dwordx4 v9, {vr(L+4,4)}, s[32:33] offset:512 {SC}")
    A("s_mov_b64 exec, s[24:25]")
    A(f"global_store_dwordx4 v9, {vr(L+8,4)}, s[32:33] offset:1024 {SC}")
    A("s_mov_b64 exec, -1")
    A("v_mov_b32 v14, 0")
    A("v_mov_b32 v15, 0")
    for i in range(N):
        A(f"v_lshlrev_b32 v{T+2*i}, 16, v{L+i}")
        A(f"v_and_b32 v{T+2*i+1}, 0xffff0000, v{L+i}")
    for i in range(N):
        A(f"v_dot2_f32_bf16 v{T+2*i}, v{H+i}, v12, v{T+2*i}")
        A(f"v_dot2_f32_bf16 v{T+2*i+1}, v{H+i}, v13, v{T+2*i+1}")
    O = 136
    for i in range(N):
        A(f"v_cvt_pk_bf16_f32 v{O+i}, v{T+2*i}, v{T+2*i+1}")
    A("v_mov_b32 v148, v8")
    stamp(A, 3)
    A("s_waitcnt vmcnt(3)")
    for i in range(0, N, 2):
        A(f"v_dot2c_f32_bf16 v14, v{L+i}, v{WR+i}")
        A(f"v_dot2c_f32_bf16 v15, v{L+i+1}, v{WR+i+1}")
    A("s_nop 2")
    A("v_add_f32 v14, v14, v15")
    red([14], [15])
    A("v_cvt_pk_bf16_f32 v40, v14, v14")
    A("v_and_b32 v40, 0xffff0000, v40")
    A("v_ashrrev_i32 v41, 31, v40")
    A("v_or_b32 v41, 0x80000000, v41")
    A("v_xor_b32 v40, v40, v41")
    A("v_and_b32 v40, 0xffff0000, v40")
    A("s_lshl_b32 s6, s2, 3")
    A("v_add_u32 v42, s6, v7")
    A("v_sub_u32 v43, 2047, v42")
    A("v_or_b32 v40, v40, v43")
    A("v_mov_b32 v149, v40")
    A("v_lshlrev_b32 v42, 2, v7")
    A("v_cmp_eq_u32 vcc, 0, v4")
    A("s_mov_b64 exec, vcc")
    A("ds_write_b32 v42, v40 offset:896")
    A("s_mov_b64 exec, -1")
    A("s_waitcnt vmcnt(0) lgkmcnt(0)")
    A("s_barrier")
    A("s_cmp_lg_u32 s3, 0")
    A("s_cbranch_scc1 KD_KPUB")
    A("v_lshlrev_b32 v42, 2, v2")
    A("ds_read_b32 v40, v42 offset:896")
    A(f"s_lshl_b32 s6, s2, {KEY_STRIDE.bit_length() - 1}")
    A(f"s_add_u32 s6, s6, {WS_RK}")
    A("v_add_u32 v42, s6, v42")
    A("s_waitcnt lgkmcnt(0)")
    A("s_mov_b64 exec, 0xff")
    A(f"global_store_dword v42, v40, s[32:33] {SC}")
    A("s_mov_b64 exec, -1")
    A.label("KD_KPUB")
    stamp(A, 4)
    sel_part1(A, "KD_KP", KD_F1_FIRST)
    A.label("KD_SEL2")
    sel_part2(A)
    A("s_cmp_ge_u32 s3, 4")
    A("s_cbranch_scc1 KD_NOOUT")
    A("v_mov_b32 v17, s6")
    A("ds_read_b32 v16, v17 offset:28")
    A("s_waitcnt lgkmcnt(0)")
    A("v_cmp_lt_u32 vcc, v149, v16")
    A("s_mov_b64 exec, vcc")
    A("s_cbranch_execz KD_OUT2")
    A(f"global_store_dwordx4 v148, {vr(136,4)}, s[30:31]")
    A(f"global_store_dwordx4 v148, {vr(140,4)}, s[30:31] offset:512")
    A("s_and_b64 exec, vcc, s[24:25]")
    A("s_cbranch_execz KD_OUT2")
    A(f"global_store_dwordx4 v148, {vr(144,4)}, s[30:31] offset:1024")
    A.label("KD_OUT2")
    A("s_mov_b64 exec, -1")
    A.label("KD_NOOUT")
    A("s_cmp_eq_u32 s36, 1")
    A("s_cbranch_scc1 KD_F2")
    AFR = 60
    A("v_and_b32 v17, 7, v2")
    A("v_lshlrev_b32 v17, 2, v17")
    A("v_add_u32 v17, s6, v17")
    A("ds_read_b32 v16, v17")
    A("v_lshrrev_b32 v21, 4, v2")
    A("v_lshlrev_b32 v21, 4, v21")
    A("s_mul_i32 s6, s35, 320")
    A(f"s_add_u32 s6, s6, {WS_L2}")
    A("v_add_u32 v21, s6, v21")
    A("s_waitcnt lgkmcnt(0)")
    A("v_and_b32 v18, 0x7ff, v16")
    A("v_sub_u32 v18, 2047, v18")
    A("v_mul_u32_u24 v20, 1280, v18")
    A("v_add_u32 v20, v20, v21")
    for i in range(5):
        A(f"global_load_dwordx4 {vr(AFR+4*i,4)}, v20, s[32:33] offset:{64*i} {SC}")
    stamp(A, 6)
    for i in range(4):
        A(f"v_mov_b32 v{24+i}, 0")
    A("v_lshlrev_b32 v28, 4, v2")
    A("s_lshl_b32 s6, s3, 10")
    A("v_add_u32 v29, s6, v28")
    for i in range(5):
        A(f"s_waitcnt vmcnt({4-i})")
        A(f"v_mfma_f32_16x16x32_bf16 v[24:27], {vr(AFR+4*i,4)}, {vr(FR+4*i,4)}, v[24:27]")
    stamp(A, 7)
    A("ds_write_b128 v29, v[24:27] offset:1024")
    A("s_waitcnt lgkmcnt(0)")
    A("s_barrier")
    A("s_cmp_lg_u32 s35, 0")
    A("s_cbranch_scc1 KD_DONE")
    A("v_lshrrev_b32 v56, 3, v2")
    A("v_and_b32 v57, 7, v2")
    A("v_lshrrev_b32 v58, 2, v56")
    A("v_lshlrev_b32 v58, 8, v58")
    A("v_lshl_add_u32 v58, v57, 4, v58")
    A("v_and_b32 v59, 3, v56")
    A("v_lshl_add_u32 v58, v59, 2, v58")
    A("s_lshl_b32 s6, s3, 10")
    A("v_add_u32 v58, s6, v58")
    for w in range(4):
        A(f"ds_read_b32 v{40+w}, v58 offset:{1024 + 1024*w}")
        A(f"ds_read_b32 v{44+w}, v58 offset:{1024 + 1024*w + 128}")
    A("v_lshlrev_b32 v59, 1, v2")
    A("s_lshl_b32 s6, s37, 7")
    A(f"s_add_u32 s6, s6, {WS_ACT}")
    A("v_add_u32 v59, s6, v59")
    A("s_waitcnt lgkmcnt(0)")
    A("v_add_f32 v40, v40, v41")
    A("v_add_f32 v42, v42, v43")
    A("v_add_f32 v44, v44, v45")
    A("v_add_f32 v46, v46, v47")
    A("v_add_f32 v40, v40, v42")
    A("v_add_f32 v44, v44, v46")
    A("v_cvt_pk_bf16_f32 v41, v40, v44")
    A("v_lshlrev_b32 v40, 16, v41")
    A("v_and_b32 v44, 0xffff0000, v41")
    A(f"v_mul_f32 v42, {hex(fbits(-LOG2E))}, v40")
    A("v_exp_f32 v42, v42")
    A("v_add_f32 v42, 1.0, v42")
    A("v_rcp_f32 v42, v42")
    A("v_mul_f32 v40, v40, v42")
    A("v_cvt_pk_bf16_f32 v40, v40, v40")
    A("v_and_b32 v40, 0xffff0000, v40")
    A("v_mul_f32 v40, v40, v44")
    A("v_cvt_pk_bf16_f32 v40, v40, v40")
    A(f"global_store_short v59, v40, s[32:33] {SC}")
    A.label("KD_DONE")
    k_end(A, 2)

    A.label("KD_F2")
    for i in range(4):
        A(f"v_mov_b32 v{36+i}, 0")
        A(f"v_mov_b32 v{32+i}, 0")
        A(f"v_mov_b32 v{52+i}, 0")
    A("s_add_u32 s39, s34, 64")
    A("s_cmp_eq_u32 s3, 0")
    A("s_cselect_b32 s39, s34, s39")
    A("s_cselect_b32 s9, 1, 0")
    A("s_cmp_eq_u32 s3, 1")
    A("s_cselect_b32 s10, s38, 0")
    A("s_or_b32 s9, s9, s10")
    A("s_cmp_eq_u32 s9, 0")
    A("s_cbranch_scc1 KD_F2SL")
    A("v_lshrrev_b32 v17, 3, v2")
    A("v_lshlrev_b32 v17, 2, v17")
    A("v_add_u32 v17, s6, v17")
    A("ds_read_b32 v8, v17")
    A("v_and_b32 v16, 7, v2")
    A("s_lshl_b32 s6, s39, 3")
    A("v_add_u32 v16, s6, v16")
    A("s_lshl_b32 s6, s39, 7")
    A(f"s_add_u32 s6, s6, {WS_AT}")
    A("v_and_b32 v17, 7, v2")
    A("v_lshlrev_b32 v17, 1, v17")
    A("v_add_u32 v17, s6, v17")
    A("s_waitcnt lgkmcnt(0)")
    A("v_and_b32 v40, 0x7ff, v8")
    A("v_sub_u32 v40, 2047, v40")
    A("v_mul_u32_u24 v36, 1280, v40")
    A("v_lshl_add_u32 v36, v16, 1, v36")
    A(f"v_add_u32 v18, {WS_L2}, v36")
    A(f"global_load_ushort v20, v18, s[32:33] {SC}")
    A("global_load_ushort v24, v36, s[26:27]")
    A("v_lshrrev_b32 v18, 3, v40")
    A("v_mul_u32_u24 v18, 10240, v18")
    A("v_and_b32 v19, 7, v40")
    A("v_lshl_add_u32 v18, v19, 4, v18")
    A("v_add_u32 v18, v18, v17")
    A("global_load_ushort v44, v18, s[32:33]")
    A("v_and_b32 v12, 0xffff0000, v8")
    A("v_ashrrev_i32 v48, 31, v12")
    A("v_not_b32 v48, v48")
    A("v_or_b32 v48, 0x80000000, v48")
    A("v_xor_b32 v12, v12, v48")
    A("v_and_b32 v12, 0xffff0000, v12")
    A(f"v_mul_f32 v12, {hex(fbits(-LOG2E))}, v12")
    A("v_exp_f32 v12, v12")
    A("v_add_f32 v12, 1.0, v12")
    A("v_rcp_f32 v12, v12")
    bf16_round(A, 12)
    A("s_waitcnt vmcnt(0)")
    A("v_lshlrev_b32 v24, 16, v24")
    A("v_lshlrev_b32 v44, 16, v44")
    A("v_lshlrev_b32 v20, 16, v20")
    A("v_add_f32 v24, v24, v44")
    bf16_round(A, 24)
    A(f"s_sleep {KD_A0}")
    A("s_branch KD_F2B2")
    A.label("KD_F2SL")
    A(f"s_sleep {KD_A1}")
    A.label("KD_F2B2")
    stamp(A, 6)
    A("s_mov_b32 s12, 0")
    A("v_mov_b32 v61, 0xffff")
    A.label("KD_POLL")
    for i in range(3):
        A(f"global_load_dwordx4 {vr(A2+4*i,4)}, v99, s[32:33] offset:{1024*i} {SC}")
    A("s_waitcnt vmcnt(0)")
    A(f"v_pk_max_u16 v62, v{A2}, v{A2+1}")
    A(f"v_pk_max_u16 v63, v{A2+2}, v{A2+3}")
    for i in range(4, 12, 2):
        A(f"v_pk_max_u16 v62, v62, v{A2+i}")
        A(f"v_pk_max_u16 v63, v63, v{A2+i+1}")
    A("v_pk_max_u16 v62, v62, v63")
    A("v_lshrrev_b32 v63, 16, v62")
    A("v_and_b32 v62, 0xffff, v62")
    A("v_max_u32 v62, v62, v63")
    A("v_cmp_eq_u32 vcc, v61, v62")
    A("s_cmp_eq_u64 vcc, 0")
    A("s_cbranch_scc1 KD_ACT")
    A("s_add_u32 s12, s12, 1")
    A(f"s_cmp_ge_u32 s12, {SPIN_MAX}")
    A("s_cbranch_scc1 KD_ACT")
    A(f"s_sleep {KC_SLEEP}")
    A("s_branch KD_POLL")
    A.label("KD_ACT")
    A("v_lshlrev_b32 v28, 4, v2")
    A("s_lshl_b32 s6, s3, 10")
    A("v_add_u32 v29, s6, v28")
    for i in range(3):
        A(f"v_mfma_f32_16x16x32_bf16 v[32:35], {vr(A2+4*i,4)}, {vr(FR+4*i,4)}, v[32:35]")
    A("s_cmp_eq_u32 s38, 0")
    A("s_cbranch_scc1 KD_NOB")
    for i in range(3):
        A(f"v_mfma_f32_16x16x32_bf16 v[52:55], {vr(A2+4*i,4)}, {vr(FRB+4*i,4)}, v[52:55]")
    for i in range(4):
        A(f"v_mov_b32 v{64+i}, v{52+i}")
    for i in range(4):
        A(f"v_permlane32_swap_b32 v{52+i}, v{64+i}")
    for i in range(4):
        A(f"v_add_f32_dpp v{52+i}, v{64+i}, v{52+i} row_shl:8 row_mask:0xf bank_mask:0xf")
    A("ds_write_b128 v29, v[52:55] offset:9216")
    A.label("KD_NOB")
    stamp(A, 7)
    for i in range(4):
        A(f"v_mov_b32 v{60+i}, v{32+i}")
    for i in range(4):
        A(f"v_permlane32_swap_b32 v{32+i}, v{60+i}")
    for i in range(4):
        A(f"v_add_f32_dpp v{32+i}, v{60+i}, v{32+i} row_shl:8 row_mask:0xf bank_mask:0xf")
    A("ds_write_b128 v29, v[32:35] offset:1024")
    A("s_waitcnt lgkmcnt(0)")
    A("s_barrier")
    A("s_cmp_eq_u32 s9, 0")
    A("s_cbranch_scc1 KD_DONE2")
    A("v_lshrrev_b32 v56, 3, v2")
    A("v_and_b32 v57, 7, v2")
    A("v_lshrrev_b32 v58, 2, v56")
    A("v_lshlrev_b32 v58, 8, v58")
    A("v_lshl_add_u32 v58, v57, 4, v58")
    A("v_and_b32 v59, 3, v56")
    A("v_lshl_add_u32 v58, v59, 2, v58")
    A("s_lshl_b32 s6, s3, 13")
    A("v_add_u32 v58, s6, v58")
    for w in range(8):
        A(f"ds_read_b32 v{40+w}, v58 offset:{1024 + 1024*w}")
    A("s_waitcnt lgkmcnt(0)")
    for st in (4, 2, 1):
        for j in range(st):
            A(f"v_add_f32 v{40+j}, v{40+j}, v{40+st+j}")
    bf16_round(A, 40)
    A("v_mul_f32 v40, v40, v12")
    bf16_round(A, 40)
    A("v_add_f32 v40, v40, v20")
    bf16_round(A, 40)
    A("v_add_f32 v40, v40, v24")
    A("v_cvt_pk_bf16_f32 v40, v40, v40")
    A("global_store_short v36, v40, s[30:31]")
    A.label("KD_DONE2")
    k_end(A, 2)
    A.label("KD_END")
    A("s_endpgm")


KD_A0 = int(os.environ.get("KD_A0", "16"))
KD_A1 = int(os.environ.get("KD_A1", "36"))

import gen14 as _g14
_g14.PREFILL[0] = True
KERNELS15 = [
    ("ka_kernel", ka, 256, 1024, KA_LDS, 128),
    ("kd_kernel", kd, 256, 512, KD_LDS, 152),
]

if __name__ == "__main__":
    if len(sys.argv) > 2 and sys.argv[2] == "stamp":
        STAMP[0] = True
    out = build(KERNELS15)
    open(sys.argv[1], "w").write(out)
    print("wrote", sys.argv[1], len(out), "bytes")
```

```python
import sys, os, struct
sys.path.insert(0, os.path.dirname(os.path.abspath(__file__)))
from asmlib import Asm

NAME = "sequential_preLN__ssm_conv_s4d__moe_arch_mod__prompt"

WS_UT = 0x0000000
WS_KD = 0x0280000
WS_SC = 0x03C0000
WS_AT = 0x0400000
WS_L2 = 0x0680000
LS = int(os.environ.get('LS', '128'))
WS_RK = 0x1000000
WS_ACT = 0x1080000
WS_SEL = 0x0918000
WS_WGU = 0x0A00000
WS_WD = 0x0E00000
WS_STAMP = 0x1800000
STAMP = [False]
NSTAMP = 12
ST_OPT = [""]


def k_begin(A):
    if STAMP[0]:
        A("s_memrealtime s[94:95]")
        for i in range(NSTAMP):
            A(f"s_mov_b64 s[{60+2*i}:{61+2*i}], 0")
        A("s_memtime s[60:61]")


def stamp(A, i):
    if STAMP[0]:
        A(f"s_memtime s[{60+2*i}:{61+2*i}]")


def k_end(A, kidx):
    if STAMP[0]:
        A(f"s_memtime s[{60+2*(NSTAMP-2)}:{61+2*(NSTAMP-2)}]")
        A("s_waitcnt vmcnt(0) lgkmcnt(0)")
        A("s_memrealtime s[96:97]")
        A(f"s_memtime s[{60+2*(NSTAMP-1)}:{61+2*(NSTAMP-1)}]")
        A("s_mov_b64 exec, -1")
        A("v_lshrrev_b32 v1, 6, v0")
        A("s_lshl_b32 s98, s2, 3")
        A("v_add_u32 v1, s98, v1")
        A("v_lshlrev_b32 v1, 7, v1")
        A(f"v_add_u32 v1, {WS_STAMP + kidx * 0x200000}, v1")
        A("s_waitcnt lgkmcnt(0)")
        A("v_mov_b32 v2, s94")
        A("v_mov_b32 v3, s95")
        A("v_mov_b32 v4, s96")
        A("v_mov_b32 v5, s97")
        A("global_store_dwordx4 v1, v[2:5], s[32:33]")
        for i in range(0, NSTAMP, 2):
            for j in range(4):
                A(f"v_mov_b32 v{2+j}, s{60+2*i+j}")
            A(f"global_store_dwordx4 v1, v[2:5], s[32:33] offset:{16+8*i}")
    A("s_endpgm")


def fbits(x):
    return struct.unpack("<I", struct.pack("<f", x))[0]


LOG2E = 1.4426950408889634
L2E_HI = fbits(LOG2E)
L2E_HI_F = struct.unpack("<f", struct.pack("<I", L2E_HI))[0]
L2E_LO = fbits(LOG2E - L2E_HI_F)
LN2 = fbits(0.6931471805599453)
INV2PI = fbits(0.15915494309189535)
INV640 = fbits(1.0 / 640.0)
EPS = fbits(1e-5)
ONE_LO = 0x00003f80
ONE_HI = 0x3f800000


def vr(a, n):
    return f"v[{a}:{a+n-1}]"


def bf16_round(A, reg):
    A(f"v_cvt_pk_bf16_f32 v{reg}, v{reg}, v{reg}")
    A(f"v_and_b32 v{reg}, 0xffff0000, v{reg}")


def exp_bf16(A, dst, src, t0, t1):
    A(f"v_mul_f32 v{t0}, s90, v{src}")
    A(f"v_fma_f32 v{t1}, v{src}, s90, -v{t0}")
    A(f"v_fma_f32 v{t1}, v{src}, s91, v{t1}")
    A(f"v_exp_f32 v{dst}, v{t0}")
    A(f"v_mul_f32 v{t1}, s92, v{t1}")
    A(f"v_fma_f32 v{dst}, v{dst}, v{t1}, v{dst}")
    bf16_round(A, dst)


def cmul(A, d, a, b):
    A(f"v_pk_mul_f32 {vr(d,2)}, {vr(a,2)}, {vr(b,2)} op_sel:[0,0] op_sel_hi:[0,1]")
    A(f"v_pk_fma_f32 {vr(d,2)}, {vr(a,2)}, {vr(b,2)}, {vr(d,2)} op_sel:[1,1,0] op_sel_hi:[1,0,1] neg_lo:[0,1,0]")


def ln_finish(A, s1, s2, t):
    A(f"v_mul_f32 v{s1}, {INV640}, v{s1}")
    A(f"v_mul_f32 v{s2}, {INV640}, v{s2}")
    A(f"v_fma_f32 v{s2}, -v{s1}, v{s1}, v{s2}")
    A(f"v_max_f32 v{s2}, 0, v{s2}")
    A(f"v_cvt_pk_bf16_f32 v{t}, v{s1}, v{s2}")
    A(f"v_lshlrev_b32 v{s1}, 16, v{t}")
    A(f"v_and_b32 v{s2}, 0xffff0000, v{t}")
    A(f"v_add_f32 v{s2}, {EPS}, v{s2}")
    bf16_round(A, s2)
    A(f"v_sqrt_f32 v{s2}, v{s2}")
    bf16_round(A, s2)
    A(f"v_rcp_f32 v{s2}, v{s2}")


def pair_swizzle(A, dst, src, tmp):
    A(f"s_and_b32 s{dst}, s{src}, 7")
    A(f"s_lshl_b32 s{dst}, s{dst}, 1")
    A(f"s_bfe_u32 s{tmp}, s{src}, 0x10003")
    A(f"s_or_b32 s{dst}, s{dst}, s{tmp}")
    A(f"s_andn2_b32 s{tmp}, s{src}, 15")
    A(f"s_or_b32 s{dst}, s{dst}, s{tmp}")


def wt_role(A, pfx, first_wg, nwaves_per_wg, lds_per_wave, it_lo, it_hi, kidx, opt, stride):
    A.label(f"{pfx}_WTR")
    A("s_load_dwordx4 s[16:19], s[0:1], 72")
    A("s_load_dwordx2 s[20:21], s[0:1], 88")
    A("v_lshrrev_b32 v1, 6, v0")
    A("v_readfirstlane_b32 s3, v1")
    A("v_and_b32 v2, 63, v0")
    if nwaves_per_wg > 0:
        A(f"s_sub_u32 s4, s2, {first_wg}")
        A(f"s_mul_i32 s4, s4, {nwaves_per_wg}")
        A("s_add_u32 s4, s4, s3")
        A(f"s_add_u32 s4, s4, {it_lo}")
    elif nwaves_per_wg == -2:
        A("s_sub_u32 s4, s3, 4")
        A("s_mul_i32 s4, s4, 96")
        A("s_add_u32 s4, s4, s2")
    else:
        A("s_sub_u32 s4, s3, 3")
        A("s_mul_i32 s4, s4, 96")
        A("s_add_u32 s4, s4, s2")
    A(f"s_mul_i32 s5, s3, {lds_per_wave}")
    A("v_lshrrev_b32 v3, 3, v2")
    A("v_and_b32 v4, 7, v2")
    A("v_lshlrev_b32 v4, 4, v4")
    A("v_lshrrev_b32 v5, 4, v2")
    A("v_lshlrev_b32 v5, 3, v5")
    A("v_and_b32 v6, 15, v2")
    A("v_lshrrev_b32 v6, 2, v6")
    A("v_add_u32 v5, v5, v6")
    A("v_lshlrev_b32 v5, 7, v5")
    A("v_and_b32 v6, 3, v2")
    A("v_lshlrev_b32 v7, 3, v6")
    A("v_add_u32 v8, v5, v7")
    A("v_add_u32 v8, s5, v8")
    A("v_add_u32 v9, 4080, v8")
    A("v_cmp_gt_u32 vcc, 2, v6")
    A("v_cndmask_b32 v9, v9, v8, vcc")
    A("v_lshlrev_b32 v10, 4, v2")
    A("v_and_b32 v13, 15, v2")
    A("v_lshrrev_b32 v14, 3, v13")
    A("v_mul_u32_u24 v14, 24576, v14")
    A("v_and_b32 v13, 7, v13")
    A("v_lshlrev_b32 v13, 4, v13")
    A("v_add_u32 v14, v14, v13")
    A("v_lshrrev_b32 v13, 4, v2")
    A("v_lshlrev_b32 v13, 7, v13")
    A("v_add_u32 v14, v14, v13")
    A("v_mul_u32_u24 v50, 3072, v3")
    A("v_add_u32 v50, v50, v4")
    A("v_mul_u32_u24 v51, 1280, v3")
    A("v_add_u32 v51, v51, v4")
    A("s_waitcnt lgkmcnt(0)")
    A("s_mov_b32 s6, s4")
    A(f"s_cmp_ge_u32 s6, {it_hi}")
    A(f"s_cbranch_scc1 {pfx}_WT_FIN")
    A.label(f"{pfx}_WT_LOOP")
    A("s_cmp_ge_u32 s6, 480")
    A(f"s_cbranch_scc1 {pfx}_WT_DOWN")
    A("s_mul_hi_u32 s7, s6, 0xccccccd")
    A("s_mul_i32 s8, s7, 20")
    A("s_sub_u32 s8, s6, s8")
    A("s_mul_i32 s9, s8, 98304")
    A("s_lshl_b32 s10, s7, 7")
    A("s_add_u32 s9, s9, s10")
    A("v_add_u32 v11, s9, v50")
    for j in range(4):
        A(f"s_add_u32 s10, s5, {1024*j}")
        A("s_mov_b32 m0, s10")
        A("global_load_lds_dwordx4 v11, s[16:17]")
        A(f"s_add_u32 s10, s5, {4096 + 1024*j}")
        A("s_mov_b32 m0, s10")
        A("global_load_lds_dwordx4 v11, s[18:19]")
        if j < 3:
            A("v_add_u32 v11, 24576, v11")
    A("s_mul_i32 s9, s7, 163840")
    A("s_lshl_b32 s10, s8, 10")
    A("s_add_u32 s9, s9, s10")
    A(f"s_add_u32 s9, s9, {WS_WGU}")
    A("v_add_u32 v12, s9, v10")
    A("s_waitcnt vmcnt(0)")
    for jj in range(8):
        A(f"ds_read_b64_tr_b16 {vr(16+4*jj,2)}, v9 offset:{16*jj}")
        A(f"ds_read_b64_tr_b16 {vr(18+4*jj,2)}, v9 offset:{16*jj + 512}")
    A("s_waitcnt lgkmcnt(0)")
    for jj in range(8):
        A(f"global_store_dwordx4 v12, {vr(16+4*jj,4)}, s[32:33] {opt}")
        if jj < 7:
            A("v_add_u32 v12, 20480, v12")
    A(f"s_branch {pfx}_WT_NEXT")
    A.label(f"{pfx}_WT_DOWN")
    A("s_sub_u32 s11, s6, 480")
    A("s_mul_hi_u32 s7, s11, 0x5555556")
    A("s_mul_i32 s8, s7, 48")
    A("s_sub_u32 s8, s11, s8")
    A("s_mul_i32 s9, s8, 40960")
    A("s_lshl_b32 s10, s7, 7")
    A("s_add_u32 s9, s9, s10")
    A("v_add_u32 v11, s9, v51")
    for j in range(4):
        A(f"s_add_u32 s10, s5, {1024*j}")
        A("s_mov_b32 m0, s10")
        A("global_load_lds_dwordx4 v11, s[20:21]")
        if j < 3:
            A("v_add_u32 v11, 10240, v11")
    A("s_mul_i32 s9, s7, 196608")
    A("s_lshl_b32 s10, s8, 9")
    A("s_add_u32 s9, s9, s10")
    A(f"s_add_u32 s9, s9, {WS_WD}")
    A("v_add_u32 v12, s9, v14")
    A("s_waitcnt vmcnt(0)")
    for jj in range(4):
        A(f"ds_read_b64_tr_b16 {vr(16+4*jj,2)}, v8 offset:{32*jj}")
        A(f"ds_read_b64_tr_b16 {vr(18+4*jj,2)}, v8 offset:{32*jj + 512}")
    A("s_waitcnt lgkmcnt(0)")
    for jj in range(4):
        A(f"global_store_dwordx4 v12, {vr(16+4*jj,4)}, s[32:33] {opt}")
        if jj < 3:
            A("v_add_u32 v12, 49152, v12")
    A.label(f"{pfx}_WT_NEXT")
    A(f"s_add_u32 s6, s6, {stride}")
    A(f"s_cmp_lt_u32 s6, {it_hi}")
    A(f"s_cbranch_scc1 {pfx}_WT_LOOP")
    A.label(f"{pfx}_WT_FIN")
    k_end(A, kidx)


K1_ROWB = 288
K1_BUF = 16 * K1_ROWB


def cmul_batch(A, items):
    for d, a, b in items:
        A(f"v_pk_mul_f32 {vr(d,2)}, {vr(a,2)}, {vr(b,2)} op_sel:[0,0] op_sel_hi:[0,1]")
    for d, a, b in items:
        A(f"v_pk_fma_f32 {vr(d,2)}, {vr(a,2)}, {vr(b,2)}, {vr(d,2)} op_sel:[1,1,0] op_sel_hi:[1,0,1] neg_lo:[0,1,0]")


KG_SZ = 2 * K1_BUF
KEO_ST = 27712
KEO_BASE = 0
KA_KE, KA_KO = 0, 4160
KA_U = 12 * KG_SZ
U_ST = 4608
KA_T = KA_U + 4 * U_ST
T_ST = 1600
KA_SC = KA_T + 4 * T_ST
KA_LN = KA_SC + 64
KA_CNT = KA_LN
KA_STATS = KA_LN + 128
KA_STAGE = KA_LN + 192
KA_LDS = KA_STAGE + 10240 + 2560


def group_sync(A, idx, n, lbl):
    A("s_waitcnt lgkmcnt(0)")
    A(f"v_mov_b32 v18, {KA_CNT + 4*idx}")
    A("v_mov_b32 v19, 1")
    A("s_mov_b64 exec, 1")
    A("ds_add_u32 v18, v19")
    A("s_mov_b64 exec, -1")
    A("s_mov_b32 s12, 0")
    A.label(lbl)
    A("ds_read_b32 v19, v18")
    A("s_waitcnt lgkmcnt(0)")
    A("v_readfirstlane_b32 s13, v19")
    A(f"s_cmp_ge_u32 s13, {n}")
    A(f"s_cbranch_scc1 {lbl}_OK")
    A("s_add_u32 s12, s12, 1")
    A(f"s_cmp_lt_u32 s12, {1 << 22}")
    A(f"s_cbranch_scc1 {lbl}")
    A.label(lbl + "_OK")
NPROD = 96
PREFILL = [False]
KEY_STRIDE = int(os.environ.get('KEY_STRIDE', '32'))
WS_RDY = 0x1180000
WS_FLAG = 0x1200000
WS_EPOCH = 0x1280000
SC = os.environ.get('SCMOD', 'sc1')
PMOD = os.environ.get('PMOD', SC)
FMOD = os.environ.get('FMOD', SC)
SPIN_MAX = 1 << 16
POLL_SLEEP = int(os.environ.get('POLL_SLEEP', '8'))
POLL_FIRST = int(os.environ.get('POLL_FIRST', '32'))
FLAG64 = int(os.environ.get('FLAG64', '0'))


def k_end16(A, kidx):
    if STAMP[0]:
        A(f"s_memtime s[{60+2*(NSTAMP-2)}:{61+2*(NSTAMP-2)}]")
        A("s_waitcnt vmcnt(0) lgkmcnt(0)")
        A("s_memrealtime s[96:97]")
        A(f"s_memtime s[{60+2*(NSTAMP-1)}:{61+2*(NSTAMP-1)}]")
        A("s_mov_b64 exec, -1")
        A("v_lshrrev_b32 v1, 6, v0")
        A("s_lshl_b32 s98, s2, 4")
        A("v_add_u32 v1, s98, v1")
        A("v_lshlrev_b32 v1, 7, v1")
        A(f"v_add_u32 v1, {WS_STAMP + kidx * 0x200000}, v1")
        A("s_waitcnt lgkmcnt(0)")
        A("v_mov_b32 v2, s94")
        A("v_mov_b32 v3, s95")
        A("v_mov_b32 v4, s96")
        A("v_mov_b32 v5, s97")
        A("global_store_dwordx4 v1, v[2:5], s[32:33]")
        for i in range(0, NSTAMP, 2):
            for j in range(4):
                A(f"v_mov_b32 v{2+j}, s{60+2*i+j}")
            A(f"global_store_dwordx4 v1, v[2:5], s[32:33] offset:{16+8*i}")
    A("s_endpgm")


k_end = k_end16


def arrive(A, idx):
    A("s_waitcnt lgkmcnt(0)")
    A(f"v_mov_b32 v18, {KA_CNT + 4*idx}")
    A("v_mov_b32 v19, 1")
    A("s_mov_b64 exec, 1")
    A("ds_add_u32 v18, v19")
    A("s_mov_b64 exec, -1")


def wait_count(A, idx, n, lbl, sleep=1):
    A(f"v_mov_b32 v18, {KA_CNT + 4*idx}")
    A("s_mov_b32 s12, 0")
    A.label(lbl)
    A("ds_read_b32 v19, v18")
    A("s_waitcnt lgkmcnt(0)")
    A("v_readfirstlane_b32 s13, v19")
    A(f"s_cmp_ge_u32 s13, {n}")
    A(f"s_cbranch_scc1 {lbl}_OK")
    A("s_add_u32 s12, s12, 1")
    if sleep:
        A(f"s_sleep {sleep}")
    A(f"s_cmp_lt_u32 s12, {1 << 22}")
    A(f"s_cbranch_scc1 {lbl}")
    A.label(lbl + "_OK")


def arrive_s(A, base_idx, sreg):
    A("s_waitcnt lgkmcnt(0)")
    A(f"s_lshl_b32 s12, s{sreg}, 2")
    A(f"s_add_u32 s12, s12, {KA_CNT + 4*base_idx}")
    A("v_mov_b32 v18, s12")
    A("v_mov_b32 v19, 1")
    A("s_mov_b64 exec, 1")
    A("ds_add_u32 v18, v19")
    A("s_mov_b64 exec, -1")


def wait_s(A, base_idx, sreg, n, lbl):
    A(f"s_lshl_b32 s12, s{sreg}, 2")
    A(f"s_add_u32 s12, s12, {KA_CNT + 4*base_idx}")
    A("v_mov_b32 v18, s12")
    A("s_mov_b32 s12, 0")
    A.label(lbl)
    A("ds_read_b32 v19, v18")
    A("s_waitcnt lgkmcnt(0)")
    A("v_readfirstlane_b32 s13, v19")
    A(f"s_cmp_ge_u32 s13, {n}")
    A(f"s_cbranch_scc1 {lbl}_OK")
    A("s_add_u32 s12, s12, 1")
    A("s_sleep 1")
    A(f"s_cmp_lt_u32 s12, {1 << 22}")
    A(f"s_cbranch_scc1 {lbl}")
    A.label(lbl + "_OK")


def poll_flags(A, lbl):
    A(f"v_mul_u32_u24 v3, {LS}, v2")
    A(f"v_add_u32 v3, {WS_FLAG}, v3")
    A("s_mov_b32 s12, 0")
    if POLL_FIRST:
        A(f"s_sleep {POLL_FIRST}")
    A.label(lbl)
    A(f"global_load_dwordx4 v[40:43], v3, s[32:33] {PMOD}")
    A("s_waitcnt vmcnt(0)")
    A("v_cmp_ne_u32 vcc, s15, v40")
    A("v_cmp_ne_u32 s[20:21], s15, v41")
    A("v_cmp_ne_u32 s[22:23], s15, v42")
    A("v_cmp_ne_u32 s[24:25], s15, v43")
    A("s_or_b64 vcc, vcc, s[20:21]")
    A("s_or_b64 s[22:23], s[22:23], s[24:25]")
    A("s_or_b64 vcc, vcc, s[22:23]")
    A("s_cmp_eq_u64 vcc, 0")
    A(f"s_cbranch_scc1 {lbl}_SEEN")
    A("s_add_u32 s12, s12, 1")
    A(f"s_cmp_ge_u32 s12, {SPIN_MAX}")
    A(f"s_cbranch_scc1 {lbl}_SEEN")
    A(f"s_sleep {POLL_SLEEP}")
    A(f"s_branch {lbl}")
    A.label(lbl + "_SEEN")


def poll_epoch(A, lbl):
    A(f"v_mov_b32 v3, {WS_EPOCH}")
    A("s_mov_b32 s12, 0")
    A("s_sleep 48")
    A.label(lbl)
    A(f"global_load_dword v40, v3, s[32:33] {SC}")
    A("s_waitcnt vmcnt(0)")
    A("v_readfirstlane_b32 s13, v40")
    A("s_cmp_eq_u32 s13, s15")
    A(f"s_cbranch_scc1 {lbl}_SEEN")
    A("s_add_u32 s12, s12, 1")
    A(f"s_cmp_ge_u32 s12, {SPIN_MAX}")
    A(f"s_cbranch_scc1 {lbl}_SEEN")
    A("s_sleep 16")
    A(f"s_branch {lbl}")
    A.label(lbl + "_SEEN")


def kgen_wave(A):
    A(f"s_mov_b32 s90, {L2E_HI}")
    A(f"s_mov_b32 s91, {L2E_LO}")
    A(f"s_mov_b32 s92, {LN2}")
    A("v_and_b32 v3, 15, v2")
    A("v_lshrrev_b32 v4, 4, v2")
    A("s_cmp_eq_u32 s36, 1")
    A("s_cbranch_scc1 KA_A1")
    A("s_cmp_eq_u32 s36, 2")
    A("s_cbranch_scc1 KA_A2")
    A("v_lshrrev_b32 v5, 1, v4")
    A("v_lshlrev_b32 v5, 7, v5")
    A("v_lshl_add_u32 v5, v3, 3, v5")
    A("v_and_b32 v6, 1, v4")
    A("v_lshl_add_u32 v5, v6, 2, v5")
    A("s_branch KA_A3")
    A.label("KA_A1")
    A("v_lshlrev_b32 v5, 1, v3")
    A("v_add_u32 v5, v5, v4")
    A("v_add_u32 v5, 384, v5")
    A("v_lshlrev_b32 v6, 4, v4")
    A("v_add_u32 v6, v6, v3")
    A("v_add_u32 v6, 480, v6")
    A("v_cmp_gt_u32 vcc, 2, v4")
    A("v_cndmask_b32 v5, v6, v5, vcc")
    A("s_branch KA_A3")
    A.label("KA_A2")
    A("v_lshlrev_b32 v5, 6, v4")
    A("v_lshlrev_b32 v6, 2, v3")
    A("v_add_u32 v5, v5, v6")
    A("v_add_u32 v5, 256, v5")
    A("v_lshlrev_b32 v6, 2, v2")
    A("v_add_u32 v6, 520, v6")
    A("v_cmp_gt_u32 vcc, 2, v4")
    A("v_cndmask_b32 v5, v6, v5, vcc")
    A("v_mov_b32 v6, 640")
    A("v_cmp_eq_u32 vcc, 32, v2")
    A("v_cndmask_b32 v5, v5, v6, vcc")
    A.label("KA_A3")
    A(f"s_mul_i32 s11, s37, {T_ST}")
    A(f"s_add_u32 s11, s11, {KA_T}")
    A("v_lshlrev_b32 v29, 1, v5")
    A("v_add_u32 v29, s11, v29")
    A(f"v_mul_u32_u24 v32, {K1_ROWB}, v3")
    A("v_lshlrev_b32 v5, 4, v4")
    A("v_add_u32 v32, v32, v5")
    A("v_add_u32 v32, s7, v32")
    AW = 120
    A("v_lshlrev_b32 v5, 2, v2")
    A(f"v_add_u32 v{AW}, s7, v5")
    for k in range(1, 8):
        A(f"v_add_u32 v{AW+k}, {(k//4)*K1_BUF + (k%4)*4*K1_ROWB}, v{AW}")
    stamp(A, 1)
    A("s_waitcnt lgkmcnt(0)")
    A("s_bitcmp1_b32 s34, 0")
    A("s_cbranch_scc1 KA_ODD")
    A("s_lshl_b32 s6, s6, 16")
    A.label("KA_ODD")
    A("s_and_b32 s6, s6, 0xffff0000")
    A("v_mov_b32 v5, s6")
    exp_bf16(A, 33, 5, 6, 7)
    A("s_waitcnt vmcnt(0)")
    stamp(A, 2)
    for i in range(6):
        A(f"v_and_b32 v{14+i}, 0x7fff, v{14+i}")
    A("v_max3_u32 v14, v14, v15, v16")
    A("v_max3_u32 v17, v17, v18, v19")
    A("v_max_u32 v14, v14, v17")
    A("v_lshlrev_b32 v10, 16, v10")
    A("v_lshlrev_b32 v11, 16, v11")
    A("v_mul_f32 v6, s90, v10")
    A("v_max_u32_dpp v14, v14, v14 row_shr:1 row_mask:0xf bank_mask:0xf")
    A("v_fma_f32 v7, v10, s90, -v6")
    A("v_exp_f32 v34, v6")
    A("v_max_u32_dpp v14, v14, v14 row_shr:2 row_mask:0xf bank_mask:0xf")
    A("v_fma_f32 v7, v10, s91, v7")
    A("v_mul_f32 v35, v11, v33")
    A("v_max_u32_dpp v14, v14, v14 row_shr:4 row_mask:0xf bank_mask:0xf")
    A("v_mul_f32 v7, s92, v7")
    A(f"v_mul_f32 v35, {INV2PI}, v35")
    A("v_max_u32_dpp v14, v14, v14 row_shr:8 row_mask:0xf bank_mask:0xf")
    A("v_fma_f32 v34, v34, v7, v34")
    A("v_lshlrev_b32 v12, 16, v12")
    A("v_max_u32_dpp v14, v14, v14 row_bcast:15 row_mask:0xa bank_mask:0xf")
    A("v_cvt_pk_bf16_f32 v34, v34, v34")
    A("v_lshlrev_b32 v13, 16, v13")
    A("v_max_u32_dpp v14, v14, v14 row_bcast:31 row_mask:0xc bank_mask:0xf")
    A("v_and_b32 v34, 0xffff0000, v34")
    A("v_mul_f32 v34, v34, v33")
    A("v_readlane_b32 s8, v14, 63")
    A("v_mul_f32 v34, s90, v34")
    A("v_sub_f32 v34, 0, v34")
    A("s_lshr_b32 s8, s8, 7")
    A("s_max_u32 s8, s8, 6")
    A("s_min_u32 s8, s8, 253")
    A("s_sub_u32 s9, 260, s8")
    A("s_lshl_b32 s9, s9, 23")
    A("s_sub_u32 s10, s8, 132")

    def direct(t, p):
        lit = "1.0" if p == 1 else hex(fbits(float(p)))
        A(f"v_mul_f32 v{t}, {lit}, v34")
        A(f"v_mul_f32 v{t+1}, {lit}, v35")
        A(f"v_fract_f32 v{t+1}, v{t+1}")

    def direct2(t):
        A(f"v_exp_f32 v{t}, v{t}")
        A(f"v_cos_f32 v{t+2}, v{t+1}")
        A(f"v_sin_f32 v{t+3}, v{t+1}")

    def direct_fin(d, t):
        A(f"v_mul_f32 v{d}, v{t}, v{t+2}")
        A(f"v_mul_f32 v{d+1}, v{t}, v{t+3}")

    C = 36
    g = {i: 38 + 2 * (i - 1) for i in range(1, 9)}
    G128, G256, G512, G1024 = 54, 56, 58, 60
    T = [62, 64, 66, 68, 70, 72, 74, 76]
    PK = list(range(78, 86))
    BF, AF = 86, 102
    h = {1: g[8]}
    for i in range(2, 9):
        h[i] = AF + 2 * (i - 2)
    AF2 = 62
    direct(62, 1)
    direct(66, 8)
    direct(70, 128)
    direct2(62)
    direct2(66)
    direct2(70)
    A(f"v_mul_f32 v{C}, s9, v12")
    A(f"v_mul_f32 v{C+1}, s9, v13")
    A("v_ldexp_f32 v6, v33, s10")
    A("s_lshl_b32 s11, s37, 2")
    A(f"s_add_u32 s11, s11, {KA_SC}")
    A("v_mov_b32 v7, s11")
    A("ds_write_b32 v7, v6")
    direct_fin(g[1], 62)
    direct_fin(g[8], 66)
    direct_fin(G128, 70)
    stamp(A, 3)

    def wr(rows_src, buf, neg):
        regs = []
        for k, (row, src) in enumerate(rows_src):
            p = PK[k % 8]
            if src is None:
                A(f"v_mov_b32 v{p}, 0x00003c00")
            else:
                A(f"v_cvt_pk_f16_f32 v{p}, v{src}, {'-' if neg else ''}v{src+1}")
            regs.append(p)
        k = 0
        n = 0
        while k < len(rows_src):
            r0 = rows_src[k][0]
            if k + 1 < len(rows_src) and rows_src[k + 1][0] // 4 == r0 // 4:
                r1 = rows_src[k + 1][0]
                A(f"ds_write2_b32 v{AW + 4*buf + r0//4}, v{regs[k]}, v{regs[k+1]} offset0:{(r0%4)*72} offset1:{(r1%4)*72}")
                k += 2
            else:
                A(f"ds_write_b32 v{AW + 4*buf + r0//4}, v{regs[k]} offset:{(r0%4)*K1_ROWB}")
                k += 1
            n += 1
        return n

    def frags(dst, buf):
        for j in range(4):
            A(f"ds_read_b128 {vr(dst+4*j,4)}, v32 offset:{buf*K1_BUF + 64*j}")

    def mfmas(acc, a, b):
        for j in range(4):
            A(f"v_mfma_f32_16x16x32_f16 {vr(acc,4)}, {vr(a+4*j,4)}, {vr(b+4*j,4)}, {vr(acc,4)}")

    cmul_batch(A, [(g[2], g[1], g[1]), (h[2], h[1], h[1]), (G256, G128, G128)])
    cmul_batch(A, [(g[3], g[2], g[1]), (g[4], g[2], g[2]), (h[3], h[2], h[1]), (h[4], h[2], h[2]), (G512, G256, G256)])
    cmul_batch(A, [(g[5], g[4], g[1]), (g[6], g[4], g[2]), (g[7], g[4], g[3]), (h[5], h[4], h[1]), (h[6], h[4], h[2]),
                   (h[7], h[4], h[3]), (h[8], h[4], h[4]), (G1024, G512, G512)])
    for i in range(4):
        A(f"v_mov_b32 v{20+i}, 0")
        A(f"v_mov_b32 v{24+i}, 0")
        A(f"v_mov_b32 v{4+i}, 0")
    wr([(0, None)] + [(i, h[i]) for i in range(1, 8)], 0, False)
    cmul_batch(A, [(T[i - 1], h[8], h[i]) for i in range(1, 8)])
    wr([(8, h[8])] + [(8 + i, T[i - 1]) for i in range(1, 8)], 0, False)
    frags(BF, 0)
    stamp(A, 4)
    c128 = T[7]
    cmul_batch(A, [(T[i - 1], C, g[i]) for i in range(1, 8)] + [(c128, C, G128)])
    wr([(0, C)] + [(i, T[i - 1]) for i in range(1, 8)], 1, True)
    cmul_batch(A, [(T[i - 1], c128, g[i]) for i in range(1, 8)])
    wr([(8, c128)] + [(8 + i, T[i - 1]) for i in range(1, 8)], 1, True)
    frags(AF, 1)
    cmul_batch(A, [(T[0], C, G512), (T[4], C, G1024)])
    cmul_batch(A, [(T[1], T[0], G128), (T[2], T[0], G256), (T[5], T[4], G256), (T[6], T[4], G512)])
    cmul_batch(A, [(T[3], T[2], G128), (T[7], T[6], G256)])
    n1 = wr([(i, T[i]) for i in range(4)] + [(8 + i, T[4 + i]) for i in range(4)], 0, True)
    c2048 = g[1]
    cmul_batch(A, [(c2048, T[4], G1024)])
    D4 = [g[3], g[5], g[7], g[8]]
    cmul_batch(A, [(D4[i], T[i], g[4]) for i in range(4)])
    A("s_waitcnt lgkmcnt(%d)" % n1)
    mfmas(20, AF, BF)
    cmul_batch(A, [(T[i], T[4 + i], G128) for i in range(4)])
    wr([(4 + i, D4[i]) for i in range(4)] + [(12 + i, T[i]) for i in range(4)], 0, True)
    frags(AF, 0)
    stamp(A, 5)
    cmul_batch(A, [(T[0], C, G256)])
    cmul_batch(A, [(T[4], T[0], G128), (T[1], T[0], g[2]), (T[2], T[0], g[4]), (T[3], T[0], g[6])])
    cmul_batch(A, [(T[5], T[4], g[2]), (T[6], T[4], g[4]), (T[7], T[4], g[6])])
    n2 = wr([(i, T[i]) for i in range(8)], 1, True)
    n2 += wr([(8, c2048)], 1, True)
    A("s_waitcnt lgkmcnt(%d)" % n2)
    mfmas(24, AF, BF)
    frags(AF2, 1)
    A("s_waitcnt lgkmcnt(0)")
    mfmas(4, AF2, BF)
    A("v_lshlrev_b32 v28, 4, v2")
    A("v_add_u32 v30, s7, v28")
    for t, r in enumerate((20, 24, 4)):
        A(f"ds_write_b128 v30, {vr(r,4)} offset:{1024*t}")
    stamp(A, 6)


def expand_round(A, r, lbl):
    A("v_lshlrev_b32 v28, 4, v2")
    A("v_add_u32 v28, s39, v28")
    A("s_mov_b32 s22, 0x01000100")
    A("s_mov_b32 s23, 0x03020302")
    if r < 2:
        A("v_lshlrev_b32 v26, 1, v2")
        A(f"v_sub_u32 v26, {2*(384+255) - 128*r}, v26")
        A("v_add_u32 v26, s40, v26")
        A("ds_read_u16 v40, v26")
        A("ds_read_u16 v41, v26 offset:2")
        A("v_and_b32 v16, 1, v2")
        A("v_cmp_eq_u32 s[20:21], 1, v16")
        A("s_waitcnt lgkmcnt(0)")
        w = 40
        A(f"v_lshl_or_b32 v{w}, v{w+1}, 16, v{w}")
        A(f"v_perm_b32 v{w+2}, v{w}, v{w}, s23")
        A(f"v_perm_b32 v{w+4}, v{w}, v{w}, s22")
        A(f"v_alignbit_b32 v{w+1}, v{w}, v{w}, 16")
        A(f"v_mov_b32 v{w+5}, v{w+4}")
        A(f"v_mov_b32 v{w+6}, v{w+2}")
        A(f"v_cndmask_b32 v{w+3}, v{w+2}, v{w+1}, s[20:21]")
        A(f"v_cndmask_b32 v{w+7}, v{w+1}, v{w+4}, s[20:21]")
        A(f"ds_write_b64 v28, {vr(w+2,2)} offset:{KA_KE + 1024*r}")
        A(f"ds_write_b64 v28, {vr(w+4,2)} offset:{KA_KE + 1024*r + 8}")
        A(f"ds_write_b64 v28, {vr(w+6,2)} offset:{KA_KO + 1024*r}")
        A(f"ds_write_b64 v28, {vr(w+4,2)} offset:{KA_KO + 1024*r + 8}")
    elif r == 2:
        A("v_lshlrev_b32 v27, 2, v2")
        A(f"v_sub_u32 v27, {512 + 4*127}, v27")
        A("v_add_u32 v27, s40, v27")
        A("ds_read_b32 v56, v27")
        A("ds_read_u16 v57, v27 offset:4")
        A("s_mov_b32 s24, 0x07060100")
        A("s_waitcnt lgkmcnt(0)")
        A("v_perm_b32 v40, v57, v57, s22")
        A("v_perm_b32 v41, v56, v56, s23")
        A("v_alignbit_b32 v42, v56, v56, 16")
        A("v_perm_b32 v43, v56, v56, s22")
        A("v_perm_b32 v44, v56, v57, s24")
        A("v_mov_b32 v45, v41")
        A("v_mov_b32 v46, v43")
        A("v_mov_b32 v47, v43")
        A(f"ds_write_b128 v28, v[40:43] offset:{KA_KE + 2048}")
        A(f"ds_write_b128 v28, v[44:47] offset:{KA_KO + 2048}")
    else:
        for k in range(9):
            A(f"ds_read_u16 v{40+k}, v{30+k}")
        A("v_mov_b32 v12, 0")
        A("v_and_b32 v14, 15, v2")
        A("v_lshlrev_b32 v14, 2, v14")
        A("v_add_u32 v14, s39, v14")
        A(f"ds_write_b32 v14, v12 offset:{KA_KE + 4096}")
        A(f"ds_write_b32 v14, v12 offset:{KA_KO + 4096}")
        A("s_waitcnt lgkmcnt(2)")
        for k in range(4):
            A(f"v_lshl_or_b32 v{52+k}, v{41+2*k}, 16, v{40+2*k}")
        A("v_alignbit_b32 v56, v53, v52, 16")
        A("v_alignbit_b32 v57, v54, v53, 16")
        A("v_alignbit_b32 v58, v55, v54, 16")
        A("v_alignbit_b32 v59, v48, v55, 16")
        A(f"ds_write_b128 v28, v[52:55] offset:{KA_KE + 3072}")
        A(f"ds_write_b128 v28, v[56:59] offset:{KA_KO + 3072}")
        A("v_mov_b32 v14, s39")
        A(f"ds_write_b16 v14, v12 offset:{KA_KO + 2*2047}")


def ka(A):
    A("s_cmp_ge_u32 s2, 256")
    A("s_cbranch_scc1 KA_END")
    k_begin(A)
    A("s_load_dwordx16 s[16:31], s[0:1], 0")
    A("s_load_dwordx4 s[44:47], s[0:1], 104")
    A("v_lshrrev_b32 v1, 6, v0")
    A("v_readfirstlane_b32 s3, v1")
    A("v_and_b32 v2, 63, v0")
    A("v_mov_b32 v3, 0")
    A("v_lshlrev_b32 v4, 2, v2")
    A(f"v_add_u32 v4, {KA_CNT}, v4")
    A("s_cmp_lg_u32 s3, 0")
    A("s_cbranch_scc1 KA_NOZ")
    A("s_mov_b64 exec, 0xffffffff")
    A("ds_write_b32 v4, v3")
    A("s_mov_b64 exec, -1")
    A.label("KA_NOZ")
    A(f"s_sub_u32 s4, s2, {NPROD}")
    pair_swizzle(A, 35, 4, 6)
    A("s_sub_u32 s4, s3, 4")
    A("s_mul_i32 s37, s4, 11")
    A("s_lshr_b32 s37, s37, 5")
    A("s_mul_i32 s36, s37, 3")
    A("s_sub_u32 s36, s4, s36")
    A("s_lshl_b32 s34, s35, 2")
    A("s_add_u32 s34, s34, s37")
    A(f"s_mul_i32 s7, s4, {KG_SZ}")
    A("s_mul_i32 s4, s34, 384")
    A("s_lshr_b32 s5, s34, 1")
    A("s_lshl_b32 s5, s5, 2")
    A("s_lshl_b32 s8, s36, 7")
    A("s_add_u32 s8, s8, s4")
    A("v_lshlrev_b32 v3, 1, v2")
    A("v_add_u32 v1, s8, v3")
    A("v_add_u32 v3, s4, v3")
    A("s_waitcnt lgkmcnt(0)")
    A("s_mov_b32 s32, s46")
    A("s_mov_b32 s33, s47")
    A("s_cmp_lt_u32 s3, 4")
    A("s_cbranch_scc1 KA_B0")
    A(f"s_cmp_lt_u32 s2, {NPROD}")
    A("s_cbranch_scc1 KA_B0")
    A("s_load_dword s6, s[26:27], s5")
    A("global_load_ushort v10, v1, s[18:19]")
    A("global_load_ushort v11, v1, s[20:21]")
    A("global_load_ushort v12, v1, s[22:23]")
    A("global_load_ushort v13, v1, s[24:25]")
    for i in range(3):
        A(f"global_load_ushort v{14+i}, v3, s[22:23] offset:{128*i}")
        A(f"global_load_ushort v{17+i}, v3, s[24:25] offset:{128*i}")
    A.label("KA_B0")
    A("s_barrier")
    A("s_cmp_lt_u32 s3, 4")
    A("s_cbranch_scc1 KA_LN1")
    A.label("KA_NOTAG")
    A(f"s_cmp_lt_u32 s2, {NPROD}")
    A("s_cbranch_scc1 KA_WT0")
    kgen_wave(A)
    arrive_s(A, 4, 37)
    wait_s(A, 4, 37, 3, "KA_W4")
    stamp(A, 7)
    A(f"s_mul_i32 s11, s37, {3*KG_SZ}")
    A("s_lshl_b32 s12, s36, 10")
    A("s_add_u32 s11, s11, s12")
    A("v_add_u32 v28, s11, v28")
    for w in range(3):
        A(f"ds_read_b128 {vr(40+4*w,4)}, v28 offset:{KG_SZ*w}")
    A("s_waitcnt lgkmcnt(0)")
    for i in range(4):
        A(f"v_add_f32 v{40+i}, v{40+i}, v{44+i}")
    for i in range(4):
        A(f"v_add_f32 v{40+i}, v{40+i}, v{48+i}")
    A("v_cvt_pk_f16_f32 v40, v40, v41")
    A("v_cvt_pk_f16_f32 v41, v42, v43")
    A("s_cmp_eq_u32 s36, 1")
    A("s_cbranch_scc1 KA_S1")
    A("ds_write_b64 v29, v[40:41]")
    A("s_branch KA_S2")
    A.label("KA_S1")
    A("ds_write_b16 v29, v40")
    A("ds_write_b16_d16_hi v29, v40 offset:64")
    A("ds_write_b16 v29, v41 offset:128")
    A("ds_write_b16_d16_hi v29, v41 offset:192")
    A.label("KA_S2")
    arrive_s(A, 8, 37)
    wait_s(A, 8, 37, 3, "KA_W5")
    A(f"s_mul_i32 s39, s37, {KEO_ST}")
    A(f"s_add_u32 s39, s39, {KEO_BASE}")
    A(f"s_mul_i32 s40, s37, {T_ST}")
    A(f"s_add_u32 s40, s40, {KA_T}")
    A("s_cmp_eq_u32 s36, 0")
    A("s_cbranch_scc1 KA_R0")
    A("s_cmp_eq_u32 s36, 1")
    A("s_cbranch_scc1 KA_R1")
    expand_round(A, 2, "R2")
    A("s_branch KA_RX")
    A.label("KA_R0")
    expand_round(A, 0, "R0")
    A("s_branch KA_RX")
    A.label("KA_R1")
    expand_round(A, 1, "R1")
    A.label("KA_RX")
    arrive_s(A, 12, 37)
    k_end(A, 0)

    A.label("KA_CONV")
    A("s_lshl_b32 s4, s35, 2")
    A("s_add_u32 s4, s4, s3")
    A("s_lshr_b32 s14, s4, 1")
    A("s_lshl_b32 s14, s14, 2")
    A(f"s_mul_i32 s39, s3, {KEO_ST}")
    A(f"s_mul_i32 s40, s3, {T_ST}")
    A(f"s_add_u32 s40, s40, {KA_T}")
    A(f"s_mul_i32 s41, s3, {U_ST}")
    A(f"s_add_u32 s41, s41, {KA_U}")
    A("v_and_b32 v6, 15, v2")
    A("v_lshrrev_b32 v7, 4, v2")
    A("v_lshrrev_b32 v8, 1, v7")
    A("v_and_b32 v9, 1, v7")
    A("v_mov_b32 v12, 0")
    A("v_mov_b32 v13, 0")
    A("v_lshlrev_b32 v14, 3, v2")
    A("v_add_u32 v14, s41, v14")
    A("ds_write_b64 v14, v[12:13]")
    A("v_sub_u32 v14, 2047, v6")
    A("v_lshlrev_b32 v15, 4, v8")
    A("v_sub_u32 v14, v14, v15")
    A("v_lshlrev_b32 v15, 3, v9")
    A("v_add_u32 v14, v14, v15")
    A("v_lshlrev_b32 v14, 1, v14")
    A(f"v_add_u32 v15, {KA_KO - 2}, v14")
    A("v_and_b32 v16, 1, v6")
    A("v_cmp_eq_u32 vcc, 1, v16")
    A("v_cndmask_b32 v14, v15, v14, vcc")
    A("v_add_u32 v14, s39, v14")
    AB = [20, 21, 22, 23]
    for p in range(4):
        A(f"v_subrev_u32 v{AB[p]}, {512*(2*p+1) + 448}, v14")
    A("v_lshlrev_b32 v15, 5, v6")
    A("v_lshlrev_b32 v16, 5, v8")
    A("v_sub_u32 v15, v15, v16")
    A("v_lshlrev_b32 v16, 4, v9")
    A("v_add_u32 v15, v15, v16")
    A(f"v_add_u32 v15, {512 - 448}, v15")
    BB = 24
    A(f"v_add_u32 v{BB}, s41, v15")
    A("v_lshlrev_b32 v15, 5, v6")
    A("v_lshlrev_b32 v16, 3, v7")
    A("v_add_u32 v25, v15, v16")
    A("v_lshlrev_b32 v3, 3, v2")
    A("v_sub_u32 v3, 511, v3")
    for k in range(9):
        A(f"v_subrev_u32 v{30+k}, {k}, v3")
    A("v_max_i32 v38, 0, v38")
    for k in range(9):
        A(f"v_cvt_f32_i32 v{40+k}, v{30+k}")
    for k in range(0, 8, 2):
        A(f"v_cvt_pk_bf16_f32 v{50+k}, v{40+k}, v{41+k}")
        A(f"v_lshrrev_b32 v{51+k}, 16, v{50+k}")
        A(f"v_and_b32 v{50+k}, 0xffff, v{50+k}")
    A("v_cvt_pk_bf16_f32 v58, v48, v48")
    A("v_and_b32 v58, 0xffff, v58")
    for k in range(9):
        A(f"v_subrev_u32 v{50+k}, 17024, v{50+k}")
        A(f"v_min_i32 v{30+k}, 127, v{30+k}")
        A(f"v_max_i32 v{50+k}, v{50+k}, v{30+k}")
        A(f"v_lshlrev_b32 v{30+k}, 1, v{50+k}")
        A(f"v_add_u32 v{30+k}, s40, v{30+k}")
    A("v_lshrrev_b32 v5, 3, v2")
    A("v_mul_u32_u24 v5, 20480, v5")
    A("v_and_b32 v4, 7, v2")
    A("v_lshl_add_u32 v5, v4, 4, v5")
    A("s_lshl_b32 s7, s35, 7")
    A("s_mul_i32 s8, s3, 655360")
    A("s_add_u32 s7, s7, s8")
    A(f"s_add_u32 s7, s7, {WS_UT}")
    A("v_add_u32 v5, s7, v5")
    A("v_and_b32 v4, 3, v2")
    A(f"v_mul_u32_u24 v4, {U_ST}, v4")
    A("v_lshrrev_b32 v3, 3, v2")
    A("v_lshl_add_u32 v4, v3, 5, v4")
    A("v_bfe_u32 v3, v2, 2, 1")
    A("v_lshl_add_u32 v4, v3, 4, v4")
    A("s_lshl_b32 s8, s3, 10")
    A(f"s_add_u32 s8, s8, {KA_U + 512}")
    A("v_add_u32 v4, s8, v4")
    A("s_load_dword s11, s[28:29], s14")
    stamp(A, 1)
    A("s_cmp_lg_u32 s3, 3")
    A("s_cbranch_scc1 KA_GOT")
    wait_count(A, 3, 4, "KA_OWN", sleep=4)
    poll_flags(A, "KA_POLL")
    A(f"s_cmp_lg_u32 s2, {NPROD}")
    A("s_cbranch_scc1 KA_GOT")
    A(f"v_mov_b32 v3, {WS_EPOCH}")
    A("v_mov_b32 v10, s15")
    A("s_mov_b64 exec, 1")
    A(f"global_store_dword v3, v10, s[32:33] {SC}")
    A("s_mov_b64 exec, -1")
    A.label("KA_GOT")
    AF, BF, ACC = 32, 64, 96
    for i in range(32):
        A(f"v_mov_b32 v{ACC+i}, 0")
    A("s_bitcmp1_b32 s4, 0")
    group_sync(A, 2, 4, "KA_GS2")
    stamp(A, 2)
    for j in range(4):
        A(f"global_load_dwordx4 {vr(64+4*j,4)}, v5, s[32:33] {SC}")
        if j < 3:
            A("v_add_u32 v5, 163840, v5")
    A("s_bitcmp1_b32 s4, 0")
    A("s_cbranch_scc1 KA_ODD2")
    A("s_lshl_b32 s11, s11, 16")
    A.label("KA_ODD2")
    A("s_and_b32 s11, s11, 0xffff0000")
    for j in range(4):
        A(f"s_waitcnt vmcnt({3-j})")
        A(f"ds_write_b128 v4, {vr(64+4*j,4)} offset:{256*j}")
    arrive(A, 17)
    stamp(A, 3)
    wait_s(A, 8, 3, 3, "KA_W5C")
    expand_round(A, 3, "R3")
    A("s_lshl_b32 s12, s3, 2")
    A(f"s_add_u32 s12, s12, {KA_SC}")
    A("v_mov_b32 v3, s12")
    A("ds_read_b32 v10, v3")
    wait_s(A, 12, 3, 3, "KA_W6")
    wait_count(A, 17, 4, "KA_W7", sleep=0)
    stamp(A, 5)

    def loadA(q, i0):
        p = q // 2
        o = (128 if q % 2 == 0 else 0) + 16 * (7 - i0)
        return [f"ds_read2_b32 {vr(AF+4*q,2)}, v{AB[p]} offset0:{o} offset1:{o+1}",
                f"ds_read2_b32 {vr(AF+4*q+2,2)}, v{AB[p]} offset0:{o+2} offset1:{o+3}"]

    def loadB(tau, i0):
        return [f"ds_read_b128 {vr(BF+4*tau,4)}, v{BB} offset:{512*tau + 64*(7-i0)}"]

    queue = []
    for q in range(8):
        A(loadB(7 - q, 0)[0])
        queue.append(("B", 7 - q))
        if q == 0:
            for s in loadA(0, 0):
                A(s)
            queue += [("A", 0), ("A", 0)]
    for q in range(1, 8):
        for s in loadA(q, 0):
            A(s)
        queue += [("A", q), ("A", q)]
    pending = []

    def wait_for(tags):
        while any(tg in tags for _, tg in pending):
            s_, tg = pending.pop(0)
            A(s_)
            queue.append(tg)
        last = -1
        for i, t in enumerate(queue):
            if t in tags:
                last = i
        if last >= 0:
            n = len(queue) - 1 - last
            A(f"s_waitcnt lgkmcnt({min(n, 15)})")
            del queue[:last + 1]

    for i0 in range(8):
        for q in range(8):
            for tau in range(7 - q, -1, -1):
                wait_for({("A", q), ("B", tau)})
                t = q + tau
                A(f"v_mfma_f32_16x16x32_f16 {vr(ACC+4*t,4)}, {vr(AF+4*q,4)}, {vr(BF+4*tau,4)}, {vr(ACC+4*t,4)}")
                if i0 < 7:
                    if tau == 7 - q:
                        pending.insert(0, (loadB(7 - q, i0 + 1)[0], ("B", 7 - q)))
                    if tau == 0:
                        for s in loadA(q, i0 + 1):
                            pending.append((s, ("A", q)))
                if pending:
                    s, tag = pending.pop(0)
                    A(s)
                    queue.append(tag)
    stamp(A, 6)
    A("v_add_u32 v26, s41, v25")
    A("v_add_u32 v27, s39, v25")
    for t in range(8):
        A(f"ds_read_b64 {vr(32+2*t,2)}, v26 offset:{512 + 512*t}")
    A(f"v_mov_b32 v28, {ONE_LO}")
    A(f"v_mov_b32 v29, {ONE_HI}")
    A("v_mov_b32 v11, v10")
    A("s_waitcnt lgkmcnt(0)")
    for t in range(8):
        a = ACC + 4 * t
        u = 32 + 2 * t
        tm = 48 + 8 * (t & 1)
        A(f"v_pk_mul_f32 {vr(a,2)}, {vr(a,2)}, v[10:11]")
        A(f"v_pk_mul_f32 {vr(a+2,2)}, {vr(a+2,2)}, v[10:11]")
        A(f"v_fma_mix_f32 v{tm}, v{u}, s11, 0 op_sel:[0,0,0] op_sel_hi:[1,0,0]")
        A(f"v_fma_mix_f32 v{tm+1}, v{u}, s11, 0 op_sel:[1,0,0] op_sel_hi:[1,0,0]")
        A(f"v_fma_mix_f32 v{tm+2}, v{u+1}, s11, 0 op_sel:[0,0,0] op_sel_hi:[1,0,0]")
        A(f"v_fma_mix_f32 v{tm+3}, v{u+1}, s11, 0 op_sel:[1,0,0] op_sel_hi:[1,0,0]")
        A(f"v_cvt_pk_bf16_f32 v{a}, v{a}, v{a+1}")
        A(f"v_cvt_pk_bf16_f32 v{a+1}, v{a+2}, v{a+3}")
        A(f"v_cvt_pk_bf16_f32 v{tm+4}, v{tm}, v{tm+1}")
        A(f"v_cvt_pk_bf16_f32 v{tm+5}, v{tm+2}, v{tm+3}")
        A(f"v_lshlrev_b32 v{tm}, 16, v{tm+4}")
        A(f"v_and_b32 v{tm+1}, 0xffff0000, v{tm+4}")
        A(f"v_lshlrev_b32 v{tm+2}, 16, v{tm+5}")
        A(f"v_and_b32 v{tm+3}, 0xffff0000, v{tm+5}")
        A(f"v_dot2_f32_bf16 v{tm}, v{a}, v28, v{tm}")
        A(f"v_dot2_f32_bf16 v{tm+1}, v{a}, v29, v{tm+1}")
        A(f"v_dot2_f32_bf16 v{tm+2}, v{a+1}, v28, v{tm+2}")
        A(f"v_dot2_f32_bf16 v{tm+3}, v{a+1}, v29, v{tm+3}")
        A(f"v_cvt_pk_bf16_f32 v{a+2}, v{tm}, v{tm+1}")
        A(f"v_cvt_pk_bf16_f32 v{a+3}, v{tm+2}, v{tm+3}")
        A(f"ds_write_b64 v27, {vr(a+2,2)} offset:{KA_KE + 512*t}")
    stamp(A, 7)
    A("v_lshrrev_b32 v14, 2, v6")
    A(f"v_mul_u32_u24 v14, {KEO_ST}, v14")
    A("v_and_b32 v15, 3, v2")
    A("v_lshlrev_b32 v15, 3, v15")
    A("v_add_u32 v14, v14, v15")
    A("v_lshlrev_b32 v15, 5, v7")
    A("v_add_u32 v14, v14, v15")
    A("s_lshl_b32 s12, s3, 10")
    A("v_add_u32 v14, s12, v14")
    A("v_lshrrev_b32 v15, 3, v6")
    A("v_lshlrev_b32 v16, 1, v7")
    A("v_add_u32 v15, v15, v16")
    A("v_mul_u32_u24 v15, 10240, v15")
    A("v_and_b32 v16, 7, v6")
    A("v_lshlrev_b32 v16, 4, v16")
    A("v_add_u32 v15, v15, v16")
    A("s_mul_i32 s12, s3, 655360")
    A("s_lshr_b32 s13, s35, 1")
    A("s_lshl_b32 s13, s13, 7")
    A("s_add_u32 s12, s12, s13")
    A("s_and_b32 s13, s35, 1")
    A("s_lshl_b32 s13, s13, 3")
    A("s_add_u32 s12, s12, s13")
    A(f"s_add_u32 s12, s12, {WS_AT}")
    A("v_add_u32 v15, s12, v15")
    A("s_waitcnt lgkmcnt(0)")
    A("s_barrier")
    for k in range(8):
        A(f"ds_read_b64_tr_b16 {vr(40+2*k,2)}, v14 offset:{KA_KE + 128*k}")
    for k in range(8):
        A(f"s_waitcnt lgkmcnt({7-k})")
        A(f"global_store_dwordx2 v15, {vr(40+2*k,2)}, s[32:33]")
        if k < 7:
            A("v_add_u32 v15, 81920, v15")
    k_end(A, 0)

    A.label("KA_LN1")
    A("s_setprio 3")
    A(f"s_mov_b32 s14, {WS_EPOCH}")
    A("s_load_dword s15, s[32:33], s14")
    A("v_lshrrev_b32 v7, 5, v0")
    A("v_and_b32 v4, 31, v0")
    A("s_mul_i32 s5, s2, 10240")
    A("v_lshlrev_b32 v5, 4, v4")
    A("v_mul_u32_u24 v6, 1280, v7")
    A("v_add_u32 v6, v6, v5")
    A("v_add_u32 v8, s5, v6")
    XR, T = 24, 40
    for i in range(4):
        A(f"v_mov_b32 v{XR+8+i}, 0")
    A("v_cmp_gt_u32 s[24:25], 16, v4")
    A(f"global_load_dwordx4 {vr(XR,4)}, v8, s[16:17]")
    A(f"global_load_dwordx4 {vr(XR+4,4)}, v8, s[16:17] offset:512")
    A("s_mov_b64 exec, s[24:25]")
    A(f"global_load_dwordx4 {vr(XR+8,4)}, v8, s[16:17] offset:1024")
    A("s_mov_b64 exec, -1")
    A(f"v_mov_b32 v12, {ONE_LO}")
    A(f"v_mov_b32 v13, {ONE_HI}")
    A("v_mov_b32 v14, 0x3f803f80")
    for r in (10, 11, 16, 17):
        A(f"v_mov_b32 v{r}, 0")
    A("v_bfe_u32 v9, v0, 5, 1")
    A("v_lshlrev_b32 v9, 1, v9")
    A("v_and_b32 v15, 6, v4")
    A("v_xor_b32 v9, v9, v15")
    A("v_lshlrev_b32 v9, 4, v9")
    A("v_lshl_add_u32 v9, v4, 7, v9")
    A("s_lshl_b32 s6, s3, 2")
    A(f"s_add_u32 s6, s6, {KA_STAGE}")
    A("v_add_u32 v9, s6, v9")
    A("v_xor_b32 v20, 64, v9".replace("v_xor_b32 v20, 64, v9", "v_subrev_u32 v20, s6, v9"))
    A("v_xor_b32 v20, 64, v20")
    A("v_add_u32 v20, s6, v20")
    A("v_lshrrev_b32 v21, 3, v0")
    A("v_and_b32 v21, 6, v21")
    A("v_xor_b32 v21, v21, v0")
    A("v_lshlrev_b32 v21, 4, v21")
    A(f"v_add_u32 v21, {KA_STAGE}, v21")
    A("v_lshrrev_b32 v22, 2, v0")
    A("v_lshlrev_b32 v22, 7, v22")
    A("v_and_b32 v23, 3, v0")
    A("v_lshl_add_u32 v22, v23, 4, v22")
    A("s_lshr_b32 s7, s2, 1")
    A("s_mul_i32 s7, s7, 20480")
    A("s_and_b32 s8, s2, 1")
    A("s_lshl_b32 s8, s8, 6")
    A("s_add_u32 s7, s7, s8")
    A(f"s_add_u32 s7, s7, {WS_UT}")
    A("v_add_u32 v22, s7, v22")
    A("s_waitcnt vmcnt(0)")
    stamp(A, 8)
    N = 12
    for i in range(0, N, 2):
        A(f"v_dot2c_f32_bf16 v10, v{XR+i}, v14")
        A(f"v_dot2c_f32_bf16 v11, v{XR+i}, v{XR+i}")
        A(f"v_dot2c_f32_bf16 v16, v{XR+i+1}, v14")
        A(f"v_dot2c_f32_bf16 v17, v{XR+i+1}, v{XR+i+1}")
    A("s_nop 2")
    A("v_add_f32 v10, v10, v16")
    A("v_add_f32 v11, v11, v17")
    for sh in (8, 4, 2, 1):
        A(f"v_add_f32_dpp v10, v10, v10 row_ror:{sh} row_mask:0xf bank_mask:0xf")
        A(f"v_add_f32_dpp v11, v11, v11 row_ror:{sh} row_mask:0xf bank_mask:0xf")
    A("v_mov_b32 v16, v10")
    A("v_mov_b32 v17, v11")
    A("v_permlane16_swap_b32 v10, v16")
    A("v_permlane16_swap_b32 v11, v17")
    A("v_add_f32 v10, v10, v16")
    A("v_add_f32 v11, v11, v17")
    ln_finish(A, 10, 11, 15)
    A("v_sub_f32 v10, 0, v10")
    A("v_mov_b32 v16, v11")
    A("v_mov_b32 v17, v11")
    for i in range(N):
        A(f"v_dot2_f32_bf16 v{T+2*i}, v{XR+i}, v12, v10")
        A(f"v_dot2_f32_bf16 v{T+2*i+1}, v{XR+i}, v13, v10")
    for i in range(N):
        A(f"v_cvt_pk_bf16_f32 v{XR+i}, v{T+2*i}, v{T+2*i+1}")
    for i in range(N):
        A(f"v_lshlrev_b32 v{T+2*i}, 16, v{XR+i}")
        A(f"v_and_b32 v{T+2*i+1}, 0xffff0000, v{XR+i}")
    for i in range(N):
        A(f"v_pk_mul_f32 {vr(T+2*i,2)}, {vr(T+2*i,2)}, v[16:17]")
    for i in range(N):
        A(f"v_cvt_pk_bf16_f32 v{XR+i}, v{T+2*i}, v{T+2*i+1}")
    for i in range(N):
        A(f"v_lshlrev_b32 v{T+2*i}, 16, v{XR+i}")
        A(f"v_and_b32 v{T+2*i+1}, 0xffff0000, v{XR+i}")
    P = 64
    for i in range(N):
        A(f"v_cvt_pk_f16_f32 v{P+i}, v{T+2*i}, v{T+2*i+1}")
    for i in range(0, N, 2):
        A(f"v_permlane32_swap_b32 v{P+i}, v{P+i+1}")
    A("s_mov_b32 s22, 0x05040100")
    A("s_mov_b32 s23, 0x07060302")
    for i in range(0, N, 2):
        A(f"v_perm_b32 v{T+i}, v{P+i+1}, v{P+i}, s22")
        A(f"v_perm_b32 v{T+i+1}, v{P+i+1}, v{P+i}, s23")
    for sl in range(3):
        if sl == 2:
            A("s_mov_b64 exec, s[24:25]")
        for k in range(2):
            i = 4 * sl + 2 * k
            A(f"v_add_u32 v23, {4096*sl}, v{9 if k == 0 else 20}")
            A(f"ds_write2_b32 v23, v{T+i}, v{T+i+1} offset0:0 offset1:4")
    A("s_mov_b64 exec, -1")
    group_sync(A, 1, 4, "KA_GS1")
    for j in range(3):
        A(f"ds_read_b128 {vr(24+4*j,4)}, v21 offset:{4096*j}")
    A("s_waitcnt lgkmcnt(0)")
    A(f"global_store_dwordx4 v22, {vr(24,4)}, s[32:33] {SC}")
    A("v_add_u32 v22, 8192, v22")
    A(f"global_store_dwordx4 v22, {vr(28,4)}, s[32:33] {SC}")
    A("s_cmp_ge_u32 s3, 2")
    A("s_cbranch_scc1 KA_P3")
    A("v_add_u32 v22, 8192, v22")
    A(f"global_store_dwordx4 v22, {vr(32,4)}, s[32:33] {SC}")
    A.label("KA_P3")
    A("s_mul_i32 s15, s15, 0x9E3779B1")
    A("s_add_u32 s15, s15, 0x632BE5AB")
    A("s_waitcnt vmcnt(0)")
    group_sync(A, 3, 4, "KA_GS3")
    stamp(A, 9)
    A("s_setprio 0")
    A("s_cmp_lg_u32 s3, 0")
    A("s_cbranch_scc1 KA_LNX")
    A("s_lshr_b32 s5, s2, 2")
    A(f"s_mul_i32 s5, s5, {LS}")
    A("s_and_b32 s6, s2, 3")
    A("s_lshl_b32 s6, s6, 2")
    A("s_add_u32 s5, s5, s6")
    A(f"s_add_u32 s5, s5, {WS_FLAG}")
    A("v_mov_b32 v3, s5")
    A("v_mov_b32 v4, s15")
    A("s_mov_b64 exec, 1")
    A(f"global_store_dword v3, v4, s[32:33] {FMOD}")
    A("s_mov_b64 exec, -1")
    A.label("KA_LNX")
    A(f"s_cmp_ge_u32 s2, {NPROD}")
    A("s_cbranch_scc1 KA_CONV")
    A("s_cmp_eq_u32 s3, 3")
    A("s_cbranch_scc1 KA_WTPOLL")
    k_end(A, 0)
    A.label("KA_WTPOLL")
    wait_count(A, 3, 4, "KA_OWN2", sleep=4)
    if not os.environ.get("WT_EARLY"):
        poll_epoch(A, "KA_POLL2")
    arrive(A, 16)
    k_end(A, 0)
    A.label("KA_WT0")
    A("s_cmp_ge_u32 s3, 8")
    A("s_cbranch_scc1 KA_PRE" if PREFILL[0] else "s_cbranch_scc1 KA_WTX")
    wait_count(A, 16, 1, "KA_WTW", sleep=8)
    wt_role(A, "KA", 0, -2, 8192, 0, 960, 0, os.environ.get("WT_MOD", ""), 384)
    if PREFILL[0]:
        A.label("KA_PRE")
        A("s_cmp_lg_u32 s3, 8")
        A("s_cbranch_scc1 KA_WTX")
        A("s_cmp_ge_u32 s2, 64")
        A("s_cbranch_scc1 KA_WTX")
        A("s_lshl_b32 s4, s2, 3")
        A(f"s_mul_i32 s5, s4, {LS}")
        A(f"s_add_u32 s6, s5, {WS_ACT - 64 * LS}")
        A(f"s_add_u32 s7, s5, {WS_RDY - 256 * LS}")
        A(f"s_add_u32 s5, s5, {WS_RK}")
        A("s_cmp_lt_u32 s2, 8")
        A("s_cselect_b32 s5, s5, s6")
        A("s_cmp_lt_u32 s2, 32")
        A("s_cselect_b32 s5, s5, s7")
        A("v_lshrrev_b32 v3, 3, v2")
        A(f"v_mul_u32_u24 v3, {LS}, v3")
        A("v_and_b32 v4, 7, v2")
        A("v_lshl_add_u32 v3, v4, 4, v3")
        A("v_add_u32 v3, s5, v3")
        for i in range(4):
            A(f"v_mov_b32 v{4+i}, -1")
        A("global_store_dwordx4 v3, v[4:7], s[32:33]")
    A.label("KA_WTX")
    k_end(A, 0)
    A.label("KA_END")
    A("s_endpgm")


from_gen15 = True
KC_SLEEP = int(os.environ.get('KC_SLEEP', '6'))
KD_LDS = 18432
KD_F1_FIRST = int(os.environ.get("KD_F1_FIRST", "8"))
KD_F2_FIRST = int(os.environ.get("KD_F2_FIRST", "64"))
KD_KSLEEP = int(os.environ.get("KD_KSLEEP", "6"))
NROW = 256


def sel_part1(A, lbl, first_sleep):
    A("v_and_b32 v8, 255, v0")
    A("v_lshrrev_b32 v4, 2, v8")
    A(f"v_mul_u32_u24 v4, {LS}, v4")
    A("v_and_b32 v8, 3, v0")
    A("v_lshl_add_u32 v4, v8, 5, v4")
    A(f"v_add_u32 v4, {WS_RK}, v4")
    A("s_mov_b32 s12, 0")
    A("v_mov_b32 v21, -1")
    if first_sleep:
        A(f"s_sleep {first_sleep}")
    A.label(lbl)
    A(f"global_load_dwordx4 v[8:11], v4, s[32:33] {SC}")
    A(f"global_load_dwordx4 v[12:15], v4, s[32:33] offset:16 {SC}")
    A("s_waitcnt vmcnt(0)")
    A("v_max3_u32 v16, v8, v9, v10")
    A("v_max3_u32 v17, v11, v12, v13")
    A("v_max3_u32 v16, v16, v14, v15")
    A("v_max_u32 v16, v16, v17")
    A("v_cmp_eq_u32 vcc, v21, v16")
    A("s_cmp_eq_u64 vcc, 0")
    A(f"s_cbranch_scc1 {lbl}_OK")
    A("s_add_u32 s12, s12, 1")
    A(f"s_cmp_ge_u32 s12, {SPIN_MAX}")
    A(f"s_cbranch_scc1 {lbl}_OK")
    A(f"s_sleep {KD_KSLEEP}")
    A(f"s_branch {lbl}")
    A.label(lbl + "_OK")
    stamp(A, 5)
    net = [(0, 1), (2, 3), (4, 5), (6, 7), (0, 2), (1, 3), (4, 6), (5, 7), (1, 2), (5, 6), (0, 4), (3, 7), (1, 5), (2, 6),
           (1, 4), (3, 6), (2, 4), (3, 5), (3, 4)]
    reg = list(range(8, 16))
    spare = 16
    for a_, b_ in net:
        A(f"v_max_u32 v{spare}, v{reg[a_]}, v{reg[b_]}")
        A(f"v_min_u32 v{reg[b_]}, v{reg[a_]}, v{reg[b_]}")
        reg[a_], spare = spare, reg[a_]
    steps = [("row_shr:1", "0xf"), ("row_shr:2", "0xf"), ("row_shr:4", "0xf"), ("row_shr:8", "0xf"),
             ("row_bcast:15", "0xa"), ("row_bcast:31", "0xc")]
    for r in range(4):
        A(f"v_mov_b32 v17, v{reg[0]}")
        A(f"v_mov_b32 v18, v{reg[1]}")
        for ctl, mask in steps:
            bc = " bound_ctrl:0" if ctl.startswith("row_shr") else ""
            A(f"v_min_u32_dpp v19, v17, v17 {ctl} row_mask:{mask} bank_mask:0xf{bc}")
            A(f"v_max_u32_dpp v17, v17, v17 {ctl} row_mask:{mask} bank_mask:0xf{bc}")
            A(f"v_max_u32_dpp v20, v18, v18 {ctl} row_mask:{mask} bank_mask:0xf{bc}")
            A("v_max_u32 v18, v19, v20")
        A(f"v_readlane_b32 s{40+2*r}, v17, 63")
        A(f"v_readlane_b32 s{41+2*r}, v18, 63")
        if r < 3:
            left = 8 - 2 * r
            for wsel in (40 + 2 * r, 41 + 2 * r):
                A(f"v_cmp_eq_u32 vcc, s{wsel}, v{reg[0]}")
                left -= 1
                for k in range(left):
                    A(f"v_cndmask_b32 v{reg[k]}, v{reg[k]}, v{reg[k+1]}, vcc")
    A("v_mov_b32 v16, s40")
    for r in range(1, 8):
        A(f"v_writelane_b32 v16, s{40+r}, {r}")
    A("s_lshl_b32 s6, s35, 5")
    A("v_lshlrev_b32 v17, 2, v2")
    A("v_add_u32 v17, s6, v17")
    A("v_cmp_gt_u32 vcc, 8, v2")
    A("v_and_b32 v23, 0x7ff, v16")
    A("v_sub_u32 v23, 2047, v23")
    A("v_lshrrev_b32 v23, 3, v23")
    A("v_lshlrev_b32 v23, 7, v23")
    A(f"v_add_u32 v23, {WS_RDY}, v23")
    A("s_and_saveexec_b64 s[20:21], vcc")
    A("ds_write_b32 v17, v16")
    A(f"global_load_dword v22, v23, s[32:33] {SC}")
    A("s_mov_b64 exec, s[20:21]")


def sel_part2(A):
    A("v_and_b32 v17, 31, v2")
    A("v_lshlrev_b32 v17, 2, v17")
    A("v_lshrrev_b32 v18, 5, v2")
    A("v_lshlrev_b32 v18, 6, v18")
    A("v_mov_b32 v19, 0")
    A("v_mov_b32 v20, 0")
    A("s_waitcnt lgkmcnt(0)")
    A("s_barrier")
    A("ds_read_b32 v16, v17")
    for i in range(4):
        A(f"ds_read_b128 {vr(60+4*i,4)}, v18 offset:{16*i}")
    A("s_waitcnt lgkmcnt(0)")
    sp = ["s[50:51]", "s[52:53]", "s[54:55]", "s[56:57]"]
    for i in range(0, 16, 4):
        for k in range(4):
            A(f"v_cmp_gt_u32 {sp[k]}, v{60+i+k}, v16")
        for k in range(4):
            A(f"v_addc_co_u32 v{19 + (k & 1)}, vcc, 0, v{19 + (k & 1)}, {sp[k]}")
    A("v_add_u32 v19, v19, v20")
    A("v_mov_b32 v20, v19")
    A("v_permlane32_swap_b32 v19, v20")
    A("v_add_u32 v19, v19, v20")
    A("v_cmp_gt_u32 vcc, 8, v19")
    A("v_cmp_gt_u32 s[22:23], 32, v2")
    A("s_and_b64 vcc, vcc, s[22:23]")
    A("v_lshlrev_b32 v19, 2, v19")
    A("s_lshl_b32 s6, s3, 6")
    A("s_add_u32 s6, s6, 256")
    A("v_add_u32 v19, s6, v19")
    A("s_and_saveexec_b64 s[20:21], vcc")
    A("ds_write_b32 v19, v16")
    A("s_mov_b64 exec, s[20:21]")


def kd(A):
    A("s_cmp_ge_u32 s2, 256")
    A("s_cbranch_scc1 KD_END")
    k_begin(A)
    A("s_load_dwordx2 s[32:33], s[0:1], 112")
    A("s_load_dwordx2 s[26:27], s[0:1], 0")
    A("s_load_dwordx2 s[28:29], s[0:1], 64")
    A("s_load_dwordx2 s[30:31], s[0:1], 96")
    A("v_lshrrev_b32 v1, 6, v0")
    A("v_readfirstlane_b32 s3, v1")
    A("v_and_b32 v2, 63, v0")
    A("s_and_b32 s35, s3, 3")
    A("s_cmp_ge_u32 s2, 192")
    A("s_cselect_b32 s36, 1, 0")
    A("s_sub_u32 s34, s2, 192")
    A("s_cmp_lt_u32 s34, 16")
    A("s_cselect_b32 s38, s36, 0")
    A("s_mov_b32 s37, s2")
    A("s_mul_i32 s7, s37, 20480")
    A("s_mul_i32 s8, s35, 5120")
    A("s_add_u32 s7, s7, s8")
    A(f"s_add_u32 s7, s7, {WS_WGU}")
    A("v_lshlrev_b32 v96, 4, v2")
    A("v_add_u32 v96, s7, v96")
    A("v_add_u32 v97, 4096, v96")
    A("v_lshrrev_b32 v5, 4, v2")
    A("v_and_b32 v4, 7, v2")
    A("v_bfe_u32 v6, v2, 3, 1")
    A("v_lshlrev_b32 v98, 7, v5")
    A("v_lshl_add_u32 v98, v4, 4, v98")
    A("v_lshl_add_u32 v98, v6, 9, v98")
    A("s_mul_i32 s5, s3, 3072")
    A("v_add_u32 v98, s5, v98")
    A("v_lshl_add_u32 v99, v6, 2, v5")
    A("s_mul_i32 s9, s3, 24")
    A("v_add_u32 v99, s9, v99")
    A(f"v_mul_u32_u24 v99, {LS}, v99")
    A("v_lshl_add_u32 v99, v4, 4, v99")
    A(f"v_add_u32 v99, {WS_ACT}, v99")
    A(f"v_add_u32 v94, {8*LS}, v99")
    A(f"v_add_u32 v93, {16*LS}, v99")
    A("s_mul_i32 s4, s34, 24576")
    A(f"s_add_u32 s4, s4, {WS_WD}")
    A("v_add_u32 v98, s4, v98")
    A(f"v_add_u32 v97, {64*24576}, v98".replace("v97", "v95"))
    FR, A2, FRB = 100, 112, 124
    A("v_mov_b32 v148, 0")
    A("v_mov_b32 v149, 0")
    A("v_mov_b32 v23, 0")

    def frag_loads(tag):
        A("s_cmp_eq_u32 s36, 1")
        A(f"s_cbranch_scc1 KD_L2_{tag}")
        for i in range(4):
            A(f"global_load_dwordx4 {vr(FR+4*i,4)}, v96, s[32:33] offset:{1024*i}")
        A(f"global_load_dwordx4 {vr(FR+16,4)}, v97, s[32:33]")
        A(f"s_branch KD_LX_{tag}")
        A.label(f"KD_L2_{tag}")
        for i in range(3):
            A(f"global_load_dwordx4 {vr(FR+4*i,4)}, v98, s[32:33] offset:{1024*i}")
        A("s_cmp_eq_u32 s38, 0")
        A(f"s_cbranch_scc1 KD_LX_{tag}")
        for i in range(3):
            A(f"global_load_dwordx4 {vr(FRB+4*i,4)}, v95, s[32:33] offset:{1024*i}")
        A.label(f"KD_LX_{tag}")

    A("s_cmp_lt_u32 s3, 4")
    A("s_cbranch_scc1 KD_ROW")
    A("s_waitcnt lgkmcnt(0)")
    A("s_cmp_eq_u32 s36, 0")
    A("s_cbranch_scc1 KD_HI2")
    A("s_sleep 32")
    frag_loads("hi")
    A.label("KD_HI2")
    A("s_barrier")
    sel_part1(A, "KD_KP", KD_F1_FIRST)
    A("s_branch KD_SEL2")
    A.label("KD_ROW")
    A("v_mov_b32 v18, 960")
    A("v_mov_b32 v19, 0")
    A("ds_write_b32 v18, v19")
    A("v_lshrrev_b32 v7, 5, v0")
    A("v_and_b32 v4, 31, v0")
    A("s_mul_i32 s4, s2, 10240")
    A("v_lshlrev_b32 v5, 4, v4")
    A("v_mul_u32_u24 v6, 1280, v7")
    A("v_add_u32 v6, v6, v5")
    A("v_add_u32 v8, s4, v6")
    A("v_lshlrev_b32 v3, 7, v4")
    A("v_lshl_add_u32 v3, v7, 4, v3")
    A(f"s_add_u32 s5, s4, {WS_AT}")
    A("v_add_u32 v3, s5, v3")
    A("v_add_u32 v9, 8192, v3")
    A("v_add_u32 v10, 4096, v3")
    AR, XR, WR = 20, 32, 44
    for i in range(4):
        A(f"v_mov_b32 v{AR+8+i}, 0")
        A(f"v_mov_b32 v{XR+8+i}, 0")
        A(f"v_mov_b32 v{WR+8+i}, 0")
    A("v_cmp_gt_u32 s[24:25], 16, v4")
    A("s_waitcnt lgkmcnt(0)")
    stamp(A, 1)
    A(f"global_load_dwordx4 {vr(AR,4)}, v3, s[32:33]")
    A(f"global_load_dwordx4 {vr(XR,4)}, v8, s[26:27]")
    A(f"global_load_dwordx4 {vr(XR+4,4)}, v8, s[26:27] offset:512")
    A(f"global_load_dwordx4 {vr(AR+4,4)}, v10, s[32:33]")
    A("s_mov_b64 exec, s[24:25]")
    A(f"global_load_dwordx4 {vr(AR+8,4)}, v9, s[32:33]")
    A(f"global_load_dwordx4 {vr(XR+8,4)}, v8, s[26:27] offset:1024")
    A(f"global_load_dwordx4 {vr(WR+8,4)}, v5, s[28:29] offset:1024")
    A("s_mov_b64 exec, -1")
    A(f"global_load_dwordx4 {vr(WR,4)}, v5, s[28:29]")
    A(f"global_load_dwordx4 {vr(WR+4,4)}, v5, s[28:29] offset:512")
    A(f"v_mov_b32 v12, {ONE_LO}")
    A(f"v_mov_b32 v13, {ONE_HI}")
    A("v_mov_b32 v14, 0x3f803f80")
    for r in (10, 11, 16, 17):
        A(f"v_mov_b32 v{r}, 0")
    A(f"v_add_u32 v9, {WS_L2}, v8")
    H, T = 56, 68
    A("s_waitcnt vmcnt(0)")
    stamp(A, 2)
    N = 12
    for i in range(N):
        A(f"v_lshlrev_b32 v{T+2*i}, 16, v{AR+i}")
        A(f"v_and_b32 v{T+2*i+1}, 0xffff0000, v{AR+i}")
    for i in range(N):
        A(f"v_dot2_f32_bf16 v{T+2*i}, v{XR+i}, v12, v{T+2*i}")
        A(f"v_dot2_f32_bf16 v{T+2*i+1}, v{XR+i}, v13, v{T+2*i+1}")
    for i in range(N):
        A(f"v_cvt_pk_bf16_f32 v{H+i}, v{T+2*i}, v{T+2*i+1}")
    for i in range(0, N, 2):
        A(f"v_dot2c_f32_bf16 v10, v{H+i}, v14")
        A(f"v_dot2c_f32_bf16 v11, v{H+i}, v{H+i}")
        A(f"v_dot2c_f32_bf16 v16, v{H+i+1}, v14")
        A(f"v_dot2c_f32_bf16 v17, v{H+i+1}, v{H+i+1}")
    A("s_nop 2")
    A("v_add_f32 v10, v10, v16")
    A("v_add_f32 v11, v11, v17")

    def red(regs, tmps):
        for sh in (8, 4, 2, 1):
            for r in regs:
                A(f"v_add_f32_dpp v{r}, v{r}, v{r} row_ror:{sh} row_mask:0xf bank_mask:0xf")
        for r, t in zip(regs, tmps):
            A(f"v_mov_b32 v{t}, v{r}")
        for r, t in zip(regs, tmps):
            A(f"v_permlane16_swap_b32 v{r}, v{t}")
        for r, t in zip(regs, tmps):
            A(f"v_add_f32 v{r}, v{r}, v{t}")
    red([10, 11], [16, 17])
    ln_finish(A, 10, 11, 15)
    A("v_sub_f32 v10, 0, v10")
    L, O = AR, XR
    for i in range(N):
        A(f"v_dot2_f32_bf16 v{T+2*i}, v{H+i}, v12, v10")
        A(f"v_dot2_f32_bf16 v{T+2*i+1}, v{H+i}, v13, v10")
    for i in range(N):
        A(f"v_cvt_pk_bf16_f32 v{L+i}, v{T+2*i}, v{T+2*i+1}")
    for i in range(N):
        A(f"v_lshlrev_b32 v{T+2*i}, 16, v{L+i}")
        A(f"v_and_b32 v{T+2*i+1}, 0xffff0000, v{L+i}")
    A("v_mov_b32 v16, v11")
    A("v_mov_b32 v17, v11")
    for i in range(N):
        A(f"v_pk_mul_f32 {vr(T+2*i,2)}, {vr(T+2*i,2)}, v[16:17]")
    for i in range(N):
        A(f"v_cvt_pk_bf16_f32 v{L+i}, v{T+2*i}, v{T+2*i+1}")
    A(f"global_store_dwordx4 v9, {vr(L,4)}, s[32:33] {SC}")
    A(f"global_store_dwordx4 v9, {vr(L+4,4)}, s[32:33] offset:512 {SC}")
    A("s_mov_b64 exec, s[24:25]")
    A(f"global_store_dwordx4 v9, {vr(L+8,4)}, s[32:33] offset:1024 {SC}")
    A("s_mov_b64 exec, -1")
    A("v_mov_b32 v14, 0")
    A("v_mov_b32 v15, 0")
    stamp(A, 3)
    for i in range(0, N, 2):
        A(f"v_dot2c_f32_bf16 v14, v{L+i}, v{WR+i}")
        A(f"v_dot2c_f32_bf16 v15, v{L+i+1}, v{WR+i+1}")
    A("s_nop 2")
    A("v_add_f32 v14, v14, v15")
    red([14], [15])
    A("v_cvt_pk_bf16_f32 v40, v14, v14")
    A("v_and_b32 v40, 0xffff0000, v40")
    A("v_ashrrev_i32 v41, 31, v40")
    A("v_or_b32 v41, 0x80000000, v41")
    A("v_xor_b32 v40, v40, v41")
    A("v_and_b32 v40, 0xffff0000, v40")
    A("s_lshl_b32 s6, s2, 3")
    A("v_add_u32 v42, s6, v7")
    A("v_sub_u32 v43, 2047, v42")
    A("v_or_b32 v40, v40, v43")
    A("v_mov_b32 v149, v40")
    A("v_lshlrev_b32 v42, 2, v7")
    A("v_cmp_eq_u32 vcc, 0, v4")
    A("s_mov_b64 exec, vcc")
    A("ds_write_b32 v42, v40 offset:896")
    A("s_mov_b64 exec, -1")
    A("s_waitcnt lgkmcnt(0)")
    A("s_barrier")
    A("s_cmp_lg_u32 s3, 0")
    A("s_cbranch_scc1 KD_K1")
    A("v_lshlrev_b32 v42, 2, v2")
    A("ds_read_b32 v40, v42 offset:896")
    A("s_lshr_b32 s6, s2, 2")
    A(f"s_mul_i32 s6, s6, {LS}")
    A("s_and_b32 s13, s2, 3")
    A("s_lshl_b32 s13, s13, 5")
    A("s_add_u32 s6, s6, s13")
    A(f"s_add_u32 s6, s6, {WS_RK}")
    A("v_add_u32 v42, s6, v42")
    A("s_waitcnt lgkmcnt(0)")
    A("s_mov_b64 exec, 0xff")
    A(f"global_store_dword v42, v40, s[32:33] {SC}")
    A("s_mov_b64 exec, -1")
    A.label("KD_K1")
    for i in range(N):
        A(f"v_lshlrev_b32 v{T+2*i}, 16, v{L+i}")
        A(f"v_and_b32 v{T+2*i+1}, 0xffff0000, v{L+i}")
    for i in range(N):
        A(f"v_dot2_f32_bf16 v{T+2*i}, v{H+i}, v12, v{T+2*i}")
        A(f"v_dot2_f32_bf16 v{T+2*i+1}, v{H+i}, v13, v{T+2*i+1}")
    O = 136
    for i in range(N):
        A(f"v_cvt_pk_bf16_f32 v{O+i}, v{T+2*i}, v{T+2*i+1}")
    A("v_mov_b32 v148, v8")
    stamp(A, 4)
    A("s_cmp_eq_u32 s3, 0")
    A("s_cbranch_scc1 KD_D0")
    A("s_waitcnt vmcnt(0)")
    A.label("KD_D0")
    A("s_waitcnt vmcnt(1)")
    frag_loads("lo")
    A("v_mov_b32 v18, 960")
    A("v_mov_b32 v19, 1")
    A("s_mov_b64 exec, 1")
    A("ds_add_u32 v18, v19")
    A("s_mov_b64 exec, -1")
    A("s_cmp_lg_u32 s3, 0")
    A("s_cbranch_scc1 KD_SEL2")
    A("s_mov_b32 s12, 0")
    A.label("KD_DW")
    A("ds_read_b32 v19, v18")
    A("s_waitcnt lgkmcnt(0)")
    A("v_readfirstlane_b32 s13, v19")
    A("s_cmp_ge_u32 s13, 4")
    A("s_cbranch_scc1 KD_DW_OK")
    A("s_add_u32 s12, s12, 1")
    A(f"s_cmp_lt_u32 s12, {1 << 22}")
    A("s_cbranch_scc1 KD_DW")
    A.label("KD_DW_OK")
    A("s_lshl_b32 s6, s2, 7")
    A(f"s_add_u32 s6, s6, {WS_RDY}")
    A("v_mov_b32 v42, s6")
    A("v_mov_b32 v40, 1")
    A("s_mov_b64 exec, 1")
    A(f"global_store_dword v42, v40, s[32:33] {SC}")
    A("s_mov_b64 exec, -1")
    A.label("KD_SEL2")
    sel_part2(A)
    A("s_cmp_lt_u32 s3, 4")
    A("s_cbranch_scc1 KD_RDY_OK")
    A("s_mov_b32 s12, 0")
    A("s_mov_b64 exec, 0xff")
    A.label("KD_RDY")
    A("s_waitcnt vmcnt(0)")
    A("v_cmp_ne_u32 vcc, 1, v22")
    A("s_cmp_eq_u64 vcc, 0")
    A("s_cbranch_scc1 KD_RDY_X")
    A("s_add_u32 s12, s12, 1")
    A(f"s_cmp_ge_u32 s12, {SPIN_MAX}")
    A("s_cbranch_scc1 KD_RDY_X")
    A("s_sleep 4")
    A(f"global_load_dword v22, v23, s[32:33] {SC}")
    A("s_branch KD_RDY")
    A.label("KD_RDY_X")
    A("s_mov_b64 exec, -1")
    A.label("KD_RDY_OK")
    A("s_barrier")
    A("s_cmp_lt_u32 s3, 4")
    A("s_cbranch_scc1 KD_ROWS2")
    A("s_cmp_eq_u32 s36, 1")
    A("s_cbranch_scc1 KD_F2")
    A("s_endpgm")
    A.label("KD_ROWS2")
    A("v_mov_b32 v17, s6")
    A("ds_read_b32 v16, v17 offset:28")
    A("s_waitcnt lgkmcnt(0)")
    A("v_cmp_lt_u32 vcc, v149, v16")
    A("s_mov_b64 exec, vcc")
    A("s_cbranch_execz KD_OUT2")
    A(f"global_store_dwordx4 v148, {vr(136,4)}, s[30:31]")
    A(f"global_store_dwordx4 v148, {vr(140,4)}, s[30:31] offset:512")
    A("s_and_b64 exec, vcc, s[24:25]")
    A("s_cbranch_execz KD_OUT2")
    A(f"global_store_dwordx4 v148, {vr(144,4)}, s[30:31] offset:1024")
    A.label("KD_OUT2")
    A("s_mov_b64 exec, -1")
    A.label("KD_NOOUT")
    A("s_cmp_eq_u32 s36, 1")
    A("s_cbranch_scc1 KD_F2")
    AFR = 60
    A("v_and_b32 v17, 7, v2")
    A("v_lshlrev_b32 v17, 2, v17")
    A("v_add_u32 v17, s6, v17")
    A("ds_read_b32 v16, v17")
    A("v_lshrrev_b32 v21, 4, v2")
    A("v_lshlrev_b32 v21, 4, v21")
    A("s_mul_i32 s6, s35, 320")
    A(f"s_add_u32 s6, s6, {WS_L2}")
    A("v_add_u32 v21, s6, v21")
    A("s_waitcnt lgkmcnt(0)")
    A("v_and_b32 v18, 0x7ff, v16")
    A("v_sub_u32 v18, 2047, v18")
    A("v_mul_u32_u24 v20, 1280, v18")
    A("v_add_u32 v20, v20, v21")
    for i in range(5):
        A(f"global_load_dwordx4 {vr(AFR+4*i,4)}, v20, s[32:33] offset:{64*i} {SC}")
    stamp(A, 6)
    for i in range(4):
        A(f"v_mov_b32 v{24+i}, 0")
    A("v_lshlrev_b32 v28, 4, v2")
    A("s_lshl_b32 s6, s3, 10")
    A("v_add_u32 v29, s6, v28")
    for i in range(5):
        A(f"s_waitcnt vmcnt({4-i})")
        A(f"v_mfma_f32_16x16x32_bf16 v[24:27], {vr(AFR+4*i,4)}, {vr(FR+4*i,4)}, v[24:27]")
    stamp(A, 7)
    A("ds_write_b128 v29, v[24:27] offset:1024")
    A("s_waitcnt lgkmcnt(0)")
    A("s_barrier")
    A("s_cmp_lg_u32 s35, 0")
    A("s_cbranch_scc1 KD_DONE")
    A("v_lshrrev_b32 v56, 3, v2")
    A("v_and_b32 v57, 7, v2")
    A("v_lshrrev_b32 v58, 2, v56")
    A("v_lshlrev_b32 v58, 8, v58")
    A("v_lshl_add_u32 v58, v57, 4, v58")
    A("v_and_b32 v59, 3, v56")
    A("v_lshl_add_u32 v58, v59, 2, v58")
    A("s_lshl_b32 s6, s3, 10")
    A("v_add_u32 v58, s6, v58")
    for w in range(4):
        A(f"ds_read_b32 v{40+w}, v58 offset:{1024 + 1024*w}")
        A(f"ds_read_b32 v{44+w}, v58 offset:{1024 + 1024*w + 128}")
    A("v_lshlrev_b32 v59, 1, v2")
    A(f"s_mul_i32 s6, s37, {LS}")
    A(f"s_add_u32 s6, s6, {WS_ACT}")
    A("v_add_u32 v59, s6, v59")
    A("s_waitcnt lgkmcnt(0)")
    A("v_add_f32 v40, v40, v41")
    A("v_add_f32 v42, v42, v43")
    A("v_add_f32 v44, v44, v45")
    A("v_add_f32 v46, v46, v47")
    A("v_add_f32 v40, v40, v42")
    A("v_add_f32 v44, v44, v46")
    A("v_cvt_pk_bf16_f32 v41, v40, v44")
    A("v_lshlrev_b32 v40, 16, v41")
    A("v_and_b32 v44, 0xffff0000, v41")
    A(f"v_mul_f32 v42, {hex(fbits(-LOG2E))}, v40")
    A("v_exp_f32 v42, v42")
    A("v_add_f32 v42, 1.0, v42")
    A("v_rcp_f32 v42, v42")
    A("v_mul_f32 v40, v40, v42")
    A("v_cvt_pk_bf16_f32 v40, v40, v40")
    A("v_and_b32 v40, 0xffff0000, v40")
    A("v_mul_f32 v40, v40, v44")
    A("v_cvt_pk_bf16_f32 v40, v40, v40")
    A(f"global_store_short v59, v40, s[32:33] {SC}")
    A.label("KD_DONE")
    k_end(A, 2)

    A.label("KD_F2")
    for i in range(4):
        A(f"v_mov_b32 v{36+i}, 0")
        A(f"v_mov_b32 v{32+i}, 0")
        A(f"v_mov_b32 v{52+i}, 0")
    A("s_add_u32 s39, s34, 64")
    A("s_cmp_eq_u32 s3, 0")
    A("s_cselect_b32 s39, s34, s39")
    A("s_cselect_b32 s9, 1, 0")
    A("s_cmp_eq_u32 s3, 1")
    A("s_cselect_b32 s10, s38, 0")
    A("s_or_b32 s9, s9, s10")
    A("s_cmp_eq_u32 s9, 0")
    A("s_cbranch_scc1 KD_F2SL")
    A("v_lshrrev_b32 v17, 3, v2")
    A("v_lshlrev_b32 v17, 2, v17")
    A("v_add_u32 v17, s6, v17")
    A("ds_read_b32 v8, v17")
    A("v_and_b32 v16, 7, v2")
    A("s_lshl_b32 s6, s39, 3")
    A("v_add_u32 v16, s6, v16")
    A("s_lshl_b32 s6, s39, 7")
    A(f"s_add_u32 s6, s6, {WS_AT}")
    A("v_and_b32 v17, 7, v2")
    A("v_lshlrev_b32 v17, 1, v17")
    A("v_add_u32 v17, s6, v17")
    A("s_waitcnt lgkmcnt(0)")
    A("v_and_b32 v40, 0x7ff, v8")
    A("v_sub_u32 v40, 2047, v40")
    A("v_mul_u32_u24 v36, 1280, v40")
    A("v_lshl_add_u32 v36, v16, 1, v36")
    A(f"v_add_u32 v18, {WS_L2}, v36")
    A(f"global_load_ushort v20, v18, s[32:33] {SC}")
    A("global_load_ushort v24, v36, s[26:27]")
    A("v_lshrrev_b32 v18, 3, v40")
    A("v_mul_u32_u24 v18, 10240, v18")
    A("v_and_b32 v19, 7, v40")
    A("v_lshl_add_u32 v18, v19, 4, v18")
    A("v_add_u32 v18, v18, v17")
    A("global_load_ushort v44, v18, s[32:33]")
    A("v_and_b32 v12, 0xffff0000, v8")
    A("v_ashrrev_i32 v48, 31, v12")
    A("v_not_b32 v48, v48")
    A("v_or_b32 v48, 0x80000000, v48")
    A("v_xor_b32 v12, v12, v48")
    A("v_and_b32 v12, 0xffff0000, v12")
    A(f"v_mul_f32 v12, {hex(fbits(-LOG2E))}, v12")
    A("v_exp_f32 v12, v12")
    A("v_add_f32 v12, 1.0, v12")
    A("v_rcp_f32 v12, v12")
    bf16_round(A, 12)
    A("s_waitcnt vmcnt(0)")
    A("v_lshlrev_b32 v24, 16, v24")
    A("v_lshlrev_b32 v44, 16, v44")
    A("v_lshlrev_b32 v20, 16, v20")
    A("v_add_f32 v24, v24, v44")
    bf16_round(A, 24)
    A(f"s_sleep {KD_A0}")
    A("s_branch KD_F2B2")
    A.label("KD_F2SL")
    A(f"s_sleep {KD_A1}")
    A.label("KD_F2B2")
    stamp(A, 6)
    A("s_mov_b32 s12, 0")
    A("v_mov_b32 v61, 0xffff")
    A.label("KD_POLL")
    for i in range(3):
        A(f"global_load_dwordx4 {vr(A2+4*i,4)}, v{(99, 94, 93)[i]}, s[32:33] {SC}")
    A("s_waitcnt vmcnt(0)")
    A(f"v_pk_max_u16 v62, v{A2}, v{A2+1}")
    A(f"v_pk_max_u16 v63, v{A2+2}, v{A2+3}")
    for i in range(4, 12, 2):
        A(f"v_pk_max_u16 v62, v62, v{A2+i}")
        A(f"v_pk_max_u16 v63, v63, v{A2+i+1}")
    A("v_pk_max_u16 v62, v62, v63")
    A("v_lshrrev_b32 v63, 16, v62")
    A("v_and_b32 v62, 0xffff, v62")
    A("v_max_u32 v62, v62, v63")
    A("v_cmp_eq_u32 vcc, v61, v62")
    A("s_cmp_eq_u64 vcc, 0")
    A("s_cbranch_scc1 KD_ACT")
    A("s_add_u32 s12, s12, 1")
    A(f"s_cmp_ge_u32 s12, {SPIN_MAX}")
    A("s_cbranch_scc1 KD_ACT")
    A(f"s_sleep {KC_SLEEP}")
    A("s_branch KD_POLL")
    A.label("KD_ACT")
    A("v_lshlrev_b32 v28, 4, v2")
    A("s_lshl_b32 s6, s3, 10")
    A("v_add_u32 v29, s6, v28")
    for i in range(3):
        A(f"v_mfma_f32_16x16x32_bf16 v[32:35], {vr(A2+4*i,4)}, {vr(FR+4*i,4)}, v[32:35]")
    A("s_cmp_eq_u32 s38, 0")
    A("s_cbranch_scc1 KD_NOB")
    for i in range(3):
        A(f"v_mfma_f32_16x16x32_bf16 v[52:55], {vr(A2+4*i,4)}, {vr(FRB+4*i,4)}, v[52:55]")
    for i in range(4):
        A(f"v_mov_b32 v{64+i}, v{52+i}")
    for i in range(4):
        A(f"v_permlane32_swap_b32 v{52+i}, v{64+i}")
    for i in range(4):
        A(f"v_add_f32_dpp v{52+i}, v{64+i}, v{52+i} row_shl:8 row_mask:0xf bank_mask:0xf")
    A("ds_write_b128 v29, v[52:55] offset:9216")
    A.label("KD_NOB")
    stamp(A, 7)
    for i in range(4):
        A(f"v_mov_b32 v{60+i}, v{32+i}")
    for i in range(4):
        A(f"v_permlane32_swap_b32 v{32+i}, v{60+i}")
    for i in range(4):
        A(f"v_add_f32_dpp v{32+i}, v{60+i}, v{32+i} row_shl:8 row_mask:0xf bank_mask:0xf")
    A("ds_write_b128 v29, v[32:35] offset:1024")
    A("s_waitcnt lgkmcnt(0)")
    A("s_barrier")
    A("s_cmp_eq_u32 s9, 0")
    A("s_cbranch_scc1 KD_DONE2")
    A("v_lshrrev_b32 v56, 3, v2")
    A("v_and_b32 v57, 7, v2")
    A("v_lshrrev_b32 v58, 2, v56")
    A("v_lshlrev_b32 v58, 8, v58")
    A("v_lshl_add_u32 v58, v57, 4, v58")
    A("v_and_b32 v59, 3, v56")
    A("v_lshl_add_u32 v58, v59, 2, v58")
    A("s_lshl_b32 s6, s3, 13")
    A("v_add_u32 v58, s6, v58")
    for w in range(8):
        A(f"ds_read_b32 v{40+w}, v58 offset:{1024 + 1024*w}")
    A("s_waitcnt lgkmcnt(0)")
    for st in (4, 2, 1):
        for j in range(st):
            A(f"v_add_f32 v{40+j}, v{40+j}, v{40+st+j}")
    bf16_round(A, 40)
    A("v_mul_f32 v40, v40, v12")
    bf16_round(A, 40)
    A("v_add_f32 v40, v40, v20")
    bf16_round(A, 40)
    A("v_add_f32 v40, v40, v24")
    A("v_cvt_pk_bf16_f32 v40, v40, v40")
    A("global_store_short v36, v40, s[30:31]")
    A.label("KD_DONE2")
    k_end(A, 2)
    A.label("KD_END")
    A("s_endpgm")


KD_RDY_FIRST = int(os.environ.get("KD_RDY_FIRST", "24"))
KD_A0 = int(os.environ.get("KD_A0", "16"))
KD_A1 = int(os.environ.get("KD_A1", "36"))

KD_TMPL = """.amdhsa_kernel {name}
  .amdhsa_next_free_vgpr {vgpr}
  .amdhsa_next_free_sgpr 102
  .amdhsa_accum_offset {acc}
  .amdhsa_group_segment_fixed_size 0
  .amdhsa_kernarg_size 120
  .amdhsa_user_sgpr_count 2
  .amdhsa_user_sgpr_kernarg_segment_ptr 1
  .amdhsa_system_sgpr_workgroup_id_x 1
.end_amdhsa_kernel
"""

HEADER = """; Kernarg layout (120 bytes, ptrs only): in0..in11 at 0..88, d_out 96, d_debug 104, d_ws 112
"""


def build(kernels):
    s = HEADER
    for label, fn, grid, block, lds, vgpr in kernels:
        s += f"; @launch kernel={label} grid=({grid},1,1) block=({block},1,1) lds={lds}\n"
    s += '.amdgcn_target "amdgcn-amd-amdhsa--gfx950"\n.text\n'
    done = set()
    for label, fn, grid, block, lds, vgpr in kernels:
        if label in done:
            continue
        done.add(label)
        A = Asm()
        fn(A)
        s += f".globl {label}\n.p2align 8\n.type {label},@function\n{label}:\n" + A.finish() + "\n"
    s += '.section .rodata,"a"\n'
    done = set()
    for label, fn, grid, block, lds, vgpr in kernels:
        if label in done:
            continue
        done.add(label)
        s += ".p2align 6\n" + KD_TMPL.format(name=label, vgpr=vgpr, acc=min(256, (vgpr + 3) // 4 * 4))
    return s


PREFILL[0] = True
KERNELS = [
    ("ka_kernel", ka, 256, 1024, KA_LDS, 128),
    ("kd_kernel", kd, 256, 512, KD_LDS, 152),
]

if __name__ == "__main__":
    if len(sys.argv) > 2 and sys.argv[2] == "stamp":
        STAMP[0] = True
    text = build(KERNELS)
    open(sys.argv[1], "w").write(text)
    print("wrote", sys.argv[1], len(text), "bytes")
```

```python
import sys, os
sys.path.insert(0, os.path.dirname(os.path.abspath(__file__)))
import gen3
from gen3 import *

KG_SZ = 2 * K1_BUF
KEO_ST = 27712
KEO_BASE = 0
KA_KE, KA_KO = 0, 4160
KA_U = 12 * KG_SZ
U_ST = 4608
KA_T = KA_U + 4 * U_ST
T_ST = 1600
KA_SC = KA_T + 4 * T_ST
KA_LN = KA_SC + 64
KA_CNT = KA_LN
KA_STATS = KA_LN + 128
KA_STAGE = KA_LN + 192
KA_LDS = KA_STAGE + 10240 + 2560


def group_sync(A, idx, n, lbl):
    A("s_waitcnt lgkmcnt(0)")
    A(f"v_mov_b32 v18, {KA_CNT + 4*idx}")
    A("v_mov_b32 v19, 1")
    A("s_mov_b64 exec, 1")
    A("ds_add_u32 v18, v19")
    A("s_mov_b64 exec, -1")
    A("s_mov_b32 s12, 0")
    A.label(lbl)
    A("ds_read_b32 v19, v18")
    A("s_waitcnt lgkmcnt(0)")
    A("v_readfirstlane_b32 s13, v19")
    A(f"s_cmp_ge_u32 s13, {n}")
    A(f"s_cbranch_scc1 {lbl}_OK")
    A("s_add_u32 s12, s12, 1")
    A(f"s_cmp_lt_u32 s12, {1 << 22}")
    A(f"s_cbranch_scc1 {lbl}")
    A.label(lbl + "_OK")
NPROD = 96
PREFILL = [False]
TLBW = int(os.environ.get('TLBW', '0'))
KEY_STRIDE = int(os.environ.get('KEY_STRIDE', '32'))
WS_FLAG = 0x0930000
WS_EPOCH = 0x0928000
SC = os.environ.get('SCMOD', 'sc1')
PMOD = os.environ.get('PMOD', SC)
FMOD = os.environ.get('FMOD', SC)
SPIN_MAX = 1 << 16
POLL_SLEEP = int(os.environ.get('POLL_SLEEP', '8'))
POLL_FIRST = int(os.environ.get('POLL_FIRST', '32'))
FLAG64 = int(os.environ.get('FLAG64', '0'))


def k_end16(A, kidx):
    if STAMP[0]:
        A(f"s_memtime s[{60+2*(NSTAMP-2)}:{61+2*(NSTAMP-2)}]")
        A("s_waitcnt vmcnt(0) lgkmcnt(0)")
        A("s_memrealtime s[96:97]")
        A(f"s_memtime s[{60+2*(NSTAMP-1)}:{61+2*(NSTAMP-1)}]")
        A("s_mov_b64 exec, -1")
        A("v_lshrrev_b32 v1, 6, v0")
        A("s_lshl_b32 s98, s2, 4")
        A("v_add_u32 v1, s98, v1")
        A("v_lshlrev_b32 v1, 7, v1")
        A(f"v_add_u32 v1, {WS_STAMP + kidx * 0x200000}, v1")
        A("s_waitcnt lgkmcnt(0)")
        A("v_mov_b32 v2, s94")
        A("v_mov_b32 v3, s95")
        A("v_mov_b32 v4, s96")
        A("v_mov_b32 v5, s97")
        A("global_store_dwordx4 v1, v[2:5], s[32:33]")
        for i in range(0, NSTAMP, 2):
            for j in range(4):
                A(f"v_mov_b32 v{2+j}, s{60+2*i+j}")
            A(f"global_store_dwordx4 v1, v[2:5], s[32:33] offset:{16+8*i}")
    A("s_endpgm")


gen3.k_end = k_end16
k_end = k_end16


def arrive(A, idx):
    A("s_waitcnt lgkmcnt(0)")
    A(f"v_mov_b32 v18, {KA_CNT + 4*idx}")
    A("v_mov_b32 v19, 1")
    A("s_mov_b64 exec, 1")
    A("ds_add_u32 v18, v19")
    A("s_mov_b64 exec, -1")


def wait_count(A, idx, n, lbl, sleep=1):
    A(f"v_mov_b32 v18, {KA_CNT + 4*idx}")
    A("s_mov_b32 s12, 0")
    A.label(lbl)
    A("ds_read_b32 v19, v18")
    A("s_waitcnt lgkmcnt(0)")
    A("v_readfirstlane_b32 s13, v19")
    A(f"s_cmp_ge_u32 s13, {n}")
    A(f"s_cbranch_scc1 {lbl}_OK")
    A("s_add_u32 s12, s12, 1")
    if sleep:
        A(f"s_sleep {sleep}")
    A(f"s_cmp_lt_u32 s12, {1 << 22}")
    A(f"s_cbranch_scc1 {lbl}")
    A.label(lbl + "_OK")


def arrive_s(A, base_idx, sreg):
    A("s_waitcnt lgkmcnt(0)")
    A(f"s_lshl_b32 s12, s{sreg}, 2")
    A(f"s_add_u32 s12, s12, {KA_CNT + 4*base_idx}")
    A("v_mov_b32 v18, s12")
    A("v_mov_b32 v19, 1")
    A("s_mov_b64 exec, 1")
    A("ds_add_u32 v18, v19")
    A("s_mov_b64 exec, -1")


def wait_s(A, base_idx, sreg, n, lbl):
    A(f"s_lshl_b32 s12, s{sreg}, 2")
    A(f"s_add_u32 s12, s12, {KA_CNT + 4*base_idx}")
    A("v_mov_b32 v18, s12")
    A("s_mov_b32 s12, 0")
    A.label(lbl)
    A("ds_read_b32 v19, v18")
    A("s_waitcnt lgkmcnt(0)")
    A("v_readfirstlane_b32 s13, v19")
    A(f"s_cmp_ge_u32 s13, {n}")
    A(f"s_cbranch_scc1 {lbl}_OK")
    A("s_add_u32 s12, s12, 1")
    A("s_sleep 1")
    A(f"s_cmp_lt_u32 s12, {1 << 22}")
    A(f"s_cbranch_scc1 {lbl}")
    A.label(lbl + "_OK")


def poll_flags(A, lbl):
    if FLAG64 == 2:
        A("v_lshlrev_b32 v3, 7, v2")
        A(f"v_add_u32 v3, {WS_FLAG}, v3")
        for j in range(1, 4):
            A(f"v_add_u32 v{44+j}, {8192*j}, v3")
    elif FLAG64:
        A("v_lshlrev_b32 v3, 7, v2")
        A(f"v_add_u32 v3, {WS_FLAG}, v3")
    else:
        A("v_lshrrev_b32 v3, 4, v2")
        A("v_lshlrev_b32 v3, 7, v3")
        A("v_and_b32 v10, 15, v2")
        A("v_lshl_add_u32 v3, v10, 2, v3")
        A(f"v_add_u32 v3, {WS_FLAG}, v3")
    A("s_mov_b32 s12, 0")
    if POLL_FIRST:
        A(f"s_sleep {POLL_FIRST}")
    A.label(lbl)
    if FLAG64 == 2:
        A(f"global_load_dword v40, v3, s[32:33] {PMOD}")
        for j in range(1, 4):
            A(f"global_load_dword v{40+j}, v{44+j}, s[32:33] {PMOD}")
    elif FLAG64:
        A(f"global_load_dwordx4 v[40:43], v3, s[32:33] {PMOD}")
    else:
        for j in range(4):
            A(f"global_load_dword v{40+j}, v3, s[32:33] offset:{512*j} {PMOD}")
    A("s_waitcnt vmcnt(0)")
    A("v_cmp_ne_u32 vcc, s15, v40")
    A("v_cmp_ne_u32 s[20:21], s15, v41")
    A("v_cmp_ne_u32 s[22:23], s15, v42")
    A("v_cmp_ne_u32 s[24:25], s15, v43")
    A("s_or_b64 vcc, vcc, s[20:21]")
    A("s_or_b64 s[22:23], s[22:23], s[24:25]")
    A("s_or_b64 vcc, vcc, s[22:23]")
    A("s_cmp_eq_u64 vcc, 0")
    A(f"s_cbranch_scc1 {lbl}_SEEN")
    A("s_add_u32 s12, s12, 1")
    A(f"s_cmp_ge_u32 s12, {SPIN_MAX}")
    A(f"s_cbranch_scc1 {lbl}_SEEN")
    A(f"s_sleep {POLL_SLEEP}")
    A(f"s_branch {lbl}")
    A.label(lbl + "_SEEN")


def poll_epoch(A, lbl):
    A(f"v_mov_b32 v3, {WS_EPOCH}")
    A("s_mov_b32 s12, 0")
    A("s_sleep 48")
    A.label(lbl)
    A(f"global_load_dword v40, v3, s[32:33] {SC}")
    A("s_waitcnt vmcnt(0)")
    A("v_readfirstlane_b32 s13, v40")
    A("s_cmp_eq_u32 s13, s15")
    A(f"s_cbranch_scc1 {lbl}_SEEN")
    A("s_add_u32 s12, s12, 1")
    A(f"s_cmp_ge_u32 s12, {SPIN_MAX}")
    A(f"s_cbranch_scc1 {lbl}_SEEN")
    A("s_sleep 16")
    A(f"s_branch {lbl}")
    A.label(lbl + "_SEEN")


def kgen_wave(A):
    A(f"s_mov_b32 s90, {L2E_HI}")
    A(f"s_mov_b32 s91, {L2E_LO}")
    A(f"s_mov_b32 s92, {LN2}")
    A("v_and_b32 v3, 15, v2")
    A("v_lshrrev_b32 v4, 4, v2")
    A("s_cmp_eq_u32 s36, 1")
    A("s_cbranch_scc1 KA_A1")
    A("s_cmp_eq_u32 s36, 2")
    A("s_cbranch_scc1 KA_A2")
    A("v_lshrrev_b32 v5, 1, v4")
    A("v_lshlrev_b32 v5, 7, v5")
    A("v_lshl_add_u32 v5, v3, 3, v5")
    A("v_and_b32 v6, 1, v4")
    A("v_lshl_add_u32 v5, v6, 2, v5")
    A("s_branch KA_A3")
    A.label("KA_A1")
    A("v_lshlrev_b32 v5, 1, v3")
    A("v_add_u32 v5, v5, v4")
    A("v_add_u32 v5, 384, v5")
    A("v_lshlrev_b32 v6, 4, v4")
    A("v_add_u32 v6, v6, v3")
    A("v_add_u32 v6, 480, v6")
    A("v_cmp_gt_u32 vcc, 2, v4")
    A("v_cndmask_b32 v5, v6, v5, vcc")
    A("s_branch KA_A3")
    A.label("KA_A2")
    A("v_lshlrev_b32 v5, 6, v4")
    A("v_lshlrev_b32 v6, 2, v3")
    A("v_add_u32 v5, v5, v6")
    A("v_add_u32 v5, 256, v5")
    A("v_lshlrev_b32 v6, 2, v2")
    A("v_add_u32 v6, 520, v6")
    A("v_cmp_gt_u32 vcc, 2, v4")
    A("v_cndmask_b32 v5, v6, v5, vcc")
    A("v_mov_b32 v6, 640")
    A("v_cmp_eq_u32 vcc, 32, v2")
    A("v_cndmask_b32 v5, v5, v6, vcc")
    A.label("KA_A3")
    A(f"s_mul_i32 s11, s37, {T_ST}")
    A(f"s_add_u32 s11, s11, {KA_T}")
    A("v_lshlrev_b32 v29, 1, v5")
    A("v_add_u32 v29, s11, v29")
    A(f"v_mul_u32_u24 v32, {K1_ROWB}, v3")
    A("v_lshlrev_b32 v5, 4, v4")
    A("v_add_u32 v32, v32, v5")
    A("v_add_u32 v32, s7, v32")
    AW = 120
    A("v_lshlrev_b32 v5, 2, v2")
    A(f"v_add_u32 v{AW}, s7, v5")
    for k in range(1, 8):
        A(f"v_add_u32 v{AW+k}, {(k//4)*K1_BUF + (k%4)*4*K1_ROWB}, v{AW}")
    stamp(A, 1)
    A("s_waitcnt lgkmcnt(0)")
    A("s_bitcmp1_b32 s34, 0")
    A("s_cbranch_scc1 KA_ODD")
    A("s_lshl_b32 s6, s6, 16")
    A.label("KA_ODD")
    A("s_and_b32 s6, s6, 0xffff0000")
    A("v_mov_b32 v5, s6")
    exp_bf16(A, 33, 5, 6, 7)
    A("s_waitcnt vmcnt(0)")
    stamp(A, 2)
    for i in range(6):
        A(f"v_and_b32 v{14+i}, 0x7fff, v{14+i}")
    A("v_max3_u32 v14, v14, v15, v16")
    A("v_max3_u32 v17, v17, v18, v19")
    A("v_max_u32 v14, v14, v17")
    A("v_lshlrev_b32 v10, 16, v10")
    A("v_lshlrev_b32 v11, 16, v11")
    A("v_mul_f32 v6, s90, v10")
    A("v_max_u32_dpp v14, v14, v14 row_shr:1 row_mask:0xf bank_mask:0xf")
    A("v_fma_f32 v7, v10, s90, -v6")
    A("v_exp_f32 v34, v6")
    A("v_max_u32_dpp v14, v14, v14 row_shr:2 row_mask:0xf bank_mask:0xf")
    A("v_fma_f32 v7, v10, s91, v7")
    A("v_mul_f32 v35, v11, v33")
    A("v_max_u32_dpp v14, v14, v14 row_shr:4 row_mask:0xf bank_mask:0xf")
    A("v_mul_f32 v7, s92, v7")
    A(f"v_mul_f32 v35, {INV2PI}, v35")
    A("v_max_u32_dpp v14, v14, v14 row_shr:8 row_mask:0xf bank_mask:0xf")
    A("v_fma_f32 v34, v34, v7, v34")
    A("v_lshlrev_b32 v12, 16, v12")
    A("v_max_u32_dpp v14, v14, v14 row_bcast:15 row_mask:0xa bank_mask:0xf")
    A("v_cvt_pk_bf16_f32 v34, v34, v34")
    A("v_lshlrev_b32 v13, 16, v13")
    A("v_max_u32_dpp v14, v14, v14 row_bcast:31 row_mask:0xc bank_mask:0xf")
    A("v_and_b32 v34, 0xffff0000, v34")
    A("v_mul_f32 v34, v34, v33")
    A("v_readlane_b32 s8, v14, 63")
    A("v_mul_f32 v34, s90, v34")
    A("v_sub_f32 v34, 0, v34")
    A("s_lshr_b32 s8, s8, 7")
    A("s_max_u32 s8, s8, 6")
    A("s_min_u32 s8, s8, 253")
    A("s_sub_u32 s9, 260, s8")
    A("s_lshl_b32 s9, s9, 23")
    A("s_sub_u32 s10, s8, 132")

    def direct(t, p):
        lit = "1.0" if p == 1 else hex(fbits(float(p)))
        A(f"v_mul_f32 v{t}, {lit}, v34")
        A(f"v_mul_f32 v{t+1}, {lit}, v35")
        A(f"v_fract_f32 v{t+1}, v{t+1}")

    def direct2(t):
        A(f"v_exp_f32 v{t}, v{t}")
        A(f"v_cos_f32 v{t+2}, v{t+1}")
        A(f"v_sin_f32 v{t+3}, v{t+1}")

    def direct_fin(d, t):
        A(f"v_mul_f32 v{d}, v{t}, v{t+2}")
        A(f"v_mul_f32 v{d+1}, v{t}, v{t+3}")

    C = 36
    g = {i: 38 + 2 * (i - 1) for i in range(1, 9)}
    G128, G256, G512, G1024 = 54, 56, 58, 60
    T = [62, 64, 66, 68, 70, 72, 74, 76]
    PK = list(range(78, 86))
    BF, AF = 86, 102
    h = {1: g[8]}
    for i in range(2, 9):
        h[i] = AF + 2 * (i - 2)
    AF2 = 62
    direct(62, 1)
    direct(66, 8)
    direct(70, 128)
    direct2(62)
    direct2(66)
    direct2(70)
    A(f"v_mul_f32 v{C}, s9, v12")
    A(f"v_mul_f32 v{C+1}, s9, v13")
    A("v_ldexp_f32 v6, v33, s10")
    A("s_lshl_b32 s11, s37, 2")
    A(f"s_add_u32 s11, s11, {KA_SC}")
    A("v_mov_b32 v7, s11")
    A("ds_write_b32 v7, v6")
    direct_fin(g[1], 62)
    direct_fin(g[8], 66)
    direct_fin(G128, 70)
    stamp(A, 3)

    def wr(rows_src, buf, neg):
        regs = []
        for k, (row, src) in enumerate(rows_src):
            p = PK[k % 8]
            if src is None:
                A(f"v_mov_b32 v{p}, 0x00003c00")
            else:
                A(f"v_cvt_pk_f16_f32 v{p}, v{src}, {'-' if neg else ''}v{src+1}")
            regs.append(p)
        k = 0
        n = 0
        while k < len(rows_src):
            r0 = rows_src[k][0]
            if k + 1 < len(rows_src) and rows_src[k + 1][0] // 4 == r0 // 4:
                r1 = rows_src[k + 1][0]
                A(f"ds_write2_b32 v{AW + 4*buf + r0//4}, v{regs[k]}, v{regs[k+1]} offset0:{(r0%4)*72} offset1:{(r1%4)*72}")
                k += 2
            else:
                A(f"ds_write_b32 v{AW + 4*buf + r0//4}, v{regs[k]} offset:{(r0%4)*K1_ROWB}")
                k += 1
            n += 1
        return n

    def frags(dst, buf):
        for j in range(4):
            A(f"ds_read_b128 {vr(dst+4*j,4)}, v32 offset:{buf*K1_BUF + 64*j}")

    def mfmas(acc, a, b):
        for j in range(4):
            A(f"v_mfma_f32_16x16x32_f16 {vr(acc,4)}, {vr(a+4*j,4)}, {vr(b+4*j,4)}, {vr(acc,4)}")

    cmul_batch(A, [(g[2], g[1], g[1]), (h[2], h[1], h[1]), (G256, G128, G128)])
    cmul_batch(A, [(g[3], g[2], g[1]), (g[4], g[2], g[2]), (h[3], h[2], h[1]), (h[4], h[2], h[2]), (G512, G256, G256)])
    cmul_batch(A, [(g[5], g[4], g[1]), (g[6], g[4], g[2]), (g[7], g[4], g[3]), (h[5], h[4], h[1]), (h[6], h[4], h[2]),
                   (h[7], h[4], h[3]), (h[8], h[4], h[4]), (G1024, G512, G512)])
    for i in range(4):
        A(f"v_mov_b32 v{20+i}, 0")
        A(f"v_mov_b32 v{24+i}, 0")
        A(f"v_mov_b32 v{4+i}, 0")
    wr([(0, None)] + [(i, h[i]) for i in range(1, 8)], 0, False)
    cmul_batch(A, [(T[i - 1], h[8], h[i]) for i in range(1, 8)])
    wr([(8, h[8])] + [(8 + i, T[i - 1]) for i in range(1, 8)], 0, False)
    frags(BF, 0)
    stamp(A, 4)
    c128 = T[7]
    cmul_batch(A, [(T[i - 1], C, g[i]) for i in range(1, 8)] + [(c128, C, G128)])
    wr([(0, C)] + [(i, T[i - 1]) for i in range(1, 8)], 1, True)
    cmul_batch(A, [(T[i - 1], c128, g[i]) for i in range(1, 8)])
    wr([(8, c128)] + [(8 + i, T[i - 1]) for i in range(1, 8)], 1, True)
    frags(AF, 1)
    cmul_batch(A, [(T[0], C, G512), (T[4], C, G1024)])
    cmul_batch(A, [(T[1], T[0], G128), (T[2], T[0], G256), (T[5], T[4], G256), (T[6], T[4], G512)])
    cmul_batch(A, [(T[3], T[2], G128), (T[7], T[6], G256)])
    n1 = wr([(i, T[i]) for i in range(4)] + [(8 + i, T[4 + i]) for i in range(4)], 0, True)
    c2048 = g[1]
    cmul_batch(A, [(c2048, T[4], G1024)])
    D4 = [g[3], g[5], g[7], g[8]]
    cmul_batch(A, [(D4[i], T[i], g[4]) for i in range(4)])
    A("s_waitcnt lgkmcnt(%d)" % n1)
    mfmas(20, AF, BF)
    cmul_batch(A, [(T[i], T[4 + i], G128) for i in range(4)])
    wr([(4 + i, D4[i]) for i in range(4)] + [(12 + i, T[i]) for i in range(4)], 0, True)
    frags(AF, 0)
    stamp(A, 5)
    cmul_batch(A, [(T[0], C, G256)])
    cmul_batch(A, [(T[4], T[0], G128), (T[1], T[0], g[2]), (T[2], T[0], g[4]), (T[3], T[0], g[6])])
    cmul_batch(A, [(T[5], T[4], g[2]), (T[6], T[4], g[4]), (T[7], T[4], g[6])])
    n2 = wr([(i, T[i]) for i in range(8)], 1, True)
    n2 += wr([(8, c2048)], 1, True)
    A("s_waitcnt lgkmcnt(%d)" % n2)
    mfmas(24, AF, BF)
    frags(AF2, 1)
    A("s_waitcnt lgkmcnt(0)")
    mfmas(4, AF2, BF)
    A("v_lshlrev_b32 v28, 4, v2")
    A("v_add_u32 v30, s7, v28")
    for t, r in enumerate((20, 24, 4)):
        A(f"ds_write_b128 v30, {vr(r,4)} offset:{1024*t}")
    stamp(A, 6)


def expand_round(A, r, lbl):
    A("v_lshlrev_b32 v28, 4, v2")
    A("v_add_u32 v28, s39, v28")
    A("s_mov_b32 s22, 0x01000100")
    A("s_mov_b32 s23, 0x03020302")
    if r < 2:
        A("v_lshlrev_b32 v26, 1, v2")
        A(f"v_sub_u32 v26, {2*(384+255) - 128*r}, v26")
        A("v_add_u32 v26, s40, v26")
        A("ds_read_u16 v40, v26")
        A("ds_read_u16 v41, v26 offset:2")
        A("v_and_b32 v16, 1, v2")
        A("v_cmp_eq_u32 s[20:21], 1, v16")
        A("s_waitcnt lgkmcnt(0)")
        w = 40
        A(f"v_lshl_or_b32 v{w}, v{w+1}, 16, v{w}")
        A(f"v_perm_b32 v{w+2}, v{w}, v{w}, s23")
        A(f"v_perm_b32 v{w+4}, v{w}, v{w}, s22")
        A(f"v_alignbit_b32 v{w+1}, v{w}, v{w}, 16")
        A(f"v_mov_b32 v{w+5}, v{w+4}")
        A(f"v_mov_b32 v{w+6}, v{w+2}")
        A(f"v_cndmask_b32 v{w+3}, v{w+2}, v{w+1}, s[20:21]")
        A(f"v_cndmask_b32 v{w+7}, v{w+1}, v{w+4}, s[20:21]")
        A(f"ds_write_b64 v28, {vr(w+2,2)} offset:{KA_KE + 1024*r}")
        A(f"ds_write_b64 v28, {vr(w+4,2)} offset:{KA_KE + 1024*r + 8}")
        A(f"ds_write_b64 v28, {vr(w+6,2)} offset:{KA_KO + 1024*r}")
        A(f"ds_write_b64 v28, {vr(w+4,2)} offset:{KA_KO + 1024*r + 8}")
    elif r == 2:
        A("v_lshlrev_b32 v27, 2, v2")
        A(f"v_sub_u32 v27, {512 + 4*127}, v27")
        A("v_add_u32 v27, s40, v27")
        A("ds_read_b32 v56, v27")
        A("ds_read_u16 v57, v27 offset:4")
        A("s_mov_b32 s24, 0x07060100")
        A("s_waitcnt lgkmcnt(0)")
        A("v_perm_b32 v40, v57, v57, s22")
        A("v_perm_b32 v41, v56, v56, s23")
        A("v_alignbit_b32 v42, v56, v56, 16")
        A("v_perm_b32 v43, v56, v56, s22")
        A("v_perm_b32 v44, v56, v57, s24")
        A("v_mov_b32 v45, v41")
        A("v_mov_b32 v46, v43")
        A("v_mov_b32 v47, v43")
        A(f"ds_write_b128 v28, v[40:43] offset:{KA_KE + 2048}")
        A(f"ds_write_b128 v28, v[44:47] offset:{KA_KO + 2048}")
    else:
        for k in range(9):
            A(f"ds_read_u16 v{40+k}, v{30+k}")
        A("v_mov_b32 v12, 0")
        A("v_and_b32 v14, 15, v2")
        A("v_lshlrev_b32 v14, 2, v14")
        A("v_add_u32 v14, s39, v14")
        A(f"ds_write_b32 v14, v12 offset:{KA_KE + 4096}")
        A(f"ds_write_b32 v14, v12 offset:{KA_KO + 4096}")
        A("s_waitcnt lgkmcnt(2)")
        for k in range(4):
            A(f"v_lshl_or_b32 v{52+k}, v{41+2*k}, 16, v{40+2*k}")
        A("v_alignbit_b32 v56, v53, v52, 16")
        A("v_alignbit_b32 v57, v54, v53, 16")
        A("v_alignbit_b32 v58, v55, v54, 16")
        A("v_alignbit_b32 v59, v48, v55, 16")
        A(f"ds_write_b128 v28, v[52:55] offset:{KA_KE + 3072}")
        A(f"ds_write_b128 v28, v[56:59] offset:{KA_KO + 3072}")
        A("v_mov_b32 v14, s39")
        A(f"ds_write_b16 v14, v12 offset:{KA_KO + 2*2047}")


def ka(A):
    A("s_cmp_ge_u32 s2, 256")
    A("s_cbranch_scc1 KA_END")
    k_begin(A)
    A("s_load_dwordx16 s[16:31], s[0:1], 0")
    A("s_load_dwordx4 s[44:47], s[0:1], 104")
    A("v_lshrrev_b32 v1, 6, v0")
    A("v_readfirstlane_b32 s3, v1")
    A("v_and_b32 v2, 63, v0")
    A("v_mov_b32 v3, 0")
    A("v_lshlrev_b32 v4, 2, v2")
    A(f"v_add_u32 v4, {KA_CNT}, v4")
    A("s_cmp_lg_u32 s3, 0")
    A("s_cbranch_scc1 KA_NOZ")
    A("s_mov_b64 exec, 0xffffffff")
    A("ds_write_b32 v4, v3")
    A("s_mov_b64 exec, -1")
    A.label("KA_NOZ")
    A(f"s_sub_u32 s4, s2, {NPROD}")
    pair_swizzle(A, 35, 4, 6)
    A("s_sub_u32 s4, s3, 4")
    A("s_mul_i32 s37, s4, 11")
    A("s_lshr_b32 s37, s37, 5")
    A("s_mul_i32 s36, s37, 3")
    A("s_sub_u32 s36, s4, s36")
    A("s_lshl_b32 s34, s35, 2")
    A("s_add_u32 s34, s34, s37")
    A(f"s_mul_i32 s7, s4, {KG_SZ}")
    A("s_mul_i32 s4, s34, 384")
    A("s_lshr_b32 s5, s34, 1")
    A("s_lshl_b32 s5, s5, 2")
    A("s_lshl_b32 s8, s36, 7")
    A("s_add_u32 s8, s8, s4")
    A("v_lshlrev_b32 v3, 1, v2")
    A("v_add_u32 v1, s8, v3")
    A("v_add_u32 v3, s4, v3")
    A("s_waitcnt lgkmcnt(0)")
    A("s_mov_b32 s32, s46")
    A("s_mov_b32 s33, s47")
    A("s_cmp_lt_u32 s3, 4")
    A("s_cbranch_scc1 KA_B0")
    A(f"s_cmp_lt_u32 s2, {NPROD}")
    A("s_cbranch_scc1 KA_B0")
    A("s_load_dword s6, s[26:27], s5")
    A("global_load_ushort v10, v1, s[18:19]")
    A("global_load_ushort v11, v1, s[20:21]")
    A("global_load_ushort v12, v1, s[22:23]")
    A("global_load_ushort v13, v1, s[24:25]")
    for i in range(3):
        A(f"global_load_ushort v{14+i}, v3, s[22:23] offset:{128*i}")
        A(f"global_load_ushort v{17+i}, v3, s[24:25] offset:{128*i}")
    A.label("KA_B0")
    A("s_barrier")
    A("s_cmp_lt_u32 s3, 3")
    A("s_cbranch_scc1 KA_LN1")
    A("s_cmp_lg_u32 s3, 3")
    A("s_cbranch_scc1 KA_NOTAG")
    A(f"s_mov_b32 s14, {WS_EPOCH}")
    A("s_load_dword s15, s[32:33], s14")
    A(f"v_mov_b32 v18, {KA_CNT + 96}")
    A("s_waitcnt lgkmcnt(0)")
    A("s_mul_i32 s15, s15, 0x9E3779B1")
    A("s_add_u32 s15, s15, 0x632BE5AB")
    A("v_mov_b32 v19, s15")
    A("ds_write_b32 v18, v19")
    A("s_waitcnt lgkmcnt(0)")
    A(f"v_mov_b32 v18, {KA_CNT + 12}")
    A("v_mov_b32 v19, 1")
    A("s_mov_b64 exec, 1")
    A("ds_add_u32 v18, v19")
    A("s_mov_b64 exec, -1")
    A(f"s_cmp_ge_u32 s2, {NPROD}")
    A("s_cbranch_scc1 KA_CONV")
    A("s_branch KA_WTPOLL")
    A.label("KA_NOTAG")
    A(f"s_cmp_lt_u32 s2, {NPROD}")
    A("s_cbranch_scc1 KA_WT0")
    kgen_wave(A)
    arrive_s(A, 4, 37)
    wait_s(A, 4, 37, 3, "KA_W4")
    stamp(A, 7)
    A(f"s_mul_i32 s11, s37, {3*KG_SZ}")
    A("s_lshl_b32 s12, s36, 10")
    A("s_add_u32 s11, s11, s12")
    A("v_add_u32 v28, s11, v28")
    for w in range(3):
        A(f"ds_read_b128 {vr(40+4*w,4)}, v28 offset:{KG_SZ*w}")
    A("s_waitcnt lgkmcnt(0)")
    for i in range(4):
        A(f"v_add_f32 v{40+i}, v{40+i}, v{44+i}")
    for i in range(4):
        A(f"v_add_f32 v{40+i}, v{40+i}, v{48+i}")
    A("v_cvt_pk_f16_f32 v40, v40, v41")
    A("v_cvt_pk_f16_f32 v41, v42, v43")
    A("s_cmp_eq_u32 s36, 1")
    A("s_cbranch_scc1 KA_S1")
    A("ds_write_b64 v29, v[40:41]")
    A("s_branch KA_S2")
    A.label("KA_S1")
    A("ds_write_b16 v29, v40")
    A("ds_write_b16_d16_hi v29, v40 offset:64")
    A("ds_write_b16 v29, v41 offset:128")
    A("ds_write_b16_d16_hi v29, v41 offset:192")
    A.label("KA_S2")
    arrive_s(A, 8, 37)
    wait_s(A, 8, 37, 3, "KA_W5")
    A(f"s_mul_i32 s39, s37, {KEO_ST}")
    A(f"s_add_u32 s39, s39, {KEO_BASE}")
    A(f"s_mul_i32 s40, s37, {T_ST}")
    A(f"s_add_u32 s40, s40, {KA_T}")
    A("s_cmp_eq_u32 s36, 0")
    A("s_cbranch_scc1 KA_R0")
    A("s_cmp_eq_u32 s36, 1")
    A("s_cbranch_scc1 KA_R1")
    expand_round(A, 2, "R2")
    A("s_branch KA_RX")
    A.label("KA_R0")
    expand_round(A, 0, "R0")
    A("s_branch KA_RX")
    A.label("KA_R1")
    expand_round(A, 1, "R1")
    A.label("KA_RX")
    arrive_s(A, 12, 37)
    k_end(A, 0)

    A.label("KA_CONV")
    A("s_lshl_b32 s4, s35, 2")
    A("s_add_u32 s4, s4, s3")
    A("s_lshr_b32 s14, s4, 1")
    A("s_lshl_b32 s14, s14, 2")
    A(f"s_mul_i32 s39, s3, {KEO_ST}")
    A(f"s_mul_i32 s40, s3, {T_ST}")
    A(f"s_add_u32 s40, s40, {KA_T}")
    A(f"s_mul_i32 s41, s3, {U_ST}")
    A(f"s_add_u32 s41, s41, {KA_U}")
    A("v_and_b32 v6, 15, v2")
    A("v_lshrrev_b32 v7, 4, v2")
    A("v_lshrrev_b32 v8, 1, v7")
    A("v_and_b32 v9, 1, v7")
    A("v_mov_b32 v12, 0")
    A("v_mov_b32 v13, 0")
    A("v_lshlrev_b32 v14, 3, v2")
    A("v_add_u32 v14, s41, v14")
    A("ds_write_b64 v14, v[12:13]")
    A("v_sub_u32 v14, 2047, v6")
    A("v_lshlrev_b32 v15, 4, v8")
    A("v_sub_u32 v14, v14, v15")
    A("v_lshlrev_b32 v15, 3, v9")
    A("v_add_u32 v14, v14, v15")
    A("v_lshlrev_b32 v14, 1, v14")
    A(f"v_add_u32 v15, {KA_KO - 2}, v14")
    A("v_and_b32 v16, 1, v6")
    A("v_cmp_eq_u32 vcc, 1, v16")
    A("v_cndmask_b32 v14, v15, v14, vcc")
    A("v_add_u32 v14, s39, v14")
    AB = [20, 21, 22, 23]
    for p in range(4):
        A(f"v_subrev_u32 v{AB[p]}, {512*(2*p+1) + 448}, v14")
    A("v_lshlrev_b32 v15, 5, v6")
    A("v_lshlrev_b32 v16, 5, v8")
    A("v_sub_u32 v15, v15, v16")
    A("v_lshlrev_b32 v16, 4, v9")
    A("v_add_u32 v15, v15, v16")
    A(f"v_add_u32 v15, {512 - 448}, v15")
    BB = 24
    A(f"v_add_u32 v{BB}, s41, v15")
    A("v_lshlrev_b32 v15, 5, v6")
    A("v_lshlrev_b32 v16, 3, v7")
    A("v_add_u32 v25, v15, v16")
    A("v_lshlrev_b32 v3, 3, v2")
    A("v_sub_u32 v3, 511, v3")
    for k in range(9):
        A(f"v_subrev_u32 v{30+k}, {k}, v3")
    A("v_max_i32 v38, 0, v38")
    for k in range(9):
        A(f"v_cvt_f32_i32 v{40+k}, v{30+k}")
    for k in range(0, 8, 2):
        A(f"v_cvt_pk_bf16_f32 v{50+k}, v{40+k}, v{41+k}")
        A(f"v_lshrrev_b32 v{51+k}, 16, v{50+k}")
        A(f"v_and_b32 v{50+k}, 0xffff, v{50+k}")
    A("v_cvt_pk_bf16_f32 v58, v48, v48")
    A("v_and_b32 v58, 0xffff, v58")
    for k in range(9):
        A(f"v_subrev_u32 v{50+k}, 17024, v{50+k}")
        A(f"v_min_i32 v{30+k}, 127, v{30+k}")
        A(f"v_max_i32 v{50+k}, v{50+k}, v{30+k}")
        A(f"v_lshlrev_b32 v{30+k}, 1, v{50+k}")
        A(f"v_add_u32 v{30+k}, s40, v{30+k}")
    A("v_lshrrev_b32 v5, 2, v2")
    A("v_mul_u32_u24 v5, 10240, v5")
    A("v_and_b32 v4, 3, v2")
    A("v_lshl_add_u32 v5, v4, 4, v5")
    A("s_lshl_b32 s7, s35, 6")
    A("s_mul_i32 s8, s3, 655360")
    A("s_add_u32 s7, s7, s8")
    A(f"s_add_u32 s7, s7, {WS_UT}")
    A("v_add_u32 v5, s7, v5")
    A(f"v_mul_u32_u24 v4, {U_ST}, v4")
    A("v_lshrrev_b32 v3, 2, v2")
    A("v_lshl_add_u32 v4, v3, 4, v4")
    A("s_lshl_b32 s8, s3, 10")
    A(f"s_add_u32 s8, s8, {KA_U + 512}")
    A("v_add_u32 v4, s8, v4")
    A("s_load_dword s11, s[28:29], s14")
    stamp(A, 1)
    A("s_cmp_lg_u32 s3, 3")
    A("s_cbranch_scc1 KA_GOT")
    wait_count(A, 3, 4, "KA_OWN", sleep=4)
    poll_flags(A, "KA_POLL")
    A(f"s_cmp_lg_u32 s2, {NPROD}")
    A("s_cbranch_scc1 KA_GOT")
    A(f"v_mov_b32 v3, {WS_EPOCH}")
    A("v_mov_b32 v10, s15")
    A("s_mov_b64 exec, 1")
    A(f"global_store_dword v3, v10, s[32:33] {SC}")
    A("s_mov_b64 exec, -1")
    A.label("KA_GOT")
    AF, BF, ACC = 32, 64, 96
    for i in range(32):
        A(f"v_mov_b32 v{ACC+i}, 0")
    A("s_bitcmp1_b32 s4, 0")
    group_sync(A, 2, 4, "KA_GS2")
    stamp(A, 2)
    for j in range(4):
        A(f"global_load_dwordx4 {vr(64+4*j,4)}, v5, s[32:33] {SC}")
        if j < 3:
            A("v_add_u32 v5, 163840, v5")
    A("s_bitcmp1_b32 s4, 0")
    A("s_cbranch_scc1 KA_ODD2")
    A("s_lshl_b32 s11, s11, 16")
    A.label("KA_ODD2")
    A("s_and_b32 s11, s11, 0xffff0000")
    for j in range(4):
        A(f"s_waitcnt vmcnt({3-j})")
        A(f"ds_write_b128 v4, {vr(64+4*j,4)} offset:{256*j}")
    arrive(A, 17)
    stamp(A, 3)
    wait_s(A, 8, 3, 3, "KA_W5C")
    expand_round(A, 3, "R3")
    A("s_lshl_b32 s12, s3, 2")
    A(f"s_add_u32 s12, s12, {KA_SC}")
    A("v_mov_b32 v3, s12")
    A("ds_read_b32 v10, v3")
    wait_s(A, 12, 3, 3, "KA_W6")
    wait_count(A, 17, 4, "KA_W7", sleep=0)
    stamp(A, 5)

    def loadA(q, i0):
        p = q // 2
        o = (128 if q % 2 == 0 else 0) + 16 * (7 - i0)
        return [f"ds_read2_b32 {vr(AF+4*q,2)}, v{AB[p]} offset0:{o} offset1:{o+1}",
                f"ds_read2_b32 {vr(AF+4*q+2,2)}, v{AB[p]} offset0:{o+2} offset1:{o+3}"]

    def loadB(tau, i0):
        return [f"ds_read_b128 {vr(BF+4*tau,4)}, v{BB} offset:{512*tau + 64*(7-i0)}"]

    queue = []
    if os.environ.get("ALIGN"):
        A(".p2align 3")
    for q in range(8):
        A(loadB(7 - q, 0)[0])
        queue.append(("B", 7 - q))
        if q == 0:
            for s in loadA(0, 0):
                A(s)
            queue += [("A", 0), ("A", 0)]
    for q in range(1, 8):
        for s in loadA(q, 0):
            A(s)
        queue += [("A", q), ("A", q)]
    pending = []

    def wait_for(tags):
        while any(tg in tags for _, tg in pending):
            s_, tg = pending.pop(0)
            A(s_)
            queue.append(tg)
        last = -1
        for i, t in enumerate(queue):
            if t in tags:
                last = i
        if last >= 0:
            n = len(queue) - 1 - last
            A(f"s_waitcnt lgkmcnt({min(n, 15)})")
            if os.environ.get("ALIGN"):
                A("s_nop 0")
            del queue[:last + 1]

    for i0 in range(8):
        for q in range(8):
            for tau in range(7 - q, -1, -1):
                wait_for({("A", q), ("B", tau)})
                t = q + tau
                A(f"v_mfma_f32_16x16x32_f16 {vr(ACC+4*t,4)}, {vr(AF+4*q,4)}, {vr(BF+4*tau,4)}, {vr(ACC+4*t,4)}")
                if i0 < 7:
                    if tau == 7 - q:
                        pending.insert(0, (loadB(7 - q, i0 + 1)[0], ("B", 7 - q)))
                    if tau == 0:
                        for s in loadA(q, i0 + 1):
                            pending.append((s, ("A", q)))
                if pending:
                    s, tag = pending.pop(0)
                    A(s)
                    queue.append(tag)
    stamp(A, 6)
    A("v_add_u32 v26, s41, v25")
    A("v_add_u32 v27, s39, v25")
    for t in range(8):
        A(f"ds_read_b64 {vr(32+2*t,2)}, v26 offset:{512 + 512*t}")
    A(f"v_mov_b32 v28, {ONE_LO}")
    A(f"v_mov_b32 v29, {ONE_HI}")
    A("v_mov_b32 v11, v10")
    A("s_waitcnt lgkmcnt(0)")
    for t in range(8):
        a = ACC + 4 * t
        u = 32 + 2 * t
        tm = 48 + 8 * (t & 1)
        A(f"v_pk_mul_f32 {vr(a,2)}, {vr(a,2)}, v[10:11]")
        A(f"v_pk_mul_f32 {vr(a+2,2)}, {vr(a+2,2)}, v[10:11]")
        A(f"v_fma_mix_f32 v{tm}, v{u}, s11, 0 op_sel:[0,0,0] op_sel_hi:[1,0,0]")
        A(f"v_fma_mix_f32 v{tm+1}, v{u}, s11, 0 op_sel:[1,0,0] op_sel_hi:[1,0,0]")
        A(f"v_fma_mix_f32 v{tm+2}, v{u+1}, s11, 0 op_sel:[0,0,0] op_sel_hi:[1,0,0]")
        A(f"v_fma_mix_f32 v{tm+3}, v{u+1}, s11, 0 op_sel:[1,0,0] op_sel_hi:[1,0,0]")
        A(f"v_cvt_pk_bf16_f32 v{a}, v{a}, v{a+1}")
        A(f"v_cvt_pk_bf16_f32 v{a+1}, v{a+2}, v{a+3}")
        A(f"v_cvt_pk_bf16_f32 v{tm+4}, v{tm}, v{tm+1}")
        A(f"v_cvt_pk_bf16_f32 v{tm+5}, v{tm+2}, v{tm+3}")
        A(f"v_lshlrev_b32 v{tm}, 16, v{tm+4}")
        A(f"v_and_b32 v{tm+1}, 0xffff0000, v{tm+4}")
        A(f"v_lshlrev_b32 v{tm+2}, 16, v{tm+5}")
        A(f"v_and_b32 v{tm+3}, 0xffff0000, v{tm+5}")
        A(f"v_dot2_f32_bf16 v{tm}, v{a}, v28, v{tm}")
        A(f"v_dot2_f32_bf16 v{tm+1}, v{a}, v29, v{tm+1}")
        A(f"v_dot2_f32_bf16 v{tm+2}, v{a+1}, v28, v{tm+2}")
        A(f"v_dot2_f32_bf16 v{tm+3}, v{a+1}, v29, v{tm+3}")
        A(f"v_cvt_pk_bf16_f32 v{a+2}, v{tm}, v{tm+1}")
        A(f"v_cvt_pk_bf16_f32 v{a+3}, v{tm+2}, v{tm+3}")
        A(f"ds_write_b64 v27, {vr(a+2,2)} offset:{KA_KE + 512*t}")
    stamp(A, 7)
    A("v_lshrrev_b32 v14, 2, v6")
    A(f"v_mul_u32_u24 v14, {KEO_ST}, v14")
    A("v_and_b32 v15, 3, v2")
    A("v_lshlrev_b32 v15, 3, v15")
    A("v_add_u32 v14, v14, v15")
    A("v_lshlrev_b32 v15, 5, v7")
    A("v_add_u32 v14, v14, v15")
    A("s_lshl_b32 s12, s3, 10")
    A("v_add_u32 v14, s12, v14")
    A("v_lshrrev_b32 v15, 3, v6")
    A("v_lshlrev_b32 v16, 1, v7")
    A("v_add_u32 v15, v15, v16")
    A("v_mul_u32_u24 v15, 10240, v15")
    A("v_and_b32 v16, 7, v6")
    A("v_lshlrev_b32 v16, 4, v16")
    A("v_add_u32 v15, v15, v16")
    A("s_mul_i32 s12, s3, 655360")
    A("s_lshr_b32 s13, s35, 1")
    A("s_lshl_b32 s13, s13, 7")
    A("s_add_u32 s12, s12, s13")
    A("s_and_b32 s13, s35, 1")
    A("s_lshl_b32 s13, s13, 3")
    A("s_add_u32 s12, s12, s13")
    A(f"s_add_u32 s12, s12, {WS_AT}")
    A("v_add_u32 v15, s12, v15")
    A("s_waitcnt lgkmcnt(0)")
    A("s_barrier")
    for k in range(8):
        A(f"ds_read_b64_tr_b16 {vr(40+2*k,2)}, v14 offset:{KA_KE + 128*k}")
    for k in range(8):
        A(f"s_waitcnt lgkmcnt({7-k})")
        A(f"global_store_dwordx2 v15, {vr(40+2*k,2)}, s[32:33] {os.environ.get('AT_MOD', '')}")
        if k < 7:
            A("v_add_u32 v15, 81920, v15")
    k_end(A, 0)

    A.label("KA_LN1")
    A(f"s_setprio {os.environ.get('LN_PRIO', '3')}")
    A("v_mov_b32 v20, v0")
    A("s_mul_i32 s5, s2, 10240")
    A("v_min_u32 v21, 159, v20")
    A("v_lshlrev_b32 v3, 3, v21")
    A("v_add_u32 v3, s5, v3")
    A("v_add_u32 v4, 5120, v3")
    A("v_lshrrev_b32 v5, 4, v20")
    A("v_mul_u32_u24 v6, 1280, v5")
    A("v_and_b32 v7, 15, v20")
    A("v_lshlrev_b32 v7, 4, v7")
    A("v_add_u32 v6, v6, v7")
    A("v_add_u32 v6, s5, v6")
    A("s_cmp_eq_u32 s3, 2")
    A("s_cbranch_scc1 KA_LNB")
    for i in range(5):
        A(f"global_load_dwordx4 {vr(24+4*i,4)}, v6, s[16:17] offset:{256*i}")
    A.label("KA_LNB")
    for r in range(8):
        A(f"global_load_dwordx2 {vr(48+2*r,2)}, v{3 if r < 4 else 4}, s[16:17] offset:{1280*(r%4)}")
    A(f"v_mov_b32 v14, {ONE_LO}")
    A(f"v_mov_b32 v15, {ONE_HI}")
    A("s_cmp_eq_u32 s3, 2")
    A("s_cbranch_scc1 KA_P1")
    for r in (8, 9, 10, 11):
        A(f"v_mov_b32 v{r}, 0")
    A("v_mov_b32 v12, 0x3f803f80")
    A("s_waitcnt vmcnt(8)")
    for i in range(0, 20, 2):
        A(f"v_dot2c_f32_bf16 v8, v{24+i}, v12")
        A(f"v_dot2c_f32_bf16 v9, v{24+i}, v{24+i}")
        A(f"v_dot2c_f32_bf16 v10, v{25+i}, v12")
        A(f"v_dot2c_f32_bf16 v11, v{25+i}, v{25+i}")
    A("s_nop 2")
    A("v_add_f32 v8, v8, v10")
    A("v_add_f32 v9, v9, v11")
    for sh in (8, 4, 2, 1):
        A(f"v_add_f32_dpp v8, v8, v8 row_ror:{sh} row_mask:0xf bank_mask:0xf")
        A(f"v_add_f32_dpp v9, v9, v9 row_ror:{sh} row_mask:0xf bank_mask:0xf")
    ln_finish(A, 8, 9, 10)
    A("v_sub_f32 v8, 0, v8")
    A("v_lshlrev_b32 v5, 3, v5")
    A(f"v_add_u32 v5, {KA_STATS}, v5")
    A("ds_write_b64 v5, v[8:9]")
    A.label("KA_P1")
    group_sync(A, 0, 3, "KA_GS0")
    stamp(A, 8)
    A(f"v_mov_b32 v5, {KA_STATS}")
    for i in range(4):
        A(f"ds_read_b128 {vr(24+4*i,4)}, v5 offset:{16*i}")
    A("v_lshlrev_b32 v3, 6, v21")
    A(f"v_add_u32 v3, {KA_STAGE}, v3")
    A("s_waitcnt vmcnt(0) lgkmcnt(0)")
    for rp in range(4):
        r0, r1 = 2 * rp, 2 * rp + 1
        tt = [84 + 3 * ch for ch in range(4)]
        for ch in range(4):
            a, b = 48 + 2 * r0 + (ch >> 1), 48 + 2 * r1 + (ch >> 1)
            one = 14 + (ch & 1)
            A(f"v_dot2_f32_bf16 v{tt[ch]}, v{a}, v{one}, v{24+2*r0}")
            A(f"v_dot2_f32_bf16 v{tt[ch]+1}, v{b}, v{one}, v{24+2*r1}")
        for ch in range(4):
            A(f"v_cvt_pk_bf16_f32 v{tt[ch]+2}, v{tt[ch]}, v{tt[ch]+1}")
        for ch in range(4):
            A(f"v_lshlrev_b32 v{tt[ch]}, 16, v{tt[ch]+2}")
            A(f"v_and_b32 v{tt[ch]+1}, 0xffff0000, v{tt[ch]+2}")
        for ch in range(4):
            A(f"v_mul_f32 v{tt[ch]}, v{tt[ch]}, v{25+2*r0}")
            A(f"v_mul_f32 v{tt[ch]+1}, v{tt[ch]+1}, v{25+2*r1}")
        for ch in range(4):
            A(f"v_cvt_pk_bf16_f32 v{tt[ch]+2}, v{tt[ch]}, v{tt[ch]+1}")
        for ch in range(4):
            A(f"v_lshlrev_b32 v{tt[ch]}, 16, v{tt[ch]+2}")
            A(f"v_and_b32 v{tt[ch]+1}, 0xffff0000, v{tt[ch]+2}")
        for ch in range(4):
            A(f"v_cvt_pk_f16_f32 v{68+4*ch+rp}, v{tt[ch]}, v{tt[ch]+1}")
    for ch in range(4):
        A(f"ds_write_b128 v3, {vr(68+4*ch,4)} offset:{16*ch}")
    group_sync(A, 1, 3, "KA_GS1")
    A("v_lshlrev_b32 v3, 4, v20")
    A(f"v_add_u32 v4, {KA_STAGE}, v3")
    for j in range(4):
        A(f"ds_read_b128 {vr(24+4*j,4)}, v4 offset:{3072*j}")
    A(f"s_add_u32 s5, s5, {WS_UT}")
    A("v_add_u32 v3, s5, v3")
    A("s_waitcnt lgkmcnt(0)")
    for j in range(3):
        A(f"global_store_dwordx4 v3, {vr(24+4*j,4)}, s[32:33] {SC}")
        A("v_add_u32 v3, 3072, v3")
    A("s_cmp_lg_u32 s3, 0")
    A("s_cbranch_scc1 KA_P3")
    A(f"global_store_dwordx4 v3, {vr(36,4)}, s[32:33] {SC}")
    A.label("KA_P3")
    A("s_waitcnt vmcnt(0)")
    group_sync(A, 3, 4, "KA_GS3")
    stamp(A, 9)
    A("s_cmp_lg_u32 s3, 0")
    A("s_cbranch_scc1 KA_LNX")
    A(f"v_mov_b32 v3, {KA_CNT + 96}")
    A("ds_read_b32 v4, v3")
    A(f"s_lshr_b32 s5, s2, {0 if FLAG64 == 2 else 2 if FLAG64 else 4}")
    A("s_lshl_b32 s5, s5, 7")
    A(f"s_and_b32 s6, s2, {0 if FLAG64 == 2 else 3 if FLAG64 else 15}")
    A("s_lshl_b32 s6, s6, 2")
    A("s_add_u32 s5, s5, s6")
    A(f"s_add_u32 s5, s5, {WS_FLAG}")
    A("v_mov_b32 v3, s5")
    A("s_waitcnt lgkmcnt(0)")
    A("s_mov_b64 exec, 1")
    A(f"global_store_dword v3, v4, s[32:33] {FMOD}")
    A("s_mov_b64 exec, -1")
    A.label("KA_LNX")
    A("s_setprio 0")
    A(f"s_cmp_ge_u32 s2, {NPROD}")
    A("s_cbranch_scc1 KA_CONV")
    k_end(A, 0)
    A.label("KA_WTPOLL")
    wait_count(A, 3, 4, "KA_OWN2", sleep=4)
    if not os.environ.get("WT_EARLY"):
        poll_epoch(A, "KA_POLL2")
    arrive(A, 16)
    k_end(A, 0)
    A.label("KA_WT0")
    A("s_cmp_ge_u32 s3, 8")
    A("s_cbranch_scc1 KA_PRE" if PREFILL[0] else "s_cbranch_scc1 KA_WTX")
    wait_count(A, 16, 1, "KA_WTW", sleep=8)
    wt_role(A, "KA", 0, -2, 8192, 0, 960, 0, os.environ.get("WT_MOD", ""), 384)
    if PREFILL[0]:
        A.label("KA_PRE")
        if TLBW:
            A("s_cmp_lg_u32 s3, 9")
            A("s_cbranch_scc1 KA_PRE2")
            A("s_load_dwordx2 s[36:37], s[0:1], 96")
            A("s_load_dwordx2 s[38:39], s[0:1], 64")
            A("v_min_u32 v3, 7, v2")
            A("v_lshlrev_b32 v3, 21, v3")
            A("global_load_dword v4, v3, s[32:33]")
            A("v_min_u32 v5, 1, v2")
            A("v_lshlrev_b32 v5, 21, v5")
            A("v_mov_b32 v7, 0")
            A("s_waitcnt lgkmcnt(0)")
            A("global_load_dword v6, v5, s[36:37]")
            A("global_load_dword v8, v7, s[38:39]")
            A("s_endpgm")
            A.label("KA_PRE2")
        A("s_cmp_lg_u32 s3, 8")
        A("s_cbranch_scc1 KA_WTX")
        nk = 256 * KEY_STRIDE // 1024
        A(f"s_cmp_ge_u32 s2, {nk + 24}")
        A("s_cbranch_scc1 KA_WTX")
        A("s_lshl_b32 s4, s2, 10")
        A(f"s_add_u32 s5, s4, {WS_RK}")
        A(f"s_add_u32 s6, s4, {WS_ACT - 1024 * nk}")
        A(f"s_cmp_lt_u32 s2, {nk}")
        A("s_cselect_b32 s5, s5, s6")
        A("v_lshlrev_b32 v3, 4, v2")
        A("v_add_u32 v3, s5, v3")
        for i in range(4):
            A(f"v_mov_b32 v{4+i}, -1")
        A("global_store_dwordx4 v3, v[4:7], s[32:33]")
    A.label("KA_WTX")
    k_end(A, 0)
    A.label("KA_END")
    A("s_endpgm")


KERNELS4 = [
    ("ka_kernel", ka, 256, 1024, KA_LDS, 128),
    ("k3_kernel", k3, 256, 256, K3_LDS, 96),
    ("k4_kernel", k4, 192 + (80 if PF_WD[0] else 0), 256, K4_LDS, 96),
    ("k5_kernel", k5, 80, 512, K5_LDS, 96),
]

if __name__ == "__main__":
    if len(sys.argv) > 2 and sys.argv[2] == "stamp":
        STAMP[0] = True
    out = build(KERNELS4)
    path = sys.argv[1]
    open(path, "w").write(out)
    print("wrote", path, len(out), "bytes")
```

```python
import sys, os, struct
sys.path.insert(0, os.path.dirname(os.path.abspath(__file__)))
from asmlib import Asm

NAME = "sequential_preLN__ssm_conv_s4d__moe_arch_mod__prompt"

WS_UT = 0x0000000
WS_KD = 0x0280000
WS_SC = 0x03C0000
WS_AT = 0x0400000
WS_L2 = 0x0680000
WS_RK = 0x0900000
WS_ACT = 0x0910000
WS_SEL = 0x0918000
WS_WGU = 0x0A00000
WS_WD = 0x0E00000
WS_STAMP = 0x1800000
STAMP = [False]
NSTAMP = 12
ST_OPT = [""]


def k_begin(A):
    if STAMP[0]:
        A("s_memrealtime s[94:95]")
        for i in range(NSTAMP):
            A(f"s_mov_b64 s[{60+2*i}:{61+2*i}], 0")
        A("s_memtime s[60:61]")


STAMP_MAP = {5: 5, 6: 6, 8: 8, 9: 9, 1001: 1, 1004: 2, 1005: 3, 1006: 4, 1007: 7}


def stamp(A, i):
    i = STAMP_MAP.get(i)
    if STAMP[0] and i is not None:
        A(f"s_memtime s[{60+2*i}:{61+2*i}]")


def k_end(A, kidx):
    if STAMP[0]:
        A(f"s_memtime s[{60+2*(NSTAMP-2)}:{61+2*(NSTAMP-2)}]")
        A("s_waitcnt vmcnt(0) lgkmcnt(0)")
        A("s_memrealtime s[96:97]")
        A(f"s_memtime s[{60+2*(NSTAMP-1)}:{61+2*(NSTAMP-1)}]")
        A("s_mov_b64 exec, -1")
        A("v_lshrrev_b32 v1, 6, v0")
        A("s_lshl_b32 s98, s2, 3")
        A("v_add_u32 v1, s98, v1")
        A("v_lshlrev_b32 v1, 7, v1")
        A(f"v_add_u32 v1, {WS_STAMP + kidx * 0x200000}, v1")
        A("s_waitcnt lgkmcnt(0)")
        A("v_mov_b32 v2, s94")
        A("v_mov_b32 v3, s95")
        A("v_mov_b32 v4, s96")
        A("v_mov_b32 v5, s97")
        A("global_store_dwordx4 v1, v[2:5], s[32:33]")
        for i in range(0, NSTAMP, 2):
            for j in range(4):
                A(f"v_mov_b32 v{2+j}, s{60+2*i+j}")
            A(f"global_store_dwordx4 v1, v[2:5], s[32:33] offset:{16+8*i}")
    A("s_endpgm")


def fbits(x):
    return struct.unpack("<I", struct.pack("<f", x))[0]


LOG2E = 1.4426950408889634
L2E_HI = fbits(LOG2E)
L2E_HI_F = struct.unpack("<f", struct.pack("<I", L2E_HI))[0]
L2E_LO = fbits(LOG2E - L2E_HI_F)
LN2 = fbits(0.6931471805599453)
INV2PI = fbits(0.15915494309189535)
INV640 = fbits(1.0 / 640.0)
EPS = fbits(1e-5)
ONE_LO = 0x00003f80
ONE_HI = 0x3f800000


def vr(a, n):
    return f"v[{a}:{a+n-1}]"


def bf16_round(A, reg):
    A(f"v_cvt_pk_bf16_f32 v{reg}, v{reg}, v{reg}")
    A(f"v_and_b32 v{reg}, 0xffff0000, v{reg}")


def exp_bf16(A, dst, src, t0, t1):
    A(f"v_mul_f32 v{t0}, s90, v{src}")
    A(f"v_fma_f32 v{t1}, v{src}, s90, -v{t0}")
    A(f"v_fma_f32 v{t1}, v{src}, s91, v{t1}")
    A(f"v_exp_f32 v{dst}, v{t0}")
    A(f"v_mul_f32 v{t1}, s92, v{t1}")
    A(f"v_fma_f32 v{dst}, v{dst}, v{t1}, v{dst}")
    bf16_round(A, dst)


def cmul(A, d, a, b):
    A(f"v_pk_mul_f32 {vr(d,2)}, {vr(a,2)}, {vr(b,2)} op_sel:[0,0] op_sel_hi:[0,1]")
    A(f"v_pk_fma_f32 {vr(d,2)}, {vr(a,2)}, {vr(b,2)}, {vr(d,2)} op_sel:[1,1,0] op_sel_hi:[1,0,1] neg_lo:[0,1,0]")


def ln_finish(A, s1, s2, t):
    A(f"v_mul_f32 v{s1}, {INV640}, v{s1}")
    A(f"v_mul_f32 v{s2}, {INV640}, v{s2}")
    A(f"v_fma_f32 v{s2}, -v{s1}, v{s1}, v{s2}")
    A(f"v_max_f32 v{s2}, 0, v{s2}")
    A(f"v_cvt_pk_bf16_f32 v{t}, v{s1}, v{s2}")
    A(f"v_lshlrev_b32 v{s1}, 16, v{t}")
    A(f"v_and_b32 v{s2}, 0xffff0000, v{t}")
    A(f"v_add_f32 v{s2}, {EPS}, v{s2}")
    bf16_round(A, s2)
    A(f"v_sqrt_f32 v{s2}, v{s2}")
    bf16_round(A, s2)
    A(f"v_rcp_f32 v{s2}, v{s2}")


def pair_swizzle(A, dst, src, tmp):
    A(f"s_and_b32 s{dst}, s{src}, 7")
    A(f"s_lshl_b32 s{dst}, s{dst}, 1")
    A(f"s_bfe_u32 s{tmp}, s{src}, 0x10003")
    A(f"s_or_b32 s{dst}, s{dst}, s{tmp}")
    A(f"s_andn2_b32 s{tmp}, s{src}, 15")
    A(f"s_or_b32 s{dst}, s{dst}, s{tmp}")


def wt_role(A, pfx, first_wg, nwaves_per_wg, lds_per_wave, it_lo, it_hi, kidx, opt, stride):
    A.label(f"{pfx}_WTR")
    A("s_load_dwordx4 s[16:19], s[0:1], 72")
    A("s_load_dwordx2 s[20:21], s[0:1], 88")
    A("v_lshrrev_b32 v1, 6, v0")
    A("v_readfirstlane_b32 s3, v1")
    A("v_and_b32 v2, 63, v0")
    if nwaves_per_wg > 0:
        A(f"s_sub_u32 s4, s2, {first_wg}")
        A(f"s_mul_i32 s4, s4, {nwaves_per_wg}")
        A("s_add_u32 s4, s4, s3")
        A(f"s_add_u32 s4, s4, {it_lo}")
    elif nwaves_per_wg == -2:
        A("s_sub_u32 s4, s3, 4")
        A("s_mul_i32 s4, s4, 96")
        A("s_add_u32 s4, s4, s2")
    else:
        A("s_sub_u32 s4, s3, 3")
        A("s_mul_i32 s4, s4, 96")
        A("s_add_u32 s4, s4, s2")
    A(f"s_mul_i32 s5, s3, {lds_per_wave}")
    A("v_lshrrev_b32 v3, 3, v2")
    A("v_and_b32 v4, 7, v2")
    A("v_lshlrev_b32 v4, 4, v4")
    A("v_lshrrev_b32 v5, 4, v2")
    A("v_lshlrev_b32 v5, 3, v5")
    A("v_and_b32 v6, 15, v2")
    A("v_lshrrev_b32 v6, 2, v6")
    A("v_add_u32 v5, v5, v6")
    A("v_lshlrev_b32 v5, 7, v5")
    A("v_and_b32 v6, 3, v2")
    A("v_lshlrev_b32 v7, 3, v6")
    A("v_add_u32 v8, v5, v7")
    A("v_add_u32 v8, s5, v8")
    A("v_add_u32 v9, 4080, v8")
    A("v_cmp_gt_u32 vcc, 2, v6")
    A("v_cndmask_b32 v9, v9, v8, vcc")
    A("v_lshlrev_b32 v10, 4, v2")
    A("v_and_b32 v13, 15, v2")
    A("v_lshrrev_b32 v14, 3, v13")
    A("v_mul_u32_u24 v14, 24576, v14")
    A("v_and_b32 v13, 7, v13")
    A("v_lshlrev_b32 v13, 4, v13")
    A("v_add_u32 v14, v14, v13")
    A("v_lshrrev_b32 v13, 4, v2")
    A("v_lshlrev_b32 v13, 7, v13")
    A("v_add_u32 v14, v14, v13")
    A("v_mul_u32_u24 v50, 3072, v3")
    A("v_add_u32 v50, v50, v4")
    A("v_mul_u32_u24 v51, 1280, v3")
    A("v_add_u32 v51, v51, v4")
    A("s_waitcnt lgkmcnt(0)")
    A("s_mov_b32 s6, s4")
    A(f"s_cmp_ge_u32 s6, {it_hi}")
    A(f"s_cbranch_scc1 {pfx}_WT_FIN")
    A.label(f"{pfx}_WT_LOOP")
    A("s_cmp_ge_u32 s6, 480")
    A(f"s_cbranch_scc1 {pfx}_WT_DOWN")
    A("s_mul_hi_u32 s7, s6, 0xccccccd")
    A("s_mul_i32 s8, s7, 20")
    A("s_sub_u32 s8, s6, s8")
    A("s_mul_i32 s9, s8, 98304")
    A("s_lshl_b32 s10, s7, 7")
    A("s_add_u32 s9, s9, s10")
    A("v_add_u32 v11, s9, v50")
    for j in range(4):
        A(f"s_add_u32 s10, s5, {1024*j}")
        A("s_mov_b32 m0, s10")
        A("global_load_lds_dwordx4 v11, s[16:17]")
        A(f"s_add_u32 s10, s5, {4096 + 1024*j}")
        A("s_mov_b32 m0, s10")
        A("global_load_lds_dwordx4 v11, s[18:19]")
        if j < 3:
            A("v_add_u32 v11, 24576, v11")
    A("s_mul_i32 s9, s7, 163840")
    A("s_lshl_b32 s10, s8, 10")
    A("s_add_u32 s9, s9, s10")
    A(f"s_add_u32 s9, s9, {WS_WGU}")
    A("v_add_u32 v12, s9, v10")
    A("s_waitcnt vmcnt(0)")
    for jj in range(8):
        A(f"ds_read_b64_tr_b16 {vr(16+4*jj,2)}, v9 offset:{16*jj}")
        A(f"ds_read_b64_tr_b16 {vr(18+4*jj,2)}, v9 offset:{16*jj + 512}")
    A("s_waitcnt lgkmcnt(0)")
    for jj in range(8):
        A(f"global_store_dwordx4 v12, {vr(16+4*jj,4)}, s[32:33] {opt}")
        if jj < 7:
            A("v_add_u32 v12, 20480, v12")
    A(f"s_branch {pfx}_WT_NEXT")
    A.label(f"{pfx}_WT_DOWN")
    A("s_sub_u32 s11, s6, 480")
    A("s_mul_hi_u32 s7, s11, 0x5555556")
    A("s_mul_i32 s8, s7, 48")
    A("s_sub_u32 s8, s11, s8")
    A("s_mul_i32 s9, s8, 40960")
    A("s_lshl_b32 s10, s7, 7")
    A("s_add_u32 s9, s9, s10")
    A("v_add_u32 v11, s9, v51")
    for j in range(4):
        A(f"s_add_u32 s10, s5, {1024*j}")
        A("s_mov_b32 m0, s10")
        A("global_load_lds_dwordx4 v11, s[20:21]")
        if j < 3:
            A("v_add_u32 v11, 10240, v11")
    A("s_mul_i32 s9, s7, 196608")
    A("s_lshl_b32 s10, s8, 9")
    A("s_add_u32 s9, s9, s10")
    A(f"s_add_u32 s9, s9, {WS_WD}")
    A("v_add_u32 v12, s9, v14")
    A("s_waitcnt vmcnt(0)")
    for jj in range(4):
        A(f"ds_read_b64_tr_b16 {vr(16+4*jj,2)}, v8 offset:{32*jj}")
        A(f"ds_read_b64_tr_b16 {vr(18+4*jj,2)}, v8 offset:{32*jj + 512}")
    A("s_waitcnt lgkmcnt(0)")
    for jj in range(4):
        A(f"global_store_dwordx4 v12, {vr(16+4*jj,4)}, s[32:33] {opt}")
        if jj < 3:
            A("v_add_u32 v12, 49152, v12")
    A.label(f"{pfx}_WT_NEXT")
    A(f"s_add_u32 s6, s6, {stride}")
    A(f"s_cmp_lt_u32 s6, {it_hi}")
    A(f"s_cbranch_scc1 {pfx}_WT_LOOP")
    A.label(f"{pfx}_WT_FIN")
    A("s_waitcnt vmcnt(0)")
    arrive(A, 21)
    k_end(A, kidx)


K1_ROWB = 288
K1_BUF = 16 * K1_ROWB


def cmul_batch(A, items):
    for d, a, b in items:
        A(f"v_pk_mul_f32 {vr(d,2)}, {vr(a,2)}, {vr(b,2)} op_sel:[0,0] op_sel_hi:[0,1]")
    for d, a, b in items:
        A(f"v_pk_fma_f32 {vr(d,2)}, {vr(a,2)}, {vr(b,2)}, {vr(d,2)} op_sel:[1,1,0] op_sel_hi:[1,0,1] neg_lo:[0,1,0]")


KG_SZ = 2 * K1_BUF
KEO_ST = 27712
KEO_BASE = 0
KA_KE, KA_KO = 0, 4160
KA_U = 12 * KG_SZ
U_ST = 4608
KA_T = KA_U + 4 * U_ST
T_ST = 1600
KA_SC = KA_T + 4 * T_ST
KA_LN = KA_SC + 64
KA_CNT = KA_LN
KA_STATS = KA_LN + 128
KA_STAGE = KA_LN + 192
KA_LDS = KA_STAGE + 10240 + 2560


def group_sync(A, idx, n, lbl):
    A("s_waitcnt lgkmcnt(0)")
    A(f"v_mov_b32 v18, {KA_CNT + 4*idx}")
    A("v_mov_b32 v19, 1")
    A("s_mov_b64 exec, 1")
    A("ds_add_u32 v18, v19")
    A("s_mov_b64 exec, -1")
    A("s_mov_b32 s12, 0")
    A.label(lbl)
    A("ds_read_b32 v19, v18")
    A("s_waitcnt lgkmcnt(0)")
    A("v_readfirstlane_b32 s13, v19")
    A(f"s_cmp_ge_u32 s13, {n}")
    A(f"s_cbranch_scc1 {lbl}_OK")
    A("s_add_u32 s12, s12, 1")
    A(f"s_cmp_lt_u32 s12, {1 << 22}")
    A(f"s_cbranch_scc1 {lbl}")
    A.label(lbl + "_OK")
NPROD = 96
WS_FLAGB = 0x0934000
WS_GO = 0x0938000
P2_FIRST = int(os.environ.get('P2_FIRST', '16'))
P2_SLEEP = int(os.environ.get('P2_SLEEP', '6'))
PREFILL = [False]
TLBW = int(os.environ.get('TLBW', '0'))
KEY_STRIDE = int(os.environ.get('KEY_STRIDE', '32'))
WS_FLAG = 0x0930000
WS_EPOCH = 0x0928000
SC = os.environ.get('SCMOD', 'sc1')
PMOD = os.environ.get('PMOD', SC)
FMOD = os.environ.get('FMOD', SC)
SPIN_MAX = 1 << 16
POLL_SLEEP = int(os.environ.get('POLL_SLEEP', '6'))
POLL_FIRST = int(os.environ.get('POLL_FIRST', '16'))
FLAG64 = int(os.environ.get('FLAG64', '1'))


def k_end16(A, kidx):
    if STAMP[0]:
        A(f"s_memtime s[{60+2*(NSTAMP-2)}:{61+2*(NSTAMP-2)}]")
        A("s_waitcnt vmcnt(0) lgkmcnt(0)")
        A("s_memrealtime s[96:97]")
        A(f"s_memtime s[{60+2*(NSTAMP-1)}:{61+2*(NSTAMP-1)}]")
        A("s_mov_b64 exec, -1")
        A("v_lshrrev_b32 v1, 6, v0")
        A("s_lshl_b32 s98, s2, 4")
        A("v_add_u32 v1, s98, v1")
        A("v_lshlrev_b32 v1, 7, v1")
        A(f"v_add_u32 v1, {WS_STAMP + kidx * 0x200000}, v1")
        A("s_waitcnt lgkmcnt(0)")
        A("v_mov_b32 v2, s94")
        A("v_mov_b32 v3, s95")
        A("v_mov_b32 v4, s96")
        A("v_mov_b32 v5, s97")
        A("global_store_dwordx4 v1, v[2:5], s[32:33]")
        for i in range(0, NSTAMP, 2):
            for j in range(4):
                A(f"v_mov_b32 v{2+j}, s{60+2*i+j}")
            A(f"global_store_dwordx4 v1, v[2:5], s[32:33] offset:{16+8*i}")
    A("s_endpgm")


k_end = k_end16


def arrive(A, idx):
    A("s_waitcnt lgkmcnt(0)")
    A(f"v_mov_b32 v18, {KA_CNT + 4*idx}")
    A("v_mov_b32 v19, 1")
    A("s_mov_b64 exec, 1")
    A("ds_add_u32 v18, v19")
    A("s_mov_b64 exec, -1")


def wait_count(A, idx, n, lbl, sleep=1):
    A(f"v_mov_b32 v18, {KA_CNT + 4*idx}")
    A("s_mov_b32 s12, 0")
    A.label(lbl)
    A("ds_read_b32 v19, v18")
    A("s_waitcnt lgkmcnt(0)")
    A("v_readfirstlane_b32 s13, v19")
    A(f"s_cmp_ge_u32 s13, {n}")
    A(f"s_cbranch_scc1 {lbl}_OK")
    A("s_add_u32 s12, s12, 1")
    if sleep:
        A(f"s_sleep {sleep}")
    A(f"s_cmp_lt_u32 s12, {1 << 22}")
    A(f"s_cbranch_scc1 {lbl}")
    A.label(lbl + "_OK")


def arrive_s(A, base_idx, sreg):
    A("s_waitcnt lgkmcnt(0)")
    A(f"s_lshl_b32 s12, s{sreg}, 2")
    A(f"s_add_u32 s12, s12, {KA_CNT + 4*base_idx}")
    A("v_mov_b32 v18, s12")
    A("v_mov_b32 v19, 1")
    A("s_mov_b64 exec, 1")
    A("ds_add_u32 v18, v19")
    A("s_mov_b64 exec, -1")


def wait_s(A, base_idx, sreg, n, lbl):
    A(f"s_lshl_b32 s12, s{sreg}, 2")
    A(f"s_add_u32 s12, s12, {KA_CNT + 4*base_idx}")
    A("v_mov_b32 v18, s12")
    A("s_mov_b32 s12, 0")
    A.label(lbl)
    A("ds_read_b32 v19, v18")
    A("s_waitcnt lgkmcnt(0)")
    A("v_readfirstlane_b32 s13, v19")
    A(f"s_cmp_ge_u32 s13, {n}")
    A(f"s_cbranch_scc1 {lbl}_OK")
    A("s_add_u32 s12, s12, 1")
    A("s_sleep 1")
    A(f"s_cmp_lt_u32 s12, {1 << 22}")
    A(f"s_cbranch_scc1 {lbl}")
    A.label(lbl + "_OK")


def poll_flags(A, lbl):
    if FLAG64 == 2:
        A("v_lshlrev_b32 v3, 7, v2")
        A(f"v_add_u32 v3, {WS_FLAG}, v3")
        for j in range(1, 4):
            A(f"v_add_u32 v{44+j}, {8192*j}, v3")
    elif FLAG64:
        A("v_lshlrev_b32 v3, 7, v2")
        A(f"v_add_u32 v3, {WS_FLAG}, v3")
    else:
        A("v_lshrrev_b32 v3, 4, v2")
        A("v_lshlrev_b32 v3, 7, v3")
        A("v_and_b32 v10, 15, v2")
        A("v_lshl_add_u32 v3, v10, 2, v3")
        A(f"v_add_u32 v3, {WS_FLAG}, v3")
    A("s_mov_b32 s12, 0")
    if POLL_FIRST:
        A(f"s_sleep {POLL_FIRST}")
    A.label(lbl)
    if FLAG64 == 2:
        A(f"global_load_dword v40, v3, s[32:33] {PMOD}")
        for j in range(1, 4):
            A(f"global_load_dword v{40+j}, v{44+j}, s[32:33] {PMOD}")
    elif FLAG64:
        A(f"global_load_dwordx4 v[40:43], v3, s[32:33] {PMOD}")
    else:
        for j in range(4):
            A(f"global_load_dword v{40+j}, v3, s[32:33] offset:{512*j} {PMOD}")
    A("s_waitcnt vmcnt(0)")
    A("v_cmp_ne_u32 vcc, s15, v40")
    A("v_cmp_ne_u32 s[20:21], s15, v41")
    A("v_cmp_ne_u32 s[22:23], s15, v42")
    A("v_cmp_ne_u32 s[24:25], s15, v43")
    A("s_or_b64 vcc, vcc, s[20:21]")
    A("s_or_b64 s[22:23], s[22:23], s[24:25]")
    A("s_or_b64 vcc, vcc, s[22:23]")
    A("s_cmp_eq_u64 vcc, 0")
    A(f"s_cbranch_scc1 {lbl}_SEEN")
    A("s_add_u32 s12, s12, 1")
    A(f"s_cmp_ge_u32 s12, {SPIN_MAX}")
    A(f"s_cbranch_scc1 {lbl}_SEEN")
    A(f"s_sleep {POLL_SLEEP}")
    A(f"s_branch {lbl}")
    A.label(lbl + "_SEEN")


def poll_flags_b(A, lbl):
    A("v_lshlrev_b32 v3, 7, v2")
    A(f"v_add_u32 v3, {WS_FLAGB}, v3")
    A("s_mov_b32 s12, 0")
    A(f"s_sleep {P2_FIRST}")
    A.label(lbl)
    A(f"global_load_dwordx4 v[40:43], v3, s[32:33] {PMOD}")
    A("s_waitcnt vmcnt(0)")
    A("v_cmp_ne_u32 vcc, s15, v40")
    A("v_cmp_ne_u32 s[20:21], s15, v41")
    A("v_cmp_ne_u32 s[22:23], s15, v42")
    A("v_cmp_ne_u32 s[24:25], s15, v43")
    A("s_or_b64 vcc, vcc, s[20:21]")
    A("s_or_b64 s[22:23], s[22:23], s[24:25]")
    A("s_or_b64 vcc, vcc, s[22:23]")
    A("s_cmp_eq_u64 vcc, 0")
    A(f"s_cbranch_scc1 {lbl}_SEEN")
    A("s_add_u32 s12, s12, 1")
    A(f"s_cmp_ge_u32 s12, {SPIN_MAX}")
    A(f"s_cbranch_scc1 {lbl}_SEEN")
    A(f"s_sleep {P2_SLEEP}")
    A(f"s_branch {lbl}")
    A.label(lbl + "_SEEN")


def store_flag_b(A):
    A("s_lshr_b32 s5, s2, 2")
    A("s_lshl_b32 s5, s5, 7")
    A("s_and_b32 s6, s2, 3")
    A("s_lshl_b32 s6, s6, 2")
    A("s_add_u32 s5, s5, s6")
    A(f"s_add_u32 s5, s5, {WS_FLAGB}")
    A("v_mov_b32 v3, s5")
    A("v_mov_b32 v4, s15")
    A("s_mov_b64 exec, 1")
    A(f"global_store_dword v3, v4, s[32:33] {FMOD}")
    A("s_mov_b64 exec, -1")


def poll_go(A, lbl):
    A(f"v_mov_b32 v3, {WS_GO}")
    A("s_mov_b32 s12, 0")
    A.label(lbl)
    A(f"global_load_dword v40, v3, s[32:33] {PMOD}")
    A("s_waitcnt vmcnt(0)")
    A("v_readfirstlane_b32 s13, v40")
    A("s_cmp_eq_u32 s13, s15")
    A(f"s_cbranch_scc1 {lbl}_SEEN")
    A("s_add_u32 s12, s12, 1")
    A(f"s_cmp_ge_u32 s12, {SPIN_MAX}")
    A(f"s_cbranch_scc1 {lbl}_SEEN")
    A("s_sleep 12")
    A(f"s_branch {lbl}")
    A.label(lbl + "_SEEN")


def poll_epoch(A, lbl):
    A(f"v_mov_b32 v3, {WS_EPOCH}")
    A("s_mov_b32 s12, 0")
    A("s_sleep 48")
    A.label(lbl)
    A(f"global_load_dword v40, v3, s[32:33] {SC}")
    A("s_waitcnt vmcnt(0)")
    A("v_readfirstlane_b32 s13, v40")
    A("s_cmp_eq_u32 s13, s15")
    A(f"s_cbranch_scc1 {lbl}_SEEN")
    A("s_add_u32 s12, s12, 1")
    A(f"s_cmp_ge_u32 s12, {SPIN_MAX}")
    A(f"s_cbranch_scc1 {lbl}_SEEN")
    A("s_sleep 16")
    A(f"s_branch {lbl}")
    A.label(lbl + "_SEEN")


def kgen_wave(A):
    A(f"s_mov_b32 s90, {L2E_HI}")
    A(f"s_mov_b32 s91, {L2E_LO}")
    A(f"s_mov_b32 s92, {LN2}")
    A("v_and_b32 v3, 15, v2")
    A("v_lshrrev_b32 v4, 4, v2")
    A("s_cmp_eq_u32 s36, 1")
    A("s_cbranch_scc1 KA_A1")
    A("s_cmp_eq_u32 s36, 2")
    A("s_cbranch_scc1 KA_A2")
    A("v_lshrrev_b32 v5, 1, v4")
    A("v_lshlrev_b32 v5, 7, v5")
    A("v_lshl_add_u32 v5, v3, 3, v5")
    A("v_and_b32 v6, 1, v4")
    A("v_lshl_add_u32 v5, v6, 2, v5")
    A("s_branch KA_A3")
    A.label("KA_A1")
    A("v_lshlrev_b32 v5, 1, v3")
    A("v_add_u32 v5, v5, v4")
    A("v_add_u32 v5, 384, v5")
    A("v_lshlrev_b32 v6, 4, v4")
    A("v_add_u32 v6, v6, v3")
    A("v_add_u32 v6, 480, v6")
    A("v_cmp_gt_u32 vcc, 2, v4")
    A("v_cndmask_b32 v5, v6, v5, vcc")
    A("s_branch KA_A3")
    A.label("KA_A2")
    A("v_lshlrev_b32 v5, 6, v4")
    A("v_lshlrev_b32 v6, 2, v3")
    A("v_add_u32 v5, v5, v6")
    A("v_add_u32 v5, 256, v5")
    A("v_lshlrev_b32 v6, 2, v2")
    A("v_add_u32 v6, 520, v6")
    A("v_cmp_gt_u32 vcc, 2, v4")
    A("v_cndmask_b32 v5, v6, v5, vcc")
    A("v_mov_b32 v6, 640")
    A("v_cmp_eq_u32 vcc, 32, v2")
    A("v_cndmask_b32 v5, v5, v6, vcc")
    A.label("KA_A3")
    A(f"s_mul_i32 s11, s37, {T_ST}")
    A(f"s_add_u32 s11, s11, {KA_T}")
    A("v_lshlrev_b32 v29, 1, v5")
    A("v_add_u32 v29, s11, v29")
    A(f"v_mul_u32_u24 v32, {K1_ROWB}, v3")
    A("v_lshlrev_b32 v5, 4, v4")
    A("v_add_u32 v32, v32, v5")
    A("v_add_u32 v32, s7, v32")
    AW = 120
    A("v_lshlrev_b32 v5, 2, v2")
    A(f"v_add_u32 v{AW}, s7, v5")
    for k in range(1, 8):
        A(f"v_add_u32 v{AW+k}, {(k//4)*K1_BUF + (k%4)*4*K1_ROWB}, v{AW}")
    stamp(A, 1)
    A("s_waitcnt lgkmcnt(0)")
    A("s_bitcmp1_b32 s34, 0")
    A("s_cbranch_scc1 KA_ODD")
    A("s_lshl_b32 s6, s6, 16")
    A.label("KA_ODD")
    A("s_and_b32 s6, s6, 0xffff0000")
    A("v_mov_b32 v5, s6")
    exp_bf16(A, 33, 5, 6, 7)
    A("s_waitcnt vmcnt(0)")
    stamp(A, 2)
    for i in range(6):
        A(f"v_and_b32 v{14+i}, 0x7fff, v{14+i}")
    A("v_max3_u32 v14, v14, v15, v16")
    A("v_max3_u32 v17, v17, v18, v19")
    A("v_max_u32 v14, v14, v17")
    A("v_lshlrev_b32 v10, 16, v10")
    A("v_lshlrev_b32 v11, 16, v11")
    A("v_mul_f32 v6, s90, v10")
    A("v_max_u32_dpp v14, v14, v14 row_shr:1 row_mask:0xf bank_mask:0xf")
    A("v_fma_f32 v7, v10, s90, -v6")
    A("v_exp_f32 v34, v6")
    A("v_max_u32_dpp v14, v14, v14 row_shr:2 row_mask:0xf bank_mask:0xf")
    A("v_fma_f32 v7, v10, s91, v7")
    A("v_mul_f32 v35, v11, v33")
    A("v_max_u32_dpp v14, v14, v14 row_shr:4 row_mask:0xf bank_mask:0xf")
    A("v_mul_f32 v7, s92, v7")
    A(f"v_mul_f32 v35, {INV2PI}, v35")
    A("v_max_u32_dpp v14, v14, v14 row_shr:8 row_mask:0xf bank_mask:0xf")
    A("v_fma_f32 v34, v34, v7, v34")
    A("v_lshlrev_b32 v12, 16, v12")
    A("v_max_u32_dpp v14, v14, v14 row_bcast:15 row_mask:0xa bank_mask:0xf")
    A("v_cvt_pk_bf16_f32 v34, v34, v34")
    A("v_lshlrev_b32 v13, 16, v13")
    A("v_max_u32_dpp v14, v14, v14 row_bcast:31 row_mask:0xc bank_mask:0xf")
    A("v_and_b32 v34, 0xffff0000, v34")
    A("v_mul_f32 v34, v34, v33")
    A("v_readlane_b32 s8, v14, 63")
    A("v_mul_f32 v34, s90, v34")
    A("v_sub_f32 v34, 0, v34")
    A("s_lshr_b32 s8, s8, 7")
    A("s_max_u32 s8, s8, 6")
    A("s_min_u32 s8, s8, 253")
    A("s_sub_u32 s9, 260, s8")
    A("s_lshl_b32 s9, s9, 23")
    A("s_sub_u32 s10, s8, 132")

    def direct(t, p):
        lit = "1.0" if p == 1 else hex(fbits(float(p)))
        A(f"v_mul_f32 v{t}, {lit}, v34")
        A(f"v_mul_f32 v{t+1}, {lit}, v35")
        A(f"v_fract_f32 v{t+1}, v{t+1}")

    def direct2(t):
        A(f"v_exp_f32 v{t}, v{t}")
        A(f"v_cos_f32 v{t+2}, v{t+1}")
        A(f"v_sin_f32 v{t+3}, v{t+1}")

    def direct_fin(d, t):
        A(f"v_mul_f32 v{d}, v{t}, v{t+2}")
        A(f"v_mul_f32 v{d+1}, v{t}, v{t+3}")

    C = 36
    g = {i: 38 + 2 * (i - 1) for i in range(1, 9)}
    G128, G256, G512, G1024 = 54, 56, 58, 60
    T = [62, 64, 66, 68, 70, 72, 74, 76]
    PK = list(range(78, 86))
    BF, AF = 86, 102
    h = {1: g[8]}
    for i in range(2, 9):
        h[i] = AF + 2 * (i - 2)
    AF2 = 62
    direct(62, 1)
    direct(66, 8)
    direct(70, 128)
    direct2(62)
    direct2(66)
    direct2(70)
    A(f"v_mul_f32 v{C}, s9, v12")
    A(f"v_mul_f32 v{C+1}, s9, v13")
    A("v_ldexp_f32 v6, v33, s10")
    A("s_lshl_b32 s11, s37, 2")
    A(f"s_add_u32 s11, s11, {KA_SC}")
    A("v_mov_b32 v7, s11")
    A("ds_write_b32 v7, v6")
    direct_fin(g[1], 62)
    direct_fin(g[8], 66)
    direct_fin(G128, 70)
    stamp(A, 3)

    def wr(rows_src, buf, neg):
        regs = []
        for k, (row, src) in enumerate(rows_src):
            p = PK[k % 8]
            if src is None:
                A(f"v_mov_b32 v{p}, 0x00003c00")
            else:
                A(f"v_cvt_pk_f16_f32 v{p}, v{src}, {'-' if neg else ''}v{src+1}")
            regs.append(p)
        k = 0
        n = 0
        while k < len(rows_src):
            r0 = rows_src[k][0]
            if k + 1 < len(rows_src) and rows_src[k + 1][0] // 4 == r0 // 4:
                r1 = rows_src[k + 1][0]
                A(f"ds_write2_b32 v{AW + 4*buf + r0//4}, v{regs[k]}, v{regs[k+1]} offset0:{(r0%4)*72} offset1:{(r1%4)*72}")
                k += 2
            else:
                A(f"ds_write_b32 v{AW + 4*buf + r0//4}, v{regs[k]} offset:{(r0%4)*K1_ROWB}")
                k += 1
            n += 1
        return n

    def frags(dst, buf):
        for j in range(4):
            A(f"ds_read_b128 {vr(dst+4*j,4)}, v32 offset:{buf*K1_BUF + 64*j}")

    def mfmas(acc, a, b):
        for j in range(4):
            A(f"v_mfma_f32_16x16x32_f16 {vr(acc,4)}, {vr(a+4*j,4)}, {vr(b+4*j,4)}, {vr(acc,4)}")

    cmul_batch(A, [(g[2], g[1], g[1]), (h[2], h[1], h[1]), (G256, G128, G128)])
    cmul_batch(A, [(g[3], g[2], g[1]), (g[4], g[2], g[2]), (h[3], h[2], h[1]), (h[4], h[2], h[2]), (G512, G256, G256)])
    cmul_batch(A, [(g[5], g[4], g[1]), (g[6], g[4], g[2]), (g[7], g[4], g[3]), (h[5], h[4], h[1]), (h[6], h[4], h[2]),
                   (h[7], h[4], h[3]), (h[8], h[4], h[4]), (G1024, G512, G512)])
    for i in range(4):
        A(f"v_mov_b32 v{20+i}, 0")
        A(f"v_mov_b32 v{24+i}, 0")
        A(f"v_mov_b32 v{4+i}, 0")
    wr([(0, None)] + [(i, h[i]) for i in range(1, 8)], 0, False)
    cmul_batch(A, [(T[i - 1], h[8], h[i]) for i in range(1, 8)])
    wr([(8, h[8])] + [(8 + i, T[i - 1]) for i in range(1, 8)], 0, False)
    frags(BF, 0)
    stamp(A, 4)
    c128 = T[7]
    cmul_batch(A, [(T[i - 1], C, g[i]) for i in range(1, 8)] + [(c128, C, G128)])
    wr([(0, C)] + [(i, T[i - 1]) for i in range(1, 8)], 1, True)
    cmul_batch(A, [(T[i - 1], c128, g[i]) for i in range(1, 8)])
    wr([(8, c128)] + [(8 + i, T[i - 1]) for i in range(1, 8)], 1, True)
    frags(AF, 1)
    cmul_batch(A, [(T[0], C, G512), (T[4], C, G1024)])
    cmul_batch(A, [(T[1], T[0], G128), (T[2], T[0], G256), (T[5], T[4], G256), (T[6], T[4], G512)])
    cmul_batch(A, [(T[3], T[2], G128), (T[7], T[6], G256)])
    n1 = wr([(i, T[i]) for i in range(4)] + [(8 + i, T[4 + i]) for i in range(4)], 0, True)
    c2048 = g[1]
    cmul_batch(A, [(c2048, T[4], G1024)])
    D4 = [g[3], g[5], g[7], g[8]]
    cmul_batch(A, [(D4[i], T[i], g[4]) for i in range(4)])
    A("s_waitcnt lgkmcnt(%d)" % n1)
    mfmas(20, AF, BF)
    cmul_batch(A, [(T[i], T[4 + i], G128) for i in range(4)])
    wr([(4 + i, D4[i]) for i in range(4)] + [(12 + i, T[i]) for i in range(4)], 0, True)
    frags(AF, 0)
    stamp(A, 5)
    cmul_batch(A, [(T[0], C, G256)])
    cmul_batch(A, [(T[4], T[0], G128), (T[1], T[0], g[2]), (T[2], T[0], g[4]), (T[3], T[0], g[6])])
    cmul_batch(A, [(T[5], T[4], g[2]), (T[6], T[4], g[4]), (T[7], T[4], g[6])])
    n2 = wr([(i, T[i]) for i in range(8)], 1, True)
    n2 += wr([(8, c2048)], 1, True)
    A("s_waitcnt lgkmcnt(%d)" % n2)
    mfmas(24, AF, BF)
    frags(AF2, 1)
    A("s_waitcnt lgkmcnt(0)")
    mfmas(4, AF2, BF)
    A("v_lshlrev_b32 v28, 4, v2")
    A("v_add_u32 v30, s7, v28")
    for t, r in enumerate((20, 24, 4)):
        A(f"ds_write_b128 v30, {vr(r,4)} offset:{1024*t}")
    stamp(A, 6)


def expand_round(A, r, lbl):
    A("v_lshlrev_b32 v28, 4, v2")
    A("v_add_u32 v28, s39, v28")
    A("s_mov_b32 s22, 0x01000100")
    A("s_mov_b32 s23, 0x03020302")
    if r < 2:
        A("v_lshlrev_b32 v26, 1, v2")
        A(f"v_sub_u32 v26, {2*(384+255) - 128*r}, v26")
        A("v_add_u32 v26, s40, v26")
        A("ds_read_u16 v40, v26")
        A("ds_read_u16 v41, v26 offset:2")
        A("v_and_b32 v16, 1, v2")
        A("v_cmp_eq_u32 s[20:21], 1, v16")
        A("s_waitcnt lgkmcnt(0)")
        w = 40
        A(f"v_lshl_or_b32 v{w}, v{w+1}, 16, v{w}")
        A(f"v_perm_b32 v{w+2}, v{w}, v{w}, s23")
        A(f"v_perm_b32 v{w+4}, v{w}, v{w}, s22")
        A(f"v_alignbit_b32 v{w+1}, v{w}, v{w}, 16")
        A(f"v_mov_b32 v{w+5}, v{w+4}")
        A(f"v_mov_b32 v{w+6}, v{w+2}")
        A(f"v_cndmask_b32 v{w+3}, v{w+2}, v{w+1}, s[20:21]")
        A(f"v_cndmask_b32 v{w+7}, v{w+1}, v{w+4}, s[20:21]")
        A(f"ds_write_b64 v28, {vr(w+2,2)} offset:{KA_KE + 1024*r}")
        A(f"ds_write_b64 v28, {vr(w+4,2)} offset:{KA_KE + 1024*r + 8}")
        A(f"ds_write_b64 v28, {vr(w+6,2)} offset:{KA_KO + 1024*r}")
        A(f"ds_write_b64 v28, {vr(w+4,2)} offset:{KA_KO + 1024*r + 8}")
    elif r == 2:
        A("v_lshlrev_b32 v27, 2, v2")
        A(f"v_sub_u32 v27, {512 + 4*127}, v27")
        A("v_add_u32 v27, s40, v27")
        A("ds_read_b32 v56, v27")
        A("ds_read_u16 v57, v27 offset:4")
        A("s_mov_b32 s24, 0x07060100")
        A("s_waitcnt lgkmcnt(0)")
        A("v_perm_b32 v40, v57, v57, s22")
        A("v_perm_b32 v41, v56, v56, s23")
        A("v_alignbit_b32 v42, v56, v56, 16")
        A("v_perm_b32 v43, v56, v56, s22")
        A("v_perm_b32 v44, v56, v57, s24")
        A("v_mov_b32 v45, v41")
        A("v_mov_b32 v46, v43")
        A("v_mov_b32 v47, v43")
        A(f"ds_write_b128 v28, v[40:43] offset:{KA_KE + 2048}")
        A(f"ds_write_b128 v28, v[44:47] offset:{KA_KO + 2048}")
    else:
        for k in range(9):
            A(f"ds_read_u16 v{40+k}, v{30+k}")
        A("v_mov_b32 v12, 0")
        A("v_and_b32 v14, 15, v2")
        A("v_lshlrev_b32 v14, 2, v14")
        A("v_add_u32 v14, s39, v14")
        A(f"ds_write_b32 v14, v12 offset:{KA_KE + 4096}")
        A(f"ds_write_b32 v14, v12 offset:{KA_KO + 4096}")
        A("s_waitcnt lgkmcnt(2)")
        for k in range(4):
            A(f"v_lshl_or_b32 v{52+k}, v{41+2*k}, 16, v{40+2*k}")
        A("v_alignbit_b32 v56, v53, v52, 16")
        A("v_alignbit_b32 v57, v54, v53, 16")
        A("v_alignbit_b32 v58, v55, v54, 16")
        A("v_alignbit_b32 v59, v48, v55, 16")
        A(f"ds_write_b128 v28, v[52:55] offset:{KA_KE + 3072}")
        A(f"ds_write_b128 v28, v[56:59] offset:{KA_KO + 3072}")
        A("v_mov_b32 v14, s39")
        A(f"ds_write_b16 v14, v12 offset:{KA_KO + 2*2047}")


def ka(A):
    A("s_cmp_ge_u32 s2, 256")
    A("s_cbranch_scc1 KA_END")
    k_begin(A)
    A("s_load_dwordx16 s[16:31], s[0:1], 0")
    A("s_load_dwordx4 s[44:47], s[0:1], 104")
    A("v_lshrrev_b32 v1, 6, v0")
    A("v_readfirstlane_b32 s3, v1")
    A("v_and_b32 v2, 63, v0")
    A("v_mov_b32 v3, 0")
    A("v_lshlrev_b32 v4, 2, v2")
    A(f"v_add_u32 v4, {KA_CNT}, v4")
    A("s_cmp_lg_u32 s3, 0")
    A("s_cbranch_scc1 KA_NOZ")
    A("s_mov_b64 exec, 0xffffffff")
    A("ds_write_b32 v4, v3")
    A("s_mov_b64 exec, -1")
    A.label("KA_NOZ")
    A(f"s_sub_u32 s4, s2, {NPROD}")
    pair_swizzle(A, 35, 4, 6)
    A("s_sub_u32 s4, s3, 4")
    A("s_mul_i32 s37, s4, 11")
    A("s_lshr_b32 s37, s37, 5")
    A("s_mul_i32 s36, s37, 3")
    A("s_sub_u32 s36, s4, s36")
    A("s_lshl_b32 s34, s35, 2")
    A("s_add_u32 s34, s34, s37")
    A(f"s_mul_i32 s7, s4, {KG_SZ}")
    A("s_mul_i32 s4, s34, 384")
    A("s_lshr_b32 s5, s34, 1")
    A("s_lshl_b32 s5, s5, 2")
    A("s_lshl_b32 s8, s36, 7")
    A("s_add_u32 s8, s8, s4")
    A("v_lshlrev_b32 v3, 1, v2")
    A("v_add_u32 v1, s8, v3")
    A("v_add_u32 v3, s4, v3")
    A("s_waitcnt lgkmcnt(0)")
    A("s_mov_b32 s32, s46")
    A("s_mov_b32 s33, s47")
    A("s_cmp_lt_u32 s3, 4")
    A("s_cbranch_scc1 KA_B0")
    A(f"s_cmp_lt_u32 s2, {NPROD}")
    A("s_cbranch_scc1 KA_B0")
    A("s_load_dword s6, s[26:27], s5")
    A("global_load_ushort v10, v1, s[18:19]")
    A("global_load_ushort v11, v1, s[20:21]")
    A("global_load_ushort v12, v1, s[22:23]")
    A("global_load_ushort v13, v1, s[24:25]")
    for i in range(3):
        A(f"global_load_ushort v{14+i}, v3, s[22:23] offset:{128*i}")
        A(f"global_load_ushort v{17+i}, v3, s[24:25] offset:{128*i}")
    A.label("KA_B0")
    A("s_barrier")
    A("s_cmp_lt_u32 s3, 3")
    A("s_cbranch_scc1 KA_LN1")
    A("s_cmp_lg_u32 s3, 3")
    A("s_cbranch_scc1 KA_NOTAG")
    A(f"s_mov_b32 s14, {WS_EPOCH}")
    A("s_load_dword s15, s[32:33], s14")
    if TLBW >= 2:
        A("s_load_dwordx2 s[36:37], s[0:1], 96")
        A("s_load_dwordx2 s[38:39], s[0:1], 64")
        A("v_min_u32 v3, 7, v2")
        A("v_lshlrev_b32 v3, 21, v3")
        A("global_load_dword v60, v3, s[32:33]")
        A("v_min_u32 v5, 1, v2")
        A("v_lshlrev_b32 v5, 21, v5")
        A("v_mov_b32 v7, 0")
        A("s_waitcnt lgkmcnt(0)")
        A("global_load_dword v61, v5, s[36:37]")
        A("global_load_dword v62, v7, s[38:39]")
    A(f"v_mov_b32 v18, {KA_CNT + 96}")
    A("s_waitcnt lgkmcnt(0)")
    A("s_mul_i32 s15, s15, 0x9E3779B1")
    A("s_add_u32 s15, s15, 0x632BE5AB")
    A("v_mov_b32 v19, s15")
    A("ds_write_b32 v18, v19")
    A("s_waitcnt lgkmcnt(0)")
    A(f"v_mov_b32 v18, {KA_CNT + 12}")
    A("v_mov_b32 v19, 1")
    A("s_mov_b64 exec, 1")
    A("ds_add_u32 v18, v19")
    A("s_mov_b64 exec, -1")
    A(f"s_cmp_ge_u32 s2, {NPROD}")
    A("s_cbranch_scc1 KA_CONV")
    A("s_branch KA_WTPOLL")
    A.label("KA_NOTAG")
    A(f"s_cmp_lt_u32 s2, {NPROD}")
    A("s_cbranch_scc1 KA_WT0")
    kgen_wave(A)
    arrive_s(A, 4, 37)
    wait_s(A, 4, 37, 3, "KA_W4")
    stamp(A, 7)
    A(f"s_mul_i32 s11, s37, {3*KG_SZ}")
    A("s_lshl_b32 s12, s36, 10")
    A("s_add_u32 s11, s11, s12")
    A("v_add_u32 v28, s11, v28")
    for w in range(3):
        A(f"ds_read_b128 {vr(40+4*w,4)}, v28 offset:{KG_SZ*w}")
    A("s_waitcnt lgkmcnt(0)")
    for i in range(4):
        A(f"v_add_f32 v{40+i}, v{40+i}, v{44+i}")
    for i in range(4):
        A(f"v_add_f32 v{40+i}, v{40+i}, v{48+i}")
    A("v_cvt_pk_f16_f32 v40, v40, v41")
    A("v_cvt_pk_f16_f32 v41, v42, v43")
    A("s_cmp_eq_u32 s36, 1")
    A("s_cbranch_scc1 KA_S1")
    A("ds_write_b64 v29, v[40:41]")
    A("s_branch KA_S2")
    A.label("KA_S1")
    A("ds_write_b16 v29, v40")
    A("ds_write_b16_d16_hi v29, v40 offset:64")
    A("ds_write_b16 v29, v41 offset:128")
    A("ds_write_b16_d16_hi v29, v41 offset:192")
    A.label("KA_S2")
    arrive_s(A, 8, 37)
    wait_s(A, 8, 37, 3, "KA_W5")
    A(f"s_mul_i32 s39, s37, {KEO_ST}")
    A(f"s_add_u32 s39, s39, {KEO_BASE}")
    A(f"s_mul_i32 s40, s37, {T_ST}")
    A(f"s_add_u32 s40, s40, {KA_T}")
    A("s_cmp_eq_u32 s36, 0")
    A("s_cbranch_scc1 KA_R0")
    A("s_cmp_eq_u32 s36, 1")
    A("s_cbranch_scc1 KA_R1")
    expand_round(A, 2, "R2")
    A("s_branch KA_RX")
    A.label("KA_R0")
    expand_round(A, 0, "R0")
    A("s_branch KA_RX")
    A.label("KA_R1")
    expand_round(A, 1, "R1")
    A.label("KA_RX")
    arrive_s(A, 12, 37)
    A("s_cmp_lt_u32 s2, 192")
    A("s_cbranch_scc1 KA_KGX")
    A("s_cmp_ge_u32 s3, 8")
    A("s_cbranch_scc1 KA_KGX")
    wait_count(A, 19, 1, "KZ_W47", sleep=32)
    A("s_branch KZ_P2")
    A.label("KA_KGX")
    k_end(A, 0)

    A.label("KA_CONV")
    A("s_lshl_b32 s4, s35, 2")
    A("s_add_u32 s4, s4, s3")
    A("s_lshr_b32 s14, s4, 1")
    A("s_lshl_b32 s14, s14, 2")
    A(f"s_mul_i32 s39, s3, {KEO_ST}")
    A(f"s_mul_i32 s40, s3, {T_ST}")
    A(f"s_add_u32 s40, s40, {KA_T}")
    A(f"s_mul_i32 s41, s3, {U_ST}")
    A(f"s_add_u32 s41, s41, {KA_U}")
    A("v_and_b32 v6, 15, v2")
    A("v_lshrrev_b32 v7, 4, v2")
    A("v_lshrrev_b32 v8, 1, v7")
    A("v_and_b32 v9, 1, v7")
    A("v_mov_b32 v12, 0")
    A("v_mov_b32 v13, 0")
    A("v_lshlrev_b32 v14, 3, v2")
    A("v_add_u32 v14, s41, v14")
    A("ds_write_b64 v14, v[12:13]")
    A("v_sub_u32 v14, 2047, v6")
    A("v_lshlrev_b32 v15, 4, v8")
    A("v_sub_u32 v14, v14, v15")
    A("v_lshlrev_b32 v15, 3, v9")
    A("v_add_u32 v14, v14, v15")
    A("v_lshlrev_b32 v14, 1, v14")
    A(f"v_add_u32 v15, {KA_KO - 2}, v14")
    A("v_and_b32 v16, 1, v6")
    A("v_cmp_eq_u32 vcc, 1, v16")
    A("v_cndmask_b32 v14, v15, v14, vcc")
    A("v_add_u32 v14, s39, v14")
    AB = [20, 21, 22, 23]
    for p in range(4):
        A(f"v_subrev_u32 v{AB[p]}, {512*(2*p+1) + 448}, v14")
    A("v_lshlrev_b32 v15, 5, v6")
    A("v_lshlrev_b32 v16, 5, v8")
    A("v_sub_u32 v15, v15, v16")
    A("v_lshlrev_b32 v16, 4, v9")
    A("v_add_u32 v15, v15, v16")
    A(f"v_add_u32 v15, {512 - 448}, v15")
    BB = 24
    A(f"v_add_u32 v{BB}, s41, v15")
    A("v_lshlrev_b32 v15, 5, v6")
    A("v_lshlrev_b32 v16, 3, v7")
    A("v_add_u32 v25, v15, v16")
    A("v_lshlrev_b32 v3, 3, v2")
    A("v_sub_u32 v3, 511, v3")
    for k in range(9):
        A(f"v_subrev_u32 v{30+k}, {k}, v3")
    A("v_max_i32 v38, 0, v38")
    for k in range(9):
        A(f"v_cvt_f32_i32 v{40+k}, v{30+k}")
    for k in range(0, 8, 2):
        A(f"v_cvt_pk_bf16_f32 v{50+k}, v{40+k}, v{41+k}")
        A(f"v_lshrrev_b32 v{51+k}, 16, v{50+k}")
        A(f"v_and_b32 v{50+k}, 0xffff, v{50+k}")
    A("v_cvt_pk_bf16_f32 v58, v48, v48")
    A("v_and_b32 v58, 0xffff, v58")
    for k in range(9):
        A(f"v_subrev_u32 v{50+k}, 17024, v{50+k}")
        A(f"v_min_i32 v{30+k}, 127, v{30+k}")
        A(f"v_max_i32 v{50+k}, v{50+k}, v{30+k}")
        A(f"v_lshlrev_b32 v{30+k}, 1, v{50+k}")
        A(f"v_add_u32 v{30+k}, s40, v{30+k}")
    A("v_lshrrev_b32 v5, 2, v2")
    A("v_mul_u32_u24 v5, 10240, v5")
    A("v_and_b32 v4, 3, v2")
    A("v_lshl_add_u32 v5, v4, 4, v5")
    A("s_lshl_b32 s7, s35, 6")
    A("s_mul_i32 s8, s3, 655360")
    A("s_add_u32 s7, s7, s8")
    A(f"s_add_u32 s7, s7, {WS_UT}")
    A("v_add_u32 v5, s7, v5")
    A(f"v_mul_u32_u24 v4, {U_ST}, v4")
    A("v_lshrrev_b32 v3, 2, v2")
    A("v_lshl_add_u32 v4, v3, 4, v4")
    A("s_lshl_b32 s8, s3, 10")
    A(f"s_add_u32 s8, s8, {KA_U + 512}")
    A("v_add_u32 v4, s8, v4")
    A("s_load_dword s11, s[28:29], s14")
    stamp(A, 1)
    A("s_cmp_lg_u32 s3, 3")
    A("s_cbranch_scc1 KA_GOT")
    wait_count(A, 3, 4, "KA_OWN", sleep=4)
    poll_flags(A, "KA_POLL")
    A(f"s_cmp_lg_u32 s2, {NPROD}")
    A("s_cbranch_scc1 KA_GOT")
    A(f"v_mov_b32 v3, {WS_EPOCH}")
    A("v_mov_b32 v10, s15")
    A("s_mov_b64 exec, 1")
    A(f"global_store_dword v3, v10, s[32:33] {SC}")
    A("s_mov_b64 exec, -1")
    A.label("KA_GOT")
    AF, BF, ACC = 32, 64, 96
    for i in range(32):
        A(f"v_mov_b32 v{ACC+i}, 0")
    A("s_bitcmp1_b32 s4, 0")
    group_sync(A, 2, 4, "KA_GS2")
    stamp(A, 2)
    for j in range(4):
        A(f"global_load_dwordx4 {vr(64+4*j,4)}, v5, s[32:33] {SC}")
        if j < 3:
            A("v_add_u32 v5, 163840, v5")
    A("s_bitcmp1_b32 s4, 0")
    A("s_cbranch_scc1 KA_ODD2")
    A("s_lshl_b32 s11, s11, 16")
    A.label("KA_ODD2")
    A("s_and_b32 s11, s11, 0xffff0000")
    for j in range(4):
        A(f"s_waitcnt vmcnt({3-j})")
        A(f"ds_write_b128 v4, {vr(64+4*j,4)} offset:{256*j}")
    arrive(A, 17)
    stamp(A, 3)
    wait_s(A, 8, 3, 3, "KA_W5C")
    expand_round(A, 3, "R3")
    A("s_lshl_b32 s12, s3, 2")
    A(f"s_add_u32 s12, s12, {KA_SC}")
    A("v_mov_b32 v3, s12")
    A("ds_read_b32 v10, v3")
    wait_s(A, 12, 3, 3, "KA_W6")
    wait_count(A, 17, 4, "KA_W7", sleep=0)
    stamp(A, 5)

    def loadA(q, i0):
        p = q // 2
        o = (128 if q % 2 == 0 else 0) + 16 * (7 - i0)
        return [f"ds_read2_b32 {vr(AF+4*q,2)}, v{AB[p]} offset0:{o} offset1:{o+1}",
                f"ds_read2_b32 {vr(AF+4*q+2,2)}, v{AB[p]} offset0:{o+2} offset1:{o+3}"]

    def loadB(tau, i0):
        return [f"ds_read_b128 {vr(BF+4*tau,4)}, v{BB} offset:{512*tau + 64*(7-i0)}"]

    queue = []
    if os.environ.get("ALIGN"):
        A(".p2align 3")
    for q in range(8):
        A(loadB(7 - q, 0)[0])
        queue.append(("B", 7 - q))
        if q == 0:
            for s in loadA(0, 0):
                A(s)
            queue += [("A", 0), ("A", 0)]
    for q in range(1, 8):
        for s in loadA(q, 0):
            A(s)
        queue += [("A", q), ("A", q)]
    pending = []

    def wait_for(tags):
        while any(tg in tags for _, tg in pending):
            s_, tg = pending.pop(0)
            A(s_)
            queue.append(tg)
        last = -1
        for i, t in enumerate(queue):
            if t in tags:
                last = i
        if last >= 0:
            n = len(queue) - 1 - last
            A(f"s_waitcnt lgkmcnt({min(n, 15)})")
            if os.environ.get("ALIGN"):
                A("s_nop 0")
            del queue[:last + 1]

    for i0 in range(8):
        for q in range(8):
            for tau in range(7 - q, -1, -1):
                wait_for({("A", q), ("B", tau)})
                t = q + tau
                A(f"v_mfma_f32_16x16x32_f16 {vr(ACC+4*t,4)}, {vr(AF+4*q,4)}, {vr(BF+4*tau,4)}, {vr(ACC+4*t,4)}")
                if i0 < 7:
                    if tau == 7 - q:
                        pending.insert(0, (loadB(7 - q, i0 + 1)[0], ("B", 7 - q)))
                    if tau == 0:
                        for s in loadA(q, i0 + 1):
                            pending.append((s, ("A", q)))
                if pending:
                    s, tag = pending.pop(0)
                    A(s)
                    queue.append(tag)
    stamp(A, 6)
    A("v_add_u32 v26, s41, v25")
    A("v_add_u32 v27, s39, v25")
    for t in range(8):
        A(f"ds_read_b64 {vr(32+2*t,2)}, v26 offset:{512 + 512*t}")
    A(f"v_mov_b32 v28, {ONE_LO}")
    A(f"v_mov_b32 v29, {ONE_HI}")
    A("v_mov_b32 v11, v10")
    A("s_waitcnt lgkmcnt(0)")
    for t in range(8):
        a = ACC + 4 * t
        u = 32 + 2 * t
        tm = 48 + 8 * (t & 1)
        A(f"v_pk_mul_f32 {vr(a,2)}, {vr(a,2)}, v[10:11]")
        A(f"v_pk_mul_f32 {vr(a+2,2)}, {vr(a+2,2)}, v[10:11]")
        A(f"v_fma_mix_f32 v{tm}, v{u}, s11, 0 op_sel:[0,0,0] op_sel_hi:[1,0,0]")
        A(f"v_fma_mix_f32 v{tm+1}, v{u}, s11, 0 op_sel:[1,0,0] op_sel_hi:[1,0,0]")
        A(f"v_fma_mix_f32 v{tm+2}, v{u+1}, s11, 0 op_sel:[0,0,0] op_sel_hi:[1,0,0]")
        A(f"v_fma_mix_f32 v{tm+3}, v{u+1}, s11, 0 op_sel:[1,0,0] op_sel_hi:[1,0,0]")
        A(f"v_cvt_pk_bf16_f32 v{a}, v{a}, v{a+1}")
        A(f"v_cvt_pk_bf16_f32 v{a+1}, v{a+2}, v{a+3}")
        A(f"v_cvt_pk_bf16_f32 v{tm+4}, v{tm}, v{tm+1}")
        A(f"v_cvt_pk_bf16_f32 v{tm+5}, v{tm+2}, v{tm+3}")
        A(f"v_lshlrev_b32 v{tm}, 16, v{tm+4}")
        A(f"v_and_b32 v{tm+1}, 0xffff0000, v{tm+4}")
        A(f"v_lshlrev_b32 v{tm+2}, 16, v{tm+5}")
        A(f"v_and_b32 v{tm+3}, 0xffff0000, v{tm+5}")
        A(f"v_dot2_f32_bf16 v{tm}, v{a}, v28, v{tm}")
        A(f"v_dot2_f32_bf16 v{tm+1}, v{a}, v29, v{tm+1}")
        A(f"v_dot2_f32_bf16 v{tm+2}, v{a+1}, v28, v{tm+2}")
        A(f"v_dot2_f32_bf16 v{tm+3}, v{a+1}, v29, v{tm+3}")
        A(f"v_cvt_pk_bf16_f32 v{a+2}, v{tm}, v{tm+1}")
        A(f"v_cvt_pk_bf16_f32 v{a+3}, v{tm+2}, v{tm+3}")
        A(f"ds_write_b64 v27, {vr(a+2,2)} offset:{KA_KE + 512*t}")
    stamp(A, 7)
    A("v_lshrrev_b32 v14, 2, v6")
    A(f"v_mul_u32_u24 v14, {KEO_ST}, v14")
    A("v_and_b32 v15, 3, v2")
    A("v_lshlrev_b32 v15, 3, v15")
    A("v_add_u32 v14, v14, v15")
    A("v_lshlrev_b32 v15, 5, v7")
    A("v_add_u32 v14, v14, v15")
    A("s_lshl_b32 s12, s3, 10")
    A("v_add_u32 v14, s12, v14")
    A("v_lshrrev_b32 v15, 3, v6")
    A("v_lshlrev_b32 v16, 1, v7")
    A("v_add_u32 v15, v15, v16")
    A("v_mul_u32_u24 v15, 10240, v15")
    A("v_and_b32 v16, 7, v6")
    A("v_lshlrev_b32 v16, 3, v16")
    A("v_add_u32 v15, v15, v16")
    A("s_mul_i32 s12, s3, 655360")
    A("s_lshl_b32 s13, s35, 6")
    A("s_add_u32 s12, s12, s13")
    A(f"s_add_u32 s12, s12, {WS_AT}")
    A("v_add_u32 v15, s12, v15")
    group_sync(A, 18, 4, "KA_GS18")
    for k in range(8):
        A(f"ds_read_b64_tr_b16 {vr(40+2*k,2)}, v14 offset:{KA_KE + 128*k}")
    for k in range(8):
        A(f"s_waitcnt lgkmcnt({7-k})")
        A(f"global_store_dwordx2 v15, {vr(40+2*k,2)}, s[32:33] {SC}")
        if k < 7:
            A("v_add_u32 v15, 81920, v15")
    stamp(A, 8)
    A("s_waitcnt vmcnt(0)")
    arrive(A, 20)
    A("s_cmp_eq_u32 s3, 3")
    A("s_cbranch_scc1 KZ_CPOLL")
    A("s_cmp_lg_u32 s3, 0")
    A("s_cbranch_scc1 KZ_P2W")
    wait_count(A, 20, 4, "KZ_W20", sleep=0)
    A(f"v_mov_b32 v3, {KA_CNT + 96}")
    A("ds_read_b32 v4, v3")
    A("s_waitcnt lgkmcnt(0)")
    A("v_readfirstlane_b32 s15, v4")
    store_flag_b(A)
    A(f"s_cmp_lg_u32 s2, {NPROD}")
    A("s_cbranch_scc1 KZ_P2W")
    A(f"v_mov_b32 v3, {WS_GO}")
    A("v_mov_b32 v4, s15")
    A("s_mov_b64 exec, 1")
    A(f"global_store_dword v3, v4, s[32:33] {FMOD}")
    A("s_mov_b64 exec, -1")
    A("s_branch KZ_P2W")
    A.label("KZ_CPOLL")
    wait_count(A, 20, 4, "KZ_W20B", sleep=0)
    A.label("KZ_POLLB")
    poll_flags_b(A, "KZ_PB")
    arrive(A, 19)
    A("s_branch KZ_P2")
    A.label("KZ_P2W")
    wait_count(A, 19, 1, "KZ_W19", sleep=3)
    A("s_branch KZ_P2")

    A.label("KA_LN1")
    A(f"s_setprio {os.environ.get('LN_PRIO', '3')}")
    A("v_mov_b32 v20, v0")
    A("s_mul_i32 s5, s2, 10240")
    A("v_min_u32 v21, 159, v20")
    A("v_lshlrev_b32 v3, 3, v21")
    A("v_add_u32 v3, s5, v3")
    A("v_add_u32 v4, 5120, v3")
    A("v_lshrrev_b32 v5, 4, v20")
    A("v_mul_u32_u24 v6, 1280, v5")
    A("v_and_b32 v7, 15, v20")
    A("v_lshlrev_b32 v7, 4, v7")
    A("v_add_u32 v6, v6, v7")
    A("v_add_u32 v6, s5, v6")
    A("s_cmp_eq_u32 s3, 2")
    A("s_cbranch_scc1 KA_LNB")
    for i in range(5):
        A(f"global_load_dwordx4 {vr(24+4*i,4)}, v6, s[16:17] offset:{256*i}")
    A.label("KA_LNB")
    for r in range(8):
        A(f"global_load_dwordx2 {vr(48+2*r,2)}, v{3 if r < 4 else 4}, s[16:17] offset:{1280*(r%4)}")
    A(f"v_mov_b32 v14, {ONE_LO}")
    A(f"v_mov_b32 v15, {ONE_HI}")
    A("s_cmp_eq_u32 s3, 2")
    A("s_cbranch_scc1 KA_P1")
    for r in (8, 9, 10, 11):
        A(f"v_mov_b32 v{r}, 0")
    A("v_mov_b32 v12, 0x3f803f80")
    A("s_waitcnt vmcnt(8)")
    for i in range(0, 20, 2):
        A(f"v_dot2c_f32_bf16 v8, v{24+i}, v12")
        A(f"v_dot2c_f32_bf16 v9, v{24+i}, v{24+i}")
        A(f"v_dot2c_f32_bf16 v10, v{25+i}, v12")
        A(f"v_dot2c_f32_bf16 v11, v{25+i}, v{25+i}")
    A("s_nop 2")
    A("v_add_f32 v8, v8, v10")
    A("v_add_f32 v9, v9, v11")
    for sh in (8, 4, 2, 1):
        A(f"v_add_f32_dpp v8, v8, v8 row_ror:{sh} row_mask:0xf bank_mask:0xf")
        A(f"v_add_f32_dpp v9, v9, v9 row_ror:{sh} row_mask:0xf bank_mask:0xf")
    ln_finish(A, 8, 9, 10)
    A("v_sub_f32 v8, 0, v8")
    A("v_lshlrev_b32 v5, 3, v5")
    A(f"v_add_u32 v5, {KA_STATS}, v5")
    A("ds_write_b64 v5, v[8:9]")
    A.label("KA_P1")
    group_sync(A, 0, 3, "KA_GS0")
    stamp(A, 8)
    A(f"v_mov_b32 v5, {KA_STATS}")
    for i in range(4):
        A(f"ds_read_b128 {vr(24+4*i,4)}, v5 offset:{16*i}")
    A("v_lshlrev_b32 v3, 6, v21")
    A(f"v_add_u32 v3, {KA_STAGE}, v3")
    A("s_waitcnt vmcnt(0) lgkmcnt(0)")
    for rp in range(4):
        r0, r1 = 2 * rp, 2 * rp + 1
        tt = [84 + 3 * ch for ch in range(4)]
        for ch in range(4):
            a, b = 48 + 2 * r0 + (ch >> 1), 48 + 2 * r1 + (ch >> 1)
            one = 14 + (ch & 1)
            A(f"v_dot2_f32_bf16 v{tt[ch]}, v{a}, v{one}, v{24+2*r0}")
            A(f"v_dot2_f32_bf16 v{tt[ch]+1}, v{b}, v{one}, v{24+2*r1}")
        for ch in range(4):
            A(f"v_cvt_pk_bf16_f32 v{tt[ch]+2}, v{tt[ch]}, v{tt[ch]+1}")
        for ch in range(4):
            A(f"v_lshlrev_b32 v{tt[ch]}, 16, v{tt[ch]+2}")
            A(f"v_and_b32 v{tt[ch]+1}, 0xffff0000, v{tt[ch]+2}")
        for ch in range(4):
            A(f"v_mul_f32 v{tt[ch]}, v{tt[ch]}, v{25+2*r0}")
            A(f"v_mul_f32 v{tt[ch]+1}, v{tt[ch]+1}, v{25+2*r1}")
        for ch in range(4):
            A(f"v_cvt_pk_bf16_f32 v{tt[ch]+2}, v{tt[ch]}, v{tt[ch]+1}")
        for ch in range(4):
            A(f"v_lshlrev_b32 v{tt[ch]}, 16, v{tt[ch]+2}")
            A(f"v_and_b32 v{tt[ch]+1}, 0xffff0000, v{tt[ch]+2}")
        for ch in range(4):
            A(f"v_cvt_pk_f16_f32 v{68+4*ch+rp}, v{tt[ch]}, v{tt[ch]+1}")
    for ch in range(4):
        A(f"ds_write_b128 v3, {vr(68+4*ch,4)} offset:{16*ch}")
    group_sync(A, 1, 3, "KA_GS1")
    A("v_lshlrev_b32 v3, 4, v20")
    A(f"v_add_u32 v4, {KA_STAGE}, v3")
    for j in range(4):
        A(f"ds_read_b128 {vr(24+4*j,4)}, v4 offset:{3072*j}")
    A(f"s_add_u32 s5, s5, {WS_UT}")
    A("v_add_u32 v3, s5, v3")
    A("s_waitcnt lgkmcnt(0)")
    for j in range(3):
        A(f"global_store_dwordx4 v3, {vr(24+4*j,4)}, s[32:33] {SC}")
        A("v_add_u32 v3, 3072, v3")
    A("s_cmp_lg_u32 s3, 0")
    A("s_cbranch_scc1 KA_P3")
    A(f"global_store_dwordx4 v3, {vr(36,4)}, s[32:33] {SC}")
    A.label("KA_P3")
    A("s_waitcnt vmcnt(0)")
    group_sync(A, 3, 4, "KA_GS3")
    stamp(A, 9)
    A("s_cmp_lg_u32 s3, 0")
    A("s_cbranch_scc1 KA_LNX")
    A(f"v_mov_b32 v3, {KA_CNT + 96}")
    A("ds_read_b32 v4, v3")
    A(f"s_lshr_b32 s5, s2, {0 if FLAG64 == 2 else 2 if FLAG64 else 4}")
    A("s_lshl_b32 s5, s5, 7")
    A(f"s_and_b32 s6, s2, {0 if FLAG64 == 2 else 3 if FLAG64 else 15}")
    A("s_lshl_b32 s6, s6, 2")
    A("s_add_u32 s5, s5, s6")
    A(f"s_add_u32 s5, s5, {WS_FLAG}")
    A("v_mov_b32 v3, s5")
    A("s_waitcnt lgkmcnt(0)")
    A("s_mov_b64 exec, 1")
    A(f"global_store_dword v3, v4, s[32:33] {FMOD}")
    A("s_mov_b64 exec, -1")
    A.label("KA_LNX")
    A("s_setprio 0")
    A(f"s_cmp_ge_u32 s2, {NPROD}")
    A("s_cbranch_scc1 KA_CONV")
    A("s_branch KZ_P2W")
    A.label("KA_WTPOLL")
    wait_count(A, 3, 4, "KA_OWN2", sleep=4)
    arrive(A, 16)
    wait_count(A, 21, 5, "KZ_W21", sleep=16)
    store_flag_b(A)
    poll_go(A, "KZ_GO")
    A("s_branch KZ_POLLB")
    A.label("KA_WT0")
    A("s_cmp_ge_u32 s3, 8")
    A("s_cbranch_scc1 KA_PRE" if PREFILL[0] else "s_cbranch_scc1 KA_WTX")
    wait_count(A, 16, 1, "KA_WTW", sleep=8)
    wt_role(A, "KA", 0, -2, 8192, 0, 960, 0, os.environ.get("WT_MOD", "sc1"), 384)
    if PREFILL[0]:
        A.label("KA_PRE")
        if TLBW == 1 or TLBW == 3:
            A("s_cmp_lg_u32 s3, 9")
            A("s_cbranch_scc1 KA_PRE2")
            A("s_load_dwordx2 s[36:37], s[0:1], 96")
            A("s_load_dwordx2 s[38:39], s[0:1], 64")
            A("v_min_u32 v3, 7, v2")
            A("v_lshlrev_b32 v3, 21, v3")
            A("global_load_dword v4, v3, s[32:33]")
            A("v_min_u32 v5, 1, v2")
            A("v_lshlrev_b32 v5, 21, v5")
            A("v_mov_b32 v7, 0")
            A("s_waitcnt lgkmcnt(0)")
            A("global_load_dword v6, v5, s[36:37]")
            A("global_load_dword v8, v7, s[38:39]")
            A("s_endpgm")
            A.label("KA_PRE2")
        A("s_cmp_lg_u32 s3, 8")
        A("s_cbranch_scc1 KA_WTX")
        nk = 256 * KEY_STRIDE // 1024
        A(f"s_cmp_ge_u32 s2, {nk + 24}")
        A("s_cbranch_scc1 KA_PRE3")
        A("s_lshl_b32 s4, s2, 10")
        A(f"s_add_u32 s5, s4, {WS_RK}")
        A(f"s_add_u32 s6, s4, {WS_ACT - 1024 * nk}")
        A(f"s_cmp_lt_u32 s2, {nk}")
        A("s_cselect_b32 s5, s5, s6")
        A("v_lshlrev_b32 v3, 4, v2")
        A("v_add_u32 v3, s5, v3")
        for i in range(4):
            A(f"v_mov_b32 v{4+i}, -1")
        A(f"global_store_dwordx4 v3, v[4:7], s[32:33] {SC}")
        A("s_waitcnt vmcnt(0)")
        A.label("KA_PRE3")
        arrive(A, 21)
    A.label("KA_WTX")
    k_end(A, 0)
    A.label("KZ_P2")
    kd_body(A)
    A.label("KA_END")
    A("s_endpgm")


KC_SLEEP = int(os.environ.get('KC_SLEEP', '6'))
AT_LD = os.environ.get('AT_LD', '')
KD_LDS = 18432
KD_F1_FIRST = int(os.environ.get("KD_F1_FIRST", "20"))
KD_F2_FIRST = int(os.environ.get("KD_F2_FIRST", "64"))
KD_KSLEEP = int(os.environ.get("KD_KSLEEP", "8"))
NROW = 256


def sel_part1(A, lbl, first_sleep):
    A(f"v_lshlrev_b32 v4, {KEY_STRIDE.bit_length() - 1}, v0")
    A(f"v_add_u32 v4, {WS_RK}, v4")
    A("s_mov_b32 s12, 0")
    A("v_mov_b32 v21, -1")
    if first_sleep:
        A(f"s_sleep {first_sleep}")
    A.label(lbl)
    A(f"global_load_dwordx4 v[8:11], v4, s[32:33] {SC}")
    A(f"global_load_dwordx4 v[12:15], v4, s[32:33] offset:16 {SC}")
    A("s_waitcnt vmcnt(0)")
    A("v_max3_u32 v16, v8, v9, v10")
    A("v_max3_u32 v17, v11, v12, v13")
    A("v_max3_u32 v16, v16, v14, v15")
    A("v_max_u32 v16, v16, v17")
    A("v_cmp_eq_u32 vcc, v21, v16")
    A("s_cmp_eq_u64 vcc, 0")
    A(f"s_cbranch_scc1 {lbl}_OK")
    A("s_add_u32 s12, s12, 1")
    A(f"s_cmp_ge_u32 s12, {SPIN_MAX}")
    A(f"s_cbranch_scc1 {lbl}_OK")
    A(f"s_sleep {KD_KSLEEP}")
    A(f"s_branch {lbl}")
    A.label(lbl + "_OK")
    stamp(A, 1005)
    net = [(0, 1), (2, 3), (4, 5), (6, 7), (0, 2), (1, 3), (4, 6), (5, 7), (1, 2), (5, 6), (0, 4), (3, 7), (1, 5), (2, 6),
           (1, 4), (3, 6), (2, 4), (3, 5), (3, 4)]
    reg = list(range(8, 16))
    spare = 16
    for a_, b_ in net:
        A(f"v_max_u32 v{spare}, v{reg[a_]}, v{reg[b_]}")
        A(f"v_min_u32 v{reg[b_]}, v{reg[a_]}, v{reg[b_]}")
        reg[a_], spare = spare, reg[a_]
    steps = [("row_shr:1", "0xf"), ("row_shr:2", "0xf"), ("row_shr:4", "0xf"), ("row_shr:8", "0xf"),
             ("row_bcast:15", "0xa"), ("row_bcast:31", "0xc")]
    for r in range(4):
        A(f"v_mov_b32 v17, v{reg[0]}")
        A(f"v_mov_b32 v18, v{reg[1]}")
        for ctl, mask in steps:
            bc = " bound_ctrl:0" if ctl.startswith("row_shr") else ""
            A(f"v_min_u32_dpp v19, v17, v17 {ctl} row_mask:{mask} bank_mask:0xf{bc}")
            A(f"v_max_u32_dpp v17, v17, v17 {ctl} row_mask:{mask} bank_mask:0xf{bc}")
            A(f"v_max_u32_dpp v20, v18, v18 {ctl} row_mask:{mask} bank_mask:0xf{bc}")
            A("v_max_u32 v18, v19, v20")
        A(f"v_readlane_b32 s{40+2*r}, v17, 63")
        A(f"v_readlane_b32 s{41+2*r}, v18, 63")
        if r < 3:
            left = 8 - 2 * r
            for wsel in (40 + 2 * r, 41 + 2 * r):
                A(f"v_cmp_eq_u32 vcc, s{wsel}, v{reg[0]}")
                left -= 1
                for k in range(left):
                    A(f"v_cndmask_b32 v{reg[k]}, v{reg[k]}, v{reg[k+1]}, vcc")
    A("v_mov_b32 v16, s40")
    for r in range(1, 8):
        A(f"v_writelane_b32 v16, s{40+r}, {r}")
    A("s_lshl_b32 s6, s3, 5")
    A("v_lshlrev_b32 v17, 2, v2")
    A("v_add_u32 v17, s6, v17")
    A("v_cmp_gt_u32 vcc, 8, v2")
    A("s_and_saveexec_b64 s[20:21], vcc")
    A("ds_write_b32 v17, v16")
    A("s_mov_b64 exec, s[20:21]")


def sel_part2(A):
    A("v_and_b32 v17, 31, v2")
    A("v_lshlrev_b32 v17, 2, v17")
    A("v_lshrrev_b32 v18, 5, v2")
    A("v_lshlrev_b32 v18, 6, v18")
    A("v_mov_b32 v19, 0")
    A("v_mov_b32 v20, 0")
    A("s_waitcnt lgkmcnt(0)")
    A("s_barrier")
    A("ds_read_b32 v16, v17")
    for i in range(4):
        A(f"ds_read_b128 {vr(60+4*i,4)}, v18 offset:{16*i}")
    A("s_waitcnt lgkmcnt(0)")
    sp = ["s[50:51]", "s[52:53]", "s[54:55]", "s[56:57]"]
    for i in range(0, 16, 4):
        for k in range(4):
            A(f"v_cmp_gt_u32 {sp[k]}, v{60+i+k}, v16")
        for k in range(4):
            A(f"v_addc_co_u32 v{19 + (k & 1)}, vcc, 0, v{19 + (k & 1)}, {sp[k]}")
    A("v_add_u32 v19, v19, v20")
    A("v_mov_b32 v20, v19")
    A("v_permlane32_swap_b32 v19, v20")
    A("v_add_u32 v19, v19, v20")
    A("v_cmp_gt_u32 vcc, 8, v19")
    A("v_cmp_gt_u32 s[22:23], 32, v2")
    A("s_and_b64 vcc, vcc, s[22:23]")
    A("v_lshlrev_b32 v19, 2, v19")
    A("s_lshl_b32 s6, s3, 6")
    A("s_add_u32 s6, s6, 256")
    A("v_add_u32 v19, s6, v19")
    A("s_and_saveexec_b64 s[20:21], vcc")
    A("ds_write_b32 v19, v16")
    A("s_mov_b64 exec, s[20:21]")


def kd_body(A):
    A("s_load_dwordx2 s[26:27], s[0:1], 0")
    A("s_load_dwordx2 s[28:29], s[0:1], 64")
    A("s_load_dwordx2 s[30:31], s[0:1], 96")
    A("s_and_b32 s35, s3, 3")
    A("s_cmp_ge_u32 s2, 192")
    A("s_cselect_b32 s36, 1, 0")
    A("s_sub_u32 s34, s2, 192")
    A("s_cmp_lt_u32 s34, 16")
    A("s_cselect_b32 s38, s36, 0")
    A("s_mov_b32 s37, s2")
    A("s_mul_i32 s7, s37, 20480")
    A("s_mul_i32 s8, s35, 5120")
    A("s_add_u32 s7, s7, s8")
    A(f"s_add_u32 s7, s7, {WS_WGU}")
    A("v_lshlrev_b32 v81, 4, v2")
    A("v_add_u32 v81, s7, v81")
    A("v_add_u32 v82, 4096, v81")
    A("v_lshrrev_b32 v5, 4, v2")
    A("v_and_b32 v4, 7, v2")
    A("v_bfe_u32 v6, v2, 3, 1")
    A("v_lshlrev_b32 v83, 7, v5")
    A("v_lshl_add_u32 v83, v4, 4, v83")
    A("v_lshl_add_u32 v83, v6, 9, v83")
    A("s_mul_i32 s5, s3, 3072")
    A("v_add_u32 v83, s5, v83")
    A(f"v_add_u32 v84, {WS_ACT}, v83")
    A("s_mul_i32 s4, s34, 24576")
    A(f"s_add_u32 s4, s4, {WS_WD}")
    A("v_add_u32 v83, s4, v83")
    A(f"v_add_u32 v80, {64*24576}, v83")
    FR, A2, FRB = 86, 110, 98

    def frag_loads(tag):
        A("s_cmp_eq_u32 s36, 1")
        A(f"s_cbranch_scc1 KD_L2_{tag}")
        for i in range(4):
            A(f"global_load_dwordx4 {vr(FR+4*i,4)}, v81, s[32:33] offset:{1024*i} {SC}")
        A(f"global_load_dwordx4 {vr(FR+16,4)}, v82, s[32:33] {SC}")
        A(f"s_branch KD_LX_{tag}")
        A.label(f"KD_L2_{tag}")
        for i in range(3):
            A(f"global_load_dwordx4 {vr(FR+4*i,4)}, v83, s[32:33] offset:{1024*i} {SC}")
        A("s_cmp_eq_u32 s38, 0")
        A(f"s_cbranch_scc1 KD_LX_{tag}")
        for i in range(3):
            A(f"global_load_dwordx4 {vr(FRB+4*i,4)}, v80, s[32:33] offset:{1024*i} {SC}")
        A.label(f"KD_LX_{tag}")

    A("s_cmp_lt_u32 s3, 4")
    A("s_cbranch_scc1 KD_ROW")
    A("s_cmp_eq_u32 s36, 0")
    A("s_cbranch_scc1 KA_END")
    A("s_waitcnt lgkmcnt(0)")
    A("s_sleep 16")
    frag_loads("hi")
    A("s_barrier")
    A("s_branch KD_SEL2")
    A.label("KD_ROW")
    A("v_lshrrev_b32 v7, 5, v0")
    A("v_and_b32 v4, 31, v0")
    A("s_mul_i32 s4, s2, 10240")
    A("v_lshlrev_b32 v5, 3, v4")
    A("v_mul_u32_u24 v6, 1280, v7")
    A("v_add_u32 v6, v6, v5")
    A("v_add_u32 v8, s4, v6")
    A("v_lshlrev_b32 v3, 6, v4")
    A("v_lshl_add_u32 v3, v7, 3, v3")
    A(f"s_add_u32 s5, s4, {WS_AT + 4096}")
    A("v_add_u32 v3, s5, v3")
    A("v_add_u32 v9, 8192, v3")
    AR, XR, WR = 20, 30, 40
    A("s_waitcnt lgkmcnt(0)")
    stamp(A, 1001)
    for i in range(5):
        if i < 4:
            A(f"global_load_dwordx2 {vr(AR+2*i,2)}, v3, s[32:33] offset:{2048*i - 4096} {SC}")
        else:
            A(f"global_load_dwordx2 {vr(AR+2*i,2)}, v9, s[32:33] offset:-4096 {SC}")
        A(f"global_load_dwordx2 {vr(XR+2*i,2)}, v8, s[26:27] offset:{256*i}")
    for i in range(5):
        A(f"global_load_dwordx2 {vr(WR+2*i,2)}, v5, s[28:29] offset:{256*i}")
    A(f"v_mov_b32 v12, {ONE_LO}")
    A(f"v_mov_b32 v13, {ONE_HI}")
    A("v_mov_b32 v14, 0x3f803f80")
    for r in (10, 11, 16, 17):
        A(f"v_mov_b32 v{r}, 0")
    A(f"v_add_u32 v9, {WS_L2}, v8")
    H, T = 50, 60
    A("s_waitcnt vmcnt(5)")
    stamp(A, 1002)
    frag_loads("lo")
    N = 10
    for i in range(N):
        A(f"v_lshlrev_b32 v{T+2*i}, 16, v{AR+i}")
        A(f"v_and_b32 v{T+2*i+1}, 0xffff0000, v{AR+i}")
    for i in range(N):
        A(f"v_dot2_f32_bf16 v{T+2*i}, v{XR+i}, v12, v{T+2*i}")
        A(f"v_dot2_f32_bf16 v{T+2*i+1}, v{XR+i}, v13, v{T+2*i+1}")
    for i in range(N):
        A(f"v_cvt_pk_bf16_f32 v{H+i}, v{T+2*i}, v{T+2*i+1}")
    for i in range(0, N, 2):
        A(f"v_dot2c_f32_bf16 v10, v{H+i}, v14")
        A(f"v_dot2c_f32_bf16 v11, v{H+i}, v{H+i}")
        A(f"v_dot2c_f32_bf16 v16, v{H+i+1}, v14")
        A(f"v_dot2c_f32_bf16 v17, v{H+i+1}, v{H+i+1}")
    A("s_nop 2")
    A("v_add_f32 v10, v10, v16")
    A("v_add_f32 v11, v11, v17")

    def red(regs, tmps):
        for sh in (8, 4, 2, 1):
            for r in regs:
                A(f"v_add_f32_dpp v{r}, v{r}, v{r} row_ror:{sh} row_mask:0xf bank_mask:0xf")
        for r, t in zip(regs, tmps):
            A(f"v_mov_b32 v{t}, v{r}")
        for r, t in zip(regs, tmps):
            A(f"v_permlane16_swap_b32 v{r}, v{t}")
        for r, t in zip(regs, tmps):
            A(f"v_add_f32 v{r}, v{r}, v{t}")
    red([10, 11], [16, 17])
    ln_finish(A, 10, 11, 15)
    A("v_sub_f32 v10, 0, v10")
    L, O = AR, XR
    for i in range(N):
        A(f"v_dot2_f32_bf16 v{T+2*i}, v{H+i}, v12, v10")
        A(f"v_dot2_f32_bf16 v{T+2*i+1}, v{H+i}, v13, v10")
    for i in range(N):
        A(f"v_cvt_pk_bf16_f32 v{L+i}, v{T+2*i}, v{T+2*i+1}")
    for i in range(N):
        A(f"v_lshlrev_b32 v{T+2*i}, 16, v{L+i}")
        A(f"v_and_b32 v{T+2*i+1}, 0xffff0000, v{L+i}")
    A("v_mov_b32 v16, v11")
    A("v_mov_b32 v17, v11")
    for i in range(N):
        A(f"v_pk_mul_f32 {vr(T+2*i,2)}, {vr(T+2*i,2)}, v[16:17]")
    for i in range(N):
        A(f"v_cvt_pk_bf16_f32 v{L+i}, v{T+2*i}, v{T+2*i+1}")
    for i in range(5):
        A(f"global_store_dwordx2 v9, {vr(L+2*i,2)}, s[32:33] offset:{256*i} {SC}")
    A("v_mov_b32 v14, 0")
    A("v_mov_b32 v15, 0")
    for i in range(N):
        A(f"v_lshlrev_b32 v{T+2*i}, 16, v{L+i}")
        A(f"v_and_b32 v{T+2*i+1}, 0xffff0000, v{L+i}")
    for i in range(N):
        A(f"v_dot2_f32_bf16 v{T+2*i}, v{H+i}, v12, v{T+2*i}")
        A(f"v_dot2_f32_bf16 v{T+2*i+1}, v{H+i}, v13, v{T+2*i+1}")
    for i in range(N):
        A(f"v_cvt_pk_bf16_f32 v{O+i}, v{T+2*i}, v{T+2*i+1}")
    for i in range(5):
        A(f"global_store_dwordx2 v8, {vr(O+2*i,2)}, s[30:31] offset:{256*i} {SC}")
    stamp(A, 1003)
    A("s_waitcnt vmcnt(10)")
    for i in range(0, N, 2):
        A(f"v_dot2c_f32_bf16 v14, v{L+i}, v{WR+i}")
        A(f"v_dot2c_f32_bf16 v15, v{L+i+1}, v{WR+i+1}")
    A("s_nop 2")
    A("v_add_f32 v14, v14, v15")
    red([14], [15])
    A("v_cvt_pk_bf16_f32 v40, v14, v14")
    A("v_and_b32 v40, 0xffff0000, v40")
    A("v_ashrrev_i32 v41, 31, v40")
    A("v_or_b32 v41, 0x80000000, v41")
    A("v_xor_b32 v40, v40, v41")
    A("v_and_b32 v40, 0xffff0000, v40")
    A("s_lshl_b32 s6, s2, 3")
    A("v_add_u32 v42, s6, v7")
    A("v_sub_u32 v43, 2047, v42")
    A("v_or_b32 v40, v40, v43")
    A("v_lshlrev_b32 v42, 2, v7")
    A("v_cmp_eq_u32 vcc, 0, v4")
    A("s_mov_b64 exec, vcc")
    A("ds_write_b32 v42, v40 offset:896")
    A("s_mov_b64 exec, -1")
    A("s_waitcnt vmcnt(0) lgkmcnt(0)")
    A("s_barrier")
    A("s_cmp_lg_u32 s3, 0")
    A("s_cbranch_scc1 KD_KPUB")
    A("v_lshlrev_b32 v42, 2, v2")
    A("ds_read_b32 v40, v42 offset:896")
    A(f"s_lshl_b32 s6, s2, {KEY_STRIDE.bit_length() - 1}")
    A(f"s_add_u32 s6, s6, {WS_RK}")
    A("v_add_u32 v42, s6, v42")
    A("s_waitcnt lgkmcnt(0)")
    A("s_mov_b64 exec, 0xff")
    A(f"global_store_dword v42, v40, s[32:33] {SC}")
    A("s_mov_b64 exec, -1")
    A.label("KD_KPUB")
    stamp(A, 1004)
    sel_part1(A, "KD_KP", KD_F1_FIRST)
    A.label("KD_SEL2")
    sel_part2(A)
    A("s_cmp_eq_u32 s36, 1")
    A("s_cbranch_scc1 KD_F2")
    AFR = 60
    A("v_and_b32 v17, 7, v2")
    A("v_lshlrev_b32 v17, 2, v17")
    A("v_add_u32 v17, s6, v17")
    A("ds_read_b32 v16, v17")
    A("v_lshrrev_b32 v21, 4, v2")
    A("v_lshlrev_b32 v21, 4, v21")
    A("s_mul_i32 s6, s35, 320")
    A(f"s_add_u32 s6, s6, {WS_L2}")
    A("v_add_u32 v21, s6, v21")
    A("s_waitcnt lgkmcnt(0)")
    A("v_and_b32 v18, 0x7ff, v16")
    A("v_sub_u32 v18, 2047, v18")
    A("v_mul_u32_u24 v20, 1280, v18")
    A("v_add_u32 v20, v20, v21")
    for i in range(5):
        A(f"global_load_dwordx4 {vr(AFR+4*i,4)}, v20, s[32:33] offset:{64*i} {SC}")
    stamp(A, 1006)
    for i in range(4):
        A(f"v_mov_b32 v{24+i}, 0")
    A("v_lshlrev_b32 v28, 4, v2")
    A("s_lshl_b32 s6, s3, 10")
    A("v_add_u32 v29, s6, v28")
    for i in range(5):
        A(f"s_waitcnt vmcnt({4-i})")
        A(f"v_mfma_f32_16x16x32_bf16 v[24:27], {vr(AFR+4*i,4)}, {vr(FR+4*i,4)}, v[24:27]")
    stamp(A, 1007)
    A("ds_write_b128 v29, v[24:27] offset:1024")
    A("s_waitcnt lgkmcnt(0)")
    A("s_barrier")
    A("s_cmp_lg_u32 s35, 0")
    A("s_cbranch_scc1 KD_DONE")
    A("v_lshrrev_b32 v56, 3, v2")
    A("v_and_b32 v57, 7, v2")
    A("v_lshrrev_b32 v58, 2, v56")
    A("v_lshlrev_b32 v58, 8, v58")
    A("v_lshl_add_u32 v58, v57, 4, v58")
    A("v_and_b32 v59, 3, v56")
    A("v_lshl_add_u32 v58, v59, 2, v58")
    A("s_lshl_b32 s6, s3, 10")
    A("v_add_u32 v58, s6, v58")
    for w in range(4):
        A(f"ds_read_b32 v{40+w}, v58 offset:{1024 + 1024*w}")
        A(f"ds_read_b32 v{44+w}, v58 offset:{1024 + 1024*w + 128}")
    A("v_lshlrev_b32 v59, 1, v2")
    A("s_lshl_b32 s6, s37, 7")
    A(f"s_add_u32 s6, s6, {WS_ACT}")
    A("v_add_u32 v59, s6, v59")
    A("s_waitcnt lgkmcnt(0)")
    A("v_add_f32 v40, v40, v41")
    A("v_add_f32 v42, v42, v43")
    A("v_add_f32 v44, v44, v45")
    A("v_add_f32 v46, v46, v47")
    A("v_add_f32 v40, v40, v42")
    A("v_add_f32 v44, v44, v46")
    A("v_cvt_pk_bf16_f32 v41, v40, v44")
    A("v_lshlrev_b32 v40, 16, v41")
    A("v_and_b32 v44, 0xffff0000, v41")
    A(f"v_mul_f32 v42, {hex(fbits(-LOG2E))}, v40")
    A("v_exp_f32 v42, v42")
    A("v_add_f32 v42, 1.0, v42")
    A("v_rcp_f32 v42, v42")
    A("v_mul_f32 v40, v40, v42")
    A("v_cvt_pk_bf16_f32 v40, v40, v40")
    A("v_and_b32 v40, 0xffff0000, v40")
    A("v_mul_f32 v40, v40, v44")
    A("v_cvt_pk_bf16_f32 v40, v40, v40")
    A(f"global_store_short v59, v40, s[32:33] {SC}")
    A.label("KD_DONE")
    k_end(A, 0)

    A.label("KD_F2")
    for i in range(4):
        A(f"v_mov_b32 v{36+i}, 0")
        A(f"v_mov_b32 v{32+i}, 0")
        A(f"v_mov_b32 v{52+i}, 0")
    A("s_add_u32 s39, s34, 64")
    A("s_cmp_eq_u32 s3, 0")
    A("s_cselect_b32 s39, s34, s39")
    A("s_cselect_b32 s9, 1, 0")
    A("s_cmp_eq_u32 s3, 1")
    A("s_cselect_b32 s10, s38, 0")
    A("s_or_b32 s9, s9, s10")
    A("s_cmp_eq_u32 s9, 0")
    A("s_cbranch_scc1 KD_F2SL")
    A("v_lshrrev_b32 v17, 3, v2")
    A("v_lshlrev_b32 v17, 2, v17")
    A("v_add_u32 v17, s6, v17")
    A("ds_read_b32 v8, v17")
    A("v_and_b32 v16, 7, v2")
    A("s_lshl_b32 s6, s39, 3")
    A("v_add_u32 v16, s6, v16")
    A("v_lshrrev_b32 v17, 2, v16")
    A("v_lshlrev_b32 v17, 6, v17")
    A("v_and_b32 v18, 3, v16")
    A("v_lshl_add_u32 v17, v18, 1, v17")
    A(f"v_add_u32 v17, {WS_AT}, v17")
    A("s_waitcnt lgkmcnt(0)")
    A("v_and_b32 v40, 0x7ff, v8")
    A("v_sub_u32 v40, 2047, v40")
    A("v_mul_u32_u24 v36, 1280, v40")
    A("v_lshl_add_u32 v36, v16, 1, v36")
    A(f"v_add_u32 v18, {WS_L2}, v36")
    A(f"global_load_ushort v20, v18, s[32:33] {SC}")
    A("global_load_ushort v24, v36, s[26:27]")
    A("v_lshrrev_b32 v18, 3, v40")
    A("v_mul_u32_u24 v18, 10240, v18")
    A("v_and_b32 v19, 7, v40")
    A("v_lshl_add_u32 v18, v19, 3, v18")
    A("v_add_u32 v18, v18, v17")
    A(f"global_load_ushort v44, v18, s[32:33] {SC}")
    A("v_and_b32 v12, 0xffff0000, v8")
    A("v_ashrrev_i32 v48, 31, v12")
    A("v_not_b32 v48, v48")
    A("v_or_b32 v48, 0x80000000, v48")
    A("v_xor_b32 v12, v12, v48")
    A("v_and_b32 v12, 0xffff0000, v12")
    A(f"v_mul_f32 v12, {hex(fbits(-LOG2E))}, v12")
    A("v_exp_f32 v12, v12")
    A("v_add_f32 v12, 1.0, v12")
    A("v_rcp_f32 v12, v12")
    bf16_round(A, 12)
    A("s_waitcnt vmcnt(0)")
    A("v_lshlrev_b32 v24, 16, v24")
    A("v_lshlrev_b32 v44, 16, v44")
    A("v_lshlrev_b32 v20, 16, v20")
    A("v_add_f32 v24, v24, v44")
    bf16_round(A, 24)
    A(f"s_sleep {KD_A0}")
    A("s_branch KD_F2B2")
    A.label("KD_F2SL")
    A(f"s_sleep {KD_A1}")
    A.label("KD_F2B2")
    stamp(A, 1006)
    A("s_mov_b32 s12, 0")
    A("v_mov_b32 v61, 0xffff")
    A.label("KD_POLL")
    for i in range(3):
        A(f"global_load_dwordx4 {vr(A2+4*i,4)}, v84, s[32:33] offset:{1024*i} {SC}")
    A("s_waitcnt vmcnt(0)")
    A(f"v_pk_max_u16 v62, v{A2}, v{A2+1}")
    A(f"v_pk_max_u16 v63, v{A2+2}, v{A2+3}")
    for i in range(4, 12, 2):
        A(f"v_pk_max_u16 v62, v62, v{A2+i}")
        A(f"v_pk_max_u16 v63, v63, v{A2+i+1}")
    A("v_pk_max_u16 v62, v62, v63")
    A("v_lshrrev_b32 v63, 16, v62")
    A("v_and_b32 v62, 0xffff, v62")
    A("v_max_u32 v62, v62, v63")
    A("v_cmp_eq_u32 vcc, v61, v62")
    A("s_cmp_eq_u64 vcc, 0")
    A("s_cbranch_scc1 KD_ACT")
    A("s_add_u32 s12, s12, 1")
    A(f"s_cmp_ge_u32 s12, {SPIN_MAX}")
    A("s_cbranch_scc1 KD_ACT")
    A(f"s_sleep {KC_SLEEP}")
    A("s_branch KD_POLL")
    A.label("KD_ACT")
    A("v_lshlrev_b32 v28, 4, v2")
    A("s_lshl_b32 s6, s3, 10")
    A("v_add_u32 v29, s6, v28")
    for i in range(3):
        A(f"v_mfma_f32_16x16x32_bf16 v[32:35], {vr(A2+4*i,4)}, {vr(FR+4*i,4)}, v[32:35]")
    A("s_cmp_eq_u32 s38, 0")
    A("s_cbranch_scc1 KD_NOB")
    for i in range(3):
        A(f"v_mfma_f32_16x16x32_bf16 v[52:55], {vr(A2+4*i,4)}, {vr(FRB+4*i,4)}, v[52:55]")
    for i in range(4):
        A(f"v_mov_b32 v{64+i}, v{52+i}")
    for i in range(4):
        A(f"v_permlane32_swap_b32 v{52+i}, v{64+i}")
    for i in range(4):
        A(f"v_add_f32_dpp v{52+i}, v{64+i}, v{52+i} row_shl:8 row_mask:0xf bank_mask:0xf")
    A("ds_write_b128 v29, v[52:55] offset:9216")
    A.label("KD_NOB")
    stamp(A, 1007)
    for i in range(4):
        A(f"v_mov_b32 v{60+i}, v{32+i}")
    for i in range(4):
        A(f"v_permlane32_swap_b32 v{32+i}, v{60+i}")
    for i in range(4):
        A(f"v_add_f32_dpp v{32+i}, v{60+i}, v{32+i} row_shl:8 row_mask:0xf bank_mask:0xf")
    A("ds_write_b128 v29, v[32:35] offset:1024")
    A("s_waitcnt lgkmcnt(0)")
    A("s_barrier")
    A("s_cmp_eq_u32 s9, 0")
    A("s_cbranch_scc1 KD_DONE2")
    A("v_lshrrev_b32 v56, 3, v2")
    A("v_and_b32 v57, 7, v2")
    A("v_lshrrev_b32 v58, 2, v56")
    A("v_lshlrev_b32 v58, 8, v58")
    A("v_lshl_add_u32 v58, v57, 4, v58")
    A("v_and_b32 v59, 3, v56")
    A("v_lshl_add_u32 v58, v59, 2, v58")
    A("s_lshl_b32 s6, s3, 13")
    A("v_add_u32 v58, s6, v58")
    for w in range(8):
        A(f"ds_read_b32 v{40+w}, v58 offset:{1024 + 1024*w}")
    A("s_waitcnt lgkmcnt(0)")
    for st in (4, 2, 1):
        for j in range(st):
            A(f"v_add_f32 v{40+j}, v{40+j}, v{40+st+j}")
    bf16_round(A, 40)
    A("v_mul_f32 v40, v40, v12")
    bf16_round(A, 40)
    A("v_add_f32 v40, v40, v20")
    bf16_round(A, 40)
    A("v_add_f32 v40, v40, v24")
    A("v_cvt_pk_bf16_f32 v40, v40, v40")
    A(f"global_store_short v36, v40, s[30:31] {SC}")
    A.label("KD_DONE2")
    k_end(A, 0)


KD_A0 = int(os.environ.get("KD_A0", "16"))
KD_A1 = int(os.environ.get("KD_A1", "36"))

KD_TMPL = """.amdhsa_kernel {name}
  .amdhsa_next_free_vgpr {vgpr}
  .amdhsa_next_free_sgpr 102
  .amdhsa_accum_offset {acc}
  .amdhsa_group_segment_fixed_size 0
  .amdhsa_kernarg_size 120
  .amdhsa_user_sgpr_count 2
  .amdhsa_user_sgpr_kernarg_segment_ptr 1
  .amdhsa_system_sgpr_workgroup_id_x 1
.end_amdhsa_kernel
"""

HEADER = """; Kernarg layout (120 bytes, ptrs only): in0..in11 at 0..88, d_out 96, d_debug 104, d_ws 112
"""


def build(kernels):
    s = HEADER
    for label, fn, grid, block, lds, vgpr in kernels:
        s += f"; @launch kernel={label} grid=({grid},1,1) block=({block},1,1) lds={lds}\n"
    s += '.amdgcn_target "amdgcn-amd-amdhsa--gfx950"\n.text\n'
    done = set()
    for label, fn, grid, block, lds, vgpr in kernels:
        if label in done:
            continue
        done.add(label)
        A = Asm()
        fn(A)
        s += f".globl {label}\n.p2align 8\n.type {label},@function\n{label}:\n" + A.finish() + "\n"
    s += '.section .rodata,"a"\n'
    done = set()
    for label, fn, grid, block, lds, vgpr in kernels:
        if label in done:
            continue
        done.add(label)
        s += ".p2align 6\n" + KD_TMPL.format(name=label, vgpr=vgpr, acc=min(256, (vgpr + 3) // 4 * 4))
    return s


PREFILL[0] = True
KERNELS = [
    ("kz_kernel", ka, 256, 1024, KA_LDS, 128),
]

if __name__ == "__main__":
    if len(sys.argv) > 2 and sys.argv[2] == "stamp":
        STAMP[0] = True
    text = build(KERNELS)
    open(sys.argv[1], "w").write(text)
    print("wrote", sys.argv[1], len(text), "bytes")
```

```python
import sys, os, struct
sys.path.insert(0, os.path.dirname(os.path.abspath(__file__)))
from asmlib import Asm

NAME = "sequential_preLN__ssm_conv_s4d__moe_arch_mod__prompt"

WS_UT = 0x0000000
WS_KD = 0x0280000
WS_SC = 0x03C0000
WS_AT = 0x0400000
WS_L2 = 0x0680000
WS_RK = 0x0900000
WS_ACT = 0x0910000
WS_SEL = 0x0918000
WS_WGU = 0x0A00000
WS_WD = 0x0E00000
WS_STAMP = 0x1800000
STAMP = [False]
NSTAMP = 12
ST_OPT = [""]


def k_begin(A):
    if STAMP[0]:
        A("s_memrealtime s[94:95]")
        for i in range(NSTAMP):
            A(f"s_mov_b64 s[{60+2*i}:{61+2*i}], 0")
        A("s_memtime s[60:61]")


def stamp(A, i):
    if STAMP[0]:
        A(f"s_memtime s[{60+2*i}:{61+2*i}]")


def k_end(A, kidx):
    if STAMP[0]:
        A(f"s_memtime s[{60+2*(NSTAMP-2)}:{61+2*(NSTAMP-2)}]")
        A("s_waitcnt vmcnt(0) lgkmcnt(0)")
        A("s_memrealtime s[96:97]")
        A(f"s_memtime s[{60+2*(NSTAMP-1)}:{61+2*(NSTAMP-1)}]")
        A("s_mov_b64 exec, -1")
        A("v_lshrrev_b32 v1, 6, v0")
        A("s_lshl_b32 s98, s2, 3")
        A("v_add_u32 v1, s98, v1")
        A("v_lshlrev_b32 v1, 7, v1")
        A(f"v_add_u32 v1, {WS_STAMP + kidx * 0x200000}, v1")
        A("s_waitcnt lgkmcnt(0)")
        A("v_mov_b32 v2, s94")
        A("v_mov_b32 v3, s95")
        A("v_mov_b32 v4, s96")
        A("v_mov_b32 v5, s97")
        A("global_store_dwordx4 v1, v[2:5], s[32:33]")
        for i in range(0, NSTAMP, 2):
            for j in range(4):
                A(f"v_mov_b32 v{2+j}, s{60+2*i+j}")
            A(f"global_store_dwordx4 v1, v[2:5], s[32:33] offset:{16+8*i}")
    A("s_endpgm")


def fbits(x):
    return struct.unpack("<I", struct.pack("<f", x))[0]


LOG2E = 1.4426950408889634
L2E_HI = fbits(LOG2E)
L2E_HI_F = struct.unpack("<f", struct.pack("<I", L2E_HI))[0]
L2E_LO = fbits(LOG2E - L2E_HI_F)
LN2 = fbits(0.6931471805599453)
INV2PI = fbits(0.15915494309189535)
INV640 = fbits(1.0 / 640.0)
EPS = fbits(1e-5)
ONE_LO = 0x00003f80
ONE_HI = 0x3f800000


def vr(a, n):
    return f"v[{a}:{a+n-1}]"


def bf16_round(A, reg):
    A(f"v_cvt_pk_bf16_f32 v{reg}, v{reg}, v{reg}")
    A(f"v_and_b32 v{reg}, 0xffff0000, v{reg}")


def exp_bf16(A, dst, src, t0, t1):
    A(f"v_mul_f32 v{t0}, s90, v{src}")
    A(f"v_fma_f32 v{t1}, v{src}, s90, -v{t0}")
    A(f"v_fma_f32 v{t1}, v{src}, s91, v{t1}")
    A(f"v_exp_f32 v{dst}, v{t0}")
    A(f"v_mul_f32 v{t1}, s92, v{t1}")
    A(f"v_fma_f32 v{dst}, v{dst}, v{t1}, v{dst}")
    bf16_round(A, dst)


def cmul(A, d, a, b):
    A(f"v_pk_mul_f32 {vr(d,2)}, {vr(a,2)}, {vr(b,2)} op_sel:[0,0] op_sel_hi:[0,1]")
    A(f"v_pk_fma_f32 {vr(d,2)}, {vr(a,2)}, {vr(b,2)}, {vr(d,2)} op_sel:[1,1,0] op_sel_hi:[1,0,1] neg_lo:[0,1,0]")


def ln_finish(A, s1, s2, t):
    A(f"v_mul_f32 v{s1}, {INV640}, v{s1}")
    A(f"v_mul_f32 v{s2}, {INV640}, v{s2}")
    A(f"v_fma_f32 v{s2}, -v{s1}, v{s1}, v{s2}")
    A(f"v_max_f32 v{s2}, 0, v{s2}")
    A(f"v_cvt_pk_bf16_f32 v{t}, v{s1}, v{s2}")
    A(f"v_lshlrev_b32 v{s1}, 16, v{t}")
    A(f"v_and_b32 v{s2}, 0xffff0000, v{t}")
    A(f"v_add_f32 v{s2}, {EPS}, v{s2}")
    bf16_round(A, s2)
    A(f"v_sqrt_f32 v{s2}, v{s2}")
    bf16_round(A, s2)
    A(f"v_rcp_f32 v{s2}, v{s2}")


def pair_swizzle(A, dst, src, tmp):
    A(f"s_and_b32 s{dst}, s{src}, 7")
    A(f"s_lshl_b32 s{dst}, s{dst}, 1")
    A(f"s_bfe_u32 s{tmp}, s{src}, 0x10003")
    A(f"s_or_b32 s{dst}, s{dst}, s{tmp}")
    A(f"s_andn2_b32 s{tmp}, s{src}, 15")
    A(f"s_or_b32 s{dst}, s{dst}, s{tmp}")


def wt_role(A, pfx, first_wg, nwaves_per_wg, lds_per_wave, it_lo, it_hi, kidx, opt, stride):
    A.label(f"{pfx}_WTR")
    A("s_load_dwordx4 s[16:19], s[0:1], 72")
    A("s_load_dwordx2 s[20:21], s[0:1], 88")
    A("v_lshrrev_b32 v1, 6, v0")
    A("v_readfirstlane_b32 s3, v1")
    A("v_and_b32 v2, 63, v0")
    if nwaves_per_wg > 0:
        A(f"s_sub_u32 s4, s2, {first_wg}")
        A(f"s_mul_i32 s4, s4, {nwaves_per_wg}")
        A("s_add_u32 s4, s4, s3")
        A(f"s_add_u32 s4, s4, {it_lo}")
    elif nwaves_per_wg == -2:
        A("s_sub_u32 s4, s3, 4")
        A("s_mul_i32 s4, s4, 96")
        A("s_add_u32 s4, s4, s2")
    else:
        A("s_sub_u32 s4, s3, 3")
        A("s_mul_i32 s4, s4, 96")
        A("s_add_u32 s4, s4, s2")
    A(f"s_mul_i32 s5, s3, {lds_per_wave}")
    A("v_lshrrev_b32 v3, 3, v2")
    A("v_and_b32 v4, 7, v2")
    A("v_lshlrev_b32 v4, 4, v4")
    A("v_lshrrev_b32 v5, 4, v2")
    A("v_lshlrev_b32 v5, 3, v5")
    A("v_and_b32 v6, 15, v2")
    A("v_lshrrev_b32 v6, 2, v6")
    A("v_add_u32 v5, v5, v6")
    A("v_lshlrev_b32 v5, 7, v5")
    A("v_and_b32 v6, 3, v2")
    A("v_lshlrev_b32 v7, 3, v6")
    A("v_add_u32 v8, v5, v7")
    A("v_add_u32 v8, s5, v8")
    A("v_add_u32 v9, 4080, v8")
    A("v_cmp_gt_u32 vcc, 2, v6")
    A("v_cndmask_b32 v9, v9, v8, vcc")
    A("v_lshlrev_b32 v10, 4, v2")
    A("v_and_b32 v13, 15, v2")
    A("v_lshrrev_b32 v14, 3, v13")
    A("v_mul_u32_u24 v14, 24576, v14")
    A("v_and_b32 v13, 7, v13")
    A("v_lshlrev_b32 v13, 4, v13")
    A("v_add_u32 v14, v14, v13")
    A("v_lshrrev_b32 v13, 4, v2")
    A("v_lshlrev_b32 v13, 7, v13")
    A("v_add_u32 v14, v14, v13")
    A("v_mul_u32_u24 v50, 3072, v3")
    A("v_add_u32 v50, v50, v4")
    A("v_mul_u32_u24 v51, 1280, v3")
    A("v_add_u32 v51, v51, v4")
    A("s_waitcnt lgkmcnt(0)")
    A("s_mov_b32 s6, s4")
    A(f"s_cmp_ge_u32 s6, {it_hi}")
    A(f"s_cbranch_scc1 {pfx}_WT_FIN")
    A.label(f"{pfx}_WT_LOOP")
    A("s_cmp_ge_u32 s6, 480")
    A(f"s_cbranch_scc1 {pfx}_WT_DOWN")
    A("s_mul_hi_u32 s7, s6, 0xccccccd")
    A("s_mul_i32 s8, s7, 20")
    A("s_sub_u32 s8, s6, s8")
    A("s_mul_i32 s9, s8, 98304")
    A("s_lshl_b32 s10, s7, 7")
    A("s_add_u32 s9, s9, s10")
    A("v_add_u32 v11, s9, v50")
    for j in range(4):
        A(f"s_add_u32 s10, s5, {1024*j}")
        A("s_mov_b32 m0, s10")
        A("global_load_lds_dwordx4 v11, s[16:17]")
        A(f"s_add_u32 s10, s5, {4096 + 1024*j}")
        A("s_mov_b32 m0, s10")
        A("global_load_lds_dwordx4 v11, s[18:19]")
        if j < 3:
            A("v_add_u32 v11, 24576, v11")
    A("s_mul_i32 s9, s7, 163840")
    A("s_lshl_b32 s10, s8, 10")
    A("s_add_u32 s9, s9, s10")
    A(f"s_add_u32 s9, s9, {WS_WGU}")
    A("v_add_u32 v12, s9, v10")
    A("s_waitcnt vmcnt(0)")
    for jj in range(8):
        A(f"ds_read_b64_tr_b16 {vr(16+4*jj,2)}, v9 offset:{16*jj}")
        A(f"ds_read_b64_tr_b16 {vr(18+4*jj,2)}, v9 offset:{16*jj + 512}")
    A("s_waitcnt lgkmcnt(0)")
    for jj in range(8):
        A(f"global_store_dwordx4 v12, {vr(16+4*jj,4)}, s[32:33] {opt}")
        if jj < 7:
            A("v_add_u32 v12, 20480, v12")
    A(f"s_branch {pfx}_WT_NEXT")
    A.label(f"{pfx}_WT_DOWN")
    A("s_sub_u32 s11, s6, 480")
    A("s_mul_hi_u32 s7, s11, 0x5555556")
    A("s_mul_i32 s8, s7, 48")
    A("s_sub_u32 s8, s11, s8")
    A("s_mul_i32 s9, s8, 40960")
    A("s_lshl_b32 s10, s7, 7")
    A("s_add_u32 s9, s9, s10")
    A("v_add_u32 v11, s9, v51")
    for j in range(4):
        A(f"s_add_u32 s10, s5, {1024*j}")
        A("s_mov_b32 m0, s10")
        A("global_load_lds_dwordx4 v11, s[20:21]")
        if j < 3:
            A("v_add_u32 v11, 10240, v11")
    A("s_mul_i32 s9, s7, 196608")
    A("s_lshl_b32 s10, s8, 9")
    A("s_add_u32 s9, s9, s10")
    A(f"s_add_u32 s9, s9, {WS_WD}")
    A("v_add_u32 v12, s9, v14")
    A("s_waitcnt vmcnt(0)")
    for jj in range(4):
        A(f"ds_read_b64_tr_b16 {vr(16+4*jj,2)}, v8 offset:{32*jj}")
        A(f"ds_read_b64_tr_b16 {vr(18+4*jj,2)}, v8 offset:{32*jj + 512}")
    A("s_waitcnt lgkmcnt(0)")
    for jj in range(4):
        A(f"global_store_dwordx4 v12, {vr(16+4*jj,4)}, s[32:33] {opt}")
        if jj < 3:
            A("v_add_u32 v12, 49152, v12")
    A.label(f"{pfx}_WT_NEXT")
    A(f"s_add_u32 s6, s6, {stride}")
    A(f"s_cmp_lt_u32 s6, {it_hi}")
    A(f"s_cbranch_scc1 {pfx}_WT_LOOP")
    A.label(f"{pfx}_WT_FIN")
    k_end(A, kidx)


K1_ROWB = 288
K1_BUF = 16 * K1_ROWB


def cmul_batch(A, items):
    for d, a, b in items:
        A(f"v_pk_mul_f32 {vr(d,2)}, {vr(a,2)}, {vr(b,2)} op_sel:[0,0] op_sel_hi:[0,1]")
    for d, a, b in items:
        A(f"v_pk_fma_f32 {vr(d,2)}, {vr(a,2)}, {vr(b,2)}, {vr(d,2)} op_sel:[1,1,0] op_sel_hi:[1,0,1] neg_lo:[0,1,0]")


KG_SZ = 2 * K1_BUF
KEO_ST = 27712
KEO_BASE = 0
KA_KE, KA_KO = 0, 4160
KA_U = 12 * KG_SZ
U_ST = 4608
KA_T = KA_U + 4 * U_ST
T_ST = 1600
KA_SC = KA_T + 4 * T_ST
KA_LN = KA_SC + 64
KA_CNT = KA_LN
KA_STATS = KA_LN + 128
KA_STAGE = KA_LN + 192
KA_LDS = KA_STAGE + 10240 + 2560


def group_sync(A, idx, n, lbl):
    A("s_waitcnt lgkmcnt(0)")
    A(f"v_mov_b32 v18, {KA_CNT + 4*idx}")
    A("v_mov_b32 v19, 1")
    A("s_mov_b64 exec, 1")
    A("ds_add_u32 v18, v19")
    A("s_mov_b64 exec, -1")
    A("s_mov_b32 s12, 0")
    A.label(lbl)
    A("ds_read_b32 v19, v18")
    A("s_waitcnt lgkmcnt(0)")
    A("v_readfirstlane_b32 s13, v19")
    A(f"s_cmp_ge_u32 s13, {n}")
    A(f"s_cbranch_scc1 {lbl}_OK")
    A("s_add_u32 s12, s12, 1")
    A(f"s_cmp_lt_u32 s12, {1 << 22}")
    A(f"s_cbranch_scc1 {lbl}")
    A.label(lbl + "_OK")
NPROD = 96
PREFILL = [False]
TLBW = int(os.environ.get('TLBW', '0'))
KEY_STRIDE = int(os.environ.get('KEY_STRIDE', '32'))
WS_FLAG = 0x0930000
WS_EPOCH = 0x0928000
SC = os.environ.get('SCMOD', 'sc1')
PMOD = os.environ.get('PMOD', SC)
FMOD = os.environ.get('FMOD', SC)
SPIN_MAX = 1 << 16
POLL_SLEEP = int(os.environ.get('POLL_SLEEP', '6'))
POLL_FIRST = int(os.environ.get('POLL_FIRST', '24'))
FLAG64 = int(os.environ.get('FLAG64', '1'))


def k_end16(A, kidx):
    if STAMP[0]:
        A(f"s_memtime s[{60+2*(NSTAMP-2)}:{61+2*(NSTAMP-2)}]")
        A("s_waitcnt vmcnt(0) lgkmcnt(0)")
        A("s_memrealtime s[96:97]")
        A(f"s_memtime s[{60+2*(NSTAMP-1)}:{61+2*(NSTAMP-1)}]")
        A("s_mov_b64 exec, -1")
        A("v_lshrrev_b32 v1, 6, v0")
        A("s_lshl_b32 s98, s2, 4")
        A("v_add_u32 v1, s98, v1")
        A("v_lshlrev_b32 v1, 7, v1")
        A(f"v_add_u32 v1, {WS_STAMP + kidx * 0x200000}, v1")
        A("s_waitcnt lgkmcnt(0)")
        A("v_mov_b32 v2, s94")
        A("v_mov_b32 v3, s95")
        A("v_mov_b32 v4, s96")
        A("v_mov_b32 v5, s97")
        A("global_store_dwordx4 v1, v[2:5], s[32:33]")
        for i in range(0, NSTAMP, 2):
            for j in range(4):
                A(f"v_mov_b32 v{2+j}, s{60+2*i+j}")
            A(f"global_store_dwordx4 v1, v[2:5], s[32:33] offset:{16+8*i}")
    A("s_endpgm")


k_end = k_end16


def arrive(A, idx):
    A("s_waitcnt lgkmcnt(0)")
    A(f"v_mov_b32 v18, {KA_CNT + 4*idx}")
    A("v_mov_b32 v19, 1")
    A("s_mov_b64 exec, 1")
    A("ds_add_u32 v18, v19")
    A("s_mov_b64 exec, -1")


def wait_count(A, idx, n, lbl, sleep=1):
    A(f"v_mov_b32 v18, {KA_CNT + 4*idx}")
    A("s_mov_b32 s12, 0")
    A.label(lbl)
    A("ds_read_b32 v19, v18")
    A("s_waitcnt lgkmcnt(0)")
    A("v_readfirstlane_b32 s13, v19")
    A(f"s_cmp_ge_u32 s13, {n}")
    A(f"s_cbranch_scc1 {lbl}_OK")
    A("s_add_u32 s12, s12, 1")
    if sleep:
        A(f"s_sleep {sleep}")
    A(f"s_cmp_lt_u32 s12, {1 << 22}")
    A(f"s_cbranch_scc1 {lbl}")
    A.label(lbl + "_OK")


def arrive_s(A, base_idx, sreg):
    A("s_waitcnt lgkmcnt(0)")
    A(f"s_lshl_b32 s12, s{sreg}, 2")
    A(f"s_add_u32 s12, s12, {KA_CNT + 4*base_idx}")
    A("v_mov_b32 v18, s12")
    A("v_mov_b32 v19, 1")
    A("s_mov_b64 exec, 1")
    A("ds_add_u32 v18, v19")
    A("s_mov_b64 exec, -1")


def wait_s(A, base_idx, sreg, n, lbl):
    A(f"s_lshl_b32 s12, s{sreg}, 2")
    A(f"s_add_u32 s12, s12, {KA_CNT + 4*base_idx}")
    A("v_mov_b32 v18, s12")
    A("s_mov_b32 s12, 0")
    A.label(lbl)
    A("ds_read_b32 v19, v18")
    A("s_waitcnt lgkmcnt(0)")
    A("v_readfirstlane_b32 s13, v19")
    A(f"s_cmp_ge_u32 s13, {n}")
    A(f"s_cbranch_scc1 {lbl}_OK")
    A("s_add_u32 s12, s12, 1")
    A("s_sleep 1")
    A(f"s_cmp_lt_u32 s12, {1 << 22}")
    A(f"s_cbranch_scc1 {lbl}")
    A.label(lbl + "_OK")


def poll_flags(A, lbl):
    if FLAG64 == 2:
        A("v_lshlrev_b32 v3, 7, v2")
        A(f"v_add_u32 v3, {WS_FLAG}, v3")
        for j in range(1, 4):
            A(f"v_add_u32 v{44+j}, {8192*j}, v3")
    elif FLAG64:
        A("v_lshlrev_b32 v3, 7, v2")
        A(f"v_add_u32 v3, {WS_FLAG}, v3")
    else:
        A("v_lshrrev_b32 v3, 4, v2")
        A("v_lshlrev_b32 v3, 7, v3")
        A("v_and_b32 v10, 15, v2")
        A("v_lshl_add_u32 v3, v10, 2, v3")
        A(f"v_add_u32 v3, {WS_FLAG}, v3")
    A("s_mov_b32 s12, 0")
    if POLL_FIRST:
        A(f"s_sleep {POLL_FIRST}")
    A.label(lbl)
    if FLAG64 == 2:
        A(f"global_load_dword v40, v3, s[32:33] {PMOD}")
        for j in range(1, 4):
            A(f"global_load_dword v{40+j}, v{44+j}, s[32:33] {PMOD}")
    elif FLAG64:
        A(f"global_load_dwordx4 v[40:43], v3, s[32:33] {PMOD}")
    else:
        for j in range(4):
            A(f"global_load_dword v{40+j}, v3, s[32:33] offset:{512*j} {PMOD}")
    A("s_waitcnt vmcnt(0)")
    A("v_cmp_ne_u32 vcc, s15, v40")
    A("v_cmp_ne_u32 s[20:21], s15, v41")
    A("v_cmp_ne_u32 s[22:23], s15, v42")
    A("v_cmp_ne_u32 s[24:25], s15, v43")
    A("s_or_b64 vcc, vcc, s[20:21]")
    A("s_or_b64 s[22:23], s[22:23], s[24:25]")
    A("s_or_b64 vcc, vcc, s[22:23]")
    A("s_cmp_eq_u64 vcc, 0")
    A(f"s_cbranch_scc1 {lbl}_SEEN")
    A("s_add_u32 s12, s12, 1")
    A(f"s_cmp_ge_u32 s12, {SPIN_MAX}")
    A(f"s_cbranch_scc1 {lbl}_SEEN")
    A(f"s_sleep {POLL_SLEEP}")
    A(f"s_branch {lbl}")
    A.label(lbl + "_SEEN")


def poll_epoch(A, lbl):
    A(f"v_mov_b32 v3, {WS_EPOCH}")
    A("s_mov_b32 s12, 0")
    A("s_sleep 48")
    A.label(lbl)
    A(f"global_load_dword v40, v3, s[32:33] {SC}")
    A("s_waitcnt vmcnt(0)")
    A("v_readfirstlane_b32 s13, v40")
    A("s_cmp_eq_u32 s13, s15")
    A(f"s_cbranch_scc1 {lbl}_SEEN")
    A("s_add_u32 s12, s12, 1")
    A(f"s_cmp_ge_u32 s12, {SPIN_MAX}")
    A(f"s_cbranch_scc1 {lbl}_SEEN")
    A("s_sleep 16")
    A(f"s_branch {lbl}")
    A.label(lbl + "_SEEN")


def kgen_wave(A):
    A(f"s_mov_b32 s90, {L2E_HI}")
    A(f"s_mov_b32 s91, {L2E_LO}")
    A(f"s_mov_b32 s92, {LN2}")
    A("v_and_b32 v3, 15, v2")
    A("v_lshrrev_b32 v4, 4, v2")
    A("s_cmp_eq_u32 s36, 1")
    A("s_cbranch_scc1 KA_A1")
    A("s_cmp_eq_u32 s36, 2")
    A("s_cbranch_scc1 KA_A2")
    A("v_lshrrev_b32 v5, 1, v4")
    A("v_lshlrev_b32 v5, 7, v5")
    A("v_lshl_add_u32 v5, v3, 3, v5")
    A("v_and_b32 v6, 1, v4")
    A("v_lshl_add_u32 v5, v6, 2, v5")
    A("s_branch KA_A3")
    A.label("KA_A1")
    A("v_lshlrev_b32 v5, 1, v3")
    A("v_add_u32 v5, v5, v4")
    A("v_add_u32 v5, 384, v5")
    A("v_lshlrev_b32 v6, 4, v4")
    A("v_add_u32 v6, v6, v3")
    A("v_add_u32 v6, 480, v6")
    A("v_cmp_gt_u32 vcc, 2, v4")
    A("v_cndmask_b32 v5, v6, v5, vcc")
    A("s_branch KA_A3")
    A.label("KA_A2")
    A("v_lshlrev_b32 v5, 6, v4")
    A("v_lshlrev_b32 v6, 2, v3")
    A("v_add_u32 v5, v5, v6")
    A("v_add_u32 v5, 256, v5")
    A("v_lshlrev_b32 v6, 2, v2")
    A("v_add_u32 v6, 520, v6")
    A("v_cmp_gt_u32 vcc, 2, v4")
    A("v_cndmask_b32 v5, v6, v5, vcc")
    A("v_mov_b32 v6, 640")
    A("v_cmp_eq_u32 vcc, 32, v2")
    A("v_cndmask_b32 v5, v5, v6, vcc")
    A.label("KA_A3")
    A(f"s_mul_i32 s11, s37, {T_ST}")
    A(f"s_add_u32 s11, s11, {KA_T}")
    A("v_lshlrev_b32 v29, 1, v5")
    A("v_add_u32 v29, s11, v29")
    A(f"v_mul_u32_u24 v32, {K1_ROWB}, v3")
    A("v_lshlrev_b32 v5, 4, v4")
    A("v_add_u32 v32, v32, v5")
    A("v_add_u32 v32, s7, v32")
    AW = 120
    A("v_lshlrev_b32 v5, 2, v2")
    A(f"v_add_u32 v{AW}, s7, v5")
    for k in range(1, 8):
        A(f"v_add_u32 v{AW+k}, {(k//4)*K1_BUF + (k%4)*4*K1_ROWB}, v{AW}")
    stamp(A, 1)
    A("s_waitcnt lgkmcnt(0)")
    A("s_bitcmp1_b32 s34, 0")
    A("s_cbranch_scc1 KA_ODD")
    A("s_lshl_b32 s6, s6, 16")
    A.label("KA_ODD")
    A("s_and_b32 s6, s6, 0xffff0000")
    A("v_mov_b32 v5, s6")
    exp_bf16(A, 33, 5, 6, 7)
    A("s_waitcnt vmcnt(0)")
    stamp(A, 2)
    for i in range(6):
        A(f"v_and_b32 v{14+i}, 0x7fff, v{14+i}")
    A("v_max3_u32 v14, v14, v15, v16")
    A("v_max3_u32 v17, v17, v18, v19")
    A("v_max_u32 v14, v14, v17")
    A("v_lshlrev_b32 v10, 16, v10")
    A("v_lshlrev_b32 v11, 16, v11")
    A("v_mul_f32 v6, s90, v10")
    A("v_max_u32_dpp v14, v14, v14 row_shr:1 row_mask:0xf bank_mask:0xf")
    A("v_fma_f32 v7, v10, s90, -v6")
    A("v_exp_f32 v34, v6")
    A("v_max_u32_dpp v14, v14, v14 row_shr:2 row_mask:0xf bank_mask:0xf")
    A("v_fma_f32 v7, v10, s91, v7")
    A("v_mul_f32 v35, v11, v33")
    A("v_max_u32_dpp v14, v14, v14 row_shr:4 row_mask:0xf bank_mask:0xf")
    A("v_mul_f32 v7, s92, v7")
    A(f"v_mul_f32 v35, {INV2PI}, v35")
    A("v_max_u32_dpp v14, v14, v14 row_shr:8 row_mask:0xf bank_mask:0xf")
    A("v_fma_f32 v34, v34, v7, v34")
    A("v_lshlrev_b32 v12, 16, v12")
    A("v_max_u32_dpp v14, v14, v14 row_bcast:15 row_mask:0xa bank_mask:0xf")
    A("v_cvt_pk_bf16_f32 v34, v34, v34")
    A("v_lshlrev_b32 v13, 16, v13")
    A("v_max_u32_dpp v14, v14, v14 row_bcast:31 row_mask:0xc bank_mask:0xf")
    A("v_and_b32 v34, 0xffff0000, v34")
    A("v_mul_f32 v34, v34, v33")
    A("v_readlane_b32 s8, v14, 63")
    A("v_mul_f32 v34, s90, v34")
    A("v_sub_f32 v34, 0, v34")
    A("s_lshr_b32 s8, s8, 7")
    A("s_max_u32 s8, s8, 6")
    A("s_min_u32 s8, s8, 253")
    A("s_sub_u32 s9, 260, s8")
    A("s_lshl_b32 s9, s9, 23")
    A("s_sub_u32 s10, s8, 132")

    def direct(t, p):
        lit = "1.0" if p == 1 else hex(fbits(float(p)))
        A(f"v_mul_f32 v{t}, {lit}, v34")
        A(f"v_mul_f32 v{t+1}, {lit}, v35")
        A(f"v_fract_f32 v{t+1}, v{t+1}")

    def direct2(t):
        A(f"v_exp_f32 v{t}, v{t}")
        A(f"v_cos_f32 v{t+2}, v{t+1}")
        A(f"v_sin_f32 v{t+3}, v{t+1}")

    def direct_fin(d, t):
        A(f"v_mul_f32 v{d}, v{t}, v{t+2}")
        A(f"v_mul_f32 v{d+1}, v{t}, v{t+3}")

    C = 36
    g = {i: 38 + 2 * (i - 1) for i in range(1, 9)}
    G128, G256, G512, G1024 = 54, 56, 58, 60
    T = [62, 64, 66, 68, 70, 72, 74, 76]
    PK = list(range(78, 86))
    BF, AF = 86, 102
    h = {1: g[8]}
    for i in range(2, 9):
        h[i] = AF + 2 * (i - 2)
    AF2 = 62
    direct(62, 1)
    direct(66, 8)
    direct(70, 128)
    direct2(62)
    direct2(66)
    direct2(70)
    A(f"v_mul_f32 v{C}, s9, v12")
    A(f"v_mul_f32 v{C+1}, s9, v13")
    A("v_ldexp_f32 v6, v33, s10")
    A("s_lshl_b32 s11, s37, 2")
    A(f"s_add_u32 s11, s11, {KA_SC}")
    A("v_mov_b32 v7, s11")
    A("ds_write_b32 v7, v6")
    direct_fin(g[1], 62)
    direct_fin(g[8], 66)
    direct_fin(G128, 70)
    stamp(A, 3)

    def wr(rows_src, buf, neg):
        regs = []
        for k, (row, src) in enumerate(rows_src):
            p = PK[k % 8]
            if src is None:
                A(f"v_mov_b32 v{p}, 0x00003c00")
            else:
                A(f"v_cvt_pk_f16_f32 v{p}, v{src}, {'-' if neg else ''}v{src+1}")
            regs.append(p)
        k = 0
        n = 0
        while k < len(rows_src):
            r0 = rows_src[k][0]
            if k + 1 < len(rows_src) and rows_src[k + 1][0] // 4 == r0 // 4:
                r1 = rows_src[k + 1][0]
                A(f"ds_write2_b32 v{AW + 4*buf + r0//4}, v{regs[k]}, v{regs[k+1]} offset0:{(r0%4)*72} offset1:{(r1%4)*72}")
                k += 2
            else:
                A(f"ds_write_b32 v{AW + 4*buf + r0//4}, v{regs[k]} offset:{(r0%4)*K1_ROWB}")
                k += 1
            n += 1
        return n

    def frags(dst, buf):
        for j in range(4):
            A(f"ds_read_b128 {vr(dst+4*j,4)}, v32 offset:{buf*K1_BUF + 64*j}")

    def mfmas(acc, a, b):
        for j in range(4):
            A(f"v_mfma_f32_16x16x32_f16 {vr(acc,4)}, {vr(a+4*j,4)}, {vr(b+4*j,4)}, {vr(acc,4)}")

    cmul_batch(A, [(g[2], g[1], g[1]), (h[2], h[1], h[1]), (G256, G128, G128)])
    cmul_batch(A, [(g[3], g[2], g[1]), (g[4], g[2], g[2]), (h[3], h[2], h[1]), (h[4], h[2], h[2]), (G512, G256, G256)])
    cmul_batch(A, [(g[5], g[4], g[1]), (g[6], g[4], g[2]), (g[7], g[4], g[3]), (h[5], h[4], h[1]), (h[6], h[4], h[2]),
                   (h[7], h[4], h[3]), (h[8], h[4], h[4]), (G1024, G512, G512)])
    for i in range(4):
        A(f"v_mov_b32 v{20+i}, 0")
        A(f"v_mov_b32 v{24+i}, 0")
        A(f"v_mov_b32 v{4+i}, 0")
    wr([(0, None)] + [(i, h[i]) for i in range(1, 8)], 0, False)
    cmul_batch(A, [(T[i - 1], h[8], h[i]) for i in range(1, 8)])
    wr([(8, h[8])] + [(8 + i, T[i - 1]) for i in range(1, 8)], 0, False)
    frags(BF, 0)
    stamp(A, 4)
    c128 = T[7]
    cmul_batch(A, [(T[i - 1], C, g[i]) for i in range(1, 8)] + [(c128, C, G128)])
    wr([(0, C)] + [(i, T[i - 1]) for i in range(1, 8)], 1, True)
    cmul_batch(A, [(T[i - 1], c128, g[i]) for i in range(1, 8)])
    wr([(8, c128)] + [(8 + i, T[i - 1]) for i in range(1, 8)], 1, True)
    frags(AF, 1)
    cmul_batch(A, [(T[0], C, G512), (T[4], C, G1024)])
    cmul_batch(A, [(T[1], T[0], G128), (T[2], T[0], G256), (T[5], T[4], G256), (T[6], T[4], G512)])
    cmul_batch(A, [(T[3], T[2], G128), (T[7], T[6], G256)])
    n1 = wr([(i, T[i]) for i in range(4)] + [(8 + i, T[4 + i]) for i in range(4)], 0, True)
    c2048 = g[1]
    cmul_batch(A, [(c2048, T[4], G1024)])
    D4 = [g[3], g[5], g[7], g[8]]
    cmul_batch(A, [(D4[i], T[i], g[4]) for i in range(4)])
    A("s_waitcnt lgkmcnt(%d)" % n1)
    mfmas(20, AF, BF)
    cmul_batch(A, [(T[i], T[4 + i], G128) for i in range(4)])
    wr([(4 + i, D4[i]) for i in range(4)] + [(12 + i, T[i]) for i in range(4)], 0, True)
    frags(AF, 0)
    stamp(A, 5)
    cmul_batch(A, [(T[0], C, G256)])
    cmul_batch(A, [(T[4], T[0], G128), (T[1], T[0], g[2]), (T[2], T[0], g[4]), (T[3], T[0], g[6])])
    cmul_batch(A, [(T[5], T[4], g[2]), (T[6], T[4], g[4]), (T[7], T[4], g[6])])
    n2 = wr([(i, T[i]) for i in range(8)], 1, True)
    n2 += wr([(8, c2048)], 1, True)
    A("s_waitcnt lgkmcnt(%d)" % n2)
    mfmas(24, AF, BF)
    frags(AF2, 1)
    A("s_waitcnt lgkmcnt(0)")
    mfmas(4, AF2, BF)
    A("v_lshlrev_b32 v28, 4, v2")
    A("v_add_u32 v30, s7, v28")
    for t, r in enumerate((20, 24, 4)):
        A(f"ds_write_b128 v30, {vr(r,4)} offset:{1024*t}")
    stamp(A, 6)


def expand_round(A, r, lbl):
    A("v_lshlrev_b32 v28, 4, v2")
    A("v_add_u32 v28, s39, v28")
    A("s_mov_b32 s22, 0x01000100")
    A("s_mov_b32 s23, 0x03020302")
    if r < 2:
        A("v_lshlrev_b32 v26, 1, v2")
        A(f"v_sub_u32 v26, {2*(384+255) - 128*r}, v26")
        A("v_add_u32 v26, s40, v26")
        A("ds_read_u16 v40, v26")
        A("ds_read_u16 v41, v26 offset:2")
        A("v_and_b32 v16, 1, v2")
        A("v_cmp_eq_u32 s[20:21], 1, v16")
        A("s_waitcnt lgkmcnt(0)")
        w = 40
        A(f"v_lshl_or_b32 v{w}, v{w+1}, 16, v{w}")
        A(f"v_perm_b32 v{w+2}, v{w}, v{w}, s23")
        A(f"v_perm_b32 v{w+4}, v{w}, v{w}, s22")
        A(f"v_alignbit_b32 v{w+1}, v{w}, v{w}, 16")
        A(f"v_mov_b32 v{w+5}, v{w+4}")
        A(f"v_mov_b32 v{w+6}, v{w+2}")
        A(f"v_cndmask_b32 v{w+3}, v{w+2}, v{w+1}, s[20:21]")
        A(f"v_cndmask_b32 v{w+7}, v{w+1}, v{w+4}, s[20:21]")
        A(f"ds_write_b64 v28, {vr(w+2,2)} offset:{KA_KE + 1024*r}")
        A(f"ds_write_b64 v28, {vr(w+4,2)} offset:{KA_KE + 1024*r + 8}")
        A(f"ds_write_b64 v28, {vr(w+6,2)} offset:{KA_KO + 1024*r}")
        A(f"ds_write_b64 v28, {vr(w+4,2)} offset:{KA_KO + 1024*r + 8}")
    elif r == 2:
        A("v_lshlrev_b32 v27, 2, v2")
        A(f"v_sub_u32 v27, {512 + 4*127}, v27")
        A("v_add_u32 v27, s40, v27")
        A("ds_read_b32 v56, v27")
        A("ds_read_u16 v57, v27 offset:4")
        A("s_mov_b32 s24, 0x07060100")
        A("s_waitcnt lgkmcnt(0)")
        A("v_perm_b32 v40, v57, v57, s22")
        A("v_perm_b32 v41, v56, v56, s23")
        A("v_alignbit_b32 v42, v56, v56, 16")
        A("v_perm_b32 v43, v56, v56, s22")
        A("v_perm_b32 v44, v56, v57, s24")
        A("v_mov_b32 v45, v41")
        A("v_mov_b32 v46, v43")
        A("v_mov_b32 v47, v43")
        A(f"ds_write_b128 v28, v[40:43] offset:{KA_KE + 2048}")
        A(f"ds_write_b128 v28, v[44:47] offset:{KA_KO + 2048}")
    else:
        for k in range(9):
            A(f"ds_read_u16 v{40+k}, v{30+k}")
        A("v_mov_b32 v12, 0")
        A("v_and_b32 v14, 15, v2")
        A("v_lshlrev_b32 v14, 2, v14")
        A("v_add_u32 v14, s39, v14")
        A(f"ds_write_b32 v14, v12 offset:{KA_KE + 4096}")
        A(f"ds_write_b32 v14, v12 offset:{KA_KO + 4096}")
        A("s_waitcnt lgkmcnt(2)")
        for k in range(4):
            A(f"v_lshl_or_b32 v{52+k}, v{41+2*k}, 16, v{40+2*k}")
        A("v_alignbit_b32 v56, v53, v52, 16")
        A("v_alignbit_b32 v57, v54, v53, 16")
        A("v_alignbit_b32 v58, v55, v54, 16")
        A("v_alignbit_b32 v59, v48, v55, 16")
        A(f"ds_write_b128 v28, v[52:55] offset:{KA_KE + 3072}")
        A(f"ds_write_b128 v28, v[56:59] offset:{KA_KO + 3072}")
        A("v_mov_b32 v14, s39")
        A(f"ds_write_b16 v14, v12 offset:{KA_KO + 2*2047}")


def ka(A):
    A("s_cmp_ge_u32 s2, 256")
    A("s_cbranch_scc1 KA_END")
    k_begin(A)
    A("s_load_dwordx16 s[16:31], s[0:1], 0")
    A("s_load_dwordx4 s[44:47], s[0:1], 104")
    A("v_lshrrev_b32 v1, 6, v0")
    A("v_readfirstlane_b32 s3, v1")
    A("v_and_b32 v2, 63, v0")
    A("v_mov_b32 v3, 0")
    A("v_lshlrev_b32 v4, 2, v2")
    A(f"v_add_u32 v4, {KA_CNT}, v4")
    A("s_cmp_lg_u32 s3, 0")
    A("s_cbranch_scc1 KA_NOZ")
    A("s_mov_b64 exec, 0xffffffff")
    A("ds_write_b32 v4, v3")
    A("s_mov_b64 exec, -1")
    A.label("KA_NOZ")
    A(f"s_sub_u32 s4, s2, {NPROD}")
    pair_swizzle(A, 35, 4, 6)
    A("s_sub_u32 s4, s3, 4")
    A("s_mul_i32 s37, s4, 11")
    A("s_lshr_b32 s37, s37, 5")
    A("s_mul_i32 s36, s37, 3")
    A("s_sub_u32 s36, s4, s36")
    A("s_lshl_b32 s34, s35, 2")
    A("s_add_u32 s34, s34, s37")
    A(f"s_mul_i32 s7, s4, {KG_SZ}")
    A("s_mul_i32 s4, s34, 384")
    A("s_lshr_b32 s5, s34, 1")
    A("s_lshl_b32 s5, s5, 2")
    A("s_lshl_b32 s8, s36, 7")
    A("s_add_u32 s8, s8, s4")
    A("v_lshlrev_b32 v3, 1, v2")
    A("v_add_u32 v1, s8, v3")
    A("v_add_u32 v3, s4, v3")
    A("s_waitcnt lgkmcnt(0)")
    A("s_mov_b32 s32, s46")
    A("s_mov_b32 s33, s47")
    A("s_cmp_lt_u32 s3, 4")
    A("s_cbranch_scc1 KA_B0")
    A(f"s_cmp_lt_u32 s2, {NPROD}")
    A("s_cbranch_scc1 KA_B0")
    A("s_load_dword s6, s[26:27], s5")
    A("global_load_ushort v10, v1, s[18:19]")
    A("global_load_ushort v11, v1, s[20:21]")
    A("global_load_ushort v12, v1, s[22:23]")
    A("global_load_ushort v13, v1, s[24:25]")
    for i in range(3):
        A(f"global_load_ushort v{14+i}, v3, s[22:23] offset:{128*i}")
        A(f"global_load_ushort v{17+i}, v3, s[24:25] offset:{128*i}")
    A.label("KA_B0")
    A("s_barrier")
    A("s_cmp_lt_u32 s3, 3")
    A("s_cbranch_scc1 KA_LN1")
    A("s_cmp_lg_u32 s3, 3")
    A("s_cbranch_scc1 KA_NOTAG")
    A(f"s_mov_b32 s14, {WS_EPOCH}")
    A("s_load_dword s15, s[32:33], s14")
    if TLBW >= 2:
        A("s_load_dwordx2 s[36:37], s[0:1], 96")
        A("s_load_dwordx2 s[38:39], s[0:1], 64")
        A("v_min_u32 v3, 7, v2")
        A("v_lshlrev_b32 v3, 21, v3")
        A("global_load_dword v60, v3, s[32:33]")
        A("v_min_u32 v5, 1, v2")
        A("v_lshlrev_b32 v5, 21, v5")
        A("v_mov_b32 v7, 0")
        A("s_waitcnt lgkmcnt(0)")
        A("global_load_dword v61, v5, s[36:37]")
        A("global_load_dword v62, v7, s[38:39]")
    A(f"v_mov_b32 v18, {KA_CNT + 96}")
    A("s_waitcnt lgkmcnt(0)")
    A("s_mul_i32 s15, s15, 0x9E3779B1")
    A("s_add_u32 s15, s15, 0x632BE5AB")
    A("v_mov_b32 v19, s15")
    A("ds_write_b32 v18, v19")
    A("s_waitcnt lgkmcnt(0)")
    A(f"v_mov_b32 v18, {KA_CNT + 12}")
    A("v_mov_b32 v19, 1")
    A("s_mov_b64 exec, 1")
    A("ds_add_u32 v18, v19")
    A("s_mov_b64 exec, -1")
    A(f"s_cmp_ge_u32 s2, {NPROD}")
    A("s_cbranch_scc1 KA_CONV")
    A("s_branch KA_WTPOLL")
    A.label("KA_NOTAG")
    A(f"s_cmp_lt_u32 s2, {NPROD}")
    A("s_cbranch_scc1 KA_WT0")
    kgen_wave(A)
    arrive_s(A, 4, 37)
    wait_s(A, 4, 37, 3, "KA_W4")
    stamp(A, 7)
    A(f"s_mul_i32 s11, s37, {3*KG_SZ}")
    A("s_lshl_b32 s12, s36, 10")
    A("s_add_u32 s11, s11, s12")
    A("v_add_u32 v28, s11, v28")
    for w in range(3):
        A(f"ds_read_b128 {vr(40+4*w,4)}, v28 offset:{KG_SZ*w}")
    A("s_waitcnt lgkmcnt(0)")
    for i in range(4):
        A(f"v_add_f32 v{40+i}, v{40+i}, v{44+i}")
    for i in range(4):
        A(f"v_add_f32 v{40+i}, v{40+i}, v{48+i}")
    A("v_cvt_pk_f16_f32 v40, v40, v41")
    A("v_cvt_pk_f16_f32 v41, v42, v43")
    A("s_cmp_eq_u32 s36, 1")
    A("s_cbranch_scc1 KA_S1")
    A("ds_write_b64 v29, v[40:41]")
    A("s_branch KA_S2")
    A.label("KA_S1")
    A("ds_write_b16 v29, v40")
    A("ds_write_b16_d16_hi v29, v40 offset:64")
    A("ds_write_b16 v29, v41 offset:128")
    A("ds_write_b16_d16_hi v29, v41 offset:192")
    A.label("KA_S2")
    arrive_s(A, 8, 37)
    wait_s(A, 8, 37, 3, "KA_W5")
    A(f"s_mul_i32 s39, s37, {KEO_ST}")
    A(f"s_add_u32 s39, s39, {KEO_BASE}")
    A(f"s_mul_i32 s40, s37, {T_ST}")
    A(f"s_add_u32 s40, s40, {KA_T}")
    A("s_cmp_eq_u32 s36, 0")
    A("s_cbranch_scc1 KA_R0")
    A("s_cmp_eq_u32 s36, 1")
    A("s_cbranch_scc1 KA_R1")
    expand_round(A, 2, "R2")
    A("s_branch KA_RX")
    A.label("KA_R0")
    expand_round(A, 0, "R0")
    A("s_branch KA_RX")
    A.label("KA_R1")
    expand_round(A, 1, "R1")
    A.label("KA_RX")
    arrive_s(A, 12, 37)
    k_end(A, 0)

    A.label("KA_CONV")
    A("s_lshl_b32 s4, s35, 2")
    A("s_add_u32 s4, s4, s3")
    A("s_lshr_b32 s14, s4, 1")
    A("s_lshl_b32 s14, s14, 2")
    A(f"s_mul_i32 s39, s3, {KEO_ST}")
    A(f"s_mul_i32 s40, s3, {T_ST}")
    A(f"s_add_u32 s40, s40, {KA_T}")
    A(f"s_mul_i32 s41, s3, {U_ST}")
    A(f"s_add_u32 s41, s41, {KA_U}")
    A("v_and_b32 v6, 15, v2")
    A("v_lshrrev_b32 v7, 4, v2")
    A("v_lshrrev_b32 v8, 1, v7")
    A("v_and_b32 v9, 1, v7")
    A("v_mov_b32 v12, 0")
    A("v_mov_b32 v13, 0")
    A("v_lshlrev_b32 v14, 3, v2")
    A("v_add_u32 v14, s41, v14")
    A("ds_write_b64 v14, v[12:13]")
    A("v_sub_u32 v14, 2047, v6")
    A("v_lshlrev_b32 v15, 4, v8")
    A("v_sub_u32 v14, v14, v15")
    A("v_lshlrev_b32 v15, 3, v9")
    A("v_add_u32 v14, v14, v15")
    A("v_lshlrev_b32 v14, 1, v14")
    A(f"v_add_u32 v15, {KA_KO - 2}, v14")
    A("v_and_b32 v16, 1, v6")
    A("v_cmp_eq_u32 vcc, 1, v16")
    A("v_cndmask_b32 v14, v15, v14, vcc")
    A("v_add_u32 v14, s39, v14")
    AB = [20, 21, 22, 23]
    for p in range(4):
        A(f"v_subrev_u32 v{AB[p]}, {512*(2*p+1) + 448}, v14")
    A("v_lshlrev_b32 v15, 5, v6")
    A("v_lshlrev_b32 v16, 5, v8")
    A("v_sub_u32 v15, v15, v16")
    A("v_lshlrev_b32 v16, 4, v9")
    A("v_add_u32 v15, v15, v16")
    A(f"v_add_u32 v15, {512 - 448}, v15")
    BB = 24
    A(f"v_add_u32 v{BB}, s41, v15")
    A("v_lshlrev_b32 v15, 5, v6")
    A("v_lshlrev_b32 v16, 3, v7")
    A("v_add_u32 v25, v15, v16")
    A("v_lshlrev_b32 v3, 3, v2")
    A("v_sub_u32 v3, 511, v3")
    for k in range(9):
        A(f"v_subrev_u32 v{30+k}, {k}, v3")
    A("v_max_i32 v38, 0, v38")
    for k in range(9):
        A(f"v_cvt_f32_i32 v{40+k}, v{30+k}")
    for k in range(0, 8, 2):
        A(f"v_cvt_pk_bf16_f32 v{50+k}, v{40+k}, v{41+k}")
        A(f"v_lshrrev_b32 v{51+k}, 16, v{50+k}")
        A(f"v_and_b32 v{50+k}, 0xffff, v{50+k}")
    A("v_cvt_pk_bf16_f32 v58, v48, v48")
    A("v_and_b32 v58, 0xffff, v58")
    for k in range(9):
        A(f"v_subrev_u32 v{50+k}, 17024, v{50+k}")
        A(f"v_min_i32 v{30+k}, 127, v{30+k}")
        A(f"v_max_i32 v{50+k}, v{50+k}, v{30+k}")
        A(f"v_lshlrev_b32 v{30+k}, 1, v{50+k}")
        A(f"v_add_u32 v{30+k}, s40, v{30+k}")
    A("v_lshrrev_b32 v5, 2, v2")
    A("v_mul_u32_u24 v5, 10240, v5")
    A("v_and_b32 v4, 3, v2")
    A("v_lshl_add_u32 v5, v4, 4, v5")
    A("s_lshl_b32 s7, s35, 6")
    A("s_mul_i32 s8, s3, 655360")
    A("s_add_u32 s7, s7, s8")
    A(f"s_add_u32 s7, s7, {WS_UT}")
    A("v_add_u32 v5, s7, v5")
    A(f"v_mul_u32_u24 v4, {U_ST}, v4")
    A("v_lshrrev_b32 v3, 2, v2")
    A("v_lshl_add_u32 v4, v3, 4, v4")
    A("s_lshl_b32 s8, s3, 10")
    A(f"s_add_u32 s8, s8, {KA_U + 512}")
    A("v_add_u32 v4, s8, v4")
    A("s_load_dword s11, s[28:29], s14")
    stamp(A, 1)
    A("s_cmp_lg_u32 s3, 3")
    A("s_cbranch_scc1 KA_GOT")
    wait_count(A, 3, 4, "KA_OWN", sleep=4)
    poll_flags(A, "KA_POLL")
    A(f"s_cmp_lg_u32 s2, {NPROD}")
    A("s_cbranch_scc1 KA_GOT")
    A(f"v_mov_b32 v3, {WS_EPOCH}")
    A("v_mov_b32 v10, s15")
    A("s_mov_b64 exec, 1")
    A(f"global_store_dword v3, v10, s[32:33] {SC}")
    A("s_mov_b64 exec, -1")
    A.label("KA_GOT")
    AF, BF, ACC = 32, 64, 96
    for i in range(32):
        A(f"v_mov_b32 v{ACC+i}, 0")
    A("s_bitcmp1_b32 s4, 0")
    group_sync(A, 2, 4, "KA_GS2")
    stamp(A, 2)
    for j in range(4):
        A(f"global_load_dwordx4 {vr(64+4*j,4)}, v5, s[32:33] {SC}")
        if j < 3:
            A("v_add_u32 v5, 163840, v5")
    A("s_bitcmp1_b32 s4, 0")
    A("s_cbranch_scc1 KA_ODD2")
    A("s_lshl_b32 s11, s11, 16")
    A.label("KA_ODD2")
    A("s_and_b32 s11, s11, 0xffff0000")
    for j in range(4):
        A(f"s_waitcnt vmcnt({3-j})")
        A(f"ds_write_b128 v4, {vr(64+4*j,4)} offset:{256*j}")
    arrive(A, 17)
    stamp(A, 3)
    wait_s(A, 8, 3, 3, "KA_W5C")
    expand_round(A, 3, "R3")
    A("s_lshl_b32 s12, s3, 2")
    A(f"s_add_u32 s12, s12, {KA_SC}")
    A("v_mov_b32 v3, s12")
    A("ds_read_b32 v10, v3")
    wait_s(A, 12, 3, 3, "KA_W6")
    wait_count(A, 17, 4, "KA_W7", sleep=0)
    stamp(A, 5)

    def loadA(q, i0):
        p = q // 2
        o = (128 if q % 2 == 0 else 0) + 16 * (7 - i0)
        return [f"ds_read2_b32 {vr(AF+4*q,2)}, v{AB[p]} offset0:{o} offset1:{o+1}",
                f"ds_read2_b32 {vr(AF+4*q+2,2)}, v{AB[p]} offset0:{o+2} offset1:{o+3}"]

    def loadB(tau, i0):
        return [f"ds_read_b128 {vr(BF+4*tau,4)}, v{BB} offset:{512*tau + 64*(7-i0)}"]

    queue = []
    if os.environ.get("ALIGN"):
        A(".p2align 3")
    for q in range(8):
        A(loadB(7 - q, 0)[0])
        queue.append(("B", 7 - q))
        if q == 0:
            for s in loadA(0, 0):
                A(s)
            queue += [("A", 0), ("A", 0)]
    for q in range(1, 8):
        for s in loadA(q, 0):
            A(s)
        queue += [("A", q), ("A", q)]
    pending = []

    def wait_for(tags):
        while any(tg in tags for _, tg in pending):
            s_, tg = pending.pop(0)
            A(s_)
            queue.append(tg)
        last = -1
        for i, t in enumerate(queue):
            if t in tags:
                last = i
        if last >= 0:
            n = len(queue) - 1 - last
            A(f"s_waitcnt lgkmcnt({min(n, 15)})")
            if os.environ.get("ALIGN"):
                A("s_nop 0")
            del queue[:last + 1]

    for i0 in range(8):
        for q in range(8):
            for tau in range(7 - q, -1, -1):
                wait_for({("A", q), ("B", tau)})
                t = q + tau
                A(f"v_mfma_f32_16x16x32_f16 {vr(ACC+4*t,4)}, {vr(AF+4*q,4)}, {vr(BF+4*tau,4)}, {vr(ACC+4*t,4)}")
                if i0 < 7:
                    if tau == 7 - q:
                        pending.insert(0, (loadB(7 - q, i0 + 1)[0], ("B", 7 - q)))
                    if tau == 0:
                        for s in loadA(q, i0 + 1):
                            pending.append((s, ("A", q)))
                if pending:
                    s, tag = pending.pop(0)
                    A(s)
                    queue.append(tag)
    stamp(A, 6)
    A("v_add_u32 v26, s41, v25")
    A("v_add_u32 v27, s39, v25")
    for t in range(8):
        A(f"ds_read_b64 {vr(32+2*t,2)}, v26 offset:{512 + 512*t}")
    A(f"v_mov_b32 v28, {ONE_LO}")
    A(f"v_mov_b32 v29, {ONE_HI}")
    A("v_mov_b32 v11, v10")
    A("s_waitcnt lgkmcnt(0)")
    for t in range(8):
        a = ACC + 4 * t
        u = 32 + 2 * t
        tm = 48 + 8 * (t & 1)
        A(f"v_pk_mul_f32 {vr(a,2)}, {vr(a,2)}, v[10:11]")
        A(f"v_pk_mul_f32 {vr(a+2,2)}, {vr(a+2,2)}, v[10:11]")
        A(f"v_fma_mix_f32 v{tm}, v{u}, s11, 0 op_sel:[0,0,0] op_sel_hi:[1,0,0]")
        A(f"v_fma_mix_f32 v{tm+1}, v{u}, s11, 0 op_sel:[1,0,0] op_sel_hi:[1,0,0]")
        A(f"v_fma_mix_f32 v{tm+2}, v{u+1}, s11, 0 op_sel:[0,0,0] op_sel_hi:[1,0,0]")
        A(f"v_fma_mix_f32 v{tm+3}, v{u+1}, s11, 0 op_sel:[1,0,0] op_sel_hi:[1,0,0]")
        A(f"v_cvt_pk_bf16_f32 v{a}, v{a}, v{a+1}")
        A(f"v_cvt_pk_bf16_f32 v{a+1}, v{a+2}, v{a+3}")
        A(f"v_cvt_pk_bf16_f32 v{tm+4}, v{tm}, v{tm+1}")
        A(f"v_cvt_pk_bf16_f32 v{tm+5}, v{tm+2}, v{tm+3}")
        A(f"v_lshlrev_b32 v{tm}, 16, v{tm+4}")
        A(f"v_and_b32 v{tm+1}, 0xffff0000, v{tm+4}")
        A(f"v_lshlrev_b32 v{tm+2}, 16, v{tm+5}")
        A(f"v_and_b32 v{tm+3}, 0xffff0000, v{tm+5}")
        A(f"v_dot2_f32_bf16 v{tm}, v{a}, v28, v{tm}")
        A(f"v_dot2_f32_bf16 v{tm+1}, v{a}, v29, v{tm+1}")
        A(f"v_dot2_f32_bf16 v{tm+2}, v{a+1}, v28, v{tm+2}")
        A(f"v_dot2_f32_bf16 v{tm+3}, v{a+1}, v29, v{tm+3}")
        A(f"v_cvt_pk_bf16_f32 v{a+2}, v{tm}, v{tm+1}")
        A(f"v_cvt_pk_bf16_f32 v{a+3}, v{tm+2}, v{tm+3}")
        A(f"ds_write_b64 v27, {vr(a+2,2)} offset:{KA_KE + 512*t}")
    stamp(A, 7)
    A("v_lshrrev_b32 v14, 2, v6")
    A(f"v_mul_u32_u24 v14, {KEO_ST}, v14")
    A("v_and_b32 v15, 3, v2")
    A("v_lshlrev_b32 v15, 3, v15")
    A("v_add_u32 v14, v14, v15")
    A("v_lshlrev_b32 v15, 5, v7")
    A("v_add_u32 v14, v14, v15")
    A("s_lshl_b32 s12, s3, 10")
    A("v_add_u32 v14, s12, v14")
    A("v_lshrrev_b32 v15, 3, v6")
    A("v_lshlrev_b32 v16, 1, v7")
    A("v_add_u32 v15, v15, v16")
    A("v_mul_u32_u24 v15, 10240, v15")
    A("v_and_b32 v16, 7, v6")
    A("v_lshlrev_b32 v16, 3, v16")
    A("v_add_u32 v15, v15, v16")
    A("s_mul_i32 s12, s3, 655360")
    A("s_lshl_b32 s13, s35, 6")
    A("s_add_u32 s12, s12, s13")
    A(f"s_add_u32 s12, s12, {WS_AT}")
    A("v_add_u32 v15, s12, v15")
    A("s_waitcnt lgkmcnt(0)")
    A("s_barrier")
    for k in range(8):
        A(f"ds_read_b64_tr_b16 {vr(40+2*k,2)}, v14 offset:{KA_KE + 128*k}")
    for k in range(8):
        A(f"s_waitcnt lgkmcnt({7-k})")
        A(f"global_store_dwordx2 v15, {vr(40+2*k,2)}, s[32:33] {os.environ.get('AT_MOD', '')}")
        if k < 7:
            A("v_add_u32 v15, 81920, v15")
    k_end(A, 0)

    A.label("KA_LN1")
    A(f"s_setprio {os.environ.get('LN_PRIO', '3')}")
    A("v_mov_b32 v20, v0")
    A("s_mul_i32 s5, s2, 10240")
    A("v_min_u32 v21, 159, v20")
    A("v_lshlrev_b32 v3, 3, v21")
    A("v_add_u32 v3, s5, v3")
    A("v_add_u32 v4, 5120, v3")
    A("v_lshrrev_b32 v5, 4, v20")
    A("v_mul_u32_u24 v6, 1280, v5")
    A("v_and_b32 v7, 15, v20")
    A("v_lshlrev_b32 v7, 4, v7")
    A("v_add_u32 v6, v6, v7")
    A("v_add_u32 v6, s5, v6")
    A("s_cmp_eq_u32 s3, 2")
    A("s_cbranch_scc1 KA_LNB")
    for i in range(5):
        A(f"global_load_dwordx4 {vr(24+4*i,4)}, v6, s[16:17] offset:{256*i}")
    A.label("KA_LNB")
    for r in range(8):
        A(f"global_load_dwordx2 {vr(48+2*r,2)}, v{3 if r < 4 else 4}, s[16:17] offset:{1280*(r%4)}")
    A(f"v_mov_b32 v14, {ONE_LO}")
    A(f"v_mov_b32 v15, {ONE_HI}")
    A("s_cmp_eq_u32 s3, 2")
    A("s_cbranch_scc1 KA_P1")
    for r in (8, 9, 10, 11):
        A(f"v_mov_b32 v{r}, 0")
    A("v_mov_b32 v12, 0x3f803f80")
    A("s_waitcnt vmcnt(8)")
    for i in range(0, 20, 2):
        A(f"v_dot2c_f32_bf16 v8, v{24+i}, v12")
        A(f"v_dot2c_f32_bf16 v9, v{24+i}, v{24+i}")
        A(f"v_dot2c_f32_bf16 v10, v{25+i}, v12")
        A(f"v_dot2c_f32_bf16 v11, v{25+i}, v{25+i}")
    A("s_nop 2")
    A("v_add_f32 v8, v8, v10")
    A("v_add_f32 v9, v9, v11")
    for sh in (8, 4, 2, 1):
        A(f"v_add_f32_dpp v8, v8, v8 row_ror:{sh} row_mask:0xf bank_mask:0xf")
        A(f"v_add_f32_dpp v9, v9, v9 row_ror:{sh} row_mask:0xf bank_mask:0xf")
    ln_finish(A, 8, 9, 10)
    A("v_sub_f32 v8, 0, v8")
    A("v_lshlrev_b32 v5, 3, v5")
    A(f"v_add_u32 v5, {KA_STATS}, v5")
    A("ds_write_b64 v5, v[8:9]")
    A.label("KA_P1")
    group_sync(A, 0, 3, "KA_GS0")
    stamp(A, 8)
    A(f"v_mov_b32 v5, {KA_STATS}")
    for i in range(4):
        A(f"ds_read_b128 {vr(24+4*i,4)}, v5 offset:{16*i}")
    A("v_lshlrev_b32 v3, 6, v21")
    A(f"v_add_u32 v3, {KA_STAGE}, v3")
    A("s_waitcnt vmcnt(0) lgkmcnt(0)")
    for rp in range(4):
        r0, r1 = 2 * rp, 2 * rp + 1
        tt = [84 + 3 * ch for ch in range(4)]
        for ch in range(4):
            a, b = 48 + 2 * r0 + (ch >> 1), 48 + 2 * r1 + (ch >> 1)
            one = 14 + (ch & 1)
            A(f"v_dot2_f32_bf16 v{tt[ch]}, v{a}, v{one}, v{24+2*r0}")
            A(f"v_dot2_f32_bf16 v{tt[ch]+1}, v{b}, v{one}, v{24+2*r1}")
        for ch in range(4):
            A(f"v_cvt_pk_bf16_f32 v{tt[ch]+2}, v{tt[ch]}, v{tt[ch]+1}")
        for ch in range(4):
            A(f"v_lshlrev_b32 v{tt[ch]}, 16, v{tt[ch]+2}")
            A(f"v_and_b32 v{tt[ch]+1}, 0xffff0000, v{tt[ch]+2}")
        for ch in range(4):
            A(f"v_mul_f32 v{tt[ch]}, v{tt[ch]}, v{25+2*r0}")
            A(f"v_mul_f32 v{tt[ch]+1}, v{tt[ch]+1}, v{25+2*r1}")
        for ch in range(4):
            A(f"v_cvt_pk_bf16_f32 v{tt[ch]+2}, v{tt[ch]}, v{tt[ch]+1}")
        for ch in range(4):
            A(f"v_lshlrev_b32 v{tt[ch]}, 16, v{tt[ch]+2}")
            A(f"v_and_b32 v{tt[ch]+1}, 0xffff0000, v{tt[ch]+2}")
        for ch in range(4):
            A(f"v_cvt_pk_f16_f32 v{68+4*ch+rp}, v{tt[ch]}, v{tt[ch]+1}")
    for ch in range(4):
        A(f"ds_write_b128 v3, {vr(68+4*ch,4)} offset:{16*ch}")
    group_sync(A, 1, 3, "KA_GS1")
    A("v_lshlrev_b32 v3, 4, v20")
    A(f"v_add_u32 v4, {KA_STAGE}, v3")
    for j in range(4):
        A(f"ds_read_b128 {vr(24+4*j,4)}, v4 offset:{3072*j}")
    A(f"s_add_u32 s5, s5, {WS_UT}")
    A("v_add_u32 v3, s5, v3")
    A("s_waitcnt lgkmcnt(0)")
    for j in range(3):
        A(f"global_store_dwordx4 v3, {vr(24+4*j,4)}, s[32:33] {SC}")
        A("v_add_u32 v3, 3072, v3")
    A("s_cmp_lg_u32 s3, 0")
    A("s_cbranch_scc1 KA_P3")
    A(f"global_store_dwordx4 v3, {vr(36,4)}, s[32:33] {SC}")
    A.label("KA_P3")
    A("s_waitcnt vmcnt(0)")
    group_sync(A, 3, 4, "KA_GS3")
    stamp(A, 9)
    A("s_cmp_lg_u32 s3, 0")
    A("s_cbranch_scc1 KA_LNX")
    A(f"v_mov_b32 v3, {KA_CNT + 96}")
    A("ds_read_b32 v4, v3")
    A(f"s_lshr_b32 s5, s2, {0 if FLAG64 == 2 else 2 if FLAG64 else 4}")
    A("s_lshl_b32 s5, s5, 7")
    A(f"s_and_b32 s6, s2, {0 if FLAG64 == 2 else 3 if FLAG64 else 15}")
    A("s_lshl_b32 s6, s6, 2")
    A("s_add_u32 s5, s5, s6")
    A(f"s_add_u32 s5, s5, {WS_FLAG}")
    A("v_mov_b32 v3, s5")
    A("s_waitcnt lgkmcnt(0)")
    A("s_mov_b64 exec, 1")
    A(f"global_store_dword v3, v4, s[32:33] {FMOD}")
    A("s_mov_b64 exec, -1")
    A.label("KA_LNX")
    A("s_setprio 0")
    A(f"s_cmp_ge_u32 s2, {NPROD}")
    A("s_cbranch_scc1 KA_CONV")
    k_end(A, 0)
    A.label("KA_WTPOLL")
    wait_count(A, 3, 4, "KA_OWN2", sleep=4)
    if os.environ.get("WT_LATE"):
        poll_epoch(A, "KA_POLL2")
    arrive(A, 16)
    k_end(A, 0)
    A.label("KA_WT0")
    A("s_cmp_ge_u32 s3, 8")
    A("s_cbranch_scc1 KA_PRE" if PREFILL[0] else "s_cbranch_scc1 KA_WTX")
    wait_count(A, 16, 1, "KA_WTW", sleep=8)
    wt_role(A, "KA", 0, -2, 8192, 0, 960, 0, os.environ.get("WT_MOD", "sc1"), 384)
    if PREFILL[0]:
        A.label("KA_PRE")
        if TLBW == 1 or TLBW == 3:
            A("s_cmp_lg_u32 s3, 9")
            A("s_cbranch_scc1 KA_PRE2")
            A("s_load_dwordx2 s[36:37], s[0:1], 96")
            A("s_load_dwordx2 s[38:39], s[0:1], 64")
            A("v_min_u32 v3, 7, v2")
            A("v_lshlrev_b32 v3, 21, v3")
            A("global_load_dword v4, v3, s[32:33]")
            A("v_min_u32 v5, 1, v2")
            A("v_lshlrev_b32 v5, 21, v5")
            A("v_mov_b32 v7, 0")
            A("s_waitcnt lgkmcnt(0)")
            A("global_load_dword v6, v5, s[36:37]")
            A("global_load_dword v8, v7, s[38:39]")
            A("s_endpgm")
            A.label("KA_PRE2")
        A("s_cmp_lg_u32 s3, 8")
        A("s_cbranch_scc1 KA_WTX")
        nk = 256 * KEY_STRIDE // 1024
        A(f"s_cmp_ge_u32 s2, {nk + 24}")
        A("s_cbranch_scc1 KA_WTX")
        A("s_lshl_b32 s4, s2, 10")
        A(f"s_add_u32 s5, s4, {WS_RK}")
        A(f"s_add_u32 s6, s4, {WS_ACT - 1024 * nk}")
        A(f"s_cmp_lt_u32 s2, {nk}")
        A("s_cselect_b32 s5, s5, s6")
        A("v_lshlrev_b32 v3, 4, v2")
        A("v_add_u32 v3, s5, v3")
        for i in range(4):
            A(f"v_mov_b32 v{4+i}, -1")
        A("global_store_dwordx4 v3, v[4:7], s[32:33]")
    A.label("KA_WTX")
    k_end(A, 0)
    A.label("KA_END")
    A("s_endpgm")


KC_SLEEP = int(os.environ.get('KC_SLEEP', '6'))
AT_LD = os.environ.get('AT_LD', '')
KD_LDS = 18432
KD_F1_FIRST = int(os.environ.get("KD_F1_FIRST", "20"))
KD_F2_FIRST = int(os.environ.get("KD_F2_FIRST", "64"))
KD_KSLEEP = int(os.environ.get("KD_KSLEEP", "8"))
NROW = 256


def sel_part1(A, lbl, first_sleep):
    A(f"v_lshlrev_b32 v4, {KEY_STRIDE.bit_length() - 1}, v0")
    A(f"v_add_u32 v4, {WS_RK}, v4")
    A("s_mov_b32 s12, 0")
    A("v_mov_b32 v21, -1")
    if first_sleep:
        A(f"s_sleep {first_sleep}")
    A.label(lbl)
    A(f"global_load_dwordx4 v[8:11], v4, s[32:33] {SC}")
    A(f"global_load_dwordx4 v[12:15], v4, s[32:33] offset:16 {SC}")
    A("s_waitcnt vmcnt(0)")
    A("v_max3_u32 v16, v8, v9, v10")
    A("v_max3_u32 v17, v11, v12, v13")
    A("v_max3_u32 v16, v16, v14, v15")
    A("v_max_u32 v16, v16, v17")
    A("v_cmp_eq_u32 vcc, v21, v16")
    A("s_cmp_eq_u64 vcc, 0")
    A(f"s_cbranch_scc1 {lbl}_OK")
    A("s_add_u32 s12, s12, 1")
    A(f"s_cmp_ge_u32 s12, {SPIN_MAX}")
    A(f"s_cbranch_scc1 {lbl}_OK")
    A(f"s_sleep {KD_KSLEEP}")
    A(f"s_branch {lbl}")
    A.label(lbl + "_OK")
    stamp(A, 5)
    net = [(0, 1), (2, 3), (4, 5), (6, 7), (0, 2), (1, 3), (4, 6), (5, 7), (1, 2), (5, 6), (0, 4), (3, 7), (1, 5), (2, 6),
           (1, 4), (3, 6), (2, 4), (3, 5), (3, 4)]
    reg = list(range(8, 16))
    spare = 16
    for a_, b_ in net:
        A(f"v_max_u32 v{spare}, v{reg[a_]}, v{reg[b_]}")
        A(f"v_min_u32 v{reg[b_]}, v{reg[a_]}, v{reg[b_]}")
        reg[a_], spare = spare, reg[a_]
    steps = [("row_shr:1", "0xf"), ("row_shr:2", "0xf"), ("row_shr:4", "0xf"), ("row_shr:8", "0xf"),
             ("row_bcast:15", "0xa"), ("row_bcast:31", "0xc")]
    for r in range(4):
        A(f"v_mov_b32 v17, v{reg[0]}")
        A(f"v_mov_b32 v18, v{reg[1]}")
        for ctl, mask in steps:
            bc = " bound_ctrl:0" if ctl.startswith("row_shr") else ""
            A(f"v_min_u32_dpp v19, v17, v17 {ctl} row_mask:{mask} bank_mask:0xf{bc}")
            A(f"v_max_u32_dpp v17, v17, v17 {ctl} row_mask:{mask} bank_mask:0xf{bc}")
            A(f"v_max_u32_dpp v20, v18, v18 {ctl} row_mask:{mask} bank_mask:0xf{bc}")
            A("v_max_u32 v18, v19, v20")
        A(f"v_readlane_b32 s{40+2*r}, v17, 63")
        A(f"v_readlane_b32 s{41+2*r}, v18, 63")
        if r < 3:
            left = 8 - 2 * r
            for wsel in (40 + 2 * r, 41 + 2 * r):
                A(f"v_cmp_eq_u32 vcc, s{wsel}, v{reg[0]}")
                left -= 1
                for k in range(left):
                    A(f"v_cndmask_b32 v{reg[k]}, v{reg[k]}, v{reg[k+1]}, vcc")
    A("v_mov_b32 v16, s40")
    for r in range(1, 8):
        A(f"v_writelane_b32 v16, s{40+r}, {r}")
    A("s_lshl_b32 s6, s3, 5")
    A("v_lshlrev_b32 v17, 2, v2")
    A("v_add_u32 v17, s6, v17")
    A("v_cmp_gt_u32 vcc, 8, v2")
    A("s_and_saveexec_b64 s[20:21], vcc")
    A("ds_write_b32 v17, v16")
    A("s_mov_b64 exec, s[20:21]")


def sel_part2(A):
    A("v_and_b32 v17, 31, v2")
    A("v_lshlrev_b32 v17, 2, v17")
    A("v_lshrrev_b32 v18, 5, v2")
    A("v_lshlrev_b32 v18, 6, v18")
    A("v_mov_b32 v19, 0")
    A("v_mov_b32 v20, 0")
    A("s_waitcnt lgkmcnt(0)")
    A("s_barrier")
    A("ds_read_b32 v16, v17")
    for i in range(4):
        A(f"ds_read_b128 {vr(60+4*i,4)}, v18 offset:{16*i}")
    A("s_waitcnt lgkmcnt(0)")
    sp = ["s[50:51]", "s[52:53]", "s[54:55]", "s[56:57]"]
    for i in range(0, 16, 4):
        for k in range(4):
            A(f"v_cmp_gt_u32 {sp[k]}, v{60+i+k}, v16")
        for k in range(4):
            A(f"v_addc_co_u32 v{19 + (k & 1)}, vcc, 0, v{19 + (k & 1)}, {sp[k]}")
    A("v_add_u32 v19, v19, v20")
    A("v_mov_b32 v20, v19")
    A("v_permlane32_swap_b32 v19, v20")
    A("v_add_u32 v19, v19, v20")
    A("v_cmp_gt_u32 vcc, 8, v19")
    A("v_cmp_gt_u32 s[22:23], 32, v2")
    A("s_and_b64 vcc, vcc, s[22:23]")
    A("v_lshlrev_b32 v19, 2, v19")
    A("s_lshl_b32 s6, s3, 6")
    A("s_add_u32 s6, s6, 256")
    A("v_add_u32 v19, s6, v19")
    A("s_and_saveexec_b64 s[20:21], vcc")
    A("ds_write_b32 v19, v16")
    A("s_mov_b64 exec, s[20:21]")


def kd(A):
    A("s_cmp_ge_u32 s2, 256")
    A("s_cbranch_scc1 KD_END")
    k_begin(A)
    A("s_load_dwordx2 s[32:33], s[0:1], 112")
    A("s_load_dwordx2 s[26:27], s[0:1], 0")
    A("s_load_dwordx2 s[28:29], s[0:1], 64")
    A("s_load_dwordx2 s[30:31], s[0:1], 96")
    A("v_lshrrev_b32 v1, 6, v0")
    A("v_readfirstlane_b32 s3, v1")
    A("v_and_b32 v2, 63, v0")
    A("s_and_b32 s35, s3, 3")
    A("s_cmp_ge_u32 s2, 192")
    A("s_cselect_b32 s36, 1, 0")
    A("s_sub_u32 s34, s2, 192")
    A("s_cmp_lt_u32 s34, 16")
    A("s_cselect_b32 s38, s36, 0")
    A("s_mov_b32 s37, s2")
    A("s_mul_i32 s7, s37, 20480")
    A("s_mul_i32 s8, s35, 5120")
    A("s_add_u32 s7, s7, s8")
    A(f"s_add_u32 s7, s7, {WS_WGU}")
    A("v_lshlrev_b32 v96, 4, v2")
    A("v_add_u32 v96, s7, v96")
    A("v_add_u32 v97, 4096, v96")
    A("v_lshrrev_b32 v5, 4, v2")
    A("v_and_b32 v4, 7, v2")
    A("v_bfe_u32 v6, v2, 3, 1")
    A("v_lshlrev_b32 v98, 7, v5")
    A("v_lshl_add_u32 v98, v4, 4, v98")
    A("v_lshl_add_u32 v98, v6, 9, v98")
    A("s_mul_i32 s5, s3, 3072")
    A("v_add_u32 v98, s5, v98")
    A(f"v_add_u32 v99, {WS_ACT}, v98")
    A("s_mul_i32 s4, s34, 24576")
    A(f"s_add_u32 s4, s4, {WS_WD}")
    A("v_add_u32 v98, s4, v98")
    A(f"v_add_u32 v97, {64*24576}, v98".replace("v97", "v95"))
    FR, A2, FRB = 100, 112, 124

    def frag_loads(tag):
        A("s_cmp_eq_u32 s36, 1")
        A(f"s_cbranch_scc1 KD_L2_{tag}")
        for i in range(4):
            A(f"global_load_dwordx4 {vr(FR+4*i,4)}, v96, s[32:33] offset:{1024*i}")
        A(f"global_load_dwordx4 {vr(FR+16,4)}, v97, s[32:33]")
        A(f"s_branch KD_LX_{tag}")
        A.label(f"KD_L2_{tag}")
        for i in range(3):
            A(f"global_load_dwordx4 {vr(FR+4*i,4)}, v98, s[32:33] offset:{1024*i}")
        A("s_cmp_eq_u32 s38, 0")
        A(f"s_cbranch_scc1 KD_LX_{tag}")
        for i in range(3):
            A(f"global_load_dwordx4 {vr(FRB+4*i,4)}, v95, s[32:33] offset:{1024*i}")
        A.label(f"KD_LX_{tag}")

    A("s_cmp_lt_u32 s3, 4")
    A("s_cbranch_scc1 KD_ROW")
    A("s_cmp_eq_u32 s36, 0")
    A("s_cbranch_scc1 KD_END")
    A("s_waitcnt lgkmcnt(0)")
    A("s_sleep 32")
    frag_loads("hi")
    A("s_barrier")
    A("s_branch KD_SEL2")
    A.label("KD_ROW")
    A("v_lshrrev_b32 v7, 5, v0")
    A("v_and_b32 v4, 31, v0")
    A("s_mul_i32 s4, s2, 10240")
    A("v_lshlrev_b32 v5, 3, v4")
    A("v_mul_u32_u24 v6, 1280, v7")
    A("v_add_u32 v6, v6, v5")
    A("v_add_u32 v8, s4, v6")
    A("v_lshlrev_b32 v3, 6, v4")
    A("v_lshl_add_u32 v3, v7, 3, v3")
    A(f"s_add_u32 s5, s4, {WS_AT + 4096}")
    A("v_add_u32 v3, s5, v3")
    A("v_add_u32 v9, 8192, v3")
    AR, XR, WR = 20, 32, 44
    A("s_waitcnt lgkmcnt(0)")
    stamp(A, 1)
    for i in range(5):
        if i < 4:
            A(f"global_load_dwordx2 {vr(AR+2*i,2)}, v3, s[32:33] offset:{2048*i - 4096} {AT_LD}")
        else:
            A(f"global_load_dwordx2 {vr(AR+2*i,2)}, v9, s[32:33] offset:-4096 {AT_LD}")
        A(f"global_load_dwordx2 {vr(XR+2*i,2)}, v8, s[26:27] offset:{256*i}")
    for i in range(5):
        A(f"global_load_dwordx2 {vr(WR+2*i,2)}, v5, s[28:29] offset:{256*i}")
    A(f"v_mov_b32 v12, {ONE_LO}")
    A(f"v_mov_b32 v13, {ONE_HI}")
    A("v_mov_b32 v14, 0x3f803f80")
    for r in (10, 11, 16, 17):
        A(f"v_mov_b32 v{r}, 0")
    A(f"v_add_u32 v9, {WS_L2}, v8")
    H, T = 56, 68
    A("s_waitcnt vmcnt(5)")
    stamp(A, 2)
    frag_loads("lo")
    N = 10
    for i in range(N):
        A(f"v_lshlrev_b32 v{T+2*i}, 16, v{AR+i}")
        A(f"v_and_b32 v{T+2*i+1}, 0xffff0000, v{AR+i}")
    for i in range(N):
        A(f"v_dot2_f32_bf16 v{T+2*i}, v{XR+i}, v12, v{T+2*i}")
        A(f"v_dot2_f32_bf16 v{T+2*i+1}, v{XR+i}, v13, v{T+2*i+1}")
    for i in range(N):
        A(f"v_cvt_pk_bf16_f32 v{H+i}, v{T+2*i}, v{T+2*i+1}")
    for i in range(0, N, 2):
        A(f"v_dot2c_f32_bf16 v10, v{H+i}, v14")
        A(f"v_dot2c_f32_bf16 v11, v{H+i}, v{H+i}")
        A(f"v_dot2c_f32_bf16 v16, v{H+i+1}, v14")
        A(f"v_dot2c_f32_bf16 v17, v{H+i+1}, v{H+i+1}")
    A("s_nop 2")
    A("v_add_f32 v10, v10, v16")
    A("v_add_f32 v11, v11, v17")

    def red(regs, tmps):
        for sh in (8, 4, 2, 1):
            for r in regs:
                A(f"v_add_f32_dpp v{r}, v{r}, v{r} row_ror:{sh} row_mask:0xf bank_mask:0xf")
        for r, t in zip(regs, tmps):
            A(f"v_mov_b32 v{t}, v{r}")
        for r, t in zip(regs, tmps):
            A(f"v_permlane16_swap_b32 v{r}, v{t}")
        for r, t in zip(regs, tmps):
            A(f"v_add_f32 v{r}, v{r}, v{t}")
    red([10, 11], [16, 17])
    ln_finish(A, 10, 11, 15)
    A("v_sub_f32 v10, 0, v10")
    L, O = AR, XR
    for i in range(N):
        A(f"v_dot2_f32_bf16 v{T+2*i}, v{H+i}, v12, v10")
        A(f"v_dot2_f32_bf16 v{T+2*i+1}, v{H+i}, v13, v10")
    for i in range(N):
        A(f"v_cvt_pk_bf16_f32 v{L+i}, v{T+2*i}, v{T+2*i+1}")
    for i in range(N):
        A(f"v_lshlrev_b32 v{T+2*i}, 16, v{L+i}")
        A(f"v_and_b32 v{T+2*i+1}, 0xffff0000, v{L+i}")
    A("v_mov_b32 v16, v11")
    A("v_mov_b32 v17, v11")
    for i in range(N):
        A(f"v_pk_mul_f32 {vr(T+2*i,2)}, {vr(T+2*i,2)}, v[16:17]")
    for i in range(N):
        A(f"v_cvt_pk_bf16_f32 v{L+i}, v{T+2*i}, v{T+2*i+1}")
    for i in range(5):
        A(f"global_store_dwordx2 v9, {vr(L+2*i,2)}, s[32:33] offset:{256*i} {SC}")
    A("v_mov_b32 v14, 0")
    A("v_mov_b32 v15, 0")
    for i in range(N):
        A(f"v_lshlrev_b32 v{T+2*i}, 16, v{L+i}")
        A(f"v_and_b32 v{T+2*i+1}, 0xffff0000, v{L+i}")
    for i in range(N):
        A(f"v_dot2_f32_bf16 v{T+2*i}, v{H+i}, v12, v{T+2*i}")
        A(f"v_dot2_f32_bf16 v{T+2*i+1}, v{H+i}, v13, v{T+2*i+1}")
    for i in range(N):
        A(f"v_cvt_pk_bf16_f32 v{O+i}, v{T+2*i}, v{T+2*i+1}")
    for i in range(5):
        A(f"global_store_dwordx2 v8, {vr(O+2*i,2)}, s[30:31] offset:{256*i} {SC}")
    stamp(A, 3)
    A("s_waitcnt vmcnt(10)")
    for i in range(0, N, 2):
        A(f"v_dot2c_f32_bf16 v14, v{L+i}, v{WR+i}")
        A(f"v_dot2c_f32_bf16 v15, v{L+i+1}, v{WR+i+1}")
    A("s_nop 2")
    A("v_add_f32 v14, v14, v15")
    red([14], [15])
    A("v_cvt_pk_bf16_f32 v40, v14, v14")
    A("v_and_b32 v40, 0xffff0000, v40")
    A("v_ashrrev_i32 v41, 31, v40")
    A("v_or_b32 v41, 0x80000000, v41")
    A("v_xor_b32 v40, v40, v41")
    A("v_and_b32 v40, 0xffff0000, v40")
    A("s_lshl_b32 s6, s2, 3")
    A("v_add_u32 v42, s6, v7")
    A("v_sub_u32 v43, 2047, v42")
    A("v_or_b32 v40, v40, v43")
    A("v_lshlrev_b32 v42, 2, v7")
    A("v_cmp_eq_u32 vcc, 0, v4")
    A("s_mov_b64 exec, vcc")
    A("ds_write_b32 v42, v40 offset:896")
    A("s_mov_b64 exec, -1")
    A("s_waitcnt vmcnt(0) lgkmcnt(0)")
    A("s_barrier")
    A("s_cmp_lg_u32 s3, 0")
    A("s_cbranch_scc1 KD_KPUB")
    A("v_lshlrev_b32 v42, 2, v2")
    A("ds_read_b32 v40, v42 offset:896")
    A(f"s_lshl_b32 s6, s2, {KEY_STRIDE.bit_length() - 1}")
    A(f"s_add_u32 s6, s6, {WS_RK}")
    A("v_add_u32 v42, s6, v42")
    A("s_waitcnt lgkmcnt(0)")
    A("s_mov_b64 exec, 0xff")
    A(f"global_store_dword v42, v40, s[32:33] {SC}")
    A("s_mov_b64 exec, -1")
    A.label("KD_KPUB")
    stamp(A, 4)
    sel_part1(A, "KD_KP", KD_F1_FIRST)
    A.label("KD_SEL2")
    sel_part2(A)
    A("s_cmp_eq_u32 s36, 1")
    A("s_cbranch_scc1 KD_F2")
    AFR = 60
    A("v_and_b32 v17, 7, v2")
    A("v_lshlrev_b32 v17, 2, v17")
    A("v_add_u32 v17, s6, v17")
    A("ds_read_b32 v16, v17")
    A("v_lshrrev_b32 v21, 4, v2")
    A("v_lshlrev_b32 v21, 4, v21")
    A("s_mul_i32 s6, s35, 320")
    A(f"s_add_u32 s6, s6, {WS_L2}")
    A("v_add_u32 v21, s6, v21")
    A("s_waitcnt lgkmcnt(0)")
    A("v_and_b32 v18, 0x7ff, v16")
    A("v_sub_u32 v18, 2047, v18")
    A("v_mul_u32_u24 v20, 1280, v18")
    A("v_add_u32 v20, v20, v21")
    for i in range(5):
        A(f"global_load_dwordx4 {vr(AFR+4*i,4)}, v20, s[32:33] offset:{64*i} {SC}")
    stamp(A, 6)
    for i in range(4):
        A(f"v_mov_b32 v{24+i}, 0")
    A("v_lshlrev_b32 v28, 4, v2")
    A("s_lshl_b32 s6, s3, 10")
    A("v_add_u32 v29, s6, v28")
    for i in range(5):
        A(f"s_waitcnt vmcnt({4-i})")
        A(f"v_mfma_f32_16x16x32_bf16 v[24:27], {vr(AFR+4*i,4)}, {vr(FR+4*i,4)}, v[24:27]")
    stamp(A, 7)
    A("ds_write_b128 v29, v[24:27] offset:1024")
    A("s_waitcnt lgkmcnt(0)")
    A("s_barrier")
    A("s_cmp_lg_u32 s35, 0")
    A("s_cbranch_scc1 KD_DONE")
    A("v_lshrrev_b32 v56, 3, v2")
    A("v_and_b32 v57, 7, v2")
    A("v_lshrrev_b32 v58, 2, v56")
    A("v_lshlrev_b32 v58, 8, v58")
    A("v_lshl_add_u32 v58, v57, 4, v58")
    A("v_and_b32 v59, 3, v56")
    A("v_lshl_add_u32 v58, v59, 2, v58")
    A("s_lshl_b32 s6, s3, 10")
    A("v_add_u32 v58, s6, v58")
    for w in range(4):
        A(f"ds_read_b32 v{40+w}, v58 offset:{1024 + 1024*w}")
        A(f"ds_read_b32 v{44+w}, v58 offset:{1024 + 1024*w + 128}")
    A("v_lshlrev_b32 v59, 1, v2")
    A("s_lshl_b32 s6, s37, 7")
    A(f"s_add_u32 s6, s6, {WS_ACT}")
    A("v_add_u32 v59, s6, v59")
    A("s_waitcnt lgkmcnt(0)")
    A("v_add_f32 v40, v40, v41")
    A("v_add_f32 v42, v42, v43")
    A("v_add_f32 v44, v44, v45")
    A("v_add_f32 v46, v46, v47")
    A("v_add_f32 v40, v40, v42")
    A("v_add_f32 v44, v44, v46")
    A("v_cvt_pk_bf16_f32 v41, v40, v44")
    A("v_lshlrev_b32 v40, 16, v41")
    A("v_and_b32 v44, 0xffff0000, v41")
    A(f"v_mul_f32 v42, {hex(fbits(-LOG2E))}, v40")
    A("v_exp_f32 v42, v42")
    A("v_add_f32 v42, 1.0, v42")
    A("v_rcp_f32 v42, v42")
    A("v_mul_f32 v40, v40, v42")
    A("v_cvt_pk_bf16_f32 v40, v40, v40")
    A("v_and_b32 v40, 0xffff0000, v40")
    A("v_mul_f32 v40, v40, v44")
    A("v_cvt_pk_bf16_f32 v40, v40, v40")
    A(f"global_store_short v59, v40, s[32:33] {SC}")
    A.label("KD_DONE")
    k_end(A, 2)

    A.label("KD_F2")
    for i in range(4):
        A(f"v_mov_b32 v{36+i}, 0")
        A(f"v_mov_b32 v{32+i}, 0")
        A(f"v_mov_b32 v{52+i}, 0")
    A("s_add_u32 s39, s34, 64")
    A("s_cmp_eq_u32 s3, 0")
    A("s_cselect_b32 s39, s34, s39")
    A("s_cselect_b32 s9, 1, 0")
    A("s_cmp_eq_u32 s3, 1")
    A("s_cselect_b32 s10, s38, 0")
    A("s_or_b32 s9, s9, s10")
    A("s_cmp_eq_u32 s9, 0")
    A("s_cbranch_scc1 KD_F2SL")
    A("v_lshrrev_b32 v17, 3, v2")
    A("v_lshlrev_b32 v17, 2, v17")
    A("v_add_u32 v17, s6, v17")
    A("ds_read_b32 v8, v17")
    A("v_and_b32 v16, 7, v2")
    A("s_lshl_b32 s6, s39, 3")
    A("v_add_u32 v16, s6, v16")
    A("v_lshrrev_b32 v17, 2, v16")
    A("v_lshlrev_b32 v17, 6, v17")
    A("v_and_b32 v18, 3, v16")
    A("v_lshl_add_u32 v17, v18, 1, v17")
    A(f"v_add_u32 v17, {WS_AT}, v17")
    A("s_waitcnt lgkmcnt(0)")
    A("v_and_b32 v40, 0x7ff, v8")
    A("v_sub_u32 v40, 2047, v40")
    A("v_mul_u32_u24 v36, 1280, v40")
    A("v_lshl_add_u32 v36, v16, 1, v36")
    A(f"v_add_u32 v18, {WS_L2}, v36")
    A(f"global_load_ushort v20, v18, s[32:33] {SC}")
    A("global_load_ushort v24, v36, s[26:27]")
    A("v_lshrrev_b32 v18, 3, v40")
    A("v_mul_u32_u24 v18, 10240, v18")
    A("v_and_b32 v19, 7, v40")
    A("v_lshl_add_u32 v18, v19, 3, v18")
    A("v_add_u32 v18, v18, v17")
    A("global_load_ushort v44, v18, s[32:33]")
    A("v_and_b32 v12, 0xffff0000, v8")
    A("v_ashrrev_i32 v48, 31, v12")
    A("v_not_b32 v48, v48")
    A("v_or_b32 v48, 0x80000000, v48")
    A("v_xor_b32 v12, v12, v48")
    A("v_and_b32 v12, 0xffff0000, v12")
    A(f"v_mul_f32 v12, {hex(fbits(-LOG2E))}, v12")
    A("v_exp_f32 v12, v12")
    A("v_add_f32 v12, 1.0, v12")
    A("v_rcp_f32 v12, v12")
    bf16_round(A, 12)
    A("s_waitcnt vmcnt(0)")
    A("v_lshlrev_b32 v24, 16, v24")
    A("v_lshlrev_b32 v44, 16, v44")
    A("v_lshlrev_b32 v20, 16, v20")
    A("v_add_f32 v24, v24, v44")
    bf16_round(A, 24)
    A(f"s_sleep {KD_A0}")
    A("s_branch KD_F2B2")
    A.label("KD_F2SL")
    A(f"s_sleep {KD_A1}")
    A.label("KD_F2B2")
    stamp(A, 6)
    A("s_mov_b32 s12, 0")
    A("v_mov_b32 v61, 0xffff")
    A.label("KD_POLL")
    for i in range(3):
        A(f"global_load_dwordx4 {vr(A2+4*i,4)}, v99, s[32:33] offset:{1024*i} {SC}")
    A("s_waitcnt vmcnt(0)")
    A(f"v_pk_max_u16 v62, v{A2}, v{A2+1}")
    A(f"v_pk_max_u16 v63, v{A2+2}, v{A2+3}")
    for i in range(4, 12, 2):
        A(f"v_pk_max_u16 v62, v62, v{A2+i}")
        A(f"v_pk_max_u16 v63, v63, v{A2+i+1}")
    A("v_pk_max_u16 v62, v62, v63")
    A("v_lshrrev_b32 v63, 16, v62")
    A("v_and_b32 v62, 0xffff, v62")
    A("v_max_u32 v62, v62, v63")
    A("v_cmp_eq_u32 vcc, v61, v62")
    A("s_cmp_eq_u64 vcc, 0")
    A("s_cbranch_scc1 KD_ACT")
    A("s_add_u32 s12, s12, 1")
    A(f"s_cmp_ge_u32 s12, {SPIN_MAX}")
    A("s_cbranch_scc1 KD_ACT")
    A(f"s_sleep {KC_SLEEP}")
    A("s_branch KD_POLL")
    A.label("KD_ACT")
    A("v_lshlrev_b32 v28, 4, v2")
    A("s_lshl_b32 s6, s3, 10")
    A("v_add_u32 v29, s6, v28")
    for i in range(3):
        A(f"v_mfma_f32_16x16x32_bf16 v[32:35], {vr(A2+4*i,4)}, {vr(FR+4*i,4)}, v[32:35]")
    A("s_cmp_eq_u32 s38, 0")
    A("s_cbranch_scc1 KD_NOB")
    for i in range(3):
        A(f"v_mfma_f32_16x16x32_bf16 v[52:55], {vr(A2+4*i,4)}, {vr(FRB+4*i,4)}, v[52:55]")
    for i in range(4):
        A(f"v_mov_b32 v{64+i}, v{52+i}")
    for i in range(4):
        A(f"v_permlane32_swap_b32 v{52+i}, v{64+i}")
    for i in range(4):
        A(f"v_add_f32_dpp v{52+i}, v{64+i}, v{52+i} row_shl:8 row_mask:0xf bank_mask:0xf")
    A("ds_write_b128 v29, v[52:55] offset:9216")
    A.label("KD_NOB")
    stamp(A, 7)
    for i in range(4):
        A(f"v_mov_b32 v{60+i}, v{32+i}")
    for i in range(4):
        A(f"v_permlane32_swap_b32 v{32+i}, v{60+i}")
    for i in range(4):
        A(f"v_add_f32_dpp v{32+i}, v{60+i}, v{32+i} row_shl:8 row_mask:0xf bank_mask:0xf")
    A("ds_write_b128 v29, v[32:35] offset:1024")
    A("s_waitcnt lgkmcnt(0)")
    A("s_barrier")
    A("s_cmp_eq_u32 s9, 0")
    A("s_cbranch_scc1 KD_DONE2")
    A("v_lshrrev_b32 v56, 3, v2")
    A("v_and_b32 v57, 7, v2")
    A("v_lshrrev_b32 v58, 2, v56")
    A("v_lshlrev_b32 v58, 8, v58")
    A("v_lshl_add_u32 v58, v57, 4, v58")
    A("v_and_b32 v59, 3, v56")
    A("v_lshl_add_u32 v58, v59, 2, v58")
    A("s_lshl_b32 s6, s3, 13")
    A("v_add_u32 v58, s6, v58")
    for w in range(8):
        A(f"ds_read_b32 v{40+w}, v58 offset:{1024 + 1024*w}")
    A("s_waitcnt lgkmcnt(0)")
    for st in (4, 2, 1):
        for j in range(st):
            A(f"v_add_f32 v{40+j}, v{40+j}, v{40+st+j}")
    bf16_round(A, 40)
    A("v_mul_f32 v40, v40, v12")
    bf16_round(A, 40)
    A("v_add_f32 v40, v40, v20")
    bf16_round(A, 40)
    A("v_add_f32 v40, v40, v24")
    A("v_cvt_pk_bf16_f32 v40, v40, v40")
    A(f"global_store_short v36, v40, s[30:31] {SC}")
    A.label("KD_DONE2")
    k_end(A, 2)
    A.label("KD_END")
    A("s_endpgm")


KD_A0 = int(os.environ.get("KD_A0", "16"))
KD_A1 = int(os.environ.get("KD_A1", "36"))

KD_TMPL = """.amdhsa_kernel {name}
  .amdhsa_next_free_vgpr {vgpr}
  .amdhsa_next_free_sgpr 102
  .amdhsa_accum_offset {acc}
  .amdhsa_group_segment_fixed_size 0
  .amdhsa_kernarg_size 120
  .amdhsa_user_sgpr_count 2
  .amdhsa_user_sgpr_kernarg_segment_ptr 1
  .amdhsa_system_sgpr_workgroup_id_x 1
.end_amdhsa_kernel
"""

HEADER = """; Kernarg layout (120 bytes, ptrs only): d_in[0..11] at 0..88, d_out 96, d_debug 104, d_ws 112
"""


def build(kernels):
    s = HEADER
    for label, fn, grid, block, lds, vgpr in kernels:
        s += f"; @launch kernel={label} grid=({grid},1,1) block=({block},1,1) lds={lds}\n"
    s += '.amdgcn_target "amdgcn-amd-amdhsa--gfx950"\n.text\n'
    done = set()
    for label, fn, grid, block, lds, vgpr in kernels:
        if label in done:
            continue
        done.add(label)
        A = Asm()
        fn(A)
        s += f".globl {label}\n.p2align 8\n.type {label},@function\n{label}:\n" + A.finish() + "\n"
    s += '.section .rodata,"a"\n'
    done = set()
    for label, fn, grid, block, lds, vgpr in kernels:
        if label in done:
            continue
        done.add(label)
        s += ".p2align 6\n" + KD_TMPL.format(name=label, vgpr=vgpr, acc=min(256, (vgpr + 3) // 4 * 4))
    return s


PREFILL[0] = True
KERNELS = [
    ("ka_kernel", ka, 256, 1024, KA_LDS, 128),
    ("kd_kernel", kd, 256, 512, KD_LDS, 136),
]

if __name__ == "__main__":
    if len(sys.argv) > 2 and sys.argv[2] == "stamp":
        STAMP[0] = True
    text = build(KERNELS)
    open(sys.argv[1], "w").write(text)
    print("wrote", sys.argv[1], len(text), "bytes")
```

```python
import sys, os, struct
sys.path.insert(0, os.path.dirname(os.path.abspath(__file__)))
from asmlib import Asm

NAME = "sequential_preLN__ssm_conv_s4d__moe_arch_mod__prompt"

WS_UT = 0x0000000
WS_KD = 0x0280000
WS_SC = 0x03C0000
WS_AT = 0x0400000
WS_L2 = 0x0680000
WS_RK = 0x0900000
WS_ACT = 0x0910000
WS_SEL = 0x0918000
WS_WGU = 0x0A00000
WS_WD = 0x0E00000
WS_STAMP = 0x1800000
STAMP = [False]
NSTAMP = 12
ST_OPT = [""]


def k_begin(A):
    if STAMP[0]:
        A("s_memrealtime s[94:95]")
        for i in range(NSTAMP):
            A(f"s_mov_b64 s[{60+2*i}:{61+2*i}], 0")
        A("s_memtime s[60:61]")


def stamp(A, i):
    if STAMP[0]:
        A(f"s_memtime s[{60+2*i}:{61+2*i}]")


def k_end(A, kidx):
    if STAMP[0]:
        A(f"s_memtime s[{60+2*(NSTAMP-2)}:{61+2*(NSTAMP-2)}]")
        A("s_waitcnt vmcnt(0) lgkmcnt(0)")
        A("s_memrealtime s[96:97]")
        A(f"s_memtime s[{60+2*(NSTAMP-1)}:{61+2*(NSTAMP-1)}]")
        A("s_mov_b64 exec, -1")
        A("v_lshrrev_b32 v1, 6, v0")
        A("s_lshl_b32 s98, s2, 3")
        A("v_add_u32 v1, s98, v1")
        A("v_lshlrev_b32 v1, 7, v1")
        A(f"v_add_u32 v1, {WS_STAMP + kidx * 0x200000}, v1")
        A("s_waitcnt lgkmcnt(0)")
        A("v_mov_b32 v2, s94")
        A("v_mov_b32 v3, s95")
        A("v_mov_b32 v4, s96")
        A("v_mov_b32 v5, s97")
        A("global_store_dwordx4 v1, v[2:5], s[32:33]")
        for i in range(0, NSTAMP, 2):
            for j in range(4):
                A(f"v_mov_b32 v{2+j}, s{60+2*i+j}")
            A(f"global_store_dwordx4 v1, v[2:5], s[32:33] offset:{16+8*i}")
    A("s_endpgm")


def fbits(x):
    return struct.unpack("<I", struct.pack("<f", x))[0]


LOG2E = 1.4426950408889634
L2E_HI = fbits(LOG2E)
L2E_HI_F = struct.unpack("<f", struct.pack("<I", L2E_HI))[0]
L2E_LO = fbits(LOG2E - L2E_HI_F)
LN2 = fbits(0.6931471805599453)
INV2PI = fbits(0.15915494309189535)
INV640 = fbits(1.0 / 640.0)
EPS = fbits(1e-5)
ONE_LO = 0x00003f80
ONE_HI = 0x3f800000


def vr(a, n):
    return f"v[{a}:{a+n-1}]"


def bf16_round(A, reg):
    A(f"v_cvt_pk_bf16_f32 v{reg}, v{reg}, v{reg}")
    A(f"v_and_b32 v{reg}, 0xffff0000, v{reg}")


def exp_bf16(A, dst, src, t0, t1):
    A(f"v_mul_f32 v{t0}, s90, v{src}")
    A(f"v_fma_f32 v{t1}, v{src}, s90, -v{t0}")
    A(f"v_fma_f32 v{t1}, v{src}, s91, v{t1}")
    A(f"v_exp_f32 v{dst}, v{t0}")
    A(f"v_mul_f32 v{t1}, s92, v{t1}")
    A(f"v_fma_f32 v{dst}, v{dst}, v{t1}, v{dst}")
    bf16_round(A, dst)


def cmul(A, d, a, b):
    A(f"v_pk_mul_f32 {vr(d,2)}, {vr(a,2)}, {vr(b,2)} op_sel:[0,0] op_sel_hi:[0,1]")
    A(f"v_pk_fma_f32 {vr(d,2)}, {vr(a,2)}, {vr(b,2)}, {vr(d,2)} op_sel:[1,1,0] op_sel_hi:[1,0,1] neg_lo:[0,1,0]")


def ln_finish(A, s1, s2, t):
    A(f"v_mul_f32 v{s1}, {INV640}, v{s1}")
    A(f"v_mul_f32 v{s2}, {INV640}, v{s2}")
    A(f"v_fma_f32 v{s2}, -v{s1}, v{s1}, v{s2}")
    A(f"v_max_f32 v{s2}, 0, v{s2}")
    A(f"v_cvt_pk_bf16_f32 v{t}, v{s1}, v{s2}")
    A(f"v_lshlrev_b32 v{s1}, 16, v{t}")
    A(f"v_and_b32 v{s2}, 0xffff0000, v{t}")
    A(f"v_add_f32 v{s2}, {EPS}, v{s2}")
    bf16_round(A, s2)
    A(f"v_sqrt_f32 v{s2}, v{s2}")
    bf16_round(A, s2)
    A(f"v_rcp_f32 v{s2}, v{s2}")


def pair_swizzle(A, dst, src, tmp):
    A(f"s_and_b32 s{dst}, s{src}, 7")
    A(f"s_lshl_b32 s{dst}, s{dst}, 1")
    A(f"s_bfe_u32 s{tmp}, s{src}, 0x10003")
    A(f"s_or_b32 s{dst}, s{dst}, s{tmp}")
    A(f"s_andn2_b32 s{tmp}, s{src}, 15")
    A(f"s_or_b32 s{dst}, s{dst}, s{tmp}")


def wt_role(A, pfx, first_wg, nwaves_per_wg, lds_per_wave, it_lo, it_hi, kidx, opt, stride):
    A.label(f"{pfx}_WTR")
    A("s_load_dwordx4 s[16:19], s[0:1], 72")
    A("s_load_dwordx2 s[20:21], s[0:1], 88")
    A("v_lshrrev_b32 v1, 6, v0")
    A("v_readfirstlane_b32 s3, v1")
    A("v_and_b32 v2, 63, v0")
    if nwaves_per_wg > 0:
        A(f"s_sub_u32 s4, s2, {first_wg}")
        A(f"s_mul_i32 s4, s4, {nwaves_per_wg}")
        A("s_add_u32 s4, s4, s3")
        A(f"s_add_u32 s4, s4, {it_lo}")
    elif nwaves_per_wg == -2:
        A("s_sub_u32 s4, s3, 4")
        A("s_mul_i32 s4, s4, 96")
        A("s_add_u32 s4, s4, s2")
    else:
        A("s_sub_u32 s4, s3, 3")
        A("s_mul_i32 s4, s4, 96")
        A("s_add_u32 s4, s4, s2")
    A(f"s_mul_i32 s5, s3, {lds_per_wave}")
    A("v_lshrrev_b32 v3, 3, v2")
    A("v_and_b32 v4, 7, v2")
    A("v_lshlrev_b32 v4, 4, v4")
    A("v_lshrrev_b32 v5, 4, v2")
    A("v_lshlrev_b32 v5, 3, v5")
    A("v_and_b32 v6, 15, v2")
    A("v_lshrrev_b32 v6, 2, v6")
    A("v_add_u32 v5, v5, v6")
    A("v_lshlrev_b32 v5, 7, v5")
    A("v_and_b32 v6, 3, v2")
    A("v_lshlrev_b32 v7, 3, v6")
    A("v_add_u32 v8, v5, v7")
    A("v_add_u32 v8, s5, v8")
    A("v_add_u32 v9, 4080, v8")
    A("v_cmp_gt_u32 vcc, 2, v6")
    A("v_cndmask_b32 v9, v9, v8, vcc")
    A("v_lshlrev_b32 v10, 4, v2")
    A("v_and_b32 v13, 15, v2")
    A("v_lshrrev_b32 v14, 3, v13")
    A("v_mul_u32_u24 v14, 24576, v14")
    A("v_and_b32 v13, 7, v13")
    A("v_lshlrev_b32 v13, 4, v13")
    A("v_add_u32 v14, v14, v13")
    A("v_lshrrev_b32 v13, 4, v2")
    A("v_lshlrev_b32 v13, 7, v13")
    A("v_add_u32 v14, v14, v13")
    A("v_mul_u32_u24 v50, 3072, v3")
    A("v_add_u32 v50, v50, v4")
    A("v_mul_u32_u24 v51, 1280, v3")
    A("v_add_u32 v51, v51, v4")
    A("s_waitcnt lgkmcnt(0)")
    A("s_mov_b32 s6, s4")
    A(f"s_cmp_ge_u32 s6, {it_hi}")
    A(f"s_cbranch_scc1 {pfx}_WT_FIN")
    A.label(f"{pfx}_WT_LOOP")
    A("s_cmp_ge_u32 s6, 480")
    A(f"s_cbranch_scc1 {pfx}_WT_DOWN")
    A("s_mul_hi_u32 s7, s6, 0xccccccd")
    A("s_mul_i32 s8, s7, 20")
    A("s_sub_u32 s8, s6, s8")
    A("s_mul_i32 s9, s8, 98304")
    A("s_lshl_b32 s10, s7, 7")
    A("s_add_u32 s9, s9, s10")
    A("v_add_u32 v11, s9, v50")
    for j in range(4):
        A(f"s_add_u32 s10, s5, {1024*j}")
        A("s_mov_b32 m0, s10")
        A("global_load_lds_dwordx4 v11, s[16:17]")
        A(f"s_add_u32 s10, s5, {4096 + 1024*j}")
        A("s_mov_b32 m0, s10")
        A("global_load_lds_dwordx4 v11, s[18:19]")
        if j < 3:
            A("v_add_u32 v11, 24576, v11")
    A("s_mul_i32 s9, s7, 163840")
    A("s_lshl_b32 s10, s8, 10")
    A("s_add_u32 s9, s9, s10")
    A(f"s_add_u32 s9, s9, {WS_WGU}")
    A("v_add_u32 v12, s9, v10")
    A("s_waitcnt vmcnt(0)")
    for jj in range(8):
        A(f"ds_read_b64_tr_b16 {vr(16+4*jj,2)}, v9 offset:{16*jj}")
        A(f"ds_read_b64_tr_b16 {vr(18+4*jj,2)}, v9 offset:{16*jj + 512}")
    A("s_waitcnt lgkmcnt(0)")
    for jj in range(8):
        A(f"global_store_dwordx4 v12, {vr(16+4*jj,4)}, s[32:33] {opt}")
        if jj < 7:
            A("v_add_u32 v12, 20480, v12")
    A(f"s_branch {pfx}_WT_NEXT")
    A.label(f"{pfx}_WT_DOWN")
    A("s_sub_u32 s11, s6, 480")
    A("s_mul_hi_u32 s7, s11, 0x5555556")
    A("s_mul_i32 s8, s7, 48")
    A("s_sub_u32 s8, s11, s8")
    A("s_mul_i32 s9, s8, 40960")
    A("s_lshl_b32 s10, s7, 7")
    A("s_add_u32 s9, s9, s10")
    A("v_add_u32 v11, s9, v51")
    for j in range(4):
        A(f"s_add_u32 s10, s5, {1024*j}")
        A("s_mov_b32 m0, s10")
        A("global_load_lds_dwordx4 v11, s[20:21]")
        if j < 3:
            A("v_add_u32 v11, 10240, v11")
    A("s_mul_i32 s9, s7, 196608")
    A("s_lshl_b32 s10, s8, 9")
    A("s_add_u32 s9, s9, s10")
    A(f"s_add_u32 s9, s9, {WS_WD}")
    A("v_add_u32 v12, s9, v14")
    A("s_waitcnt vmcnt(0)")
    for jj in range(4):
        A(f"ds_read_b64_tr_b16 {vr(16+4*jj,2)}, v8 offset:{32*jj}")
        A(f"ds_read_b64_tr_b16 {vr(18+4*jj,2)}, v8 offset:{32*jj + 512}")
    A("s_waitcnt lgkmcnt(0)")
    for jj in range(4):
        A(f"global_store_dwordx4 v12, {vr(16+4*jj,4)}, s[32:33] {opt}")
        if jj < 3:
            A("v_add_u32 v12, 49152, v12")
    A.label(f"{pfx}_WT_NEXT")
    A(f"s_add_u32 s6, s6, {stride}")
    A(f"s_cmp_lt_u32 s6, {it_hi}")
    A(f"s_cbranch_scc1 {pfx}_WT_LOOP")
    A.label(f"{pfx}_WT_FIN")
    k_end(A, kidx)


K1_ROWB = 288
K1_BUF = 16 * K1_ROWB


def cmul_batch(A, items):
    for d, a, b in items:
        A(f"v_pk_mul_f32 {vr(d,2)}, {vr(a,2)}, {vr(b,2)} op_sel:[0,0] op_sel_hi:[0,1]")
    for d, a, b in items:
        A(f"v_pk_fma_f32 {vr(d,2)}, {vr(a,2)}, {vr(b,2)}, {vr(d,2)} op_sel:[1,1,0] op_sel_hi:[1,0,1] neg_lo:[0,1,0]")


KG_SZ = 2 * K1_BUF
KEO_ST = 27712
KEO_BASE = 0
KA_KE, KA_KO = 0, 4160
KA_U = 12 * KG_SZ
U_ST = 4608
KA_T = KA_U + 4 * U_ST
T_ST = 1600
KA_SC = KA_T + 4 * T_ST
KA_LN = KA_SC + 64
KA_CNT = KA_LN
KA_STATS = KA_LN + 128
KA_STAGE = KA_LN + 192
KA_LDS = KA_STAGE + 10240 + 2560


def group_sync(A, idx, n, lbl):
    A("s_waitcnt lgkmcnt(0)")
    A(f"v_mov_b32 v18, {KA_CNT + 4*idx}")
    A("v_mov_b32 v19, 1")
    A("s_mov_b64 exec, 1")
    A("ds_add_u32 v18, v19")
    A("s_mov_b64 exec, -1")
    A("s_mov_b32 s12, 0")
    A.label(lbl)
    A("ds_read_b32 v19, v18")
    A("s_waitcnt lgkmcnt(0)")
    A("v_readfirstlane_b32 s13, v19")
    A(f"s_cmp_ge_u32 s13, {n}")
    A(f"s_cbranch_scc1 {lbl}_OK")
    A("s_add_u32 s12, s12, 1")
    A(f"s_cmp_lt_u32 s12, {1 << 22}")
    A(f"s_cbranch_scc1 {lbl}")
    A.label(lbl + "_OK")
NPROD = 96
PREFILL = [False]
TLBW = int(os.environ.get('TLBW', '0'))
KEY_STRIDE = int(os.environ.get('KEY_STRIDE', '32'))
WS_FLAG = 0x0930000
WS_EPOCH = 0x0928000
SC = os.environ.get('SCMOD', 'sc1')
PMOD = os.environ.get('PMOD', SC)
FMOD = os.environ.get('FMOD', SC)
SPIN_MAX = 1 << 16
POLL_SLEEP = int(os.environ.get('POLL_SLEEP', '6'))
POLL_FIRST = int(os.environ.get('POLL_FIRST', '24'))
FLAG64 = int(os.environ.get('FLAG64', '1'))


DBGSEL = {0: [(100, 0, 0), (100, 13, 8)], 2: [(20, 0, 0)]}


def k_end16(A, kidx):
    if STAMP[0]:
        uid = len(A.lines)
        for (wg, wave, slot) in DBGSEL[kidx]:
            lbl = f"DBG_{kidx}_{uid}_{wg}_{wave}"
            A(f"s_cmp_lg_u32 s2, {wg}")
            A(f"s_cbranch_scc1 {lbl}")
            A(f"s_cmp_lg_u32 s3, {wave}")
            A(f"s_cbranch_scc1 {lbl}")
            A(f"s_memtime s[{60+2*(NSTAMP-1)}:{61+2*(NSTAMP-1)}]")
            A("s_load_dwordx2 s[96:97], s[0:1], 104")
            A("s_waitcnt vmcnt(0) lgkmcnt(0)")
            if kidx == 0:
                A("s_add_u32 s96, s96, 512")
                A("s_addc_u32 s97, s97, 0")
            A("s_mov_b64 exec, 1")
            idxs = DBGIDX[(kidx, wave)]
            for k, i in enumerate(idxs):
                A(f"s_sub_u32 s98, s{60+2*i}, s60")
                A("v_mov_b32 v2, s98")
                off = 4 * (slot + k) if kidx == 0 else 4 * (12 + k) if False else 4 * (slot + k)
                A(f"v_mov_b32 v1, {4 * (DBGBASE[(kidx, wave)] + k)}")
                A("global_store_dword v1, v2, s[96:97]")
            A.label(lbl)
    A("s_endpgm")


DBGIDX = {(0, 0): [9, 2, 3, 5, 6, 11], (0, 13): [2, 6, 11], (2, 0): [2, 4, 5, 6, 7, 11, 1]}
DBGBASE = {(0, 0): 0, (0, 13): 6, (2, 0): 9}


k_end = k_end16


def arrive(A, idx):
    A("s_waitcnt lgkmcnt(0)")
    A(f"v_mov_b32 v18, {KA_CNT + 4*idx}")
    A("v_mov_b32 v19, 1")
    A("s_mov_b64 exec, 1")
    A("ds_add_u32 v18, v19")
    A("s_mov_b64 exec, -1")


def wait_count(A, idx, n, lbl, sleep=1):
    A(f"v_mov_b32 v18, {KA_CNT + 4*idx}")
    A("s_mov_b32 s12, 0")
    A.label(lbl)
    A("ds_read_b32 v19, v18")
    A("s_waitcnt lgkmcnt(0)")
    A("v_readfirstlane_b32 s13, v19")
    A(f"s_cmp_ge_u32 s13, {n}")
    A(f"s_cbranch_scc1 {lbl}_OK")
    A("s_add_u32 s12, s12, 1")
    if sleep:
        A(f"s_sleep {sleep}")
    A(f"s_cmp_lt_u32 s12, {1 << 22}")
    A(f"s_cbranch_scc1 {lbl}")
    A.label(lbl + "_OK")


def arrive_s(A, base_idx, sreg):
    A("s_waitcnt lgkmcnt(0)")
    A(f"s_lshl_b32 s12, s{sreg}, 2")
    A(f"s_add_u32 s12, s12, {KA_CNT + 4*base_idx}")
    A("v_mov_b32 v18, s12")
    A("v_mov_b32 v19, 1")
    A("s_mov_b64 exec, 1")
    A("ds_add_u32 v18, v19")
    A("s_mov_b64 exec, -1")


def wait_s(A, base_idx, sreg, n, lbl):
    A(f"s_lshl_b32 s12, s{sreg}, 2")
    A(f"s_add_u32 s12, s12, {KA_CNT + 4*base_idx}")
    A("v_mov_b32 v18, s12")
    A("s_mov_b32 s12, 0")
    A.label(lbl)
    A("ds_read_b32 v19, v18")
    A("s_waitcnt lgkmcnt(0)")
    A("v_readfirstlane_b32 s13, v19")
    A(f"s_cmp_ge_u32 s13, {n}")
    A(f"s_cbranch_scc1 {lbl}_OK")
    A("s_add_u32 s12, s12, 1")
    A("s_sleep 1")
    A(f"s_cmp_lt_u32 s12, {1 << 22}")
    A(f"s_cbranch_scc1 {lbl}")
    A.label(lbl + "_OK")


def poll_flags(A, lbl):
    if FLAG64 == 2:
        A("v_lshlrev_b32 v3, 7, v2")
        A(f"v_add_u32 v3, {WS_FLAG}, v3")
        for j in range(1, 4):
            A(f"v_add_u32 v{44+j}, {8192*j}, v3")
    elif FLAG64:
        A("v_lshlrev_b32 v3, 7, v2")
        A(f"v_add_u32 v3, {WS_FLAG}, v3")
    else:
        A("v_lshrrev_b32 v3, 4, v2")
        A("v_lshlrev_b32 v3, 7, v3")
        A("v_and_b32 v10, 15, v2")
        A("v_lshl_add_u32 v3, v10, 2, v3")
        A(f"v_add_u32 v3, {WS_FLAG}, v3")
    A("s_mov_b32 s12, 0")
    if POLL_FIRST:
        A(f"s_sleep {POLL_FIRST}")
    A.label(lbl)
    if FLAG64 == 2:
        A(f"global_load_dword v40, v3, s[32:33] {PMOD}")
        for j in range(1, 4):
            A(f"global_load_dword v{40+j}, v{44+j}, s[32:33] {PMOD}")
    elif FLAG64:
        A(f"global_load_dwordx4 v[40:43], v3, s[32:33] {PMOD}")
    else:
        for j in range(4):
            A(f"global_load_dword v{40+j}, v3, s[32:33] offset:{512*j} {PMOD}")
    A("s_waitcnt vmcnt(0)")
    A("v_cmp_ne_u32 vcc, s15, v40")
    A("v_cmp_ne_u32 s[20:21], s15, v41")
    A("v_cmp_ne_u32 s[22:23], s15, v42")
    A("v_cmp_ne_u32 s[24:25], s15, v43")
    A("s_or_b64 vcc, vcc, s[20:21]")
    A("s_or_b64 s[22:23], s[22:23], s[24:25]")
    A("s_or_b64 vcc, vcc, s[22:23]")
    A("s_cmp_eq_u64 vcc, 0")
    A(f"s_cbranch_scc1 {lbl}_SEEN")
    A("s_add_u32 s12, s12, 1")
    A(f"s_cmp_ge_u32 s12, {SPIN_MAX}")
    A(f"s_cbranch_scc1 {lbl}_SEEN")
    A(f"s_sleep {POLL_SLEEP}")
    A(f"s_branch {lbl}")
    A.label(lbl + "_SEEN")


def poll_epoch(A, lbl):
    A(f"v_mov_b32 v3, {WS_EPOCH}")
    A("s_mov_b32 s12, 0")
    A("s_sleep 48")
    A.label(lbl)
    A(f"global_load_dword v40, v3, s[32:33] {SC}")
    A("s_waitcnt vmcnt(0)")
    A("v_readfirstlane_b32 s13, v40")
    A("s_cmp_eq_u32 s13, s15")
    A(f"s_cbranch_scc1 {lbl}_SEEN")
    A("s_add_u32 s12, s12, 1")
    A(f"s_cmp_ge_u32 s12, {SPIN_MAX}")
    A(f"s_cbranch_scc1 {lbl}_SEEN")
    A("s_sleep 16")
    A(f"s_branch {lbl}")
    A.label(lbl + "_SEEN")


def kgen_wave(A):
    A(f"s_mov_b32 s90, {L2E_HI}")
    A(f"s_mov_b32 s91, {L2E_LO}")
    A(f"s_mov_b32 s92, {LN2}")
    A("v_and_b32 v3, 15, v2")
    A("v_lshrrev_b32 v4, 4, v2")
    A("s_cmp_eq_u32 s36, 1")
    A("s_cbranch_scc1 KA_A1")
    A("s_cmp_eq_u32 s36, 2")
    A("s_cbranch_scc1 KA_A2")
    A("v_lshrrev_b32 v5, 1, v4")
    A("v_lshlrev_b32 v5, 7, v5")
    A("v_lshl_add_u32 v5, v3, 3, v5")
    A("v_and_b32 v6, 1, v4")
    A("v_lshl_add_u32 v5, v6, 2, v5")
    A("s_branch KA_A3")
    A.label("KA_A1")
    A("v_lshlrev_b32 v5, 1, v3")
    A("v_add_u32 v5, v5, v4")
    A("v_add_u32 v5, 384, v5")
    A("v_lshlrev_b32 v6, 4, v4")
    A("v_add_u32 v6, v6, v3")
    A("v_add_u32 v6, 480, v6")
    A("v_cmp_gt_u32 vcc, 2, v4")
    A("v_cndmask_b32 v5, v6, v5, vcc")
    A("s_branch KA_A3")
    A.label("KA_A2")
    A("v_lshlrev_b32 v5, 6, v4")
    A("v_lshlrev_b32 v6, 2, v3")
    A("v_add_u32 v5, v5, v6")
    A("v_add_u32 v5, 256, v5")
    A("v_lshlrev_b32 v6, 2, v2")
    A("v_add_u32 v6, 520, v6")
    A("v_cmp_gt_u32 vcc, 2, v4")
    A("v_cndmask_b32 v5, v6, v5, vcc")
    A("v_mov_b32 v6, 640")
    A("v_cmp_eq_u32 vcc, 32, v2")
    A("v_cndmask_b32 v5, v5, v6, vcc")
    A.label("KA_A3")
    A(f"s_mul_i32 s11, s37, {T_ST}")
    A(f"s_add_u32 s11, s11, {KA_T}")
    A("v_lshlrev_b32 v29, 1, v5")
    A("v_add_u32 v29, s11, v29")
    A(f"v_mul_u32_u24 v32, {K1_ROWB}, v3")
    A("v_lshlrev_b32 v5, 4, v4")
    A("v_add_u32 v32, v32, v5")
    A("v_add_u32 v32, s7, v32")
    AW = 120
    A("v_lshlrev_b32 v5, 2, v2")
    A(f"v_add_u32 v{AW}, s7, v5")
    for k in range(1, 8):
        A(f"v_add_u32 v{AW+k}, {(k//4)*K1_BUF + (k%4)*4*K1_ROWB}, v{AW}")
    stamp(A, 1)
    A("s_waitcnt lgkmcnt(0)")
    A("s_bitcmp1_b32 s34, 0")
    A("s_cbranch_scc1 KA_ODD")
    A("s_lshl_b32 s6, s6, 16")
    A.label("KA_ODD")
    A("s_and_b32 s6, s6, 0xffff0000")
    A("v_mov_b32 v5, s6")
    exp_bf16(A, 33, 5, 6, 7)
    A("s_waitcnt vmcnt(0)")
    stamp(A, 2)
    for i in range(6):
        A(f"v_and_b32 v{14+i}, 0x7fff, v{14+i}")
    A("v_max3_u32 v14, v14, v15, v16")
    A("v_max3_u32 v17, v17, v18, v19")
    A("v_max_u32 v14, v14, v17")
    A("v_lshlrev_b32 v10, 16, v10")
    A("v_lshlrev_b32 v11, 16, v11")
    A("v_mul_f32 v6, s90, v10")
    A("v_max_u32_dpp v14, v14, v14 row_shr:1 row_mask:0xf bank_mask:0xf")
    A("v_fma_f32 v7, v10, s90, -v6")
    A("v_exp_f32 v34, v6")
    A("v_max_u32_dpp v14, v14, v14 row_shr:2 row_mask:0xf bank_mask:0xf")
    A("v_fma_f32 v7, v10, s91, v7")
    A("v_mul_f32 v35, v11, v33")
    A("v_max_u32_dpp v14, v14, v14 row_shr:4 row_mask:0xf bank_mask:0xf")
    A("v_mul_f32 v7, s92, v7")
    A(f"v_mul_f32 v35, {INV2PI}, v35")
    A("v_max_u32_dpp v14, v14, v14 row_shr:8 row_mask:0xf bank_mask:0xf")
    A("v_fma_f32 v34, v34, v7, v34")
    A("v_lshlrev_b32 v12, 16, v12")
    A("v_max_u32_dpp v14, v14, v14 row_bcast:15 row_mask:0xa bank_mask:0xf")
    A("v_cvt_pk_bf16_f32 v34, v34, v34")
    A("v_lshlrev_b32 v13, 16, v13")
    A("v_max_u32_dpp v14, v14, v14 row_bcast:31 row_mask:0xc bank_mask:0xf")
    A("v_and_b32 v34, 0xffff0000, v34")
    A("v_mul_f32 v34, v34, v33")
    A("v_readlane_b32 s8, v14, 63")
    A("v_mul_f32 v34, s90, v34")
    A("v_sub_f32 v34, 0, v34")
    A("s_lshr_b32 s8, s8, 7")
    A("s_max_u32 s8, s8, 6")
    A("s_min_u32 s8, s8, 253")
    A("s_sub_u32 s9, 260, s8")
    A("s_lshl_b32 s9, s9, 23")
    A("s_sub_u32 s10, s8, 132")

    def direct(t, p):
        lit = "1.0" if p == 1 else hex(fbits(float(p)))
        A(f"v_mul_f32 v{t}, {lit}, v34")
        A(f"v_mul_f32 v{t+1}, {lit}, v35")
        A(f"v_fract_f32 v{t+1}, v{t+1}")

    def direct2(t):
        A(f"v_exp_f32 v{t}, v{t}")
        A(f"v_cos_f32 v{t+2}, v{t+1}")
        A(f"v_sin_f32 v{t+3}, v{t+1}")

    def direct_fin(d, t):
        A(f"v_mul_f32 v{d}, v{t}, v{t+2}")
        A(f"v_mul_f32 v{d+1}, v{t}, v{t+3}")

    C = 36
    g = {i: 38 + 2 * (i - 1) for i in range(1, 9)}
    G128, G256, G512, G1024 = 54, 56, 58, 60
    T = [62, 64, 66, 68, 70, 72, 74, 76]
    PK = list(range(78, 86))
    BF, AF = 86, 102
    h = {1: g[8]}
    for i in range(2, 9):
        h[i] = AF + 2 * (i - 2)
    AF2 = 62
    direct(62, 1)
    direct(66, 8)
    direct(70, 128)
    direct2(62)
    direct2(66)
    direct2(70)
    A(f"v_mul_f32 v{C}, s9, v12")
    A(f"v_mul_f32 v{C+1}, s9, v13")
    A("v_ldexp_f32 v6, v33, s10")
    A("s_lshl_b32 s11, s37, 2")
    A(f"s_add_u32 s11, s11, {KA_SC}")
    A("v_mov_b32 v7, s11")
    A("ds_write_b32 v7, v6")
    direct_fin(g[1], 62)
    direct_fin(g[8], 66)
    direct_fin(G128, 70)
    stamp(A, 3)

    def wr(rows_src, buf, neg):
        regs = []
        for k, (row, src) in enumerate(rows_src):
            p = PK[k % 8]
            if src is None:
                A(f"v_mov_b32 v{p}, 0x00003c00")
            else:
                A(f"v_cvt_pk_f16_f32 v{p}, v{src}, {'-' if neg else ''}v{src+1}")
            regs.append(p)
        k = 0
        n = 0
        while k < len(rows_src):
            r0 = rows_src[k][0]
            if k + 1 < len(rows_src) and rows_src[k + 1][0] // 4 == r0 // 4:
                r1 = rows_src[k + 1][0]
                A(f"ds_write2_b32 v{AW + 4*buf + r0//4}, v{regs[k]}, v{regs[k+1]} offset0:{(r0%4)*72} offset1:{(r1%4)*72}")
                k += 2
            else:
                A(f"ds_write_b32 v{AW + 4*buf + r0//4}, v{regs[k]} offset:{(r0%4)*K1_ROWB}")
                k += 1
            n += 1
        return n

    def frags(dst, buf):
        for j in range(4):
            A(f"ds_read_b128 {vr(dst+4*j,4)}, v32 offset:{buf*K1_BUF + 64*j}")

    def mfmas(acc, a, b):
        for j in range(4):
            A(f"v_mfma_f32_16x16x32_f16 {vr(acc,4)}, {vr(a+4*j,4)}, {vr(b+4*j,4)}, {vr(acc,4)}")

    cmul_batch(A, [(g[2], g[1], g[1]), (h[2], h[1], h[1]), (G256, G128, G128)])
    cmul_batch(A, [(g[3], g[2], g[1]), (g[4], g[2], g[2]), (h[3], h[2], h[1]), (h[4], h[2], h[2]), (G512, G256, G256)])
    cmul_batch(A, [(g[5], g[4], g[1]), (g[6], g[4], g[2]), (g[7], g[4], g[3]), (h[5], h[4], h[1]), (h[6], h[4], h[2]),
                   (h[7], h[4], h[3]), (h[8], h[4], h[4]), (G1024, G512, G512)])
    for i in range(4):
        A(f"v_mov_b32 v{20+i}, 0")
        A(f"v_mov_b32 v{24+i}, 0")
        A(f"v_mov_b32 v{4+i}, 0")
    wr([(0, None)] + [(i, h[i]) for i in range(1, 8)], 0, False)
    cmul_batch(A, [(T[i - 1], h[8], h[i]) for i in range(1, 8)])
    wr([(8, h[8])] + [(8 + i, T[i - 1]) for i in range(1, 8)], 0, False)
    frags(BF, 0)
    stamp(A, 4)
    c128 = T[7]
    cmul_batch(A, [(T[i - 1], C, g[i]) for i in range(1, 8)] + [(c128, C, G128)])
    wr([(0, C)] + [(i, T[i - 1]) for i in range(1, 8)], 1, True)
    cmul_batch(A, [(T[i - 1], c128, g[i]) for i in range(1, 8)])
    wr([(8, c128)] + [(8 + i, T[i - 1]) for i in range(1, 8)], 1, True)
    frags(AF, 1)
    cmul_batch(A, [(T[0], C, G512), (T[4], C, G1024)])
    cmul_batch(A, [(T[1], T[0], G128), (T[2], T[0], G256), (T[5], T[4], G256), (T[6], T[4], G512)])
    cmul_batch(A, [(T[3], T[2], G128), (T[7], T[6], G256)])
    n1 = wr([(i, T[i]) for i in range(4)] + [(8 + i, T[4 + i]) for i in range(4)], 0, True)
    c2048 = g[1]
    cmul_batch(A, [(c2048, T[4], G1024)])
    D4 = [g[3], g[5], g[7], g[8]]
    cmul_batch(A, [(D4[i], T[i], g[4]) for i in range(4)])
    A("s_waitcnt lgkmcnt(%d)" % n1)
    mfmas(20, AF, BF)
    cmul_batch(A, [(T[i], T[4 + i], G128) for i in range(4)])
    wr([(4 + i, D4[i]) for i in range(4)] + [(12 + i, T[i]) for i in range(4)], 0, True)
    frags(AF, 0)
    stamp(A, 5)
    cmul_batch(A, [(T[0], C, G256)])
    cmul_batch(A, [(T[4], T[0], G128), (T[1], T[0], g[2]), (T[2], T[0], g[4]), (T[3], T[0], g[6])])
    cmul_batch(A, [(T[5], T[4], g[2]), (T[6], T[4], g[4]), (T[7], T[4], g[6])])
    n2 = wr([(i, T[i]) for i in range(8)], 1, True)
    n2 += wr([(8, c2048)], 1, True)
    A("s_waitcnt lgkmcnt(%d)" % n2)
    mfmas(24, AF, BF)
    frags(AF2, 1)
    A("s_waitcnt lgkmcnt(0)")
    mfmas(4, AF2, BF)
    A("v_lshlrev_b32 v28, 4, v2")
    A("v_add_u32 v30, s7, v28")
    for t, r in enumerate((20, 24, 4)):
        A(f"ds_write_b128 v30, {vr(r,4)} offset:{1024*t}")
    stamp(A, 6)


def expand_round(A, r, lbl):
    A("v_lshlrev_b32 v28, 4, v2")
    A("v_add_u32 v28, s39, v28")
    A("s_mov_b32 s22, 0x01000100")
    A("s_mov_b32 s23, 0x03020302")
    if r < 2:
        A("v_lshlrev_b32 v26, 1, v2")
        A(f"v_sub_u32 v26, {2*(384+255) - 128*r}, v26")
        A("v_add_u32 v26, s40, v26")
        A("ds_read_u16 v40, v26")
        A("ds_read_u16 v41, v26 offset:2")
        A("v_and_b32 v16, 1, v2")
        A("v_cmp_eq_u32 s[20:21], 1, v16")
        A("s_waitcnt lgkmcnt(0)")
        w = 40
        A(f"v_lshl_or_b32 v{w}, v{w+1}, 16, v{w}")
        A(f"v_perm_b32 v{w+2}, v{w}, v{w}, s23")
        A(f"v_perm_b32 v{w+4}, v{w}, v{w}, s22")
        A(f"v_alignbit_b32 v{w+1}, v{w}, v{w}, 16")
        A(f"v_mov_b32 v{w+5}, v{w+4}")
        A(f"v_mov_b32 v{w+6}, v{w+2}")
        A(f"v_cndmask_b32 v{w+3}, v{w+2}, v{w+1}, s[20:21]")
        A(f"v_cndmask_b32 v{w+7}, v{w+1}, v{w+4}, s[20:21]")
        A(f"ds_write_b64 v28, {vr(w+2,2)} offset:{KA_KE + 1024*r}")
        A(f"ds_write_b64 v28, {vr(w+4,2)} offset:{KA_KE + 1024*r + 8}")
        A(f"ds_write_b64 v28, {vr(w+6,2)} offset:{KA_KO + 1024*r}")
        A(f"ds_write_b64 v28, {vr(w+4,2)} offset:{KA_KO + 1024*r + 8}")
    elif r == 2:
        A("v_lshlrev_b32 v27, 2, v2")
        A(f"v_sub_u32 v27, {512 + 4*127}, v27")
        A("v_add_u32 v27, s40, v27")
        A("ds_read_b32 v56, v27")
        A("ds_read_u16 v57, v27 offset:4")
        A("s_mov_b32 s24, 0x07060100")
        A("s_waitcnt lgkmcnt(0)")
        A("v_perm_b32 v40, v57, v57, s22")
        A("v_perm_b32 v41, v56, v56, s23")
        A("v_alignbit_b32 v42, v56, v56, 16")
        A("v_perm_b32 v43, v56, v56, s22")
        A("v_perm_b32 v44, v56, v57, s24")
        A("v_mov_b32 v45, v41")
        A("v_mov_b32 v46, v43")
        A("v_mov_b32 v47, v43")
        A(f"ds_write_b128 v28, v[40:43] offset:{KA_KE + 2048}")
        A(f"ds_write_b128 v28, v[44:47] offset:{KA_KO + 2048}")
    else:
        for k in range(9):
            A(f"ds_read_u16 v{40+k}, v{30+k}")
        A("v_mov_b32 v12, 0")
        A("v_and_b32 v14, 15, v2")
        A("v_lshlrev_b32 v14, 2, v14")
        A("v_add_u32 v14, s39, v14")
        A(f"ds_write_b32 v14, v12 offset:{KA_KE + 4096}")
        A(f"ds_write_b32 v14, v12 offset:{KA_KO + 4096}")
        A("s_waitcnt lgkmcnt(2)")
        for k in range(4):
            A(f"v_lshl_or_b32 v{52+k}, v{41+2*k}, 16, v{40+2*k}")
        A("v_alignbit_b32 v56, v53, v52, 16")
        A("v_alignbit_b32 v57, v54, v53, 16")
        A("v_alignbit_b32 v58, v55, v54, 16")
        A("v_alignbit_b32 v59, v48, v55, 16")
        A(f"ds_write_b128 v28, v[52:55] offset:{KA_KE + 3072}")
        A(f"ds_write_b128 v28, v[56:59] offset:{KA_KO + 3072}")
        A("v_mov_b32 v14, s39")
        A(f"ds_write_b16 v14, v12 offset:{KA_KO + 2*2047}")


def ka(A):
    A("s_cmp_ge_u32 s2, 256")
    A("s_cbranch_scc1 KA_END")
    k_begin(A)
    A("s_load_dwordx16 s[16:31], s[0:1], 0")
    A("s_load_dwordx4 s[44:47], s[0:1], 104")
    A("v_lshrrev_b32 v1, 6, v0")
    A("v_readfirstlane_b32 s3, v1")
    A("v_and_b32 v2, 63, v0")
    A("v_mov_b32 v3, 0")
    A("v_lshlrev_b32 v4, 2, v2")
    A(f"v_add_u32 v4, {KA_CNT}, v4")
    A("s_cmp_lg_u32 s3, 0")
    A("s_cbranch_scc1 KA_NOZ")
    A("s_mov_b64 exec, 0xffffffff")
    A("ds_write_b32 v4, v3")
    A("s_mov_b64 exec, -1")
    A.label("KA_NOZ")
    A(f"s_sub_u32 s4, s2, {NPROD}")
    pair_swizzle(A, 35, 4, 6)
    A("s_sub_u32 s4, s3, 4")
    A("s_mul_i32 s37, s4, 11")
    A("s_lshr_b32 s37, s37, 5")
    A("s_mul_i32 s36, s37, 3")
    A("s_sub_u32 s36, s4, s36")
    A("s_lshl_b32 s34, s35, 2")
    A("s_add_u32 s34, s34, s37")
    A(f"s_mul_i32 s7, s4, {KG_SZ}")
    A("s_mul_i32 s4, s34, 384")
    A("s_lshr_b32 s5, s34, 1")
    A("s_lshl_b32 s5, s5, 2")
    A("s_lshl_b32 s8, s36, 7")
    A("s_add_u32 s8, s8, s4")
    A("v_lshlrev_b32 v3, 1, v2")
    A("v_add_u32 v1, s8, v3")
    A("v_add_u32 v3, s4, v3")
    A("s_waitcnt lgkmcnt(0)")
    A("s_mov_b32 s32, s46")
    A("s_mov_b32 s33, s47")
    A("s_cmp_lt_u32 s3, 4")
    A("s_cbranch_scc1 KA_B0")
    A(f"s_cmp_lt_u32 s2, {NPROD}")
    A("s_cbranch_scc1 KA_B0")
    A("s_load_dword s6, s[26:27], s5")
    A("global_load_ushort v10, v1, s[18:19]")
    A("global_load_ushort v11, v1, s[20:21]")
    A("global_load_ushort v12, v1, s[22:23]")
    A("global_load_ushort v13, v1, s[24:25]")
    for i in range(3):
        A(f"global_load_ushort v{14+i}, v3, s[22:23] offset:{128*i}")
        A(f"global_load_ushort v{17+i}, v3, s[24:25] offset:{128*i}")
    A.label("KA_B0")
    A("s_barrier")
    A("s_cmp_lt_u32 s3, 3")
    A("s_cbranch_scc1 KA_LN1")
    A("s_cmp_lg_u32 s3, 3")
    A("s_cbranch_scc1 KA_NOTAG")
    A(f"s_mov_b32 s14, {WS_EPOCH}")
    A("s_load_dword s15, s[32:33], s14")
    if TLBW >= 2:
        A("s_load_dwordx2 s[36:37], s[0:1], 96")
        A("s_load_dwordx2 s[38:39], s[0:1], 64")
        A("v_min_u32 v3, 7, v2")
        A("v_lshlrev_b32 v3, 21, v3")
        A("global_load_dword v60, v3, s[32:33]")
        A("v_min_u32 v5, 1, v2")
        A("v_lshlrev_b32 v5, 21, v5")
        A("v_mov_b32 v7, 0")
        A("s_waitcnt lgkmcnt(0)")
        A("global_load_dword v61, v5, s[36:37]")
        A("global_load_dword v62, v7, s[38:39]")
    A(f"v_mov_b32 v18, {KA_CNT + 96}")
    A("s_waitcnt lgkmcnt(0)")
    A("s_mul_i32 s15, s15, 0x9E3779B1")
    A("s_add_u32 s15, s15, 0x632BE5AB")
    A("v_mov_b32 v19, s15")
    A("ds_write_b32 v18, v19")
    A("s_waitcnt lgkmcnt(0)")
    A(f"v_mov_b32 v18, {KA_CNT + 12}")
    A("v_mov_b32 v19, 1")
    A("s_mov_b64 exec, 1")
    A("ds_add_u32 v18, v19")
    A("s_mov_b64 exec, -1")
    A(f"s_cmp_ge_u32 s2, {NPROD}")
    A("s_cbranch_scc1 KA_CONV")
    A("s_branch KA_WTPOLL")
    A.label("KA_NOTAG")
    A(f"s_cmp_lt_u32 s2, {NPROD}")
    A("s_cbranch_scc1 KA_WT0")
    kgen_wave(A)
    arrive_s(A, 4, 37)
    wait_s(A, 4, 37, 3, "KA_W4")
    stamp(A, 7)
    A(f"s_mul_i32 s11, s37, {3*KG_SZ}")
    A("s_lshl_b32 s12, s36, 10")
    A("s_add_u32 s11, s11, s12")
    A("v_add_u32 v28, s11, v28")
    for w in range(3):
        A(f"ds_read_b128 {vr(40+4*w,4)}, v28 offset:{KG_SZ*w}")
    A("s_waitcnt lgkmcnt(0)")
    for i in range(4):
        A(f"v_add_f32 v{40+i}, v{40+i}, v{44+i}")
    for i in range(4):
        A(f"v_add_f32 v{40+i}, v{40+i}, v{48+i}")
    A("v_cvt_pk_f16_f32 v40, v40, v41")
    A("v_cvt_pk_f16_f32 v41, v42, v43")
    A("s_cmp_eq_u32 s36, 1")
    A("s_cbranch_scc1 KA_S1")
    A("ds_write_b64 v29, v[40:41]")
    A("s_branch KA_S2")
    A.label("KA_S1")
    A("ds_write_b16 v29, v40")
    A("ds_write_b16_d16_hi v29, v40 offset:64")
    A("ds_write_b16 v29, v41 offset:128")
    A("ds_write_b16_d16_hi v29, v41 offset:192")
    A.label("KA_S2")
    arrive_s(A, 8, 37)
    wait_s(A, 8, 37, 3, "KA_W5")
    A(f"s_mul_i32 s39, s37, {KEO_ST}")
    A(f"s_add_u32 s39, s39, {KEO_BASE}")
    A(f"s_mul_i32 s40, s37, {T_ST}")
    A(f"s_add_u32 s40, s40, {KA_T}")
    A("s_cmp_eq_u32 s36, 0")
    A("s_cbranch_scc1 KA_R0")
    A("s_cmp_eq_u32 s36, 1")
    A("s_cbranch_scc1 KA_R1")
    expand_round(A, 2, "R2")
    A("s_branch KA_RX")
    A.label("KA_R0")
    expand_round(A, 0, "R0")
    A("s_branch KA_RX")
    A.label("KA_R1")
    expand_round(A, 1, "R1")
    A.label("KA_RX")
    arrive_s(A, 12, 37)
    k_end(A, 0)

    A.label("KA_CONV")
    A("s_lshl_b32 s4, s35, 2")
    A("s_add_u32 s4, s4, s3")
    A("s_lshr_b32 s14, s4, 1")
    A("s_lshl_b32 s14, s14, 2")
    A(f"s_mul_i32 s39, s3, {KEO_ST}")
    A(f"s_mul_i32 s40, s3, {T_ST}")
    A(f"s_add_u32 s40, s40, {KA_T}")
    A(f"s_mul_i32 s41, s3, {U_ST}")
    A(f"s_add_u32 s41, s41, {KA_U}")
    A("v_and_b32 v6, 15, v2")
    A("v_lshrrev_b32 v7, 4, v2")
    A("v_lshrrev_b32 v8, 1, v7")
    A("v_and_b32 v9, 1, v7")
    A("v_mov_b32 v12, 0")
    A("v_mov_b32 v13, 0")
    A("v_lshlrev_b32 v14, 3, v2")
    A("v_add_u32 v14, s41, v14")
    A("ds_write_b64 v14, v[12:13]")
    A("v_sub_u32 v14, 2047, v6")
    A("v_lshlrev_b32 v15, 4, v8")
    A("v_sub_u32 v14, v14, v15")
    A("v_lshlrev_b32 v15, 3, v9")
    A("v_add_u32 v14, v14, v15")
    A("v_lshlrev_b32 v14, 1, v14")
    A(f"v_add_u32 v15, {KA_KO - 2}, v14")
    A("v_and_b32 v16, 1, v6")
    A("v_cmp_eq_u32 vcc, 1, v16")
    A("v_cndmask_b32 v14, v15, v14, vcc")
    A("v_add_u32 v14, s39, v14")
    AB = [20, 21, 22, 23]
    for p in range(4):
        A(f"v_subrev_u32 v{AB[p]}, {512*(2*p+1) + 448}, v14")
    A("v_lshlrev_b32 v15, 5, v6")
    A("v_lshlrev_b32 v16, 5, v8")
    A("v_sub_u32 v15, v15, v16")
    A("v_lshlrev_b32 v16, 4, v9")
    A("v_add_u32 v15, v15, v16")
    A(f"v_add_u32 v15, {512 - 448}, v15")
    BB = 24
    A(f"v_add_u32 v{BB}, s41, v15")
    A("v_lshlrev_b32 v15, 5, v6")
    A("v_lshlrev_b32 v16, 3, v7")
    A("v_add_u32 v25, v15, v16")
    A("v_lshlrev_b32 v3, 3, v2")
    A("v_sub_u32 v3, 511, v3")
    for k in range(9):
        A(f"v_subrev_u32 v{30+k}, {k}, v3")
    A("v_max_i32 v38, 0, v38")
    for k in range(9):
        A(f"v_cvt_f32_i32 v{40+k}, v{30+k}")
    for k in range(0, 8, 2):
        A(f"v_cvt_pk_bf16_f32 v{50+k}, v{40+k}, v{41+k}")
        A(f"v_lshrrev_b32 v{51+k}, 16, v{50+k}")
        A(f"v_and_b32 v{50+k}, 0xffff, v{50+k}")
    A("v_cvt_pk_bf16_f32 v58, v48, v48")
    A("v_and_b32 v58, 0xffff, v58")
    for k in range(9):
        A(f"v_subrev_u32 v{50+k}, 17024, v{50+k}")
        A(f"v_min_i32 v{30+k}, 127, v{30+k}")
        A(f"v_max_i32 v{50+k}, v{50+k}, v{30+k}")
        A(f"v_lshlrev_b32 v{30+k}, 1, v{50+k}")
        A(f"v_add_u32 v{30+k}, s40, v{30+k}")
    A("v_lshrrev_b32 v5, 2, v2")
    A("v_mul_u32_u24 v5, 10240, v5")
    A("v_and_b32 v4, 3, v2")
    A("v_lshl_add_u32 v5, v4, 4, v5")
    A("s_lshl_b32 s7, s35, 6")
    A("s_mul_i32 s8, s3, 655360")
    A("s_add_u32 s7, s7, s8")
    A(f"s_add_u32 s7, s7, {WS_UT}")
    A("v_add_u32 v5, s7, v5")
    A(f"v_mul_u32_u24 v4, {U_ST}, v4")
    A("v_lshrrev_b32 v3, 2, v2")
    A("v_lshl_add_u32 v4, v3, 4, v4")
    A("s_lshl_b32 s8, s3, 10")
    A(f"s_add_u32 s8, s8, {KA_U + 512}")
    A("v_add_u32 v4, s8, v4")
    A("s_load_dword s11, s[28:29], s14")
    stamp(A, 1)
    A("s_cmp_lg_u32 s3, 3")
    A("s_cbranch_scc1 KA_GOT")
    wait_count(A, 3, 4, "KA_OWN", sleep=4)
    poll_flags(A, "KA_POLL")
    A(f"s_cmp_lg_u32 s2, {NPROD}")
    A("s_cbranch_scc1 KA_GOT")
    A(f"v_mov_b32 v3, {WS_EPOCH}")
    A("v_mov_b32 v10, s15")
    A("s_mov_b64 exec, 1")
    A(f"global_store_dword v3, v10, s[32:33] {SC}")
    A("s_mov_b64 exec, -1")
    A.label("KA_GOT")
    AF, BF, ACC = 32, 64, 96
    for i in range(32):
        A(f"v_mov_b32 v{ACC+i}, 0")
    A("s_bitcmp1_b32 s4, 0")
    group_sync(A, 2, 4, "KA_GS2")
    stamp(A, 2)
    for j in range(4):
        A(f"global_load_dwordx4 {vr(64+4*j,4)}, v5, s[32:33] {SC}")
        if j < 3:
            A("v_add_u32 v5, 163840, v5")
    A("s_bitcmp1_b32 s4, 0")
    A("s_cbranch_scc1 KA_ODD2")
    A("s_lshl_b32 s11, s11, 16")
    A.label("KA_ODD2")
    A("s_and_b32 s11, s11, 0xffff0000")
    for j in range(4):
        A(f"s_waitcnt vmcnt({3-j})")
        A(f"ds_write_b128 v4, {vr(64+4*j,4)} offset:{256*j}")
    arrive(A, 17)
    stamp(A, 3)
    wait_s(A, 8, 3, 3, "KA_W5C")
    expand_round(A, 3, "R3")
    A("s_lshl_b32 s12, s3, 2")
    A(f"s_add_u32 s12, s12, {KA_SC}")
    A("v_mov_b32 v3, s12")
    A("ds_read_b32 v10, v3")
    wait_s(A, 12, 3, 3, "KA_W6")
    wait_count(A, 17, 4, "KA_W7", sleep=0)
    stamp(A, 5)

    def loadA(q, i0):
        p = q // 2
        o = (128 if q % 2 == 0 else 0) + 16 * (7 - i0)
        return [f"ds_read2_b32 {vr(AF+4*q,2)}, v{AB[p]} offset0:{o} offset1:{o+1}",
                f"ds_read2_b32 {vr(AF+4*q+2,2)}, v{AB[p]} offset0:{o+2} offset1:{o+3}"]

    def loadB(tau, i0):
        return [f"ds_read_b128 {vr(BF+4*tau,4)}, v{BB} offset:{512*tau + 64*(7-i0)}"]

    queue = []
    if os.environ.get("ALIGN"):
        A(".p2align 3")
    for q in range(8):
        A(loadB(7 - q, 0)[0])
        queue.append(("B", 7 - q))
        if q == 0:
            for s in loadA(0, 0):
                A(s)
            queue += [("A", 0), ("A", 0)]
    for q in range(1, 8):
        for s in loadA(q, 0):
            A(s)
        queue += [("A", q), ("A", q)]
    pending = []

    def wait_for(tags):
        while any(tg in tags for _, tg in pending):
            s_, tg = pending.pop(0)
            A(s_)
            queue.append(tg)
        last = -1
        for i, t in enumerate(queue):
            if t in tags:
                last = i
        if last >= 0:
            n = len(queue) - 1 - last
            A(f"s_waitcnt lgkmcnt({min(n, 15)})")
            if os.environ.get("ALIGN"):
                A("s_nop 0")
            del queue[:last + 1]

    for i0 in range(8):
        for q in range(8):
            for tau in range(7 - q, -1, -1):
                wait_for({("A", q), ("B", tau)})
                t = q + tau
                A(f"v_mfma_f32_16x16x32_f16 {vr(ACC+4*t,4)}, {vr(AF+4*q,4)}, {vr(BF+4*tau,4)}, {vr(ACC+4*t,4)}")
                if i0 < 7:
                    if tau == 7 - q:
                        pending.insert(0, (loadB(7 - q, i0 + 1)[0], ("B", 7 - q)))
                    if tau == 0:
                        for s in loadA(q, i0 + 1):
                            pending.append((s, ("A", q)))
                if pending:
                    s, tag = pending.pop(0)
                    A(s)
                    queue.append(tag)
    stamp(A, 6)
    A("v_add_u32 v26, s41, v25")
    A("v_add_u32 v27, s39, v25")
    for t in range(8):
        A(f"ds_read_b64 {vr(32+2*t,2)}, v26 offset:{512 + 512*t}")
    A(f"v_mov_b32 v28, {ONE_LO}")
    A(f"v_mov_b32 v29, {ONE_HI}")
    A("v_mov_b32 v11, v10")
    A("s_waitcnt lgkmcnt(0)")
    for t in range(8):
        a = ACC + 4 * t
        u = 32 + 2 * t
        tm = 48 + 8 * (t & 1)
        A(f"v_pk_mul_f32 {vr(a,2)}, {vr(a,2)}, v[10:11]")
        A(f"v_pk_mul_f32 {vr(a+2,2)}, {vr(a+2,2)}, v[10:11]")
        A(f"v_fma_mix_f32 v{tm}, v{u}, s11, 0 op_sel:[0,0,0] op_sel_hi:[1,0,0]")
        A(f"v_fma_mix_f32 v{tm+1}, v{u}, s11, 0 op_sel:[1,0,0] op_sel_hi:[1,0,0]")
        A(f"v_fma_mix_f32 v{tm+2}, v{u+1}, s11, 0 op_sel:[0,0,0] op_sel_hi:[1,0,0]")
        A(f"v_fma_mix_f32 v{tm+3}, v{u+1}, s11, 0 op_sel:[1,0,0] op_sel_hi:[1,0,0]")
        A(f"v_cvt_pk_bf16_f32 v{a}, v{a}, v{a+1}")
        A(f"v_cvt_pk_bf16_f32 v{a+1}, v{a+2}, v{a+3}")
        A(f"v_cvt_pk_bf16_f32 v{tm+4}, v{tm}, v{tm+1}")
        A(f"v_cvt_pk_bf16_f32 v{tm+5}, v{tm+2}, v{tm+3}")
        A(f"v_lshlrev_b32 v{tm}, 16, v{tm+4}")
        A(f"v_and_b32 v{tm+1}, 0xffff0000, v{tm+4}")
        A(f"v_lshlrev_b32 v{tm+2}, 16, v{tm+5}")
        A(f"v_and_b32 v{tm+3}, 0xffff0000, v{tm+5}")
        A(f"v_dot2_f32_bf16 v{tm}, v{a}, v28, v{tm}")
        A(f"v_dot2_f32_bf16 v{tm+1}, v{a}, v29, v{tm+1}")
        A(f"v_dot2_f32_bf16 v{tm+2}, v{a+1}, v28, v{tm+2}")
        A(f"v_dot2_f32_bf16 v{tm+3}, v{a+1}, v29, v{tm+3}")
        A(f"v_cvt_pk_bf16_f32 v{a+2}, v{tm}, v{tm+1}")
        A(f"v_cvt_pk_bf16_f32 v{a+3}, v{tm+2}, v{tm+3}")
        A(f"ds_write_b64 v27, {vr(a+2,2)} offset:{KA_KE + 512*t}")
    stamp(A, 7)
    A("v_lshrrev_b32 v14, 2, v6")
    A(f"v_mul_u32_u24 v14, {KEO_ST}, v14")
    A("v_and_b32 v15, 3, v2")
    A("v_lshlrev_b32 v15, 3, v15")
    A("v_add_u32 v14, v14, v15")
    A("v_lshlrev_b32 v15, 5, v7")
    A("v_add_u32 v14, v14, v15")
    A("s_lshl_b32 s12, s3, 10")
    A("v_add_u32 v14, s12, v14")
    A("v_lshrrev_b32 v15, 3, v6")
    A("v_lshlrev_b32 v16, 1, v7")
    A("v_add_u32 v15, v15, v16")
    A("v_mul_u32_u24 v15, 10240, v15")
    A("v_and_b32 v16, 7, v6")
    A("v_lshlrev_b32 v16, 3, v16")
    A("v_add_u32 v15, v15, v16")
    A("s_mul_i32 s12, s3, 655360")
    A("s_lshl_b32 s13, s35, 6")
    A("s_add_u32 s12, s12, s13")
    A(f"s_add_u32 s12, s12, {WS_AT}")
    A("v_add_u32 v15, s12, v15")
    A("s_waitcnt lgkmcnt(0)")
    A("s_barrier")
    for k in range(8):
        A(f"ds_read_b64_tr_b16 {vr(40+2*k,2)}, v14 offset:{KA_KE + 128*k}")
    for k in range(8):
        A(f"s_waitcnt lgkmcnt({7-k})")
        A(f"global_store_dwordx2 v15, {vr(40+2*k,2)}, s[32:33] {os.environ.get('AT_MOD', '')}")
        if k < 7:
            A("v_add_u32 v15, 81920, v15")
    k_end(A, 0)

    A.label("KA_LN1")
    A(f"s_setprio {os.environ.get('LN_PRIO', '3')}")
    A("v_mov_b32 v20, v0")
    A("s_mul_i32 s5, s2, 10240")
    A("v_min_u32 v21, 159, v20")
    A("v_lshlrev_b32 v3, 3, v21")
    A("v_add_u32 v3, s5, v3")
    A("v_add_u32 v4, 5120, v3")
    A("v_lshrrev_b32 v5, 4, v20")
    A("v_mul_u32_u24 v6, 1280, v5")
    A("v_and_b32 v7, 15, v20")
    A("v_lshlrev_b32 v7, 4, v7")
    A("v_add_u32 v6, v6, v7")
    A("v_add_u32 v6, s5, v6")
    A("s_cmp_eq_u32 s3, 2")
    A("s_cbranch_scc1 KA_LNB")
    for i in range(5):
        A(f"global_load_dwordx4 {vr(24+4*i,4)}, v6, s[16:17] offset:{256*i}")
    A.label("KA_LNB")
    for r in range(8):
        A(f"global_load_dwordx2 {vr(48+2*r,2)}, v{3 if r < 4 else 4}, s[16:17] offset:{1280*(r%4)}")
    A(f"v_mov_b32 v14, {ONE_LO}")
    A(f"v_mov_b32 v15, {ONE_HI}")
    A("s_cmp_eq_u32 s3, 2")
    A("s_cbranch_scc1 KA_P1")
    for r in (8, 9, 10, 11):
        A(f"v_mov_b32 v{r}, 0")
    A("v_mov_b32 v12, 0x3f803f80")
    A("s_waitcnt vmcnt(8)")
    for i in range(0, 20, 2):
        A(f"v_dot2c_f32_bf16 v8, v{24+i}, v12")
        A(f"v_dot2c_f32_bf16 v9, v{24+i}, v{24+i}")
        A(f"v_dot2c_f32_bf16 v10, v{25+i}, v12")
        A(f"v_dot2c_f32_bf16 v11, v{25+i}, v{25+i}")
    A("s_nop 2")
    A("v_add_f32 v8, v8, v10")
    A("v_add_f32 v9, v9, v11")
    for sh in (8, 4, 2, 1):
        A(f"v_add_f32_dpp v8, v8, v8 row_ror:{sh} row_mask:0xf bank_mask:0xf")
        A(f"v_add_f32_dpp v9, v9, v9 row_ror:{sh} row_mask:0xf bank_mask:0xf")
    ln_finish(A, 8, 9, 10)
    A("v_sub_f32 v8, 0, v8")
    A("v_lshlrev_b32 v5, 3, v5")
    A(f"v_add_u32 v5, {KA_STATS}, v5")
    A("ds_write_b64 v5, v[8:9]")
    A.label("KA_P1")
    group_sync(A, 0, 3, "KA_GS0")
    stamp(A, 8)
    A(f"v_mov_b32 v5, {KA_STATS}")
    for i in range(4):
        A(f"ds_read_b128 {vr(24+4*i,4)}, v5 offset:{16*i}")
    A("v_lshlrev_b32 v3, 6, v21")
    A(f"v_add_u32 v3, {KA_STAGE}, v3")
    A("s_waitcnt vmcnt(0) lgkmcnt(0)")
    for rp in range(4):
        r0, r1 = 2 * rp, 2 * rp + 1
        tt = [84 + 3 * ch for ch in range(4)]
        for ch in range(4):
            a, b = 48 + 2 * r0 + (ch >> 1), 48 + 2 * r1 + (ch >> 1)
            one = 14 + (ch & 1)
            A(f"v_dot2_f32_bf16 v{tt[ch]}, v{a}, v{one}, v{24+2*r0}")
            A(f"v_dot2_f32_bf16 v{tt[ch]+1}, v{b}, v{one}, v{24+2*r1}")
        for ch in range(4):
            A(f"v_cvt_pk_bf16_f32 v{tt[ch]+2}, v{tt[ch]}, v{tt[ch]+1}")
        for ch in range(4):
            A(f"v_lshlrev_b32 v{tt[ch]}, 16, v{tt[ch]+2}")
            A(f"v_and_b32 v{tt[ch]+1}, 0xffff0000, v{tt[ch]+2}")
        for ch in range(4):
            A(f"v_mul_f32 v{tt[ch]}, v{tt[ch]}, v{25+2*r0}")
            A(f"v_mul_f32 v{tt[ch]+1}, v{tt[ch]+1}, v{25+2*r1}")
        for ch in range(4):
            A(f"v_cvt_pk_bf16_f32 v{tt[ch]+2}, v{tt[ch]}, v{tt[ch]+1}")
        for ch in range(4):
            A(f"v_lshlrev_b32 v{tt[ch]}, 16, v{tt[ch]+2}")
            A(f"v_and_b32 v{tt[ch]+1}, 0xffff0000, v{tt[ch]+2}")
        for ch in range(4):
            A(f"v_cvt_pk_f16_f32 v{68+4*ch+rp}, v{tt[ch]}, v{tt[ch]+1}")
    for ch in range(4):
        A(f"ds_write_b128 v3, {vr(68+4*ch,4)} offset:{16*ch}")
    group_sync(A, 1, 3, "KA_GS1")
    A("v_lshlrev_b32 v3, 4, v20")
    A(f"v_add_u32 v4, {KA_STAGE}, v3")
    for j in range(4):
        A(f"ds_read_b128 {vr(24+4*j,4)}, v4 offset:{3072*j}")
    A(f"s_add_u32 s5, s5, {WS_UT}")
    A("v_add_u32 v3, s5, v3")
    A("s_waitcnt lgkmcnt(0)")
    for j in range(3):
        A(f"global_store_dwordx4 v3, {vr(24+4*j,4)}, s[32:33] {SC}")
        A("v_add_u32 v3, 3072, v3")
    A("s_cmp_lg_u32 s3, 0")
    A("s_cbranch_scc1 KA_P3")
    A(f"global_store_dwordx4 v3, {vr(36,4)}, s[32:33] {SC}")
    A.label("KA_P3")
    A("s_waitcnt vmcnt(0)")
    group_sync(A, 3, 4, "KA_GS3")
    stamp(A, 9)
    A("s_cmp_lg_u32 s3, 0")
    A("s_cbranch_scc1 KA_LNX")
    A(f"v_mov_b32 v3, {KA_CNT + 96}")
    A("ds_read_b32 v4, v3")
    A(f"s_lshr_b32 s5, s2, {0 if FLAG64 == 2 else 2 if FLAG64 else 4}")
    A("s_lshl_b32 s5, s5, 7")
    A(f"s_and_b32 s6, s2, {0 if FLAG64 == 2 else 3 if FLAG64 else 15}")
    A("s_lshl_b32 s6, s6, 2")
    A("s_add_u32 s5, s5, s6")
    A(f"s_add_u32 s5, s5, {WS_FLAG}")
    A("v_mov_b32 v3, s5")
    A("s_waitcnt lgkmcnt(0)")
    A("s_mov_b64 exec, 1")
    A(f"global_store_dword v3, v4, s[32:33] {FMOD}")
    A("s_mov_b64 exec, -1")
    A.label("KA_LNX")
    A("s_setprio 0")
    A(f"s_cmp_ge_u32 s2, {NPROD}")
    A("s_cbranch_scc1 KA_CONV")
    k_end(A, 0)
    A.label("KA_WTPOLL")
    wait_count(A, 3, 4, "KA_OWN2", sleep=4)
    if os.environ.get("WT_LATE"):
        poll_epoch(A, "KA_POLL2")
    arrive(A, 16)
    k_end(A, 0)
    A.label("KA_WT0")
    A("s_cmp_ge_u32 s3, 8")
    A("s_cbranch_scc1 KA_PRE" if PREFILL[0] else "s_cbranch_scc1 KA_WTX")
    wait_count(A, 16, 1, "KA_WTW", sleep=8)
    wt_role(A, "KA", 0, -2, 8192, 0, 960, 0, os.environ.get("WT_MOD", "sc1"), 384)
    if PREFILL[0]:
        A.label("KA_PRE")
        if TLBW == 1 or TLBW == 3:
            A("s_cmp_lg_u32 s3, 9")
            A("s_cbranch_scc1 KA_PRE2")
            A("s_load_dwordx2 s[36:37], s[0:1], 96")
            A("s_load_dwordx2 s[38:39], s[0:1], 64")
            A("v_min_u32 v3, 7, v2")
            A("v_lshlrev_b32 v3, 21, v3")
            A("global_load_dword v4, v3, s[32:33]")
            A("v_min_u32 v5, 1, v2")
            A("v_lshlrev_b32 v5, 21, v5")
            A("v_mov_b32 v7, 0")
            A("s_waitcnt lgkmcnt(0)")
            A("global_load_dword v6, v5, s[36:37]")
            A("global_load_dword v8, v7, s[38:39]")
            A("s_endpgm")
            A.label("KA_PRE2")
        A("s_cmp_lg_u32 s3, 8")
        A("s_cbranch_scc1 KA_WTX")
        nk = 256 * KEY_STRIDE // 1024
        A(f"s_cmp_ge_u32 s2, {nk + 24}")
        A("s_cbranch_scc1 KA_WTX")
        A("s_lshl_b32 s4, s2, 10")
        A(f"s_add_u32 s5, s4, {WS_RK}")
        A(f"s_add_u32 s6, s4, {WS_ACT - 1024 * nk}")
        A(f"s_cmp_lt_u32 s2, {nk}")
        A("s_cselect_b32 s5, s5, s6")
        A("v_lshlrev_b32 v3, 4, v2")
        A("v_add_u32 v3, s5, v3")
        for i in range(4):
            A(f"v_mov_b32 v{4+i}, -1")
        A("global_store_dwordx4 v3, v[4:7], s[32:33]")
    A.label("KA_WTX")
    k_end(A, 0)
    A.label("KA_END")
    A("s_endpgm")


KC_SLEEP = int(os.environ.get('KC_SLEEP', '6'))
AT_LD = os.environ.get('AT_LD', '')
KD_LDS = 18432
KD_F1_FIRST = int(os.environ.get("KD_F1_FIRST", "20"))
KD_F2_FIRST = int(os.environ.get("KD_F2_FIRST", "64"))
KD_KSLEEP = int(os.environ.get("KD_KSLEEP", "8"))
NROW = 256


def sel_part1(A, lbl, first_sleep):
    A(f"v_lshlrev_b32 v4, {KEY_STRIDE.bit_length() - 1}, v0")
    A(f"v_add_u32 v4, {WS_RK}, v4")
    A("s_mov_b32 s12, 0")
    A("v_mov_b32 v21, -1")
    if first_sleep:
        A(f"s_sleep {first_sleep}")
    A.label(lbl)
    A(f"global_load_dwordx4 v[8:11], v4, s[32:33] {SC}")
    A(f"global_load_dwordx4 v[12:15], v4, s[32:33] offset:16 {SC}")
    A("s_waitcnt vmcnt(0)")
    A("v_max3_u32 v16, v8, v9, v10")
    A("v_max3_u32 v17, v11, v12, v13")
    A("v_max3_u32 v16, v16, v14, v15")
    A("v_max_u32 v16, v16, v17")
    A("v_cmp_eq_u32 vcc, v21, v16")
    A("s_cmp_eq_u64 vcc, 0")
    A(f"s_cbranch_scc1 {lbl}_OK")
    A("s_add_u32 s12, s12, 1")
    A(f"s_cmp_ge_u32 s12, {SPIN_MAX}")
    A(f"s_cbranch_scc1 {lbl}_OK")
    A(f"s_sleep {KD_KSLEEP}")
    A(f"s_branch {lbl}")
    A.label(lbl + "_OK")
    stamp(A, 5)
    net = [(0, 1), (2, 3), (4, 5), (6, 7), (0, 2), (1, 3), (4, 6), (5, 7), (1, 2), (5, 6), (0, 4), (3, 7), (1, 5), (2, 6),
           (1, 4), (3, 6), (2, 4), (3, 5), (3, 4)]
    reg = list(range(8, 16))
    spare = 16
    for a_, b_ in net:
        A(f"v_max_u32 v{spare}, v{reg[a_]}, v{reg[b_]}")
        A(f"v_min_u32 v{reg[b_]}, v{reg[a_]}, v{reg[b_]}")
        reg[a_], spare = spare, reg[a_]
    steps = [("row_shr:1", "0xf"), ("row_shr:2", "0xf"), ("row_shr:4", "0xf"), ("row_shr:8", "0xf"),
             ("row_bcast:15", "0xa"), ("row_bcast:31", "0xc")]
    for r in range(4):
        A(f"v_mov_b32 v17, v{reg[0]}")
        A(f"v_mov_b32 v18, v{reg[1]}")
        for ctl, mask in steps:
            bc = " bound_ctrl:0" if ctl.startswith("row_shr") else ""
            A(f"v_min_u32_dpp v19, v17, v17 {ctl} row_mask:{mask} bank_mask:0xf{bc}")
            A(f"v_max_u32_dpp v17, v17, v17 {ctl} row_mask:{mask} bank_mask:0xf{bc}")
            A(f"v_max_u32_dpp v20, v18, v18 {ctl} row_mask:{mask} bank_mask:0xf{bc}")
            A("v_max_u32 v18, v19, v20")
        A(f"v_readlane_b32 s{40+2*r}, v17, 63")
        A(f"v_readlane_b32 s{41+2*r}, v18, 63")
        if r < 3:
            left = 8 - 2 * r
            for wsel in (40 + 2 * r, 41 + 2 * r):
                A(f"v_cmp_eq_u32 vcc, s{wsel}, v{reg[0]}")
                left -= 1
                for k in range(left):
                    A(f"v_cndmask_b32 v{reg[k]}, v{reg[k]}, v{reg[k+1]}, vcc")
    A("v_mov_b32 v16, s40")
    for r in range(1, 8):
        A(f"v_writelane_b32 v16, s{40+r}, {r}")
    A("s_lshl_b32 s6, s3, 5")
    A("v_lshlrev_b32 v17, 2, v2")
    A("v_add_u32 v17, s6, v17")
    A("v_cmp_gt_u32 vcc, 8, v2")
    A("s_and_saveexec_b64 s[20:21], vcc")
    A("ds_write_b32 v17, v16")
    A("s_mov_b64 exec, s[20:21]")


def sel_part2(A):
    A("v_and_b32 v17, 31, v2")
    A("v_lshlrev_b32 v17, 2, v17")
    A("v_lshrrev_b32 v18, 5, v2")
    A("v_lshlrev_b32 v18, 6, v18")
    A("v_mov_b32 v19, 0")
    A("v_mov_b32 v20, 0")
    A("s_waitcnt lgkmcnt(0)")
    A("s_barrier")
    A("ds_read_b32 v16, v17")
    for i in range(4):
        A(f"ds_read_b128 {vr(60+4*i,4)}, v18 offset:{16*i}")
    A("s_waitcnt lgkmcnt(0)")
    sp = ["s[50:51]", "s[52:53]", "s[54:55]", "s[56:57]"]
    for i in range(0, 16, 4):
        for k in range(4):
            A(f"v_cmp_gt_u32 {sp[k]}, v{60+i+k}, v16")
        for k in range(4):
            A(f"v_addc_co_u32 v{19 + (k & 1)}, vcc, 0, v{19 + (k & 1)}, {sp[k]}")
    A("v_add_u32 v19, v19, v20")
    A("v_mov_b32 v20, v19")
    A("v_permlane32_swap_b32 v19, v20")
    A("v_add_u32 v19, v19, v20")
    A("v_cmp_gt_u32 vcc, 8, v19")
    A("v_cmp_gt_u32 s[22:23], 32, v2")
    A("s_and_b64 vcc, vcc, s[22:23]")
    A("v_lshlrev_b32 v19, 2, v19")
    A("s_lshl_b32 s6, s3, 6")
    A("s_add_u32 s6, s6, 256")
    A("v_add_u32 v19, s6, v19")
    A("s_and_saveexec_b64 s[20:21], vcc")
    A("ds_write_b32 v19, v16")
    A("s_mov_b64 exec, s[20:21]")


def kd(A):
    A("s_cmp_ge_u32 s2, 256")
    A("s_cbranch_scc1 KD_END")
    k_begin(A)
    A("s_load_dwordx2 s[32:33], s[0:1], 112")
    A("s_load_dwordx2 s[26:27], s[0:1], 0")
    A("s_load_dwordx2 s[28:29], s[0:1], 64")
    A("s_load_dwordx2 s[30:31], s[0:1], 96")
    A("v_lshrrev_b32 v1, 6, v0")
    A("v_readfirstlane_b32 s3, v1")
    A("v_and_b32 v2, 63, v0")
    A("s_and_b32 s35, s3, 3")
    A("s_cmp_ge_u32 s2, 192")
    A("s_cselect_b32 s36, 1, 0")
    A("s_sub_u32 s34, s2, 192")
    A("s_cmp_lt_u32 s34, 16")
    A("s_cselect_b32 s38, s36, 0")
    A("s_mov_b32 s37, s2")
    A("s_mul_i32 s7, s37, 20480")
    A("s_mul_i32 s8, s35, 5120")
    A("s_add_u32 s7, s7, s8")
    A(f"s_add_u32 s7, s7, {WS_WGU}")
    A("v_lshlrev_b32 v96, 4, v2")
    A("v_add_u32 v96, s7, v96")
    A("v_add_u32 v97, 4096, v96")
    A("v_lshrrev_b32 v5, 4, v2")
    A("v_and_b32 v4, 7, v2")
    A("v_bfe_u32 v6, v2, 3, 1")
    A("v_lshlrev_b32 v98, 7, v5")
    A("v_lshl_add_u32 v98, v4, 4, v98")
    A("v_lshl_add_u32 v98, v6, 9, v98")
    A("s_mul_i32 s5, s3, 3072")
    A("v_add_u32 v98, s5, v98")
    A(f"v_add_u32 v99, {WS_ACT}, v98")
    A("s_mul_i32 s4, s34, 24576")
    A(f"s_add_u32 s4, s4, {WS_WD}")
    A("v_add_u32 v98, s4, v98")
    A(f"v_add_u32 v97, {64*24576}, v98".replace("v97", "v95"))
    FR, A2, FRB = 100, 112, 124

    def frag_loads(tag):
        A("s_cmp_eq_u32 s36, 1")
        A(f"s_cbranch_scc1 KD_L2_{tag}")
        for i in range(4):
            A(f"global_load_dwordx4 {vr(FR+4*i,4)}, v96, s[32:33] offset:{1024*i}")
        A(f"global_load_dwordx4 {vr(FR+16,4)}, v97, s[32:33]")
        A(f"s_branch KD_LX_{tag}")
        A.label(f"KD_L2_{tag}")
        for i in range(3):
            A(f"global_load_dwordx4 {vr(FR+4*i,4)}, v98, s[32:33] offset:{1024*i}")
        A("s_cmp_eq_u32 s38, 0")
        A(f"s_cbranch_scc1 KD_LX_{tag}")
        for i in range(3):
            A(f"global_load_dwordx4 {vr(FRB+4*i,4)}, v95, s[32:33] offset:{1024*i}")
        A.label(f"KD_LX_{tag}")

    A("s_cmp_lt_u32 s3, 4")
    A("s_cbranch_scc1 KD_ROW")
    A("s_cmp_eq_u32 s36, 0")
    A("s_cbranch_scc1 KD_END")
    A("s_waitcnt lgkmcnt(0)")
    A("s_sleep 32")
    frag_loads("hi")
    A("s_barrier")
    A("s_branch KD_SEL2")
    A.label("KD_ROW")
    A("v_lshrrev_b32 v7, 5, v0")
    A("v_and_b32 v4, 31, v0")
    A("s_mul_i32 s4, s2, 10240")
    A("v_lshlrev_b32 v5, 3, v4")
    A("v_mul_u32_u24 v6, 1280, v7")
    A("v_add_u32 v6, v6, v5")
    A("v_add_u32 v8, s4, v6")
    A("v_lshlrev_b32 v3, 6, v4")
    A("v_lshl_add_u32 v3, v7, 3, v3")
    A(f"s_add_u32 s5, s4, {WS_AT + 4096}")
    A("v_add_u32 v3, s5, v3")
    A("v_add_u32 v9, 8192, v3")
    AR, XR, WR = 20, 32, 44
    A("s_waitcnt lgkmcnt(0)")
    stamp(A, 1)
    for i in range(5):
        if i < 4:
            A(f"global_load_dwordx2 {vr(AR+2*i,2)}, v3, s[32:33] offset:{2048*i - 4096} {AT_LD}")
        else:
            A(f"global_load_dwordx2 {vr(AR+2*i,2)}, v9, s[32:33] offset:-4096 {AT_LD}")
        A(f"global_load_dwordx2 {vr(XR+2*i,2)}, v8, s[26:27] offset:{256*i}")
    for i in range(5):
        A(f"global_load_dwordx2 {vr(WR+2*i,2)}, v5, s[28:29] offset:{256*i}")
    A(f"v_mov_b32 v12, {ONE_LO}")
    A(f"v_mov_b32 v13, {ONE_HI}")
    A("v_mov_b32 v14, 0x3f803f80")
    for r in (10, 11, 16, 17):
        A(f"v_mov_b32 v{r}, 0")
    A(f"v_add_u32 v9, {WS_L2}, v8")
    H, T = 56, 68
    A("s_waitcnt vmcnt(5)")
    stamp(A, 2)
    frag_loads("lo")
    N = 10
    for i in range(N):
        A(f"v_lshlrev_b32 v{T+2*i}, 16, v{AR+i}")
        A(f"v_and_b32 v{T+2*i+1}, 0xffff0000, v{AR+i}")
    for i in range(N):
        A(f"v_dot2_f32_bf16 v{T+2*i}, v{XR+i}, v12, v{T+2*i}")
        A(f"v_dot2_f32_bf16 v{T+2*i+1}, v{XR+i}, v13, v{T+2*i+1}")
    for i in range(N):
        A(f"v_cvt_pk_bf16_f32 v{H+i}, v{T+2*i}, v{T+2*i+1}")
    for i in range(0, N, 2):
        A(f"v_dot2c_f32_bf16 v10, v{H+i}, v14")
        A(f"v_dot2c_f32_bf16 v11, v{H+i}, v{H+i}")
        A(f"v_dot2c_f32_bf16 v16, v{H+i+1}, v14")
        A(f"v_dot2c_f32_bf16 v17, v{H+i+1}, v{H+i+1}")
    A("s_nop 2")
    A("v_add_f32 v10, v10, v16")
    A("v_add_f32 v11, v11, v17")

    def red(regs, tmps):
        for sh in (8, 4, 2, 1):
            for r in regs:
                A(f"v_add_f32_dpp v{r}, v{r}, v{r} row_ror:{sh} row_mask:0xf bank_mask:0xf")
        for r, t in zip(regs, tmps):
            A(f"v_mov_b32 v{t}, v{r}")
        for r, t in zip(regs, tmps):
            A(f"v_permlane16_swap_b32 v{r}, v{t}")
        for r, t in zip(regs, tmps):
            A(f"v_add_f32 v{r}, v{r}, v{t}")
    red([10, 11], [16, 17])
    ln_finish(A, 10, 11, 15)
    A("v_sub_f32 v10, 0, v10")
    L, O = AR, XR
    for i in range(N):
        A(f"v_dot2_f32_bf16 v{T+2*i}, v{H+i}, v12, v10")
        A(f"v_dot2_f32_bf16 v{T+2*i+1}, v{H+i}, v13, v10")
    for i in range(N):
        A(f"v_cvt_pk_bf16_f32 v{L+i}, v{T+2*i}, v{T+2*i+1}")
    for i in range(N):
        A(f"v_lshlrev_b32 v{T+2*i}, 16, v{L+i}")
        A(f"v_and_b32 v{T+2*i+1}, 0xffff0000, v{L+i}")
    A("v_mov_b32 v16, v11")
    A("v_mov_b32 v17, v11")
    for i in range(N):
        A(f"v_pk_mul_f32 {vr(T+2*i,2)}, {vr(T+2*i,2)}, v[16:17]")
    for i in range(N):
        A(f"v_cvt_pk_bf16_f32 v{L+i}, v{T+2*i}, v{T+2*i+1}")
    for i in range(5):
        A(f"global_store_dwordx2 v9, {vr(L+2*i,2)}, s[32:33] offset:{256*i} {SC}")
    A("v_mov_b32 v14, 0")
    A("v_mov_b32 v15, 0")
    for i in range(N):
        A(f"v_lshlrev_b32 v{T+2*i}, 16, v{L+i}")
        A(f"v_and_b32 v{T+2*i+1}, 0xffff0000, v{L+i}")
    for i in range(N):
        A(f"v_dot2_f32_bf16 v{T+2*i}, v{H+i}, v12, v{T+2*i}")
        A(f"v_dot2_f32_bf16 v{T+2*i+1}, v{H+i}, v13, v{T+2*i+1}")
    for i in range(N):
        A(f"v_cvt_pk_bf16_f32 v{O+i}, v{T+2*i}, v{T+2*i+1}")
    for i in range(5):
        A(f"global_store_dwordx2 v8, {vr(O+2*i,2)}, s[30:31] offset:{256*i} {SC}")
    stamp(A, 3)
    A("s_waitcnt vmcnt(10)")
    for i in range(0, N, 2):
        A(f"v_dot2c_f32_bf16 v14, v{L+i}, v{WR+i}")
        A(f"v_dot2c_f32_bf16 v15, v{L+i+1}, v{WR+i+1}")
    A("s_nop 2")
    A("v_add_f32 v14, v14, v15")
    red([14], [15])
    A("v_cvt_pk_bf16_f32 v40, v14, v14")
    A("v_and_b32 v40, 0xffff0000, v40")
    A("v_ashrrev_i32 v41, 31, v40")
    A("v_or_b32 v41, 0x80000000, v41")
    A("v_xor_b32 v40, v40, v41")
    A("v_and_b32 v40, 0xffff0000, v40")
    A("s_lshl_b32 s6, s2, 3")
    A("v_add_u32 v42, s6, v7")
    A("v_sub_u32 v43, 2047, v42")
    A("v_or_b32 v40, v40, v43")
    A("v_lshlrev_b32 v42, 2, v7")
    A("v_cmp_eq_u32 vcc, 0, v4")
    A("s_mov_b64 exec, vcc")
    A("ds_write_b32 v42, v40 offset:896")
    A("s_mov_b64 exec, -1")
    A("s_waitcnt vmcnt(0) lgkmcnt(0)")
    A("s_barrier")
    A("s_cmp_lg_u32 s3, 0")
    A("s_cbranch_scc1 KD_KPUB")
    A("v_lshlrev_b32 v42, 2, v2")
    A("ds_read_b32 v40, v42 offset:896")
    A(f"s_lshl_b32 s6, s2, {KEY_STRIDE.bit_length() - 1}")
    A(f"s_add_u32 s6, s6, {WS_RK}")
    A("v_add_u32 v42, s6, v42")
    A("s_waitcnt lgkmcnt(0)")
    A("s_mov_b64 exec, 0xff")
    A(f"global_store_dword v42, v40, s[32:33] {SC}")
    A("s_mov_b64 exec, -1")
    A.label("KD_KPUB")
    stamp(A, 4)
    sel_part1(A, "KD_KP", KD_F1_FIRST)
    A.label("KD_SEL2")
    sel_part2(A)
    A("s_cmp_eq_u32 s36, 1")
    A("s_cbranch_scc1 KD_F2")
    AFR = 60
    A("v_and_b32 v17, 7, v2")
    A("v_lshlrev_b32 v17, 2, v17")
    A("v_add_u32 v17, s6, v17")
    A("ds_read_b32 v16, v17")
    A("v_lshrrev_b32 v21, 4, v2")
    A("v_lshlrev_b32 v21, 4, v21")
    A("s_mul_i32 s6, s35, 320")
    A(f"s_add_u32 s6, s6, {WS_L2}")
    A("v_add_u32 v21, s6, v21")
    A("s_waitcnt lgkmcnt(0)")
    A("v_and_b32 v18, 0x7ff, v16")
    A("v_sub_u32 v18, 2047, v18")
    A("v_mul_u32_u24 v20, 1280, v18")
    A("v_add_u32 v20, v20, v21")
    for i in range(5):
        A(f"global_load_dwordx4 {vr(AFR+4*i,4)}, v20, s[32:33] offset:{64*i} {SC}")
    stamp(A, 6)
    for i in range(4):
        A(f"v_mov_b32 v{24+i}, 0")
    A("v_lshlrev_b32 v28, 4, v2")
    A("s_lshl_b32 s6, s3, 10")
    A("v_add_u32 v29, s6, v28")
    for i in range(5):
        A(f"s_waitcnt vmcnt({4-i})")
        A(f"v_mfma_f32_16x16x32_bf16 v[24:27], {vr(AFR+4*i,4)}, {vr(FR+4*i,4)}, v[24:27]")
    stamp(A, 7)
    A("ds_write_b128 v29, v[24:27] offset:1024")
    A("s_waitcnt lgkmcnt(0)")
    A("s_barrier")
    A("s_cmp_lg_u32 s35, 0")
    A("s_cbranch_scc1 KD_DONE")
    A("v_lshrrev_b32 v56, 3, v2")
    A("v_and_b32 v57, 7, v2")
    A("v_lshrrev_b32 v58, 2, v56")
    A("v_lshlrev_b32 v58, 8, v58")
    A("v_lshl_add_u32 v58, v57, 4, v58")
    A("v_and_b32 v59, 3, v56")
    A("v_lshl_add_u32 v58, v59, 2, v58")
    A("s_lshl_b32 s6, s3, 10")
    A("v_add_u32 v58, s6, v58")
    for w in range(4):
        A(f"ds_read_b32 v{40+w}, v58 offset:{1024 + 1024*w}")
        A(f"ds_read_b32 v{44+w}, v58 offset:{1024 + 1024*w + 128}")
    A("v_lshlrev_b32 v59, 1, v2")
    A("s_lshl_b32 s6, s37, 7")
    A(f"s_add_u32 s6, s6, {WS_ACT}")
    A("v_add_u32 v59, s6, v59")
    A("s_waitcnt lgkmcnt(0)")
    A("v_add_f32 v40, v40, v41")
    A("v_add_f32 v42, v42, v43")
    A("v_add_f32 v44, v44, v45")
    A("v_add_f32 v46, v46, v47")
    A("v_add_f32 v40, v40, v42")
    A("v_add_f32 v44, v44, v46")
    A("v_cvt_pk_bf16_f32 v41, v40, v44")
    A("v_lshlrev_b32 v40, 16, v41")
    A("v_and_b32 v44, 0xffff0000, v41")
    A(f"v_mul_f32 v42, {hex(fbits(-LOG2E))}, v40")
    A("v_exp_f32 v42, v42")
    A("v_add_f32 v42, 1.0, v42")
    A("v_rcp_f32 v42, v42")
    A("v_mul_f32 v40, v40, v42")
    A("v_cvt_pk_bf16_f32 v40, v40, v40")
    A("v_and_b32 v40, 0xffff0000, v40")
    A("v_mul_f32 v40, v40, v44")
    A("v_cvt_pk_bf16_f32 v40, v40, v40")
    A(f"global_store_short v59, v40, s[32:33] {SC}")
    A.label("KD_DONE")
    k_end(A, 2)

    A.label("KD_F2")
    for i in range(4):
        A(f"v_mov_b32 v{36+i}, 0")
        A(f"v_mov_b32 v{32+i}, 0")
        A(f"v_mov_b32 v{52+i}, 0")
    A("s_add_u32 s39, s34, 64")
    A("s_cmp_eq_u32 s3, 0")
    A("s_cselect_b32 s39, s34, s39")
    A("s_cselect_b32 s9, 1, 0")
    A("s_cmp_eq_u32 s3, 1")
    A("s_cselect_b32 s10, s38, 0")
    A("s_or_b32 s9, s9, s10")
    A("s_cmp_eq_u32 s9, 0")
    A("s_cbranch_scc1 KD_F2SL")
    A("v_lshrrev_b32 v17, 3, v2")
    A("v_lshlrev_b32 v17, 2, v17")
    A("v_add_u32 v17, s6, v17")
    A("ds_read_b32 v8, v17")
    A("v_and_b32 v16, 7, v2")
    A("s_lshl_b32 s6, s39, 3")
    A("v_add_u32 v16, s6, v16")
    A("v_lshrrev_b32 v17, 2, v16")
    A("v_lshlrev_b32 v17, 6, v17")
    A("v_and_b32 v18, 3, v16")
    A("v_lshl_add_u32 v17, v18, 1, v17")
    A(f"v_add_u32 v17, {WS_AT}, v17")
    A("s_waitcnt lgkmcnt(0)")
    A("v_and_b32 v40, 0x7ff, v8")
    A("v_sub_u32 v40, 2047, v40")
    A("v_mul_u32_u24 v36, 1280, v40")
    A("v_lshl_add_u32 v36, v16, 1, v36")
    A(f"v_add_u32 v18, {WS_L2}, v36")
    A(f"global_load_ushort v20, v18, s[32:33] {SC}")
    A("global_load_ushort v24, v36, s[26:27]")
    A("v_lshrrev_b32 v18, 3, v40")
    A("v_mul_u32_u24 v18, 10240, v18")
    A("v_and_b32 v19, 7, v40")
    A("v_lshl_add_u32 v18, v19, 3, v18")
    A("v_add_u32 v18, v18, v17")
    A("global_load_ushort v44, v18, s[32:33]")
    A("v_and_b32 v12, 0xffff0000, v8")
    A("v_ashrrev_i32 v48, 31, v12")
    A("v_not_b32 v48, v48")
    A("v_or_b32 v48, 0x80000000, v48")
    A("v_xor_b32 v12, v12, v48")
    A("v_and_b32 v12, 0xffff0000, v12")
    A(f"v_mul_f32 v12, {hex(fbits(-LOG2E))}, v12")
    A("v_exp_f32 v12, v12")
    A("v_add_f32 v12, 1.0, v12")
    A("v_rcp_f32 v12, v12")
    bf16_round(A, 12)
    A("s_waitcnt vmcnt(0)")
    A("v_lshlrev_b32 v24, 16, v24")
    A("v_lshlrev_b32 v44, 16, v44")
    A("v_lshlrev_b32 v20, 16, v20")
    A("v_add_f32 v24, v24, v44")
    bf16_round(A, 24)
    A(f"s_sleep {KD_A0}")
    A("s_branch KD_F2B2")
    A.label("KD_F2SL")
    A(f"s_sleep {KD_A1}")
    A.label("KD_F2B2")
    stamp(A, 6)
    A("s_mov_b32 s12, 0")
    A("v_mov_b32 v61, 0xffff")
    A.label("KD_POLL")
    for i in range(3):
        A(f"global_load_dwordx4 {vr(A2+4*i,4)}, v99, s[32:33] offset:{1024*i} {SC}")
    A("s_waitcnt vmcnt(0)")
    A(f"v_pk_max_u16 v62, v{A2}, v{A2+1}")
    A(f"v_pk_max_u16 v63, v{A2+2}, v{A2+3}")
    for i in range(4, 12, 2):
        A(f"v_pk_max_u16 v62, v62, v{A2+i}")
        A(f"v_pk_max_u16 v63, v63, v{A2+i+1}")
    A("v_pk_max_u16 v62, v62, v63")
    A("v_lshrrev_b32 v63, 16, v62")
    A("v_and_b32 v62, 0xffff, v62")
    A("v_max_u32 v62, v62, v63")
    A("v_cmp_eq_u32 vcc, v61, v62")
    A("s_cmp_eq_u64 vcc, 0")
    A("s_cbranch_scc1 KD_ACT")
    A("s_add_u32 s12, s12, 1")
    A(f"s_cmp_ge_u32 s12, {SPIN_MAX}")
    A("s_cbranch_scc1 KD_ACT")
    A(f"s_sleep {KC_SLEEP}")
    A("s_branch KD_POLL")
    A.label("KD_ACT")
    A("v_lshlrev_b32 v28, 4, v2")
    A("s_lshl_b32 s6, s3, 10")
    A("v_add_u32 v29, s6, v28")
    for i in range(3):
        A(f"v_mfma_f32_16x16x32_bf16 v[32:35], {vr(A2+4*i,4)}, {vr(FR+4*i,4)}, v[32:35]")
    A("s_cmp_eq_u32 s38, 0")
    A("s_cbranch_scc1 KD_NOB")
    for i in range(3):
        A(f"v_mfma_f32_16x16x32_bf16 v[52:55], {vr(A2+4*i,4)}, {vr(FRB+4*i,4)}, v[52:55]")
    for i in range(4):
        A(f"v_mov_b32 v{64+i}, v{52+i}")
    for i in range(4):
        A(f"v_permlane32_swap_b32 v{52+i}, v{64+i}")
    for i in range(4):
        A(f"v_add_f32_dpp v{52+i}, v{64+i}, v{52+i} row_shl:8 row_mask:0xf bank_mask:0xf")
    A("ds_write_b128 v29, v[52:55] offset:9216")
    A.label("KD_NOB")
    stamp(A, 7)
    for i in range(4):
        A(f"v_mov_b32 v{60+i}, v{32+i}")
    for i in range(4):
        A(f"v_permlane32_swap_b32 v{32+i}, v{60+i}")
    for i in range(4):
        A(f"v_add_f32_dpp v{32+i}, v{60+i}, v{32+i} row_shl:8 row_mask:0xf bank_mask:0xf")
    A("ds_write_b128 v29, v[32:35] offset:1024")
    A("s_waitcnt lgkmcnt(0)")
    A("s_barrier")
    A("s_cmp_eq_u32 s9, 0")
    A("s_cbranch_scc1 KD_DONE2")
    A("v_lshrrev_b32 v56, 3, v2")
    A("v_and_b32 v57, 7, v2")
    A("v_lshrrev_b32 v58, 2, v56")
    A("v_lshlrev_b32 v58, 8, v58")
    A("v_lshl_add_u32 v58, v57, 4, v58")
    A("v_and_b32 v59, 3, v56")
    A("v_lshl_add_u32 v58, v59, 2, v58")
    A("s_lshl_b32 s6, s3, 13")
    A("v_add_u32 v58, s6, v58")
    for w in range(8):
        A(f"ds_read_b32 v{40+w}, v58 offset:{1024 + 1024*w}")
    A("s_waitcnt lgkmcnt(0)")
    for st in (4, 2, 1):
        for j in range(st):
            A(f"v_add_f32 v{40+j}, v{40+j}, v{40+st+j}")
    bf16_round(A, 40)
    A("v_mul_f32 v40, v40, v12")
    bf16_round(A, 40)
    A("v_add_f32 v40, v40, v20")
    bf16_round(A, 40)
    A("v_add_f32 v40, v40, v24")
    A("v_cvt_pk_bf16_f32 v40, v40, v40")
    A(f"global_store_short v36, v40, s[30:31] {SC}")
    A.label("KD_DONE2")
    k_end(A, 2)
    A.label("KD_END")
    A("s_endpgm")


KD_A0 = int(os.environ.get("KD_A0", "16"))
KD_A1 = int(os.environ.get("KD_A1", "36"))

KD_TMPL = """.amdhsa_kernel {name}
  .amdhsa_next_free_vgpr {vgpr}
  .amdhsa_next_free_sgpr 102
  .amdhsa_accum_offset {acc}
  .amdhsa_group_segment_fixed_size 0
  .amdhsa_kernarg_size 120
  .amdhsa_user_sgpr_count 2
  .amdhsa_user_sgpr_kernarg_segment_ptr 1
  .amdhsa_system_sgpr_workgroup_id_x 1
.end_amdhsa_kernel
"""

HEADER = """; Kernarg layout (120 bytes, ptrs only): in0..in11 at 0..88, d_out 96, d_debug 104, d_ws 112
"""


def build(kernels):
    s = HEADER
    for label, fn, grid, block, lds, vgpr in kernels:
        s += f"; @launch kernel={label} grid=({grid},1,1) block=({block},1,1) lds={lds}\n"
    s += '.amdgcn_target "amdgcn-amd-amdhsa--gfx950"\n.text\n'
    done = set()
    for label, fn, grid, block, lds, vgpr in kernels:
        if label in done:
            continue
        done.add(label)
        A = Asm()
        fn(A)
        s += f".globl {label}\n.p2align 8\n.type {label},@function\n{label}:\n" + A.finish() + "\n"
    s += '.section .rodata,"a"\n'
    done = set()
    for label, fn, grid, block, lds, vgpr in kernels:
        if label in done:
            continue
        done.add(label)
        s += ".p2align 6\n" + KD_TMPL.format(name=label, vgpr=vgpr, acc=min(256, (vgpr + 3) // 4 * 4))
    return s


PREFILL[0] = True
KERNELS = [
    ("ka_kernel", ka, 256, 1024, KA_LDS, 128),
    ("kd_kernel", kd, 256, 512, KD_LDS, 136),
]

if __name__ == "__main__":
    if len(sys.argv) > 2 and sys.argv[2] == "stamp":
        STAMP[0] = True
    text = build(KERNELS)
    open(sys.argv[1], "w").write(text)
    print("wrote", sys.argv[1], len(text), "bytes")
```

```python
import sys, os, struct
sys.path.insert(0, os.path.dirname(os.path.abspath(__file__)))
from asmlib import Asm

NAME = "sequential_preLN__ssm_conv_s4d__moe_arch_mod__prompt"

WS_UT = 0x0000000
WS_KD = 0x0280000
WS_SC = 0x03C0000
WS_AT = 0x0400000
WS_L2 = 0x0680000
WS_RK = 0x0900000
WS_ACT = 0x0910000
WS_SEL = 0x0918000
WS_WGU = 0x0A00000
WS_WD = 0x0E00000
WS_STAMP = 0x1800000
STAMP = [False]
NSTAMP = 12
ST_OPT = [""]


def k_begin(A):
    if STAMP[0]:
        A("s_memrealtime s[94:95]")
        for i in range(NSTAMP):
            A(f"s_mov_b64 s[{60+2*i}:{61+2*i}], 0")
        A("s_memtime s[60:61]")


def stamp(A, i):
    if STAMP[0]:
        A(f"s_memtime s[{60+2*i}:{61+2*i}]")


def k_end(A, kidx):
    if STAMP[0]:
        A(f"s_memtime s[{60+2*(NSTAMP-2)}:{61+2*(NSTAMP-2)}]")
        A("s_waitcnt vmcnt(0) lgkmcnt(0)")
        A("s_memrealtime s[96:97]")
        A(f"s_memtime s[{60+2*(NSTAMP-1)}:{61+2*(NSTAMP-1)}]")
        A("s_mov_b64 exec, -1")
        A("v_lshrrev_b32 v1, 6, v0")
        A("s_lshl_b32 s98, s2, 3")
        A("v_add_u32 v1, s98, v1")
        A("v_lshlrev_b32 v1, 7, v1")
        A(f"v_add_u32 v1, {WS_STAMP + kidx * 0x200000}, v1")
        A("s_waitcnt lgkmcnt(0)")
        A("v_mov_b32 v2, s94")
        A("v_mov_b32 v3, s95")
        A("v_mov_b32 v4, s96")
        A("v_mov_b32 v5, s97")
        A("global_store_dwordx4 v1, v[2:5], s[32:33]")
        for i in range(0, NSTAMP, 2):
            for j in range(4):
                A(f"v_mov_b32 v{2+j}, s{60+2*i+j}")
            A(f"global_store_dwordx4 v1, v[2:5], s[32:33] offset:{16+8*i}")
    A("s_endpgm")


def fbits(x):
    return struct.unpack("<I", struct.pack("<f", x))[0]


LOG2E = 1.4426950408889634
L2E_HI = fbits(LOG2E)
L2E_HI_F = struct.unpack("<f", struct.pack("<I", L2E_HI))[0]
L2E_LO = fbits(LOG2E - L2E_HI_F)
LN2 = fbits(0.6931471805599453)
INV2PI = fbits(0.15915494309189535)
INV640 = fbits(1.0 / 640.0)
EPS = fbits(1e-5)
ONE_LO = 0x00003f80
ONE_HI = 0x3f800000


def vr(a, n):
    return f"v[{a}:{a+n-1}]"


def bf16_round(A, reg):
    A(f"v_cvt_pk_bf16_f32 v{reg}, v{reg}, v{reg}")
    A(f"v_and_b32 v{reg}, 0xffff0000, v{reg}")


def exp_bf16(A, dst, src, t0, t1):
    A(f"v_mul_f32 v{t0}, s90, v{src}")
    A(f"v_fma_f32 v{t1}, v{src}, s90, -v{t0}")
    A(f"v_fma_f32 v{t1}, v{src}, s91, v{t1}")
    A(f"v_exp_f32 v{dst}, v{t0}")
    A(f"v_mul_f32 v{t1}, s92, v{t1}")
    A(f"v_fma_f32 v{dst}, v{dst}, v{t1}, v{dst}")
    bf16_round(A, dst)


def cmul(A, d, a, b):
    A(f"v_pk_mul_f32 {vr(d,2)}, {vr(a,2)}, {vr(b,2)} op_sel:[0,0] op_sel_hi:[0,1]")
    A(f"v_pk_fma_f32 {vr(d,2)}, {vr(a,2)}, {vr(b,2)}, {vr(d,2)} op_sel:[1,1,0] op_sel_hi:[1,0,1] neg_lo:[0,1,0]")


def ln_finish(A, s1, s2, t):
    A(f"v_mul_f32 v{s1}, {INV640}, v{s1}")
    A(f"v_mul_f32 v{s2}, {INV640}, v{s2}")
    A(f"v_fma_f32 v{s2}, -v{s1}, v{s1}, v{s2}")
    A(f"v_max_f32 v{s2}, 0, v{s2}")
    A(f"v_cvt_pk_bf16_f32 v{t}, v{s1}, v{s2}")
    A(f"v_lshlrev_b32 v{s1}, 16, v{t}")
    A(f"v_and_b32 v{s2}, 0xffff0000, v{t}")
    A(f"v_add_f32 v{s2}, {EPS}, v{s2}")
    bf16_round(A, s2)
    A(f"v_sqrt_f32 v{s2}, v{s2}")
    bf16_round(A, s2)
    A(f"v_rcp_f32 v{s2}, v{s2}")


def pair_swizzle(A, dst, src, tmp):
    A(f"s_and_b32 s{dst}, s{src}, 7")
    A(f"s_lshl_b32 s{dst}, s{dst}, 1")
    A(f"s_bfe_u32 s{tmp}, s{src}, 0x10003")
    A(f"s_or_b32 s{dst}, s{dst}, s{tmp}")
    A(f"s_andn2_b32 s{tmp}, s{src}, 15")
    A(f"s_or_b32 s{dst}, s{dst}, s{tmp}")


def wt_role(A, pfx, first_wg, nwaves_per_wg, lds_per_wave, it_lo, it_hi, kidx, opt, stride):
    A.label(f"{pfx}_WTR")
    A("s_load_dwordx4 s[16:19], s[0:1], 72")
    A("s_load_dwordx2 s[20:21], s[0:1], 88")
    A("v_lshrrev_b32 v1, 6, v0")
    A("v_readfirstlane_b32 s3, v1")
    A("v_and_b32 v2, 63, v0")
    if nwaves_per_wg > 0:
        A(f"s_sub_u32 s4, s2, {first_wg}")
        A(f"s_mul_i32 s4, s4, {nwaves_per_wg}")
        A("s_add_u32 s4, s4, s3")
        A(f"s_add_u32 s4, s4, {it_lo}")
    elif nwaves_per_wg == -2:
        A("s_sub_u32 s4, s3, 4")
        A("s_mul_i32 s4, s4, 96")
        A("s_add_u32 s4, s4, s2")
    else:
        A("s_sub_u32 s4, s3, 3")
        A("s_mul_i32 s4, s4, 96")
        A("s_add_u32 s4, s4, s2")
    A(f"s_mul_i32 s5, s3, {lds_per_wave}")
    A("v_lshrrev_b32 v3, 3, v2")
    A("v_and_b32 v4, 7, v2")
    A("v_lshlrev_b32 v4, 4, v4")
    A("v_lshrrev_b32 v5, 4, v2")
    A("v_lshlrev_b32 v5, 3, v5")
    A("v_and_b32 v6, 15, v2")
    A("v_lshrrev_b32 v6, 2, v6")
    A("v_add_u32 v5, v5, v6")
    A("v_lshlrev_b32 v5, 7, v5")
    A("v_and_b32 v6, 3, v2")
    A("v_lshlrev_b32 v7, 3, v6")
    A("v_add_u32 v8, v5, v7")
    A("v_add_u32 v8, s5, v8")
    A("v_add_u32 v9, 4080, v8")
    A("v_cmp_gt_u32 vcc, 2, v6")
    A("v_cndmask_b32 v9, v9, v8, vcc")
    A("v_lshlrev_b32 v10, 4, v2")
    A("v_and_b32 v13, 15, v2")
    A("v_lshrrev_b32 v14, 3, v13")
    A("v_mul_u32_u24 v14, 24576, v14")
    A("v_and_b32 v13, 7, v13")
    A("v_lshlrev_b32 v13, 4, v13")
    A("v_add_u32 v14, v14, v13")
    A("v_lshrrev_b32 v13, 4, v2")
    A("v_lshlrev_b32 v13, 7, v13")
    A("v_add_u32 v14, v14, v13")
    A("v_mul_u32_u24 v50, 3072, v3")
    A("v_add_u32 v50, v50, v4")
    A("v_mul_u32_u24 v51, 1280, v3")
    A("v_add_u32 v51, v51, v4")
    A("s_waitcnt lgkmcnt(0)")
    A("s_mov_b32 s6, s4")
    A(f"s_cmp_ge_u32 s6, {it_hi}")
    A(f"s_cbranch_scc1 {pfx}_WT_FIN")
    A.label(f"{pfx}_WT_LOOP")
    A("s_cmp_ge_u32 s6, 480")
    A(f"s_cbranch_scc1 {pfx}_WT_DOWN")
    A("s_mul_hi_u32 s7, s6, 0xccccccd")
    A("s_mul_i32 s8, s7, 20")
    A("s_sub_u32 s8, s6, s8")
    A("s_mul_i32 s9, s8, 98304")
    A("s_lshl_b32 s10, s7, 7")
    A("s_add_u32 s9, s9, s10")
    A("v_add_u32 v11, s9, v50")
    for j in range(4):
        A(f"s_add_u32 s10, s5, {1024*j}")
        A("s_mov_b32 m0, s10")
        A("global_load_lds_dwordx4 v11, s[16:17]")
        A(f"s_add_u32 s10, s5, {4096 + 1024*j}")
        A("s_mov_b32 m0, s10")
        A("global_load_lds_dwordx4 v11, s[18:19]")
        if j < 3:
            A("v_add_u32 v11, 24576, v11")
    A("s_mul_i32 s9, s7, 163840")
    A("s_lshl_b32 s10, s8, 10")
    A("s_add_u32 s9, s9, s10")
    A(f"s_add_u32 s9, s9, {WS_WGU}")
    A("v_add_u32 v12, s9, v10")
    A("s_waitcnt vmcnt(0)")
    for jj in range(8):
        A(f"ds_read_b64_tr_b16 {vr(16+4*jj,2)}, v9 offset:{16*jj}")
        A(f"ds_read_b64_tr_b16 {vr(18+4*jj,2)}, v9 offset:{16*jj + 512}")
    A("s_waitcnt lgkmcnt(0)")
    for jj in range(8):
        A(f"global_store_dwordx4 v12, {vr(16+4*jj,4)}, s[32:33] {opt}")
        if jj < 7:
            A("v_add_u32 v12, 20480, v12")
    A(f"s_branch {pfx}_WT_NEXT")
    A.label(f"{pfx}_WT_DOWN")
    A("s_sub_u32 s11, s6, 480")
    A("s_mul_hi_u32 s7, s11, 0x5555556")
    A("s_mul_i32 s8, s7, 48")
    A("s_sub_u32 s8, s11, s8")
    A("s_mul_i32 s9, s8, 40960")
    A("s_lshl_b32 s10, s7, 7")
    A("s_add_u32 s9, s9, s10")
    A("v_add_u32 v11, s9, v51")
    for j in range(4):
        A(f"s_add_u32 s10, s5, {1024*j}")
        A("s_mov_b32 m0, s10")
        A("global_load_lds_dwordx4 v11, s[20:21]")
        if j < 3:
            A("v_add_u32 v11, 10240, v11")
    A("s_mul_i32 s9, s7, 196608")
    A("s_lshl_b32 s10, s8, 9")
    A("s_add_u32 s9, s9, s10")
    A(f"s_add_u32 s9, s9, {WS_WD}")
    A("v_add_u32 v12, s9, v14")
    A("s_waitcnt vmcnt(0)")
    for jj in range(4):
        A(f"ds_read_b64_tr_b16 {vr(16+4*jj,2)}, v8 offset:{32*jj}")
        A(f"ds_read_b64_tr_b16 {vr(18+4*jj,2)}, v8 offset:{32*jj + 512}")
    A("s_waitcnt lgkmcnt(0)")
    for jj in range(4):
        A(f"global_store_dwordx4 v12, {vr(16+4*jj,4)}, s[32:33] {opt}")
        if jj < 3:
            A("v_add_u32 v12, 49152, v12")
    A.label(f"{pfx}_WT_NEXT")
    A(f"s_add_u32 s6, s6, {stride}")
    A(f"s_cmp_lt_u32 s6, {it_hi}")
    A(f"s_cbranch_scc1 {pfx}_WT_LOOP")
    A.label(f"{pfx}_WT_FIN")
    k_end(A, kidx)


K1_ROWB = 288
K1_BUF = 16 * K1_ROWB


def cmul_batch(A, items):
    for d, a, b in items:
        A(f"v_pk_mul_f32 {vr(d,2)}, {vr(a,2)}, {vr(b,2)} op_sel:[0,0] op_sel_hi:[0,1]")
    for d, a, b in items:
        A(f"v_pk_fma_f32 {vr(d,2)}, {vr(a,2)}, {vr(b,2)}, {vr(d,2)} op_sel:[1,1,0] op_sel_hi:[1,0,1] neg_lo:[0,1,0]")


KG_SZ = 2 * K1_BUF
KEO_ST = 27712
KEO_BASE = 0
KA_KE, KA_KO = 0, 4160
KA_U = 12 * KG_SZ
U_ST = 4608
KA_T = KA_U + 4 * U_ST
T_ST = 1600
KA_SC = KA_T + 4 * T_ST
KA_LN = KA_SC + 64
KA_CNT = KA_LN
KA_STATS = KA_LN + 128
KA_STAGE = KA_LN + 192
KA_LDS = KA_STAGE + 10240 + 2560


def group_sync(A, idx, n, lbl):
    A("s_waitcnt lgkmcnt(0)")
    A(f"v_mov_b32 v18, {KA_CNT + 4*idx}")
    A("v_mov_b32 v19, 1")
    A("s_mov_b64 exec, 1")
    A("ds_add_u32 v18, v19")
    A("s_mov_b64 exec, -1")
    A("s_mov_b32 s12, 0")
    A.label(lbl)
    A("ds_read_b32 v19, v18")
    A("s_waitcnt lgkmcnt(0)")
    A("v_readfirstlane_b32 s13, v19")
    A(f"s_cmp_ge_u32 s13, {n}")
    A(f"s_cbranch_scc1 {lbl}_OK")
    A("s_add_u32 s12, s12, 1")
    A(f"s_cmp_lt_u32 s12, {1 << 22}")
    A(f"s_cbranch_scc1 {lbl}")
    A.label(lbl + "_OK")
NPROD = 96
PREFILL = [False]
TLBW = int(os.environ.get('TLBW', '0'))
KEY_STRIDE = int(os.environ.get('KEY_STRIDE', '32'))
WS_FLAG = 0x0930000
WS_EPOCH = 0x0928000
SC = os.environ.get('SCMOD', 'sc1')
PMOD = os.environ.get('PMOD', SC)
FMOD = os.environ.get('FMOD', SC)
SPIN_MAX = 1 << 16
POLL_SLEEP = int(os.environ.get('POLL_SLEEP', '6'))
POLL_FIRST = int(os.environ.get('POLL_FIRST', '16'))
FLAG64 = int(os.environ.get('FLAG64', '1'))


DBGSEL = {0: [(100, 0, 0), (100, 13, 8)], 2: [(20, 0, 0)]}


def k_end16(A, kidx):
    if STAMP[0]:
        uid = len(A.lines)
        for (wg, wave, slot) in DBGSEL[kidx]:
            lbl = f"DBG_{kidx}_{uid}_{wg}_{wave}"
            A(f"s_cmp_lg_u32 s2, {wg}")
            A(f"s_cbranch_scc1 {lbl}")
            A(f"s_cmp_lg_u32 s3, {wave}")
            A(f"s_cbranch_scc1 {lbl}")
            A(f"s_memtime s[{60+2*(NSTAMP-1)}:{61+2*(NSTAMP-1)}]")
            A("s_load_dwordx2 s[96:97], s[0:1], 104")
            A("s_waitcnt vmcnt(0) lgkmcnt(0)")
            if kidx == 0:
                A("s_add_u32 s96, s96, 512")
                A("s_addc_u32 s97, s97, 0")
            A("s_mov_b64 exec, 1")
            idxs = DBGIDX[(kidx, wave)]
            for k, i in enumerate(idxs):
                A(f"s_sub_u32 s98, s{60+2*i}, s60")
                A("v_mov_b32 v2, s98")
                off = 4 * (slot + k) if kidx == 0 else 4 * (12 + k) if False else 4 * (slot + k)
                A(f"v_mov_b32 v1, {4 * (DBGBASE[(kidx, wave)] + k)}")
                A("global_store_dword v1, v2, s[96:97]")
            A.label(lbl)
    A("s_endpgm")


DBGIDX = {(0, 0): [9, 2, 3, 5, 6, 11], (0, 13): [2, 6, 11], (2, 0): [2, 4, 5, 6, 7, 11, 1]}
DBGBASE = {(0, 0): 0, (0, 13): 6, (2, 0): 9}


k_end = k_end16


def arrive(A, idx):
    A("s_waitcnt lgkmcnt(0)")
    A(f"v_mov_b32 v18, {KA_CNT + 4*idx}")
    A("v_mov_b32 v19, 1")
    A("s_mov_b64 exec, 1")
    A("ds_add_u32 v18, v19")
    A("s_mov_b64 exec, -1")


def wait_count(A, idx, n, lbl, sleep=1):
    A(f"v_mov_b32 v18, {KA_CNT + 4*idx}")
    A("s_mov_b32 s12, 0")
    A.label(lbl)
    A("ds_read_b32 v19, v18")
    A("s_waitcnt lgkmcnt(0)")
    A("v_readfirstlane_b32 s13, v19")
    A(f"s_cmp_ge_u32 s13, {n}")
    A(f"s_cbranch_scc1 {lbl}_OK")
    A("s_add_u32 s12, s12, 1")
    if sleep:
        A(f"s_sleep {sleep}")
    A(f"s_cmp_lt_u32 s12, {1 << 22}")
    A(f"s_cbranch_scc1 {lbl}")
    A.label(lbl + "_OK")


def arrive_s(A, base_idx, sreg):
    A("s_waitcnt lgkmcnt(0)")
    A(f"s_lshl_b32 s12, s{sreg}, 2")
    A(f"s_add_u32 s12, s12, {KA_CNT + 4*base_idx}")
    A("v_mov_b32 v18, s12")
    A("v_mov_b32 v19, 1")
    A("s_mov_b64 exec, 1")
    A("ds_add_u32 v18, v19")
    A("s_mov_b64 exec, -1")


def wait_s(A, base_idx, sreg, n, lbl):
    A(f"s_lshl_b32 s12, s{sreg}, 2")
    A(f"s_add_u32 s12, s12, {KA_CNT + 4*base_idx}")
    A("v_mov_b32 v18, s12")
    A("s_mov_b32 s12, 0")
    A.label(lbl)
    A("ds_read_b32 v19, v18")
    A("s_waitcnt lgkmcnt(0)")
    A("v_readfirstlane_b32 s13, v19")
    A(f"s_cmp_ge_u32 s13, {n}")
    A(f"s_cbranch_scc1 {lbl}_OK")
    A("s_add_u32 s12, s12, 1")
    A("s_sleep 1")
    A(f"s_cmp_lt_u32 s12, {1 << 22}")
    A(f"s_cbranch_scc1 {lbl}")
    A.label(lbl + "_OK")


def poll_flags(A, lbl):
    if FLAG64 == 2:
        A("v_lshlrev_b32 v3, 7, v2")
        A(f"v_add_u32 v3, {WS_FLAG}, v3")
        for j in range(1, 4):
            A(f"v_add_u32 v{44+j}, {8192*j}, v3")
    elif FLAG64:
        A("v_lshlrev_b32 v3, 7, v2")
        A(f"v_add_u32 v3, {WS_FLAG}, v3")
    else:
        A("v_lshrrev_b32 v3, 4, v2")
        A("v_lshlrev_b32 v3, 7, v3")
        A("v_and_b32 v10, 15, v2")
        A("v_lshl_add_u32 v3, v10, 2, v3")
        A(f"v_add_u32 v3, {WS_FLAG}, v3")
    A("s_mov_b32 s12, 0")
    if POLL_FIRST:
        A(f"s_sleep {POLL_FIRST}")
    A.label(lbl)
    if FLAG64 == 2:
        A(f"global_load_dword v40, v3, s[32:33] {PMOD}")
        for j in range(1, 4):
            A(f"global_load_dword v{40+j}, v{44+j}, s[32:33] {PMOD}")
    elif FLAG64:
        A(f"global_load_dwordx4 v[40:43], v3, s[32:33] {PMOD}")
    else:
        for j in range(4):
            A(f"global_load_dword v{40+j}, v3, s[32:33] offset:{512*j} {PMOD}")
    A("s_waitcnt vmcnt(0)")
    A("v_cmp_ne_u32 vcc, s15, v40")
    A("v_cmp_ne_u32 s[20:21], s15, v41")
    A("v_cmp_ne_u32 s[22:23], s15, v42")
    A("v_cmp_ne_u32 s[24:25], s15, v43")
    A("s_or_b64 vcc, vcc, s[20:21]")
    A("s_or_b64 s[22:23], s[22:23], s[24:25]")
    A("s_or_b64 vcc, vcc, s[22:23]")
    A("s_cmp_eq_u64 vcc, 0")
    A(f"s_cbranch_scc1 {lbl}_SEEN")
    A("s_add_u32 s12, s12, 1")
    A(f"s_cmp_ge_u32 s12, {SPIN_MAX}")
    A(f"s_cbranch_scc1 {lbl}_SEEN")
    A(f"s_sleep {POLL_SLEEP}")
    A(f"s_branch {lbl}")
    A.label(lbl + "_SEEN")


def poll_epoch(A, lbl):
    A(f"v_mov_b32 v3, {WS_EPOCH}")
    A("s_mov_b32 s12, 0")
    A("s_sleep 48")
    A.label(lbl)
    A(f"global_load_dword v40, v3, s[32:33] {SC}")
    A("s_waitcnt vmcnt(0)")
    A("v_readfirstlane_b32 s13, v40")
    A("s_cmp_eq_u32 s13, s15")
    A(f"s_cbranch_scc1 {lbl}_SEEN")
    A("s_add_u32 s12, s12, 1")
    A(f"s_cmp_ge_u32 s12, {SPIN_MAX}")
    A(f"s_cbranch_scc1 {lbl}_SEEN")
    A("s_sleep 16")
    A(f"s_branch {lbl}")
    A.label(lbl + "_SEEN")


def kgen_wave(A):
    A(f"s_mov_b32 s90, {L2E_HI}")
    A(f"s_mov_b32 s91, {L2E_LO}")
    A(f"s_mov_b32 s92, {LN2}")
    A("v_and_b32 v3, 15, v2")
    A("v_lshrrev_b32 v4, 4, v2")
    A("s_cmp_eq_u32 s36, 1")
    A("s_cbranch_scc1 KA_A1")
    A("s_cmp_eq_u32 s36, 2")
    A("s_cbranch_scc1 KA_A2")
    A("v_lshrrev_b32 v5, 1, v4")
    A("v_lshlrev_b32 v5, 7, v5")
    A("v_lshl_add_u32 v5, v3, 3, v5")
    A("v_and_b32 v6, 1, v4")
    A("v_lshl_add_u32 v5, v6, 2, v5")
    A("s_branch KA_A3")
    A.label("KA_A1")
    A("v_lshlrev_b32 v5, 1, v3")
    A("v_add_u32 v5, v5, v4")
    A("v_add_u32 v5, 384, v5")
    A("v_lshlrev_b32 v6, 4, v4")
    A("v_add_u32 v6, v6, v3")
    A("v_add_u32 v6, 480, v6")
    A("v_cmp_gt_u32 vcc, 2, v4")
    A("v_cndmask_b32 v5, v6, v5, vcc")
    A("s_branch KA_A3")
    A.label("KA_A2")
    A("v_lshlrev_b32 v5, 6, v4")
    A("v_lshlrev_b32 v6, 2, v3")
    A("v_add_u32 v5, v5, v6")
    A("v_add_u32 v5, 256, v5")
    A("v_lshlrev_b32 v6, 2, v2")
    A("v_add_u32 v6, 520, v6")
    A("v_cmp_gt_u32 vcc, 2, v4")
    A("v_cndmask_b32 v5, v6, v5, vcc")
    A("v_mov_b32 v6, 640")
    A("v_cmp_eq_u32 vcc, 32, v2")
    A("v_cndmask_b32 v5, v5, v6, vcc")
    A.label("KA_A3")
    A(f"s_mul_i32 s11, s37, {T_ST}")
    A(f"s_add_u32 s11, s11, {KA_T}")
    A("v_lshlrev_b32 v29, 1, v5")
    A("v_add_u32 v29, s11, v29")
    A(f"v_mul_u32_u24 v32, {K1_ROWB}, v3")
    A("v_lshlrev_b32 v5, 4, v4")
    A("v_add_u32 v32, v32, v5")
    A("v_add_u32 v32, s7, v32")
    AW = 120
    A("v_lshlrev_b32 v5, 2, v2")
    A(f"v_add_u32 v{AW}, s7, v5")
    for k in range(1, 8):
        A(f"v_add_u32 v{AW+k}, {(k//4)*K1_BUF + (k%4)*4*K1_ROWB}, v{AW}")
    stamp(A, 1)
    A("s_waitcnt lgkmcnt(0)")
    A("s_bitcmp1_b32 s34, 0")
    A("s_cbranch_scc1 KA_ODD")
    A("s_lshl_b32 s6, s6, 16")
    A.label("KA_ODD")
    A("s_and_b32 s6, s6, 0xffff0000")
    A("v_mov_b32 v5, s6")
    exp_bf16(A, 33, 5, 6, 7)
    A("s_waitcnt vmcnt(0)")
    stamp(A, 2)
    for i in range(6):
        A(f"v_and_b32 v{14+i}, 0x7fff, v{14+i}")
    A("v_max3_u32 v14, v14, v15, v16")
    A("v_max3_u32 v17, v17, v18, v19")
    A("v_max_u32 v14, v14, v17")
    A("v_lshlrev_b32 v10, 16, v10")
    A("v_lshlrev_b32 v11, 16, v11")
    A("v_mul_f32 v6, s90, v10")
    A("v_max_u32_dpp v14, v14, v14 row_shr:1 row_mask:0xf bank_mask:0xf")
    A("v_fma_f32 v7, v10, s90, -v6")
    A("v_exp_f32 v34, v6")
    A("v_max_u32_dpp v14, v14, v14 row_shr:2 row_mask:0xf bank_mask:0xf")
    A("v_fma_f32 v7, v10, s91, v7")
    A("v_mul_f32 v35, v11, v33")
    A("v_max_u32_dpp v14, v14, v14 row_shr:4 row_mask:0xf bank_mask:0xf")
    A("v_mul_f32 v7, s92, v7")
    A(f"v_mul_f32 v35, {INV2PI}, v35")
    A("v_max_u32_dpp v14, v14, v14 row_shr:8 row_mask:0xf bank_mask:0xf")
    A("v_fma_f32 v34, v34, v7, v34")
    A("v_lshlrev_b32 v12, 16, v12")
    A("v_max_u32_dpp v14, v14, v14 row_bcast:15 row_mask:0xa bank_mask:0xf")
    A("v_cvt_pk_bf16_f32 v34, v34, v34")
    A("v_lshlrev_b32 v13, 16, v13")
    A("v_max_u32_dpp v14, v14, v14 row_bcast:31 row_mask:0xc bank_mask:0xf")
    A("v_and_b32 v34, 0xffff0000, v34")
    A("v_mul_f32 v34, v34, v33")
    A("v_readlane_b32 s8, v14, 63")
    A("v_mul_f32 v34, s90, v34")
    A("v_sub_f32 v34, 0, v34")
    A("s_lshr_b32 s8, s8, 7")
    A("s_max_u32 s8, s8, 6")
    A("s_min_u32 s8, s8, 253")
    A("s_sub_u32 s9, 260, s8")
    A("s_lshl_b32 s9, s9, 23")
    A("s_sub_u32 s10, s8, 132")

    def direct(t, p):
        lit = "1.0" if p == 1 else hex(fbits(float(p)))
        A(f"v_mul_f32 v{t}, {lit}, v34")
        A(f"v_mul_f32 v{t+1}, {lit}, v35")
        A(f"v_fract_f32 v{t+1}, v{t+1}")

    def direct2(t):
        A(f"v_exp_f32 v{t}, v{t}")
        A(f"v_cos_f32 v{t+2}, v{t+1}")
        A(f"v_sin_f32 v{t+3}, v{t+1}")

    def direct_fin(d, t):
        A(f"v_mul_f32 v{d}, v{t}, v{t+2}")
        A(f"v_mul_f32 v{d+1}, v{t}, v{t+3}")

    C = 36
    g = {i: 38 + 2 * (i - 1) for i in range(1, 9)}
    G128, G256, G512, G1024 = 54, 56, 58, 60
    T = [62, 64, 66, 68, 70, 72, 74, 76]
    PK = list(range(78, 86))
    BF, AF = 86, 102
    h = {1: g[8]}
    for i in range(2, 9):
        h[i] = AF + 2 * (i - 2)
    AF2 = 62
    direct(62, 1)
    direct(66, 8)
    direct(70, 128)
    direct2(62)
    direct2(66)
    direct2(70)
    A(f"v_mul_f32 v{C}, s9, v12")
    A(f"v_mul_f32 v{C+1}, s9, v13")
    A("v_ldexp_f32 v6, v33, s10")
    A("s_lshl_b32 s11, s37, 2")
    A(f"s_add_u32 s11, s11, {KA_SC}")
    A("v_mov_b32 v7, s11")
    A("ds_write_b32 v7, v6")
    direct_fin(g[1], 62)
    direct_fin(g[8], 66)
    direct_fin(G128, 70)
    stamp(A, 3)

    def wr(rows_src, buf, neg):
        regs = []
        for k, (row, src) in enumerate(rows_src):
            p = PK[k % 8]
            if src is None:
                A(f"v_mov_b32 v{p}, 0x00003c00")
            else:
                A(f"v_cvt_pk_f16_f32 v{p}, v{src}, {'-' if neg else ''}v{src+1}")
            regs.append(p)
        k = 0
        n = 0
        while k < len(rows_src):
            r0 = rows_src[k][0]
            if k + 1 < len(rows_src) and rows_src[k + 1][0] // 4 == r0 // 4:
                r1 = rows_src[k + 1][0]
                A(f"ds_write2_b32 v{AW + 4*buf + r0//4}, v{regs[k]}, v{regs[k+1]} offset0:{(r0%4)*72} offset1:{(r1%4)*72}")
                k += 2
            else:
                A(f"ds_write_b32 v{AW + 4*buf + r0//4}, v{regs[k]} offset:{(r0%4)*K1_ROWB}")
                k += 1
            n += 1
        return n

    def frags(dst, buf):
        for j in range(4):
            A(f"ds_read_b128 {vr(dst+4*j,4)}, v32 offset:{buf*K1_BUF + 64*j}")

    def mfmas(acc, a, b):
        for j in range(4):
            A(f"v_mfma_f32_16x16x32_f16 {vr(acc,4)}, {vr(a+4*j,4)}, {vr(b+4*j,4)}, {vr(acc,4)}")

    cmul_batch(A, [(g[2], g[1], g[1]), (h[2], h[1], h[1]), (G256, G128, G128)])
    cmul_batch(A, [(g[3], g[2], g[1]), (g[4], g[2], g[2]), (h[3], h[2], h[1]), (h[4], h[2], h[2]), (G512, G256, G256)])
    cmul_batch(A, [(g[5], g[4], g[1]), (g[6], g[4], g[2]), (g[7], g[4], g[3]), (h[5], h[4], h[1]), (h[6], h[4], h[2]),
                   (h[7], h[4], h[3]), (h[8], h[4], h[4]), (G1024, G512, G512)])
    for i in range(4):
        A(f"v_mov_b32 v{20+i}, 0")
        A(f"v_mov_b32 v{24+i}, 0")
        A(f"v_mov_b32 v{4+i}, 0")
    wr([(0, None)] + [(i, h[i]) for i in range(1, 8)], 0, False)
    cmul_batch(A, [(T[i - 1], h[8], h[i]) for i in range(1, 8)])
    wr([(8, h[8])] + [(8 + i, T[i - 1]) for i in range(1, 8)], 0, False)
    frags(BF, 0)
    stamp(A, 4)
    c128 = T[7]
    cmul_batch(A, [(T[i - 1], C, g[i]) for i in range(1, 8)] + [(c128, C, G128)])
    wr([(0, C)] + [(i, T[i - 1]) for i in range(1, 8)], 1, True)
    cmul_batch(A, [(T[i - 1], c128, g[i]) for i in range(1, 8)])
    wr([(8, c128)] + [(8 + i, T[i - 1]) for i in range(1, 8)], 1, True)
    frags(AF, 1)
    cmul_batch(A, [(T[0], C, G512), (T[4], C, G1024)])
    cmul_batch(A, [(T[1], T[0], G128), (T[2], T[0], G256), (T[5], T[4], G256), (T[6], T[4], G512)])
    cmul_batch(A, [(T[3], T[2], G128), (T[7], T[6], G256)])
    n1 = wr([(i, T[i]) for i in range(4)] + [(8 + i, T[4 + i]) for i in range(4)], 0, True)
    c2048 = g[1]
    cmul_batch(A, [(c2048, T[4], G1024)])
    D4 = [g[3], g[5], g[7], g[8]]
    cmul_batch(A, [(D4[i], T[i], g[4]) for i in range(4)])
    A("s_waitcnt lgkmcnt(%d)" % n1)
    mfmas(20, AF, BF)
    cmul_batch(A, [(T[i], T[4 + i], G128) for i in range(4)])
    wr([(4 + i, D4[i]) for i in range(4)] + [(12 + i, T[i]) for i in range(4)], 0, True)
    frags(AF, 0)
    stamp(A, 5)
    cmul_batch(A, [(T[0], C, G256)])
    cmul_batch(A, [(T[4], T[0], G128), (T[1], T[0], g[2]), (T[2], T[0], g[4]), (T[3], T[0], g[6])])
    cmul_batch(A, [(T[5], T[4], g[2]), (T[6], T[4], g[4]), (T[7], T[4], g[6])])
    n2 = wr([(i, T[i]) for i in range(8)], 1, True)
    n2 += wr([(8, c2048)], 1, True)
    A("s_waitcnt lgkmcnt(%d)" % n2)
    mfmas(24, AF, BF)
    frags(AF2, 1)
    A("s_waitcnt lgkmcnt(0)")
    mfmas(4, AF2, BF)
    A("v_lshlrev_b32 v28, 4, v2")
    A("v_add_u32 v30, s7, v28")
    for t, r in enumerate((20, 24, 4)):
        A(f"ds_write_b128 v30, {vr(r,4)} offset:{1024*t}")
    stamp(A, 6)


def expand_round(A, r, lbl):
    A("v_lshlrev_b32 v28, 4, v2")
    A("v_add_u32 v28, s39, v28")
    A("s_mov_b32 s22, 0x01000100")
    A("s_mov_b32 s23, 0x03020302")
    if r < 2:
        A("v_lshlrev_b32 v26, 1, v2")
        A(f"v_sub_u32 v26, {2*(384+255) - 128*r}, v26")
        A("v_add_u32 v26, s40, v26")
        A("ds_read_u16 v40, v26")
        A("ds_read_u16 v41, v26 offset:2")
        A("v_and_b32 v16, 1, v2")
        A("v_cmp_eq_u32 s[20:21], 1, v16")
        A("s_waitcnt lgkmcnt(0)")
        w = 40
        A(f"v_lshl_or_b32 v{w}, v{w+1}, 16, v{w}")
        A(f"v_perm_b32 v{w+2}, v{w}, v{w}, s23")
        A(f"v_perm_b32 v{w+4}, v{w}, v{w}, s22")
        A(f"v_alignbit_b32 v{w+1}, v{w}, v{w}, 16")
        A(f"v_mov_b32 v{w+5}, v{w+4}")
        A(f"v_mov_b32 v{w+6}, v{w+2}")
        A(f"v_cndmask_b32 v{w+3}, v{w+2}, v{w+1}, s[20:21]")
        A(f"v_cndmask_b32 v{w+7}, v{w+1}, v{w+4}, s[20:21]")
        A(f"ds_write_b64 v28, {vr(w+2,2)} offset:{KA_KE + 1024*r}")
        A(f"ds_write_b64 v28, {vr(w+4,2)} offset:{KA_KE + 1024*r + 8}")
        A(f"ds_write_b64 v28, {vr(w+6,2)} offset:{KA_KO + 1024*r}")
        A(f"ds_write_b64 v28, {vr(w+4,2)} offset:{KA_KO + 1024*r + 8}")
    elif r == 2:
        A("v_lshlrev_b32 v27, 2, v2")
        A(f"v_sub_u32 v27, {512 + 4*127}, v27")
        A("v_add_u32 v27, s40, v27")
        A("ds_read_b32 v56, v27")
        A("ds_read_u16 v57, v27 offset:4")
        A("s_mov_b32 s24, 0x07060100")
        A("s_waitcnt lgkmcnt(0)")
        A("v_perm_b32 v40, v57, v57, s22")
        A("v_perm_b32 v41, v56, v56, s23")
        A("v_alignbit_b32 v42, v56, v56, 16")
        A("v_perm_b32 v43, v56, v56, s22")
        A("v_perm_b32 v44, v56, v57, s24")
        A("v_mov_b32 v45, v41")
        A("v_mov_b32 v46, v43")
        A("v_mov_b32 v47, v43")
        A(f"ds_write_b128 v28, v[40:43] offset:{KA_KE + 2048}")
        A(f"ds_write_b128 v28, v[44:47] offset:{KA_KO + 2048}")
    else:
        for k in range(9):
            A(f"ds_read_u16 v{40+k}, v{30+k}")
        A("v_mov_b32 v12, 0")
        A("v_and_b32 v14, 15, v2")
        A("v_lshlrev_b32 v14, 2, v14")
        A("v_add_u32 v14, s39, v14")
        A(f"ds_write_b32 v14, v12 offset:{KA_KE + 4096}")
        A(f"ds_write_b32 v14, v12 offset:{KA_KO + 4096}")
        A("s_waitcnt lgkmcnt(2)")
        for k in range(4):
            A(f"v_lshl_or_b32 v{52+k}, v{41+2*k}, 16, v{40+2*k}")
        A("v_alignbit_b32 v56, v53, v52, 16")
        A("v_alignbit_b32 v57, v54, v53, 16")
        A("v_alignbit_b32 v58, v55, v54, 16")
        A("v_alignbit_b32 v59, v48, v55, 16")
        A(f"ds_write_b128 v28, v[52:55] offset:{KA_KE + 3072}")
        A(f"ds_write_b128 v28, v[56:59] offset:{KA_KO + 3072}")
        A("v_mov_b32 v14, s39")
        A(f"ds_write_b16 v14, v12 offset:{KA_KO + 2*2047}")


def ka(A):
    A("s_cmp_ge_u32 s2, 256")
    A("s_cbranch_scc1 KA_END")
    k_begin(A)
    A("s_load_dwordx16 s[16:31], s[0:1], 0")
    A("s_load_dwordx4 s[44:47], s[0:1], 104")
    A("v_lshrrev_b32 v1, 6, v0")
    A("v_readfirstlane_b32 s3, v1")
    A("v_and_b32 v2, 63, v0")
    A("v_mov_b32 v3, 0")
    A("v_lshlrev_b32 v4, 2, v2")
    A(f"v_add_u32 v4, {KA_CNT}, v4")
    A("s_cmp_lg_u32 s3, 0")
    A("s_cbranch_scc1 KA_NOZ")
    A("s_mov_b64 exec, 0xffffffff")
    A("ds_write_b32 v4, v3")
    A("s_mov_b64 exec, -1")
    A.label("KA_NOZ")
    A(f"s_sub_u32 s4, s2, {NPROD}")
    pair_swizzle(A, 35, 4, 6)
    A("s_sub_u32 s4, s3, 4")
    A("s_mul_i32 s37, s4, 11")
    A("s_lshr_b32 s37, s37, 5")
    A("s_mul_i32 s36, s37, 3")
    A("s_sub_u32 s36, s4, s36")
    A("s_lshl_b32 s34, s35, 2")
    A("s_add_u32 s34, s34, s37")
    A(f"s_mul_i32 s7, s4, {KG_SZ}")
    A("s_mul_i32 s4, s34, 384")
    A("s_lshr_b32 s5, s34, 1")
    A("s_lshl_b32 s5, s5, 2")
    A("s_lshl_b32 s8, s36, 7")
    A("s_add_u32 s8, s8, s4")
    A("v_lshlrev_b32 v3, 1, v2")
    A("v_add_u32 v1, s8, v3")
    A("v_add_u32 v3, s4, v3")
    A("s_waitcnt lgkmcnt(0)")
    A("s_mov_b32 s32, s46")
    A("s_mov_b32 s33, s47")
    A("s_cmp_lt_u32 s3, 4")
    A("s_cbranch_scc1 KA_B0")
    A(f"s_cmp_lt_u32 s2, {NPROD}")
    A("s_cbranch_scc1 KA_B0")
    A("s_load_dword s6, s[26:27], s5")
    A("global_load_ushort v10, v1, s[18:19]")
    A("global_load_ushort v11, v1, s[20:21]")
    A("global_load_ushort v12, v1, s[22:23]")
    A("global_load_ushort v13, v1, s[24:25]")
    for i in range(3):
        A(f"global_load_ushort v{14+i}, v3, s[22:23] offset:{128*i}")
        A(f"global_load_ushort v{17+i}, v3, s[24:25] offset:{128*i}")
    A.label("KA_B0")
    A("s_barrier")
    A("s_cmp_lt_u32 s3, 4")
    A("s_cbranch_scc1 KA_LN1")
    A.label("KA_NOTAG")
    A(f"s_cmp_lt_u32 s2, {NPROD}")
    A("s_cbranch_scc1 KA_WT0")
    kgen_wave(A)
    arrive_s(A, 4, 37)
    wait_s(A, 4, 37, 3, "KA_W4")
    stamp(A, 7)
    A(f"s_mul_i32 s11, s37, {3*KG_SZ}")
    A("s_lshl_b32 s12, s36, 10")
    A("s_add_u32 s11, s11, s12")
    A("v_add_u32 v28, s11, v28")
    for w in range(3):
        A(f"ds_read_b128 {vr(40+4*w,4)}, v28 offset:{KG_SZ*w}")
    A("s_waitcnt lgkmcnt(0)")
    for i in range(4):
        A(f"v_add_f32 v{40+i}, v{40+i}, v{44+i}")
    for i in range(4):
        A(f"v_add_f32 v{40+i}, v{40+i}, v{48+i}")
    A("v_cvt_pk_f16_f32 v40, v40, v41")
    A("v_cvt_pk_f16_f32 v41, v42, v43")
    A("s_cmp_eq_u32 s36, 1")
    A("s_cbranch_scc1 KA_S1")
    A("ds_write_b64 v29, v[40:41]")
    A("s_branch KA_S2")
    A.label("KA_S1")
    A("ds_write_b16 v29, v40")
    A("ds_write_b16_d16_hi v29, v40 offset:64")
    A("ds_write_b16 v29, v41 offset:128")
    A("ds_write_b16_d16_hi v29, v41 offset:192")
    A.label("KA_S2")
    arrive_s(A, 8, 37)
    wait_s(A, 8, 37, 3, "KA_W5")
    A(f"s_mul_i32 s39, s37, {KEO_ST}")
    A(f"s_add_u32 s39, s39, {KEO_BASE}")
    A(f"s_mul_i32 s40, s37, {T_ST}")
    A(f"s_add_u32 s40, s40, {KA_T}")
    A("s_cmp_eq_u32 s36, 0")
    A("s_cbranch_scc1 KA_R0")
    A("s_cmp_eq_u32 s36, 1")
    A("s_cbranch_scc1 KA_R1")
    expand_round(A, 2, "R2")
    A("s_branch KA_RX")
    A.label("KA_R0")
    expand_round(A, 0, "R0")
    A("s_branch KA_RX")
    A.label("KA_R1")
    expand_round(A, 1, "R1")
    A.label("KA_RX")
    arrive_s(A, 12, 37)
    k_end(A, 0)

    A.label("KA_CONV")
    A("s_lshl_b32 s4, s35, 2")
    A("s_add_u32 s4, s4, s3")
    A("s_lshr_b32 s14, s4, 1")
    A("s_lshl_b32 s14, s14, 2")
    A(f"s_mul_i32 s39, s3, {KEO_ST}")
    A(f"s_mul_i32 s40, s3, {T_ST}")
    A(f"s_add_u32 s40, s40, {KA_T}")
    A(f"s_mul_i32 s41, s3, {U_ST}")
    A(f"s_add_u32 s41, s41, {KA_U}")
    A("v_and_b32 v6, 15, v2")
    A("v_lshrrev_b32 v7, 4, v2")
    A("v_lshrrev_b32 v8, 1, v7")
    A("v_and_b32 v9, 1, v7")
    A("v_mov_b32 v12, 0")
    A("v_mov_b32 v13, 0")
    A("v_lshlrev_b32 v14, 3, v2")
    A("v_add_u32 v14, s41, v14")
    A("ds_write_b64 v14, v[12:13]")
    A("v_sub_u32 v14, 2047, v6")
    A("v_lshlrev_b32 v15, 4, v8")
    A("v_sub_u32 v14, v14, v15")
    A("v_lshlrev_b32 v15, 3, v9")
    A("v_add_u32 v14, v14, v15")
    A("v_lshlrev_b32 v14, 1, v14")
    A(f"v_add_u32 v15, {KA_KO - 2}, v14")
    A("v_and_b32 v16, 1, v6")
    A("v_cmp_eq_u32 vcc, 1, v16")
    A("v_cndmask_b32 v14, v15, v14, vcc")
    A("v_add_u32 v14, s39, v14")
    AB = [20, 21, 22, 23]
    for p in range(4):
        A(f"v_subrev_u32 v{AB[p]}, {512*(2*p+1) + 448}, v14")
    A("v_lshlrev_b32 v15, 5, v6")
    A("v_lshlrev_b32 v16, 5, v8")
    A("v_sub_u32 v15, v15, v16")
    A("v_lshlrev_b32 v16, 4, v9")
    A("v_add_u32 v15, v15, v16")
    A(f"v_add_u32 v15, {512 - 448}, v15")
    BB = 24
    A(f"v_add_u32 v{BB}, s41, v15")
    A("v_lshlrev_b32 v15, 5, v6")
    A("v_lshlrev_b32 v16, 3, v7")
    A("v_add_u32 v25, v15, v16")
    A("v_lshlrev_b32 v3, 3, v2")
    A("v_sub_u32 v3, 511, v3")
    for k in range(9):
        A(f"v_subrev_u32 v{30+k}, {k}, v3")
    A("v_max_i32 v38, 0, v38")
    for k in range(9):
        A(f"v_cvt_f32_i32 v{40+k}, v{30+k}")
    for k in range(0, 8, 2):
        A(f"v_cvt_pk_bf16_f32 v{50+k}, v{40+k}, v{41+k}")
        A(f"v_lshrrev_b32 v{51+k}, 16, v{50+k}")
        A(f"v_and_b32 v{50+k}, 0xffff, v{50+k}")
    A("v_cvt_pk_bf16_f32 v58, v48, v48")
    A("v_and_b32 v58, 0xffff, v58")
    for k in range(9):
        A(f"v_subrev_u32 v{50+k}, 17024, v{50+k}")
        A(f"v_min_i32 v{30+k}, 127, v{30+k}")
        A(f"v_max_i32 v{50+k}, v{50+k}, v{30+k}")
        A(f"v_lshlrev_b32 v{30+k}, 1, v{50+k}")
        A(f"v_add_u32 v{30+k}, s40, v{30+k}")
    A("v_lshrrev_b32 v5, 2, v2")
    A("v_mul_u32_u24 v5, 10240, v5")
    A("v_and_b32 v4, 3, v2")
    A("v_lshl_add_u32 v5, v4, 4, v5")
    A("s_lshl_b32 s7, s35, 6")
    A("s_mul_i32 s8, s3, 655360")
    A("s_add_u32 s7, s7, s8")
    A(f"s_add_u32 s7, s7, {WS_UT}")
    A("v_add_u32 v5, s7, v5")
    A(f"v_mul_u32_u24 v4, {U_ST}, v4")
    A("v_lshrrev_b32 v3, 2, v2")
    A("v_lshl_add_u32 v4, v3, 4, v4")
    A("s_lshl_b32 s8, s3, 10")
    A(f"s_add_u32 s8, s8, {KA_U + 512}")
    A("v_add_u32 v4, s8, v4")
    A("s_load_dword s11, s[28:29], s14")
    stamp(A, 1)
    A("s_cmp_lg_u32 s3, 3")
    A("s_cbranch_scc1 KA_GOT")
    wait_count(A, 3, 4, "KA_OWN", sleep=4)
    poll_flags(A, "KA_POLL")
    A(f"s_cmp_lg_u32 s2, {NPROD}")
    A("s_cbranch_scc1 KA_GOT")
    A(f"v_mov_b32 v3, {WS_EPOCH}")
    A("v_mov_b32 v10, s15")
    A("s_mov_b64 exec, 1")
    A(f"global_store_dword v3, v10, s[32:33] {SC}")
    A("s_mov_b64 exec, -1")
    A.label("KA_GOT")
    AF, BF, ACC = 32, 64, 96
    for i in range(32):
        A(f"v_mov_b32 v{ACC+i}, 0")
    A("s_bitcmp1_b32 s4, 0")
    group_sync(A, 2, 4, "KA_GS2")
    stamp(A, 2)
    for j in range(4):
        A(f"global_load_dwordx4 {vr(64+4*j,4)}, v5, s[32:33] {SC}")
        if j < 3:
            A("v_add_u32 v5, 163840, v5")
    A("s_bitcmp1_b32 s4, 0")
    A("s_cbranch_scc1 KA_ODD2")
    A("s_lshl_b32 s11, s11, 16")
    A.label("KA_ODD2")
    A("s_and_b32 s11, s11, 0xffff0000")
    for j in range(4):
        A(f"s_waitcnt vmcnt({3-j})")
        A(f"ds_write_b128 v4, {vr(64+4*j,4)} offset:{256*j}")
    arrive(A, 17)
    stamp(A, 3)
    wait_s(A, 8, 3, 3, "KA_W5C")
    expand_round(A, 3, "R3")
    A("s_lshl_b32 s12, s3, 2")
    A(f"s_add_u32 s12, s12, {KA_SC}")
    A("v_mov_b32 v3, s12")
    A("ds_read_b32 v10, v3")
    wait_s(A, 12, 3, 3, "KA_W6")
    wait_count(A, 17, 4, "KA_W7", sleep=0)
    stamp(A, 5)

    def loadA(q, i0):
        p = q // 2
        o = (128 if q % 2 == 0 else 0) + 16 * (7 - i0)
        return [f"ds_read2_b32 {vr(AF+4*q,2)}, v{AB[p]} offset0:{o} offset1:{o+1}",
                f"ds_read2_b32 {vr(AF+4*q+2,2)}, v{AB[p]} offset0:{o+2} offset1:{o+3}"]

    def loadB(tau, i0):
        return [f"ds_read_b128 {vr(BF+4*tau,4)}, v{BB} offset:{512*tau + 64*(7-i0)}"]

    queue = []
    if os.environ.get("ALIGN"):
        A(".p2align 3")
    for q in range(8):
        A(loadB(7 - q, 0)[0])
        queue.append(("B", 7 - q))
        if q == 0:
            for s in loadA(0, 0):
                A(s)
            queue += [("A", 0), ("A", 0)]
    for q in range(1, 8):
        for s in loadA(q, 0):
            A(s)
        queue += [("A", q), ("A", q)]
    pending = []

    def wait_for(tags):
        while any(tg in tags for _, tg in pending):
            s_, tg = pending.pop(0)
            A(s_)
            queue.append(tg)
        last = -1
        for i, t in enumerate(queue):
            if t in tags:
                last = i
        if last >= 0:
            n = len(queue) - 1 - last
            A(f"s_waitcnt lgkmcnt({min(n, 15)})")
            if os.environ.get("ALIGN"):
                A("s_nop 0")
            del queue[:last + 1]

    for i0 in range(8):
        for q in range(8):
            for tau in range(7 - q, -1, -1):
                wait_for({("A", q), ("B", tau)})
                t = q + tau
                A(f"v_mfma_f32_16x16x32_f16 {vr(ACC+4*t,4)}, {vr(AF+4*q,4)}, {vr(BF+4*tau,4)}, {vr(ACC+4*t,4)}")
                if i0 < 7:
                    if tau == 7 - q:
                        pending.insert(0, (loadB(7 - q, i0 + 1)[0], ("B", 7 - q)))
                    if tau == 0:
                        for s in loadA(q, i0 + 1):
                            pending.append((s, ("A", q)))
                if pending:
                    s, tag = pending.pop(0)
                    A(s)
                    queue.append(tag)
    stamp(A, 6)
    A("v_add_u32 v26, s41, v25")
    A("v_add_u32 v27, s39, v25")
    for t in range(8):
        A(f"ds_read_b64 {vr(32+2*t,2)}, v26 offset:{512 + 512*t}")
    A(f"v_mov_b32 v28, {ONE_LO}")
    A(f"v_mov_b32 v29, {ONE_HI}")
    A("v_mov_b32 v11, v10")
    A("s_waitcnt lgkmcnt(0)")
    for t in range(8):
        a = ACC + 4 * t
        u = 32 + 2 * t
        tm = 48 + 8 * (t & 1)
        A(f"v_pk_mul_f32 {vr(a,2)}, {vr(a,2)}, v[10:11]")
        A(f"v_pk_mul_f32 {vr(a+2,2)}, {vr(a+2,2)}, v[10:11]")
        A(f"v_fma_mix_f32 v{tm}, v{u}, s11, 0 op_sel:[0,0,0] op_sel_hi:[1,0,0]")
        A(f"v_fma_mix_f32 v{tm+1}, v{u}, s11, 0 op_sel:[1,0,0] op_sel_hi:[1,0,0]")
        A(f"v_fma_mix_f32 v{tm+2}, v{u+1}, s11, 0 op_sel:[0,0,0] op_sel_hi:[1,0,0]")
        A(f"v_fma_mix_f32 v{tm+3}, v{u+1}, s11, 0 op_sel:[1,0,0] op_sel_hi:[1,0,0]")
        A(f"v_cvt_pk_bf16_f32 v{a}, v{a}, v{a+1}")
        A(f"v_cvt_pk_bf16_f32 v{a+1}, v{a+2}, v{a+3}")
        A(f"v_cvt_pk_bf16_f32 v{tm+4}, v{tm}, v{tm+1}")
        A(f"v_cvt_pk_bf16_f32 v{tm+5}, v{tm+2}, v{tm+3}")
        A(f"v_lshlrev_b32 v{tm}, 16, v{tm+4}")
        A(f"v_and_b32 v{tm+1}, 0xffff0000, v{tm+4}")
        A(f"v_lshlrev_b32 v{tm+2}, 16, v{tm+5}")
        A(f"v_and_b32 v{tm+3}, 0xffff0000, v{tm+5}")
        A(f"v_dot2_f32_bf16 v{tm}, v{a}, v28, v{tm}")
        A(f"v_dot2_f32_bf16 v{tm+1}, v{a}, v29, v{tm+1}")
        A(f"v_dot2_f32_bf16 v{tm+2}, v{a+1}, v28, v{tm+2}")
        A(f"v_dot2_f32_bf16 v{tm+3}, v{a+1}, v29, v{tm+3}")
        A(f"v_cvt_pk_bf16_f32 v{a+2}, v{tm}, v{tm+1}")
        A(f"v_cvt_pk_bf16_f32 v{a+3}, v{tm+2}, v{tm+3}")
        A(f"ds_write_b64 v27, {vr(a+2,2)} offset:{KA_KE + 512*t}")
    stamp(A, 7)
    A("v_lshrrev_b32 v14, 2, v6")
    A(f"v_mul_u32_u24 v14, {KEO_ST}, v14")
    A("v_and_b32 v15, 3, v2")
    A("v_lshlrev_b32 v15, 3, v15")
    A("v_add_u32 v14, v14, v15")
    A("v_lshlrev_b32 v15, 5, v7")
    A("v_add_u32 v14, v14, v15")
    A("s_lshl_b32 s12, s3, 10")
    A("v_add_u32 v14, s12, v14")
    A("v_lshrrev_b32 v15, 3, v6")
    A("v_lshlrev_b32 v16, 1, v7")
    A("v_add_u32 v15, v15, v16")
    A("v_mul_u32_u24 v15, 10240, v15")
    A("v_and_b32 v16, 7, v6")
    A("v_lshlrev_b32 v16, 3, v16")
    A("v_add_u32 v15, v15, v16")
    A("s_mul_i32 s12, s3, 655360")
    A("s_lshl_b32 s13, s35, 6")
    A("s_add_u32 s12, s12, s13")
    A(f"s_add_u32 s12, s12, {WS_AT}")
    A("v_add_u32 v15, s12, v15")
    A("s_waitcnt lgkmcnt(0)")
    A("s_barrier")
    for k in range(8):
        A(f"ds_read_b64_tr_b16 {vr(40+2*k,2)}, v14 offset:{KA_KE + 128*k}")
    for k in range(8):
        A(f"s_waitcnt lgkmcnt({7-k})")
        A(f"global_store_dwordx2 v15, {vr(40+2*k,2)}, s[32:33] {os.environ.get('AT_MOD', '')}")
        if k < 7:
            A("v_add_u32 v15, 81920, v15")
    k_end(A, 0)

    A.label("KA_LN1")
    A("s_setprio 3")
    A(f"s_mov_b32 s14, {WS_EPOCH}")
    A("s_load_dword s15, s[32:33], s14")
    A("v_lshrrev_b32 v7, 5, v0")
    A("v_and_b32 v4, 31, v0")
    A("s_mul_i32 s5, s2, 10240")
    A("v_lshlrev_b32 v5, 4, v4")
    A("v_mul_u32_u24 v6, 1280, v7")
    A("v_add_u32 v6, v6, v5")
    A("v_add_u32 v8, s5, v6")
    XR, T = 24, 40
    for i in range(4):
        A(f"v_mov_b32 v{XR+8+i}, 0")
    A("v_cmp_gt_u32 s[24:25], 16, v4")
    A(f"global_load_dwordx4 {vr(XR,4)}, v8, s[16:17]")
    A(f"global_load_dwordx4 {vr(XR+4,4)}, v8, s[16:17] offset:512")
    A("s_mov_b64 exec, s[24:25]")
    A(f"global_load_dwordx4 {vr(XR+8,4)}, v8, s[16:17] offset:1024")
    A("s_mov_b64 exec, -1")
    A(f"v_mov_b32 v12, {ONE_LO}")
    A(f"v_mov_b32 v13, {ONE_HI}")
    A("v_mov_b32 v14, 0x3f803f80")
    for r in (10, 11, 16, 17):
        A(f"v_mov_b32 v{r}, 0")
    A("v_bfe_u32 v9, v0, 5, 1")
    A("v_lshlrev_b32 v9, 1, v9")
    A("v_and_b32 v15, 6, v4")
    A("v_xor_b32 v9, v9, v15")
    A("v_lshlrev_b32 v9, 4, v9")
    A("v_lshl_add_u32 v9, v4, 7, v9")
    A("s_lshl_b32 s6, s3, 2")
    A(f"s_add_u32 s6, s6, {KA_STAGE}")
    A("v_add_u32 v9, s6, v9")
    A("v_xor_b32 v20, 64, v9".replace("v_xor_b32 v20, 64, v9", "v_subrev_u32 v20, s6, v9"))
    A("v_xor_b32 v20, 64, v20")
    A("v_add_u32 v20, s6, v20")
    A("v_lshrrev_b32 v21, 3, v0")
    A("v_and_b32 v21, 6, v21")
    A("v_xor_b32 v21, v21, v0")
    A("v_lshlrev_b32 v21, 4, v21")
    A(f"v_add_u32 v21, {KA_STAGE}, v21")
    A("v_lshlrev_b32 v22, 4, v0")
    A(f"s_add_u32 s7, s5, {WS_UT}")
    A("v_add_u32 v22, s7, v22")
    A("s_waitcnt vmcnt(0)")
    stamp(A, 8)
    N = 12
    for i in range(0, N, 2):
        A(f"v_dot2c_f32_bf16 v10, v{XR+i}, v14")
        A(f"v_dot2c_f32_bf16 v11, v{XR+i}, v{XR+i}")
        A(f"v_dot2c_f32_bf16 v16, v{XR+i+1}, v14")
        A(f"v_dot2c_f32_bf16 v17, v{XR+i+1}, v{XR+i+1}")
    A("s_nop 2")
    A("v_add_f32 v10, v10, v16")
    A("v_add_f32 v11, v11, v17")
    for sh in (8, 4, 2, 1):
        A(f"v_add_f32_dpp v10, v10, v10 row_ror:{sh} row_mask:0xf bank_mask:0xf")
        A(f"v_add_f32_dpp v11, v11, v11 row_ror:{sh} row_mask:0xf bank_mask:0xf")
    A("v_mov_b32 v16, v10")
    A("v_mov_b32 v17, v11")
    A("v_permlane16_swap_b32 v10, v16")
    A("v_permlane16_swap_b32 v11, v17")
    A("v_add_f32 v10, v10, v16")
    A("v_add_f32 v11, v11, v17")
    ln_finish(A, 10, 11, 15)
    A("v_sub_f32 v10, 0, v10")
    A("v_mov_b32 v16, v11")
    A("v_mov_b32 v17, v11")
    for i in range(N):
        A(f"v_dot2_f32_bf16 v{T+2*i}, v{XR+i}, v12, v10")
        A(f"v_dot2_f32_bf16 v{T+2*i+1}, v{XR+i}, v13, v10")
    for i in range(N):
        A(f"v_cvt_pk_bf16_f32 v{XR+i}, v{T+2*i}, v{T+2*i+1}")
    for i in range(N):
        A(f"v_lshlrev_b32 v{T+2*i}, 16, v{XR+i}")
        A(f"v_and_b32 v{T+2*i+1}, 0xffff0000, v{XR+i}")
    for i in range(N):
        A(f"v_pk_mul_f32 {vr(T+2*i,2)}, {vr(T+2*i,2)}, v[16:17]")
    for i in range(N):
        A(f"v_cvt_pk_bf16_f32 v{XR+i}, v{T+2*i}, v{T+2*i+1}")
    for i in range(N):
        A(f"v_lshlrev_b32 v{T+2*i}, 16, v{XR+i}")
        A(f"v_and_b32 v{T+2*i+1}, 0xffff0000, v{XR+i}")
    P = 64
    for i in range(N):
        A(f"v_cvt_pk_f16_f32 v{P+i}, v{T+2*i}, v{T+2*i+1}")
    for i in range(0, N, 2):
        A(f"v_permlane32_swap_b32 v{P+i}, v{P+i+1}")
    A("s_mov_b32 s22, 0x05040100")
    A("s_mov_b32 s23, 0x07060302")
    for i in range(0, N, 2):
        A(f"v_perm_b32 v{T+i}, v{P+i+1}, v{P+i}, s22")
        A(f"v_perm_b32 v{T+i+1}, v{P+i+1}, v{P+i}, s23")
    for sl in range(3):
        if sl == 2:
            A("s_mov_b64 exec, s[24:25]")
        for k in range(2):
            i = 4 * sl + 2 * k
            A(f"v_add_u32 v23, {4096*sl}, v{9 if k == 0 else 20}")
            A(f"ds_write2_b32 v23, v{T+i}, v{T+i+1} offset0:0 offset1:4")
    A("s_mov_b64 exec, -1")
    group_sync(A, 1, 4, "KA_GS1")
    for j in range(3):
        A(f"ds_read_b128 {vr(24+4*j,4)}, v21 offset:{4096*j}")
    A("s_waitcnt lgkmcnt(0)")
    A(f"global_store_dwordx4 v22, {vr(24,4)}, s[32:33] {SC}")
    A("v_add_u32 v22, 4096, v22")
    A(f"global_store_dwordx4 v22, {vr(28,4)}, s[32:33] {SC}")
    A("s_cmp_ge_u32 s3, 2")
    A("s_cbranch_scc1 KA_P3")
    A("v_add_u32 v22, 4096, v22")
    A(f"global_store_dwordx4 v22, {vr(32,4)}, s[32:33] {SC}")
    A.label("KA_P3")
    A("s_mul_i32 s15, s15, 0x9E3779B1")
    A("s_add_u32 s15, s15, 0x632BE5AB")
    A("s_waitcnt vmcnt(0)")
    group_sync(A, 3, 4, "KA_GS3")
    stamp(A, 9)
    A("s_setprio 0")
    A("s_cmp_lg_u32 s3, 0")
    A("s_cbranch_scc1 KA_LNX")
    A("s_lshr_b32 s5, s2, 2")
    A("s_lshl_b32 s5, s5, 7")
    A("s_and_b32 s6, s2, 3")
    A("s_lshl_b32 s6, s6, 2")
    A("s_add_u32 s5, s5, s6")
    A(f"s_add_u32 s5, s5, {WS_FLAG}")
    A("v_mov_b32 v3, s5")
    A("v_mov_b32 v4, s15")
    A("s_mov_b64 exec, 1")
    A(f"global_store_dword v3, v4, s[32:33] {FMOD}")
    A("s_mov_b64 exec, -1")
    A.label("KA_LNX")
    A(f"s_cmp_ge_u32 s2, {NPROD}")
    A("s_cbranch_scc1 KA_CONV")
    A("s_cmp_eq_u32 s3, 3")
    A("s_cbranch_scc1 KA_WTPOLL")
    k_end(A, 0)
    A.label("KA_WTPOLL")
    wait_count(A, 3, 4, "KA_OWN2", sleep=4)
    if os.environ.get("WT_LATE"):
        poll_epoch(A, "KA_POLL2")
    arrive(A, 16)
    k_end(A, 0)
    A.label("KA_WT0")
    A("s_cmp_ge_u32 s3, 8")
    A("s_cbranch_scc1 KA_PRE" if PREFILL[0] else "s_cbranch_scc1 KA_WTX")
    wait_count(A, 16, 1, "KA_WTW", sleep=8)
    wt_role(A, "KA", 0, -2, 8192, 0, 960, 0, os.environ.get("WT_MOD", "sc1"), 384)
    if PREFILL[0]:
        A.label("KA_PRE")
        if TLBW == 1 or TLBW == 3:
            A("s_cmp_lg_u32 s3, 9")
            A("s_cbranch_scc1 KA_PRE2")
            A("s_load_dwordx2 s[36:37], s[0:1], 96")
            A("s_load_dwordx2 s[38:39], s[0:1], 64")
            A("v_min_u32 v3, 7, v2")
            A("v_lshlrev_b32 v3, 21, v3")
            A("global_load_dword v4, v3, s[32:33]")
            A("v_min_u32 v5, 1, v2")
            A("v_lshlrev_b32 v5, 21, v5")
            A("v_mov_b32 v7, 0")
            A("s_waitcnt lgkmcnt(0)")
            A("global_load_dword v6, v5, s[36:37]")
            A("global_load_dword v8, v7, s[38:39]")
            A("s_endpgm")
            A.label("KA_PRE2")
        A("s_cmp_lg_u32 s3, 8")
        A("s_cbranch_scc1 KA_WTX")
        nk = 256 * KEY_STRIDE // 1024
        A(f"s_cmp_ge_u32 s2, {nk + 24}")
        A("s_cbranch_scc1 KA_WTX")
        A("s_lshl_b32 s4, s2, 10")
        A(f"s_add_u32 s5, s4, {WS_RK}")
        A(f"s_add_u32 s6, s4, {WS_ACT - 1024 * nk}")
        A(f"s_cmp_lt_u32 s2, {nk}")
        A("s_cselect_b32 s5, s5, s6")
        A("v_lshlrev_b32 v3, 4, v2")
        A("v_add_u32 v3, s5, v3")
        for i in range(4):
            A(f"v_mov_b32 v{4+i}, -1")
        A("global_store_dwordx4 v3, v[4:7], s[32:33]")
    A.label("KA_WTX")
    k_end(A, 0)
    A.label("KA_END")
    A("s_endpgm")


KC_SLEEP = int(os.environ.get('KC_SLEEP', '6'))
AT_LD = os.environ.get('AT_LD', '')
KD_LDS = 18432
KD_F1_FIRST = int(os.environ.get("KD_F1_FIRST", "20"))
KD_F2_FIRST = int(os.environ.get("KD_F2_FIRST", "64"))
KD_KSLEEP = int(os.environ.get("KD_KSLEEP", "8"))
NROW = 256


def sel_part1(A, lbl, first_sleep):
    A(f"v_lshlrev_b32 v4, {KEY_STRIDE.bit_length() - 1}, v0")
    A(f"v_add_u32 v4, {WS_RK}, v4")
    A("s_mov_b32 s12, 0")
    A("v_mov_b32 v21, -1")
    if first_sleep:
        A(f"s_sleep {first_sleep}")
    A.label(lbl)
    A(f"global_load_dwordx4 v[8:11], v4, s[32:33] {SC}")
    A(f"global_load_dwordx4 v[12:15], v4, s[32:33] offset:16 {SC}")
    A("s_waitcnt vmcnt(0)")
    A("v_max3_u32 v16, v8, v9, v10")
    A("v_max3_u32 v17, v11, v12, v13")
    A("v_max3_u32 v16, v16, v14, v15")
    A("v_max_u32 v16, v16, v17")
    A("v_cmp_eq_u32 vcc, v21, v16")
    A("s_cmp_eq_u64 vcc, 0")
    A(f"s_cbranch_scc1 {lbl}_OK")
    A("s_add_u32 s12, s12, 1")
    A(f"s_cmp_ge_u32 s12, {SPIN_MAX}")
    A(f"s_cbranch_scc1 {lbl}_OK")
    A(f"s_sleep {KD_KSLEEP}")
    A(f"s_branch {lbl}")
    A.label(lbl + "_OK")
    stamp(A, 5)
    net = [(0, 1), (2, 3), (4, 5), (6, 7), (0, 2), (1, 3), (4, 6), (5, 7), (1, 2), (5, 6), (0, 4), (3, 7), (1, 5), (2, 6),
           (1, 4), (3, 6), (2, 4), (3, 5), (3, 4)]
    reg = list(range(8, 16))
    spare = 16
    for a_, b_ in net:
        A(f"v_max_u32 v{spare}, v{reg[a_]}, v{reg[b_]}")
        A(f"v_min_u32 v{reg[b_]}, v{reg[a_]}, v{reg[b_]}")
        reg[a_], spare = spare, reg[a_]
    steps = [("row_shr:1", "0xf"), ("row_shr:2", "0xf"), ("row_shr:4", "0xf"), ("row_shr:8", "0xf"),
             ("row_bcast:15", "0xa"), ("row_bcast:31", "0xc")]
    for r in range(4):
        A(f"v_mov_b32 v17, v{reg[0]}")
        A(f"v_mov_b32 v18, v{reg[1]}")
        for ctl, mask in steps:
            bc = " bound_ctrl:0" if ctl.startswith("row_shr") else ""
            A(f"v_min_u32_dpp v19, v17, v17 {ctl} row_mask:{mask} bank_mask:0xf{bc}")
            A(f"v_max_u32_dpp v17, v17, v17 {ctl} row_mask:{mask} bank_mask:0xf{bc}")
            A(f"v_max_u32_dpp v20, v18, v18 {ctl} row_mask:{mask} bank_mask:0xf{bc}")
            A("v_max_u32 v18, v19, v20")
        A(f"v_readlane_b32 s{40+2*r}, v17, 63")
        A(f"v_readlane_b32 s{41+2*r}, v18, 63")
        if r < 3:
            left = 8 - 2 * r
            for wsel in (40 + 2 * r, 41 + 2 * r):
                A(f"v_cmp_eq_u32 vcc, s{wsel}, v{reg[0]}")
                left -= 1
                for k in range(left):
                    A(f"v_cndmask_b32 v{reg[k]}, v{reg[k]}, v{reg[k+1]}, vcc")
    A("v_mov_b32 v16, s40")
    for r in range(1, 8):
        A(f"v_writelane_b32 v16, s{40+r}, {r}")
    A("s_lshl_b32 s6, s3, 5")
    A("v_lshlrev_b32 v17, 2, v2")
    A("v_add_u32 v17, s6, v17")
    A("v_cmp_gt_u32 vcc, 8, v2")
    A("s_and_saveexec_b64 s[20:21], vcc")
    A("ds_write_b32 v17, v16")
    A("s_mov_b64 exec, s[20:21]")


def sel_part2(A):
    A("v_and_b32 v17, 31, v2")
    A("v_lshlrev_b32 v17, 2, v17")
    A("v_lshrrev_b32 v18, 5, v2")
    A("v_lshlrev_b32 v18, 6, v18")
    A("v_mov_b32 v19, 0")
    A("v_mov_b32 v20, 0")
    A("s_waitcnt lgkmcnt(0)")
    A("s_barrier")
    A("ds_read_b32 v16, v17")
    for i in range(4):
        A(f"ds_read_b128 {vr(60+4*i,4)}, v18 offset:{16*i}")
    A("s_waitcnt lgkmcnt(0)")
    sp = ["s[50:51]", "s[52:53]", "s[54:55]", "s[56:57]"]
    for i in range(0, 16, 4):
        for k in range(4):
            A(f"v_cmp_gt_u32 {sp[k]}, v{60+i+k}, v16")
        for k in range(4):
            A(f"v_addc_co_u32 v{19 + (k & 1)}, vcc, 0, v{19 + (k & 1)}, {sp[k]}")
    A("v_add_u32 v19, v19, v20")
    A("v_mov_b32 v20, v19")
    A("v_permlane32_swap_b32 v19, v20")
    A("v_add_u32 v19, v19, v20")
    A("v_cmp_gt_u32 vcc, 8, v19")
    A("v_cmp_gt_u32 s[22:23], 32, v2")
    A("s_and_b64 vcc, vcc, s[22:23]")
    A("v_lshlrev_b32 v19, 2, v19")
    A("s_lshl_b32 s6, s3, 6")
    A("s_add_u32 s6, s6, 256")
    A("v_add_u32 v19, s6, v19")
    A("s_and_saveexec_b64 s[20:21], vcc")
    A("ds_write_b32 v19, v16")
    A("s_mov_b64 exec, s[20:21]")


def kd(A):
    A("s_cmp_ge_u32 s2, 256")
    A("s_cbranch_scc1 KD_END")
    k_begin(A)
    A("s_load_dwordx2 s[32:33], s[0:1], 112")
    A("s_load_dwordx2 s[26:27], s[0:1], 0")
    A("s_load_dwordx2 s[28:29], s[0:1], 64")
    A("s_load_dwordx2 s[30:31], s[0:1], 96")
    A("v_lshrrev_b32 v1, 6, v0")
    A("v_readfirstlane_b32 s3, v1")
    A("v_and_b32 v2, 63, v0")
    A("s_and_b32 s35, s3, 3")
    A("s_cmp_ge_u32 s2, 192")
    A("s_cselect_b32 s36, 1, 0")
    A("s_sub_u32 s34, s2, 192")
    A("s_cmp_lt_u32 s34, 16")
    A("s_cselect_b32 s38, s36, 0")
    A("s_mov_b32 s37, s2")
    A("s_mul_i32 s7, s37, 20480")
    A("s_mul_i32 s8, s35, 5120")
    A("s_add_u32 s7, s7, s8")
    A(f"s_add_u32 s7, s7, {WS_WGU}")
    A("v_lshlrev_b32 v96, 4, v2")
    A("v_add_u32 v96, s7, v96")
    A("v_add_u32 v97, 4096, v96")
    A("v_lshrrev_b32 v5, 4, v2")
    A("v_and_b32 v4, 7, v2")
    A("v_bfe_u32 v6, v2, 3, 1")
    A("v_lshlrev_b32 v98, 7, v5")
    A("v_lshl_add_u32 v98, v4, 4, v98")
    A("v_lshl_add_u32 v98, v6, 9, v98")
    A("s_mul_i32 s5, s3, 3072")
    A("v_add_u32 v98, s5, v98")
    A(f"v_add_u32 v99, {WS_ACT}, v98")
    A("s_mul_i32 s4, s34, 24576")
    A(f"s_add_u32 s4, s4, {WS_WD}")
    A("v_add_u32 v98, s4, v98")
    A(f"v_add_u32 v97, {64*24576}, v98".replace("v97", "v95"))
    FR, A2, FRB = 100, 112, 124

    def frag_loads(tag):
        A("s_cmp_eq_u32 s36, 1")
        A(f"s_cbranch_scc1 KD_L2_{tag}")
        for i in range(4):
            A(f"global_load_dwordx4 {vr(FR+4*i,4)}, v96, s[32:33] offset:{1024*i}")
        A(f"global_load_dwordx4 {vr(FR+16,4)}, v97, s[32:33]")
        A(f"s_branch KD_LX_{tag}")
        A.label(f"KD_L2_{tag}")
        for i in range(3):
            A(f"global_load_dwordx4 {vr(FR+4*i,4)}, v98, s[32:33] offset:{1024*i}")
        A("s_cmp_eq_u32 s38, 0")
        A(f"s_cbranch_scc1 KD_LX_{tag}")
        for i in range(3):
            A(f"global_load_dwordx4 {vr(FRB+4*i,4)}, v95, s[32:33] offset:{1024*i}")
        A.label(f"KD_LX_{tag}")

    A("s_cmp_lt_u32 s3, 4")
    A("s_cbranch_scc1 KD_ROW")
    A("s_cmp_eq_u32 s36, 0")
    A("s_cbranch_scc1 KD_END")
    A("s_waitcnt lgkmcnt(0)")
    A("s_sleep 32")
    frag_loads("hi")
    A("s_barrier")
    A("s_branch KD_SEL2")
    A.label("KD_ROW")
    A("v_lshrrev_b32 v7, 5, v0")
    A("v_and_b32 v4, 31, v0")
    A("s_mul_i32 s4, s2, 10240")
    A("v_lshlrev_b32 v5, 3, v4")
    A("v_mul_u32_u24 v6, 1280, v7")
    A("v_add_u32 v6, v6, v5")
    A("v_add_u32 v8, s4, v6")
    A("v_lshlrev_b32 v3, 6, v4")
    A("v_lshl_add_u32 v3, v7, 3, v3")
    A(f"s_add_u32 s5, s4, {WS_AT + 4096}")
    A("v_add_u32 v3, s5, v3")
    A("v_add_u32 v9, 8192, v3")
    AR, XR, WR = 20, 32, 44
    A("s_waitcnt lgkmcnt(0)")
    stamp(A, 1)
    for i in range(5):
        if i < 4:
            A(f"global_load_dwordx2 {vr(AR+2*i,2)}, v3, s[32:33] offset:{2048*i - 4096} {AT_LD}")
        else:
            A(f"global_load_dwordx2 {vr(AR+2*i,2)}, v9, s[32:33] offset:-4096 {AT_LD}")
        A(f"global_load_dwordx2 {vr(XR+2*i,2)}, v8, s[26:27] offset:{256*i}")
    for i in range(5):
        A(f"global_load_dwordx2 {vr(WR+2*i,2)}, v5, s[28:29] offset:{256*i}")
    A(f"v_mov_b32 v12, {ONE_LO}")
    A(f"v_mov_b32 v13, {ONE_HI}")
    A("v_mov_b32 v14, 0x3f803f80")
    for r in (10, 11, 16, 17):
        A(f"v_mov_b32 v{r}, 0")
    A(f"v_add_u32 v9, {WS_L2}, v8")
    H, T = 56, 68
    A("s_waitcnt vmcnt(5)")
    stamp(A, 2)
    frag_loads("lo")
    N = 10
    for i in range(N):
        A(f"v_lshlrev_b32 v{T+2*i}, 16, v{AR+i}")
        A(f"v_and_b32 v{T+2*i+1}, 0xffff0000, v{AR+i}")
    for i in range(N):
        A(f"v_dot2_f32_bf16 v{T+2*i}, v{XR+i}, v12, v{T+2*i}")
        A(f"v_dot2_f32_bf16 v{T+2*i+1}, v{XR+i}, v13, v{T+2*i+1}")
    for i in range(N):
        A(f"v_cvt_pk_bf16_f32 v{H+i}, v{T+2*i}, v{T+2*i+1}")
    for i in range(0, N, 2):
        A(f"v_dot2c_f32_bf16 v10, v{H+i}, v14")
        A(f"v_dot2c_f32_bf16 v11, v{H+i}, v{H+i}")
        A(f"v_dot2c_f32_bf16 v16, v{H+i+1}, v14")
        A(f"v_dot2c_f32_bf16 v17, v{H+i+1}, v{H+i+1}")
    A("s_nop 2")
    A("v_add_f32 v10, v10, v16")
    A("v_add_f32 v11, v11, v17")

    def red(regs, tmps):
        for sh in (8, 4, 2, 1):
            for r in regs:
                A(f"v_add_f32_dpp v{r}, v{r}, v{r} row_ror:{sh} row_mask:0xf bank_mask:0xf")
        for r, t in zip(regs, tmps):
            A(f"v_mov_b32 v{t}, v{r}")
        for r, t in zip(regs, tmps):
            A(f"v_permlane16_swap_b32 v{r}, v{t}")
        for r, t in zip(regs, tmps):
            A(f"v_add_f32 v{r}, v{r}, v{t}")
    red([10, 11], [16, 17])
    ln_finish(A, 10, 11, 15)
    A("v_sub_f32 v10, 0, v10")
    L, O = AR, XR
    for i in range(N):
        A(f"v_dot2_f32_bf16 v{T+2*i}, v{H+i}, v12, v10")
        A(f"v_dot2_f32_bf16 v{T+2*i+1}, v{H+i}, v13, v10")
    for i in range(N):
        A(f"v_cvt_pk_bf16_f32 v{L+i}, v{T+2*i}, v{T+2*i+1}")
    for i in range(N):
        A(f"v_lshlrev_b32 v{T+2*i}, 16, v{L+i}")
        A(f"v_and_b32 v{T+2*i+1}, 0xffff0000, v{L+i}")
    A("v_mov_b32 v16, v11")
    A("v_mov_b32 v17, v11")
    for i in range(N):
        A(f"v_pk_mul_f32 {vr(T+2*i,2)}, {vr(T+2*i,2)}, v[16:17]")
    for i in range(N):
        A(f"v_cvt_pk_bf16_f32 v{L+i}, v{T+2*i}, v{T+2*i+1}")
    for i in range(5):
        A(f"global_store_dwordx2 v9, {vr(L+2*i,2)}, s[32:33] offset:{256*i} {SC}")
    A("v_mov_b32 v14, 0")
    A("v_mov_b32 v15, 0")
    for i in range(N):
        A(f"v_lshlrev_b32 v{T+2*i}, 16, v{L+i}")
        A(f"v_and_b32 v{T+2*i+1}, 0xffff0000, v{L+i}")
    for i in range(N):
        A(f"v_dot2_f32_bf16 v{T+2*i}, v{H+i}, v12, v{T+2*i}")
        A(f"v_dot2_f32_bf16 v{T+2*i+1}, v{H+i}, v13, v{T+2*i+1}")
    for i in range(N):
        A(f"v_cvt_pk_bf16_f32 v{O+i}, v{T+2*i}, v{T+2*i+1}")
    for i in range(5):
        A(f"global_store_dwordx2 v8, {vr(O+2*i,2)}, s[30:31] offset:{256*i} {SC}")
    stamp(A, 3)
    A("s_waitcnt vmcnt(10)")
    for i in range(0, N, 2):
        A(f"v_dot2c_f32_bf16 v14, v{L+i}, v{WR+i}")
        A(f"v_dot2c_f32_bf16 v15, v{L+i+1}, v{WR+i+1}")
    A("s_nop 2")
    A("v_add_f32 v14, v14, v15")
    red([14], [15])
    A("v_cvt_pk_bf16_f32 v40, v14, v14")
    A("v_and_b32 v40, 0xffff0000, v40")
    A("v_ashrrev_i32 v41, 31, v40")
    A("v_or_b32 v41, 0x80000000, v41")
    A("v_xor_b32 v40, v40, v41")
    A("v_and_b32 v40, 0xffff0000, v40")
    A("s_lshl_b32 s6, s2, 3")
    A("v_add_u32 v42, s6, v7")
    A("v_sub_u32 v43, 2047, v42")
    A("v_or_b32 v40, v40, v43")
    A("v_lshlrev_b32 v42, 2, v7")
    A("v_cmp_eq_u32 vcc, 0, v4")
    A("s_mov_b64 exec, vcc")
    A("ds_write_b32 v42, v40 offset:896")
    A("s_mov_b64 exec, -1")
    A("s_waitcnt vmcnt(0) lgkmcnt(0)")
    A("s_barrier")
    A("s_cmp_lg_u32 s3, 0")
    A("s_cbranch_scc1 KD_KPUB")
    A("v_lshlrev_b32 v42, 2, v2")
    A("ds_read_b32 v40, v42 offset:896")
    A(f"s_lshl_b32 s6, s2, {KEY_STRIDE.bit_length() - 1}")
    A(f"s_add_u32 s6, s6, {WS_RK}")
    A("v_add_u32 v42, s6, v42")
    A("s_waitcnt lgkmcnt(0)")
    A("s_mov_b64 exec, 0xff")
    A(f"global_store_dword v42, v40, s[32:33] {SC}")
    A("s_mov_b64 exec, -1")
    A.label("KD_KPUB")
    stamp(A, 4)
    sel_part1(A, "KD_KP", KD_F1_FIRST)
    A.label("KD_SEL2")
    sel_part2(A)
    A("s_cmp_eq_u32 s36, 1")
    A("s_cbranch_scc1 KD_F2")
    AFR = 60
    A("v_and_b32 v17, 7, v2")
    A("v_lshlrev_b32 v17, 2, v17")
    A("v_add_u32 v17, s6, v17")
    A("ds_read_b32 v16, v17")
    A("v_lshrrev_b32 v21, 4, v2")
    A("v_lshlrev_b32 v21, 4, v21")
    A("s_mul_i32 s6, s35, 320")
    A(f"s_add_u32 s6, s6, {WS_L2}")
    A("v_add_u32 v21, s6, v21")
    A("s_waitcnt lgkmcnt(0)")
    A("v_and_b32 v18, 0x7ff, v16")
    A("v_sub_u32 v18, 2047, v18")
    A("v_mul_u32_u24 v20, 1280, v18")
    A("v_add_u32 v20, v20, v21")
    for i in range(5):
        A(f"global_load_dwordx4 {vr(AFR+4*i,4)}, v20, s[32:33] offset:{64*i} {SC}")
    stamp(A, 6)
    for i in range(4):
        A(f"v_mov_b32 v{24+i}, 0")
    A("v_lshlrev_b32 v28, 4, v2")
    A("s_lshl_b32 s6, s3, 10")
    A("v_add_u32 v29, s6, v28")
    for i in range(5):
        A(f"s_waitcnt vmcnt({4-i})")
        A(f"v_mfma_f32_16x16x32_bf16 v[24:27], {vr(AFR+4*i,4)}, {vr(FR+4*i,4)}, v[24:27]")
    stamp(A, 7)
    A("ds_write_b128 v29, v[24:27] offset:1024")
    A("s_waitcnt lgkmcnt(0)")
    A("s_barrier")
    A("s_cmp_lg_u32 s35, 0")
    A("s_cbranch_scc1 KD_DONE")
    A("v_lshrrev_b32 v56, 3, v2")
    A("v_and_b32 v57, 7, v2")
    A("v_lshrrev_b32 v58, 2, v56")
    A("v_lshlrev_b32 v58, 8, v58")
    A("v_lshl_add_u32 v58, v57, 4, v58")
    A("v_and_b32 v59, 3, v56")
    A("v_lshl_add_u32 v58, v59, 2, v58")
    A("s_lshl_b32 s6, s3, 10")
    A("v_add_u32 v58, s6, v58")
    for w in range(4):
        A(f"ds_read_b32 v{40+w}, v58 offset:{1024 + 1024*w}")
        A(f"ds_read_b32 v{44+w}, v58 offset:{1024 + 1024*w + 128}")
    A("v_lshlrev_b32 v59, 1, v2")
    A("s_lshl_b32 s6, s37, 7")
    A(f"s_add_u32 s6, s6, {WS_ACT}")
    A("v_add_u32 v59, s6, v59")
    A("s_waitcnt lgkmcnt(0)")
    A("v_add_f32 v40, v40, v41")
    A("v_add_f32 v42, v42, v43")
    A("v_add_f32 v44, v44, v45")
    A("v_add_f32 v46, v46, v47")
    A("v_add_f32 v40, v40, v42")
    A("v_add_f32 v44, v44, v46")
    A("v_cvt_pk_bf16_f32 v41, v40, v44")
    A("v_lshlrev_b32 v40, 16, v41")
    A("v_and_b32 v44, 0xffff0000, v41")
    A(f"v_mul_f32 v42, {hex(fbits(-LOG2E))}, v40")
    A("v_exp_f32 v42, v42")
    A("v_add_f32 v42, 1.0, v42")
    A("v_rcp_f32 v42, v42")
    A("v_mul_f32 v40, v40, v42")
    A("v_cvt_pk_bf16_f32 v40, v40, v40")
    A("v_and_b32 v40, 0xffff0000, v40")
    A("v_mul_f32 v40, v40, v44")
    A("v_cvt_pk_bf16_f32 v40, v40, v40")
    A(f"global_store_short v59, v40, s[32:33] {SC}")
    A.label("KD_DONE")
    k_end(A, 2)

    A.label("KD_F2")
    for i in range(4):
        A(f"v_mov_b32 v{36+i}, 0")
        A(f"v_mov_b32 v{32+i}, 0")
        A(f"v_mov_b32 v{52+i}, 0")
    A("s_add_u32 s39, s34, 64")
    A("s_cmp_eq_u32 s3, 0")
    A("s_cselect_b32 s39, s34, s39")
    A("s_cselect_b32 s9, 1, 0")
    A("s_cmp_eq_u32 s3, 1")
    A("s_cselect_b32 s10, s38, 0")
    A("s_or_b32 s9, s9, s10")
    A("s_cmp_eq_u32 s9, 0")
    A("s_cbranch_scc1 KD_F2SL")
    A("v_lshrrev_b32 v17, 3, v2")
    A("v_lshlrev_b32 v17, 2, v17")
    A("v_add_u32 v17, s6, v17")
    A("ds_read_b32 v8, v17")
    A("v_and_b32 v16, 7, v2")
    A("s_lshl_b32 s6, s39, 3")
    A("v_add_u32 v16, s6, v16")
    A("v_lshrrev_b32 v17, 2, v16")
    A("v_lshlrev_b32 v17, 6, v17")
    A("v_and_b32 v18, 3, v16")
    A("v_lshl_add_u32 v17, v18, 1, v17")
    A(f"v_add_u32 v17, {WS_AT}, v17")
    A("s_waitcnt lgkmcnt(0)")
    A("v_and_b32 v40, 0x7ff, v8")
    A("v_sub_u32 v40, 2047, v40")
    A("v_mul_u32_u24 v36, 1280, v40")
    A("v_lshl_add_u32 v36, v16, 1, v36")
    A(f"v_add_u32 v18, {WS_L2}, v36")
    A(f"global_load_ushort v20, v18, s[32:33] {SC}")
    A("global_load_ushort v24, v36, s[26:27]")
    A("v_lshrrev_b32 v18, 3, v40")
    A("v_mul_u32_u24 v18, 10240, v18")
    A("v_and_b32 v19, 7, v40")
    A("v_lshl_add_u32 v18, v19, 3, v18")
    A("v_add_u32 v18, v18, v17")
    A("global_load_ushort v44, v18, s[32:33]")
    A("v_and_b32 v12, 0xffff0000, v8")
    A("v_ashrrev_i32 v48, 31, v12")
    A("v_not_b32 v48, v48")
    A("v_or_b32 v48, 0x80000000, v48")
    A("v_xor_b32 v12, v12, v48")
    A("v_and_b32 v12, 0xffff0000, v12")
    A(f"v_mul_f32 v12, {hex(fbits(-LOG2E))}, v12")
    A("v_exp_f32 v12, v12")
    A("v_add_f32 v12, 1.0, v12")
    A("v_rcp_f32 v12, v12")
    bf16_round(A, 12)
    A("s_waitcnt vmcnt(0)")
    A("v_lshlrev_b32 v24, 16, v24")
    A("v_lshlrev_b32 v44, 16, v44")
    A("v_lshlrev_b32 v20, 16, v20")
    A("v_add_f32 v24, v24, v44")
    bf16_round(A, 24)
    A(f"s_sleep {KD_A0}")
    A("s_branch KD_F2B2")
    A.label("KD_F2SL")
    A(f"s_sleep {KD_A1}")
    A.label("KD_F2B2")
    stamp(A, 6)
    A("s_mov_b32 s12, 0")
    A("v_mov_b32 v61, 0xffff")
    A.label("KD_POLL")
    for i in range(3):
        A(f"global_load_dwordx4 {vr(A2+4*i,4)}, v99, s[32:33] offset:{1024*i} {SC}")
    A("s_waitcnt vmcnt(0)")
    A(f"v_pk_max_u16 v62, v{A2}, v{A2+1}")
    A(f"v_pk_max_u16 v63, v{A2+2}, v{A2+3}")
    for i in range(4, 12, 2):
        A(f"v_pk_max_u16 v62, v62, v{A2+i}")
        A(f"v_pk_max_u16 v63, v63, v{A2+i+1}")
    A("v_pk_max_u16 v62, v62, v63")
    A("v_lshrrev_b32 v63, 16, v62")
    A("v_and_b32 v62, 0xffff, v62")
    A("v_max_u32 v62, v62, v63")
    A("v_cmp_eq_u32 vcc, v61, v62")
    A("s_cmp_eq_u64 vcc, 0")
    A("s_cbranch_scc1 KD_ACT")
    A("s_add_u32 s12, s12, 1")
    A(f"s_cmp_ge_u32 s12, {SPIN_MAX}")
    A("s_cbranch_scc1 KD_ACT")
    A(f"s_sleep {KC_SLEEP}")
    A("s_branch KD_POLL")
    A.label("KD_ACT")
    A("v_lshlrev_b32 v28, 4, v2")
    A("s_lshl_b32 s6, s3, 10")
    A("v_add_u32 v29, s6, v28")
    for i in range(3):
        A(f"v_mfma_f32_16x16x32_bf16 v[32:35], {vr(A2+4*i,4)}, {vr(FR+4*i,4)}, v[32:35]")
    A("s_cmp_eq_u32 s38, 0")
    A("s_cbranch_scc1 KD_NOB")
    for i in range(3):
        A(f"v_mfma_f32_16x16x32_bf16 v[52:55], {vr(A2+4*i,4)}, {vr(FRB+4*i,4)}, v[52:55]")
    for i in range(4):
        A(f"v_mov_b32 v{64+i}, v{52+i}")
    for i in range(4):
        A(f"v_permlane32_swap_b32 v{52+i}, v{64+i}")
    for i in range(4):
        A(f"v_add_f32_dpp v{52+i}, v{64+i}, v{52+i} row_shl:8 row_mask:0xf bank_mask:0xf")
    A("ds_write_b128 v29, v[52:55] offset:9216")
    A.label("KD_NOB")
    stamp(A, 7)
    for i in range(4):
        A(f"v_mov_b32 v{60+i}, v{32+i}")
    for i in range(4):
        A(f"v_permlane32_swap_b32 v{32+i}, v{60+i}")
    for i in range(4):
        A(f"v_add_f32_dpp v{32+i}, v{60+i}, v{32+i} row_shl:8 row_mask:0xf bank_mask:0xf")
    A("ds_write_b128 v29, v[32:35] offset:1024")
    A("s_waitcnt lgkmcnt(0)")
    A("s_barrier")
    A("s_cmp_eq_u32 s9, 0")
    A("s_cbranch_scc1 KD_DONE2")
    A("v_lshrrev_b32 v56, 3, v2")
    A("v_and_b32 v57, 7, v2")
    A("v_lshrrev_b32 v58, 2, v56")
    A("v_lshlrev_b32 v58, 8, v58")
    A("v_lshl_add_u32 v58, v57, 4, v58")
    A("v_and_b32 v59, 3, v56")
    A("v_lshl_add_u32 v58, v59, 2, v58")
    A("s_lshl_b32 s6, s3, 13")
    A("v_add_u32 v58, s6, v58")
    for w in range(8):
        A(f"ds_read_b32 v{40+w}, v58 offset:{1024 + 1024*w}")
    A("s_waitcnt lgkmcnt(0)")
    for st in (4, 2, 1):
        for j in range(st):
            A(f"v_add_f32 v{40+j}, v{40+j}, v{40+st+j}")
    bf16_round(A, 40)
    A("v_mul_f32 v40, v40, v12")
    bf16_round(A, 40)
    A("v_add_f32 v40, v40, v20")
    bf16_round(A, 40)
    A("v_add_f32 v40, v40, v24")
    A("v_cvt_pk_bf16_f32 v40, v40, v40")
    A(f"global_store_short v36, v40, s[30:31] {SC}")
    A.label("KD_DONE2")
    k_end(A, 2)
    A.label("KD_END")
    A("s_endpgm")


KD_A0 = int(os.environ.get("KD_A0", "16"))
KD_A1 = int(os.environ.get("KD_A1", "36"))

KD_TMPL = """.amdhsa_kernel {name}
  .amdhsa_next_free_vgpr {vgpr}
  .amdhsa_next_free_sgpr 102
  .amdhsa_accum_offset {acc}
  .amdhsa_group_segment_fixed_size 0
  .amdhsa_kernarg_size 120
  .amdhsa_user_sgpr_count 2
  .amdhsa_user_sgpr_kernarg_segment_ptr 1
  .amdhsa_system_sgpr_workgroup_id_x 1
.end_amdhsa_kernel
"""

HEADER = """; Kernarg layout (120 bytes, ptrs only): in0..in11 at 0..88, d_out 96, d_debug 104, d_ws 112
"""


def build(kernels):
    s = HEADER
    for label, fn, grid, block, lds, vgpr in kernels:
        s += f"; @launch kernel={label} grid=({grid},1,1) block=({block},1,1) lds={lds}\n"
    s += '.amdgcn_target "amdgcn-amd-amdhsa--gfx950"\n.text\n'
    done = set()
    for label, fn, grid, block, lds, vgpr in kernels:
        if label in done:
            continue
        done.add(label)
        A = Asm()
        fn(A)
        s += f".globl {label}\n.p2align 8\n.type {label},@function\n{label}:\n" + A.finish() + "\n"
    s += '.section .rodata,"a"\n'
    done = set()
    for label, fn, grid, block, lds, vgpr in kernels:
        if label in done:
            continue
        done.add(label)
        s += ".p2align 6\n" + KD_TMPL.format(name=label, vgpr=vgpr, acc=min(256, (vgpr + 3) // 4 * 4))
    return s


PREFILL[0] = True
KERNELS = [
    ("ka_kernel", ka, 256, 1024, KA_LDS, 128),
    ("kd_kernel", kd, 256, 512, KD_LDS, 136),
]

if __name__ == "__main__":
    if len(sys.argv) > 2 and sys.argv[2] == "stamp":
        STAMP[0] = True
    text = build(KERNELS)
    open(sys.argv[1], "w").write(text)
    print("wrote", sys.argv[1], len(text), "bytes")
```

```python
import sys, os, struct
sys.path.insert(0, os.path.dirname(os.path.abspath(__file__)))
from asmlib import Asm

NAME = "sequential_preLN__ssm_conv_s4d__moe_arch_mod__prompt"

WS_UT = 0x0000000
WS_KD = 0x0280000
WS_SC = 0x03C0000
WS_AT = 0x0400000
WS_L2 = 0x0680000
WS_RK = 0x0900000
WS_ACT = 0x0910000
WS_SEL = 0x0918000
WS_WGU = 0x0A00000
WS_WD = 0x0E00000
WS_STAMP = 0x1800000
STAMP = [False]
NSTAMP = 12
ST_OPT = [""]


def k_begin(A):
    if STAMP[0]:
        A("s_memrealtime s[94:95]")
        for i in range(NSTAMP):
            A(f"s_mov_b64 s[{60+2*i}:{61+2*i}], 0")
        A("s_memtime s[60:61]")


def stamp(A, i):
    if STAMP[0]:
        A(f"s_memtime s[{60+2*i}:{61+2*i}]")


def k_end(A, kidx):
    if STAMP[0]:
        A(f"s_memtime s[{60+2*(NSTAMP-2)}:{61+2*(NSTAMP-2)}]")
        A("s_waitcnt vmcnt(0) lgkmcnt(0)")
        A("s_memrealtime s[96:97]")
        A(f"s_memtime s[{60+2*(NSTAMP-1)}:{61+2*(NSTAMP-1)}]")
        A("s_mov_b64 exec, -1")
        A("v_lshrrev_b32 v1, 6, v0")
        A("s_lshl_b32 s98, s2, 3")
        A("v_add_u32 v1, s98, v1")
        A("v_lshlrev_b32 v1, 7, v1")
        A(f"v_add_u32 v1, {WS_STAMP + kidx * 0x200000}, v1")
        A("s_waitcnt lgkmcnt(0)")
        A("v_mov_b32 v2, s94")
        A("v_mov_b32 v3, s95")
        A("v_mov_b32 v4, s96")
        A("v_mov_b32 v5, s97")
        A("global_store_dwordx4 v1, v[2:5], s[32:33]")
        for i in range(0, NSTAMP, 2):
            for j in range(4):
                A(f"v_mov_b32 v{2+j}, s{60+2*i+j}")
            A(f"global_store_dwordx4 v1, v[2:5], s[32:33] offset:{16+8*i}")
    A("s_endpgm")


def fbits(x):
    return struct.unpack("<I", struct.pack("<f", x))[0]


LOG2E = 1.4426950408889634
L2E_HI = fbits(LOG2E)
L2E_HI_F = struct.unpack("<f", struct.pack("<I", L2E_HI))[0]
L2E_LO = fbits(LOG2E - L2E_HI_F)
LN2 = fbits(0.6931471805599453)
INV2PI = fbits(0.15915494309189535)
INV640 = fbits(1.0 / 640.0)
EPS = fbits(1e-5)
ONE_LO = 0x00003f80
ONE_HI = 0x3f800000


def vr(a, n):
    return f"v[{a}:{a+n-1}]"


def bf16_round(A, reg):
    A(f"v_cvt_pk_bf16_f32 v{reg}, v{reg}, v{reg}")
    A(f"v_and_b32 v{reg}, 0xffff0000, v{reg}")


def exp_bf16(A, dst, src, t0, t1):
    A(f"v_mul_f32 v{t0}, s90, v{src}")
    A(f"v_fma_f32 v{t1}, v{src}, s90, -v{t0}")
    A(f"v_fma_f32 v{t1}, v{src}, s91, v{t1}")
    A(f"v_exp_f32 v{dst}, v{t0}")
    A(f"v_mul_f32 v{t1}, s92, v{t1}")
    A(f"v_fma_f32 v{dst}, v{dst}, v{t1}, v{dst}")
    bf16_round(A, dst)


def cmul(A, d, a, b):
    A(f"v_pk_mul_f32 {vr(d,2)}, {vr(a,2)}, {vr(b,2)} op_sel:[0,0] op_sel_hi:[0,1]")
    A(f"v_pk_fma_f32 {vr(d,2)}, {vr(a,2)}, {vr(b,2)}, {vr(d,2)} op_sel:[1,1,0] op_sel_hi:[1,0,1] neg_lo:[0,1,0]")


def ln_finish(A, s1, s2, t):
    A(f"v_mul_f32 v{s1}, {INV640}, v{s1}")
    A(f"v_mul_f32 v{s2}, {INV640}, v{s2}")
    A(f"v_fma_f32 v{s2}, -v{s1}, v{s1}, v{s2}")
    A(f"v_max_f32 v{s2}, 0, v{s2}")
    A(f"v_cvt_pk_bf16_f32 v{t}, v{s1}, v{s2}")
    A(f"v_lshlrev_b32 v{s1}, 16, v{t}")
    A(f"v_and_b32 v{s2}, 0xffff0000, v{t}")
    A(f"v_add_f32 v{s2}, {EPS}, v{s2}")
    bf16_round(A, s2)
    A(f"v_sqrt_f32 v{s2}, v{s2}")
    bf16_round(A, s2)
    A(f"v_rcp_f32 v{s2}, v{s2}")


def pair_swizzle(A, dst, src, tmp):
    A(f"s_and_b32 s{dst}, s{src}, 7")
    A(f"s_lshl_b32 s{dst}, s{dst}, 1")
    A(f"s_bfe_u32 s{tmp}, s{src}, 0x10003")
    A(f"s_or_b32 s{dst}, s{dst}, s{tmp}")
    A(f"s_andn2_b32 s{tmp}, s{src}, 15")
    A(f"s_or_b32 s{dst}, s{dst}, s{tmp}")


def wt_role(A, pfx, first_wg, nwaves_per_wg, lds_per_wave, it_lo, it_hi, kidx, opt, stride):
    A.label(f"{pfx}_WTR")
    A("s_load_dwordx4 s[16:19], s[0:1], 72")
    A("s_load_dwordx2 s[20:21], s[0:1], 88")
    A("v_lshrrev_b32 v1, 6, v0")
    A("v_readfirstlane_b32 s3, v1")
    A("v_and_b32 v2, 63, v0")
    if nwaves_per_wg > 0:
        A(f"s_sub_u32 s4, s2, {first_wg}")
        A(f"s_mul_i32 s4, s4, {nwaves_per_wg}")
        A("s_add_u32 s4, s4, s3")
        A(f"s_add_u32 s4, s4, {it_lo}")
    elif nwaves_per_wg == -2:
        A("s_sub_u32 s4, s3, 4")
        A("s_mul_i32 s4, s4, 96")
        A("s_add_u32 s4, s4, s2")
        A("s_sub_u32 s4, s4, 160")
    else:
        A("s_sub_u32 s4, s3, 3")
        A("s_mul_i32 s4, s4, 96")
        A("s_add_u32 s4, s4, s2")
    A(f"s_mul_i32 s5, s3, {lds_per_wave}")
    A("v_lshrrev_b32 v3, 3, v2")
    A("v_and_b32 v4, 7, v2")
    A("v_lshlrev_b32 v4, 4, v4")
    A("v_lshrrev_b32 v5, 4, v2")
    A("v_lshlrev_b32 v5, 3, v5")
    A("v_and_b32 v6, 15, v2")
    A("v_lshrrev_b32 v6, 2, v6")
    A("v_add_u32 v5, v5, v6")
    A("v_lshlrev_b32 v5, 7, v5")
    A("v_and_b32 v6, 3, v2")
    A("v_lshlrev_b32 v7, 3, v6")
    A("v_add_u32 v8, v5, v7")
    A("v_add_u32 v8, s5, v8")
    A("v_add_u32 v9, 4080, v8")
    A("v_cmp_gt_u32 vcc, 2, v6")
    A("v_cndmask_b32 v9, v9, v8, vcc")
    A("v_lshlrev_b32 v10, 4, v2")
    A("v_and_b32 v13, 15, v2")
    A("v_lshrrev_b32 v14, 3, v13")
    A("v_mul_u32_u24 v14, 24576, v14")
    A("v_and_b32 v13, 7, v13")
    A("v_lshlrev_b32 v13, 4, v13")
    A("v_add_u32 v14, v14, v13")
    A("v_lshrrev_b32 v13, 4, v2")
    A("v_lshlrev_b32 v13, 7, v13")
    A("v_add_u32 v14, v14, v13")
    A("v_mul_u32_u24 v50, 3072, v3")
    A("v_add_u32 v50, v50, v4")
    A("v_mul_u32_u24 v51, 1280, v3")
    A("v_add_u32 v51, v51, v4")
    A("s_waitcnt lgkmcnt(0)")
    A("s_mov_b32 s6, s4")
    A(f"s_cmp_ge_u32 s6, {it_hi}")
    A(f"s_cbranch_scc1 {pfx}_WT_FIN")
    A.label(f"{pfx}_WT_LOOP")
    A("s_cmp_ge_u32 s6, 480")
    A(f"s_cbranch_scc1 {pfx}_WT_DOWN")
    A("s_mul_hi_u32 s7, s6, 0xccccccd")
    A("s_mul_i32 s8, s7, 20")
    A("s_sub_u32 s8, s6, s8")
    A("s_mul_i32 s9, s8, 98304")
    A("s_lshl_b32 s10, s7, 7")
    A("s_add_u32 s9, s9, s10")
    A("v_add_u32 v11, s9, v50")
    for j in range(4):
        A(f"s_add_u32 s10, s5, {1024*j}")
        A("s_mov_b32 m0, s10")
        A("global_load_lds_dwordx4 v11, s[16:17]")
        A(f"s_add_u32 s10, s5, {4096 + 1024*j}")
        A("s_mov_b32 m0, s10")
        A("global_load_lds_dwordx4 v11, s[18:19]")
        if j < 3:
            A("v_add_u32 v11, 24576, v11")
    A("s_mul_i32 s9, s7, 163840")
    A("s_lshl_b32 s10, s8, 10")
    A("s_add_u32 s9, s9, s10")
    A(f"s_add_u32 s9, s9, {WS_WGU}")
    A("v_add_u32 v12, s9, v10")
    A("s_waitcnt vmcnt(0)")
    for jj in range(8):
        A(f"ds_read_b64_tr_b16 {vr(16+4*jj,2)}, v9 offset:{16*jj}")
        A(f"ds_read_b64_tr_b16 {vr(18+4*jj,2)}, v9 offset:{16*jj + 512}")
    A("s_waitcnt lgkmcnt(0)")
    for jj in range(8):
        A(f"global_store_dwordx4 v12, {vr(16+4*jj,4)}, s[32:33] {opt}")
        if jj < 7:
            A("v_add_u32 v12, 20480, v12")
    A(f"s_branch {pfx}_WT_NEXT")
    A.label(f"{pfx}_WT_DOWN")
    A("s_sub_u32 s11, s6, 480")
    A("s_mul_hi_u32 s7, s11, 0x5555556")
    A("s_mul_i32 s8, s7, 48")
    A("s_sub_u32 s8, s11, s8")
    A("s_mul_i32 s9, s8, 40960")
    A("s_lshl_b32 s10, s7, 7")
    A("s_add_u32 s9, s9, s10")
    A("v_add_u32 v11, s9, v51")
    for j in range(4):
        A(f"s_add_u32 s10, s5, {1024*j}")
        A("s_mov_b32 m0, s10")
        A("global_load_lds_dwordx4 v11, s[20:21]")
        if j < 3:
            A("v_add_u32 v11, 10240, v11")
    A("s_mul_i32 s9, s7, 196608")
    A("s_lshl_b32 s10, s8, 9")
    A("s_add_u32 s9, s9, s10")
    A(f"s_add_u32 s9, s9, {WS_WD}")
    A("v_add_u32 v12, s9, v14")
    A("s_waitcnt vmcnt(0)")
    for jj in range(4):
        A(f"ds_read_b64_tr_b16 {vr(16+4*jj,2)}, v8 offset:{32*jj}")
        A(f"ds_read_b64_tr_b16 {vr(18+4*jj,2)}, v8 offset:{32*jj + 512}")
    A("s_waitcnt lgkmcnt(0)")
    for jj in range(4):
        A(f"global_store_dwordx4 v12, {vr(16+4*jj,4)}, s[32:33] {opt}")
        if jj < 3:
            A("v_add_u32 v12, 49152, v12")
    A.label(f"{pfx}_WT_NEXT")
    A(f"s_add_u32 s6, s6, {stride}")
    A(f"s_cmp_lt_u32 s6, {it_hi}")
    A(f"s_cbranch_scc1 {pfx}_WT_LOOP")
    A.label(f"{pfx}_WT_FIN")
    k_end(A, kidx)


K1_ROWB = 288
K1_BUF = 16 * K1_ROWB


def cmul_batch(A, items):
    for d, a, b in items:
        A(f"v_pk_mul_f32 {vr(d,2)}, {vr(a,2)}, {vr(b,2)} op_sel:[0,0] op_sel_hi:[0,1]")
    for d, a, b in items:
        A(f"v_pk_fma_f32 {vr(d,2)}, {vr(a,2)}, {vr(b,2)}, {vr(d,2)} op_sel:[1,1,0] op_sel_hi:[1,0,1] neg_lo:[0,1,0]")


KG_SZ = 2 * K1_BUF
KEO_ST = 27712
KEO_BASE = 0
KA_KE, KA_KO = 0, 4160
KA_U = 12 * KG_SZ
U_ST = 4608
KA_T = KA_U + 4 * U_ST
T_ST = 1600
KA_SC = KA_T + 4 * T_ST
KA_LN = KA_SC + 64
KA_CNT = KA_LN
KA_STATS = KA_LN + 128
KA_STAGE = KA_LN + 192
KA_LDS = KA_STAGE + 10240 + 2560


def group_sync(A, idx, n, lbl):
    A("s_waitcnt lgkmcnt(0)")
    A(f"v_mov_b32 v18, {KA_CNT + 4*idx}")
    A("v_mov_b32 v19, 1")
    A("s_mov_b64 exec, 1")
    A("ds_add_u32 v18, v19")
    A("s_mov_b64 exec, -1")
    A("s_mov_b32 s12, 0")
    A.label(lbl)
    A("ds_read_b32 v19, v18")
    A("s_waitcnt lgkmcnt(0)")
    A("v_readfirstlane_b32 s13, v19")
    A(f"s_cmp_ge_u32 s13, {n}")
    A(f"s_cbranch_scc1 {lbl}_OK")
    A("s_add_u32 s12, s12, 1")
    A(f"s_cmp_lt_u32 s12, {1 << 22}")
    A(f"s_cbranch_scc1 {lbl}")
    A.label(lbl + "_OK")
NPROD = 96
PREFILL = [False]
TLBW = int(os.environ.get('TLBW', '0'))
KEY_STRIDE = int(os.environ.get('KEY_STRIDE', '32'))
WS_FLAG = 0x0930000
WS_EPOCH = 0x0928000
SC = os.environ.get('SCMOD', 'sc1')
PMOD = os.environ.get('PMOD', SC)
FMOD = os.environ.get('FMOD', SC)
SPIN_MAX = 1 << 16
POLL_SLEEP = int(os.environ.get('POLL_SLEEP', '6'))
POLL_FIRST = int(os.environ.get('POLL_FIRST', '24'))
FLAG64 = int(os.environ.get('FLAG64', '1'))


def k_end16(A, kidx):
    if STAMP[0]:
        A(f"s_memtime s[{60+2*(NSTAMP-2)}:{61+2*(NSTAMP-2)}]")
        A("s_waitcnt vmcnt(0) lgkmcnt(0)")
        A("s_memrealtime s[96:97]")
        A(f"s_memtime s[{60+2*(NSTAMP-1)}:{61+2*(NSTAMP-1)}]")
        A("s_mov_b64 exec, -1")
        A("v_lshrrev_b32 v1, 6, v0")
        A("s_lshl_b32 s98, s2, 4")
        A("v_add_u32 v1, s98, v1")
        A("v_lshlrev_b32 v1, 7, v1")
        A(f"v_add_u32 v1, {WS_STAMP + kidx * 0x200000}, v1")
        A("s_waitcnt lgkmcnt(0)")
        A("v_mov_b32 v2, s94")
        A("v_mov_b32 v3, s95")
        A("v_mov_b32 v4, s96")
        A("v_mov_b32 v5, s97")
        A("global_store_dwordx4 v1, v[2:5], s[32:33]")
        for i in range(0, NSTAMP, 2):
            for j in range(4):
                A(f"v_mov_b32 v{2+j}, s{60+2*i+j}")
            A(f"global_store_dwordx4 v1, v[2:5], s[32:33] offset:{16+8*i}")
    A("s_endpgm")


k_end = k_end16


def arrive(A, idx):
    A("s_waitcnt lgkmcnt(0)")
    A(f"v_mov_b32 v18, {KA_CNT + 4*idx}")
    A("v_mov_b32 v19, 1")
    A("s_mov_b64 exec, 1")
    A("ds_add_u32 v18, v19")
    A("s_mov_b64 exec, -1")


def wait_count(A, idx, n, lbl, sleep=1):
    A(f"v_mov_b32 v18, {KA_CNT + 4*idx}")
    A("s_mov_b32 s12, 0")
    A.label(lbl)
    A("ds_read_b32 v19, v18")
    A("s_waitcnt lgkmcnt(0)")
    A("v_readfirstlane_b32 s13, v19")
    A(f"s_cmp_ge_u32 s13, {n}")
    A(f"s_cbranch_scc1 {lbl}_OK")
    A("s_add_u32 s12, s12, 1")
    if sleep:
        A(f"s_sleep {sleep}")
    A(f"s_cmp_lt_u32 s12, {1 << 22}")
    A(f"s_cbranch_scc1 {lbl}")
    A.label(lbl + "_OK")


def arrive_s(A, base_idx, sreg):
    A("s_waitcnt lgkmcnt(0)")
    A(f"s_lshl_b32 s12, s{sreg}, 2")
    A(f"s_add_u32 s12, s12, {KA_CNT + 4*base_idx}")
    A("v_mov_b32 v18, s12")
    A("v_mov_b32 v19, 1")
    A("s_mov_b64 exec, 1")
    A("ds_add_u32 v18, v19")
    A("s_mov_b64 exec, -1")


def wait_s(A, base_idx, sreg, n, lbl):
    A(f"s_lshl_b32 s12, s{sreg}, 2")
    A(f"s_add_u32 s12, s12, {KA_CNT + 4*base_idx}")
    A("v_mov_b32 v18, s12")
    A("s_mov_b32 s12, 0")
    A.label(lbl)
    A("ds_read_b32 v19, v18")
    A("s_waitcnt lgkmcnt(0)")
    A("v_readfirstlane_b32 s13, v19")
    A(f"s_cmp_ge_u32 s13, {n}")
    A(f"s_cbranch_scc1 {lbl}_OK")
    A("s_add_u32 s12, s12, 1")
    A("s_sleep 1")
    A(f"s_cmp_lt_u32 s12, {1 << 22}")
    A(f"s_cbranch_scc1 {lbl}")
    A.label(lbl + "_OK")


def poll_flags(A, lbl):
    if FLAG64 == 2:
        A("v_lshlrev_b32 v3, 7, v2")
        A(f"v_add_u32 v3, {WS_FLAG}, v3")
        for j in range(1, 4):
            A(f"v_add_u32 v{44+j}, {8192*j}, v3")
    elif FLAG64:
        A("v_lshlrev_b32 v3, 7, v2")
        A(f"v_add_u32 v3, {WS_FLAG}, v3")
    else:
        A("v_lshrrev_b32 v3, 4, v2")
        A("v_lshlrev_b32 v3, 7, v3")
        A("v_and_b32 v10, 15, v2")
        A("v_lshl_add_u32 v3, v10, 2, v3")
        A(f"v_add_u32 v3, {WS_FLAG}, v3")
    A("s_mov_b32 s12, 0")
    if POLL_FIRST:
        A(f"s_sleep {POLL_FIRST}")
    A.label(lbl)
    if FLAG64 == 2:
        A(f"global_load_dword v40, v3, s[32:33] {PMOD}")
        for j in range(1, 4):
            A(f"global_load_dword v{40+j}, v{44+j}, s[32:33] {PMOD}")
    elif FLAG64:
        A(f"global_load_dwordx4 v[40:43], v3, s[32:33] {PMOD}")
    else:
        for j in range(4):
            A(f"global_load_dword v{40+j}, v3, s[32:33] offset:{512*j} {PMOD}")
    A("s_waitcnt vmcnt(0)")
    A("v_cmp_ne_u32 vcc, s15, v40")
    A("v_cmp_ne_u32 s[20:21], s15, v41")
    A("v_cmp_ne_u32 s[22:23], s15, v42")
    A("v_cmp_ne_u32 s[24:25], s15, v43")
    A("s_or_b64 vcc, vcc, s[20:21]")
    A("s_or_b64 s[22:23], s[22:23], s[24:25]")
    A("s_or_b64 vcc, vcc, s[22:23]")
    A("s_cmp_eq_u64 vcc, 0")
    A(f"s_cbranch_scc1 {lbl}_SEEN")
    A("s_add_u32 s12, s12, 1")
    A(f"s_cmp_ge_u32 s12, {SPIN_MAX}")
    A(f"s_cbranch_scc1 {lbl}_SEEN")
    A(f"s_sleep {POLL_SLEEP}")
    A(f"s_branch {lbl}")
    A.label(lbl + "_SEEN")


def poll_epoch(A, lbl):
    A(f"v_mov_b32 v3, {WS_EPOCH}")
    A("s_mov_b32 s12, 0")
    A("s_sleep 48")
    A.label(lbl)
    A(f"global_load_dword v40, v3, s[32:33] {SC}")
    A("s_waitcnt vmcnt(0)")
    A("v_readfirstlane_b32 s13, v40")
    A("s_cmp_eq_u32 s13, s15")
    A(f"s_cbranch_scc1 {lbl}_SEEN")
    A("s_add_u32 s12, s12, 1")
    A(f"s_cmp_ge_u32 s12, {SPIN_MAX}")
    A(f"s_cbranch_scc1 {lbl}_SEEN")
    A("s_sleep 16")
    A(f"s_branch {lbl}")
    A.label(lbl + "_SEEN")


def kgen_wave(A):
    A(f"s_mov_b32 s90, {L2E_HI}")
    A(f"s_mov_b32 s91, {L2E_LO}")
    A(f"s_mov_b32 s92, {LN2}")
    A("v_and_b32 v3, 15, v2")
    A("v_lshrrev_b32 v4, 4, v2")
    A("s_cmp_eq_u32 s36, 1")
    A("s_cbranch_scc1 KA_A1")
    A("s_cmp_eq_u32 s36, 2")
    A("s_cbranch_scc1 KA_A2")
    A("v_lshrrev_b32 v5, 1, v4")
    A("v_lshlrev_b32 v5, 7, v5")
    A("v_lshl_add_u32 v5, v3, 3, v5")
    A("v_and_b32 v6, 1, v4")
    A("v_lshl_add_u32 v5, v6, 2, v5")
    A("s_branch KA_A3")
    A.label("KA_A1")
    A("v_lshlrev_b32 v5, 1, v3")
    A("v_add_u32 v5, v5, v4")
    A("v_add_u32 v5, 384, v5")
    A("v_lshlrev_b32 v6, 4, v4")
    A("v_add_u32 v6, v6, v3")
    A("v_add_u32 v6, 480, v6")
    A("v_cmp_gt_u32 vcc, 2, v4")
    A("v_cndmask_b32 v5, v6, v5, vcc")
    A("s_branch KA_A3")
    A.label("KA_A2")
    A("v_lshlrev_b32 v5, 6, v4")
    A("v_lshlrev_b32 v6, 2, v3")
    A("v_add_u32 v5, v5, v6")
    A("v_add_u32 v5, 256, v5")
    A("v_lshlrev_b32 v6, 2, v2")
    A("v_add_u32 v6, 520, v6")
    A("v_cmp_gt_u32 vcc, 2, v4")
    A("v_cndmask_b32 v5, v6, v5, vcc")
    A("v_mov_b32 v6, 640")
    A("v_cmp_eq_u32 vcc, 32, v2")
    A("v_cndmask_b32 v5, v5, v6, vcc")
    A.label("KA_A3")
    A(f"s_mul_i32 s11, s37, {T_ST}")
    A(f"s_add_u32 s11, s11, {KA_T}")
    A("v_lshlrev_b32 v29, 1, v5")
    A("v_add_u32 v29, s11, v29")
    A(f"v_mul_u32_u24 v32, {K1_ROWB}, v3")
    A("v_lshlrev_b32 v5, 4, v4")
    A("v_add_u32 v32, v32, v5")
    A("v_add_u32 v32, s7, v32")
    AW = 120
    A("v_lshlrev_b32 v5, 2, v2")
    A(f"v_add_u32 v{AW}, s7, v5")
    for k in range(1, 8):
        A(f"v_add_u32 v{AW+k}, {(k//4)*K1_BUF + (k%4)*4*K1_ROWB}, v{AW}")
    stamp(A, 1)
    A("s_waitcnt lgkmcnt(0)")
    A("s_bitcmp1_b32 s34, 0")
    A("s_cbranch_scc1 KA_ODD")
    A("s_lshl_b32 s6, s6, 16")
    A.label("KA_ODD")
    A("s_and_b32 s6, s6, 0xffff0000")
    A("v_mov_b32 v5, s6")
    exp_bf16(A, 33, 5, 6, 7)
    A("s_waitcnt vmcnt(0)")
    stamp(A, 2)
    for i in range(6):
        A(f"v_and_b32 v{14+i}, 0x7fff, v{14+i}")
    A("v_max3_u32 v14, v14, v15, v16")
    A("v_max3_u32 v17, v17, v18, v19")
    A("v_max_u32 v14, v14, v17")
    A("v_lshlrev_b32 v10, 16, v10")
    A("v_lshlrev_b32 v11, 16, v11")
    A("v_mul_f32 v6, s90, v10")
    A("v_max_u32_dpp v14, v14, v14 row_shr:1 row_mask:0xf bank_mask:0xf")
    A("v_fma_f32 v7, v10, s90, -v6")
    A("v_exp_f32 v34, v6")
    A("v_max_u32_dpp v14, v14, v14 row_shr:2 row_mask:0xf bank_mask:0xf")
    A("v_fma_f32 v7, v10, s91, v7")
    A("v_mul_f32 v35, v11, v33")
    A("v_max_u32_dpp v14, v14, v14 row_shr:4 row_mask:0xf bank_mask:0xf")
    A("v_mul_f32 v7, s92, v7")
    A(f"v_mul_f32 v35, {INV2PI}, v35")
    A("v_max_u32_dpp v14, v14, v14 row_shr:8 row_mask:0xf bank_mask:0xf")
    A("v_fma_f32 v34, v34, v7, v34")
    A("v_lshlrev_b32 v12, 16, v12")
    A("v_max_u32_dpp v14, v14, v14 row_bcast:15 row_mask:0xa bank_mask:0xf")
    A("v_cvt_pk_bf16_f32 v34, v34, v34")
    A("v_lshlrev_b32 v13, 16, v13")
    A("v_max_u32_dpp v14, v14, v14 row_bcast:31 row_mask:0xc bank_mask:0xf")
    A("v_and_b32 v34, 0xffff0000, v34")
    A("v_mul_f32 v34, v34, v33")
    A("v_readlane_b32 s8, v14, 63")
    A("v_mul_f32 v34, s90, v34")
    A("v_sub_f32 v34, 0, v34")
    A("s_lshr_b32 s8, s8, 7")
    A("s_max_u32 s8, s8, 6")
    A("s_min_u32 s8, s8, 253")
    A("s_sub_u32 s9, 260, s8")
    A("s_lshl_b32 s9, s9, 23")
    A("s_sub_u32 s10, s8, 132")

    def direct(t, p):
        lit = "1.0" if p == 1 else hex(fbits(float(p)))
        A(f"v_mul_f32 v{t}, {lit}, v34")
        A(f"v_mul_f32 v{t+1}, {lit}, v35")
        A(f"v_fract_f32 v{t+1}, v{t+1}")

    def direct2(t):
        A(f"v_exp_f32 v{t}, v{t}")
        A(f"v_cos_f32 v{t+2}, v{t+1}")
        A(f"v_sin_f32 v{t+3}, v{t+1}")

    def direct_fin(d, t):
        A(f"v_mul_f32 v{d}, v{t}, v{t+2}")
        A(f"v_mul_f32 v{d+1}, v{t}, v{t+3}")

    C = 36
    g = {i: 38 + 2 * (i - 1) for i in range(1, 9)}
    G128, G256, G512, G1024 = 54, 56, 58, 60
    T = [62, 64, 66, 68, 70, 72, 74, 76]
    PK = list(range(78, 86))
    BF, AF = 86, 102
    h = {1: g[8]}
    for i in range(2, 9):
        h[i] = AF + 2 * (i - 2)
    AF2 = 62
    direct(62, 1)
    direct(66, 8)
    direct(70, 128)
    direct2(62)
    direct2(66)
    direct2(70)
    A(f"v_mul_f32 v{C}, s9, v12")
    A(f"v_mul_f32 v{C+1}, s9, v13")
    A("v_ldexp_f32 v6, v33, s10")
    A("s_lshl_b32 s11, s37, 2")
    A(f"s_add_u32 s11, s11, {KA_SC}")
    A("v_mov_b32 v7, s11")
    A("ds_write_b32 v7, v6")
    direct_fin(g[1], 62)
    direct_fin(g[8], 66)
    direct_fin(G128, 70)
    stamp(A, 3)

    def wr(rows_src, buf, neg):
        regs = []
        for k, (row, src) in enumerate(rows_src):
            p = PK[k % 8]
            if src is None:
                A(f"v_mov_b32 v{p}, 0x00003c00")
            else:
                A(f"v_cvt_pk_f16_f32 v{p}, v{src}, {'-' if neg else ''}v{src+1}")
            regs.append(p)
        k = 0
        n = 0
        while k < len(rows_src):
            r0 = rows_src[k][0]
            if k + 1 < len(rows_src) and rows_src[k + 1][0] // 4 == r0 // 4:
                r1 = rows_src[k + 1][0]
                A(f"ds_write2_b32 v{AW + 4*buf + r0//4}, v{regs[k]}, v{regs[k+1]} offset0:{(r0%4)*72} offset1:{(r1%4)*72}")
                k += 2
            else:
                A(f"ds_write_b32 v{AW + 4*buf + r0//4}, v{regs[k]} offset:{(r0%4)*K1_ROWB}")
                k += 1
            n += 1
        return n

    def frags(dst, buf):
        for j in range(4):
            A(f"ds_read_b128 {vr(dst+4*j,4)}, v32 offset:{buf*K1_BUF + 64*j}")

    def mfmas(acc, a, b):
        for j in range(4):
            A(f"v_mfma_f32_16x16x32_f16 {vr(acc,4)}, {vr(a+4*j,4)}, {vr(b+4*j,4)}, {vr(acc,4)}")

    cmul_batch(A, [(g[2], g[1], g[1]), (h[2], h[1], h[1]), (G256, G128, G128)])
    cmul_batch(A, [(g[3], g[2], g[1]), (g[4], g[2], g[2]), (h[3], h[2], h[1]), (h[4], h[2], h[2]), (G512, G256, G256)])
    cmul_batch(A, [(g[5], g[4], g[1]), (g[6], g[4], g[2]), (g[7], g[4], g[3]), (h[5], h[4], h[1]), (h[6], h[4], h[2]),
                   (h[7], h[4], h[3]), (h[8], h[4], h[4]), (G1024, G512, G512)])
    for i in range(4):
        A(f"v_mov_b32 v{20+i}, 0")
        A(f"v_mov_b32 v{24+i}, 0")
        A(f"v_mov_b32 v{4+i}, 0")
    wr([(0, None)] + [(i, h[i]) for i in range(1, 8)], 0, False)
    cmul_batch(A, [(T[i - 1], h[8], h[i]) for i in range(1, 8)])
    wr([(8, h[8])] + [(8 + i, T[i - 1]) for i in range(1, 8)], 0, False)
    frags(BF, 0)
    stamp(A, 4)
    c128 = T[7]
    cmul_batch(A, [(T[i - 1], C, g[i]) for i in range(1, 8)] + [(c128, C, G128)])
    wr([(0, C)] + [(i, T[i - 1]) for i in range(1, 8)], 1, True)
    cmul_batch(A, [(T[i - 1], c128, g[i]) for i in range(1, 8)])
    wr([(8, c128)] + [(8 + i, T[i - 1]) for i in range(1, 8)], 1, True)
    frags(AF, 1)
    cmul_batch(A, [(T[0], C, G512), (T[4], C, G1024)])
    cmul_batch(A, [(T[1], T[0], G128), (T[2], T[0], G256), (T[5], T[4], G256), (T[6], T[4], G512)])
    cmul_batch(A, [(T[3], T[2], G128), (T[7], T[6], G256)])
    n1 = wr([(i, T[i]) for i in range(4)] + [(8 + i, T[4 + i]) for i in range(4)], 0, True)
    c2048 = g[1]
    cmul_batch(A, [(c2048, T[4], G1024)])
    D4 = [g[3], g[5], g[7], g[8]]
    cmul_batch(A, [(D4[i], T[i], g[4]) for i in range(4)])
    A("s_waitcnt lgkmcnt(%d)" % n1)
    mfmas(20, AF, BF)
    cmul_batch(A, [(T[i], T[4 + i], G128) for i in range(4)])
    wr([(4 + i, D4[i]) for i in range(4)] + [(12 + i, T[i]) for i in range(4)], 0, True)
    frags(AF, 0)
    stamp(A, 5)
    cmul_batch(A, [(T[0], C, G256)])
    cmul_batch(A, [(T[4], T[0], G128), (T[1], T[0], g[2]), (T[2], T[0], g[4]), (T[3], T[0], g[6])])
    cmul_batch(A, [(T[5], T[4], g[2]), (T[6], T[4], g[4]), (T[7], T[4], g[6])])
    n2 = wr([(i, T[i]) for i in range(8)], 1, True)
    n2 += wr([(8, c2048)], 1, True)
    A("s_waitcnt lgkmcnt(%d)" % n2)
    mfmas(24, AF, BF)
    frags(AF2, 1)
    A("s_waitcnt lgkmcnt(0)")
    mfmas(4, AF2, BF)
    A("v_lshlrev_b32 v28, 4, v2")
    A("v_add_u32 v30, s7, v28")
    for t, r in enumerate((20, 24, 4)):
        A(f"ds_write_b128 v30, {vr(r,4)} offset:{1024*t}")
    stamp(A, 6)


def expand_round(A, r, lbl):
    A("v_lshlrev_b32 v28, 4, v2")
    A("v_add_u32 v28, s39, v28")
    A("s_mov_b32 s22, 0x01000100")
    A("s_mov_b32 s23, 0x03020302")
    if r < 2:
        A("v_lshlrev_b32 v26, 1, v2")
        A(f"v_sub_u32 v26, {2*(384+255) - 128*r}, v26")
        A("v_add_u32 v26, s40, v26")
        A("ds_read_u16 v40, v26")
        A("ds_read_u16 v41, v26 offset:2")
        A("v_and_b32 v16, 1, v2")
        A("v_cmp_eq_u32 s[20:21], 1, v16")
        A("s_waitcnt lgkmcnt(0)")
        w = 40
        A(f"v_lshl_or_b32 v{w}, v{w+1}, 16, v{w}")
        A(f"v_perm_b32 v{w+2}, v{w}, v{w}, s23")
        A(f"v_perm_b32 v{w+4}, v{w}, v{w}, s22")
        A(f"v_alignbit_b32 v{w+1}, v{w}, v{w}, 16")
        A(f"v_mov_b32 v{w+5}, v{w+4}")
        A(f"v_mov_b32 v{w+6}, v{w+2}")
        A(f"v_cndmask_b32 v{w+3}, v{w+2}, v{w+1}, s[20:21]")
        A(f"v_cndmask_b32 v{w+7}, v{w+1}, v{w+4}, s[20:21]")
        A(f"ds_write_b64 v28, {vr(w+2,2)} offset:{KA_KE + 1024*r}")
        A(f"ds_write_b64 v28, {vr(w+4,2)} offset:{KA_KE + 1024*r + 8}")
        A(f"ds_write_b64 v28, {vr(w+6,2)} offset:{KA_KO + 1024*r}")
        A(f"ds_write_b64 v28, {vr(w+4,2)} offset:{KA_KO + 1024*r + 8}")
    elif r == 2:
        A("v_lshlrev_b32 v27, 2, v2")
        A(f"v_sub_u32 v27, {512 + 4*127}, v27")
        A("v_add_u32 v27, s40, v27")
        A("ds_read_b32 v56, v27")
        A("ds_read_u16 v57, v27 offset:4")
        A("s_mov_b32 s24, 0x07060100")
        A("s_waitcnt lgkmcnt(0)")
        A("v_perm_b32 v40, v57, v57, s22")
        A("v_perm_b32 v41, v56, v56, s23")
        A("v_alignbit_b32 v42, v56, v56, 16")
        A("v_perm_b32 v43, v56, v56, s22")
        A("v_perm_b32 v44, v56, v57, s24")
        A("v_mov_b32 v45, v41")
        A("v_mov_b32 v46, v43")
        A("v_mov_b32 v47, v43")
        A(f"ds_write_b128 v28, v[40:43] offset:{KA_KE + 2048}")
        A(f"ds_write_b128 v28, v[44:47] offset:{KA_KO + 2048}")
    else:
        for k in range(9):
            A(f"ds_read_u16 v{40+k}, v{30+k}")
        A("v_mov_b32 v12, 0")
        A("v_and_b32 v14, 15, v2")
        A("v_lshlrev_b32 v14, 2, v14")
        A("v_add_u32 v14, s39, v14")
        A(f"ds_write_b32 v14, v12 offset:{KA_KE + 4096}")
        A(f"ds_write_b32 v14, v12 offset:{KA_KO + 4096}")
        A("s_waitcnt lgkmcnt(2)")
        for k in range(4):
            A(f"v_lshl_or_b32 v{52+k}, v{41+2*k}, 16, v{40+2*k}")
        A("v_alignbit_b32 v56, v53, v52, 16")
        A("v_alignbit_b32 v57, v54, v53, 16")
        A("v_alignbit_b32 v58, v55, v54, 16")
        A("v_alignbit_b32 v59, v48, v55, 16")
        A(f"ds_write_b128 v28, v[52:55] offset:{KA_KE + 3072}")
        A(f"ds_write_b128 v28, v[56:59] offset:{KA_KO + 3072}")
        A("v_mov_b32 v14, s39")
        A(f"ds_write_b16 v14, v12 offset:{KA_KO + 2*2047}")


def ka(A):
    A("s_cmp_ge_u32 s2, 256")
    A("s_cbranch_scc1 KA_END")
    k_begin(A)
    A("s_load_dwordx16 s[16:31], s[0:1], 0")
    A("s_load_dwordx4 s[44:47], s[0:1], 104")
    A("v_lshrrev_b32 v1, 6, v0")
    A("v_readfirstlane_b32 s3, v1")
    A("v_and_b32 v2, 63, v0")
    A("v_mov_b32 v3, 0")
    A("v_lshlrev_b32 v4, 2, v2")
    A(f"v_add_u32 v4, {KA_CNT}, v4")
    A("s_cmp_lg_u32 s3, 0")
    A("s_cbranch_scc1 KA_NOZ")
    A("s_mov_b64 exec, 0xffffffff")
    A("ds_write_b32 v4, v3")
    A("s_mov_b64 exec, -1")
    A.label("KA_NOZ")
    A("s_mov_b32 s4, s2")
    pair_swizzle(A, 35, 4, 6)
    A("s_sub_u32 s4, s3, 4")
    A("s_mul_i32 s37, s4, 11")
    A("s_lshr_b32 s37, s37, 5")
    A("s_mul_i32 s36, s37, 3")
    A("s_sub_u32 s36, s4, s36")
    A("s_lshl_b32 s34, s35, 2")
    A("s_add_u32 s34, s34, s37")
    A(f"s_mul_i32 s7, s4, {KG_SZ}")
    A("s_mul_i32 s4, s34, 384")
    A("s_lshr_b32 s5, s34, 1")
    A("s_lshl_b32 s5, s5, 2")
    A("s_lshl_b32 s8, s36, 7")
    A("s_add_u32 s8, s8, s4")
    A("v_lshlrev_b32 v3, 1, v2")
    A("v_add_u32 v1, s8, v3")
    A("v_add_u32 v3, s4, v3")
    A("s_waitcnt lgkmcnt(0)")
    A("s_mov_b32 s32, s46")
    A("s_mov_b32 s33, s47")
    A("s_cmp_lt_u32 s3, 4")
    A("s_cbranch_scc1 KA_B0")
    A(f"s_cmp_ge_u32 s2, 160")
    A("s_cbranch_scc1 KA_B0")
    A("s_load_dword s6, s[26:27], s5")
    A("global_load_ushort v10, v1, s[18:19]")
    A("global_load_ushort v11, v1, s[20:21]")
    A("global_load_ushort v12, v1, s[22:23]")
    A("global_load_ushort v13, v1, s[24:25]")
    for i in range(3):
        A(f"global_load_ushort v{14+i}, v3, s[22:23] offset:{128*i}")
        A(f"global_load_ushort v{17+i}, v3, s[24:25] offset:{128*i}")
    A.label("KA_B0")
    A("s_barrier")
    A("s_cmp_lt_u32 s3, 3")
    A("s_cbranch_scc1 KA_LN1")
    A("s_cmp_lg_u32 s3, 3")
    A("s_cbranch_scc1 KA_NOTAG")
    A(f"s_mov_b32 s14, {WS_EPOCH}")
    A("s_load_dword s15, s[32:33], s14")
    if TLBW >= 2:
        A("s_load_dwordx2 s[36:37], s[0:1], 96")
        A("s_load_dwordx2 s[38:39], s[0:1], 64")
        A("v_min_u32 v3, 7, v2")
        A("v_lshlrev_b32 v3, 21, v3")
        A("global_load_dword v60, v3, s[32:33]")
        A("v_min_u32 v5, 1, v2")
        A("v_lshlrev_b32 v5, 21, v5")
        A("v_mov_b32 v7, 0")
        A("s_waitcnt lgkmcnt(0)")
        A("global_load_dword v61, v5, s[36:37]")
        A("global_load_dword v62, v7, s[38:39]")
    A(f"v_mov_b32 v18, {KA_CNT + 96}")
    A("s_waitcnt lgkmcnt(0)")
    A("s_mul_i32 s15, s15, 0x9E3779B1")
    A("s_add_u32 s15, s15, 0x632BE5AB")
    A("v_mov_b32 v19, s15")
    A("ds_write_b32 v18, v19")
    A("s_waitcnt lgkmcnt(0)")
    A(f"v_mov_b32 v18, {KA_CNT + 12}")
    A("v_mov_b32 v19, 1")
    A("s_mov_b64 exec, 1")
    A("ds_add_u32 v18, v19")
    A("s_mov_b64 exec, -1")
    A(f"s_cmp_lt_u32 s2, 160")
    A("s_cbranch_scc1 KA_CONV")
    A("s_branch KA_WTPOLL")
    A.label("KA_NOTAG")
    A(f"s_cmp_ge_u32 s2, 160")
    A("s_cbranch_scc1 KA_WT0")
    kgen_wave(A)
    arrive_s(A, 4, 37)
    wait_s(A, 4, 37, 3, "KA_W4")
    stamp(A, 7)
    A(f"s_mul_i32 s11, s37, {3*KG_SZ}")
    A("s_lshl_b32 s12, s36, 10")
    A("s_add_u32 s11, s11, s12")
    A("v_add_u32 v28, s11, v28")
    for w in range(3):
        A(f"ds_read_b128 {vr(40+4*w,4)}, v28 offset:{KG_SZ*w}")
    A("s_waitcnt lgkmcnt(0)")
    for i in range(4):
        A(f"v_add_f32 v{40+i}, v{40+i}, v{44+i}")
    for i in range(4):
        A(f"v_add_f32 v{40+i}, v{40+i}, v{48+i}")
    A("v_cvt_pk_f16_f32 v40, v40, v41")
    A("v_cvt_pk_f16_f32 v41, v42, v43")
    A("s_cmp_eq_u32 s36, 1")
    A("s_cbranch_scc1 KA_S1")
    A("ds_write_b64 v29, v[40:41]")
    A("s_branch KA_S2")
    A.label("KA_S1")
    A("ds_write_b16 v29, v40")
    A("ds_write_b16_d16_hi v29, v40 offset:64")
    A("ds_write_b16 v29, v41 offset:128")
    A("ds_write_b16_d16_hi v29, v41 offset:192")
    A.label("KA_S2")
    arrive_s(A, 8, 37)
    wait_s(A, 8, 37, 3, "KA_W5")
    A(f"s_mul_i32 s39, s37, {KEO_ST}")
    A(f"s_add_u32 s39, s39, {KEO_BASE}")
    A(f"s_mul_i32 s40, s37, {T_ST}")
    A(f"s_add_u32 s40, s40, {KA_T}")
    A("s_cmp_eq_u32 s36, 0")
    A("s_cbranch_scc1 KA_R0")
    A("s_cmp_eq_u32 s36, 1")
    A("s_cbranch_scc1 KA_R1")
    expand_round(A, 2, "R2")
    A("s_branch KA_RX")
    A.label("KA_R0")
    expand_round(A, 0, "R0")
    A("s_branch KA_RX")
    A.label("KA_R1")
    expand_round(A, 1, "R1")
    A.label("KA_RX")
    arrive_s(A, 12, 37)
    k_end(A, 0)

    A.label("KA_CONV")
    A("s_lshl_b32 s4, s35, 2")
    A("s_add_u32 s4, s4, s3")
    A("s_lshr_b32 s14, s4, 1")
    A("s_lshl_b32 s14, s14, 2")
    A(f"s_mul_i32 s39, s3, {KEO_ST}")
    A(f"s_mul_i32 s40, s3, {T_ST}")
    A(f"s_add_u32 s40, s40, {KA_T}")
    A(f"s_mul_i32 s41, s3, {U_ST}")
    A(f"s_add_u32 s41, s41, {KA_U}")
    A("v_and_b32 v6, 15, v2")
    A("v_lshrrev_b32 v7, 4, v2")
    A("v_lshrrev_b32 v8, 1, v7")
    A("v_and_b32 v9, 1, v7")
    A("v_mov_b32 v12, 0")
    A("v_mov_b32 v13, 0")
    A("v_lshlrev_b32 v14, 3, v2")
    A("v_add_u32 v14, s41, v14")
    A("ds_write_b64 v14, v[12:13]")
    A("v_sub_u32 v14, 2047, v6")
    A("v_lshlrev_b32 v15, 4, v8")
    A("v_sub_u32 v14, v14, v15")
    A("v_lshlrev_b32 v15, 3, v9")
    A("v_add_u32 v14, v14, v15")
    A("v_lshlrev_b32 v14, 1, v14")
    A(f"v_add_u32 v15, {KA_KO - 2}, v14")
    A("v_and_b32 v16, 1, v6")
    A("v_cmp_eq_u32 vcc, 1, v16")
    A("v_cndmask_b32 v14, v15, v14, vcc")
    A("v_add_u32 v14, s39, v14")
    AB = [20, 21, 22, 23]
    for p in range(4):
        A(f"v_subrev_u32 v{AB[p]}, {512*(2*p+1) + 448}, v14")
    A("v_lshlrev_b32 v15, 5, v6")
    A("v_lshlrev_b32 v16, 5, v8")
    A("v_sub_u32 v15, v15, v16")
    A("v_lshlrev_b32 v16, 4, v9")
    A("v_add_u32 v15, v15, v16")
    A(f"v_add_u32 v15, {512 - 448}, v15")
    BB = 24
    A(f"v_add_u32 v{BB}, s41, v15")
    A("v_lshlrev_b32 v15, 5, v6")
    A("v_lshlrev_b32 v16, 3, v7")
    A("v_add_u32 v25, v15, v16")
    A("v_lshlrev_b32 v3, 3, v2")
    A("v_sub_u32 v3, 511, v3")
    for k in range(9):
        A(f"v_subrev_u32 v{30+k}, {k}, v3")
    A("v_max_i32 v38, 0, v38")
    for k in range(9):
        A(f"v_cvt_f32_i32 v{40+k}, v{30+k}")
    for k in range(0, 8, 2):
        A(f"v_cvt_pk_bf16_f32 v{50+k}, v{40+k}, v{41+k}")
        A(f"v_lshrrev_b32 v{51+k}, 16, v{50+k}")
        A(f"v_and_b32 v{50+k}, 0xffff, v{50+k}")
    A("v_cvt_pk_bf16_f32 v58, v48, v48")
    A("v_and_b32 v58, 0xffff, v58")
    for k in range(9):
        A(f"v_subrev_u32 v{50+k}, 17024, v{50+k}")
        A(f"v_min_i32 v{30+k}, 127, v{30+k}")
        A(f"v_max_i32 v{50+k}, v{50+k}, v{30+k}")
        A(f"v_lshlrev_b32 v{30+k}, 1, v{50+k}")
        A(f"v_add_u32 v{30+k}, s40, v{30+k}")
    A("v_lshrrev_b32 v5, 2, v2")
    A("v_mul_u32_u24 v5, 10240, v5")
    A("v_and_b32 v4, 3, v2")
    A("v_lshl_add_u32 v5, v4, 4, v5")
    A("s_lshl_b32 s7, s35, 6")
    A("s_mul_i32 s8, s3, 655360")
    A("s_add_u32 s7, s7, s8")
    A(f"s_add_u32 s7, s7, {WS_UT}")
    A("v_add_u32 v5, s7, v5")
    A(f"v_mul_u32_u24 v4, {U_ST}, v4")
    A("v_lshrrev_b32 v3, 2, v2")
    A("v_lshl_add_u32 v4, v3, 4, v4")
    A("s_lshl_b32 s8, s3, 10")
    A(f"s_add_u32 s8, s8, {KA_U + 512}")
    A("v_add_u32 v4, s8, v4")
    A("s_load_dword s11, s[28:29], s14")
    stamp(A, 1)
    A("s_cmp_lg_u32 s3, 3")
    A("s_cbranch_scc1 KA_GOT")
    wait_count(A, 3, 4, "KA_OWN", sleep=4)
    poll_flags(A, "KA_POLL")
    A(f"s_cmp_lg_u32 s2, 0")
    A("s_cbranch_scc1 KA_GOT")
    A(f"v_mov_b32 v3, {WS_EPOCH}")
    A("v_mov_b32 v10, s15")
    A("s_mov_b64 exec, 1")
    A(f"global_store_dword v3, v10, s[32:33] {SC}")
    A("s_mov_b64 exec, -1")
    A.label("KA_GOT")
    AF, BF, ACC = 32, 64, 96
    for i in range(32):
        A(f"v_mov_b32 v{ACC+i}, 0")
    A("s_bitcmp1_b32 s4, 0")
    group_sync(A, 2, 4, "KA_GS2")
    stamp(A, 2)
    for j in range(4):
        A(f"global_load_dwordx4 {vr(64+4*j,4)}, v5, s[32:33] {SC}")
        if j < 3:
            A("v_add_u32 v5, 163840, v5")
    A("s_bitcmp1_b32 s4, 0")
    A("s_cbranch_scc1 KA_ODD2")
    A("s_lshl_b32 s11, s11, 16")
    A.label("KA_ODD2")
    A("s_and_b32 s11, s11, 0xffff0000")
    for j in range(4):
        A(f"s_waitcnt vmcnt({3-j})")
        A(f"ds_write_b128 v4, {vr(64+4*j,4)} offset:{256*j}")
    arrive(A, 17)
    stamp(A, 3)
    wait_s(A, 8, 3, 3, "KA_W5C")
    expand_round(A, 3, "R3")
    A("s_lshl_b32 s12, s3, 2")
    A(f"s_add_u32 s12, s12, {KA_SC}")
    A("v_mov_b32 v3, s12")
    A("ds_read_b32 v10, v3")
    wait_s(A, 12, 3, 3, "KA_W6")
    wait_count(A, 17, 4, "KA_W7", sleep=0)
    stamp(A, 5)

    def loadA(q, i0):
        p = q // 2
        o = (128 if q % 2 == 0 else 0) + 16 * (7 - i0)
        return [f"ds_read2_b32 {vr(AF+4*q,2)}, v{AB[p]} offset0:{o} offset1:{o+1}",
                f"ds_read2_b32 {vr(AF+4*q+2,2)}, v{AB[p]} offset0:{o+2} offset1:{o+3}"]

    def loadB(tau, i0):
        return [f"ds_read_b128 {vr(BF+4*tau,4)}, v{BB} offset:{512*tau + 64*(7-i0)}"]

    queue = []
    if os.environ.get("ALIGN"):
        A(".p2align 3")
    for q in range(8):
        A(loadB(7 - q, 0)[0])
        queue.append(("B", 7 - q))
        if q == 0:
            for s in loadA(0, 0):
                A(s)
            queue += [("A", 0), ("A", 0)]
    for q in range(1, 8):
        for s in loadA(q, 0):
            A(s)
        queue += [("A", q), ("A", q)]
    pending = []

    def wait_for(tags):
        while any(tg in tags for _, tg in pending):
            s_, tg = pending.pop(0)
            A(s_)
            queue.append(tg)
        last = -1
        for i, t in enumerate(queue):
            if t in tags:
                last = i
        if last >= 0:
            n = len(queue) - 1 - last
            A(f"s_waitcnt lgkmcnt({min(n, 15)})")
            if os.environ.get("ALIGN"):
                A("s_nop 0")
            del queue[:last + 1]

    for i0 in range(8):
        for q in range(8):
            for tau in range(7 - q, -1, -1):
                wait_for({("A", q), ("B", tau)})
                t = q + tau
                A(f"v_mfma_f32_16x16x32_f16 {vr(ACC+4*t,4)}, {vr(AF+4*q,4)}, {vr(BF+4*tau,4)}, {vr(ACC+4*t,4)}")
                if i0 < 7:
                    if tau == 7 - q:
                        pending.insert(0, (loadB(7 - q, i0 + 1)[0], ("B", 7 - q)))
                    if tau == 0:
                        for s in loadA(q, i0 + 1):
                            pending.append((s, ("A", q)))
                if pending:
                    s, tag = pending.pop(0)
                    A(s)
                    queue.append(tag)
    stamp(A, 6)
    A("v_add_u32 v26, s41, v25")
    A("v_add_u32 v27, s39, v25")
    for t in range(8):
        A(f"ds_read_b64 {vr(32+2*t,2)}, v26 offset:{512 + 512*t}")
    A(f"v_mov_b32 v28, {ONE_LO}")
    A(f"v_mov_b32 v29, {ONE_HI}")
    A("v_mov_b32 v11, v10")
    A("s_waitcnt lgkmcnt(0)")
    for t in range(8):
        a = ACC + 4 * t
        u = 32 + 2 * t
        tm = 48 + 8 * (t & 1)
        A(f"v_pk_mul_f32 {vr(a,2)}, {vr(a,2)}, v[10:11]")
        A(f"v_pk_mul_f32 {vr(a+2,2)}, {vr(a+2,2)}, v[10:11]")
        A(f"v_fma_mix_f32 v{tm}, v{u}, s11, 0 op_sel:[0,0,0] op_sel_hi:[1,0,0]")
        A(f"v_fma_mix_f32 v{tm+1}, v{u}, s11, 0 op_sel:[1,0,0] op_sel_hi:[1,0,0]")
        A(f"v_fma_mix_f32 v{tm+2}, v{u+1}, s11, 0 op_sel:[0,0,0] op_sel_hi:[1,0,0]")
        A(f"v_fma_mix_f32 v{tm+3}, v{u+1}, s11, 0 op_sel:[1,0,0] op_sel_hi:[1,0,0]")
        A(f"v_cvt_pk_bf16_f32 v{a}, v{a}, v{a+1}")
        A(f"v_cvt_pk_bf16_f32 v{a+1}, v{a+2}, v{a+3}")
        A(f"v_cvt_pk_bf16_f32 v{tm+4}, v{tm}, v{tm+1}")
        A(f"v_cvt_pk_bf16_f32 v{tm+5}, v{tm+2}, v{tm+3}")
        A(f"v_lshlrev_b32 v{tm}, 16, v{tm+4}")
        A(f"v_and_b32 v{tm+1}, 0xffff0000, v{tm+4}")
        A(f"v_lshlrev_b32 v{tm+2}, 16, v{tm+5}")
        A(f"v_and_b32 v{tm+3}, 0xffff0000, v{tm+5}")
        A(f"v_dot2_f32_bf16 v{tm}, v{a}, v28, v{tm}")
        A(f"v_dot2_f32_bf16 v{tm+1}, v{a}, v29, v{tm+1}")
        A(f"v_dot2_f32_bf16 v{tm+2}, v{a+1}, v28, v{tm+2}")
        A(f"v_dot2_f32_bf16 v{tm+3}, v{a+1}, v29, v{tm+3}")
        A(f"v_cvt_pk_bf16_f32 v{a+2}, v{tm}, v{tm+1}")
        A(f"v_cvt_pk_bf16_f32 v{a+3}, v{tm+2}, v{tm+3}")
        A(f"ds_write_b64 v27, {vr(a+2,2)} offset:{KA_KE + 512*t}")
    stamp(A, 7)
    A("v_lshrrev_b32 v14, 2, v6")
    A(f"v_mul_u32_u24 v14, {KEO_ST}, v14")
    A("v_and_b32 v15, 3, v2")
    A("v_lshlrev_b32 v15, 3, v15")
    A("v_add_u32 v14, v14, v15")
    A("v_lshlrev_b32 v15, 5, v7")
    A("v_add_u32 v14, v14, v15")
    A("s_lshl_b32 s12, s3, 10")
    A("v_add_u32 v14, s12, v14")
    A("v_lshrrev_b32 v15, 3, v6")
    A("v_lshlrev_b32 v16, 1, v7")
    A("v_add_u32 v15, v15, v16")
    A("v_mul_u32_u24 v15, 10240, v15")
    A("v_and_b32 v16, 7, v6")
    A("v_lshlrev_b32 v16, 3, v16")
    A("v_add_u32 v15, v15, v16")
    A("s_mul_i32 s12, s3, 655360")
    A("s_lshl_b32 s13, s35, 6")
    A("s_add_u32 s12, s12, s13")
    A(f"s_add_u32 s12, s12, {WS_AT}")
    A("v_add_u32 v15, s12, v15")
    A("s_waitcnt lgkmcnt(0)")
    A("s_barrier")
    for k in range(8):
        A(f"ds_read_b64_tr_b16 {vr(40+2*k,2)}, v14 offset:{KA_KE + 128*k}")
    for k in range(8):
        A(f"s_waitcnt lgkmcnt({7-k})")
        A(f"global_store_dwordx2 v15, {vr(40+2*k,2)}, s[32:33] {os.environ.get('AT_MOD', '')}")
        if k < 7:
            A("v_add_u32 v15, 81920, v15")
    k_end(A, 0)

    A.label("KA_LN1")
    A(f"s_setprio {os.environ.get('LN_PRIO', '3')}")
    A("v_mov_b32 v20, v0")
    A("s_mul_i32 s5, s2, 10240")
    A("v_min_u32 v21, 159, v20")
    A("v_lshlrev_b32 v3, 3, v21")
    A("v_add_u32 v3, s5, v3")
    A("v_add_u32 v4, 5120, v3")
    A("v_lshrrev_b32 v5, 4, v20")
    A("v_mul_u32_u24 v6, 1280, v5")
    A("v_and_b32 v7, 15, v20")
    A("v_lshlrev_b32 v7, 4, v7")
    A("v_add_u32 v6, v6, v7")
    A("v_add_u32 v6, s5, v6")
    A("s_cmp_eq_u32 s3, 2")
    A("s_cbranch_scc1 KA_LNB")
    for i in range(5):
        A(f"global_load_dwordx4 {vr(24+4*i,4)}, v6, s[16:17] offset:{256*i}")
    A.label("KA_LNB")
    for r in range(8):
        A(f"global_load_dwordx2 {vr(48+2*r,2)}, v{3 if r < 4 else 4}, s[16:17] offset:{1280*(r%4)}")
    A(f"v_mov_b32 v14, {ONE_LO}")
    A(f"v_mov_b32 v15, {ONE_HI}")
    A("s_cmp_eq_u32 s3, 2")
    A("s_cbranch_scc1 KA_P1")
    for r in (8, 9, 10, 11):
        A(f"v_mov_b32 v{r}, 0")
    A("v_mov_b32 v12, 0x3f803f80")
    A("s_waitcnt vmcnt(8)")
    for i in range(0, 20, 2):
        A(f"v_dot2c_f32_bf16 v8, v{24+i}, v12")
        A(f"v_dot2c_f32_bf16 v9, v{24+i}, v{24+i}")
        A(f"v_dot2c_f32_bf16 v10, v{25+i}, v12")
        A(f"v_dot2c_f32_bf16 v11, v{25+i}, v{25+i}")
    A("s_nop 2")
    A("v_add_f32 v8, v8, v10")
    A("v_add_f32 v9, v9, v11")
    for sh in (8, 4, 2, 1):
        A(f"v_add_f32_dpp v8, v8, v8 row_ror:{sh} row_mask:0xf bank_mask:0xf")
        A(f"v_add_f32_dpp v9, v9, v9 row_ror:{sh} row_mask:0xf bank_mask:0xf")
    ln_finish(A, 8, 9, 10)
    A("v_sub_f32 v8, 0, v8")
    A("v_lshlrev_b32 v5, 3, v5")
    A(f"v_add_u32 v5, {KA_STATS}, v5")
    A("ds_write_b64 v5, v[8:9]")
    A.label("KA_P1")
    group_sync(A, 0, 3, "KA_GS0")
    stamp(A, 8)
    A(f"v_mov_b32 v5, {KA_STATS}")
    for i in range(4):
        A(f"ds_read_b128 {vr(24+4*i,4)}, v5 offset:{16*i}")
    A("v_lshlrev_b32 v3, 6, v21")
    A(f"v_add_u32 v3, {KA_STAGE}, v3")
    A("s_waitcnt vmcnt(0) lgkmcnt(0)")
    for rp in range(4):
        r0, r1 = 2 * rp, 2 * rp + 1
        tt = [84 + 3 * ch for ch in range(4)]
        for ch in range(4):
            a, b = 48 + 2 * r0 + (ch >> 1), 48 + 2 * r1 + (ch >> 1)
            one = 14 + (ch & 1)
            A(f"v_dot2_f32_bf16 v{tt[ch]}, v{a}, v{one}, v{24+2*r0}")
            A(f"v_dot2_f32_bf16 v{tt[ch]+1}, v{b}, v{one}, v{24+2*r1}")
        for ch in range(4):
            A(f"v_cvt_pk_bf16_f32 v{tt[ch]+2}, v{tt[ch]}, v{tt[ch]+1}")
        for ch in range(4):
            A(f"v_lshlrev_b32 v{tt[ch]}, 16, v{tt[ch]+2}")
            A(f"v_and_b32 v{tt[ch]+1}, 0xffff0000, v{tt[ch]+2}")
        for ch in range(4):
            A(f"v_mul_f32 v{tt[ch]}, v{tt[ch]}, v{25+2*r0}")
            A(f"v_mul_f32 v{tt[ch]+1}, v{tt[ch]+1}, v{25+2*r1}")
        for ch in range(4):
            A(f"v_cvt_pk_bf16_f32 v{tt[ch]+2}, v{tt[ch]}, v{tt[ch]+1}")
        for ch in range(4):
            A(f"v_lshlrev_b32 v{tt[ch]}, 16, v{tt[ch]+2}")
            A(f"v_and_b32 v{tt[ch]+1}, 0xffff0000, v{tt[ch]+2}")
        for ch in range(4):
            A(f"v_cvt_pk_f16_f32 v{68+4*ch+rp}, v{tt[ch]}, v{tt[ch]+1}")
    for ch in range(4):
        A(f"ds_write_b128 v3, {vr(68+4*ch,4)} offset:{16*ch}")
    group_sync(A, 1, 3, "KA_GS1")
    A("v_lshlrev_b32 v3, 4, v20")
    A(f"v_add_u32 v4, {KA_STAGE}, v3")
    for j in range(4):
        A(f"ds_read_b128 {vr(24+4*j,4)}, v4 offset:{3072*j}")
    A(f"s_add_u32 s5, s5, {WS_UT}")
    A("v_add_u32 v3, s5, v3")
    A("s_waitcnt lgkmcnt(0)")
    for j in range(3):
        A(f"global_store_dwordx4 v3, {vr(24+4*j,4)}, s[32:33] {SC}")
        A("v_add_u32 v3, 3072, v3")
    A("s_cmp_lg_u32 s3, 0")
    A("s_cbranch_scc1 KA_P3")
    A(f"global_store_dwordx4 v3, {vr(36,4)}, s[32:33] {SC}")
    A.label("KA_P3")
    A("s_waitcnt vmcnt(0)")
    group_sync(A, 3, 4, "KA_GS3")
    stamp(A, 9)
    A("s_cmp_lg_u32 s3, 0")
    A("s_cbranch_scc1 KA_LNX")
    A(f"v_mov_b32 v3, {KA_CNT + 96}")
    A("ds_read_b32 v4, v3")
    A(f"s_lshr_b32 s5, s2, {0 if FLAG64 == 2 else 2 if FLAG64 else 4}")
    A("s_lshl_b32 s5, s5, 7")
    A(f"s_and_b32 s6, s2, {0 if FLAG64 == 2 else 3 if FLAG64 else 15}")
    A("s_lshl_b32 s6, s6, 2")
    A("s_add_u32 s5, s5, s6")
    A(f"s_add_u32 s5, s5, {WS_FLAG}")
    A("v_mov_b32 v3, s5")
    A("s_waitcnt lgkmcnt(0)")
    A("s_mov_b64 exec, 1")
    A(f"global_store_dword v3, v4, s[32:33] {FMOD}")
    A("s_mov_b64 exec, -1")
    A.label("KA_LNX")
    A("s_setprio 0")
    A(f"s_cmp_lt_u32 s2, 160")
    A("s_cbranch_scc1 KA_CONV")
    k_end(A, 0)
    A.label("KA_WTPOLL")
    wait_count(A, 3, 4, "KA_OWN2", sleep=4)
    if os.environ.get("WT_LATE"):
        poll_epoch(A, "KA_POLL2")
    arrive(A, 16)
    k_end(A, 0)
    A.label("KA_WT0")
    A("s_cmp_ge_u32 s3, 8")
    A("s_cbranch_scc1 KA_PRE" if PREFILL[0] else "s_cbranch_scc1 KA_WTX")
    wait_count(A, 16, 1, "KA_WTW", sleep=8)
    wt_role(A, "KA", 0, -2, 8192, 0, 960, 0, os.environ.get("WT_MOD", "sc1"), 384)
    if PREFILL[0]:
        A.label("KA_PRE")
        if TLBW == 1 or TLBW == 3:
            A("s_cmp_lg_u32 s3, 9")
            A("s_cbranch_scc1 KA_PRE2")
            A("s_load_dwordx2 s[36:37], s[0:1], 96")
            A("s_load_dwordx2 s[38:39], s[0:1], 64")
            A("v_min_u32 v3, 7, v2")
            A("v_lshlrev_b32 v3, 21, v3")
            A("global_load_dword v4, v3, s[32:33]")
            A("v_min_u32 v5, 1, v2")
            A("v_lshlrev_b32 v5, 21, v5")
            A("v_mov_b32 v7, 0")
            A("s_waitcnt lgkmcnt(0)")
            A("global_load_dword v6, v5, s[36:37]")
            A("global_load_dword v8, v7, s[38:39]")
            A("s_endpgm")
            A.label("KA_PRE2")
        A("s_cmp_lg_u32 s3, 8")
        A("s_cbranch_scc1 KA_WTX")
        nk = 256 * KEY_STRIDE // 1024
        A("s_sub_u32 s7, s2, 160")
        A(f"s_cmp_ge_u32 s7, {nk + 24}")
        A("s_cbranch_scc1 KA_WTX")
        A("s_lshl_b32 s4, s7, 10")
        A(f"s_add_u32 s5, s4, {WS_RK}")
        A(f"s_add_u32 s6, s4, {WS_ACT - 1024 * nk}")
        A(f"s_cmp_lt_u32 s7, {nk}")
        A("s_cselect_b32 s5, s5, s6")
        A("v_lshlrev_b32 v3, 4, v2")
        A("v_add_u32 v3, s5, v3")
        for i in range(4):
            A(f"v_mov_b32 v{4+i}, -1")
        A("global_store_dwordx4 v3, v[4:7], s[32:33]")
    A.label("KA_WTX")
    k_end(A, 0)
    A.label("KA_END")
    A("s_endpgm")


KC_SLEEP = int(os.environ.get('KC_SLEEP', '6'))
AT_LD = os.environ.get('AT_LD', '')
KD_LDS = 18432
KD_F1_FIRST = int(os.environ.get("KD_F1_FIRST", "20"))
KD_F2_FIRST = int(os.environ.get("KD_F2_FIRST", "64"))
KD_KSLEEP = int(os.environ.get("KD_KSLEEP", "8"))
NROW = 256


def sel_part1(A, lbl, first_sleep):
    A(f"v_lshlrev_b32 v4, {KEY_STRIDE.bit_length() - 1}, v0")
    A(f"v_add_u32 v4, {WS_RK}, v4")
    A("s_mov_b32 s12, 0")
    A("v_mov_b32 v21, -1")
    if first_sleep:
        A(f"s_sleep {first_sleep}")
    A.label(lbl)
    A(f"global_load_dwordx4 v[8:11], v4, s[32:33] {SC}")
    A(f"global_load_dwordx4 v[12:15], v4, s[32:33] offset:16 {SC}")
    A("s_waitcnt vmcnt(0)")
    A("v_max3_u32 v16, v8, v9, v10")
    A("v_max3_u32 v17, v11, v12, v13")
    A("v_max3_u32 v16, v16, v14, v15")
    A("v_max_u32 v16, v16, v17")
    A("v_cmp_eq_u32 vcc, v21, v16")
    A("s_cmp_eq_u64 vcc, 0")
    A(f"s_cbranch_scc1 {lbl}_OK")
    A("s_add_u32 s12, s12, 1")
    A(f"s_cmp_ge_u32 s12, {SPIN_MAX}")
    A(f"s_cbranch_scc1 {lbl}_OK")
    A(f"s_sleep {KD_KSLEEP}")
    A(f"s_branch {lbl}")
    A.label(lbl + "_OK")
    stamp(A, 5)
    net = [(0, 1), (2, 3), (4, 5), (6, 7), (0, 2), (1, 3), (4, 6), (5, 7), (1, 2), (5, 6), (0, 4), (3, 7), (1, 5), (2, 6),
           (1, 4), (3, 6), (2, 4), (3, 5), (3, 4)]
    reg = list(range(8, 16))
    spare = 16
    for a_, b_ in net:
        A(f"v_max_u32 v{spare}, v{reg[a_]}, v{reg[b_]}")
        A(f"v_min_u32 v{reg[b_]}, v{reg[a_]}, v{reg[b_]}")
        reg[a_], spare = spare, reg[a_]
    steps = [("row_shr:1", "0xf"), ("row_shr:2", "0xf"), ("row_shr:4", "0xf"), ("row_shr:8", "0xf"),
             ("row_bcast:15", "0xa"), ("row_bcast:31", "0xc")]
    for r in range(4):
        A(f"v_mov_b32 v17, v{reg[0]}")
        A(f"v_mov_b32 v18, v{reg[1]}")
        for ctl, mask in steps:
            bc = " bound_ctrl:0" if ctl.startswith("row_shr") else ""
            A(f"v_min_u32_dpp v19, v17, v17 {ctl} row_mask:{mask} bank_mask:0xf{bc}")
            A(f"v_max_u32_dpp v17, v17, v17 {ctl} row_mask:{mask} bank_mask:0xf{bc}")
            A(f"v_max_u32_dpp v20, v18, v18 {ctl} row_mask:{mask} bank_mask:0xf{bc}")
            A("v_max_u32 v18, v19, v20")
        A(f"v_readlane_b32 s{40+2*r}, v17, 63")
        A(f"v_readlane_b32 s{41+2*r}, v18, 63")
        if r < 3:
            left = 8 - 2 * r
            for wsel in (40 + 2 * r, 41 + 2 * r):
                A(f"v_cmp_eq_u32 vcc, s{wsel}, v{reg[0]}")
                left -= 1
                for k in range(left):
                    A(f"v_cndmask_b32 v{reg[k]}, v{reg[k]}, v{reg[k+1]}, vcc")
    A("v_mov_b32 v16, s40")
    for r in range(1, 8):
        A(f"v_writelane_b32 v16, s{40+r}, {r}")
    A("s_lshl_b32 s6, s3, 5")
    A("v_lshlrev_b32 v17, 2, v2")
    A("v_add_u32 v17, s6, v17")
    A("v_cmp_gt_u32 vcc, 8, v2")
    A("s_and_saveexec_b64 s[20:21], vcc")
    A("ds_write_b32 v17, v16")
    A("s_mov_b64 exec, s[20:21]")


def sel_part2(A):
    A("v_and_b32 v17, 31, v2")
    A("v_lshlrev_b32 v17, 2, v17")
    A("v_lshrrev_b32 v18, 5, v2")
    A("v_lshlrev_b32 v18, 6, v18")
    A("v_mov_b32 v19, 0")
    A("v_mov_b32 v20, 0")
    A("s_waitcnt lgkmcnt(0)")
    A("s_barrier")
    A("ds_read_b32 v16, v17")
    for i in range(4):
        A(f"ds_read_b128 {vr(60+4*i,4)}, v18 offset:{16*i}")
    A("s_waitcnt lgkmcnt(0)")
    sp = ["s[50:51]", "s[52:53]", "s[54:55]", "s[56:57]"]
    for i in range(0, 16, 4):
        for k in range(4):
            A(f"v_cmp_gt_u32 {sp[k]}, v{60+i+k}, v16")
        for k in range(4):
            A(f"v_addc_co_u32 v{19 + (k & 1)}, vcc, 0, v{19 + (k & 1)}, {sp[k]}")
    A("v_add_u32 v19, v19, v20")
    A("v_mov_b32 v20, v19")
    A("v_permlane32_swap_b32 v19, v20")
    A("v_add_u32 v19, v19, v20")
    A("v_cmp_gt_u32 vcc, 8, v19")
    A("v_cmp_gt_u32 s[22:23], 32, v2")
    A("s_and_b64 vcc, vcc, s[22:23]")
    A("v_lshlrev_b32 v19, 2, v19")
    A("s_lshl_b32 s6, s3, 6")
    A("s_add_u32 s6, s6, 256")
    A("v_add_u32 v19, s6, v19")
    A("s_and_saveexec_b64 s[20:21], vcc")
    A("ds_write_b32 v19, v16")
    A("s_mov_b64 exec, s[20:21]")


def kd(A):
    A("s_cmp_ge_u32 s2, 256")
    A("s_cbranch_scc1 KD_END")
    k_begin(A)
    A("s_load_dwordx2 s[32:33], s[0:1], 112")
    A("s_load_dwordx2 s[26:27], s[0:1], 0")
    A("s_load_dwordx2 s[28:29], s[0:1], 64")
    A("s_load_dwordx2 s[30:31], s[0:1], 96")
    A("v_lshrrev_b32 v1, 6, v0")
    A("v_readfirstlane_b32 s3, v1")
    A("v_and_b32 v2, 63, v0")
    A("s_and_b32 s35, s3, 3")
    A("s_cmp_ge_u32 s2, 192")
    A("s_cselect_b32 s36, 1, 0")
    A("s_sub_u32 s34, s2, 192")
    A("s_cmp_lt_u32 s34, 16")
    A("s_cselect_b32 s38, s36, 0")
    A("s_mov_b32 s37, s2")
    A("s_mul_i32 s7, s37, 20480")
    A("s_mul_i32 s8, s35, 5120")
    A("s_add_u32 s7, s7, s8")
    A(f"s_add_u32 s7, s7, {WS_WGU}")
    A("v_lshlrev_b32 v96, 4, v2")
    A("v_add_u32 v96, s7, v96")
    A("v_add_u32 v97, 4096, v96")
    A("v_lshrrev_b32 v5, 4, v2")
    A("v_and_b32 v4, 7, v2")
    A("v_bfe_u32 v6, v2, 3, 1")
    A("v_lshlrev_b32 v98, 7, v5")
    A("v_lshl_add_u32 v98, v4, 4, v98")
    A("v_lshl_add_u32 v98, v6, 9, v98")
    A("s_mul_i32 s5, s3, 3072")
    A("v_add_u32 v98, s5, v98")
    A(f"v_add_u32 v99, {WS_ACT}, v98")
    A("s_mul_i32 s4, s34, 24576")
    A(f"s_add_u32 s4, s4, {WS_WD}")
    A("v_add_u32 v98, s4, v98")
    A(f"v_add_u32 v97, {64*24576}, v98".replace("v97", "v95"))
    FR, A2, FRB = 100, 112, 124

    def frag_loads(tag):
        A("s_cmp_eq_u32 s36, 1")
        A(f"s_cbranch_scc1 KD_L2_{tag}")
        for i in range(4):
            A(f"global_load_dwordx4 {vr(FR+4*i,4)}, v96, s[32:33] offset:{1024*i}")
        A(f"global_load_dwordx4 {vr(FR+16,4)}, v97, s[32:33]")
        A(f"s_branch KD_LX_{tag}")
        A.label(f"KD_L2_{tag}")
        for i in range(3):
            A(f"global_load_dwordx4 {vr(FR+4*i,4)}, v98, s[32:33] offset:{1024*i}")
        A("s_cmp_eq_u32 s38, 0")
        A(f"s_cbranch_scc1 KD_LX_{tag}")
        for i in range(3):
            A(f"global_load_dwordx4 {vr(FRB+4*i,4)}, v95, s[32:33] offset:{1024*i}")
        A.label(f"KD_LX_{tag}")

    A("s_cmp_lt_u32 s3, 4")
    A("s_cbranch_scc1 KD_ROW")
    A("s_cmp_eq_u32 s36, 0")
    A("s_cbranch_scc1 KD_END")
    A("s_waitcnt lgkmcnt(0)")
    A("s_sleep 32")
    frag_loads("hi")
    A("s_barrier")
    A("s_branch KD_SEL2")
    A.label("KD_ROW")
    A("v_lshrrev_b32 v7, 5, v0")
    A("v_and_b32 v4, 31, v0")
    A("s_mul_i32 s4, s2, 10240")
    A("v_lshlrev_b32 v5, 3, v4")
    A("v_mul_u32_u24 v6, 1280, v7")
    A("v_add_u32 v6, v6, v5")
    A("v_add_u32 v8, s4, v6")
    A("v_lshlrev_b32 v3, 6, v4")
    A("v_lshl_add_u32 v3, v7, 3, v3")
    A(f"s_add_u32 s5, s4, {WS_AT + 4096}")
    A("v_add_u32 v3, s5, v3")
    A("v_add_u32 v9, 8192, v3")
    AR, XR, WR = 20, 32, 44
    A("s_waitcnt lgkmcnt(0)")
    stamp(A, 1)
    for i in range(5):
        if i < 4:
            A(f"global_load_dwordx2 {vr(AR+2*i,2)}, v3, s[32:33] offset:{2048*i - 4096} {AT_LD}")
        else:
            A(f"global_load_dwordx2 {vr(AR+2*i,2)}, v9, s[32:33] offset:-4096 {AT_LD}")
        A(f"global_load_dwordx2 {vr(XR+2*i,2)}, v8, s[26:27] offset:{256*i}")
    for i in range(5):
        A(f"global_load_dwordx2 {vr(WR+2*i,2)}, v5, s[28:29] offset:{256*i}")
    A(f"v_mov_b32 v12, {ONE_LO}")
    A(f"v_mov_b32 v13, {ONE_HI}")
    A("v_mov_b32 v14, 0x3f803f80")
    for r in (10, 11, 16, 17):
        A(f"v_mov_b32 v{r}, 0")
    A(f"v_add_u32 v9, {WS_L2}, v8")
    H, T = 56, 68
    A("s_waitcnt vmcnt(5)")
    stamp(A, 2)
    frag_loads("lo")
    N = 10
    for i in range(N):
        A(f"v_lshlrev_b32 v{T+2*i}, 16, v{AR+i}")
        A(f"v_and_b32 v{T+2*i+1}, 0xffff0000, v{AR+i}")
    for i in range(N):
        A(f"v_dot2_f32_bf16 v{T+2*i}, v{XR+i}, v12, v{T+2*i}")
        A(f"v_dot2_f32_bf16 v{T+2*i+1}, v{XR+i}, v13, v{T+2*i+1}")
    for i in range(N):
        A(f"v_cvt_pk_bf16_f32 v{H+i}, v{T+2*i}, v{T+2*i+1}")
    for i in range(0, N, 2):
        A(f"v_dot2c_f32_bf16 v10, v{H+i}, v14")
        A(f"v_dot2c_f32_bf16 v11, v{H+i}, v{H+i}")
        A(f"v_dot2c_f32_bf16 v16, v{H+i+1}, v14")
        A(f"v_dot2c_f32_bf16 v17, v{H+i+1}, v{H+i+1}")
    A("s_nop 2")
    A("v_add_f32 v10, v10, v16")
    A("v_add_f32 v11, v11, v17")

    def red(regs, tmps):
        for sh in (8, 4, 2, 1):
            for r in regs:
                A(f"v_add_f32_dpp v{r}, v{r}, v{r} row_ror:{sh} row_mask:0xf bank_mask:0xf")
        for r, t in zip(regs, tmps):
            A(f"v_mov_b32 v{t}, v{r}")
        for r, t in zip(regs, tmps):
            A(f"v_permlane16_swap_b32 v{r}, v{t}")
        for r, t in zip(regs, tmps):
            A(f"v_add_f32 v{r}, v{r}, v{t}")
    red([10, 11], [16, 17])
    ln_finish(A, 10, 11, 15)
    A("v_sub_f32 v10, 0, v10")
    L, O = AR, XR
    for i in range(N):
        A(f"v_dot2_f32_bf16 v{T+2*i}, v{H+i}, v12, v10")
        A(f"v_dot2_f32_bf16 v{T+2*i+1}, v{H+i}, v13, v10")
    for i in range(N):
        A(f"v_cvt_pk_bf16_f32 v{L+i}, v{T+2*i}, v{T+2*i+1}")
    for i in range(N):
        A(f"v_lshlrev_b32 v{T+2*i}, 16, v{L+i}")
        A(f"v_and_b32 v{T+2*i+1}, 0xffff0000, v{L+i}")
    A("v_mov_b32 v16, v11")
    A("v_mov_b32 v17, v11")
    for i in range(N):
        A(f"v_pk_mul_f32 {vr(T+2*i,2)}, {vr(T+2*i,2)}, v[16:17]")
    for i in range(N):
        A(f"v_cvt_pk_bf16_f32 v{L+i}, v{T+2*i}, v{T+2*i+1}")
    for i in range(5):
        A(f"global_store_dwordx2 v9, {vr(L+2*i,2)}, s[32:33] offset:{256*i} {SC}")
    A("v_mov_b32 v14, 0")
    A("v_mov_b32 v15, 0")
    for i in range(N):
        A(f"v_lshlrev_b32 v{T+2*i}, 16, v{L+i}")
        A(f"v_and_b32 v{T+2*i+1}, 0xffff0000, v{L+i}")
    for i in range(N):
        A(f"v_dot2_f32_bf16 v{T+2*i}, v{H+i}, v12, v{T+2*i}")
        A(f"v_dot2_f32_bf16 v{T+2*i+1}, v{H+i}, v13, v{T+2*i+1}")
    for i in range(N):
        A(f"v_cvt_pk_bf16_f32 v{O+i}, v{T+2*i}, v{T+2*i+1}")
    for i in range(5):
        A(f"global_store_dwordx2 v8, {vr(O+2*i,2)}, s[30:31] offset:{256*i} {SC}")
    stamp(A, 3)
    A("s_waitcnt vmcnt(10)")
    for i in range(0, N, 2):
        A(f"v_dot2c_f32_bf16 v14, v{L+i}, v{WR+i}")
        A(f"v_dot2c_f32_bf16 v15, v{L+i+1}, v{WR+i+1}")
    A("s_nop 2")
    A("v_add_f32 v14, v14, v15")
    red([14], [15])
    A("v_cvt_pk_bf16_f32 v40, v14, v14")
    A("v_and_b32 v40, 0xffff0000, v40")
    A("v_ashrrev_i32 v41, 31, v40")
    A("v_or_b32 v41, 0x80000000, v41")
    A("v_xor_b32 v40, v40, v41")
    A("v_and_b32 v40, 0xffff0000, v40")
    A("s_lshl_b32 s6, s2, 3")
    A("v_add_u32 v42, s6, v7")
    A("v_sub_u32 v43, 2047, v42")
    A("v_or_b32 v40, v40, v43")
    A("v_lshlrev_b32 v42, 2, v7")
    A("v_cmp_eq_u32 vcc, 0, v4")
    A("s_mov_b64 exec, vcc")
    A("ds_write_b32 v42, v40 offset:896")
    A("s_mov_b64 exec, -1")
    A("s_waitcnt vmcnt(0) lgkmcnt(0)")
    A("s_barrier")
    A("s_cmp_lg_u32 s3, 0")
    A("s_cbranch_scc1 KD_KPUB")
    A("v_lshlrev_b32 v42, 2, v2")
    A("ds_read_b32 v40, v42 offset:896")
    A(f"s_lshl_b32 s6, s2, {KEY_STRIDE.bit_length() - 1}")
    A(f"s_add_u32 s6, s6, {WS_RK}")
    A("v_add_u32 v42, s6, v42")
    A("s_waitcnt lgkmcnt(0)")
    A("s_mov_b64 exec, 0xff")
    A(f"global_store_dword v42, v40, s[32:33] {SC}")
    A("s_mov_b64 exec, -1")
    A.label("KD_KPUB")
    stamp(A, 4)
    sel_part1(A, "KD_KP", KD_F1_FIRST)
    A.label("KD_SEL2")
    sel_part2(A)
    A("s_cmp_eq_u32 s36, 1")
    A("s_cbranch_scc1 KD_F2")
    AFR = 60
    A("v_and_b32 v17, 7, v2")
    A("v_lshlrev_b32 v17, 2, v17")
    A("v_add_u32 v17, s6, v17")
    A("ds_read_b32 v16, v17")
    A("v_lshrrev_b32 v21, 4, v2")
    A("v_lshlrev_b32 v21, 4, v21")
    A("s_mul_i32 s6, s35, 320")
    A(f"s_add_u32 s6, s6, {WS_L2}")
    A("v_add_u32 v21, s6, v21")
    A("s_waitcnt lgkmcnt(0)")
    A("v_and_b32 v18, 0x7ff, v16")
    A("v_sub_u32 v18, 2047, v18")
    A("v_mul_u32_u24 v20, 1280, v18")
    A("v_add_u32 v20, v20, v21")
    for i in range(5):
        A(f"global_load_dwordx4 {vr(AFR+4*i,4)}, v20, s[32:33] offset:{64*i} {SC}")
    stamp(A, 6)
    for i in range(4):
        A(f"v_mov_b32 v{24+i}, 0")
    A("v_lshlrev_b32 v28, 4, v2")
    A("s_lshl_b32 s6, s3, 10")
    A("v_add_u32 v29, s6, v28")
    for i in range(5):
        A(f"s_waitcnt vmcnt({4-i})")
        A(f"v_mfma_f32_16x16x32_bf16 v[24:27], {vr(AFR+4*i,4)}, {vr(FR+4*i,4)}, v[24:27]")
    stamp(A, 7)
    A("ds_write_b128 v29, v[24:27] offset:1024")
    A("s_waitcnt lgkmcnt(0)")
    A("s_barrier")
    A("s_cmp_lg_u32 s35, 0")
    A("s_cbranch_scc1 KD_DONE")
    A("v_lshrrev_b32 v56, 3, v2")
    A("v_and_b32 v57, 7, v2")
    A("v_lshrrev_b32 v58, 2, v56")
    A("v_lshlrev_b32 v58, 8, v58")
    A("v_lshl_add_u32 v58, v57, 4, v58")
    A("v_and_b32 v59, 3, v56")
    A("v_lshl_add_u32 v58, v59, 2, v58")
    A("s_lshl_b32 s6, s3, 10")
    A("v_add_u32 v58, s6, v58")
    for w in range(4):
        A(f"ds_read_b32 v{40+w}, v58 offset:{1024 + 1024*w}")
        A(f"ds_read_b32 v{44+w}, v58 offset:{1024 + 1024*w + 128}")
    A("v_lshlrev_b32 v59, 1, v2")
    A("s_lshl_b32 s6, s37, 7")
    A(f"s_add_u32 s6, s6, {WS_ACT}")
    A("v_add_u32 v59, s6, v59")
    A("s_waitcnt lgkmcnt(0)")
    A("v_add_f32 v40, v40, v41")
    A("v_add_f32 v42, v42, v43")
    A("v_add_f32 v44, v44, v45")
    A("v_add_f32 v46, v46, v47")
    A("v_add_f32 v40, v40, v42")
    A("v_add_f32 v44, v44, v46")
    A("v_cvt_pk_bf16_f32 v41, v40, v44")
    A("v_lshlrev_b32 v40, 16, v41")
    A("v_and_b32 v44, 0xffff0000, v41")
    A(f"v_mul_f32 v42, {hex(fbits(-LOG2E))}, v40")
    A("v_exp_f32 v42, v42")
    A("v_add_f32 v42, 1.0, v42")
    A("v_rcp_f32 v42, v42")
    A("v_mul_f32 v40, v40, v42")
    A("v_cvt_pk_bf16_f32 v40, v40, v40")
    A("v_and_b32 v40, 0xffff0000, v40")
    A("v_mul_f32 v40, v40, v44")
    A("v_cvt_pk_bf16_f32 v40, v40, v40")
    A(f"global_store_short v59, v40, s[32:33] {SC}")
    A.label("KD_DONE")
    k_end(A, 2)

    A.label("KD_F2")
    for i in range(4):
        A(f"v_mov_b32 v{36+i}, 0")
        A(f"v_mov_b32 v{32+i}, 0")
        A(f"v_mov_b32 v{52+i}, 0")
    A("s_add_u32 s39, s34, 64")
    A("s_cmp_eq_u32 s3, 0")
    A("s_cselect_b32 s39, s34, s39")
    A("s_cselect_b32 s9, 1, 0")
    A("s_cmp_eq_u32 s3, 1")
    A("s_cselect_b32 s10, s38, 0")
    A("s_or_b32 s9, s9, s10")
    A("s_cmp_eq_u32 s9, 0")
    A("s_cbranch_scc1 KD_F2SL")
    A("v_lshrrev_b32 v17, 3, v2")
    A("v_lshlrev_b32 v17, 2, v17")
    A("v_add_u32 v17, s6, v17")
    A("ds_read_b32 v8, v17")
    A("v_and_b32 v16, 7, v2")
    A("s_lshl_b32 s6, s39, 3")
    A("v_add_u32 v16, s6, v16")
    A("v_lshrrev_b32 v17, 2, v16")
    A("v_lshlrev_b32 v17, 6, v17")
    A("v_and_b32 v18, 3, v16")
    A("v_lshl_add_u32 v17, v18, 1, v17")
    A(f"v_add_u32 v17, {WS_AT}, v17")
    A("s_waitcnt lgkmcnt(0)")
    A("v_and_b32 v40, 0x7ff, v8")
    A("v_sub_u32 v40, 2047, v40")
    A("v_mul_u32_u24 v36, 1280, v40")
    A("v_lshl_add_u32 v36, v16, 1, v36")
    A(f"v_add_u32 v18, {WS_L2}, v36")
    A(f"global_load_ushort v20, v18, s[32:33] {SC}")
    A("global_load_ushort v24, v36, s[26:27]")
    A("v_lshrrev_b32 v18, 3, v40")
    A("v_mul_u32_u24 v18, 10240, v18")
    A("v_and_b32 v19, 7, v40")
    A("v_lshl_add_u32 v18, v19, 3, v18")
    A("v_add_u32 v18, v18, v17")
    A("global_load_ushort v44, v18, s[32:33]")
    A("v_and_b32 v12, 0xffff0000, v8")
    A("v_ashrrev_i32 v48, 31, v12")
    A("v_not_b32 v48, v48")
    A("v_or_b32 v48, 0x80000000, v48")
    A("v_xor_b32 v12, v12, v48")
    A("v_and_b32 v12, 0xffff0000, v12")
    A(f"v_mul_f32 v12, {hex(fbits(-LOG2E))}, v12")
    A("v_exp_f32 v12, v12")
    A("v_add_f32 v12, 1.0, v12")
    A("v_rcp_f32 v12, v12")
    bf16_round(A, 12)
    A("s_waitcnt vmcnt(0)")
    A("v_lshlrev_b32 v24, 16, v24")
    A("v_lshlrev_b32 v44, 16, v44")
    A("v_lshlrev_b32 v20, 16, v20")
    A("v_add_f32 v24, v24, v44")
    bf16_round(A, 24)
    A(f"s_sleep {KD_A0}")
    A("s_branch KD_F2B2")
    A.label("KD_F2SL")
    A(f"s_sleep {KD_A1}")
    A.label("KD_F2B2")
    stamp(A, 6)
    A("s_mov_b32 s12, 0")
    A("v_mov_b32 v61, 0xffff")
    A.label("KD_POLL")
    for i in range(3):
        A(f"global_load_dwordx4 {vr(A2+4*i,4)}, v99, s[32:33] offset:{1024*i} {SC}")
    A("s_waitcnt vmcnt(0)")
    A(f"v_pk_max_u16 v62, v{A2}, v{A2+1}")
    A(f"v_pk_max_u16 v63, v{A2+2}, v{A2+3}")
    for i in range(4, 12, 2):
        A(f"v_pk_max_u16 v62, v62, v{A2+i}")
        A(f"v_pk_max_u16 v63, v63, v{A2+i+1}")
    A("v_pk_max_u16 v62, v62, v63")
    A("v_lshrrev_b32 v63, 16, v62")
    A("v_and_b32 v62, 0xffff, v62")
    A("v_max_u32 v62, v62, v63")
    A("v_cmp_eq_u32 vcc, v61, v62")
    A("s_cmp_eq_u64 vcc, 0")
    A("s_cbranch_scc1 KD_ACT")
    A("s_add_u32 s12, s12, 1")
    A(f"s_cmp_ge_u32 s12, {SPIN_MAX}")
    A("s_cbranch_scc1 KD_ACT")
    A(f"s_sleep {KC_SLEEP}")
    A("s_branch KD_POLL")
    A.label("KD_ACT")
    A("v_lshlrev_b32 v28, 4, v2")
    A("s_lshl_b32 s6, s3, 10")
    A("v_add_u32 v29, s6, v28")
    for i in range(3):
        A(f"v_mfma_f32_16x16x32_bf16 v[32:35], {vr(A2+4*i,4)}, {vr(FR+4*i,4)}, v[32:35]")
    A("s_cmp_eq_u32 s38, 0")
    A("s_cbranch_scc1 KD_NOB")
    for i in range(3):
        A(f"v_mfma_f32_16x16x32_bf16 v[52:55], {vr(A2+4*i,4)}, {vr(FRB+4*i,4)}, v[52:55]")
    for i in range(4):
        A(f"v_mov_b32 v{64+i}, v{52+i}")
    for i in range(4):
        A(f"v_permlane32_swap_b32 v{52+i}, v{64+i}")
    for i in range(4):
        A(f"v_add_f32_dpp v{52+i}, v{64+i}, v{52+i} row_shl:8 row_mask:0xf bank_mask:0xf")
    A("ds_write_b128 v29, v[52:55] offset:9216")
    A.label("KD_NOB")
    stamp(A, 7)
    for i in range(4):
        A(f"v_mov_b32 v{60+i}, v{32+i}")
    for i in range(4):
        A(f"v_permlane32_swap_b32 v{32+i}, v{60+i}")
    for i in range(4):
        A(f"v_add_f32_dpp v{32+i}, v{60+i}, v{32+i} row_shl:8 row_mask:0xf bank_mask:0xf")
    A("ds_write_b128 v29, v[32:35] offset:1024")
    A("s_waitcnt lgkmcnt(0)")
    A("s_barrier")
    A("s_cmp_eq_u32 s9, 0")
    A("s_cbranch_scc1 KD_DONE2")
    A("v_lshrrev_b32 v56, 3, v2")
    A("v_and_b32 v57, 7, v2")
    A("v_lshrrev_b32 v58, 2, v56")
    A("v_lshlrev_b32 v58, 8, v58")
    A("v_lshl_add_u32 v58, v57, 4, v58")
    A("v_and_b32 v59, 3, v56")
    A("v_lshl_add_u32 v58, v59, 2, v58")
    A("s_lshl_b32 s6, s3, 13")
    A("v_add_u32 v58, s6, v58")
    for w in range(8):
        A(f"ds_read_b32 v{40+w}, v58 offset:{1024 + 1024*w}")
    A("s_waitcnt lgkmcnt(0)")
    for st in (4, 2, 1):
        for j in range(st):
            A(f"v_add_f32 v{40+j}, v{40+j}, v{40+st+j}")
    bf16_round(A, 40)
    A("v_mul_f32 v40, v40, v12")
    bf16_round(A, 40)
    A("v_add_f32 v40, v40, v20")
    bf16_round(A, 40)
    A("v_add_f32 v40, v40, v24")
    A("v_cvt_pk_bf16_f32 v40, v40, v40")
    A(f"global_store_short v36, v40, s[30:31] {SC}")
    A.label("KD_DONE2")
    k_end(A, 2)
    A.label("KD_END")
    A("s_endpgm")


KD_A0 = int(os.environ.get("KD_A0", "16"))
KD_A1 = int(os.environ.get("KD_A1", "36"))

KD_TMPL = """.amdhsa_kernel {name}
  .amdhsa_next_free_vgpr {vgpr}
  .amdhsa_next_free_sgpr 102
  .amdhsa_accum_offset {acc}
  .amdhsa_group_segment_fixed_size 0
  .amdhsa_kernarg_size 120
  .amdhsa_user_sgpr_count 2
  .amdhsa_user_sgpr_kernarg_segment_ptr 1
  .amdhsa_system_sgpr_workgroup_id_x 1
.end_amdhsa_kernel
"""

HEADER = """; Kernarg layout (120 bytes, ptrs only): d_in[0..11] at 0..88, d_out 96, d_debug 104, d_ws 112
"""


def build(kernels):
    s = HEADER
    for label, fn, grid, block, lds, vgpr in kernels:
        s += f"; @launch kernel={label} grid=({grid},1,1) block=({block},1,1) lds={lds}\n"
    s += '.amdgcn_target "amdgcn-amd-amdhsa--gfx950"\n.text\n'
    done = set()
    for label, fn, grid, block, lds, vgpr in kernels:
        if label in done:
            continue
        done.add(label)
        A = Asm()
        fn(A)
        s += f".globl {label}\n.p2align 8\n.type {label},@function\n{label}:\n" + A.finish() + "\n"
    s += '.section .rodata,"a"\n'
    done = set()
    for label, fn, grid, block, lds, vgpr in kernels:
        if label in done:
            continue
        done.add(label)
        s += ".p2align 6\n" + KD_TMPL.format(name=label, vgpr=vgpr, acc=min(256, (vgpr + 3) // 4 * 4))
    return s


PREFILL[0] = True
KERNELS = [
    ("ka_kernel", ka, 256, 1024, KA_LDS, 128),
    ("kd_kernel", kd, 256, 512, KD_LDS, 136),
]

if __name__ == "__main__":
    if len(sys.argv) > 2 and sys.argv[2] == "stamp":
        STAMP[0] = True
    text = build(KERNELS)
    open(sys.argv[1], "w").write(text)
    print("wrote", sys.argv[1], len(text), "bytes")
```
